```python
import torch

def _softmax(x, axis=-1):
    return torch.softmax(x, dim=axis)
def _gelu(x):
    return torch.nn.functional.gelu(x, approximate="tanh")
def _silu(x):
    return torch.nn.functional.silu(x)
def _sigmoid(x):
    return torch.sigmoid(x)
def _layernorm(x, axis=-1, eps=1e-5):
    m = x.mean(dim=axis, keepdim=True)
    v = x.var(dim=axis, keepdim=True, unbiased=False)
    return (x - m) / torch.sqrt(v + eps)
def _scatter_add(tgt, idx, src, axis=0):
    return tgt.clone().index_add_(axis, idx, src)
def _segment_sum(src, seg, n):
    out = torch.zeros((n,) + src.shape[1:], dtype=src.dtype)
    return out.index_add_(0, seg, src)
def _pad(x, pw):
    flat = tuple(v for pair in reversed(pw) for v in pair)
    return torch.nn.functional.pad(x, flat)

kernel_name = 'recurrent_scan__sliding_local_dilated__dense_activation_gelu__prompt'

def setup_inputs():

    _w = (lambda a: (lambda t: t.to(torch.bfloat16) if t.is_floating_point() else t)(torch.as_tensor(a)))
    def _A_setup():
        B, S, D = 1, 2048, 640
        return {
            "x": _w((lambda *s: torch.randn(*s, dtype=torch.bfloat16) * 0.05)(B, S, D)),
            "wqkv": _w((lambda *s: torch.randn(*s, dtype=torch.bfloat16) * 0.2)(D, 3 * D)),
            "wo": _w((lambda *s: torch.randn(*s, dtype=torch.bfloat16) * 0.2)(D, D)),
        }
    _A_in = _A_setup()

    def _B_setup():
        B, S, D, F = 1, 2048, 640, 1728
        return {
            "x": _w((lambda *s: torch.randn(*s, dtype=torch.bfloat16) * 0.05)(B, S, D)),
            "w1": _w((lambda *s: torch.randn(*s, dtype=torch.bfloat16) * 1.6)(D, F) * (D ** -0.5)),
            "b1": _w((lambda *s: torch.randn(*s, dtype=torch.bfloat16) * 1.6)(F) * 0.01),
            "w2": _w((lambda *s: torch.randn(*s, dtype=torch.bfloat16) * 0.1)(F, D) * (F ** -0.5)),
            "b2": _w((lambda *s: torch.randn(*s, dtype=torch.bfloat16) * 0.1)(D) * 0.01),
        }
    _B_in = _B_setup()

    return {
        "A_x": _A_in["x"],
        "A_wqkv": _A_in["wqkv"],
        "A_wo": _A_in["wo"],
        "B_x": _B_in["x"],
        "B_w1": _B_in["w1"],
        "B_b1": _B_in["b1"],
        "B_w2": _B_in["w2"],
        "B_b2": _B_in["b2"],
    }

def reference(A_x, A_wqkv, A_wo, B_x, B_w1, B_b1, B_w2, B_b2):
    def _A_ref(x, wqkv, wo):
        B, S, D = x.shape
        H = 32; Dh = D // H
        W, dil = 8, 2
        qkv = (lambda x, *d: x.permute(*d))((x @ wqkv).reshape(B, S, 3, H, Dh), 2, 0, 3, 1, 4)
        q, k, v = qkv[0], qkv[1], qkv[2]
        scale = Dh ** -0.5
        pos = torch.arange(S)
        off = torch.arange(W) * dil
        idx = pos[:, None] - off[None, :]
        mask = idx >= 0
        idx_c = torch.where(mask, idx, 0).reshape(-1)
        kg = k[:, :, idx_c, :].reshape(B, H, S, W, Dh)
        vg = v[:, :, idx_c, :].reshape(B, H, S, W, Dh)
        logits = torch.einsum("bhsd,bhswd->bhsw", q, kg) * scale
        logits = torch.where(mask[None, None, :, :], logits, -1e9)
        attn = _softmax(logits, axis=-1)
        o = torch.einsum("bhsw,bhswd->bhsd", attn, vg)
        return (lambda x, *d: x.permute(*d))(o, 0, 2, 1, 3).reshape(B, S, D) @ wo

    def _B_ref(x, w1, b1, w2, b2):
        h = torch.einsum("bsd,df->bsf", x, w1) + b1
        h = _gelu(h)
        return torch.einsum("bsf,fd->bsd", h, w2) + b2

    x = A_x
    xn = _layernorm(x, axis=-1)
    s = _A_ref(xn, A_wqkv, A_wo)
    g = _silu(_B_ref(xn, B_w1, B_b1, B_w2, B_b2))
    return x + s * g
```

```python
class Asm:
    def __init__(self):
        self.lines = []
        self._uid = 0
    def __call__(self, s):
        for l in s.strip("\n").split("\n"):
            l = l.strip()
            if not l: continue
            if l.endswith(":"): self.lines.append(l)
            else: self.lines.append("    " + l)
    def label(self, l): self.lines.append(l + ":")
    def c(self, s): self.lines.append("    ; " + s)
    def uid(self, p="L"):
        self._uid += 1
        return f"{p}_{self._uid}"
    def text(self): return "\n".join(self.lines) + "\n"

def vr(b, n=1):
    return f"v{b}" if n == 1 else f"v[{b}:{b+n-1}]"
def sr(b, n=1):
    return f"s{b}" if n == 1 else f"s[{b}:{b+n-1}]"

class Alloc:
    def __init__(self, start=0, limit=256):
        self.n = start; self.limit = limit
    def __call__(self, cnt=1, align=1):
        self.n = (self.n + align - 1) // align * align
        r = self.n; self.n += cnt
        assert self.n <= self.limit, f"out of regs {self.n}"
        return r

def interleave(main, fill, start=0, every=1):
    out = []
    fi = 0
    for i, m in enumerate(main):
        out.append(m)
        if i >= start and (i - start) % every == 0 and fi < len(fill):
            out.extend(fill[fi]); fi += 1
    while fi < len(fill):
        out.extend(fill[fi]); fi += 1
    return out

def kd(name, vgpr, sgpr, accum=None):
    accum = accum if accum is not None else (vgpr + 3) // 4 * 4
    return f""".section .rodata,"a"
.p2align 6
.amdhsa_kernel {name}
  .amdhsa_next_free_vgpr {vgpr}
  .amdhsa_next_free_sgpr {sgpr}
  .amdhsa_accum_offset {accum}
  .amdhsa_group_segment_fixed_size 0
  .amdhsa_kernarg_size 88
  .amdhsa_user_sgpr_count 2
  .amdhsa_user_sgpr_kernarg_segment_ptr 1
  .amdhsa_system_sgpr_workgroup_id_x 1
.end_amdhsa_kernel
"""
def khead(name):
    return f""".text
.globl {name}
.p2align 8
.type {name},@function
{name}:
"""
import struct
def f32(x):
    return "0x%08x" % struct.unpack("<I", struct.pack("<f", x))[0]
```

```python
from asmlib import *
XB = 2048*640*2
def gen_k0(name="ln_kernel", noise=0):
    a = Asm()
    a(f"""
    s_cmp_ge_u32 s2, 256
    s_cbranch_scc1 {name}_end
    s_load_dwordx2 s[4:5], s[0:1], 0
    s_load_dwordx2 s[8:9], s[0:1], 80
    v_lshrrev_b32 v1, 4, v0
    s_lshl_b32 s3, s2, 3
    v_add_u32 v1, s3, v1
    v_mul_u32_u24 v1, 1280, v1
    v_and_b32 v2, 15, v0
    v_lshl_add_u32 v1, v2, 4, v1
    s_mov_b32 s6, {XB}
    s_mov_b32 s7, 0x00020000
    s_mov_b32 s10, {XB}
    s_mov_b32 s11, 0x00020000
    s_waitcnt lgkmcnt(0)
    """)
    for i in range(5):
        a(f"buffer_load_dwordx4 v[{4+4*i}:{7+4*i}], v1, s[4:7], 0 offen offset:{256*i}")
    for i in range(5):
        a(f"s_waitcnt vmcnt({4-i})")
        for j in range(4):
            w = 4+4*i+j; d = 24+2*(4*i+j)
            a(f"v_lshlrev_b32 v{d}, 16, v{w}")
            a(f"v_and_b32 v{d+1}, 0xffff0000, v{w}")
    a("v_add_f32 v64, v24, v25\nv_add_f32 v65, v26, v27\nv_add_f32 v66, v28, v29\nv_add_f32 v67, v30, v31")
    for i in range(8, 40):
        a(f"v_add_f32 v{64+(i&3)}, v{64+(i&3)}, v{24+i}")
    a("v_add_f32 v64, v64, v65\nv_add_f32 v66, v66, v67\nv_add_f32 v64, v64, v66")
    def rowred(r):
        for sh in (8,4,2,1):
            a("s_nop 1")
            a(f"v_add_f32_dpp v{r}, v{r}, v{r} row_ror:{sh} row_mask:0xf bank_mask:0xf")
    rowred(64)
    a(f"v_mul_f32 v64, {f32(1.0/640)}, v64")
    for i in range(4):
        a(f"v_sub_f32 v{70+i}, v{24+i}, v64")
        a(f"v_mul_f32 v{66+i}, v{70+i}, v{70+i}")
    for i in range(4, 40):
        a(f"v_sub_f32 v{70+(i&3)}, v{24+i}, v64")
        a(f"v_fmac_f32 v{66+(i&3)}, v{70+(i&3)}, v{70+(i&3)}")
    a("v_add_f32 v66, v66, v67\nv_add_f32 v68, v68, v69\nv_add_f32 v66, v66, v68")
    rowred(66)
    a(f"""
    v_mul_f32 v66, {f32(1.0/640)}, v66
    v_cvt_pk_bf16_f32 v65, v64, v66
    v_lshlrev_b32 v64, 16, v65
    v_and_b32 v66, 0xffff0000, v65
    v_add_f32 v66, {f32(1e-5)}, v66
    v_cvt_pk_bf16_f32 v66, v66, v66
    v_lshlrev_b32 v66, 16, v66
    v_sqrt_f32 v66, v66
    s_nop 0
    v_cvt_pk_bf16_f32 v66, v66, v66
    v_lshlrev_b32 v66, 16, v66
    v_rcp_f32 v66, v66
    s_nop 0
    """)
    for i in range(20):
        d = 24+2*i
        a(f"v_sub_f32 v{d}, v{d}, v64")
        a(f"v_sub_f32 v{d+1}, v{d+1}, v64")
        if noise == 0:
            a(f"v_cvt_pk_bf16_f32 v{4+i}, v{d}, v{d+1}")
            a(f"v_lshlrev_b32 v{d}, 16, v{4+i}")
            a(f"v_and_b32 v{d+1}, 0xffff0000, v{4+i}")
        a(f"v_mul_f32 v{d}, v{d}, v66")
        a(f"v_mul_f32 v{d+1}, v{d+1}, v66")
        if noise == 2:
            a(f"v_lshrrev_b32 v{d}, 16, v{d}")
            a(f"v_and_b32 v{d+1}, 0xffff0000, v{d+1}")
            a(f"v_or_b32 v{4+i}, v{d}, v{d+1}")
        else:
            a(f"v_cvt_pk_bf16_f32 v{4+i}, v{d}, v{d+1}")
        if i % 4 == 3:
            k = i//4
            a(f"buffer_store_dwordx4 v[{4+4*k}:{7+4*k}], v1, s[8:11], 0 offen offset:{256*k}")
    a.label(f"{name}_end")
    a("s_endpgm")
    return khead(name) + a.text(), kd(name, 80, 16), f"; @launch kernel={name} grid=(256,1,1) block=(128,1,1) lds=0"
```

```python
from asmlib import *
import math
XB = 2048*640*2
HO_OFF = 0x300000
HO_SZ = 33*74*4096
BIG = 0x7ff00000
RS = 592

SX, SW, SM, SHO, SB1 = 4, 8, 12, 16, 20
sW, sRB, sCB, sI, sKX, sKW, sKM, sFILL, sDELTA, sSLOT, sW1K, sT0, sT1, sT2, sT3 = 24,25,26,27,28,29,30,32,33,35,36,37,38,39,31
sNT, sMH = 40, 44
sVAR = 45
K_WQKV, K_W1, K_B1, K_WS = 48, 50, 52, 54

def mfma(d, a_, b_):
    return f"v_mfma_f32_16x16x32_bf16 {vr(d,4)}, {vr(a_,4)}, {vr(b_,4)}, {vr(d,4)}"

class Cfg: pass

def emit_dma(c, u, first=False):
    srd, so = (SX, sKX) if u < 2 else ((SM, sKM) if u == 2 else (SW, sKW))
    ins = [f"s_add_u32 m0, s{sFILL}, {u*8192}"]
    ld = f"buffer_load_dwordx4 v{c.dv[u]}, {sr(srd,4)}, s{so} offen lds"
    return ins, ld

def stage_offsets(c, st_reg_expr):
    return [f"s_lshl_b32 s{sKX}, s{sT0}, 7",
            f"s_mul_i32 s{sKW}, s{sT0}, {64*c.wrowb}",
            f"s_cmp_lt_u32 s{sT0}, 10",
            f"s_cselect_b32 s{sKX}, s{sKX}, {BIG}",
            f"s_cmp_lt_u32 s{sW}, {c.nxm}",
            f"s_cselect_b32 s{sKM}, s{sKX}, s{sKW}"]

def reads(c, st, s, nF, nh):
    r = []
    for i in range(c.nM):
        r.append(f"ds_read_b128 {vr(c.X[st][i],4)}, v{c.xb[s]} offset:{i*2048}")
    if nh: r.append(f"ds_read_b128 {vr(c.XH[st],4)}, v{c.hb[s]}")
    w = []
    for f in range(nF):
        w.append(f"ds_read_b64_tr_b16 {vr(c.W[st][f],2)}, v{c.wb[f]} offset:{s*32*c.wrow}")
        w.append(f"ds_read_b64_tr_b16 {vr(c.W[st][f]+2,2)}, v{c.wb[f]} offset:{s*32*c.wrow+8*c.wrow}")
    return w[:2] + r + w[2:]

def mfmas(c, st, nF, nh):
    m = []
    for f in range(nF):
        for i in range(c.nM):
            m.append(mfma(c.acc[f][i], c.W[st][f], c.X[st][i]))
        if f < nh: m.append(mfma(c.acch[f], c.W[st][f], c.XH[st]))
    return m

def chunks(l, n): return [l[i:i+n] for i in range(0, len(l), n)]

def dma_groups(c, a):
    g = []
    for u in range(6):
        ins, ld = emit_dma(c, u)
        if u == 5 and c.partial6:
            lab = a.uid("Lskip6")
            g.append([f"s_cmp_ge_u32 s{sW}, 4", f"s_cbranch_scc1 {lab}"] + ins + ["s_nop 0", ld, lab + ":"])
        else:
            g.append(ins + ["s_nop 0", ld])
    return g

def main_loop(a, c, nF, nh, tag):
    bases = list(c.xb) + (list(c.hb) if nh else []) + c.wb[:nF]
    a(f"s_waitcnt vmcnt({2*c.ndma})")
    a("s_barrier")
    for r in reads(c, 0, 0, nF, nh): a(r)
    a(f"s_mov_b32 s{sI}, 0")
    a.label(f"Lloop_{tag}")
    a("s_waitcnt lgkmcnt(0)")
    salu = [f"s_add_u32 s{sFILL}, s{sSLOT}, s{sW1K}",
            f"s_add_u32 s{sT1}, s{sSLOT}, {c.stg}",
            f"s_cmp_eq_u32 s{sT1}, {3*c.stg}",
            f"s_cselect_b32 s{sT1}, 0, s{sT1}",
            f"s_sub_u32 s{sDELTA}, s{sT1}, s{sSLOT}",
            f"s_mov_b32 s{sSLOT}, s{sT1}",
            f"s_add_u32 s{sT0}, s{sI}, 3"] + stage_offsets(c, None)
    upd = [f"v_add_u32 v{b}, s{sDELTA}, v{b}" for b in bases]
    rb = reads(c, 1, 1, nF, nh)
    fill = chunks(rb, 2)
    fill[0] = fill[0] + salu[:6]
    fill[1] = fill[1] + salu[6:]
    fill += chunks(upd, 3)
    for l in interleave(mfmas(c, 0, nF, nh), fill): a(l)
    a(f"s_waitcnt vmcnt({c.ndma}) lgkmcnt(0)")
    a("s_barrier")
    ra = reads(c, 0, 0, nF, nh)
    fill = chunks(ra, 2) + dma_groups(c, a)
    for l in interleave(mfmas(c, 1, nF, nh), fill): a(l)
    a(f"s_add_u32 s{sI}, s{sI}, 1")
    a(f"s_cmp_lt_u32 s{sI}, 10")
    a(f"s_cbranch_scc1 Lloop_{tag}")
    a("s_waitcnt vmcnt(0) lgkmcnt(0)")

def prologue_dma(a, c):
    for st in range(3):
        a(f"s_mov_b32 s{sT0}, {st}")
        for l in stage_offsets(c, None): a(l)
        a(f"s_add_u32 s{sFILL}, s{sW1K}, {st*c.stg}")
        for g in dma_groups(c, a):
            for l in g: a(l)

def swap23(a, d, s, t):
    a(f"v_and_b32 v{d}, 0x33, v{s}")
    a(f"v_and_b32 v{t}, 4, v{s}")
    a(f"v_lshl_or_b32 v{d}, v{t}, 1, v{d}")
    a(f"v_and_b32 v{t}, 8, v{s}")
    a(f"v_lshrrev_b32 v{t}, 1, v{t}")
    a(f"v_or_b32 v{d}, v{d}, v{t}")

def x_dma_addr(a, d, lane, t0, t1, u, rowbase_s, clamp0):
    a(f"s_lshl_b32 s{sT0}, s{sW}, 3")
    a(f"s_add_u32 s{sT0}, s{sT0}, {64*u}")
    a(f"v_lshrrev_b32 v{t0}, 3, v{lane}")
    a(f"v_add_u32 v{t0}, s{sT0}, v{t0}")
    a(f"v_lshrrev_b32 v{t1}, 1, v{t0}")
    a(f"v_xor_b32 v{t1}, v{t1}, v{lane}")
    a(f"v_and_b32 v{t1}, 7, v{t1}")
    a(f"v_add_u32 v{t0}, s{rowbase_s}, v{t0}")
    if clamp0: a(f"v_max_i32 v{t0}, 0, v{t0}")
    a(f"v_mul_u32_u24 v{t0}, 1280, v{t0}")
    a(f"v_lshl_add_u32 v{d}, v{t1}, 4, v{t0}")

def gen_k1(name="gemm1_kernel"):
    a = Asm()
    LANE, T0, T1, T2, T3, G, R = 1, 2, 3, 4, 5, 6, 7
    a(f"""
    s_cmp_ge_u32 s2, 256
    s_cbranch_scc1 {name}_end
    s_load_dwordx2 s[{K_WQKV}:{K_WQKV+1}], s[0:1], 8
    s_load_dwordx4 s[{K_W1+2}:{K_W1+5}], s[0:1], 32
    s_load_dwordx2 s[{K_WS+4}:{K_WS+5}], s[0:1], 80
    v_lshrrev_b32 v{T0}, 6, v0
    v_and_b32 v{LANE}, 63, v0
    v_readfirstlane_b32 s{sW}, v{T0}
    v_lshrrev_b32 v{G}, 4, v{LANE}
    v_and_b32 v{R}, 15, v{LANE}
    s_and_b32 s{sT0}, s2, 1
    s_bfe_u32 s{sT1}, s2, 0x20001
    s_lshr_b32 s{sT2}, s2, 3
    s_lshl_b32 s{sW1K}, s{sW}, 10
    s_mov_b32 s{sSLOT}, 0
    s_cmp_ge_u32 s{sT2}, 16
    s_cbranch_scc1 Lffn
    """)
    W1P, B1P, WSP = 52, 54, 58
    def common_srds(wptr, wbytes, nxm):
        a(f"""
        s_waitcnt lgkmcnt(0)
        s_mov_b32 s{SX}, s{WSP}
        s_mov_b32 s{SX+1}, s{WSP+1}
        s_mov_b32 s{SX+2}, {XB}
        s_mov_b32 s{SX+3}, 0x00020000
        s_mov_b32 s{SW}, s{wptr}
        s_mov_b32 s{SW+1}, s{wptr+1}
        s_mov_b32 s{SW+2}, {wbytes}
        s_mov_b32 s{SW+3}, 0x00020000
        s_cmp_lt_u32 s{sW}, {nxm}
        s_cselect_b32 s{SM}, s{SX}, s{SW}
        s_cselect_b32 s{SM+1}, s{SX+1}, s{SW+1}
        s_cselect_b32 s{SM+2}, s{SX+2}, s{SW+2}
        s_mov_b32 s{SM+3}, 0x00020000
        s_add_u32 s{SHO}, s{WSP}, {HO_OFF}
        s_addc_u32 s{SHO+1}, s{WSP+1}, 0
        s_mov_b32 s{SHO+2}, {HO_SZ}
        s_mov_b32 s{SHO+3}, 0x00020000
        """)
    c = Cfg(); al = Alloc(8)
    c.nM = 4; c.wrow = 480; c.wrowb = 3840; c.stg = 49152; c.xsz = 18432; c.nxm = 2; c.ndma = 6; c.partial6 = False
    c.dv = [al() for _ in range(6)]
    c.xb = [al(), al()]; c.hb = [al(), al()]; c.wb = [al() for _ in range(4)]
    c.acc = [[al(4,4) for i in range(4)] for f in range(4)]
    c.acch = [al(4,4) for f in range(3)]
    c.X = [[al(4,4) for i in range(4)] for s in range(2)]
    c.XH = [al(4,4) for s in range(2)]
    c.W = [[al(4,4) for f in range(4)] for s in range(2)]
    qkv_top = al.n
    a(f"""
    s_lshl_b32 s{sRB}, s{sT0}, 3
    s_and_b32 s{sT3}, s{sT2}, 7
    s_add_u32 s{sRB}, s{sRB}, s{sT3}
    s_lshl_b32 s{sCB}, s{sT1}, 1
    s_lshr_b32 s{sT3}, s{sT2}, 3
    s_add_u32 s{sCB}, s{sCB}, s{sT3}
    s_lshl_b32 s{sT3}, s{sRB}, 7
    s_sub_u32 s{sT3}, s{sT3}, 16
    """)
    x_dma_addr(a, c.dv[0], LANE, T0, T1, 0, sT3, True)
    x_dma_addr(a, c.dv[1], LANE, T0, T1, 1, sT3, True)
    def w_dma_addr_q(d, u):
        a(f"s_lshl_b32 s{sT0}, s{sW}, 6")
        a(f"s_add_u32 s{sT0}, s{sT0}, {64*(8*u-18) & 0xffffffff}")
        a(f"v_add_u32 v{T0}, s{sT0}, v{LANE}")
        a(f"v_mul_u32_u24 v{T1}, 2185, v{T0}")
        a(f"v_lshrrev_b32 v{T1}, 16, v{T1}")
        a(f"v_mul_u32_u24 v{T2}, 30, v{T1}")
        a(f"v_sub_u32 v{T0}, v{T0}, v{T2}")
        swap23(a, T2, T1, T3)
        a(f"v_mul_u32_u24 v{T2}, 3840, v{T2}")
        a(f"v_mul_u32_u24 v{T1}, 26, v{T0}")
        a(f"v_lshrrev_b32 v{T1}, 8, v{T1}")
        a(f"v_mul_u32_u24 v{T1}, 1120, v{T1}")
        a(f"v_lshl_add_u32 v{T0}, v{T0}, 4, v{T1}")
        a(f"s_mul_i32 s{sT0}, s{sCB}, 160")
        a(f"v_add3_u32 v{d}, v{T0}, v{T2}, s{sT0}")
    a(f"s_cmp_lt_u32 s{sW}, 2")
    a("s_cbranch_scc0 Lq_mixw")
    x_dma_addr(a, c.dv[2], LANE, T0, T1, 2, sT3, True)
    a("s_branch Lq_mixd")
    a.label("Lq_mixw")
    w_dma_addr_q(c.dv[2], 2)
    a.label("Lq_mixd")
    for u in (3,4,5): w_dma_addr_q(c.dv[u], u)
    common_srds(K_WQKV, 640*3840, 2)
    prologue_dma(a, c)
    G0,G1,G2,G3 = [0,1,2,3],None,None,None
    wavecfg = [
        ([8,9,10,11], 0, 3, 4),
        ([5,6,7,4],   0, 2, 4),
        ([11,8,9,10], 1, 1, 4),
        ([7,4,5,6],   1, 1, 4),
        ([14,12,13,0],1, 1, 3),
        ([12,13,14,0],0, 2, 3),
        ([0,1,2,3],   0, 0, 4),
        ([0,1,2,3],   1, 0, 4)]
    variants = sorted(set((w[2], w[3]) for w in wavecfg))
    for w, (nt, mh, nh, nF) in enumerate(wavecfg):
        pk = nt[0] | nt[1]<<4 | nt[2]<<8 | nt[3]<<12 | mh<<16 | variants.index((nh,nF))<<20
        if w == 0: a(f"s_mov_b32 s{sT0}, {pk}")
        else:
            a(f"s_cmp_eq_u32 s{sW}, {w}")
            a(f"s_cselect_b32 s{sT0}, {pk}, s{sT0}")
    for f in range(4): a(f"s_bfe_u32 s{sNT+f}, s{sT0}, {hex(4<<16 | 4*f)}")
    a(f"s_bfe_u32 s{sMH}, s{sT0}, {hex(1<<16|16)}")
    a(f"s_lshr_b32 s{sVAR}, s{sT0}, 20")
    a(f"v_lshrrev_b32 v{T0}, 1, v{R}")
    a(f"v_xor_b32 v{T0}, v{T0}, v{G}")
    a(f"v_lshlrev_b32 v{T0}, 4, v{T0}")
    a(f"v_lshl_add_u32 v{c.hb[0]}, v{R}, 7, v{T0}")
    a(f"v_xor_b32 v{c.hb[1]}, 64, v{c.hb[0]}")
    a(f"s_lshl_b32 s{sT0}, s{sMH}, 13")
    a(f"s_add_u32 s{sT0}, s{sT0}, 2048")
    a(f"v_add_u32 v{c.xb[0]}, s{sT0}, v{c.hb[0]}")
    a(f"v_add_u32 v{c.xb[1]}, s{sT0}, v{c.hb[1]}")
    def rho_local(d, t):
        a(f"v_bfe_u32 v{d}, v{LANE}, 2, 3")
        a(f"v_lshrrev_b32 v{t}, 5, v{LANE}")
        a(f"v_lshl_add_u32 v{d}, v{t}, 4, v{d}")
    rho_local(T0, T1)
    a(f"v_mul_u32_u24 v{T0}, 480, v{T0}")
    a(f"v_and_b32 v{T1}, 3, v{LANE}")
    a(f"v_lshl_add_u32 v{T0}, v{T1}, 3, v{T0}")
    for f in range(4):
        a(f"s_lshl_b32 s{sT0}, s{sNT+f}, 5")
        a(f"s_add_u32 s{sT0}, s{sT0}, {c.xsz}")
        a(f"v_add_u32 v{c.wb[f]}, s{sT0}, v{T0}")
    for f in range(4):
        for i in range(4):
            for r in range(4): a(f"v_mov_b32 v{c.acc[f][i]+r}, 0")
    for f in range(3):
        for r in range(4): a(f"v_mov_b32 v{c.acch[f]+r}, 0")
    for vi in range(1, len(variants)):
        a(f"s_cmp_eq_u32 s{sVAR}, {vi}")
        a(f"s_cbranch_scc1 Lqvar_{vi}")
    WR = c.X[0][0]
    for vi, (nh, nF) in enumerate(variants):
        a.label(f"Lqvar_{vi}")
        main_loop(a, c, nF, nh, f"q{vi}")
        a("s_barrier")
        a(f"s_lshl_b32 s{sT1}, s{sMH}, 6")
        a(f"s_add_u32 s{sT1}, s{sT1}, 16")
        a(f"s_mul_i32 s{sT1}, s{sT1}, {RS}")
        a(f"v_mul_u32_u24 v{T2}, {RS}, v{R}")
        for f in range(nF):
            a(f"s_mul_i32 s{sT0}, s{sNT+f}, 52")
            a(f"s_lshr_b32 s{sT0}, s{sT0}, 8")
            a(f"s_mul_i32 s{sT2}, s{sT0}, 5")
            a(f"s_sub_u32 s{sT2}, s{sNT+f}, s{sT2}")
            a(f"s_lshl_b32 s{sT2}, s{sT2}, 2")
            a(f"s_mul_i32 s{sT0}, s{sT0}, 192")
            a(f"v_add_u32 v{T0}, s{sT2}, v{G}")
            a(f"v_mul_u32_u24 v{T1}, 52, v{T0}")
            a(f"v_lshrrev_b32 v{T1}, 8, v{T1}")
            a(f"v_add_u32 v{T0}, v{T0}, v{T1}")
            a(f"v_lshl_add_u32 v{T0}, v{T0}, 3, v{T2}")
            a(f"v_add_u32 v{WR+4+f}, s{sT0}, v{T0}")
            a(f"v_add_u32 v{WR+f}, s{sT1}, v{WR+4+f}")
        PK = c.X[1][0]
        n = 0
        for f in range(nF):
            tl = [(c.acc[f][i], WR+f, i*16*RS) for i in range(4)]
            if f < nh: tl.append((c.acch[f], WR+4+f, 0))
            for (ac, ad, off) in tl:
                p = PK + 2*(n % 8); n += 1
                a(f"v_cvt_pk_bf16_f32 v{p}, v{ac}, v{ac+1}")
                a(f"v_cvt_pk_bf16_f32 v{p+1}, v{ac+2}, v{ac+3}")
                a(f"ds_write_b64 v{ad}, {vr(p,2)} offset:{off}")
        if vi != len(variants)-1: a("s_branch Lattn")
    a.label("Lattn")
    al = Alloc(8)
    AB = al(); OV = al()
    Q = al(10, 2); K = [al(10,2) for _ in range(8)]; V = [al(10,2) for _ in range(8)]
    L = al(8, 2); PL = al(8); PH = al(8); O = al(20, 2); MX = al(); SM_ = al(); TP = al(4,2)
    att_top = al.n
    a(f"""
    s_and_b32 s{sT0}, s{sW}, 3
    s_lshr_b32 s{sT1}, s{sW}, 2
    s_lshl_b32 s{sT2}, s{sT1}, 6
    s_add_u32 s{sT2}, s{sT2}, 2
    v_add_u32 v{AB}, s{sT2}, v{LANE}
    v_mul_u32_u24 v{AB}, {RS}, v{AB}
    s_mul_i32 s{sT2}, s{sT0}, 48
    v_add_u32 v{AB}, s{sT2}, v{AB}
    v_lshlrev_b32 v{OV}, 10, v{G}
    v_lshl_add_u32 v{OV}, v{R}, 4, v{OV}
    s_waitcnt lgkmcnt(0)
    s_barrier
    """)
    def rd(dst, off):
        return [f"ds_read_b128 {vr(dst,4)}, v{AB} offset:{off}",
                f"ds_read_b128 {vr(dst+4,4)}, v{AB} offset:{off+16}",
                f"ds_read_b64 {vr(dst+8,2)}, v{AB} offset:{off+32}"]
    items = [rd(Q, 14*RS)] + [rd(K[w], (14-2*w)*RS+192) for w in range(8)] + [rd(V[w], (14-2*w)*RS+384) for w in range(8)]
    issued = 0
    def issue(n):
        nonlocal issued
        for _ in range(n):
            if issued < len(items):
                for l in items[issued]: a(l)
                issued += 1
    def need(idx):
        a(f"s_waitcnt lgkmcnt({3*(issued-1-idx)})")
    issue(5)
    for wp in range(4):
        w0, w1 = 2*wp, 2*wp+1
        need(1+w1)
        for d in range(10):
            for w in (w0, w1):
                src2 = "0" if d == 0 else f"v{L+w}"
                a(f"v_dot2_f32_bf16 v{L+w}, v{Q+d}, v{K[w]+d}, {src2}")
        issue(2)
    issue(1)
    a("s_nop 2")
    sc = 20 ** -0.5
    def rnd8():
        for i in range(4):
            a(f"v_cvt_pk_bf16_f32 v{TP+i}, v{L+2*i}, v{L+2*i+1}")
        for i in range(4):
            a(f"v_lshlrev_b32 v{L+2*i}, 16, v{TP+i}")
            a(f"v_and_b32 v{L+2*i+1}, 0xffff0000, v{TP+i}")
    rnd8()
    for w in range(8): a(f"v_mul_f32 v{L+w}, {f32(sc)}, v{L+w}")
    rnd8()
    a(f"s_or_b32 s{sT2}, s{sRB}, s{sT1}")
    a(f"s_cmp_lg_u32 s{sT2}, 0")
    a("s_cbranch_scc1 Lnomask")
    a(f"v_mov_b32 v{TP}, {f32(-1e9)}")
    for w in range(1, 8):
        a(f"v_cmp_le_u32 vcc, {2*w}, v{LANE}")
        a("s_nop 1")
        a(f"v_cndmask_b32 v{L+w}, v{TP}, v{L+w}, vcc")
    a.label("Lnomask")
    a(f"v_max3_f32 v{MX}, v{L}, v{L+1}, v{L+2}")
    a(f"v_max3_f32 v{SM_}, v{L+3}, v{L+4}, v{L+5}")
    a(f"v_max3_f32 v{MX}, v{MX}, v{L+6}, v{L+7}")
    a(f"v_max_f32 v{MX}, v{MX}, v{SM_}")
    for w in range(8): a(f"v_sub_f32 v{L+w}, v{L+w}, v{MX}")
    for w in range(8): a(f"v_mul_f32 v{L+w}, {f32(math.log2(math.e))}, v{L+w}")
    for w in range(8): a(f"v_exp_f32 v{L+w}, v{L+w}")
    a(f"v_add_f32 v{TP}, v{L}, v{L+1}")
    a(f"v_add_f32 v{TP+1}, v{L+2}, v{L+3}")
    a(f"v_add_f32 v{TP+2}, v{L+4}, v{L+5}")
    a(f"v_add_f32 v{TP+3}, v{L+6}, v{L+7}")
    a(f"v_add_f32 v{TP}, v{TP}, v{TP+1}")
    a(f"v_add_f32 v{TP+2}, v{TP+2}, v{TP+3}")
    a(f"v_add_f32 v{SM_}, v{TP}, v{TP+2}")
    a(f"v_rcp_f32 v{SM_}, v{SM_}")
    a("s_nop 0")
    for w in range(8): a(f"v_mul_f32 v{L+w}, v{L+w}, v{SM_}")
    for w in range(8):
        a(f"v_cvt_pk_bf16_f32 v{PL+w}, v{L+w}, 0")
        a(f"v_cvt_pk_bf16_f32 v{PH+w}, 0, v{L+w}")
    for w in range(8):
        need(9+w)
        for d in range(10):
            for hi in (0, 1):
                o = O+2*d+hi
                src2 = "0" if w == 0 else f"v{o}"
                a(f"v_dot2_f32_bf16 v{o}, v{V[w]+d}, v{(PH if hi else PL)+w}, {src2}")
        issue(1)
    a(f"""
    s_lshl_b32 s{sT2}, s{sRB}, 1
    s_add_u32 s{sT2}, s{sT2}, s{sT1}
    s_mul_i32 s{sT2}, s{sT2}, {74*4096}
    s_lshl_b32 s{sT3}, s{sCB}, 2
    s_add_u32 s{sT3}, s{sT3}, s{sT0}
    s_mul_i32 s{sT3}, s{sT3}, 20
    """)
    for u in range(5):
        a(f"v_cvt_pk_bf16_f32 v{Q+2*u}, v{O+4*u}, v{O+4*u+1}")
        a(f"v_cvt_pk_bf16_f32 v{Q+2*u+1}, v{O+4*u+2}, v{O+4*u+3}")
        a(f"""
        s_lshr_b32 s{sKX}, s{sT3}, 5
        s_lshl_b32 s{sKX}, s{sKX}, 12
        s_add_u32 s{sKX}, s{sKX}, s{sT2}
        s_bfe_u32 s{sKW}, s{sT3}, 0x20002
        s_lshl_b32 s{sKW}, s{sKW}, 8
        s_add_u32 s{sKX}, s{sKX}, s{sKW}
        s_bfe_u32 s{sKW}, s{sT3}, 0x10004
        s_lshl_b32 s{sKW}, s{sKW}, 3
        s_add_u32 s{sKX}, s{sKX}, s{sKW}
        s_add_u32 s{sT3}, s{sT3}, 4
        buffer_store_dwordx2 {vr(Q+2*u,2)}, v{OV}, {sr(SHO,4)}, s{sKX} offen
        """)
    a("s_endpgm")
    a.label("Lffn")
    c = Cfg(); al = Alloc(8)
    c.nM = 5; c.wrow = 384; c.wrowb = 3456; c.stg = 45056; c.xsz = 20480; c.nxm = 4; c.ndma = 5; c.partial6 = True
    c.dv = [al() for _ in range(6)]
    c.xb = [al(), al()]; c.wb = [al() for _ in range(3)]
    B1 = al(6, 2)
    c.acc = [[al(4,4) for i in range(5)] for f in range(3)]
    c.X = [[al(4,4) for i in range(5)] for s in range(2)]
    c.W = [[al(4,4) for f in range(3)] for s in range(2)]
    ffn_top = al.n
    a(f"""
    s_sub_u32 s{sT2}, s{sT2}, 16
    s_cmp_eq_u32 s{sT0}, 0
    s_cbranch_scc0 Lf_h1
    s_lshl_b32 s{sT1}, s{sT1}, 4
    s_add_u32 s{sT1}, s{sT1}, s{sT2}
    s_cmp_ge_u32 s{sT1}, 63
    s_cbranch_scc1 {name}_end
    s_mul_i32 s{sCB}, s{sT1}, 37
    s_lshr_b32 s{sCB}, s{sCB}, 8
    s_mul_i32 s{sT3}, s{sCB}, 7
    s_sub_u32 s{sRB}, s{sT1}, s{sT3}
    s_branch Lf_hd
Lf_h1:
    s_cmp_ge_u32 s{sT2}, 14
    s_cbranch_scc1 {name}_end
    s_mul_i32 s{sT1}, s{sT1}, 14
    s_add_u32 s{sT1}, s{sT1}, s{sT2}
    s_cmp_ge_u32 s{sT1}, 54
    s_cbranch_scc1 {name}_end
    s_mul_i32 s{sCB}, s{sT1}, 43
    s_lshr_b32 s{sCB}, s{sCB}, 8
    s_mul_i32 s{sT3}, s{sCB}, 6
    s_sub_u32 s{sRB}, s{sT1}, s{sT3}
    s_add_u32 s{sRB}, s{sRB}, 7
Lf_hd:
    s_mul_i32 s{sT3}, s{sRB}, 160
    """)
    for t in range(63): assert (t*37)>>8 == t//7
    for t in range(54): assert (t*43)>>8 == t//6
    x_dma_addr(a, c.dv[0], LANE, T0, T1, 0, sT3, False)
    x_dma_addr(a, c.dv[1], LANE, T0, T1, 1, sT3, False)
    def w_dma_addr_f(d, u):
        a(f"s_lshl_b32 s{sT0}, s{sW}, 6")
        a(f"s_add_u32 s{sT0}, s{sT0}, {64*(8*u-20) & 0xffffffff}")
        a(f"v_add_u32 v{T0}, s{sT0}, v{LANE}")
        a(f"v_mul_u32_u24 v{T1}, 2731, v{T0}")
        a(f"v_lshrrev_b32 v{T1}, 16, v{T1}")
        a(f"v_mul_u32_u24 v{T2}, 24, v{T1}")
        a(f"v_sub_u32 v{T0}, v{T0}, v{T2}")
        a(f"v_and_b32 v{T2}, 6, v{T1}")
        a(f"v_xor_b32 v{T0}, v{T0}, v{T2}")
        swap23(a, T2, T1, T3)
        a(f"v_mul_u32_u24 v{T2}, 3456, v{T2}")
        a(f"v_lshl_add_u32 v{T0}, v{T0}, 4, v{T2}")
        a(f"s_mul_i32 s{sT0}, s{sCB}, 384")
        a(f"v_add_u32 v{d}, s{sT0}, v{T0}")
    for p in range(1536+256): assert (p*2731)>>16 == p//24
    for p in range(1920): assert (p*2185)>>16 == p//30
    a(f"s_cmp_lt_u32 s{sW}, 4")
    a("s_cbranch_scc0 Lf_mixw")
    x_dma_addr(a, c.dv[2], LANE, T0, T1, 2, sT3, False)
    a("s_branch Lf_mixd")
    a.label("Lf_mixw")
    w_dma_addr_f(c.dv[2], 2)
    a.label("Lf_mixd")
    for u in (3,4,5): w_dma_addr_f(c.dv[u], u)
    a(f"""
    s_lshr_b32 s{sMH}, s{sW}, 2
    s_bfe_u32 s{sT0}, s{sW}, 0x10001
    s_and_b32 s{sT1}, s{sW}, 1
    s_mul_i32 s{sT0}, s{sT0}, 6
    s_lshl_b32 s{sT2}, s{sT1}, 2
    s_add_u32 s{sNT}, s{sT0}, s{sT2}
    s_add_u32 s{sNT+1}, s{sNT}, 1
    s_add_u32 s{sNT+2}, s{sT0}, s{sT1}
    s_add_u32 s{sNT+2}, s{sNT+2}, 2
    """)
    common_srds(W1P, 640*3456, 4)
    a(f"""
    s_mov_b32 s{SB1}, s{B1P}
    s_mov_b32 s{SB1+1}, s{B1P+1}
    s_mov_b32 s{SB1+2}, 3456
    s_mov_b32 s{SB1+3}, 0x00020000
    v_lshlrev_b32 v{T0}, 3, v{G}
    s_mul_i32 s{sT0}, s{sCB}, 384
    """)
    for f in range(3):
        a(f"s_lshl_b32 s{sT1}, s{sNT+f}, 5")
        a(f"s_add_u32 s{sT1}, s{sT1}, s{sT0}")
        a(f"buffer_load_dwordx2 {vr(B1+2*f,2)}, v{T0}, {sr(SB1,4)}, s{sT1} offen")
    prologue_dma(a, c)
    a(f"v_lshrrev_b32 v{T0}, 1, v{R}")
    a(f"v_xor_b32 v{T0}, v{T0}, v{G}")
    a(f"v_lshlrev_b32 v{T0}, 4, v{T0}")
    a(f"v_lshl_add_u32 v{T0}, v{R}, 7, v{T0}")
    a(f"s_mul_i32 s{sT0}, s{sMH}, {5*2048}")
    a(f"v_add_u32 v{c.xb[0]}, s{sT0}, v{T0}")
    a(f"v_xor_b32 v{c.xb[1]}, 64, v{c.xb[0]}")
    rho_local(T0, T1)
    a(f"v_bfe_u32 v{T2}, v{T0}, 1, 2")
    a(f"v_mul_u32_u24 v{T0}, 384, v{T0}")
    a(f"v_and_b32 v{T1}, 3, v{LANE}")
    a(f"v_lshl_add_u32 v{T0}, v{T1}, 3, v{T0}")
    a(f"v_add_u32 v{T0}, {c.xsz}, v{T0}")
    for f in range(3):
        a(f"v_xor_b32 v{T1}, s{sNT+f}, v{T2}")
        a(f"v_lshl_add_u32 v{c.wb[f]}, v{T1}, 5, v{T0}")
    for f in range(3):
        for i in range(5):
            for r in range(4): a(f"v_mov_b32 v{c.acc[f][i]+r}, 0")
    main_loop(a, c, 3, 0, "f")
    al2 = Alloc(c.X[0][0])
    BF = al2(12, 2); C0 = al2(2,2); C1 = al2(2,2); ONE = al2(2,2); TT = [al2(4,2) for _ in range(3)]; OUT = [al2(4,4) for _ in range(2)]; OS = [al2(2,2) for _ in range(2)]
    VP = al2(); VS = al2()
    assert al2.n <= ffn_top
    c0 = -2*math.sqrt(2/math.pi)*math.log2(math.e); c1 = c0*0.044715
    for j in range(6):
        a(f"v_lshlrev_b32 v{BF+2*j}, 16, v{B1+j}")
        a(f"v_and_b32 v{BF+2*j+1}, 0xffff0000, v{B1+j}")
    a(f"v_mov_b32 v{C0}, {f32(c0)}\nv_mov_b32 v{C0+1}, {f32(c0)}\nv_mov_b32 v{C1}, {f32(c1)}\nv_mov_b32 v{C1+1}, {f32(c1)}")
    a(f"v_mov_b32 v{ONE}, 1.0\nv_mov_b32 v{ONE+1}, 1.0")
    a(f"""
    s_lshr_b32 s{sT0}, s{sNT}, 1
    s_lshl_b32 s{sT0}, s{sT0}, 12
    v_lshlrev_b32 v{VP}, 4, v{LANE}
    s_lshr_b32 s{sT1}, s{sNT+2}, 1
    s_lshl_b32 s{sT1}, s{sT1}, 12
    s_and_b32 s{sT2}, s{sNT+2}, 1
    s_lshl_b32 s{sT2}, s{sT2}, 3
    s_add_u32 s{sT1}, s{sT1}, s{sT2}
    v_add_u32 v{VS}, s{sT1}, v{VP}
    v_add_u32 v{VP}, s{sT0}, v{VP}
    s_mul_i32 s{sT3}, s{sRB}, 10
    s_mul_i32 s{sT0}, s{sMH}, 5
    s_add_u32 s{sT3}, s{sT3}, s{sT0}
    s_mul_i32 s{sKM}, s{sCB}, 6
    s_add_u32 s{sKM}, s{sKM}, 20
    """)
    def gelu_pair(h, b, t, dst):
        return [f"v_pk_add_f32 {vr(h,2)}, {vr(h,2)}, {vr(b,2)}",
                f"v_pk_mul_f32 {vr(t,2)}, {vr(h,2)}, {vr(h,2)}",
                f"v_pk_fma_f32 {vr(t,2)}, {vr(t,2)}, {vr(C1,2)}, {vr(C0,2)}",
                f"v_pk_mul_f32 {vr(t,2)}, {vr(t,2)}, {vr(h,2)}",
                f"v_exp_f32 v{t}, v{t}",
                f"v_exp_f32 v{t+1}, v{t+1}",
                f"v_pk_add_f32 {vr(t,2)}, {vr(t,2)}, {vr(ONE,2)}",
                f"v_rcp_f32 v{t}, v{t}",
                f"v_rcp_f32 v{t+1}, v{t+1}",
                f"v_pk_mul_f32 {vr(t,2)}, {vr(t,2)}, {vr(h,2)}",
                f"v_cvt_pk_bf16_f32 v{dst}, v{t}, v{t+1}"]
    for i in range(5):
        o4 = OUT[i & 1]; o2 = OS[i & 1]
        streams = []
        for f in range(3):
            for hp in range(2):
                dst = (o4 + 2*f + hp) if f < 2 else (o2 + hp)
                streams.append(gelu_pair(c.acc[f][i]+2*hp, BF+4*f+2*hp, TT[f]+2*hp, dst))
        for k in range(len(streams[0])):
            for s in streams: a(s[k])
        a(f"""
        s_lshr_b32 s{sT0}, s{sT3}, 2
        s_mul_i32 s{sT0}, s{sT0}, 74
        s_add_u32 s{sT0}, s{sT0}, s{sKM}
        s_lshl_b32 s{sT0}, s{sT0}, 12
        s_and_b32 s{sT1}, s{sT3}, 3
        s_lshl_b32 s{sT1}, s{sT1}, 10
        s_add_u32 s{sT0}, s{sT0}, s{sT1}
        s_add_u32 s{sT3}, s{sT3}, 1
        buffer_store_dwordx4 {vr(o4,4)}, v{VP}, {sr(SHO,4)}, s{sT0} offen
        buffer_store_dwordx2 {vr(o2,2)}, v{VS}, {sr(SHO,4)}, s{sT0} offen
        """)
    a.label(f"{name}_end")
    a("s_endpgm")
    nv = max(qkv_top, att_top, ffn_top)
    assert nv <= 256
    return khead(name) + a.text(), kd(name, nv, 64), f"; @launch kernel={name} grid=(256,1,1) block=(512,1,1) lds={3*49152}"
```

```python
from asmlib import *
import math
from k1 import HO_OFF, HO_SZ, XB
def mfma(d, a_, b_):
    return f"v_mfma_f32_16x16x32_bf16 {vr(d,4)}, {vr(a_,4)}, {vr(b_,4)}, {vr(d,4)}"

def gen_k2(name="gemm2_kernel", D=6):
    a = Asm()
    SA, SW, SXR, SO, SB2 = 4, 8, 12, 16, 20
    sW, sRB, sCB, sN, sJ, sKA, sKW, sLB, sT0, sT1, sT2 = 24,25,26,27,28,29,30,31,32,33,34
    LANE, T0, T1, T2, G, R = 1,2,3,4,5,6
    al = Alloc(8, 512)
    dv = [al() for _ in range(5)]; av = al(); wb = al(); xo = al()
    XR = al(10, 2); B2 = al(10, 2)
    acc = [[al(4,4) for m in range(4)] for n in range(5)]
    H = [[al(4,4) for m in range(4)] for s in range(D)]
    WF = [al(4,4) for n in range(5)]
    top = al.n
    REG = D*5120
    assert REG >= 20480
    a(f"""
    s_cmp_ge_u32 s2, 256
    s_cbranch_scc1 {name}_end
    s_load_dwordx2 s[40:41], s[0:1], 0
    s_load_dwordx2 s[42:43], s[0:1], 16
    s_load_dwordx4 s[44:47], s[0:1], 48
    s_load_dwordx2 s[48:49], s[0:1], 64
    s_load_dwordx2 s[50:51], s[0:1], 80
    v_lshrrev_b32 v{T0}, 6, v0
    v_and_b32 v{LANE}, 63, v0
    v_readfirstlane_b32 s{sW}, v{T0}
    v_lshrrev_b32 v{G}, 4, v{LANE}
    v_and_b32 v{R}, 15, v{LANE}
    """)
    a(f"""
    s_and_b32 s{sT0}, s2, 3
    s_lshl_b32 s{sRB}, s{sT0}, 3
    s_bfe_u32 s{sT0}, s2, 0x30003
    s_add_u32 s{sRB}, s{sRB}, s{sT0}
    s_bfe_u32 s{sT0}, s2, 0x10002
    s_lshl_b32 s{sCB}, s{sT0}, 2
    s_lshr_b32 s{sT0}, s2, 6
    s_add_u32 s{sCB}, s{sCB}, s{sT0}
    s_mul_i32 s{sLB}, s{sW}, {REG}
    s_cmp_eq_u32 s{sW}, 0
    s_cselect_b32 s{sN}, 20, 18
    """)
    a(f"s_mul_i32 s{sT0}, s{sCB}, 160")
    for p in range(320): assert (p*205)>>11 == p//10
    for i in range(5):
        a(f"v_add_u32 v{T0}, {64*i}, v{LANE}")
        a(f"v_mul_u32_u24 v{T1}, 205, v{T0}")
        a(f"v_lshrrev_b32 v{T1}, 11, v{T1}")
        a(f"v_mul_u32_u24 v{T2}, 1120, v{T1}")
        a(f"v_lshl_add_u32 v{T0}, v{T0}, 4, v{T2}")
        a(f"v_add_u32 v{dv[i]}, s{sT0}, v{T0}")
    a(f"v_lshlrev_b32 v{av}, 4, v{LANE}")
    a(f"v_lshrrev_b32 v{T0}, 2, v{LANE}")
    a(f"v_mul_u32_u24 v{T0}, 160, v{T0}")
    a(f"v_and_b32 v{T1}, 3, v{LANE}")
    a(f"v_lshl_add_u32 v{T0}, v{T1}, 3, v{T0}")
    a(f"v_add_u32 v{wb}, s{sLB}, v{T0}")
    a(f"""
    s_lshl_b32 s{sT1}, s{sRB}, 6
    s_lshl_b32 s{sT2}, s{sW}, 4
    s_add_u32 s{sT1}, s{sT1}, s{sT2}
    v_add_u32 v{T0}, s{sT1}, v{R}
    v_mul_u32_u24 v{T0}, 1280, v{T0}
    v_lshl_add_u32 v{T0}, v{G}, 3, v{T0}
    v_add_u32 v{xo}, s{sT0}, v{T0}
    v_lshlrev_b32 v{T1}, 3, v{G}
    s_waitcnt lgkmcnt(0)
    """)
    a(f"""
    s_mul_i32 s{sT1}, s{sW}, 18
    s_add_u32 s{sT1}, s{sT1}, 2
    s_cmp_eq_u32 s{sW}, 0
    s_cselect_b32 s{sT1}, 0, s{sT1}
    s_mul_i32 s{sT2}, s{sRB}, 74
    s_add_u32 s{sT1}, s{sT1}, s{sT2}
    s_lshl_b32 s{sT1}, s{sT1}, 12
    s_add_u32 s{sT1}, s{sT1}, {HO_OFF}
    s_add_u32 s{SA}, s50, s{sT1}
    s_addc_u32 s{SA+1}, s51, 0
    s_lshl_b32 s{SA+2}, s{sN}, 12
    s_mov_b32 s{SA+3}, 0x00020000
    s_sub_u32 s{sT1}, s{sW}, 1
    s_mul_i32 s{sT1}, s{sT1}, {576*1280}
    s_add_u32 s{SW}, s44, s{sT1}
    s_addc_u32 s{SW+1}, s45, 0
    s_cmp_eq_u32 s{sW}, 0
    s_cselect_b32 s{SW}, s42, s{SW}
    s_cselect_b32 s{SW+1}, s43, s{SW+1}
    s_mul_i32 s{SW+2}, s{sN}, {32*1280}
    s_mov_b32 s{SW+3}, 0x00020000
    s_mov_b32 s{SXR}, s40
    s_mov_b32 s{SXR+1}, s41
    s_mov_b32 s{SXR+2}, {XB}
    s_mov_b32 s{SXR+3}, 0x00020000
    s_mov_b32 s{SO}, s48
    s_mov_b32 s{SO+1}, s49
    s_mov_b32 s{SO+2}, {XB}
    s_mov_b32 s{SO+3}, 0x00020000
    s_mov_b32 s{SB2}, s46
    s_mov_b32 s{SB2+1}, s47
    s_mov_b32 s{SB2+2}, 1280
    s_mov_b32 s{SB2+3}, 0x00020000
    s_mov_b32 s{sKA}, 0
    s_mov_b32 s{sKW}, 0
    """)
    def loads(slot):
        g = []
        for i in range(5):
            g.append([f"s_add_u32 m0, s{sLB}, {slot*5120+i*1024}", "s_nop 0",
                      f"buffer_load_dwordx4 v{dv[i]}, {sr(SW,4)}, s{sKW} offen lds"])
        for m in range(4):
            g.append([f"buffer_load_dwordx4 {vr(H[slot][m],4)}, v{av}, {sr(SA,4)}, s{sKA} offen offset:{m*1024}"])
        g.append([f"s_add_u32 s{sKA}, s{sKA}, 4096", f"s_add_u32 s{sKW}, s{sKW}, {32*1280}"])
        return g
    for s in range(D-1):
        for g in loads(s):
            for l in g: a(l)
    for n in range(5):
        a(f"buffer_load_dwordx2 {vr(XR+2*n,2)}, v{xo}, {sr(SXR,4)}, 0 offen offset:{32*n}")
    for n in range(5):
        a(f"buffer_load_dwordx2 {vr(B2+2*n,2)}, v{T1}, {sr(SB2,4)}, s{sT0} offen offset:{32*n}")
    for n in range(5):
        for m in range(4):
            for r in range(4): a(f"v_mov_b32 v{acc[n][m]+r}, 0")
    a(f"s_mov_b32 s{sJ}, 0")
    a.label("Lk2_loop")
    for s in range(D):
        a(f"s_waitcnt vmcnt({9*(D-2)})")
        for n in range(5):
            a(f"ds_read_b64_tr_b16 {vr(WF[n],2)}, v{wb} offset:{s*5120+n*32}")
            a(f"ds_read_b64_tr_b16 {vr(WF[n]+2,2)}, v{wb} offset:{s*5120+n*32+2560}")
        fill = loads((s-1) % D)
        mm = []
        for n in range(5):
            for m in range(4):
                ins = mfma(acc[n][m], WF[n], H[s][m])
                if m == 0: ins = f"s_waitcnt lgkmcnt({8-2*n})\n" + ins
                mm.append(ins)
        for l in interleave(mm, fill, start=1, every=2): a(l)
        a(f"s_add_u32 s{sJ}, s{sJ}, 1")
        a(f"s_cmp_ge_u32 s{sJ}, s{sN}")
        if s < D-1: a("s_cbranch_scc1 Lk2_done")
        else: a("s_cbranch_scc0 Lk2_loop")
    a.label("Lk2_done")
    a("s_waitcnt vmcnt(0)")
    a(f"v_add_u32 v{T0}, s{sLB}, v{av}")
    a("s_nop 4")
    for m in range(4):
        for n in range(5):
            a(f"ds_write_b128 v{T0}, {vr(acc[n][m],4)} offset:{(m*5+n)*1024}")
    a(f"s_mul_i32 s{sT1}, s{sW}, 5120")
    a(f"v_add_u32 v{T0}, s{sT1}, v{av}")
    a(f"v_add_u32 v{T2}, {2*REG}, v{T0}")
    a("s_waitcnt lgkmcnt(0)")
    a("s_barrier")
    P = [[H[src][0] + 0 for n in range(5)] for src in range(4)]
    base = H[0][0]
    P = [[base + (src*5+n)*4 for n in range(5)] for src in range(4)]
    for n in range(5):
        for src in range(4):
            ad = T0 if src < 2 else T2
            a(f"ds_read_b128 {vr(P[src][n],4)}, v{ad} offset:{(src&1)*REG+n*1024}")
        if n == 2: pass
    L2E = f32(-math.log2(math.e))
    t = acc[0][0]
    for n in range(5):
        a(f"s_waitcnt lgkmcnt({min(15, 4*(4-n))})")
        S, Y1, Y2, Y3 = P[0][n], P[1][n], P[2][n], P[3][n]
        for r in range(4): a(f"v_add_f32 v{Y1+r}, v{Y1+r}, v{Y2+r}")
        for r in range(4): a(f"v_add_f32 v{Y1+r}, v{Y1+r}, v{Y3+r}")
        def rnd(x, tmp):
            a(f"v_cvt_pk_bf16_f32 v{tmp}, v{x}, v{x+1}")
            a(f"v_cvt_pk_bf16_f32 v{tmp+1}, v{x+2}, v{x+3}")
            unp(x, tmp)
        def unp(x, p):
            a(f"v_lshlrev_b32 v{x}, 16, v{p}")
            a(f"v_and_b32 v{x+1}, 0xffff0000, v{p}")
            a(f"v_lshlrev_b32 v{x+2}, 16, v{p+1}")
            a(f"v_and_b32 v{x+3}, 0xffff0000, v{p+1}")
        rnd(Y1, t); rnd(S, t+2)
        unp(Y2, B2+2*n)
        for r in range(4): a(f"v_add_f32 v{Y1+r}, v{Y1+r}, v{Y2+r}")
        rnd(Y1, t)
        for r in range(4): a(f"v_mul_f32 v{Y2+r}, {L2E}, v{Y1+r}")
        for r in range(4): a(f"v_exp_f32 v{Y2+r}, v{Y2+r}")
        for r in range(4): a(f"v_add_f32 v{Y2+r}, 1.0, v{Y2+r}")
        for r in range(4): a(f"v_rcp_f32 v{Y2+r}, v{Y2+r}")
        for r in range(4): a(f"v_mul_f32 v{Y1+r}, v{Y1+r}, v{Y2+r}")
        rnd(Y1, t)
        for r in range(4): a(f"v_mul_f32 v{Y1+r}, v{Y1+r}, v{S+r}")
        rnd(Y1, t)
        unp(Y2, XR+2*n)
        for r in range(4): a(f"v_add_f32 v{Y1+r}, v{Y1+r}, v{Y2+r}")
        a(f"v_cvt_pk_bf16_f32 v{S}, v{Y1}, v{Y1+1}")
        a(f"v_cvt_pk_bf16_f32 v{S+1}, v{Y1+2}, v{Y1+3}")
        a(f"buffer_store_dwordx2 {vr(S,2)}, v{xo}, {sr(SO,4)}, 0 offen offset:{32*n}")
    a.label(f"{name}_end")
    a("s_endpgm")
    assert top <= 256
    return khead(name) + a.text(), kd(name, top, 64), f"; @launch kernel={name} grid=(256,1,1) block=(256,1,1) lds={4*REG}"
```

```python
import sys
from k0 import gen_k0
from k1 import gen_k1
from k2 import gen_k2
NAME = "recurrent_scan__sliding_local_dilated__dense_activation_gelu__prompt"
def build(path, noise=0, stamps=False):
    ref = open(f"cdna_kernels/{NAME}.s.ref").read().split("\n")
    hdr = [l for l in ref if l.startswith(";") and "@launch" not in l and "Override launch" not in l and "grid=ceil" not in l]
    ks = [gen_k0(noise=noise), gen_k1(stamps=stamps), gen_k2(stamps=stamps)]
    out = "\n".join(hdr) + "\n" + "\n".join(k[2] for k in ks) + "\n"
    out += '.amdgcn_target "amdgcn-amd-amdhsa--gfx950"\n'
    for k in ks: out += k[0]
    for k in ks: out += k[1]
    open(path, "w").write(out)
if __name__ == "__main__":
    path = sys.argv[1] if len(sys.argv) > 1 else f"cdna_kernels/{NAME}.s"
    noise = int(sys.argv[2]) if len(sys.argv) > 2 else 0
    build(path, noise, len(sys.argv) > 3)
```

```python
class Asm:
    def __init__(self):
        self.lines = []
        self._uid = 0
    def __call__(self, s):
        for l in s.strip("\n").split("\n"):
            l = l.strip()
            if not l: continue
            if l.endswith(":"): self.lines.append(l)
            else: self.lines.append("    " + l)
    def label(self, l): self.lines.append(l + ":")
    def c(self, s): self.lines.append("    ; " + s)
    def uid(self, p="L"):
        self._uid += 1
        return f"{p}_{self._uid}"
    def text(self): return "\n".join(self.lines) + "\n"

def vr(b, n=1):
    return f"v{b}" if n == 1 else f"v[{b}:{b+n-1}]"
def sr(b, n=1):
    return f"s{b}" if n == 1 else f"s[{b}:{b+n-1}]"

class Alloc:
    def __init__(self, start=0, limit=256):
        self.n = start; self.limit = limit
    def __call__(self, cnt=1, align=1):
        self.n = (self.n + align - 1) // align * align
        r = self.n; self.n += cnt
        assert self.n <= self.limit, f"out of regs {self.n}"
        return r

def interleave(main, fill, start=0, every=1):
    out = []
    fi = 0
    for i, m in enumerate(main):
        out.append(m)
        if i >= start and (i - start) % every == 0 and fi < len(fill):
            out.extend(fill[fi]); fi += 1
    while fi < len(fill):
        out.extend(fill[fi]); fi += 1
    return out

def kd(name, vgpr, sgpr, accum=None):
    accum = accum if accum is not None else (vgpr + 3) // 4 * 4
    return f""".section .rodata,"a"
.p2align 6
.amdhsa_kernel {name}
  .amdhsa_next_free_vgpr {vgpr}
  .amdhsa_next_free_sgpr {sgpr}
  .amdhsa_accum_offset {accum}
  .amdhsa_group_segment_fixed_size 0
  .amdhsa_kernarg_size 88
  .amdhsa_user_sgpr_count 2
  .amdhsa_user_sgpr_kernarg_segment_ptr 1
  .amdhsa_system_sgpr_workgroup_id_x 1
.end_amdhsa_kernel
"""
def khead(name):
    return f""".text
.globl {name}
.p2align 8
.type {name},@function
{name}:
"""
import struct
def f32(x):
    return "0x%08x" % struct.unpack("<I", struct.pack("<f", x))[0]

STAMP_OFF = 0x4000000
class Stamper:
    def __init__(self, a, on, kidx, wsp, wave_s, vtmp=254):
        self.a, self.on, self.kidx, self.wsp, self.wave_s, self.v = a, on, kidx, wsp, wave_s, vtmp
    def start(self):
        if not self.on: return
        self.a(f"""
        s_memtime s[70:71]
        s_memrealtime s[76:77]
        v_mov_b32 v{self.v}, 0
        s_waitcnt lgkmcnt(0)
        v_writelane_b32 v{self.v}, s70, 0
        v_writelane_b32 v{self.v}, s76, 62
        """)
    def stamp(self, idx):
        if not self.on: return
        self.a(f"""
        s_memtime s[70:71]
        s_waitcnt lgkmcnt(0)
        v_writelane_b32 v{self.v}, s70, {idx}
        """)
    def stamp_dyn(self, base, sreg):
        if not self.on: return
        self.a(f"""
        s_memtime s[70:71]
        s_add_u32 m0, s{sreg}, {base}
        s_waitcnt lgkmcnt(0)
        v_writelane_b32 v{self.v}, s70, m0
        """)
    def finish(self, idx):
        if not self.on: return
        v = self.v
        self.a(f"""
        s_waitcnt vmcnt(0)
        s_memtime s[70:71]
        s_memrealtime s[76:77]
        s_lshl_b32 s68, s2, 3
        s_add_u32 s68, s68, s{self.wave_s}
        s_lshl_b32 s68, s68, 8
        s_add_u32 s68, s68, {STAMP_OFF + self.kidx*(1<<20)}
        s_add_u32 s64, s{self.wsp}, s68
        s_addc_u32 s65, s{self.wsp+1}, 0
        s_mov_b32 s66, 256
        s_mov_b32 s67, 0x00020000
        s_waitcnt lgkmcnt(0)
        v_writelane_b32 v{v}, s70, {idx}
        v_writelane_b32 v{v}, s76, 63
        v_mbcnt_lo_u32_b32 v{v+1}, -1, 0
        v_mbcnt_hi_u32_b32 v{v+1}, -1, v{v+1}
        v_lshlrev_b32 v{v+1}, 2, v{v+1}
        buffer_store_dword v{v}, v{v+1}, s[64:67], 0 offen
        """)
```

```python
from asmlib import *
XB = 2048*640*2
def gen_k0(name="ln_kernel", noise=0):
    a = Asm()
    a(f"""
    s_cmp_ge_u32 s2, 256
    s_cbranch_scc1 {name}_end
    s_load_dwordx2 s[4:5], s[0:1], 0
    s_load_dwordx2 s[8:9], s[0:1], 80
    v_lshrrev_b32 v1, 4, v0
    s_lshl_b32 s3, s2, 3
    v_add_u32 v1, s3, v1
    v_mul_u32_u24 v1, 1280, v1
    v_and_b32 v2, 15, v0
    v_lshl_add_u32 v1, v2, 4, v1
    s_mov_b32 s6, {XB}
    s_mov_b32 s7, 0x00020000
    s_mov_b32 s10, {XB}
    s_mov_b32 s11, 0x00020000
    s_waitcnt lgkmcnt(0)
    """)
    for i in range(5):
        a(f"buffer_load_dwordx4 v[{4+4*i}:{7+4*i}], v1, s[4:7], 0 offen offset:{256*i}")
    for i in range(5):
        a(f"s_waitcnt vmcnt({4-i})")
        for j in range(4):
            w = 4+4*i+j; d = 24+2*(4*i+j)
            a(f"v_lshlrev_b32 v{d}, 16, v{w}")
            a(f"v_and_b32 v{d+1}, 0xffff0000, v{w}")
    a("v_add_f32 v64, v24, v25\nv_add_f32 v65, v26, v27\nv_add_f32 v66, v28, v29\nv_add_f32 v67, v30, v31")
    for i in range(8, 40):
        a(f"v_add_f32 v{64+(i&3)}, v{64+(i&3)}, v{24+i}")
    a("v_add_f32 v64, v64, v65\nv_add_f32 v66, v66, v67\nv_add_f32 v64, v64, v66")
    def rowred(r):
        for sh in (8,4,2,1):
            a("s_nop 1")
            a(f"v_add_f32_dpp v{r}, v{r}, v{r} row_ror:{sh} row_mask:0xf bank_mask:0xf")
    rowred(64)
    a(f"v_mul_f32 v64, {f32(1.0/640)}, v64")
    for i in range(4):
        a(f"v_sub_f32 v{70+i}, v{24+i}, v64")
        a(f"v_mul_f32 v{66+i}, v{70+i}, v{70+i}")
    for i in range(4, 40):
        a(f"v_sub_f32 v{70+(i&3)}, v{24+i}, v64")
        a(f"v_fmac_f32 v{66+(i&3)}, v{70+(i&3)}, v{70+(i&3)}")
    a("v_add_f32 v66, v66, v67\nv_add_f32 v68, v68, v69\nv_add_f32 v66, v66, v68")
    rowred(66)
    a(f"""
    v_mul_f32 v66, {f32(1.0/640)}, v66
    v_cvt_pk_bf16_f32 v65, v64, v66
    v_lshlrev_b32 v64, 16, v65
    v_and_b32 v66, 0xffff0000, v65
    v_add_f32 v66, {f32(1e-5)}, v66
    v_cvt_pk_bf16_f32 v66, v66, v66
    v_lshlrev_b32 v66, 16, v66
    v_sqrt_f32 v66, v66
    s_nop 0
    v_cvt_pk_bf16_f32 v66, v66, v66
    v_lshlrev_b32 v66, 16, v66
    v_rcp_f32 v66, v66
    s_nop 0
    """)
    for i in range(20):
        d = 24+2*i
        a(f"v_sub_f32 v{d}, v{d}, v64")
        a(f"v_sub_f32 v{d+1}, v{d+1}, v64")
        if noise == 0:
            a(f"v_cvt_pk_bf16_f32 v{4+i}, v{d}, v{d+1}")
            a(f"v_lshlrev_b32 v{d}, 16, v{4+i}")
            a(f"v_and_b32 v{d+1}, 0xffff0000, v{4+i}")
        a(f"v_mul_f32 v{d}, v{d}, v66")
        a(f"v_mul_f32 v{d+1}, v{d+1}, v66")
        if noise == 2:
            a(f"v_lshrrev_b32 v{d}, 16, v{d}")
            a(f"v_and_b32 v{d+1}, 0xffff0000, v{d+1}")
            a(f"v_or_b32 v{4+i}, v{d}, v{d+1}")
        else:
            a(f"v_cvt_pk_bf16_f32 v{4+i}, v{d}, v{d+1}")
            if noise >= 3:
                m = (0xffff << (noise-2)) & 0xffff
                hb = 1 << (noise-3)
                a(f"v_and_b32 v{4+i}, 0x{m:04x}{m:04x}, v{4+i}")
                a(f"v_or_b32 v{4+i}, 0x{hb:04x}{hb:04x}, v{4+i}")
        if i % 4 == 3:
            k = i//4
            a(f"buffer_store_dwordx4 v[{4+4*k}:{7+4*k}], v1, s[8:11], 0 offen offset:{256*k}")
    a.label(f"{name}_end")
    a("s_endpgm")
    return khead(name) + a.text(), kd(name, 80, 16), f"; @launch kernel={name} grid=(256,1,1) block=(128,1,1) lds=0"
```

```python
from asmlib import *
import math
XB = 2048*640*2
HO_OFF = 0x300000
HO_SZ = 33*74*4096
BIG = 0x7ff00000
RS = 592

SX, SW, SM, SHO, SB1 = 4, 8, 12, 16, 20
sW, sRB, sCB, sI, sKX, sKW, sKM, sFILL, sDELTA, sSLOT, sW1K, sT0, sT1, sT2, sT3 = 24,25,26,27,28,29,30,32,33,35,36,37,38,39,31
sNT, sMH = 40, 44
sVAR = 45
K_WQKV, K_W1, K_B1, K_WS = 48, 50, 52, 54

def mfma(d, a_, b_):
    return f"v_mfma_f32_16x16x32_bf16 {vr(d,4)}, {vr(a_,4)}, {vr(b_,4)}, {vr(d,4)}"

class Cfg: pass

def emit_dma(c, u, first=False):
    srd, so = (SX, sKX) if u < 2 else ((SM, sKM) if u == 2 else (SW, sKW))
    ins = [f"s_add_u32 m0, s{sFILL}, {u*8192}"]
    ld = f"buffer_load_dwordx4 v{c.dv[u]}, {sr(srd,4)}, s{so} offen lds"
    return ins, ld

def stage_offsets(c, st_reg_expr):
    return [f"s_lshl_b32 s{sKX}, s{sT0}, 7",
            f"s_mul_i32 s{sKW}, s{sT0}, {64*c.wrowb}",
            f"s_cmp_lt_u32 s{sT0}, 10",
            f"s_cselect_b32 s{sKX}, s{sKX}, {BIG}",
            f"s_cmp_lt_u32 s{sW}, {c.nxm}",
            f"s_cselect_b32 s{sKM}, s{sKX}, s{sKW}"]

def reads(c, st, s, nF, nh):
    r = []
    for i in range(c.nM):
        r.append(f"ds_read_b128 {vr(c.X[st][i],4)}, v{c.xb[s]} offset:{i*2048}")
    if nh: r.append(f"ds_read_b128 {vr(c.XH[st],4)}, v{c.hb[s]}")
    w = []
    for f in range(nF):
        w.append(f"ds_read_b64_tr_b16 {vr(c.W[st][f],2)}, v{c.wb[f]} offset:{s*32*c.wrow}")
        w.append(f"ds_read_b64_tr_b16 {vr(c.W[st][f]+2,2)}, v{c.wb[f]} offset:{s*32*c.wrow+8*c.wrow}")
    return w[:2] + r + w[2:]

def mfmas(c, st, nF, nh):
    m = []
    for f in range(nF):
        for i in range(c.nM):
            m.append(mfma(c.acc[f][i], c.W[st][f], c.X[st][i]))
        if f < nh: m.append(mfma(c.acch[f], c.W[st][f], c.XH[st]))
    return m

def chunks(l, n): return [l[i:i+n] for i in range(0, len(l), n)]

def dma_groups(c, a):
    g = []
    for u in range(6):
        ins, ld = emit_dma(c, u)
        if u == 5 and c.partial6:
            lab = a.uid("Lskip6")
            g.append([f"s_cmp_ge_u32 s{sW}, 4", f"s_cbranch_scc1 {lab}"] + ins + ["s_nop 0", ld, lab + ":"])
        else:
            g.append(ins + ["s_nop 0", ld])
    return g

def main_loop(a, c, nF, nh, tag):
    ST = c.ST
    ST.stamp(1)
    bases = list(c.xb) + (list(c.hb) if nh else []) + c.wb[:nF]
    a(f"s_waitcnt vmcnt({2*c.ndma})")
    ST.stamp(2)
    a("s_barrier")
    ST.stamp(3)
    for r in reads(c, 0, 0, nF, nh): a(r)
    a(f"s_mov_b32 s{sI}, 0")
    a.label(f"Lloop_{tag}")
    a("s_waitcnt lgkmcnt(0)")
    salu = [f"s_add_u32 s{sFILL}, s{sSLOT}, s{sW1K}",
            f"s_add_u32 s{sT1}, s{sSLOT}, {c.stg}",
            f"s_cmp_eq_u32 s{sT1}, {3*c.stg}",
            f"s_cselect_b32 s{sT1}, 0, s{sT1}",
            f"s_sub_u32 s{sDELTA}, s{sT1}, s{sSLOT}",
            f"s_mov_b32 s{sSLOT}, s{sT1}",
            f"s_add_u32 s{sT0}, s{sI}, 3"] + stage_offsets(c, None)
    upd = [f"v_add_u32 v{b}, s{sDELTA}, v{b}" for b in bases]
    rb = reads(c, 1, 1, nF, nh)
    fill = chunks(rb, 2)
    fill[0] = fill[0] + salu[:6]
    fill[1] = fill[1] + salu[6:]
    fill += chunks(upd, 3)
    for l in interleave(mfmas(c, 0, nF, nh), fill): a(l)
    ST.stamp_dyn(10, sI)
    a(f"s_waitcnt vmcnt({c.ndma}) lgkmcnt(0)")
    ST.stamp_dyn(20, sI)
    a("s_barrier")
    ST.stamp_dyn(30, sI)
    ra = reads(c, 0, 0, nF, nh)
    fill = chunks(ra, 2) + dma_groups(c, a)
    for l in interleave(mfmas(c, 1, nF, nh), fill): a(l)
    a(f"s_add_u32 s{sI}, s{sI}, 1")
    a(f"s_cmp_lt_u32 s{sI}, 10")
    a(f"s_cbranch_scc1 Lloop_{tag}")
    a("s_waitcnt vmcnt(0) lgkmcnt(0)")
    ST.stamp(4)

def prologue_dma(a, c):
    for st in range(3):
        a(f"s_mov_b32 s{sT0}, {st}")
        for l in stage_offsets(c, None): a(l)
        a(f"s_add_u32 s{sFILL}, s{sW1K}, {st*c.stg}")
        for g in dma_groups(c, a):
            for l in g: a(l)

def swap23(a, d, s, t):
    a(f"v_and_b32 v{d}, 0x33, v{s}")
    a(f"v_and_b32 v{t}, 4, v{s}")
    a(f"v_lshl_or_b32 v{d}, v{t}, 1, v{d}")
    a(f"v_and_b32 v{t}, 8, v{s}")
    a(f"v_lshrrev_b32 v{t}, 1, v{t}")
    a(f"v_or_b32 v{d}, v{d}, v{t}")

def x_dma_addr(a, d, lane, t0, t1, u, rowbase_s, clamp0):
    a(f"s_lshl_b32 s{sT0}, s{sW}, 3")
    a(f"s_add_u32 s{sT0}, s{sT0}, {64*u}")
    a(f"v_lshrrev_b32 v{t0}, 3, v{lane}")
    a(f"v_add_u32 v{t0}, s{sT0}, v{t0}")
    a(f"v_lshrrev_b32 v{t1}, 1, v{t0}")
    a(f"v_xor_b32 v{t1}, v{t1}, v{lane}")
    a(f"v_and_b32 v{t1}, 7, v{t1}")
    a(f"v_add_u32 v{t0}, s{rowbase_s}, v{t0}")
    if clamp0: a(f"v_max_i32 v{t0}, 0, v{t0}")
    a(f"v_mul_u32_u24 v{t0}, 1280, v{t0}")
    a(f"v_lshl_add_u32 v{d}, v{t1}, 4, v{t0}")

def gen_k1(name="gemm1_kernel", stamps=False):
    a = Asm()
    ST = Stamper(a, stamps, 1, 58, sW)
    LANE, T0, T1, T2, T3, G, R = 1, 2, 3, 4, 5, 6, 7
    a(f"""
    s_cmp_ge_u32 s2, 256
    s_cbranch_scc1 {name}_end
    """)
    ST.start()
    a(f"""
    s_load_dwordx2 s[{K_WQKV}:{K_WQKV+1}], s[0:1], 8
    s_load_dwordx4 s[{K_W1+2}:{K_W1+5}], s[0:1], 32
    s_load_dwordx2 s[{K_WS+4}:{K_WS+5}], s[0:1], 80
    v_lshrrev_b32 v{T0}, 6, v0
    v_and_b32 v{LANE}, 63, v0
    v_readfirstlane_b32 s{sW}, v{T0}
    v_lshrrev_b32 v{G}, 4, v{LANE}
    v_and_b32 v{R}, 15, v{LANE}
    s_and_b32 s{sT0}, s2, 1
    s_bfe_u32 s{sT1}, s2, 0x20001
    s_lshr_b32 s{sT2}, s2, 3
    s_lshl_b32 s{sW1K}, s{sW}, 10
    s_mov_b32 s{sSLOT}, 0
    s_cmp_ge_u32 s{sT2}, 16
    s_cbranch_scc1 Lffn
    """)
    W1P, B1P, WSP = 52, 54, 58
    def common_srds(wptr, wbytes, nxm):
        a(f"""
        s_waitcnt lgkmcnt(0)
        s_mov_b32 s{SX}, s{WSP}
        s_mov_b32 s{SX+1}, s{WSP+1}
        s_mov_b32 s{SX+2}, {XB}
        s_mov_b32 s{SX+3}, 0x00020000
        s_mov_b32 s{SW}, s{wptr}
        s_mov_b32 s{SW+1}, s{wptr+1}
        s_mov_b32 s{SW+2}, {wbytes}
        s_mov_b32 s{SW+3}, 0x00020000
        s_cmp_lt_u32 s{sW}, {nxm}
        s_cselect_b32 s{SM}, s{SX}, s{SW}
        s_cselect_b32 s{SM+1}, s{SX+1}, s{SW+1}
        s_cselect_b32 s{SM+2}, s{SX+2}, s{SW+2}
        s_mov_b32 s{SM+3}, 0x00020000
        s_add_u32 s{SHO}, s{WSP}, {HO_OFF}
        s_addc_u32 s{SHO+1}, s{WSP+1}, 0
        s_mov_b32 s{SHO+2}, {HO_SZ}
        s_mov_b32 s{SHO+3}, 0x00020000
        """)
    c = Cfg(); al = Alloc(8); c.ST = ST
    c.nM = 4; c.wrow = 480; c.wrowb = 3840; c.stg = 49152; c.xsz = 18432; c.nxm = 2; c.ndma = 6; c.partial6 = False
    c.dv = [al() for _ in range(6)]
    c.xb = [al(), al()]; c.hb = [al(), al()]; c.wb = [al() for _ in range(4)]
    c.acc = [[al(4,4) for i in range(4)] for f in range(4)]
    c.acch = [al(4,4) for f in range(3)]
    c.X = [[al(4,4) for i in range(4)] for s in range(2)]
    c.XH = [al(4,4) for s in range(2)]
    c.W = [[al(4,4) for f in range(4)] for s in range(2)]
    qkv_top = al.n
    a(f"""
    s_lshl_b32 s{sRB}, s{sT0}, 3
    s_and_b32 s{sT3}, s{sT2}, 7
    s_add_u32 s{sRB}, s{sRB}, s{sT3}
    s_lshl_b32 s{sCB}, s{sT1}, 1
    s_lshr_b32 s{sT3}, s{sT2}, 3
    s_add_u32 s{sCB}, s{sCB}, s{sT3}
    s_lshl_b32 s{sT3}, s{sRB}, 7
    s_sub_u32 s{sT3}, s{sT3}, 16
    """)
    x_dma_addr(a, c.dv[0], LANE, T0, T1, 0, sT3, True)
    x_dma_addr(a, c.dv[1], LANE, T0, T1, 1, sT3, True)
    def w_dma_addr_q(d, u):
        a(f"s_lshl_b32 s{sT0}, s{sW}, 6")
        a(f"s_add_u32 s{sT0}, s{sT0}, {64*(8*u-18) & 0xffffffff}")
        a(f"v_add_u32 v{T0}, s{sT0}, v{LANE}")
        a(f"v_mul_u32_u24 v{T1}, 2185, v{T0}")
        a(f"v_lshrrev_b32 v{T1}, 16, v{T1}")
        a(f"v_mul_u32_u24 v{T2}, 30, v{T1}")
        a(f"v_sub_u32 v{T0}, v{T0}, v{T2}")
        swap23(a, T2, T1, T3)
        a(f"v_mul_u32_u24 v{T2}, 3840, v{T2}")
        a(f"v_mul_u32_u24 v{T1}, 26, v{T0}")
        a(f"v_lshrrev_b32 v{T1}, 8, v{T1}")
        a(f"v_mul_u32_u24 v{T1}, 1120, v{T1}")
        a(f"v_lshl_add_u32 v{T0}, v{T0}, 4, v{T1}")
        a(f"s_mul_i32 s{sT0}, s{sCB}, 160")
        a(f"v_add3_u32 v{d}, v{T0}, v{T2}, s{sT0}")
    a(f"s_cmp_lt_u32 s{sW}, 2")
    a("s_cbranch_scc0 Lq_mixw")
    x_dma_addr(a, c.dv[2], LANE, T0, T1, 2, sT3, True)
    a("s_branch Lq_mixd")
    a.label("Lq_mixw")
    w_dma_addr_q(c.dv[2], 2)
    a.label("Lq_mixd")
    for u in (3,4,5): w_dma_addr_q(c.dv[u], u)
    common_srds(K_WQKV, 640*3840, 2)
    prologue_dma(a, c)
    G0,G1,G2,G3 = [0,1,2,3],None,None,None
    wavecfg = [
        ([8,9,10,11], 0, 3, 4),
        ([5,6,7,4],   0, 2, 4),
        ([11,8,9,10], 1, 1, 4),
        ([7,4,5,6],   1, 1, 4),
        ([14,12,13,0],1, 1, 3),
        ([12,13,14,0],0, 2, 3),
        ([0,1,2,3],   0, 0, 4),
        ([0,1,2,3],   1, 0, 4)]
    variants = sorted(set((w[2], w[3]) for w in wavecfg))
    for w, (nt, mh, nh, nF) in enumerate(wavecfg):
        pk = nt[0] | nt[1]<<4 | nt[2]<<8 | nt[3]<<12 | mh<<16 | variants.index((nh,nF))<<20
        if w == 0: a(f"s_mov_b32 s{sT0}, {pk}")
        else:
            a(f"s_cmp_eq_u32 s{sW}, {w}")
            a(f"s_cselect_b32 s{sT0}, {pk}, s{sT0}")
    for f in range(4): a(f"s_bfe_u32 s{sNT+f}, s{sT0}, {hex(4<<16 | 4*f)}")
    a(f"s_bfe_u32 s{sMH}, s{sT0}, {hex(1<<16|16)}")
    a(f"s_lshr_b32 s{sVAR}, s{sT0}, 20")
    a(f"v_lshrrev_b32 v{T0}, 1, v{R}")
    a(f"v_xor_b32 v{T0}, v{T0}, v{G}")
    a(f"v_lshlrev_b32 v{T0}, 4, v{T0}")
    a(f"v_lshl_add_u32 v{c.hb[0]}, v{R}, 7, v{T0}")
    a(f"v_xor_b32 v{c.hb[1]}, 64, v{c.hb[0]}")
    a(f"s_lshl_b32 s{sT0}, s{sMH}, 13")
    a(f"s_add_u32 s{sT0}, s{sT0}, 2048")
    a(f"v_add_u32 v{c.xb[0]}, s{sT0}, v{c.hb[0]}")
    a(f"v_add_u32 v{c.xb[1]}, s{sT0}, v{c.hb[1]}")
    def rho_local(d, t):
        a(f"v_bfe_u32 v{d}, v{LANE}, 2, 3")
        a(f"v_lshrrev_b32 v{t}, 5, v{LANE}")
        a(f"v_lshl_add_u32 v{d}, v{t}, 4, v{d}")
    rho_local(T0, T1)
    a(f"v_mul_u32_u24 v{T0}, 480, v{T0}")
    a(f"v_and_b32 v{T1}, 3, v{LANE}")
    a(f"v_lshl_add_u32 v{T0}, v{T1}, 3, v{T0}")
    for f in range(4):
        a(f"s_lshl_b32 s{sT0}, s{sNT+f}, 5")
        a(f"s_add_u32 s{sT0}, s{sT0}, {c.xsz}")
        a(f"v_add_u32 v{c.wb[f]}, s{sT0}, v{T0}")
    for f in range(4):
        for i in range(4):
            for r in range(4): a(f"v_mov_b32 v{c.acc[f][i]+r}, 0")
    for f in range(3):
        for r in range(4): a(f"v_mov_b32 v{c.acch[f]+r}, 0")
    for vi in range(1, len(variants)):
        a(f"s_cmp_eq_u32 s{sVAR}, {vi}")
        a(f"s_cbranch_scc1 Lqvar_{vi}")
    WR = c.X[0][0]
    for vi, (nh, nF) in enumerate(variants):
        a.label(f"Lqvar_{vi}")
        main_loop(a, c, nF, nh, f"q{vi}")
        a("s_barrier")
        a(f"s_lshl_b32 s{sT1}, s{sMH}, 6")
        a(f"s_add_u32 s{sT1}, s{sT1}, 16")
        a(f"s_mul_i32 s{sT1}, s{sT1}, {RS}")
        a(f"v_mul_u32_u24 v{T2}, {RS}, v{R}")
        for f in range(nF):
            a(f"s_mul_i32 s{sT0}, s{sNT+f}, 52")
            a(f"s_lshr_b32 s{sT0}, s{sT0}, 8")
            a(f"s_mul_i32 s{sT2}, s{sT0}, 5")
            a(f"s_sub_u32 s{sT2}, s{sNT+f}, s{sT2}")
            a(f"s_lshl_b32 s{sT2}, s{sT2}, 2")
            a(f"s_mul_i32 s{sT0}, s{sT0}, 192")
            a(f"v_add_u32 v{T0}, s{sT2}, v{G}")
            a(f"v_mul_u32_u24 v{T1}, 52, v{T0}")
            a(f"v_lshrrev_b32 v{T1}, 8, v{T1}")
            a(f"v_add_u32 v{T0}, v{T0}, v{T1}")
            a(f"v_lshl_add_u32 v{T0}, v{T0}, 3, v{T2}")
            a(f"v_add_u32 v{WR+4+f}, s{sT0}, v{T0}")
            a(f"v_add_u32 v{WR+f}, s{sT1}, v{WR+4+f}")
        PK = c.X[1][0]
        n = 0
        for f in range(nF):
            tl = [(c.acc[f][i], WR+f, i*16*RS) for i in range(4)]
            if f < nh: tl.append((c.acch[f], WR+4+f, 0))
            for (ac, ad, off) in tl:
                p = PK + 2*(n % 8); n += 1
                a(f"v_cvt_pk_bf16_f32 v{p}, v{ac}, v{ac+1}")
                a(f"v_cvt_pk_bf16_f32 v{p+1}, v{ac+2}, v{ac+3}")
                a(f"ds_write_b64 v{ad}, {vr(p,2)} offset:{off}")
        if vi != len(variants)-1: a("s_branch Lattn")
    a.label("Lattn")
    al = Alloc(8)
    AB = al(); OV = al()
    Q = al(10, 2); K = [al(10,2) for _ in range(8)]; V = [al(10,2) for _ in range(8)]
    L = al(8, 2); PL = al(8); PH = al(8); O = al(20, 2); MX = al(); SM_ = al(); TP = al(4,2)
    att_top = al.n
    a(f"""
    s_and_b32 s{sT0}, s{sW}, 3
    s_lshr_b32 s{sT1}, s{sW}, 2
    s_lshl_b32 s{sT2}, s{sT1}, 6
    s_add_u32 s{sT2}, s{sT2}, 2
    v_add_u32 v{AB}, s{sT2}, v{LANE}
    v_mul_u32_u24 v{AB}, {RS}, v{AB}
    s_mul_i32 s{sT2}, s{sT0}, 48
    v_add_u32 v{AB}, s{sT2}, v{AB}
    v_lshlrev_b32 v{OV}, 10, v{G}
    v_lshl_add_u32 v{OV}, v{R}, 4, v{OV}
    s_waitcnt lgkmcnt(0)
    s_barrier
    """)
    ST.stamp(5)
    def rd(dst, off):
        return [f"ds_read_b128 {vr(dst,4)}, v{AB} offset:{off}",
                f"ds_read_b128 {vr(dst+4,4)}, v{AB} offset:{off+16}",
                f"ds_read_b64 {vr(dst+8,2)}, v{AB} offset:{off+32}"]
    items = [rd(Q, 14*RS)] + [rd(K[w], (14-2*w)*RS+192) for w in range(8)] + [rd(V[w], (14-2*w)*RS+384) for w in range(8)]
    issued = 0
    def issue(n):
        nonlocal issued
        for _ in range(n):
            if issued < len(items):
                for l in items[issued]: a(l)
                issued += 1
    def need(idx):
        a(f"s_waitcnt lgkmcnt({3*(issued-1-idx)})")
    issue(5)
    for wp in range(4):
        w0, w1 = 2*wp, 2*wp+1
        need(1+w1)
        for d in range(10):
            for w in (w0, w1):
                src2 = "0" if d == 0 else f"v{L+w}"
                a(f"v_dot2_f32_bf16 v{L+w}, v{Q+d}, v{K[w]+d}, {src2}")
        issue(2)
    issue(1)
    a("s_nop 2")
    sc = 20 ** -0.5
    def rnd8():
        for i in range(4):
            a(f"v_cvt_pk_bf16_f32 v{TP+i}, v{L+2*i}, v{L+2*i+1}")
        for i in range(4):
            a(f"v_lshlrev_b32 v{L+2*i}, 16, v{TP+i}")
            a(f"v_and_b32 v{L+2*i+1}, 0xffff0000, v{TP+i}")
    rnd8()
    for w in range(8): a(f"v_mul_f32 v{L+w}, {f32(sc)}, v{L+w}")
    rnd8()
    a(f"s_or_b32 s{sT2}, s{sRB}, s{sT1}")
    a(f"s_cmp_lg_u32 s{sT2}, 0")
    a("s_cbranch_scc1 Lnomask")
    a(f"v_mov_b32 v{TP}, {f32(-1e9)}")
    for w in range(1, 8):
        a(f"v_cmp_le_u32 vcc, {2*w}, v{LANE}")
        a("s_nop 1")
        a(f"v_cndmask_b32 v{L+w}, v{TP}, v{L+w}, vcc")
    a.label("Lnomask")
    a(f"v_max3_f32 v{MX}, v{L}, v{L+1}, v{L+2}")
    a(f"v_max3_f32 v{SM_}, v{L+3}, v{L+4}, v{L+5}")
    a(f"v_max3_f32 v{MX}, v{MX}, v{L+6}, v{L+7}")
    a(f"v_max_f32 v{MX}, v{MX}, v{SM_}")
    for w in range(8): a(f"v_sub_f32 v{L+w}, v{L+w}, v{MX}")
    for w in range(8): a(f"v_mul_f32 v{L+w}, {f32(math.log2(math.e))}, v{L+w}")
    for w in range(8): a(f"v_exp_f32 v{L+w}, v{L+w}")
    a(f"v_add_f32 v{TP}, v{L}, v{L+1}")
    a(f"v_add_f32 v{TP+1}, v{L+2}, v{L+3}")
    a(f"v_add_f32 v{TP+2}, v{L+4}, v{L+5}")
    a(f"v_add_f32 v{TP+3}, v{L+6}, v{L+7}")
    a(f"v_add_f32 v{TP}, v{TP}, v{TP+1}")
    a(f"v_add_f32 v{TP+2}, v{TP+2}, v{TP+3}")
    a(f"v_add_f32 v{SM_}, v{TP}, v{TP+2}")
    a(f"v_rcp_f32 v{SM_}, v{SM_}")
    a("s_nop 0")
    for w in range(8): a(f"v_mul_f32 v{L+w}, v{L+w}, v{SM_}")
    for w in range(8):
        a(f"v_cvt_pk_bf16_f32 v{PL+w}, v{L+w}, 0")
        a(f"v_cvt_pk_bf16_f32 v{PH+w}, 0, v{L+w}")
    for w in range(8):
        need(9+w)
        for d in range(10):
            for hi in (0, 1):
                o = O+2*d+hi
                src2 = "0" if w == 0 else f"v{o}"
                a(f"v_dot2_f32_bf16 v{o}, v{V[w]+d}, v{(PH if hi else PL)+w}, {src2}")
        issue(1)
    a(f"""
    s_lshl_b32 s{sT2}, s{sRB}, 1
    s_add_u32 s{sT2}, s{sT2}, s{sT1}
    s_mul_i32 s{sT2}, s{sT2}, {74*4096}
    s_lshl_b32 s{sT3}, s{sCB}, 2
    s_add_u32 s{sT3}, s{sT3}, s{sT0}
    s_mul_i32 s{sT3}, s{sT3}, 20
    """)
    for u in range(5):
        a(f"v_cvt_pk_bf16_f32 v{Q+2*u}, v{O+4*u}, v{O+4*u+1}")
        a(f"v_cvt_pk_bf16_f32 v{Q+2*u+1}, v{O+4*u+2}, v{O+4*u+3}")
        a(f"""
        s_lshr_b32 s{sKX}, s{sT3}, 5
        s_lshl_b32 s{sKX}, s{sKX}, 12
        s_add_u32 s{sKX}, s{sKX}, s{sT2}
        s_bfe_u32 s{sKW}, s{sT3}, 0x20002
        s_lshl_b32 s{sKW}, s{sKW}, 8
        s_add_u32 s{sKX}, s{sKX}, s{sKW}
        s_bfe_u32 s{sKW}, s{sT3}, 0x10004
        s_lshl_b32 s{sKW}, s{sKW}, 3
        s_add_u32 s{sKX}, s{sKX}, s{sKW}
        s_add_u32 s{sT3}, s{sT3}, 4
        buffer_store_dwordx2 {vr(Q+2*u,2)}, v{OV}, {sr(SHO,4)}, s{sKX} offen
        """)
    ST.stamp(6)
    ST.finish(7)
    a("s_endpgm")
    a.label("Lffn")
    c = Cfg(); al = Alloc(8); c.ST = ST
    c.nM = 5; c.wrow = 384; c.wrowb = 3456; c.stg = 45056; c.xsz = 20480; c.nxm = 4; c.ndma = 5; c.partial6 = True
    c.dv = [al() for _ in range(6)]
    c.xb = [al(), al()]; c.wb = [al() for _ in range(3)]
    B1 = al(6, 2)
    c.acc = [[al(4,4) for i in range(5)] for f in range(3)]
    c.X = [[al(4,4) for i in range(5)] for s in range(2)]
    c.W = [[al(4,4) for f in range(3)] for s in range(2)]
    ffn_top = al.n
    a(f"""
    s_sub_u32 s{sT2}, s{sT2}, 16
    s_cmp_eq_u32 s{sT0}, 0
    s_cbranch_scc0 Lf_h1
    s_lshl_b32 s{sT1}, s{sT1}, 4
    s_add_u32 s{sT1}, s{sT1}, s{sT2}
    s_cmp_ge_u32 s{sT1}, 63
    s_cbranch_scc1 {name}_end
    s_mul_i32 s{sCB}, s{sT1}, 37
    s_lshr_b32 s{sCB}, s{sCB}, 8
    s_mul_i32 s{sT3}, s{sCB}, 7
    s_sub_u32 s{sRB}, s{sT1}, s{sT3}
    s_branch Lf_hd
Lf_h1:
    s_cmp_ge_u32 s{sT2}, 14
    s_cbranch_scc1 {name}_end
    s_mul_i32 s{sT1}, s{sT1}, 14
    s_add_u32 s{sT1}, s{sT1}, s{sT2}
    s_cmp_ge_u32 s{sT1}, 54
    s_cbranch_scc1 {name}_end
    s_mul_i32 s{sCB}, s{sT1}, 43
    s_lshr_b32 s{sCB}, s{sCB}, 8
    s_mul_i32 s{sT3}, s{sCB}, 6
    s_sub_u32 s{sRB}, s{sT1}, s{sT3}
    s_add_u32 s{sRB}, s{sRB}, 7
Lf_hd:
    s_mul_i32 s{sT3}, s{sRB}, 160
    """)
    for t in range(63): assert (t*37)>>8 == t//7
    for t in range(54): assert (t*43)>>8 == t//6
    x_dma_addr(a, c.dv[0], LANE, T0, T1, 0, sT3, False)
    x_dma_addr(a, c.dv[1], LANE, T0, T1, 1, sT3, False)
    def w_dma_addr_f(d, u):
        a(f"s_lshl_b32 s{sT0}, s{sW}, 6")
        a(f"s_add_u32 s{sT0}, s{sT0}, {64*(8*u-20) & 0xffffffff}")
        a(f"v_add_u32 v{T0}, s{sT0}, v{LANE}")
        a(f"v_mul_u32_u24 v{T1}, 2731, v{T0}")
        a(f"v_lshrrev_b32 v{T1}, 16, v{T1}")
        a(f"v_mul_u32_u24 v{T2}, 24, v{T1}")
        a(f"v_sub_u32 v{T0}, v{T0}, v{T2}")
        a(f"v_and_b32 v{T2}, 6, v{T1}")
        a(f"v_xor_b32 v{T0}, v{T0}, v{T2}")
        swap23(a, T2, T1, T3)
        a(f"v_mul_u32_u24 v{T2}, 3456, v{T2}")
        a(f"v_lshl_add_u32 v{T0}, v{T0}, 4, v{T2}")
        a(f"s_mul_i32 s{sT0}, s{sCB}, 384")
        a(f"v_add_u32 v{d}, s{sT0}, v{T0}")
    for p in range(1536+256): assert (p*2731)>>16 == p//24
    for p in range(1920): assert (p*2185)>>16 == p//30
    a(f"s_cmp_lt_u32 s{sW}, 4")
    a("s_cbranch_scc0 Lf_mixw")
    x_dma_addr(a, c.dv[2], LANE, T0, T1, 2, sT3, False)
    a("s_branch Lf_mixd")
    a.label("Lf_mixw")
    w_dma_addr_f(c.dv[2], 2)
    a.label("Lf_mixd")
    for u in (3,4,5): w_dma_addr_f(c.dv[u], u)
    a(f"""
    s_lshr_b32 s{sMH}, s{sW}, 2
    s_bfe_u32 s{sT0}, s{sW}, 0x10001
    s_and_b32 s{sT1}, s{sW}, 1
    s_mul_i32 s{sT0}, s{sT0}, 6
    s_lshl_b32 s{sT2}, s{sT1}, 2
    s_add_u32 s{sNT}, s{sT0}, s{sT2}
    s_add_u32 s{sNT+1}, s{sNT}, 1
    s_add_u32 s{sNT+2}, s{sT0}, s{sT1}
    s_add_u32 s{sNT+2}, s{sNT+2}, 2
    """)
    common_srds(W1P, 640*3456, 4)
    a(f"""
    s_mov_b32 s{SB1}, s{B1P}
    s_mov_b32 s{SB1+1}, s{B1P+1}
    s_mov_b32 s{SB1+2}, 3456
    s_mov_b32 s{SB1+3}, 0x00020000
    v_lshlrev_b32 v{T0}, 3, v{G}
    s_mul_i32 s{sT0}, s{sCB}, 384
    """)
    for f in range(3):
        a(f"s_lshl_b32 s{sT1}, s{sNT+f}, 5")
        a(f"s_add_u32 s{sT1}, s{sT1}, s{sT0}")
        a(f"buffer_load_dwordx2 {vr(B1+2*f,2)}, v{T0}, {sr(SB1,4)}, s{sT1} offen")
    prologue_dma(a, c)
    a(f"v_lshrrev_b32 v{T0}, 1, v{R}")
    a(f"v_xor_b32 v{T0}, v{T0}, v{G}")
    a(f"v_lshlrev_b32 v{T0}, 4, v{T0}")
    a(f"v_lshl_add_u32 v{T0}, v{R}, 7, v{T0}")
    a(f"s_mul_i32 s{sT0}, s{sMH}, {5*2048}")
    a(f"v_add_u32 v{c.xb[0]}, s{sT0}, v{T0}")
    a(f"v_xor_b32 v{c.xb[1]}, 64, v{c.xb[0]}")
    rho_local(T0, T1)
    a(f"v_bfe_u32 v{T2}, v{T0}, 1, 2")
    a(f"v_mul_u32_u24 v{T0}, 384, v{T0}")
    a(f"v_and_b32 v{T1}, 3, v{LANE}")
    a(f"v_lshl_add_u32 v{T0}, v{T1}, 3, v{T0}")
    a(f"v_add_u32 v{T0}, {c.xsz}, v{T0}")
    for f in range(3):
        a(f"v_xor_b32 v{T1}, s{sNT+f}, v{T2}")
        a(f"v_lshl_add_u32 v{c.wb[f]}, v{T1}, 5, v{T0}")
    for f in range(3):
        for i in range(5):
            for r in range(4): a(f"v_mov_b32 v{c.acc[f][i]+r}, 0")
    main_loop(a, c, 3, 0, "f")
    al2 = Alloc(c.X[0][0])
    BF = al2(12, 2); C0 = al2(2,2); C1 = al2(2,2); ONE = al2(2,2); TT = [al2(4,2) for _ in range(3)]; OUT = [al2(4,4) for _ in range(2)]; OS = [al2(2,2) for _ in range(2)]
    VP = al2(); VS = al2()
    assert al2.n <= ffn_top
    c0 = -2*math.sqrt(2/math.pi)*math.log2(math.e); c1 = c0*0.044715
    for j in range(6):
        a(f"v_lshlrev_b32 v{BF+2*j}, 16, v{B1+j}")
        a(f"v_and_b32 v{BF+2*j+1}, 0xffff0000, v{B1+j}")
    a(f"v_mov_b32 v{C0}, {f32(c0)}\nv_mov_b32 v{C0+1}, {f32(c0)}\nv_mov_b32 v{C1}, {f32(c1)}\nv_mov_b32 v{C1+1}, {f32(c1)}")
    a(f"v_mov_b32 v{ONE}, 1.0\nv_mov_b32 v{ONE+1}, 1.0")
    a(f"""
    s_lshr_b32 s{sT0}, s{sNT}, 1
    s_lshl_b32 s{sT0}, s{sT0}, 12
    v_lshlrev_b32 v{VP}, 4, v{LANE}
    s_lshr_b32 s{sT1}, s{sNT+2}, 1
    s_lshl_b32 s{sT1}, s{sT1}, 12
    s_and_b32 s{sT2}, s{sNT+2}, 1
    s_lshl_b32 s{sT2}, s{sT2}, 3
    s_add_u32 s{sT1}, s{sT1}, s{sT2}
    v_add_u32 v{VS}, s{sT1}, v{VP}
    v_add_u32 v{VP}, s{sT0}, v{VP}
    s_mul_i32 s{sT3}, s{sRB}, 10
    s_mul_i32 s{sT0}, s{sMH}, 5
    s_add_u32 s{sT3}, s{sT3}, s{sT0}
    s_mul_i32 s{sKM}, s{sCB}, 6
    s_add_u32 s{sKM}, s{sKM}, 20
    """)
    def gelu_pair(h, b, t, dst):
        return [f"v_pk_add_f32 {vr(h,2)}, {vr(h,2)}, {vr(b,2)}",
                f"v_pk_mul_f32 {vr(t,2)}, {vr(h,2)}, {vr(h,2)}",
                f"v_pk_fma_f32 {vr(t,2)}, {vr(t,2)}, {vr(C1,2)}, {vr(C0,2)}",
                f"v_pk_mul_f32 {vr(t,2)}, {vr(t,2)}, {vr(h,2)}",
                f"v_exp_f32 v{t}, v{t}",
                f"v_exp_f32 v{t+1}, v{t+1}",
                f"v_pk_add_f32 {vr(t,2)}, {vr(t,2)}, {vr(ONE,2)}",
                f"v_rcp_f32 v{t}, v{t}",
                f"v_rcp_f32 v{t+1}, v{t+1}",
                f"v_pk_mul_f32 {vr(t,2)}, {vr(t,2)}, {vr(h,2)}",
                f"v_cvt_pk_bf16_f32 v{dst}, v{t}, v{t+1}"]
    for i in range(5):
        o4 = OUT[i & 1]; o2 = OS[i & 1]
        streams = []
        for f in range(3):
            for hp in range(2):
                dst = (o4 + 2*f + hp) if f < 2 else (o2 + hp)
                streams.append(gelu_pair(c.acc[f][i]+2*hp, BF+4*f+2*hp, TT[f]+2*hp, dst))
        for k in range(len(streams[0])):
            for s in streams: a(s[k])
        a(f"""
        s_lshr_b32 s{sT0}, s{sT3}, 2
        s_mul_i32 s{sT0}, s{sT0}, 74
        s_add_u32 s{sT0}, s{sT0}, s{sKM}
        s_lshl_b32 s{sT0}, s{sT0}, 12
        s_and_b32 s{sT1}, s{sT3}, 3
        s_lshl_b32 s{sT1}, s{sT1}, 10
        s_add_u32 s{sT0}, s{sT0}, s{sT1}
        s_add_u32 s{sT3}, s{sT3}, 1
        buffer_store_dwordx4 {vr(o4,4)}, v{VP}, {sr(SHO,4)}, s{sT0} offen
        buffer_store_dwordx2 {vr(o2,2)}, v{VS}, {sr(SHO,4)}, s{sT0} offen
        """)
    ST.stamp(6)
    ST.finish(7)
    a.label(f"{name}_end")
    a("s_endpgm")
    nv = max(qkv_top, att_top, ffn_top)
    if stamps:
        assert nv <= 254
        nv = 256
    assert nv <= 256
    return khead(name) + a.text(), kd(name, nv, 80), f"; @launch kernel={name} grid=(256,1,1) block=(512,1,1) lds={3*49152}"
```

```python
from asmlib import *
import math
from k1 import HO_OFF, HO_SZ, XB
def mfma(d, a_, b_):
    return f"v_mfma_f32_16x16x32_bf16 {vr(d,4)}, {vr(a_,4)}, {vr(b_,4)}, {vr(d,4)}"

def gen_k2(name="gemm2_kernel", D=6, stamps=False):
    a = Asm()
    SA, SW, SXR, SO, SB2 = 4, 8, 12, 16, 20
    sW, sRB, sCB, sN, sJ, sKA, sKW, sLB, sT0, sT1, sT2 = 24,25,26,27,28,29,30,31,32,33,34
    LANE, T0, T1, T2, G, R = 1,2,3,4,5,6
    ST = Stamper(a, stamps, 2, 50, sW)
    al = Alloc(8, 512)
    dv = [al() for _ in range(5)]; av = al(); wb = al(); xo = al()
    XR = al(10, 2); B2 = al(10, 2)
    acc = [[al(4,4) for m in range(4)] for n in range(5)]
    H = [[al(4,4) for m in range(4)] for s in range(D)]
    WF = [al(4,4) for n in range(5)]
    top = al.n
    REG = D*5120
    assert REG >= 20480
    a(f"""
    s_cmp_ge_u32 s2, 256
    s_cbranch_scc1 {name}_end
    """)
    ST.start()
    a(f"""
    s_load_dwordx2 s[40:41], s[0:1], 0
    s_load_dwordx2 s[42:43], s[0:1], 16
    s_load_dwordx4 s[44:47], s[0:1], 48
    s_load_dwordx2 s[48:49], s[0:1], 64
    s_load_dwordx2 s[50:51], s[0:1], 80
    v_lshrrev_b32 v{T0}, 6, v0
    v_and_b32 v{LANE}, 63, v0
    v_readfirstlane_b32 s{sW}, v{T0}
    v_lshrrev_b32 v{G}, 4, v{LANE}
    v_and_b32 v{R}, 15, v{LANE}
    """)
    a(f"""
    s_and_b32 s{sT0}, s2, 3
    s_lshl_b32 s{sRB}, s{sT0}, 3
    s_bfe_u32 s{sT0}, s2, 0x30003
    s_add_u32 s{sRB}, s{sRB}, s{sT0}
    s_bfe_u32 s{sT0}, s2, 0x10002
    s_lshl_b32 s{sCB}, s{sT0}, 2
    s_lshr_b32 s{sT0}, s2, 6
    s_add_u32 s{sCB}, s{sCB}, s{sT0}
    s_mul_i32 s{sLB}, s{sW}, {REG}
    s_cmp_eq_u32 s{sW}, 0
    s_cselect_b32 s{sN}, 20, 18
    """)
    a(f"s_mul_i32 s{sT0}, s{sCB}, 160")
    for p in range(320): assert (p*205)>>11 == p//10
    for i in range(5):
        a(f"v_add_u32 v{T0}, {64*i}, v{LANE}")
        a(f"v_mul_u32_u24 v{T1}, 205, v{T0}")
        a(f"v_lshrrev_b32 v{T1}, 11, v{T1}")
        a(f"v_mul_u32_u24 v{T2}, 1120, v{T1}")
        a(f"v_lshl_add_u32 v{T0}, v{T0}, 4, v{T2}")
        a(f"v_add_u32 v{dv[i]}, s{sT0}, v{T0}")
    a(f"v_lshlrev_b32 v{av}, 4, v{LANE}")
    a(f"v_lshrrev_b32 v{T0}, 2, v{LANE}")
    a(f"v_mul_u32_u24 v{T0}, 160, v{T0}")
    a(f"v_and_b32 v{T1}, 3, v{LANE}")
    a(f"v_lshl_add_u32 v{T0}, v{T1}, 3, v{T0}")
    a(f"v_add_u32 v{wb}, s{sLB}, v{T0}")
    a(f"""
    s_lshl_b32 s{sT1}, s{sRB}, 6
    s_lshl_b32 s{sT2}, s{sW}, 4
    s_add_u32 s{sT1}, s{sT1}, s{sT2}
    v_add_u32 v{T0}, s{sT1}, v{R}
    v_mul_u32_u24 v{T0}, 1280, v{T0}
    v_lshl_add_u32 v{T0}, v{G}, 3, v{T0}
    v_add_u32 v{xo}, s{sT0}, v{T0}
    v_lshlrev_b32 v{T1}, 3, v{G}
    s_waitcnt lgkmcnt(0)
    """)
    a(f"""
    s_mul_i32 s{sT1}, s{sW}, 18
    s_add_u32 s{sT1}, s{sT1}, 2
    s_cmp_eq_u32 s{sW}, 0
    s_cselect_b32 s{sT1}, 0, s{sT1}
    s_mul_i32 s{sT2}, s{sRB}, 74
    s_add_u32 s{sT1}, s{sT1}, s{sT2}
    s_lshl_b32 s{sT1}, s{sT1}, 12
    s_add_u32 s{sT1}, s{sT1}, {HO_OFF}
    s_add_u32 s{SA}, s50, s{sT1}
    s_addc_u32 s{SA+1}, s51, 0
    s_lshl_b32 s{SA+2}, s{sN}, 12
    s_mov_b32 s{SA+3}, 0x00020000
    s_sub_u32 s{sT1}, s{sW}, 1
    s_mul_i32 s{sT1}, s{sT1}, {576*1280}
    s_add_u32 s{SW}, s44, s{sT1}
    s_addc_u32 s{SW+1}, s45, 0
    s_cmp_eq_u32 s{sW}, 0
    s_cselect_b32 s{SW}, s42, s{SW}
    s_cselect_b32 s{SW+1}, s43, s{SW+1}
    s_mul_i32 s{SW+2}, s{sN}, {32*1280}
    s_mov_b32 s{SW+3}, 0x00020000
    s_mov_b32 s{SXR}, s40
    s_mov_b32 s{SXR+1}, s41
    s_mov_b32 s{SXR+2}, {XB}
    s_mov_b32 s{SXR+3}, 0x00020000
    s_mov_b32 s{SO}, s48
    s_mov_b32 s{SO+1}, s49
    s_mov_b32 s{SO+2}, {XB}
    s_mov_b32 s{SO+3}, 0x00020000
    s_mov_b32 s{SB2}, s46
    s_mov_b32 s{SB2+1}, s47
    s_mov_b32 s{SB2+2}, 1280
    s_mov_b32 s{SB2+3}, 0x00020000
    s_mov_b32 s{sKA}, 0
    s_mov_b32 s{sKW}, 0
    """)
    def loads(slot):
        g = []
        for i in range(5):
            g.append([f"s_add_u32 m0, s{sLB}, {slot*5120+i*1024}", "s_nop 0",
                      f"buffer_load_dwordx4 v{dv[i]}, {sr(SW,4)}, s{sKW} offen lds"])
        for m in range(4):
            g.append([f"buffer_load_dwordx4 {vr(H[slot][m],4)}, v{av}, {sr(SA,4)}, s{sKA} offen offset:{m*1024}"])
        g.append([f"s_add_u32 s{sKA}, s{sKA}, 4096", f"s_add_u32 s{sKW}, s{sKW}, {32*1280}"])
        return g
    for s in range(D-1):
        for g in loads(s):
            for l in g: a(l)
    for n in range(5):
        a(f"buffer_load_dwordx2 {vr(XR+2*n,2)}, v{xo}, {sr(SXR,4)}, 0 offen offset:{32*n}")
    for n in range(5):
        a(f"buffer_load_dwordx2 {vr(B2+2*n,2)}, v{T1}, {sr(SB2,4)}, s{sT0} offen offset:{32*n}")
    for n in range(5):
        for m in range(4):
            for r in range(4): a(f"v_mov_b32 v{acc[n][m]+r}, 0")
    a(f"s_mov_b32 s{sJ}, 0")
    ST.stamp(1)
    a.label("Lk2_loop")
    for s in range(D):
        ST.stamp_dyn(10, sJ)
        a(f"s_waitcnt vmcnt({9*(D-2)})")
        ST.stamp_dyn(34, sJ)
        for n in range(5):
            a(f"ds_read_b64_tr_b16 {vr(WF[n],2)}, v{wb} offset:{s*5120+n*32}")
            a(f"ds_read_b64_tr_b16 {vr(WF[n]+2,2)}, v{wb} offset:{s*5120+n*32+2560}")
        fill = loads((s-1) % D)
        mm = []
        for n in range(5):
            for m in range(4):
                ins = mfma(acc[n][m], WF[n], H[s][m])
                if m == 0: ins = f"s_waitcnt lgkmcnt({8-2*n})\n" + ins
                mm.append(ins)
        for l in interleave(mm, fill, start=1, every=2): a(l)
        a(f"s_add_u32 s{sJ}, s{sJ}, 1")
        a(f"s_cmp_ge_u32 s{sJ}, s{sN}")
        if s < D-1: a("s_cbranch_scc1 Lk2_done")
        else: a("s_cbranch_scc0 Lk2_loop")
    a.label("Lk2_done")
    ST.stamp(2)
    a("s_waitcnt vmcnt(0)")
    ST.stamp(3)
    a(f"v_add_u32 v{T0}, s{sLB}, v{av}")
    a("s_nop 4")
    for m in range(4):
        for n in range(5):
            a(f"ds_write_b128 v{T0}, {vr(acc[n][m],4)} offset:{(m*5+n)*1024}")
    a(f"s_mul_i32 s{sT1}, s{sW}, 5120")
    a(f"v_add_u32 v{T0}, s{sT1}, v{av}")
    a(f"v_add_u32 v{T2}, {2*REG}, v{T0}")
    a("s_waitcnt lgkmcnt(0)")
    ST.stamp(4)
    a("s_barrier")
    ST.stamp(5)
    P = [[H[src][0] + 0 for n in range(5)] for src in range(4)]
    base = H[0][0]
    P = [[base + (src*5+n)*4 for n in range(5)] for src in range(4)]
    for n in range(5):
        for src in range(4):
            ad = T0 if src < 2 else T2
            a(f"ds_read_b128 {vr(P[src][n],4)}, v{ad} offset:{(src&1)*REG+n*1024}")
        if n == 2: pass
    L2E = f32(-math.log2(math.e))
    t = acc[0][0]
    for n in range(5):
        a(f"s_waitcnt lgkmcnt({min(15, 4*(4-n))})")
        S, Y1, Y2, Y3 = P[0][n], P[1][n], P[2][n], P[3][n]
        for r in range(4): a(f"v_add_f32 v{Y1+r}, v{Y1+r}, v{Y2+r}")
        for r in range(4): a(f"v_add_f32 v{Y1+r}, v{Y1+r}, v{Y3+r}")
        def rnd(x, tmp):
            a(f"v_cvt_pk_bf16_f32 v{tmp}, v{x}, v{x+1}")
            a(f"v_cvt_pk_bf16_f32 v{tmp+1}, v{x+2}, v{x+3}")
            unp(x, tmp)
        def unp(x, p):
            a(f"v_lshlrev_b32 v{x}, 16, v{p}")
            a(f"v_and_b32 v{x+1}, 0xffff0000, v{p}")
            a(f"v_lshlrev_b32 v{x+2}, 16, v{p+1}")
            a(f"v_and_b32 v{x+3}, 0xffff0000, v{p+1}")
        rnd(Y1, t); rnd(S, t+2)
        unp(Y2, B2+2*n)
        for r in range(4): a(f"v_add_f32 v{Y1+r}, v{Y1+r}, v{Y2+r}")
        rnd(Y1, t)
        for r in range(4): a(f"v_mul_f32 v{Y2+r}, {L2E}, v{Y1+r}")
        for r in range(4): a(f"v_exp_f32 v{Y2+r}, v{Y2+r}")
        for r in range(4): a(f"v_add_f32 v{Y2+r}, 1.0, v{Y2+r}")
        for r in range(4): a(f"v_rcp_f32 v{Y2+r}, v{Y2+r}")
        for r in range(4): a(f"v_mul_f32 v{Y1+r}, v{Y1+r}, v{Y2+r}")
        rnd(Y1, t)
        for r in range(4): a(f"v_mul_f32 v{Y1+r}, v{Y1+r}, v{S+r}")
        rnd(Y1, t)
        unp(Y2, XR+2*n)
        for r in range(4): a(f"v_add_f32 v{Y1+r}, v{Y1+r}, v{Y2+r}")
        a(f"v_cvt_pk_bf16_f32 v{S}, v{Y1}, v{Y1+1}")
        a(f"v_cvt_pk_bf16_f32 v{S+1}, v{Y1+2}, v{Y1+3}")
        a(f"buffer_store_dwordx2 {vr(S,2)}, v{xo}, {sr(SO,4)}, 0 offen offset:{32*n}")
    ST.stamp(6)
    ST.finish(7)
    a.label(f"{name}_end")
    a("s_endpgm")
    assert top <= 254
    if stamps: top = 256
    return khead(name) + a.text(), kd(name, top, 80), f"; @launch kernel={name} grid=(256,1,1) block=(256,1,1) lds={4*REG}"
```

```python
from asmlib import *
import math, sys
NAME = "recurrent_scan__sliding_local_dilated__dense_activation_gelu__prompt"
XB = 2048*640*2
HO_SZ = 33*74*4096
WT_OFF, WT_SZ = 0xB00000, 8*74*5*1024
FL_OFF, FL_SZ = 0xF00000, 0x10000
ST_OFF = 0x4000
BIG = 0x7ff00000
RS = 592
L_TST, L_CS, L_A = 147456, 86016, 98304
LDS_TOTAL = 163840
FROWS = 158

SX, SW, SHO, SPF, SWT, SFL, SDBG, STMP = 4, 8, 16, 20, 24, 28, 32, 36
sXO = 12
sWO = 15
P_X, P_WQ, P_WO, P_W1, P_B1, P_W2, P_B2, P_OUT, P_DBG, P_WS = 40, 42, 44, 48, 50, 52, 54, 56, 58, 60
(sW, sRB, sCB, sI, sKX, sKW, sTM, sFILL, sDELTA, sSLOT, sW1K, sT0, sT1, sT2, sT3, sMH) = range(62, 78)
sNT = 78; sNON = 82; sMSK = 84; sR2, sC2 = 86, 87; sK = 88; sSP = 98; sN2 = 99
sWM = 100
sFW, sWB = 3, 47
LANE, G, R, T0, T1, T2, T3, VST, VL, VL2 = 1, 2, 3, 4, 5, 6, 7, 8, 9, 10
WREG = 136

def mfma(d, a_, b_): return f"v_mfma_f32_16x16x32_bf16 {vr(d,4)}, {vr(a_,4)}, {vr(b_,4)}, {vr(d,4)}"
def chunks(l, n): return [l[i:i+n] for i in range(0, len(l), n)]
def merge(groups, n): return [sum(g, []) for g in chunks(groups, n)]
def srd(a, d, p, size, off=None):
    if off is None: a(f"s_mov_b32 s{d}, s{p}\ns_mov_b32 s{d+1}, s{p+1}")
    else: a(f"s_add_u32 s{d}, s{p}, {off}\ns_addc_u32 s{d+1}, s{p+1}, 0")
    a(f"s_mov_b32 s{d+2}, {size}\ns_mov_b32 s{d+3}, 0x00020000")

class St:
    def __init__(s, a, on): s.a, s.on = a, on
    def start(s):
        if s.on: s.a(f"s_memtime s[0:1]\nv_mov_b32 v{VST}, 0\ns_waitcnt lgkmcnt(0)\nv_writelane_b32 v{VST}, s0, 0\ns_memrealtime s[0:1]\ns_waitcnt lgkmcnt(0)\nv_writelane_b32 v{VST}, s0, 62")
    def __call__(s, i):
        if s.on: s.a(f"s_memtime s[0:1]\ns_waitcnt lgkmcnt(0)\nv_writelane_b32 v{VST}, s0, {i}")
    def dyn(s, base):
        if s.on and (base == 30 or 'lst' in EXP): s.a(f"s_memtime s[0:1]\ns_add_u32 m0, s{sI}, {base}\ns_waitcnt lgkmcnt(0)\nv_writelane_b32 v{VST}, s0, m0")
    def finish(s, i):
        if not s.on: return
        s.a(f"""
        s_waitcnt vmcnt(0)
        s_memtime s[0:1]
        s_waitcnt lgkmcnt(0)
        v_writelane_b32 v{VST}, s0, {i}
        s_memrealtime s[0:1]
        s_waitcnt lgkmcnt(0)
        v_writelane_b32 v{VST}, s0, 63
        s_lshl_b32 s3, s2, 3
        s_add_u32 s3, s3, s{sW}
        s_lshl_b32 s3, s3, 8
        s_add_u32 s3, s3, {STAMP_OFF}
        s_add_u32 s{STMP}, s{P_WS}, s3
        s_addc_u32 s{STMP+1}, s{P_WS+1}, 0
        s_mov_b32 s{STMP+2}, 256
        s_mov_b32 s{STMP+3}, 0x00020000
        v_lshlrev_b32 v{T0}, 2, v{LANE}
        buffer_store_dword v{VST}, v{T0}, {sr(STMP,4)}, 0 offen
        """)
class Cfg: pass
EXP = set()
STF = 'sc1'

def dma_x(c, a, u):
    g = [f"s_add_u32 m0, s{sFILL}, {u*8192}", f"s_add_u32 s{sTM}, s{sXO+u}, s{sKX}", f"buffer_load_dwordx4 v{c.VX}, {sr(SX,4)}, s{sTM} offen lds"]
    if u == 2:
        lab = a.uid("Lsk")
        g = [f"s_cmp_ge_u32 s{sW}, {c.nxm}", f"s_cbranch_scc1 {lab}"] + g + [lab + ":"]
    return g
def dma_w(c, a, u):
    return [f"s_add_u32 m0, s{sFW}, {u*16*c.wrow}", f"s_add_u32 s{sTM}, s{sKW}, {u*16*c.wrowb}", f"s_mov_b64 exec, {sr(sWM,2)}",
            f"buffer_load_dwordx4 v{c.VW}, {sr(SW,4)}, s{sTM} offen lds", "s_mov_b64 exec, -1"]
def dmaA(c, a, loop=False):
    if loop and 'nodma' in EXP: return []
    return [dma_x(c,a,0), dma_x(c,a,1), dma_x(c,a,2), dma_w(c,a,0)]
def dmaB(c, a, loop=False):
    if loop and 'nodma' in EXP: return []
    return [dma_w(c,a,1), dma_w(c,a,2), dma_w(c,a,3)]

def reads(c, st, s):
    r = []
    if 'nord' in EXP: return [['s_nop 0']]
    for i in range(c.nM):
        ins = f"ds_read_b128 {vr(c.X[st][i],4)}, v{c.xb[s]} offset:{i*2048}"
        if (not c.nh) and i == c.nM-1: r.append([f"s_mov_b64 exec, {sr(sMSK,2)}", ins, "s_mov_b64 exec, -1"])
        else: r.append([ins])
    if c.nh: r.append([f"s_mov_b64 exec, {sr(sMSK,2)}", f"ds_read_b128 {vr(c.XH[st],4)}, v{c.hb[s]}", "s_mov_b64 exec, -1"])
    for f in range(c.nF):
        r.append([f"ds_read_b64_tr_b16 {vr(c.W[st][f],2)}, v{c.wb[f]} offset:{s*32*c.wrow}"])
        r.append([f"ds_read_b64_tr_b16 {vr(c.W[st][f]+2,2)}, v{c.wb[f]} offset:{s*32*c.wrow+8*c.wrow}"])
    return r
def mfmas(c, st):
    m = []
    for f in range(c.nF):
        for i in range(c.nM): m.append(mfma(c.acc[f][i], c.W[st][f], c.X[st][i]))
        if f < c.nh: m.append(mfma(c.acch[f], c.W[st][f], c.XH[st]))
    return m
def spread(main, items):
    out = []
    for i, m in enumerate(main):
        out.append(m)
        for p, g in items:
            if p == i or (i == len(main)-1 and p > i): out.extend(g)
    return out
def even(groups, n, lo=1):
    k = len(groups)
    return [(lo + (j*(n-lo))//k, g) for j, g in enumerate(groups)] if k else []

def nonce_get(a, vN, vPS):
    l0, l1, l2, l3 = a.uid("Lno"), a.uid("Lno"), a.uid("Lno"), a.uid("Lno")
    assert vN == vPS + 2 and vPS % 2 == 0
    a(f"s_mov_b32 s{sSP}, 0")
    a.label(l0)
    a(f"""
    v_readfirstlane_b32 s{sNON}, v{vN}
    v_readfirstlane_b32 s{sNON+1}, v{vN+1}
    s_add_u32 s{sSP}, s{sSP}, 1
    s_cmp_gt_u32 s{sSP}, 100000
    s_cbranch_scc1 {l1}
    s_cmp_lg_u32 s{sNON}, 0
    s_cbranch_scc1 {l1}
    v_mov_b32 v{T0}, 0
    buffer_load_dwordx2 {vr(vN,2)}, v{T0}, {sr(SDBG,4)}, 0 offen sc1
    s_waitcnt vmcnt(0)
    s_branch {l0}
    """)
    a.label(l1)
    a(f"""
    s_cmp_lg_u32 s{sW}, 0
    s_cbranch_scc1 {l2}
    s_lshl_b32 s{sT1}, s2, 3
    v_mov_b32 v{T0}, 0x1000
    s_mov_b64 exec, 1
    buffer_store_dwordx2 {vr(vN,2)}, v{T0}, {sr(SFL,4)}, s{sT1} offen sc1
    s_mov_b64 exec, -1
    """)
    a.label(l2)
    a(f"""
    s_sub_u32 s{sT1}, s{sW}, 3
    s_cmp_gt_u32 s{sT1}, 1
    s_cbranch_scc1 {l3}
    """)
    stat_row(a)
    a(f"""
    s_lshl_b32 s{sT0}, s{sT0}, 4
    s_add_u32 s{sT0}, s{sT0}, {ST_OFF}
    v_lshlrev_b32 v{T0}, 4, v{G}
    s_mov_b32 exec_lo, 0x00010001
    s_mov_b32 exec_hi, 0x00010001
    buffer_store_dwordx4 {vr(vPS,4)}, v{T0}, {sr(SFL,4)}, s{sT0} offen sc1
    s_mov_b64 exec, -1
    """)
    a.label(l3)
def stat_row(a):
    a(f"""
    s_and_b32 s{sT0}, s2, 1
    s_lshl_b32 s{sT0}, s{sT0}, 10
    s_bfe_u32 s{sT2}, s2, 0x20001
    s_lshl_b32 s{sT2}, s{sT2}, 8
    s_add_u32 s{sT0}, s{sT0}, s{sT2}
    s_and_b32 s{sT2}, s2, 0xf8
    s_add_u32 s{sT0}, s{sT0}, s{sT2}
    s_sub_u32 s{sT2}, s{sW}, 3
    s_lshl_b32 s{sT2}, s{sT2}, 2
    s_add_u32 s{sT0}, s{sT0}, s{sT2}
    """)
def poll(a, loads, cmps, preloaded):
    l0, l1, l2 = a.uid("Lpo"), a.uid("Lpo"), a.uid("Lpo")
    a(f"s_mov_b32 s{sSP}, 0")
    if preloaded: a(f"s_branch {l2}")
    a.label(l0)
    for l in loads: a(l)
    a("s_waitcnt vmcnt(0)")
    a.label(l2)
    for k, v in enumerate(cmps):
        if k == 0: a(f"v_cmp_eq_u64 vcc, {sr(sNON,2)}, {vr(v,2)}")
        else:
            a(f"v_cmp_eq_u64 {sr(sT1,2)}, {sr(sNON,2)}, {vr(v,2)}\ns_nop 0\ns_and_b64 vcc, vcc, {sr(sT1,2)}")
    a(f"""
    s_add_u32 s{sSP}, s{sSP}, 1
    s_cmp_gt_u32 s{sSP}, 100000
    s_cbranch_scc1 {l1}
    s_cmp_eq_u64 vcc, -1
    s_cbranch_scc0 {l0}
    """)
    a.label(l1)
assert sT2 % 2 == 1
sT2P = None

def wfrag(phi):
    t, n = divmod(phi, 5)
    va, off = (VL, f" offset:{1024*n}") if n < 4 else (VL2, "")
    pre = [f"s_mul_i32 s{sTM}, s{sK+t}, 5120"]
    if phi < 30:
        return pre + [f"buffer_load_dwordx4 {vr(WREG+4*phi,4)}, v{va}, {sr(SWT,4)}, s{sTM} offen{off} sc1"]
    base, o = (sFILL, (phi-30)*1024) if phi < 38 else (sFW, (phi-38)*1024)
    return [f"s_add_u32 m0, s{base}, {o}"] + pre + [f"s_add_u32 s{sTM}, s{sTM}, {1024*n}", f"buffer_load_dwordx4 v{VL}, {sr(SWT,4)}, s{sTM} offen sc1 lds"]
def p2_ldsbases():
    return [f"s_lshl_b32 s{sFILL}, s{sW}, 13", f"s_add_u32 s{sFILL}, s{sFILL}, {L_A}", f"s_mul_i32 s{sFW}, s{sW}, 12288"]

def iteration(a, c, S, kind, extra1=(), extra2=(), pre2=None):
    bases = list(c.xb) + (list(c.hb) if c.nh else []) + list(c.wb)
    a("s_waitcnt lgkmcnt(0)")
    M = mfmas(c, 0); n = len(M)
    rb = merge(reads(c, 1, 1), 2)
    items = [(k, g) for k, g in enumerate(rb)]
    if kind != 9:
        salu = [f"s_add_u32 s{sT1}, s{sSLOT}, {c.stg}", f"s_cmp_eq_u32 s{sT1}, {3*c.stg}", f"s_cselect_b32 s{sT1}, 0, s{sT1}", f"s_sub_u32 s{sDELTA}, s{sT1}, s{sSLOT}"]
        items.append((0, salu))
        up = chunks([f"v_add_u32 v{b}, s{sDELTA}, v{b}" for b in bases], 2)
        for k, g in enumerate(up): items.append((len(rb) + k, g))
    if kind in ('loop', 7): items += even(dmaB(c, a, True), n-1, 2)
    items += even(list(extra1), n, 1)
    if kind == 'loop':
        items.append((n-1, [f"s_add_u32 s{sFILL}, s{sSLOT}, s{sW1K}", f"s_add_u32 s{sFW}, s{sSLOT}, s{sWB}",
                            f"s_add_u32 s{sKX}, s{sKX}, 128", f"s_add_u32 s{sKW}, s{sKW}, {64*c.wrowb}"]))
    if kind != 9: items.append((n-1, [f"s_mov_b32 s{sSLOT}, s{sT1}"]))
    for l in spread(M, items): a(l)
    S.dyn(10)
    if kind == 'loop' or kind == 7: a(f"s_waitcnt vmcnt(6) lgkmcnt(0)")
    elif kind == 8: a(f"s_waitcnt vmcnt({c.y8}) lgkmcnt(0)")
    else: a("s_waitcnt lgkmcnt(0)")
    S.dyn(20)
    a("s_barrier")
    S.dyn(30)
    if pre2: pre2()
    M = mfmas(c, 1)
    items = []
    if kind != 9: items = [(k, g) for k, g in enumerate(merge(reads(c, 0, 0), 2))]
    if kind == 'loop': items += even(dmaA(c, a, True), n, 2)
    items += even(list(extra2), n, 1)
    for l in spread(M, items): a(l)

def main_loop(a, c, S, tag, rec_loads):
    a.label(f"Lloop_{tag}")
    iteration(a, c, S, 'loop')
    l2, l5 = a.uid("Ls"), a.uid("Ls")
    a(f"s_cmp_lg_u32 s{sI}, 2\ns_cbranch_scc1 {l2}")
    nonce_get(a, c.VN, c.VPS)
    a.label(l2)
    tf = f"buffer_load_dwordx2 {vr(c.VN,2)}, v{c.VTF}, {sr(SFL,4)}, 0 offen sc1"
    a(f"s_cmp_lg_u32 s{sI}, 5\ns_cbranch_scc1 {l5}")
    a(tf)
    a.label(l5)
    a(f"s_add_u32 s{sI}, s{sI}, 1\ns_cmp_lt_u32 s{sI}, 7\ns_cbranch_scc1 Lloop_{tag}")
    early = [wfrag(p) for p in c.early]
    e = chunks(early, (len(early)+4)//5)
    def pre7():
        poll(a, [tf], [c.VN], True)
        for l in p2_ldsbases(): a(l)
    iteration(a, c, S, 7, extra2=e[0], pre2=pre7)
    a(f"s_add_u32 s{sI}, s{sI}, 1")
    c.y8 = len(e[0]) + len(e[1]) + len(rec_loads)
    iteration(a, c, S, 8, extra1=[[l] for l in rec_loads] + e[1], extra2=e[2])
    a(f"s_add_u32 s{sI}, s{sI}, 1")
    iteration(a, c, S, 9, extra1=e[3], extra2=e[4])
    c.yrec = len(e[1]) + len(e[2]) + len(e[3]) + len(e[4])
    S(4)

def rho_local(a, d, t):
    a(f"v_bfe_u32 v{d}, v{LANE}, 2, 3\nv_lshrrev_b32 v{t}, 5, v{LANE}\nv_lshl_add_u32 v{d}, v{t}, 4, v{d}")

def side_work(a, tmp, younger, vPS):
    lab, ls = a.uid("Ltw"), a.uid("Ltw")
    a(f"s_cmp_ge_u32 s{sW}, 3\ns_cbranch_scc1 {ls}")
    a(f"s_cmp_ge_u32 s{sK}, 740\ns_cbranch_scc1 {lab}")
    a(f"""
    v_lshrrev_b32 v{T0}, 2, v{LANE}
    v_lshlrev_b32 v{T0}, 7, v{T0}
    v_and_b32 v{T1}, 3, v{LANE}
    v_lshl_add_u32 v{T0}, v{T1}, 3, v{T0}
    s_lshl_b32 s{sT0}, s{sW}, 12
    s_add_u32 s{sT0}, s{sT0}, {L_TST}
    v_add_u32 v{T0}, s{sT0}, v{T0}
    s_waitcnt vmcnt({younger})
    """)
    for t in range(4):
        a(f"ds_read_b64_tr_b16 {vr(tmp+4*t,2)}, v{T0} offset:{32*t}")
        a(f"ds_read_b64_tr_b16 {vr(tmp+4*t+2,2)}, v{T0} offset:{32*t+2048}")
    for t in range(4):
        a(f"""
        s_lshl_b32 s{sT0}, s{sK+2}, 2
        s_add_u32 s{sT0}, s{sT0}, {t}
        s_mul_i32 s{sT1}, s{sT0}, 52
        s_lshr_b32 s{sT1}, s{sT1}, 8
        s_mul_i32 s{sT1}, s{sT1}, 365
        s_add_u32 s{sT0}, s{sT0}, s{sT1}
        s_mul_i32 s{sT1}, s{sK+1}, 5
        s_add_u32 s{sT0}, s{sT0}, s{sT1}
        s_lshl_b32 s{sT0}, s{sT0}, 10
        s_waitcnt lgkmcnt({6-2*t})
        buffer_store_dwordx4 {vr(tmp+4*t,4)}, v{VL}, {sr(SWT,4)}, s{sT0} offen sc1
        """)
    a(f"s_branch {lab}")
    a.label(ls)
    a(f"s_cmp_ge_u32 s{sW}, 5\ns_cbranch_scc1 {lab}")
    s, q = vPS, vPS+1
    a(f"v_mov_b32 v{s}, 0\nv_mov_b32 v{q}, 0\nv_mov_b32 v{T0}, 0x3f803f80\ns_waitcnt vmcnt({younger})")
    for j in range(20):
        a(f"v_dot2c_f32_bf16 v{s}, v{tmp+j}, v{T0}\nv_dot2c_f32_bf16 v{q}, v{tmp+j}, v{tmp+j}")
    a("s_nop 2")
    for sh in (8, 4, 2, 1):
        a(f"v_add_f32_dpp v{s}, v{s}, v{s} row_ror:{sh} row_mask:0xf bank_mask:0xf")
        a(f"v_add_f32_dpp v{q}, v{q}, v{q} row_ror:{sh} row_mask:0xf bank_mask:0xf")
        a("s_nop 0")
    a(f"""
    v_mul_f32 v{s}, {f32(1/640)}, v{s}
    v_mul_f32 v{q}, {f32(1/640)}, v{q}
    v_fma_f32 v{q}, -v{s}, v{s}, v{q}
    v_max_f32 v{q}, 0, v{q}
    v_cvt_pk_bf16_f32 v{T0}, v{s}, v{q}
    v_lshlrev_b32 v{T1}, 16, v{T0}
    v_and_b32 v{q}, 0xffff0000, v{T0}
    v_add_f32 v{q}, {f32(1e-5)}, v{q}
    v_cvt_pk_bf16_f32 v{q}, v{q}, v{q}
    v_and_b32 v{q}, 0xffff0000, v{q}
    v_sqrt_f32 v{q}, v{q}
    s_nop 0
    v_cvt_pk_bf16_f32 v{q}, v{q}, v{q}
    v_and_b32 v{q}, 0xffff0000, v{q}
    v_rcp_f32 v{s}, v{q}
    s_nop 0
    v_mul_f32 v{q}, v{T1}, v{s}
    v_sub_f32 v{q}, 0, v{q}
    """)
    a.label(lab)
for N in range(40): assert (N*52)>>8 == N//5

def p2_setup(a, VTF):
    a(f"""
    s_and_b32 s{sT0}, s2, 7
    s_lshl_b32 s{sR2}, s{sT0}, 2
    s_bfe_u32 s{sT1}, s2, 0x20003
    s_add_u32 s{sR2}, s{sR2}, s{sT1}
    s_lshr_b32 s{sC2}, s2, 5
    s_cmp_lt_u32 s{sW}, 2
    s_cselect_b32 s{sN2}, 10, 9
    s_lshl_b32 s{sT1}, s{sT1}, 1
    s_add_u32 s{sT1}, s{sT1}, s{sC2}
    s_cmp_ge_u32 s{sT1}, s{sN2}
    s_cselect_b32 s{sT2}, s{sN2}, 0
    s_sub_u32 s{sK}, s{sT1}, s{sT2}
    """)
    for t in range(1, 10):
        a(f"s_add_u32 s{sK+t}, s{sK+t-1}, 1\ns_cmp_eq_u32 s{sK+t}, s{sN2}\ns_cselect_b32 s{sK+t}, 0, s{sK+t}")
    a(f"s_cmp_lt_u32 s{sW}, 2\ns_cselect_b32 s{sK+9}, s{sK+9}, 0x10000")
    a(f"""
    s_mul_i32 s{sT3}, s{sW}, 9
    s_min_u32 s{sT2}, s{sW}, 2
    s_add_u32 s{sT3}, s{sT3}, s{sT2}
    v_lshrrev_b32 v{T0}, 1, v{LANE}
    s_sub_u32 s{sT2}, s{sN2}, 1
    v_min_u32 v{T0}, s{sT2}, v{T0}
    v_add_u32 v{T0}, s{sT3}, v{T0}
    v_mul_u32_u24 v{T0}, 10, v{T0}
    s_mul_i32 s{sT2}, s{sC2}, 5
    s_lshr_b32 s{sT2}, s{sT2}, 2
    v_and_b32 v{T1}, 1, v{LANE}
    v_add3_u32 v{T0}, v{T0}, v{T1}, s{sT2}
    v_mul_u32_u24 v{T0}, 21846, v{T0}
    v_lshrrev_b32 v{T0}, 16, v{T0}
    v_lshlrev_b32 v{T0}, 3, v{T0}
    v_add_u32 v{VTF}, 0x1000, v{T0}
    s_mul_i32 s{sT2}, s{sC2}, 74
    s_add_u32 s{sT2}, s{sT2}, s{sT3}
    s_mul_i32 s{sT2}, s{sT2}, 5120
    s_add_u32 s{sT2}, s{sT2}, {WT_OFF}
    s_add_u32 s{SWT}, s{P_WS}, s{sT2}
    s_addc_u32 s{SWT+1}, s{P_WS+1}, 0
    s_mul_i32 s{SWT+2}, s{sN2}, 5120
    s_mul_i32 s{sT2}, s{sR2}, 74
    s_add_u32 s{sT2}, s{sT2}, s{sT3}
    s_lshl_b32 s{sT2}, s{sT2}, 12
    s_add_u32 s{SPF}, s{P_WS}, s{sT2}
    s_addc_u32 s{SPF+1}, s{P_WS+1}, 0
    s_lshl_b32 s{SPF+2}, s{sN2}, 12
    s_mov_b32 s{SPF+3}, 0x00020000
    """)
for u in range(740): assert (u*21846)>>16 == u//3

class Inter:
    def __init__(s, a, groups, every): s.a, s.g, s.e, s.n = a, list(groups), every, 0
    def __call__(s, txt):
        for l in txt.strip("\n").split("\n"):
            if not l.strip(): continue
            s.a(l); s.n += 1
            if s.n % s.e == 0 and s.g:
                for x in s.g.pop(0): s.a(x)
    def flush(s, keep=0):
        while len(s.g) > keep:
            for x in s.g.pop(0): s.a(x)

def gen(stamps=False, PF=3, pf_flags="", qevery=22, fevery=13, exp="", stf="sc1"):
    global EXP, STF
    EXP = set(exp.split()); STF = stf
    a = Asm(); S = St(a, stamps)
    name = NAME + "_kernel"
    SIDE = 232
    a(f"s_cmp_ge_u32 s2, 256\ns_cbranch_scc1 Lend")
    a(f"s_load_dwordx16 s[40:55], s[0:1], 0\ns_load_dwordx4 s[56:59], s[0:1], 64\ns_load_dwordx2 s[60:61], s[0:1], 80")
    a(f"""
    v_lshrrev_b32 v{T0}, 6, v0
    v_and_b32 v{LANE}, 63, v0
    v_readfirstlane_b32 s{sW}, v{T0}
    v_lshrrev_b32 v{G}, 4, v{LANE}
    v_and_b32 v{R}, 15, v{LANE}
    v_lshlrev_b32 v{VL}, 4, v{LANE}
    v_add_u32 v{VL2}, 4096, v{VL}
    s_lshl_b32 s{sW1K}, s{sW}, 10
    s_mov_b32 s{sI}, 0
    v_lshrrev_b32 v{T0}, 3, v{LANE}
    v_mul_u32_u24 v{T0}, 1280, v{T0}
    s_lshl_b32 s{sT0}, s{sW}, 2
    v_add_u32 v{T1}, s{sT0}, v{G}
    v_xor_b32 v{T1}, v{T1}, v{LANE}
    v_and_b32 v{T1}, 7, v{T1}
    v_lshl_add_u32 v11, v{T1}, 4, v{T0}
    v_and_b32 v{T1}, 7, v{LANE}
    v_lshl_add_u32 v{T2}, v{T1}, 4, v{T0}
    s_and_b32 s{sT0}, s{sW}, 1
    s_lshl_b32 s{sT0}, s{sT0}, 1
    s_and_b32 s{sT1}, s{sW}, 2
    s_lshl_b32 s{sT1}, s{sT1}, 2
    s_add_u32 s{sT0}, s{sT0}, s{sT1}
    s_and_b32 s{sT1}, s{sW}, 4
    s_add_u32 s{sWO}, s{sT0}, s{sT1}
    s_mul_i32 s{sK}, s2, 3
    s_add_u32 s{sK}, s{sK}, s{sW}
    s_mul_i32 s{sK+1}, s{sK}, 6554
    s_lshr_b32 s{sK+1}, s{sK+1}, 16
    s_mul_i32 s{sT0}, s{sK+1}, 10
    s_sub_u32 s{sK+2}, s{sK}, s{sT0}
    s_waitcnt lgkmcnt(0)
    """)
    for u in range(1001): assert (u*6554)>>16 == u//10
    S.start()
    srd(a, SX, P_X, XB)
    lt, lst, lpf, ld = a.uid("Lt"), a.uid("Lt"), a.uid("Lt"), a.uid("Lt")
    a(f"s_cmp_ge_u32 s{sW}, 5\ns_cbranch_scc1 {lpf}\ns_cmp_ge_u32 s{sW}, 3\ns_cbranch_scc1 {lst}")
    a(f"s_cmp_ge_u32 s{sK}, 740\ns_cbranch_scc1 {lt}")
    a(f"""
    s_mov_b32 s{STMP+2}, {1728*1280}
    s_cmp_lt_u32 s{sK+1}, 20
    s_cselect_b32 s{STMP}, s{P_WO}, s{P_W2}
    s_cselect_b32 s{STMP+1}, s{P_WO+1}, s{P_W2+1}
    s_cselect_b32 s{STMP+2}, {640*1280}, s{STMP+2}
    s_mov_b32 s{STMP+3}, 0x00020000
    s_cselect_b32 s{sT0}, 0, 20
    s_sub_u32 s{sT0}, s{sK+1}, s{sT0}
    s_mul_i32 s{sT0}, s{sT0}, {32*1280}
    s_lshl_b32 s{sT1}, s{sK+2}, 7
    s_add_u32 s{sT0}, s{sT0}, s{sT1}
    s_lshl_b32 s{sT1}, s{sW}, 12
    """)
    for q in range(4):
        a(f"s_add_u32 m0, s{sT1}, {L_TST+1024*q}\ns_add_u32 s{sT2}, s{sT0}, {q*8*1280}")
        a(f"buffer_load_dwordx4 v{T2}, {sr(STMP,4)}, s{sT2} offen lds")
    a.label(lt)
    a(f"s_or_b32 s{sT0}, s2, s{sW}\ns_cmp_lg_u32 s{sT0}, 0\ns_cbranch_scc1 {ld}")
    srd(a, SDBG, P_DBG, 256)
    a(f"""
    s_memrealtime {sr(sNON,2)}
    s_waitcnt lgkmcnt(0)
    s_or_b32 s{sNON}, s{sNON}, 1
    v_mov_b32 v{T0}, s{sNON}
    v_mov_b32 v{T1}, s{sNON+1}
    v_mov_b32 v{T2}, 0
    s_mov_b64 exec, 1
    buffer_store_dwordx2 {vr(T0,2)}, v{T2}, {sr(SDBG,4)}, 0 offen sc1
    s_mov_b64 exec, -1
    s_branch {ld}
    """)
    a.label(lst)
    stat_row(a)
    a(f"s_mul_i32 s{sT0}, s{sT0}, 1280\nv_mul_u32_u24 v{T0}, 1280, v{G}\nv_lshl_add_u32 v{T0}, v{R}, 4, v{T0}")
    for i in range(5): a(f"buffer_load_dwordx4 {vr(SIDE+4*i,4)}, v{T0}, {sr(SX,4)}, s{sT0} offen offset:{256*i}")
    a(f"s_branch {ld}")
    a.label(lpf)
    if PF:
        lx, lq = a.uid("Lpf"), a.uid("Lpf")
        a(f"""
        s_lshr_b32 s{sT2}, s2, 3
        s_and_b32 s{sT0}, s2, 1
        s_bfe_u32 s{sT1}, s2, 0x20001
        s_cmp_ge_u32 s{sW}, 6
        s_cbranch_scc1 {lq}
        s_mul_i32 s{sT0}, s{sT0}, 1008
        s_mul_i32 s{sT2}, s{sT2}, 35
        s_add_u32 s{sT0}, s{sT0}, s{sT2}
        v_min_u32 v{T0}, 34, v{LANE}
        v_add_u32 v{T0}, s{sT0}, v{T0}
        v_mul_u32_u24 v{T0}, 1280, v{T0}
        """)
        for s_ in range(PF): a(f"buffer_load_dword v255, v{T0}, {sr(SX,4)}, 0 offen offset:{128*s_} {pf_flags}")
        a(f"s_branch {ld}")
        a.label(lq)
        a(f"""
        v_min_u32 v{T0}, {18*PF-1}, v{LANE}
        v_mul_u32_u24 v{T1}, 57, v{T0}
        v_lshrrev_b32 v{T1}, 9, v{T1}
        v_mul_u32_u24 v{T3}, 9, v{T1}
        v_sub_u32 v{T0}, v{T0}, v{T3}
        v_lshrrev_b32 v{T3}, 1, v{T1}
        v_mul_u32_u24 v{T3}, 62, v{T3}
        v_add_u32 v{T1}, v{T1}, v{T3}
        s_lshl_b32 s{sT2}, s{sT2}, 1
        v_add_u32 v{T1}, s{sT2}, v{T1}
        s_cmp_eq_u32 s{sW}, 7
        s_cbranch_scc1 {lx}
        v_mul_u32_u24 v{T1}, 3840, v{T1}
        v_mul_u32_u24 v{T3}, 43, v{T0}
        v_lshrrev_b32 v{T3}, 7, v{T3}
        v_mul_u32_u24 v{T3}, 896, v{T3}
        v_lshl_add_u32 v{T0}, v{T0}, 7, v{T3}
        v_add_u32 v{T0}, v{T0}, v{T1}
        s_mul_i32 s{sT1}, s{sT1}, 320
        s_and_b32 s{sT1}, s{sT1}, 0xffffff80
        """)
        srd(a, SPF, P_WQ, 640*3840)
        a(f"buffer_load_dword v255, v{T0}, {sr(SPF,4)}, s{sT1} offen {pf_flags}")
        a(f"s_branch {ld}")
        a.label(lx)
        a(f"v_mul_u32_u24 v{T1}, 3456, v{T1}\nv_lshl_add_u32 v{T0}, v{T0}, 7, v{T1}\ns_mul_i32 s{sT1}, s{sT1}, 768")
        srd(a, SPF, P_W1, 640*3456)
        a(f"buffer_load_dword v255, v{T0}, {sr(SPF,4)}, s{sT1} offen {pf_flags}")
        for l in range(54): assert (l*57)>>9 == l//9
    a.label(ld)
    a(f"""
    s_and_b32 s{sT0}, s2, 1
    s_bfe_u32 s{sT1}, s2, 0x20001
    s_lshr_b32 s{sT2}, s2, 3
    s_cmp_ge_u32 s{sT2}, 16
    s_cbranch_scc1 Lffn
    """)
    def late_srds():
        srd(a, SHO, P_WS, HO_SZ); srd(a, SWT, P_WS, WT_SZ, WT_OFF); srd(a, SFL, P_WS, FL_SZ, FL_OFF); srd(a, SDBG, P_DBG, 256)
    def set_stage(c, st):
        slot = ((st+1) % 3) * c.stg
        a(f"s_add_u32 s{sFILL}, s{sW1K}, {slot}\ns_add_u32 s{sFW}, s{sWB}, {slot}\ns_mov_b32 s{sKX}, {128*st}\ns_add_u32 s{sKW}, s{sWO}, {64*st*c.wrowb}")
    def emit(groups):
        for g in groups:
            for l in g: a(l)
    def pre_loop(c, setup):
        set_stage(c, 0); emit(dmaA(c, a) + dmaB(c, a))
        S(1)
        late_srds(); setup()
        a("s_barrier")
        set_stage(c, 1); emit(dmaA(c, a) + dmaB(c, a))
        side_work(a, SIDE, 12, c.VPS)
        p2_setup(a, c.VTF)
        a(f"s_waitcnt vmcnt(6)")
        S(2)
        a("s_barrier")
        S(3)
        emit(reads(c, 0, 0))
        a(f"v_mov_b32 v{T0}, 0")
        a(f"buffer_load_dwordx2 {vr(c.VN,2)}, v{T0}, {sr(SDBG,4)}, 0 offen sc1")
        set_stage(c, 2); emit(dmaA(c, a))
        a(f"s_mov_b32 s{sSLOT}, {c.stg}")
    def alloc_common(c):
        al = Alloc(11)
        c.VX = al(); c.VW = al()
        c.xb = [al(), al()]; c.hb = [al(), al()]; c.wb = [al() for _ in range(c.nF)]
        c.VTF = al(); c.VRA = al(); c.VRH = al(); c.VPS = al(2, 2); c.VN = al(2, 2); c.REC = al(20, 4)
        return al
    def w_voff(c, P):
        a(f"""
        v_cmp_le_u32 vcc, {P}, v{LANE}
        v_mov_b32 v{T1}, {c.wrowb}
        v_subrev_u32 v{T0}, {P}, v{LANE}
        v_cndmask_b32 v{T0}, v{LANE}, v{T0}, vcc
        v_cndmask_b32 v{T1}, 0, v{T1}, vcc
        s_mov_b32 s{sWM}, -1
        s_mov_b32 s{sWM+1}, {(1 << (2*P-32)) - 1}
        s_mul_i32 s{sWB}, s{sW}, {2*c.wrow}
        s_add_u32 s{sWB}, s{sWB}, {c.xsz}
        s_mul_i32 s{sWO}, s{sWO}, {c.wrowb}
        """)
    c = Cfg()
    c.nM, c.nF, c.nh, c.wrow, c.wrowb, c.stg, c.xsz, c.nxm = 4, 4, 2, 480, 3840, 49152, 18432, 2
    al = alloc_common(c)
    c.acc = [[al(4,4) for i in range(4)] for f in range(4)]
    c.acch = [al(4,4) for f in range(2)]
    lowtop = al.n
    al = Alloc(WREG)
    c.X = [[al(4,4) for i in range(4)] for s in range(2)]
    c.XH = [al(4,4) for s in range(2)]
    c.W = [[al(4,4) for f in range(4)] for s in range(2)]
    assert al.n == 208
    c.early = list(range(20, 30)) + [18, 19] + list(range(30, 38))
    a(f"""
    s_lshl_b32 s{sRB}, s{sT0}, 3
    s_and_b32 s{sT3}, s{sT2}, 7
    s_add_u32 s{sRB}, s{sRB}, s{sT3}
    s_lshl_b32 s{sCB}, s{sT1}, 1
    s_lshr_b32 s{sT3}, s{sT2}, 3
    s_add_u32 s{sCB}, s{sCB}, s{sT3}
    s_lshl_b32 s{sT3}, s{sRB}, 7
    s_lshl_b32 s{sT0}, s{sW}, 3
    s_add_u32 s{sT3}, s{sT3}, s{sT0}
    s_sub_u32 s{sT3}, s{sT3}, 16
    s_max_i32 s{sT0}, s{sT3}, 0
    s_mul_i32 s{sXO}, s{sT0}, 1280
    s_add_u32 s{sT3}, s{sT3}, 64
    s_mul_i32 s{sXO+1}, s{sT3}, 1280
    s_add_u32 s{sXO+2}, s{sXO+1}, 81920
    """)
    w_voff(c, 30)
    a(f"""
    v_mul_u32_u24 v{T2}, 26, v{T0}
    v_lshrrev_b32 v{T2}, 8, v{T2}
    v_mul_u32_u24 v{T2}, 1120, v{T2}
    v_lshl_add_u32 v{T0}, v{T0}, 4, v{T2}
    v_add_u32 v{c.VW}, v{T0}, v{T1}
    s_mul_i32 s{sT0}, s{sCB}, 160
    s_add_u32 s{sWO}, s{sWO}, s{sT0}
    """)
    srd(a, SW, P_WQ, 640*3840)
    def q_setup():
        a(f"s_lshr_b32 s{sMH}, s{sW}, 2\ns_and_b32 s{sT0}, s{sW}, 3\ns_lshl_b32 s{sT0}, s{sT0}, 2\ns_lshl_b32 s{sT1}, s{sMH}, 1")
        for f in range(4):
            a(f"s_xor_b32 s{sT2}, s{sT1}, {f}\ns_add_u32 s{sT2}, s{sT2}, s{sT0}\ns_min_u32 s{sNT+f}, s{sT2}, 14")
        a(f"""
        s_mov_b32 s{sMSK}, 0xfffefffe
        s_mov_b32 s{sMSK+1}, 0xfffefffe
        v_lshrrev_b32 v{T0}, 1, v{R}
        v_xor_b32 v{T0}, v{T0}, v{G}
        v_lshlrev_b32 v{T0}, 4, v{T0}
        v_lshl_add_u32 v{T0}, v{R}, 7, v{T0}
        v_add_u32 v{c.hb[0]}, {c.stg}, v{T0}
        v_xor_b32 v{c.hb[1]}, 64, v{c.hb[0]}
        s_lshl_b32 s{sT0}, s{sMH}, 13
        s_add_u32 s{sT0}, s{sT0}, 2048
        v_add_u32 v{c.xb[0]}, s{sT0}, v{c.hb[0]}
        v_add_u32 v{c.xb[1]}, s{sT0}, v{c.hb[1]}
        """)
        rho_local(a, T0, T1)
        a(f"v_mul_u32_u24 v{T0}, 480, v{T0}\nv_and_b32 v{T1}, 3, v{LANE}\nv_lshl_add_u32 v{T0}, v{T1}, 3, v{T0}")
        for f in range(4):
            a(f"s_lshl_b32 s{sT0}, s{sNT+f}, 5\ns_add_u32 s{sT0}, s{sT0}, {c.xsz+c.stg}\nv_add_u32 v{c.wb[f]}, s{sT0}, v{T0}")
        a(f"""
        s_lshl_b32 s{sT0}, s{sRB}, 7
        s_lshl_b32 s{sT1}, s{sMH}, 6
        s_add_u32 s{sT1}, s{sT1}, s{sT0}
        v_add_u32 v{T0}, s{sT1}, v{R}
        v_lshlrev_b32 v{T0}, 4, v{T0}
        v_add_u32 v{c.VRA}, {ST_OFF}, v{T0}
        s_sub_u32 s{sT0}, s{sT0}, 16
        s_max_i32 s{sT0}, s{sT0}, 0
        v_add_u32 v{T0}, s{sT0}, v{R}
        v_lshlrev_b32 v{T0}, 4, v{T0}
        v_add_u32 v{c.VRH}, {ST_OFF}, v{T0}
        """)
        for r in range(c.acc[0][0], lowtop): a(f"v_mov_b32 v{r}, 0")
        for s in range(2):
            for r in range(4): a(f"v_mov_b32 v{c.XH[s]+r}, 0x3f803f80")
    pre_loop(c, q_setup)
    rec = [f"buffer_load_dwordx4 {vr(c.REC+4*i,4)}, v{c.VRA}, {sr(SFL,4)}, 0 offen offset:{256*i} sc1" for i in range(4)]
    rec.append(f"buffer_load_dwordx4 {vr(c.REC+16,4)}, v{c.VRH}, {sr(SFL,4)}, 0 offen sc1")
    main_loop(a, c, S, "q", rec)
    CSR = lowtop; WA = 11
    assert CSR + 16 <= WREG and WA + 6 <= c.VTF
    a(f"v_lshlrev_b32 v{T0}, 4, v{G}")
    for f in range(4):
        a(f"s_lshl_b32 s{sT0}, s{sNT+f}, 6\ns_add_u32 s{sT0}, s{sT0}, {L_CS}\nv_add_u32 v{WA+f}, s{sT0}, v{T0}")
    a(f"s_not_b64 exec, {sr(sMSK,2)}")
    for f in range(2): a(f"ds_write_b128 v{WA+f}, {vr(c.acch[f],4)}")
    a("s_mov_b64 exec, -1")
    a(f"s_waitcnt vmcnt({c.yrec})")
    poll(a, rec, [c.REC+4*i+2 for i in range(5)], True)
    a("s_waitcnt lgkmcnt(0)\ns_barrier")
    for f in range(4): a(f"ds_read_b128 {vr(CSR+4*f,4)}, v{WA+f}")
    rest = [p for p in range(30) if p not in c.early]
    I = Inter(a, [wfrag(p) for p in rest], qevery)
    I(f"""
    s_lshl_b32 s{sT1}, s{sMH}, 6
    s_add_u32 s{sT1}, s{sT1}, 16
    s_mul_i32 s{sT1}, s{sT1}, {RS}
    v_mul_u32_u24 v{T2}, {RS}, v{R}
    """)
    for f in range(4):
        I(f"""
        s_mul_i32 s{sT0}, s{sNT+f}, 52
        s_lshr_b32 s{sT0}, s{sT0}, 8
        s_mul_i32 s{sT2}, s{sT0}, 5
        s_sub_u32 s{sT2}, s{sNT+f}, s{sT2}
        s_lshl_b32 s{sT2}, s{sT2}, 2
        s_mul_i32 s{sT0}, s{sT0}, 192
        v_add_u32 v{T0}, s{sT2}, v{G}
        v_mul_u32_u24 v{T1}, 52, v{T0}
        v_lshrrev_b32 v{T1}, 8, v{T1}
        v_add_u32 v{T0}, v{T0}, v{T1}
        v_lshl_add_u32 v{T0}, v{T0}, 3, v{T2}
        """)
        if f < 2: I(f"v_add_u32 v{WA+4+f}, s{sT0}, v{T0}")
        I(f"s_add_u32 s{sT0}, s{sT0}, s{sT1}\nv_add_u32 v{WA+f}, s{sT0}, v{T0}")
    I("s_waitcnt lgkmcnt(0)")
    TP = c.VPS
    for f in range(4):
        tl = [(c.acc[f][i], WA+f, i*16*RS, c.REC+4*i) for i in range(4)]
        if f < 2: tl.append((c.acch[f], WA+4+f, 0, c.REC+16))
        for (ac, ad, off, st) in tl:
            I(f"""
            v_pk_mul_f32 {vr(TP,2)}, {vr(CSR+4*f,2)}, {vr(st,2)} op_sel:[0,1] op_sel_hi:[1,1]
            v_pk_mul_f32 {vr(TP+2,2)}, {vr(CSR+4*f+2,2)}, {vr(st,2)} op_sel:[0,1] op_sel_hi:[1,1]
            v_pk_fma_f32 {vr(ac,2)}, {vr(ac,2)}, {vr(st,2)}, {vr(TP,2)} op_sel:[0,0,0] op_sel_hi:[1,0,1]
            v_pk_fma_f32 {vr(ac+2,2)}, {vr(ac+2,2)}, {vr(st,2)}, {vr(TP+2,2)} op_sel:[0,0,0] op_sel_hi:[1,0,1]
            v_cvt_pk_bf16_f32 v{ac}, v{ac}, v{ac+1}
            v_cvt_pk_bf16_f32 v{ac+1}, v{ac+2}, v{ac+3}
            ds_write_b64 v{ad}, {vr(ac,2)} offset:{off}
            """)
    al = Alloc(11)
    AB = al(); OV = al(); MX = al(); SM_ = al()
    Q = al(10, 2); KB = [al(10, 2) for _ in range(5)]
    L = al(8, 2); PL = al(8); PH = al(8); O = al(20, 2); TPa = al(4)
    assert al.n <= WREG, al.n
    I(f"""
    s_and_b32 s{sT0}, s{sW}, 3
    s_lshl_b32 s{sT2}, s{sMH}, 6
    s_add_u32 s{sT2}, s{sT2}, 2
    v_add_u32 v{T0}, s{sT2}, v{LANE}
    v_mul_u32_u24 v{T0}, {RS}, v{T0}
    s_mul_i32 s{sT2}, s{sT0}, 48
    s_waitcnt lgkmcnt(0)
    v_add_u32 v{AB}, s{sT2}, v{T0}
    v_lshlrev_b32 v{OV}, 10, v{G}
    v_lshl_add_u32 v{OV}, v{R}, 4, v{OV}
    s_barrier
    """)
    S(5)
    def rd(dst, off):
        return f"ds_read_b128 {vr(dst,4)}, v{AB} offset:{off}\nds_read_b128 {vr(dst+4,4)}, v{AB} offset:{off+16}\nds_read_b64 {vr(dst+8,2)}, v{AB} offset:{off+32}"
    offs = [(14-2*w)*RS+192 for w in range(8)] + [(14-2*w)*RS+384 for w in range(8)]
    issued = 0
    def issue(n):
        nonlocal issued
        for _ in range(n):
            if issued < 16:
                I(rd(KB[issued % 5], offs[issued])); issued += 1
    def need(idx): I(f"s_waitcnt lgkmcnt({3*(issued-1-idx)})")
    I(rd(Q, 14*RS)); issue(4)
    for w in range(8): I(f"v_mov_b32 v{L+w}, 0")
    for wp in range(4):
        w0, w1 = 2*wp, 2*wp+1
        need(w1)
        for d in range(10):
            for w in (w0, w1): I(f"v_dot2c_f32_bf16 v{L+w}, v{Q+d}, v{KB[w%5]+d}")
        issue(3 if wp == 0 else 2)
    for d in range(20): I(f"v_mov_b32 v{O+d}, 0")
    lm = a.uid("Lm")
    a(f"s_or_b32 s{sT2}, s{sRB}, s{sMH}\ns_cmp_lg_u32 s{sT2}, 0\ns_cbranch_scc1 {lm}")
    a(f"v_mov_b32 v{TPa}, {f32(-1e9)}")
    for w in range(1, 8):
        a(f"v_cmp_le_u32 vcc, {2*w}, v{LANE}\ns_nop 1\nv_cndmask_b32 v{L+w}, v{TPa}, v{L+w}, vcc")
    a.label(lm)
    cexp = (20 ** -0.5) * math.log2(math.e)
    I(f"""
    v_max3_f32 v{MX}, v{L}, v{L+1}, v{L+2}
    v_max3_f32 v{SM_}, v{L+3}, v{L+4}, v{L+5}
    v_max3_f32 v{MX}, v{MX}, v{L+6}, v{L+7}
    v_max_f32 v{MX}, v{MX}, v{SM_}
    """)
    for w in range(8): I(f"v_sub_f32 v{L+w}, v{L+w}, v{MX}")
    for w in range(8): I(f"v_mul_f32 v{L+w}, {f32(cexp)}, v{L+w}")
    for w in range(8): I(f"v_exp_f32 v{L+w}, v{L+w}")
    I(f"""
    v_add_f32 v{TPa}, v{L}, v{L+1}
    v_add_f32 v{TPa+1}, v{L+2}, v{L+3}
    v_add_f32 v{TPa+2}, v{L+4}, v{L+5}
    v_add_f32 v{TPa+3}, v{L+6}, v{L+7}
    v_add_f32 v{TPa}, v{TPa}, v{TPa+1}
    v_add_f32 v{TPa+2}, v{TPa+2}, v{TPa+3}
    v_add_f32 v{SM_}, v{TPa}, v{TPa+2}
    v_rcp_f32 v{SM_}, v{SM_}
    s_nop 0
    """)
    for w in range(8): I(f"v_mul_f32 v{L+w}, v{L+w}, v{SM_}")
    for w in range(8): I(f"v_cvt_pk_bf16_f32 v{PL+w}, v{L+w}, 0\nv_cvt_pk_bf16_f32 v{PH+w}, 0, v{L+w}")
    for w in range(8):
        need(8+w)
        for d in range(10):
            I(f"v_dot2c_f32_bf16 v{O+2*d}, v{KB[(8+w)%5]+d}, v{PL+w}\nv_dot2c_f32_bf16 v{O+2*d+1}, v{KB[(8+w)%5]+d}, v{PH+w}")
        issue(1)
    I.flush()
    a(f"""
    s_lshl_b32 s{sT2}, s{sRB}, 1
    s_add_u32 s{sT2}, s{sT2}, s{sMH}
    s_mul_i32 s{sT2}, s{sT2}, {74*4096}
    s_lshl_b32 s{sT3}, s{sCB}, 2
    s_add_u32 s{sT3}, s{sT3}, s{sT0}
    s_mul_i32 s{sT3}, s{sT3}, 20
    """)
    for u in range(5):
        a(f"""
        v_cvt_pk_bf16_f32 v{Q+2*u}, v{O+4*u}, v{O+4*u+1}
        v_cvt_pk_bf16_f32 v{Q+2*u+1}, v{O+4*u+2}, v{O+4*u+3}
        s_lshr_b32 s{sKX}, s{sT3}, 5
        s_lshl_b32 s{sKX}, s{sKX}, 12
        s_add_u32 s{sKX}, s{sKX}, s{sT2}
        s_bfe_u32 s{sKW}, s{sT3}, 0x20002
        s_lshl_b32 s{sKW}, s{sKW}, 8
        s_add_u32 s{sKX}, s{sKX}, s{sKW}
        s_bfe_u32 s{sKW}, s{sT3}, 0x10004
        s_lshl_b32 s{sKW}, s{sKW}, 3
        s_add_u32 s{sKX}, s{sKX}, s{sKW}
        s_add_u32 s{sT3}, s{sT3}, 4
        buffer_store_dwordx2 {vr(Q+2*u,2)}, v{OV}, {sr(SHO,4)}, s{sKX} offen {STF}
        """)
    a(f"s_add_u32 s{sT0}, s{sRB}, 16\ns_lshl_b32 s{sT0}, s{sT0}, 7\ns_lshl_b32 s{sT1}, s{sCB}, 3\ns_add_u32 s{sKX}, s{sT0}, s{sT1}")
    S(6)
    a("s_barrier")
    NB = 4
    emit([wfrag(p) for p in range(38, 38+NB)])
    def publish(younger):
        lp = a.uid("Lp")
        a(f"""
        s_waitcnt vmcnt({younger})
        s_barrier
        s_cmp_lg_u32 s{sW}, 0
        s_cbranch_scc1 {lp}
        v_mov_b32 v{T0}, s{sNON}
        v_mov_b32 v{T1}, s{sNON+1}
        v_mov_b32 v{T2}, 0
        s_mov_b64 exec, 1
        buffer_store_dwordx2 {vr(T0,2)}, v{T2}, {sr(SFL,4)}, s{sKX} offen sc1
        s_mov_b64 exec, -1
        """)
        a.label(lp)
        S(7)
    publish(NB)
    emit([wfrag(p) for p in range(38+NB, 50)])
    a("s_branch Lphase2")
    a.label("Lffn")
    c = Cfg()
    c.nM, c.nF, c.nh, c.wrow, c.wrowb, c.stg, c.xsz, c.nxm = 5, 3, 0, 384, 3456, 49152, 20480, 4
    al = alloc_common(c)
    B1 = al(8, 2)
    c.acc = [[al(4,4) for i in range(5)] for f in range(3)]
    lowtop = al.n
    eal = al
    al = Alloc(WREG)
    c.X = [[al(4,4) for i in range(5)] for s in range(2)]
    c.W = [[al(4,4) for f in range(3)] for s in range(2)]
    assert al.n <= 208
    c.early = list(range(20, 30)) + [18, 19] + list(range(30, 38))
    a(f"""
    s_sub_u32 s{sT2}, s{sT2}, 16
    s_cmp_eq_u32 s{sT0}, 0
    s_cbranch_scc0 Lf_h1
    s_lshl_b32 s{sT1}, s{sT1}, 4
    s_add_u32 s{sT1}, s{sT1}, s{sT2}
    s_cmp_ge_u32 s{sT1}, 63
    s_cbranch_scc1 Lidle
    s_mul_i32 s{sCB}, s{sT1}, 37
    s_lshr_b32 s{sCB}, s{sCB}, 8
    s_mul_i32 s{sT3}, s{sCB}, 7
    s_sub_u32 s{sRB}, s{sT1}, s{sT3}
    s_branch Lf_hd
Lf_h1:
    s_cmp_ge_u32 s{sT2}, 14
    s_cbranch_scc1 Lidle
    s_mul_i32 s{sT1}, s{sT1}, 14
    s_add_u32 s{sT1}, s{sT1}, s{sT2}
    s_cmp_ge_u32 s{sT1}, 54
    s_cbranch_scc1 Lidle
    s_mul_i32 s{sCB}, s{sT1}, 43
    s_lshr_b32 s{sCB}, s{sCB}, 8
    s_mul_i32 s{sT3}, s{sCB}, 6
    s_sub_u32 s{sRB}, s{sT1}, s{sT3}
    s_add_u32 s{sRB}, s{sRB}, 7
Lf_hd:
    s_mul_i32 s{sT3}, s{sRB}, {FROWS}
    s_lshl_b32 s{sT0}, s{sW}, 3
    s_add_u32 s{sT3}, s{sT3}, s{sT0}
    s_mul_i32 s{sXO}, s{sT3}, 1280
    s_add_u32 s{sXO+2}, s{sXO}, {127*1280}
    s_cmp_ge_u32 s{sW}, 2
    s_cselect_b32 s{sT0}, 63, 64
    s_mul_i32 s{sT0}, s{sT0}, 1280
    s_add_u32 s{sXO+1}, s{sXO}, s{sT0}
    """)
    w_voff(c, 24)
    a(f"""
    s_and_b32 s{sT0}, s{sW}, 3
    s_lshl_b32 s{sT0}, s{sT0}, 1
    v_xor_b32 v{T0}, s{sT0}, v{T0}
    v_lshl_add_u32 v{c.VW}, v{T0}, 4, v{T1}
    s_mul_i32 s{sT0}, s{sCB}, 384
    s_add_u32 s{sWO}, s{sWO}, s{sT0}
    """)
    srd(a, SW, P_W1, 640*3456)
    def f_setup():
        a(f"""
        s_lshr_b32 s{sMH}, s{sW}, 2
        s_bfe_u32 s{sT0}, s{sW}, 0x10001
        s_and_b32 s{sT1}, s{sW}, 1
        s_mul_i32 s{sT0}, s{sT0}, 6
        s_lshl_b32 s{sT2}, s{sT1}, 2
        s_add_u32 s{sNT}, s{sT0}, s{sT2}
        s_add_u32 s{sNT+1}, s{sNT}, 1
        s_add_u32 s{sNT+2}, s{sT0}, s{sT1}
        s_add_u32 s{sNT+2}, s{sNT+2}, 2
        s_mov_b32 s{sMSK}, 0x7fff7fff
        s_mov_b32 s{sMSK+1}, 0x7fff7fff
        v_lshrrev_b32 v{T0}, 1, v{R}
        v_xor_b32 v{T0}, v{T0}, v{G}
        v_lshlrev_b32 v{T0}, 4, v{T0}
        v_lshl_add_u32 v{T0}, v{R}, 7, v{T0}
        s_mul_i32 s{sT0}, s{sMH}, {5*2048}
        s_add_u32 s{sT0}, s{sT0}, {c.stg}
        v_add_u32 v{c.xb[0]}, s{sT0}, v{T0}
        v_xor_b32 v{c.xb[1]}, 64, v{c.xb[0]}
        """)
        rho_local(a, T0, T1)
        a(f"""
        v_bfe_u32 v{T2}, v{T0}, 1, 2
        v_mul_u32_u24 v{T0}, 384, v{T0}
        v_and_b32 v{T1}, 3, v{LANE}
        v_lshl_add_u32 v{T0}, v{T1}, 3, v{T0}
        v_add_u32 v{T0}, {c.xsz+c.stg}, v{T0}
        """)
        for f in range(3):
            a(f"v_xor_b32 v{T1}, s{sNT+f}, v{T2}\nv_lshl_add_u32 v{c.wb[f]}, v{T1}, 5, v{T0}")
        a(f"""
        s_mul_i32 s{sT0}, s{sRB}, {FROWS}
        s_mul_i32 s{sT1}, s{sMH}, 79
        s_add_u32 s{sT0}, s{sT0}, s{sT1}
        v_add_u32 v{c.hb[0]}, s{sT0}, v{R}
        v_lshlrev_b32 v{T0}, 4, v{c.hb[0]}
        v_add_u32 v{c.VRA}, {ST_OFF}, v{T0}
        v_add_u32 v{T0}, 64, v{c.hb[0]}
        v_min_u32 v{T0}, 2047, v{T0}
        v_lshlrev_b32 v{T0}, 4, v{T0}
        v_add_u32 v{c.VRH}, {ST_OFF}, v{T0}
        """)
        for r in range(c.acc[0][0], lowtop): a(f"v_mov_b32 v{r}, 0")
        for s in range(2):
            for r in range(4): a(f"v_mov_b32 v{c.X[s][4]+r}, 0x3f803f80")
        srd(a, STMP, P_B1, 3456)
        a(f"v_lshlrev_b32 v{T0}, 3, v{G}\ns_mul_i32 s{sT2}, s{sCB}, 384")
        for f in range(3):
            a(f"s_lshl_b32 s{sT1}, s{sNT+f}, 5\ns_add_u32 s{sT1}, s{sT1}, s{sT2}")
            a(f"buffer_load_dwordx2 {vr(B1+2*f,2)}, v{T0}, {sr(STMP,4)}, s{sT1} offen")
    assert 12*158 + 79 + 63 <= 2047
    pre_loop(c, f_setup)
    rec = [f"buffer_load_dwordx4 {vr(c.REC+4*i,4)}, v{c.VRA}, {sr(SFL,4)}, 0 offen offset:{256*i} sc1" for i in range(4)]
    rec.append(f"buffer_load_dwordx4 {vr(c.REC+16,4)}, v{c.VRH}, {sr(SFL,4)}, 0 offen sc1")
    main_loop(a, c, S, "f", rec)
    a(f"s_waitcnt vmcnt({c.yrec})")
    poll(a, rec, [c.REC+4*i+2 for i in range(5)], True)
    a("s_barrier")
    RHO = c.hb[0]
    CC = c.VPS; VA = 11
    CSR = eal(12, 2); TT = [eal(2,2) for _ in range(4)] + [12, B1+6]
    assert eal.n <= WREG, eal.n
    BFp = [c.REC+4*i+2 for i in range(5)] + [16]
    OUTR = [B1, 18]
    assert RHO == 15 and c.VPS == 24
    rest = [p for p in range(30) if p not in c.early] + list(range(38, 50))
    I = Inter(a, [wfrag(p) for p in rest], fevery)
    c0 = -2*math.sqrt(2/math.pi)*math.log2(math.e); c1 = c0*0.044715
    for f in range(3):
        for r in range(4): I(f"v_mov_b32_dpp v{CSR+4*f+r}, v{c.acc[f][4]+r} row_newbcast:15 row_mask:0xf bank_mask:0xf")
    for j in range(6): I(f"v_lshlrev_b32 v{BFp[j]}, 16, v{B1+j}\nv_and_b32 v{BFp[j]+1}, 0xffff0000, v{B1+j}")
    I(f"v_mov_b32 v{CC}, {f32(c0)}\nv_mov_b32 v{CC+1}, {f32(c1)}\nv_mov_b32 v{CC+2}, 1.0")
    I(f"""
    v_and_b32 v{T1}, 15, v{RHO}
    v_lshlrev_b32 v{T1}, 4, v{T1}
    v_lshl_add_u32 v{T1}, v{G}, 8, v{T1}
    v_lshrrev_b32 v{T0}, 4, v{RHO}
    s_mul_i32 s{sT2}, s{sCB}, 6
    s_add_u32 s{sT2}, s{sT2}, 20
    s_lshr_b32 s{sT0}, s{sNT}, 1
    s_add_u32 s{sT0}, s{sT0}, s{sT2}
    s_lshl_b32 s{sKX}, s{sT0}, 12
    s_lshr_b32 s{sT0}, s{sNT+2}, 1
    s_add_u32 s{sT0}, s{sT0}, s{sT2}
    s_lshl_b32 s{sKW}, s{sT0}, 12
    s_and_b32 s{sT0}, s{sNT+2}, 1
    s_lshl_b32 s{sT0}, s{sT0}, 3
    s_add_u32 s{sKW}, s{sKW}, s{sT0}
    s_mov_b32 s{sT3}, {74*4096}
    """)
    def gelu_pair(h, cs, b, st, t, dst):
        return [f"v_pk_fma_f32 {vr(t,2)}, {vr(cs,2)}, {vr(st,2)}, {vr(b,2)} op_sel:[0,1,0] op_sel_hi:[1,1,1]",
                f"v_pk_fma_f32 {vr(h,2)}, {vr(h,2)}, {vr(st,2)}, {vr(t,2)} op_sel:[0,0,0] op_sel_hi:[1,0,1]",
                f"v_pk_mul_f32 {vr(t,2)}, {vr(h,2)}, {vr(h,2)}",
                f"v_pk_fma_f32 {vr(t,2)}, {vr(t,2)}, {vr(CC,2)}, {vr(CC,2)} op_sel:[0,1,0] op_sel_hi:[1,1,0]",
                f"v_pk_mul_f32 {vr(t,2)}, {vr(t,2)}, {vr(h,2)}",
                f"v_exp_f32 v{t}, v{t}",
                f"v_exp_f32 v{t+1}, v{t+1}",
                f"v_pk_add_f32 {vr(t,2)}, {vr(t,2)}, {vr(CC+2,2)} op_sel_hi:[1,0]",
                f"v_rcp_f32 v{t}, v{t}",
                f"v_rcp_f32 v{t+1}, v{t+1}",
                f"v_pk_mul_f32 {vr(t,2)}, {vr(t,2)}, {vr(h,2)}",
                f"v_cvt_pk_bf16_f32 v{dst}, v{t}, v{t+1}"]
    for i in range(5):
        o = OUTR[i & 1]
        streams = [gelu_pair(c.acc[f][i]+2*hp, CSR+4*f+2*hp, BFp[2*f+hp], c.REC+4*i, TT[2*f+hp], o+2*f+hp) for f in range(3) for hp in range(2)]
        for k in range(len(streams[0])):
            for s in streams: I(s[k])
        I(f"""
        v_lshrrev_b32 v{T2}, 2, v{T0}
        v_mul_lo_u32 v{T2}, v{T2}, s{sT3}
        v_and_b32 v{T3}, 3, v{T0}
        v_lshl_add_u32 v{T2}, v{T3}, 10, v{T2}
        v_add_u32 v{VA}, v{T2}, v{T1}
        v_add_u32 v{T0}, 1, v{T0}
        """)
        if i == 4: a(f"s_mov_b64 exec, {sr(sMSK,2)}")
        a(f"buffer_store_dwordx4 {vr(o,4)}, v{VA}, {sr(SHO,4)}, s{sKX} offen {STF}")
        a(f"buffer_store_dwordx2 {vr(o+4,2)}, v{VA}, {sr(SHO,4)}, s{sKW} offen {STF}")
        if i == 4: a("s_mov_b64 exec, -1")
    left = len(I.g)
    a(f"s_lshl_b32 s{sT0}, s{sRB}, 7\ns_lshl_b32 s{sT1}, s{sCB}, 3\ns_add_u32 s{sKX}, s{sT0}, s{sT1}")
    S(6)
    nb = min(left, 4)
    I.flush(left - nb)
    publish(nb)
    I.flush()
    a("s_branch Lphase2")
    a.label("Lidle")
    late_srds()
    side_work(a, SIDE, 0, 12)
    p2_setup(a, 11)
    a(f"v_mov_b32 v14, 0\nv_mov_b32 v15, 0\ns_waitcnt vmcnt(0)\ns_barrier")
    nonce_get(a, 14, 12)
    poll(a, [f"buffer_load_dwordx2 v[14:15], v11, {sr(SFL,4)}, 0 offen sc1"], [14], False)
    for l in p2_ldsbases(): a(l)
    emit([wfrag(p) for p in c.early + rest])
    a.label("Lphase2")
    al = Alloc(11)
    VF = al(); VFD = al(2, 2); VLA = al(); VXO = al()
    acc = [[al(4,4) for m in range(4)] for n in range(5)]
    RING = [al(16, 4), al(16, 4)]
    XR = al(6, 2); VLB = al()
    assert al.n <= WREG, al.n
    for r in range(acc[0][0], acc[4][3]+4): a(f"v_mov_b32 v{r}, 0")
    ly, lyd = a.uid("Ly"), a.uid("Ly")
    a(f"""
    v_add_u32 v{VLA}, s{sFILL}, v{VL}
    v_add_u32 v{VLB}, s{sFW}, v{VL}
    s_cmp_ge_u32 s{sW}, 2
    s_cbranch_scc1 {ly}
    s_lshr_b32 s{sT0}, s{sR2}, 1
    s_add_u32 s{sT0}, s{sT0}, 16
    s_lshl_b32 s{sT0}, s{sT0}, 7
    s_lshl_b32 s{sT1}, s{sW}, 5
    s_add_u32 s{sT0}, s{sT0}, s{sT1}
    v_and_b32 v{T0}, 3, v{LANE}
    v_lshlrev_b32 v{T0}, 3, v{T0}
    v_add_u32 v{VF}, s{sT0}, v{T0}
    s_branch {lyd}
    """)
    a.label(ly)
    a(f"""
    s_lshl_b32 s{sT0}, s{sR2}, 6
    s_add_u32 s{sT1}, s{sT0}, 63
    s_mul_i32 s{sT0}, s{sT0}, 26547
    s_lshr_b32 s{sT0}, s{sT0}, 22
    s_mul_i32 s{sT1}, s{sT1}, 26547
    s_lshr_b32 s{sT1}, s{sT1}, 22
    s_sub_u32 s{sT1}, s{sT1}, s{sT0}
    s_lshl_b32 s{sT1}, s{sT1}, 7
    s_lshl_b32 s{sT0}, s{sT0}, 7
    s_sub_u32 s{sT2}, s{sW}, 2
    s_mul_i32 s{sT2}, s{sT2}, 3
    s_lshr_b32 s{sT2}, s{sT2}, 1
    s_lshl_b32 s{sT2}, s{sT2}, 3
    s_add_u32 s{sT0}, s{sT0}, s{sT2}
    v_and_b32 v{T0}, 1, v{LANE}
    v_lshlrev_b32 v{T0}, 3, v{T0}
    v_bfe_u32 v{T1}, v{LANE}, 1, 1
    v_mul_u32_u24 v{T1}, s{sT1}, v{T1}
    v_add3_u32 v{VF}, v{T0}, v{T1}, s{sT0}
    """)
    for x in range(2048): assert (x*26547)>>22 == x//158
    a.label(lyd)
    a(f"""
    s_lshl_b32 s{sT0}, s{sR2}, 6
    v_add_u32 v{T0}, s{sT0}, v{R}
    v_mul_u32_u24 v{T0}, 1280, v{T0}
    v_lshl_add_u32 v{T0}, v{G}, 3, v{T0}
    s_mul_i32 s{sT0}, s{sC2}, 160
    v_add_u32 v{VXO}, s{sT0}, v{T0}
    """)
    SOX, SOB = [sKX, sKW, sDELTA], [sSLOT, sW1K, sMH]
    for j in range(3):
        a(f"""
        s_add_u32 s{sT1}, s{sW}, {8*j}
        s_mul_i32 s{sT2}, s{sT1}, 52
        s_lshr_b32 s{sT2}, s{sT2}, 8
        s_mul_i32 s{sT3}, s{sT2}, 5
        s_sub_u32 s{sT1}, s{sT1}, s{sT3}
        s_lshl_b32 s{sT1}, s{sT1}, 5
        s_mul_i32 s{sT2}, s{sT2}, 20480
        s_add_u32 s{SOX[j]}, s{sT2}, s{sT1}
        s_add_u32 s{SOB[j]}, s{sT0}, s{sT1}
        """)
    for j in range(3): a(f"buffer_load_dwordx2 {vr(XR+2*j,2)}, v{VXO}, {sr(SX,4)}, s{SOX[j]} offen")
    srd(a, STMP, P_B2, 1280)
    srd(a, SW, P_OUT, XB)
    S(8)
    poll(a, [f"buffer_load_dwordx2 {vr(VFD,2)}, v{VF}, {sr(SFL,4)}, 0 offen sc1"], [VFD], False)
    S(9)
    Wslot = [WREG+20*t for t in range(6)]
    abuf = {0: RING[0], 1: RING[1], 2: RING[0], 3: Wslot[0], 4: RING[1], 5: Wslot[1], 6: RING[0], 7: Wslot[0], 8: RING[1], 9: Wslot[1]}
    issue_after = {0: [2, 3], 1: [4, 5], 2: [6], 3: [7], 4: [8], 5: [9]}
    wloc = {t: Wslot[t] for t in range(6)}
    wloc.update({6: Wslot[2], 7: Wslot[3], 8: Wslot[4], 9: Wslot[5]})
    B2R = Wslot[0]+16
    B2 = [Wslot[0]+16, Wslot[0]+18, Wslot[1]+16]
    def aload(t):
        a(f"s_lshl_b32 s{sTM}, s{sK+t}, 12")
        for m in range(4): a(f"buffer_load_dwordx4 {vr(abuf[t]+4*m,4)}, v{VL}, {sr(SPF,4)}, s{sTM} offen offset:{1024*m} sc1")
    ops = []
    for t in (0, 1): aload(t); ops += [t]*4
    for t in range(10):
        if t == 9: a(f"s_cmp_ge_u32 s{sW}, 2\ns_cbranch_scc1 Lp2done")
        younger = len(ops) - 1 - max(i for i, o in enumerate(ops) if o == t)
        a(f"s_waitcnt vmcnt({younger})" + (" lgkmcnt(0)" if t == 6 else ""))
        for n in range(5):
            for m in range(4): a(mfma(acc[n][m], wloc[t]+4*n, abuf[t]+4*m))
        if 2 <= t <= 5:
            for n in range(5):
                phi = (t+4)*5+n
                ad, off = (VLA, (phi-30)*1024) if phi < 38 else (VLB, (phi-38)*1024)
                a(f"ds_read_b128 {vr(wloc[t+4]+4*n,4)}, v{ad} offset:{off}")
        for tt in issue_after.get(t, []): aload(tt); ops += [tt]*4
        if t == 5:
            a(f"v_lshlrev_b32 v{T1}, 3, v{G}")
            for j in range(3): a(f"buffer_load_dwordx2 {vr(B2[j],2)}, v{T1}, {sr(STMP,4)}, s{SOB[j]} offen"); ops.append('b')
        S(40+t)
    a.label("Lp2done")
    a("s_nop 7")
    for m in range(4):
        for n in range(5):
            q = m*5+n
            ad, off = (VLA, q*1024) if q < 8 else (VLB, (q-8)*1024)
            a(f"ds_write_b128 v{ad}, {vr(acc[n][m],4)} offset:{off}")
    a(f"""
    s_lshl_b32 s{sT0}, s{sW}, 10
    v_add_u32 v{T0}, s{sT0}, v{VL}
    v_add_u32 v{T2}, {L_A}, v{T0}
    v_add_u32 v{T3}, {4*12288}, v{T0}
    """)
    S(52)
    a("s_waitcnt lgkmcnt(0)\ns_barrier")
    S(53)
    P = [[acc[0][0] + (j*8+s)*4 for s in range(8)] for j in range(3)]
    assert P[2][7]+4 <= XR
    def rdtile(j):
        for s in range(8):
            if j == 0: ad, off = T2, s*8192
            else: ad, off = (T0 if s < 4 else T3), (s%4)*12288 + (j-1)*8192
            a(f"ds_read_b128 {vr(P[j][s],4)}, v{ad} offset:{off}")
    L2E = f32(-math.log2(math.e))
    def fin(j):
        p = P[j]
        Sx, Y, Z = p[0], p[2], p[3]
        for h in (0, 2):
            for k in (0, 2, 4, 6): a(f"v_pk_add_f32 {vr(p[k]+h,2)}, {vr(p[k]+h,2)}, {vr(p[k+1]+h,2)}")
        def unp(x, q):
            a(f"v_lshlrev_b32 v{x}, 16, v{q}\nv_and_b32 v{x+1}, 0xffff0000, v{q}\nv_lshlrev_b32 v{x+2}, 16, v{q+1}\nv_and_b32 v{x+3}, 0xffff0000, v{q+1}")
        unp(Z, B2[j])
        for h in (0, 2):
            a(f"v_pk_add_f32 {vr(p[2]+h,2)}, {vr(p[2]+h,2)}, {vr(p[4]+h,2)}")
            a(f"v_pk_add_f32 {vr(p[6]+h,2)}, {vr(p[6]+h,2)}, {vr(Z+h,2)}")
        for h in (0, 2): a(f"v_pk_add_f32 {vr(Y+h,2)}, {vr(Y+h,2)}, {vr(p[6]+h,2)}")
        for r in range(4): a(f"v_mul_f32 v{Z+r}, {L2E}, v{Y+r}")
        for r in range(4): a(f"v_exp_f32 v{Z+r}, v{Z+r}")
        for r in range(4): a(f"v_add_f32 v{Z+r}, 1.0, v{Z+r}")
        for r in range(4): a(f"v_rcp_f32 v{Z+r}, v{Z+r}")
        for h in (0, 2): a(f"v_pk_mul_f32 {vr(Y+h,2)}, {vr(Y+h,2)}, {vr(Sx+h,2)}")
        unp(p[4], XR+2*j)
        for r in range(4): a(f"v_fma_f32 v{Y+r}, v{Y+r}, v{Z+r}, v{p[4]+r}")
        a(f"v_cvt_pk_bf16_f32 v{Sx}, v{Y}, v{Y+1}\nv_cvt_pk_bf16_f32 v{Sx+1}, v{Y+2}, v{Y+3}")
        a(f"buffer_store_dwordx2 {vr(Sx,2)}, v{VXO}, {sr(SW,4)}, s{SOX[j]} offen")
    rdtile(0); rdtile(1)
    l3 = a.uid("L3")
    a(f"s_cmp_ge_u32 s{sW}, 4\ns_cbranch_scc1 {l3}")
    rdtile(2)
    a("s_waitcnt vmcnt(0) lgkmcnt(0)")
    fin(2)
    a.label(l3)
    a("s_waitcnt vmcnt(1) lgkmcnt(0)" if False else "s_waitcnt lgkmcnt(0)")
    a(f"s_cmp_lt_u32 s{sW}, 4\ns_cbranch_scc1 Lnw\ns_waitcnt vmcnt(0)")
    a.label("Lnw")
    fin(0); fin(1)
    S.finish(54)
    a.label("Lend")
    a("s_endpgm")
    ref = open(f"cdna_kernels/{NAME}.s.ref").read().split("\n")
    hdr = [l for l in ref if l.startswith(";") and "@launch" not in l]
    out = "\n".join(hdr) + f"\n; @launch grid=(256,1,1) block=(512,1,1) lds={LDS_TOTAL}\n"
    out += '.amdgcn_target "amdgcn-amd-amdhsa--gfx950"\n' + khead(name) + a.text() + kd(name, 256, 102)
    return out

if __name__ == "__main__":
    path = sys.argv[1]
    kw = eval("dict(" + (sys.argv[2] if len(sys.argv) > 2 else "") + ")")
    open(path, "w").write(gen(**kw))
```

```python
from asmlib import *
import math, sys
NAME = "recurrent_scan__sliding_local_dilated__dense_activation_gelu__prompt"
XB = 2048*640*2
HO_SZ = 32*74*4096
WT_OFF, WT_SZ = 0xB00000, 8*74*5*1024
FLB = 0x400000
TFO, STO = FLB+0x1000, FLB+0x4000
FL_SZ = FLB + 0x10000
BIG = 0x7ff00000
RS = 592
L_TST, L_CS, L_A = 147456, 93184, 98304
LDS_TOTAL = 163840
FROWS = 152

SX, SW, SHO, SPF, SWT, SFL, SDBG, STMP = 4, 8, 16, 20, 24, 28, 32, 36
sXO = 12; sWO = 15
P_X, P_WQ, P_WO, P_W1, P_B1, P_W2, P_B2, P_OUT, P_DBG, P_WS = 40, 42, 44, 48, 50, 52, 54, 56, 58, 60
(sW, sRB, sCB, sI, sKX, sKW, sTM, sFILL, sDELTA, sSLOT, sW1K, sT0, sT1, sT2, sT3, sMH) = range(62, 78)
sNT = 78; sNON = 82; sMSK = 84; sR2, sC2 = 86, 87; sK = 88; sSP = 98; sN2 = 99
sWM = 100
sFW, sWB = 3, 47
sPFO, sPFS = 46, 81
sTS = 48
VF, LANE, G, R, T0, T1, T2, T3, VST, VL, VXO = 0, 1, 2, 3, 4, 5, 6, 7, 8, 9, 10
WREG = 136
SIDE = 232
EXP = set(); PFF = ""; DN = 2; DMASK = 0b101; DPRE = 2; SP = dict(tw=1, nonce=3, sl=3, sw=5, tf=5); TFL = "nt"; RECIT = 9

def mfma(d, a_, b_, c0=False): return f"v_mfma_f32_16x16x32_bf16 {vr(d,4)}, {vr(a_,4)}, {vr(b_,4)}, " + ("0" if c0 else vr(d,4))
def chunks(l, n): return [l[i:i+n] for i in range(0, len(l), n)]
def merge(groups, n): return [sum(g, []) for g in chunks(groups, n)]
def lines(t): return [l.strip() for l in t.strip("\n").split("\n") if l.strip()]
def srd(a, d, p, size, off=None):
    if off is None: a(f"s_mov_b32 s{d}, s{p}\ns_mov_b32 s{d+1}, s{p+1}")
    else: a(f"s_add_u32 s{d}, s{p}, {off}\ns_addc_u32 s{d+1}, s{p+1}, 0")
    a(f"s_mov_b32 s{d+2}, {size}\ns_mov_b32 s{d+3}, 0x00020000")

class St:
    def __init__(s, a, on): s.a, s.on = a, on
    def start(s):
        if s.on: s.a(f"s_memtime s[0:1]\nv_mov_b32 v{VST}, 0\ns_waitcnt lgkmcnt(0)\nv_writelane_b32 v{VST}, s0, 0\ns_memrealtime s[0:1]\ns_waitcnt lgkmcnt(0)\nv_writelane_b32 v{VST}, s0, 62")
    def __call__(s, i):
        if s.on: s.a(f"s_memtime s[0:1]\ns_waitcnt lgkmcnt(0)\nv_writelane_b32 v{VST}, s0, {i}")
    def dyn(s, base):
        if s.on and ((base == 30 and 'nobar' not in EXP) or 'lst' in EXP):
            s.a(f"s_memtime s[0:1]\ns_add_u32 m0, s{sI}, {base}\ns_waitcnt lgkmcnt(0)\nv_writelane_b32 v{VST}, s0, m0")
    def finish(s, i):
        if not s.on: return
        s.a(f"""
        s_waitcnt vmcnt(0)
        s_memtime s[0:1]
        s_waitcnt lgkmcnt(0)
        v_writelane_b32 v{VST}, s0, {i}
        s_memrealtime s[0:1]
        s_waitcnt lgkmcnt(0)
        v_writelane_b32 v{VST}, s0, 63
        s_lshl_b32 s3, s2, 3
        s_add_u32 s3, s3, s{sW}
        s_lshl_b32 s3, s3, 8
        s_add_u32 s3, s3, {STAMP_OFF}
        s_add_u32 s{STMP}, s{P_WS}, s3
        s_addc_u32 s{STMP+1}, s{P_WS+1}, 0
        s_mov_b32 s{STMP+2}, 256
        s_mov_b32 s{STMP+3}, 0x00020000
        v_lshlrev_b32 v{T0}, 2, v{LANE}
        buffer_store_dword v{VST}, v{T0}, {sr(STMP,4)}, 0 offen
        """)
class Cfg: pass

def dma_x(c, a, u):
    g = [f"s_add_u32 m0, s{sFILL}, {u*8192}", f"s_add_u32 s{sTM}, s{sXO+u}, s{sKX}", f"buffer_load_dwordx4 v{c.VX}, {sr(SX,4)}, s{sTM} offen lds"]
    if u == 2:
        lab = a.uid("Lsk")
        g = [f"s_cmp_ge_u32 s{sW}, {c.nxm}", f"s_cbranch_scc1 {lab}"] + g + [lab + ":"]
    return g
def dma_w(c, a, u):
    return [f"s_add_u32 m0, s{sFW}, {u*16*c.wrow}", f"s_add_u32 s{sTM}, s{sKW}, {u*16*c.wrowb}", f"s_mov_b64 exec, {sr(sWM,2)}",
            f"buffer_load_dwordx4 v{c.VW}, {sr(SW,4)}, s{sTM} offen lds", "s_mov_b64 exec, -1"]
def dmaA(c, a): return [dma_x(c,a,0), dma_x(c,a,1), dma_x(c,a,2), dma_w(c,a,0)]
def dmaB(c, a): return [dma_w(c,a,1), dma_w(c,a,2), dma_w(c,a,3)]

def reads(c, st, s):
    r = []
    for i in range(c.nM):
        ins = f"ds_read_b128 {vr(c.X[st][i],4)}, v{c.xb[s]} offset:{i*2048}"
        if (not c.nh) and i == c.nM-1: r.append([f"s_mov_b64 exec, {sr(sMSK,2)}", ins, "s_mov_b64 exec, -1"])
        else: r.append([ins])
    if c.nh: r.append([f"s_mov_b64 exec, {sr(sMSK,2)}", f"ds_read_b128 {vr(c.XH[st],4)}, v{c.hb[s]}", "s_mov_b64 exec, -1"])
    for f in range(c.nF):
        r.append([f"ds_read_b64_tr_b16 {vr(c.W[st][f],2)}, v{c.wb[f]} offset:{s*32*c.wrow}"])
        r.append([f"ds_read_b64_tr_b16 {vr(c.W[st][f]+2,2)}, v{c.wb[f]} offset:{s*32*c.wrow+8*c.wrow}"])
    return r
def mfmas(c, st):
    m = []
    for f in range(c.nF):
        for i in range(c.nM): m.append(mfma(c.acc[f][i], c.W[st][f], c.X[st][i]))
        if f < c.nh: m.append(mfma(c.acch[f], c.W[st][f], c.XH[st]))
    return m
def spread(main, items):
    out = []
    for i, m in enumerate(main):
        out.append(m)
        for p, g in items:
            if p == i or (i == len(main)-1 and p > i): out.extend(g)
    return out
def even(groups, n, lo=1):
    k = len(groups)
    return [(lo + (j*(n-lo))//k, g) for j, g in enumerate(groups)] if k else []

def stat_row(a):
    a(f"""
    s_and_b32 s{sT0}, s2, 1
    s_lshl_b32 s{sT0}, s{sT0}, 10
    s_bfe_u32 s{sT2}, s2, 0x20001
    s_lshl_b32 s{sT2}, s{sT2}, 8
    s_add_u32 s{sT0}, s{sT0}, s{sT2}
    s_and_b32 s{sT2}, s2, 0xf8
    s_add_u32 s{sT0}, s{sT0}, s{sT2}
    s_sub_u32 s{sT2}, s{sW}, 3
    s_lshl_b32 s{sT2}, s{sT2}, 2
    s_add_u32 s{sT0}, s{sT0}, s{sT2}
    """)
def nonce_get(a, vN, vPS):
    l0, l1, l2, l3 = a.uid("Lno"), a.uid("Lno"), a.uid("Lno"), a.uid("Lno")
    assert vN == vPS + 2 and vPS % 2 == 0
    a(f"s_mov_b32 s{sSP}, 0")
    a.label(l0)
    a(f"""
    v_readfirstlane_b32 s{sNON}, v{vN}
    v_readfirstlane_b32 s{sNON+1}, v{vN+1}
    s_add_u32 s{sSP}, s{sSP}, 1
    s_cmp_gt_u32 s{sSP}, 100000
    s_cbranch_scc1 {l1}
    s_cmp_lg_u32 s{sNON}, 0
    s_cbranch_scc1 {l1}
    v_mov_b32 v{T0}, 0
    buffer_load_dwordx2 {vr(vN,2)}, v{T0}, {sr(SDBG,4)}, 0 offen sc1
    s_waitcnt vmcnt(0)
    s_branch {l0}
    """)
    a.label(l1)
    a(f"""
    s_cmp_lg_u32 s{sW}, 0
    s_cbranch_scc1 {l2}
    s_lshl_b32 s{sT1}, s2, 3
    v_mov_b32 v{T0}, {TFO}
    s_mov_b64 exec, 1
    buffer_store_dwordx2 {vr(vN,2)}, v{T0}, {sr(SFL,4)}, s{sT1} offen sc1
    s_mov_b64 exec, -1
    """)
    a.label(l2)
def poll(a, loads, cmps, preloaded):
    l0, l1, l2 = a.uid("Lpo"), a.uid("Lpo"), a.uid("Lpo")
    a(f"s_mov_b32 s{sSP}, 0")
    if preloaded: a(f"s_branch {l2}")
    a.label(l0)
    for l in loads: a(l)
    a("s_waitcnt vmcnt(0)")
    a.label(l2)
    for k, v in enumerate(cmps):
        if k == 0: a(f"v_cmp_eq_u64 vcc, {sr(sNON,2)}, {vr(v,2)}")
        else: a(f"v_cmp_eq_u64 {sr(sT1,2)}, {sr(sNON,2)}, {vr(v,2)}\ns_nop 0\ns_and_b64 vcc, vcc, {sr(sT1,2)}")
    a(f"""
    s_add_u32 s{sSP}, s{sSP}, 1
    s_cmp_gt_u32 s{sSP}, 100000
    s_cbranch_scc1 {l1}
    s_cmp_eq_u64 vcc, -1
    s_cbranch_scc0 {l0}
    """)
    a.label(l1)

def wfrag(phi):
    t, n = divmod(phi, 5)
    pre = [f"s_mul_i32 s{sTM}, s{sK+t}, 5120"]
    if phi < 30:
        if n < 4: return pre + [f"buffer_load_dwordx4 {vr(WREG+4*phi,4)}, v{VL}, {sr(SWT,4)}, s{sTM} offen offset:{1024*n} sc1"]
        return pre + [f"s_add_u32 s{sTM}, s{sTM}, 4096", f"buffer_load_dwordx4 {vr(WREG+4*phi,4)}, v{VL}, {sr(SWT,4)}, s{sTM} offen sc1"]
    base, o = (sFILL, (phi-30)*1024) if phi < 38 else (sFW, (phi-38)*1024)
    return [f"s_add_u32 m0, s{base}, {o}"] + pre + [f"s_add_u32 s{sTM}, s{sTM}, {1024*n}", f"buffer_load_dwordx4 v{VL}, {sr(SWT,4)}, s{sTM} offen sc1 lds"]
def p2_ldsbases():
    return [f"s_lshl_b32 s{sFILL}, s{sW}, 13", f"s_add_u32 s{sFILL}, s{sFILL}, {L_A}", f"s_mul_i32 s{sFW}, s{sW}, 12288"]

def duty(a, n, mask=None):
    lab = a.uid("Ldu")
    g = [f"s_cmp_ge_u32 s{sW}, 4", f"s_cbranch_scc1 {lab}"]
    if mask is not None: g += [f"s_bitcmp1_b32 {mask}, s{sI}", f"s_cbranch_scc0 {lab}"]
    for _ in range(n): g += [f"buffer_load_dword v255, v254, {sr(STMP,4)}, s{sPFO} offen {PFF}", f"s_add_u32 s{sPFO}, s{sPFO}, s{sPFS}"]
    return g + [lab + ":"]

def iteration(a, c, S, kind, extra1=(), extra2=(), pre2=None):
    bases = list(c.xb) + (list(c.hb) if c.nh else []) + list(c.wb)
    prio = 'noprio' not in EXP
    a("s_waitcnt lgkmcnt(0)")
    M = mfmas(c, 0); n = len(M)
    rb = merge(reads(c, 1, 1), 2)
    items = [(k, g) for k, g in enumerate(rb)]
    if prio: items = [(0, ["s_setprio 1"]), (n//2, ["s_setprio 0"])] + items
    if kind != 9:
        items.append((0, [f"s_add_u32 s{sT1}, s{sSLOT}, {c.stg}", f"s_cmp_eq_u32 s{sT1}, {3*c.stg}", f"s_cselect_b32 s{sT1}, 0, s{sT1}", f"s_sub_u32 s{sDELTA}, s{sT1}, s{sSLOT}"]))
        up = chunks([f"v_add_u32 v{b}, s{sDELTA}, v{b}" for b in bases], 2)
        for k, g in enumerate(up): items.append((len(rb) + k, g))
    if kind in ('loop', 7): items += even(dmaB(c, a), n-4, 2)
    items += even(list(extra1), n-2, 1)
    if kind == 'loop':
        items.append((n-4, [f"s_add_u32 s{sFILL}, s{sSLOT}, s{sW1K}", f"s_add_u32 s{sFW}, s{sSLOT}, s{sWB}"]))
        items.append((n-3, [f"s_add_u32 s{sKX}, s{sKX}, 128", f"s_add_u32 s{sKW}, s{sKW}, {64*c.wrowb}"]))
    if kind != 9: items.append((n-3, [f"s_mov_b32 s{sSLOT}, s{sT1}"]))
    for l in spread(M, items): a(l)
    S.dyn(10)
    if kind == 'loop' or kind == 7: a(f"s_waitcnt vmcnt(6) lgkmcnt(0)")
    elif kind == 8: a(f"s_waitcnt vmcnt({c.y8}) lgkmcnt(0)")
    else: a("s_waitcnt lgkmcnt(0)")
    S.dyn(20)
    a("s_barrier")
    S.dyn(30)
    if prio: a("s_setprio 3")
    if pre2: pre2()
    M = mfmas(c, 1)
    items = []
    if kind != 9: items = [(k, g) for k, g in enumerate(merge(reads(c, 0, 0), 2))]
    if prio: items.append((n//2, ["s_setprio 2"]))
    if kind == 'loop':
        items += even(dmaA(c, a), n, 2)
        if c.duty and DMASK: items.append((0, duty(a, DN, DMASK)))
    items += even(list(extra2), n, 0)
    for l in spread(M, items): a(l)

def main_loop(a, c, S, tag, rec_loads):
    a.label(f"Lloop_{tag}")
    iteration(a, c, S, 'loop')
    l1, l2, l5, lx = a.uid("Ls"), a.uid("Ls"), a.uid("Ls"), a.uid("Ls")
    a(f"s_bitcmp1_b32 s{sI}, 0\ns_cbranch_scc0 {lx}")
    a(f"s_cmp_lg_u32 s{sI}, 1\ns_cbranch_scc1 {l1}")
    side_work(a, None, c.VPS, spart=False)
    a(f"s_branch {lx}")
    a.label(l1)
    a(f"s_cmp_lg_u32 s{sI}, 3\ns_cbranch_scc1 {l2}")
    nonce_get(a, c.VN, c.VPS)
    stat_loads(a)
    a(f"s_branch {lx}")
    a.label(l2)
    tf = f"buffer_load_dwordx2 {vr(c.VN,2)}, v{c.VTF}, {sr(SFL,4)}, 0 offen sc1"
    a(tf)
    side_work(a, None, c.VPS, tpart=False)
    a.label(lx)
    a(f"s_add_u32 s{sI}, s{sI}, 1\ns_cmp_lt_u32 s{sI}, 7\ns_cbranch_scc1 Lloop_{tag}")
    early = [wfrag(p) for p in c.early]
    e = chunks(early, (len(early)+4)//5)
    def pre7():
        poll(a, [tf], [c.VN], True)
        for l in p2_ldsbases(): a(l)
    iteration(a, c, S, 7, extra2=e[0], pre2=pre7)
    a(f"s_add_u32 s{sI}, s{sI}, 1")
    c.y8 = len(e[0]) + len(e[1])
    iteration(a, c, S, 8, extra1=e[1], extra2=e[2])
    a(f"s_add_u32 s{sI}, s{sI}, 1")
    iteration(a, c, S, 9, extra1=rec_loads + e[3], extra2=e[4] + c.tailx)
    a("s_setprio 0")
    c.yrec = len(e[3]) + len(e[4])
    S(4)

def rho_local(a, d, t):
    a(f"v_bfe_u32 v{d}, v{LANE}, 2, 3\nv_lshrrev_b32 v{t}, 5, v{LANE}\nv_lshl_add_u32 v{d}, v{t}, 4, v{d}")

def side_loads(a, stat=True):
    ld, lst, lh, lj = a.uid("Lt"), a.uid("Lt"), a.uid("Lt"), a.uid("Lt")
    sU, sKp, sCh = sTS, sTS+1, sTS+2
    A0, A1, ST0, ST1 = SIDE, SIDE+1, SIDE+2, SIDE+3
    a(f"s_cmp_ge_u32 s{sW}, 5\ns_cbranch_scc1 {ld}\ns_cmp_ge_u32 s{sW}, 3\ns_cbranch_scc1 {lst}")
    a(f"""
    s_mul_i32 s{sU}, s2, 3
    s_add_u32 s{sU}, s{sU}, s{sW}
    s_min_u32 s{sU}, s{sU}, 739
    s_mul_i32 s{sKp}, s{sU}, 6554
    s_lshr_b32 s{sKp}, s{sKp}, 16
    s_mul_i32 s{sT0}, s{sKp}, 10
    s_sub_u32 s{sCh}, s{sU}, s{sT0}
    v_lshrrev_b32 v{T0}, 5, v{LANE}
    s_cmp_ge_u32 s{sKp}, 20
    s_cbranch_scc1 {lh}
    """)
    for e, (A, ST) in enumerate(((A0, ST0), (A1, ST1))):
        a(f"""
        s_lshl_b32 s{sT0}, s{sKp}, 2
        s_add_u32 s{sT0}, s{sT0}, {2*e}
        v_add_u32 v{T1}, s{sT0}, v{T0}
        v_mul_u32_u24 v{T2}, 205, v{T1}
        v_lshrrev_b32 v{T2}, 10, v{T2}
        v_mul_u32_u24 v{T3}, 5, v{T2}
        v_sub_u32 v{T1}, v{T1}, v{T3}
        v_mul_u32_u24 v{A}, 40, v{T2}
        v_lshrrev_b32 v{T2}, 1, v{T1}
        v_mul_u32_u24 v{T2}, 20, v{T2}
        v_and_b32 v{T3}, 1, v{T1}
        v_lshl_add_u32 v{T2}, v{T3}, 3, v{T2}
        v_cmp_eq_u32 vcc, 4, v{T1}
        v_mov_b32 v{ST}, 20
        s_nop 0
        v_cndmask_b32 v{T2}, v{T2}, 16, vcc
        v_cndmask_b32 v{ST}, 4, v{ST}, vcc
        v_add_u32 v{A}, v{A}, v{T2}
        """)
    srd(a, SPF, P_WO, 640*1280)
    a(f"s_branch {lj}")
    a.label(lh)
    a(f"""
    s_sub_u32 s{sT0}, s{sKp}, 20
    s_mul_i32 s{sT1}, s{sT0}, 86
    s_lshr_b32 s{sT1}, s{sT1}, 8
    s_mul_i32 s{sT1}, s{sT1}, 3
    s_sub_u32 s{sT1}, s{sT0}, s{sT1}
    s_lshl_b32 s{sT0}, s{sT0}, 5
    v_lshl_add_u32 v{A0}, v{T0}, 2, s{sT0}
    s_cmp_eq_u32 s{sT1}, 1
    s_cselect_b32 s{sT1}, 16, 8
    s_cselect_b32 s{sT2}, 8, 16
    v_add_u32 v{A1}, s{sT1}, v{A0}
    v_mov_b32 v{ST0}, s{sT2}
    v_mov_b32 v{ST1}, s{sT2}
    """)
    srd(a, SPF, P_W2, 1728*1280)
    a.label(lj)
    a(f"""
    v_bfe_u32 v{T1}, v{LANE}, 3, 2
    v_and_b32 v{T2}, 7, v{LANE}
    v_lshlrev_b32 v{T2}, 4, v{T2}
    s_lshl_b32 s{sT0}, s{sCh}, 7
    s_lshl_b32 s{sT1}, s{sW}, 12
    """)
    for q in range(4):
        A, ST = ((A0, ST0), (A1, ST1))[q & 1]
        a(f"v_add_u32 v{T3}, v{A}, v{T1}")
        if q >> 1: a(f"v_add_u32 v{T3}, v{T3}, v{ST}")
        a(f"v_mul_u32_u24 v{T3}, 1280, v{T3}\nv_add_u32 v{T3}, v{T3}, v{T2}\ns_add_u32 m0, s{sT1}, {L_TST+1024*q}\ns_nop 0")
        a(f"buffer_load_dwordx4 v{T3}, {sr(SPF,4)}, s{sT0} offen {TFL} lds")
    a(f"s_mul_i32 s{sT2}, s{sKp}, 5\ns_lshl_b32 s{sT3}, s{sCh}, 2")
    for t in range(4):
        a(f"""
        s_add_u32 s{sT0}, s{sT3}, {t}
        s_mul_i32 s{sT1}, s{sT0}, 52
        s_lshr_b32 s{sT1}, s{sT1}, 8
        s_mul_i32 s{sT1}, s{sT1}, 365
        s_add_u32 s{sT0}, s{sT0}, s{sT1}
        s_add_u32 s{sT0}, s{sT0}, s{sT2}
        s_lshl_b32 s{sTS+t}, s{sT0}, 10
        """)
    a(f"s_branch {ld}")
    a.label(lst)
    if stat: stat_loads(a, False)
    a.label(ld)
def stat_loads(a, guard=True):
    ld = a.uid("Lsl")
    if guard: a(f"s_sub_u32 s{sT1}, s{sW}, 3\ns_cmp_gt_u32 s{sT1}, 1\ns_cbranch_scc1 {ld}")
    stat_row(a)
    a(f"s_mul_i32 s{sT0}, s{sT0}, 1280\nv_mul_u32_u24 v{T0}, 1280, v{G}\nv_lshl_add_u32 v{T0}, v{R}, 4, v{T0}")
    for i in range(5): a(f"buffer_load_dwordx4 {vr(SIDE+4*i,4)}, v{T0}, {sr(SX,4)}, s{sT0} offen offset:{256*i}")
    a.label(ld)
for u in range(1001): assert (u*6554)>>16 == u//10
for u in range(80): assert (u*205)>>10 == u//5
for u in range(54): assert (u*86)>>8 == u//3
for N in range(40): assert (N*52)>>8 == N//5

def side_work(a, younger, vPS, tpart=True, spart=True):
    lab, ls = a.uid("Ltw"), a.uid("Ltw")
    tmp = SIDE
    if younger is not None: a(f"s_waitcnt vmcnt({younger})")
    a(f"s_cmp_ge_u32 s{sW}, 3\ns_cbranch_scc1 {ls}")
    if tpart: t_part(a)
    a(f"s_branch {lab}")
    a.label(ls)
    if spart:
        a(f"s_cmp_ge_u32 s{sW}, 5\ns_cbranch_scc1 {lab}")
        s_part(a, vPS)
    a.label(lab)
def t_part(a):
    tmp = SIDE
    a(f"""
    v_lshrrev_b32 v{T0}, 2, v{LANE}
    v_lshlrev_b32 v{T0}, 7, v{T0}
    v_and_b32 v{T1}, 3, v{LANE}
    v_lshl_add_u32 v{T0}, v{T1}, 3, v{T0}
    s_lshl_b32 s{sT0}, s{sW}, 12
    s_add_u32 s{sT0}, s{sT0}, {L_TST}
    v_add_u32 v{T0}, s{sT0}, v{T0}
    """)
    for t in range(4):
        a(f"ds_read_b64_tr_b16 {vr(tmp+4*t,2)}, v{T0} offset:{32*t}")
        a(f"ds_read_b64_tr_b16 {vr(tmp+4*t+2,2)}, v{T0} offset:{32*t+2048}")
    for t in range(4):
        a(f"s_waitcnt lgkmcnt({6-2*t})\nbuffer_store_dwordx4 {vr(tmp+4*t,4)}, v{VL}, {sr(SFL,4)}, s{sTS+t} offen sc1")
def s_part(a, vPS):
    tmp = SIDE
    s, q = vPS, vPS+1
    a(f"v_mov_b32 v{s}, 0\nv_mov_b32 v{q}, 0\nv_mov_b32 v{T0}, 0x3f803f80")
    for j in range(20):
        a(f"v_dot2c_f32_bf16 v{s}, v{tmp+j}, v{T0}\nv_dot2c_f32_bf16 v{q}, v{tmp+j}, v{tmp+j}")
    a("s_nop 2")
    for sh in (8, 4, 2, 1):
        a(f"v_add_f32_dpp v{s}, v{s}, v{s} row_ror:{sh} row_mask:0xf bank_mask:0xf")
        a(f"v_add_f32_dpp v{q}, v{q}, v{q} row_ror:{sh} row_mask:0xf bank_mask:0xf")
        a("s_nop 0")
    a(f"""
    v_mul_f32 v{s}, {f32(1/640)}, v{s}
    v_mul_f32 v{q}, {f32(1/640)}, v{q}
    v_fma_f32 v{q}, -v{s}, v{s}, v{q}
    v_max_f32 v{q}, 0, v{q}
    v_cvt_pk_bf16_f32 v{T0}, v{s}, v{q}
    v_lshlrev_b32 v{T1}, 16, v{T0}
    v_and_b32 v{q}, 0xffff0000, v{T0}
    v_add_f32 v{q}, {f32(1e-5)}, v{q}
    v_cvt_pk_bf16_f32 v{q}, v{q}, v{q}
    v_and_b32 v{q}, 0xffff0000, v{q}
    v_sqrt_f32 v{q}, v{q}
    s_nop 0
    v_cvt_pk_bf16_f32 v{q}, v{q}, v{q}
    v_and_b32 v{q}, 0xffff0000, v{q}
    v_rcp_f32 v{s}, v{q}
    s_nop 0
    v_mul_f32 v{q}, v{T1}, v{s}
    v_sub_f32 v{tmp+1}, 0, v{q}
    v_mov_b32 v{tmp}, v{s}
    v_mov_b32 v{tmp+2}, s{sNON}
    v_mov_b32 v{tmp+3}, s{sNON+1}
    """)
    stat_row(a)
    a(f"""
    s_lshl_b32 s{sT0}, s{sT0}, 4
    s_add_u32 s{sT0}, s{sT0}, {STO}
    v_lshlrev_b32 v{T0}, 4, v{G}
    s_mov_b32 exec_lo, 0x00010001
    s_mov_b32 exec_hi, 0x00010001
    buffer_store_dwordx4 {vr(tmp,4)}, v{T0}, {sr(SFL,4)}, s{sT0} offen sc1
    s_mov_b64 exec, -1
    """)

def p2_setup(a, VTF):
    a(f"""
    s_and_b32 s{sT0}, s2, 7
    s_lshl_b32 s{sR2}, s{sT0}, 2
    s_bfe_u32 s{sT1}, s2, 0x20003
    s_add_u32 s{sR2}, s{sR2}, s{sT1}
    s_lshr_b32 s{sC2}, s2, 5
    s_cmp_lt_u32 s{sW}, 2
    s_cselect_b32 s{sN2}, 10, 9
    s_lshl_b32 s{sT1}, s{sT1}, 1
    s_add_u32 s{sT1}, s{sT1}, s{sC2}
    s_cmp_ge_u32 s{sT1}, s{sN2}
    s_cselect_b32 s{sT2}, s{sN2}, 0
    s_sub_u32 s{sK}, s{sT1}, s{sT2}
    """)
    for t in range(1, 10):
        a(f"s_add_u32 s{sK+t}, s{sK+t-1}, 1\ns_cmp_eq_u32 s{sK+t}, s{sN2}\ns_cselect_b32 s{sK+t}, 0, s{sK+t}")
    a(f"s_cmp_lt_u32 s{sW}, 2\ns_cselect_b32 s{sK+9}, s{sK+9}, 0x10000")
    a(f"""
    s_mul_i32 s{sT3}, s{sW}, 9
    s_min_u32 s{sT2}, s{sW}, 2
    s_add_u32 s{sT3}, s{sT3}, s{sT2}
    v_lshrrev_b32 v{T0}, 1, v{LANE}
    s_sub_u32 s{sT2}, s{sN2}, 1
    v_min_u32 v{T0}, s{sT2}, v{T0}
    v_add_u32 v{T0}, s{sT3}, v{T0}
    v_mul_u32_u24 v{T0}, 10, v{T0}
    s_mul_i32 s{sT2}, s{sC2}, 5
    s_lshr_b32 s{sT2}, s{sT2}, 2
    v_and_b32 v{T1}, 1, v{LANE}
    v_add3_u32 v{T0}, v{T0}, v{T1}, s{sT2}
    v_mul_u32_u24 v{T0}, 21846, v{T0}
    v_lshrrev_b32 v{T0}, 16, v{T0}
    v_lshlrev_b32 v{T0}, 3, v{T0}
    v_add_u32 v{VTF}, {TFO}, v{T0}
    s_mul_i32 s{sT2}, s{sC2}, 74
    s_add_u32 s{sT2}, s{sT2}, s{sT3}
    s_mul_i32 s{sT2}, s{sT2}, 5120
    s_add_u32 s{sT2}, s{sT2}, {WT_OFF}
    s_add_u32 s{SWT}, s{P_WS}, s{sT2}
    s_addc_u32 s{SWT+1}, s{P_WS+1}, 0
    s_mul_i32 s{SWT+2}, s{sN2}, 5120
    s_mov_b32 s{SWT+3}, 0x00020000
    s_mul_i32 s{sT2}, s{sR2}, 74
    s_add_u32 s{sT2}, s{sT2}, s{sT3}
    s_lshl_b32 s{sT2}, s{sT2}, 12
    s_add_u32 s{SPF}, s{P_WS}, s{sT2}
    s_addc_u32 s{SPF+1}, s{P_WS+1}, 0
    s_lshl_b32 s{SPF+2}, s{sN2}, 12
    s_mov_b32 s{SPF+3}, 0x00020000
    """)
    ly, lyd = a.uid("Ly"), a.uid("Ly")
    a(f"""
    s_cmp_ge_u32 s{sW}, 2
    s_cbranch_scc1 {ly}
    s_lshr_b32 s{sT0}, s{sR2}, 1
    s_lshl_b32 s{sT0}, s{sT0}, 7
    s_lshl_b32 s{sT1}, s{sW}, 5
    s_add_u32 s{sT0}, s{sT0}, s{sT1}
    s_add_u32 s{sT0}, s{sT0}, {FLB+16*128}
    v_and_b32 v{T0}, 3, v{LANE}
    v_lshl_add_u32 v{VF}, v{T0}, 3, s{sT0}
    s_branch {lyd}
    """)
    a.label(ly)
    a(f"""
    s_lshl_b32 s{sT0}, s{sR2}, 6
    s_add_u32 s{sT1}, s{sT0}, 63
    s_mul_i32 s{sT0}, s{sT0}, 27595
    s_lshr_b32 s{sT0}, s{sT0}, 22
    s_mul_i32 s{sT1}, s{sT1}, 27595
    s_lshr_b32 s{sT1}, s{sT1}, 22
    s_sub_u32 s{sT1}, s{sT1}, s{sT0}
    s_lshl_b32 s{sT1}, s{sT1}, 7
    s_lshl_b32 s{sT0}, s{sT0}, 7
    s_sub_u32 s{sT2}, s{sW}, 2
    s_mul_i32 s{sT2}, s{sT2}, 3
    s_lshr_b32 s{sT2}, s{sT2}, 1
    s_lshl_b32 s{sT2}, s{sT2}, 3
    s_add_u32 s{sT0}, s{sT0}, s{sT2}
    s_add_u32 s{sT0}, s{sT0}, {FLB}
    v_and_b32 v{T0}, 1, v{LANE}
    v_lshlrev_b32 v{T0}, 3, v{T0}
    v_bfe_u32 v{T1}, v{LANE}, 1, 1
    v_mul_u32_u24 v{T1}, s{sT1}, v{T1}
    v_add3_u32 v{VF}, v{T0}, v{T1}, s{sT0}
    """)
    a.label(lyd)
    a(f"""
    s_lshl_b32 s{sT0}, s{sR2}, 6
    v_add_u32 v{T0}, s{sT0}, v{R}
    v_mul_u32_u24 v{T0}, 1280, v{T0}
    v_lshl_add_u32 v{T0}, v{G}, 3, v{T0}
    s_mul_i32 s{sT0}, s{sC2}, 160
    v_add_u32 v{VXO}, s{sT0}, v{T0}
    """)
for u in range(740): assert (u*21846)>>16 == u//3
for x in range(2048): assert (x*27595)>>22 == x//152

class Inter:
    def __init__(s, a, groups, every): s.a, s.g, s.e, s.n = a, list(groups), every, 0
    def __call__(s, txt):
        for l in lines(txt):
            s.a(l); s.n += 1
            if s.n % s.e == 0 and s.g:
                for x in s.g.pop(0): s.a(x)
    def flush(s, keep=0):
        while len(s.g) > keep:
            for x in s.g.pop(0): s.a(x)

def gen(stamps=False, PF=4, pff="", qevery=14, fevery=11, exp="", NB=4, dn=2, dmask=0b101, dpre=2, tfl="nt", nearly=10):
    global EXP, PFF, DN, DMASK, DPRE, TFL
    EXP = set(exp.split()); PFF = pff; DN = dn; DMASK = dmask; DPRE = dpre; TFL = tfl
    assert PF % 2 == 0 and PF + dpre + dn*bin(dmask).count("1") <= 10
    a = Asm(); S = St(a, stamps)
    name = NAME + "_kernel"
    def emit(groups):
        for g in groups:
            for l in g: a(l)
    a(f"s_cmp_ge_u32 s2, 256\ns_cbranch_scc1 Lend")
    a(f"s_load_dwordx16 s[40:55], s[0:1], 0\ns_load_dwordx4 s[56:59], s[0:1], 64\ns_load_dwordx2 s[60:61], s[0:1], 80")
    a(f"""
    v_lshrrev_b32 v{T0}, 6, v0
    v_and_b32 v{LANE}, 63, v0
    v_readfirstlane_b32 s{sW}, v{T0}
    v_lshrrev_b32 v{G}, 4, v{LANE}
    v_and_b32 v{R}, 15, v{LANE}
    v_lshlrev_b32 v{VL}, 4, v{LANE}
    s_lshl_b32 s{sW1K}, s{sW}, 10
    s_mov_b32 s{sI}, 0
    v_lshrrev_b32 v{T0}, 3, v{LANE}
    v_mul_u32_u24 v{T0}, 1280, v{T0}
    s_lshl_b32 s{sT0}, s{sW}, 2
    v_add_u32 v{T1}, s{sT0}, v{G}
    v_xor_b32 v{T1}, v{T1}, v{LANE}
    v_and_b32 v{T1}, 7, v{T1}
    v_lshl_add_u32 v11, v{T1}, 4, v{T0}
    s_and_b32 s{sT0}, s{sW}, 1
    s_lshl_b32 s{sT0}, s{sT0}, 1
    s_and_b32 s{sT1}, s{sW}, 2
    s_lshl_b32 s{sT1}, s{sT1}, 2
    s_add_u32 s{sT0}, s{sT0}, s{sT1}
    s_and_b32 s{sT1}, s{sW}, 4
    s_add_u32 s{sWO}, s{sT0}, s{sT1}
    """)
    def pf_addr(nrow_cu, kper, nst, cidx_s, VD):
        pass
    lx, lq, ld, lw = a.uid("Lpf"), a.uid("Lpf"), a.uid("Lpf"), a.uid("Lpf")
    a(f"""
    s_lshr_b32 s{sT2}, s2, 3
    s_and_b32 s{sT0}, s2, 1
    s_bfe_u32 s{sT1}, s2, 0x20001
    """)
    if PF:
        a(f"""
        s_cmp_ge_u32 s{sW}, 3
        s_cbranch_scc1 {lw}
        s_cmp_ge_u32 s{sW}, 1
        s_cbranch_scc1 {lq}
        s_mul_i32 s{sT0}, s{sT0}, 1008
        s_mul_i32 s{sT2}, s{sT2}, 34
        s_add_u32 s{sT0}, s{sT0}, s{sT2}
        v_min_u32 v{T0}, 33, v{LANE}
        v_add_u32 v{T0}, s{sT0}, v{T0}
        v_mul_u32_u24 v{T0}, 1280, v{T0}
        s_waitcnt lgkmcnt(0)
        """)
        srd(a, SX, P_X, XB)
        for s_ in range(PF): a(f"buffer_load_dword v255, v{T0}, {sr(SX,4)}, 0 offen offset:{128*s_} {pff}")
        a(f"s_branch {ld}")
        a.label(lq)
        a(f"""
        v_min_u32 v{T0}, 35, v{LANE}
        v_mul_u32_u24 v{T1}, 57, v{T0}
        v_lshrrev_b32 v{T1}, 9, v{T1}
        v_mul_u32_u24 v{T3}, 9, v{T1}
        v_sub_u32 v{T0}, v{T0}, v{T3}
        v_lshrrev_b32 v{T3}, 1, v{T1}
        v_mul_u32_u24 v{T3}, 62, v{T3}
        v_add_u32 v{T1}, v{T1}, v{T3}
        s_lshl_b32 s{sT2}, s{sT2}, 1
        v_add_u32 v{T1}, s{sT2}, v{T1}
        s_cmp_eq_u32 s{sW}, 2
        s_cbranch_scc1 {lx}
        v_mul_u32_u24 v{T1}, 3840, v{T1}
        v_mul_u32_u24 v{T3}, 43, v{T0}
        v_lshrrev_b32 v{T3}, 7, v{T3}
        v_mul_u32_u24 v{T3}, 896, v{T3}
        v_lshl_add_u32 v{T0}, v{T0}, 7, v{T3}
        v_add_u32 v{T0}, v{T0}, v{T1}
        s_mul_i32 s{sT1}, s{sT1}, 320
        s_and_b32 s{sT1}, s{sT1}, 0xffffff80
        s_waitcnt lgkmcnt(0)
        """)
        srd(a, SPF, P_WQ, 640*3840)
        for s_ in range(PF//2): a(f"buffer_load_dword v255, v{T0}, {sr(SPF,4)}, s{sT1} offen {pff}\ns_add_u32 s{sT1}, s{sT1}, {128*3840}")
        a(f"s_branch {ld}")
        a.label(lx)
        a(f"v_mul_u32_u24 v{T1}, 3456, v{T1}\nv_lshl_add_u32 v{T0}, v{T0}, 7, v{T1}\ns_mul_i32 s{sT1}, s{sT1}, 768\ns_waitcnt lgkmcnt(0)")
        srd(a, SPF, P_W1, 640*3456)
        for s_ in range(PF//2): a(f"buffer_load_dword v255, v{T0}, {sr(SPF,4)}, s{sT1} offen {pff}\ns_add_u32 s{sT1}, s{sT1}, {128*3456}")
        a(f"s_branch {ld}")
        for l in range(54): assert (l*57)>>9 == l//9
    a.label(lw)
    a(f"s_waitcnt lgkmcnt(0)\ns_cmp_lg_u32 s2, 0\ns_cbranch_scc1 {ld}\ns_cmp_lg_u32 s{sW}, 7\ns_cbranch_scc1 {ld}")
    srd(a, SDBG, P_DBG, 256)
    a(f"""
    s_memrealtime {sr(sNON,2)}
    s_waitcnt lgkmcnt(0)
    s_or_b32 s{sNON}, s{sNON}, 1
    v_mov_b32 v{T0}, s{sNON}
    v_mov_b32 v{T1}, s{sNON+1}
    v_mov_b32 v{T2}, 0
    s_mov_b64 exec, 1
    buffer_store_dwordx2 {vr(T0,2)}, v{T2}, {sr(SDBG,4)}, 0 offen sc1
    s_mov_b64 exec, -1
    """)
    a.label(ld)
    S.start()
    srd(a, SX, P_X, XB)
    a(f"""
    s_and_b32 s{sT0}, s2, 1
    s_bfe_u32 s{sT1}, s2, 0x20001
    s_lshr_b32 s{sT2}, s2, 3
    s_cmp_ge_u32 s{sT2}, 16
    s_cbranch_scc1 Lffn
    """)
    def late_srds():
        srd(a, SHO, P_WS, HO_SZ); srd(a, SFL, P_WS, FL_SZ, WT_OFF); srd(a, SDBG, P_DBG, 256)
    def set_stage(c, st):
        slot = ((st+1) % 3) * c.stg
        a(f"s_add_u32 s{sFILL}, s{sW1K}, {slot}\ns_add_u32 s{sFW}, s{sWB}, {slot}\ns_mov_b32 s{sKX}, {128*st}\ns_add_u32 s{sKW}, s{sWO}, {64*st*c.wrowb}")
    def pre_loop(c, setup):
        a("s_barrier")
        set_stage(c, 0); emit(dmaA(c, a) + dmaB(c, a))
        S(1)
        late_srds(); setup()
        a("s_barrier")
        set_stage(c, 1); emit(dmaA(c, a) + dmaB(c, a))
        a(f"s_waitcnt vmcnt(6)")
        S(2)
        a("s_barrier")
        S(3)
        emit(reads(c, 0, 0))
        if c.duty and DPRE: emit([duty(a, DPRE)])
        side_loads(a, stat=False)
        p2_setup(a, c.VTF)
        a(f"v_mov_b32 v{T0}, 0")
        a(f"buffer_load_dwordx2 {vr(c.VN,2)}, v{T0}, {sr(SDBG,4)}, 0 offen sc1")
        set_stage(c, 2); emit(dmaA(c, a))
        a(f"s_mov_b32 s{sSLOT}, {c.stg}")
    def alloc_common(c):
        al = Alloc(11)
        c.VX = al(); c.VW = al()
        c.xb = [al(), al()]; c.hb = [al(), al()]; c.wb = [al() for _ in range(c.nF)]
        c.VTF = al(); c.VRA = al(); c.VPS = al(2, 4); c.VN = al(2, 2); c.REC = al(20, 4)
        assert c.VPS == 24
        return al
    def w_voff(c, P):
        a(f"""
        v_cmp_le_u32 vcc, {P}, v{LANE}
        v_mov_b32 v{T1}, {c.wrowb}
        v_subrev_u32 v{T0}, {P}, v{LANE}
        v_cndmask_b32 v{T0}, v{LANE}, v{T0}, vcc
        v_cndmask_b32 v{T1}, 0, v{T1}, vcc
        s_mov_b32 s{sWM}, -1
        s_mov_b32 s{sWM+1}, {(1 << (2*P-32)) - 1}
        s_mul_i32 s{sWB}, s{sW}, {2*c.wrow}
        s_add_u32 s{sWB}, s{sWB}, {c.xsz}
        s_mul_i32 s{sWO}, s{sWO}, {c.wrowb}
        """)
    def publish(younger):
        lp = a.uid("Lp")
        a(f"""
        s_waitcnt vmcnt({younger})
        s_barrier
        s_cmp_lg_u32 s{sW}, 0
        s_cbranch_scc1 {lp}
        v_mov_b32 v{T0}, s{sNON}
        v_mov_b32 v{T1}, s{sNON+1}
        v_mov_b32 v{T2}, {FLB}
        s_mov_b64 exec, 1
        buffer_store_dwordx2 {vr(T0,2)}, v{T2}, {sr(SFL,4)}, s{sKX} offen sc1
        s_mov_b64 exec, -1
        """)
        a.label(lp)
        S(7)
    c = Cfg()
    c.nM, c.nF, c.nh, c.wrow, c.wrowb, c.stg, c.xsz, c.nxm, c.duty = 4, 4, 2, 480, 3840, 49152, 18432, 2, False
    al = alloc_common(c)
    c.acc = [[al(4,4) for i in range(4)] for f in range(4)]
    c.acch = [al(4,4) for f in range(2)]
    lowtop = al.n
    al = Alloc(WREG)
    c.X = [[al(4,4) for i in range(4)] for s in range(2)]
    c.XH = [al(4,4) for s in range(2)]
    c.W = [[al(4,4) for f in range(4)] for s in range(2)]
    assert al.n == 208
    c.early = (list(range(20, 30)) + [18, 19] + list(range(30, 38)))[:nearly]
    a(f"""
    s_lshl_b32 s{sRB}, s{sT0}, 3
    s_and_b32 s{sT3}, s{sT2}, 7
    s_add_u32 s{sRB}, s{sRB}, s{sT3}
    s_lshl_b32 s{sCB}, s{sT1}, 1
    s_lshr_b32 s{sT3}, s{sT2}, 3
    s_add_u32 s{sCB}, s{sCB}, s{sT3}
    s_lshl_b32 s{sT3}, s{sRB}, 7
    s_lshl_b32 s{sT0}, s{sW}, 3
    s_add_u32 s{sT3}, s{sT3}, s{sT0}
    s_sub_u32 s{sT3}, s{sT3}, 16
    s_max_i32 s{sT0}, s{sT3}, 0
    s_mul_i32 s{sXO}, s{sT0}, 1280
    s_add_u32 s{sT3}, s{sT3}, 64
    s_mul_i32 s{sXO+1}, s{sT3}, 1280
    s_add_u32 s{sXO+2}, s{sXO+1}, 81920
    """)
    w_voff(c, 30)
    a(f"""
    v_mul_u32_u24 v{T2}, 26, v{T0}
    v_lshrrev_b32 v{T2}, 8, v{T2}
    v_mul_u32_u24 v{T2}, 1120, v{T2}
    v_lshl_add_u32 v{T0}, v{T0}, 4, v{T2}
    v_add_u32 v{c.VW}, v{T0}, v{T1}
    s_mul_i32 s{sT0}, s{sCB}, 160
    s_add_u32 s{sWO}, s{sWO}, s{sT0}
    """)
    srd(a, SW, P_WQ, 640*3840)
    def q_setup():
        a(f"s_lshr_b32 s{sMH}, s{sW}, 2\ns_and_b32 s{sT0}, s{sW}, 3\ns_lshl_b32 s{sT0}, s{sT0}, 2\ns_lshl_b32 s{sT1}, s{sMH}, 1")
        for f in range(4):
            a(f"s_xor_b32 s{sT2}, s{sT1}, {f}\ns_add_u32 s{sT2}, s{sT2}, s{sT0}\ns_min_u32 s{sNT+f}, s{sT2}, 14")
        a(f"""
        s_mov_b32 s{sMSK}, 0xfffefffe
        s_mov_b32 s{sMSK+1}, 0xfffefffe
        v_lshrrev_b32 v{T0}, 1, v{R}
        v_xor_b32 v{T0}, v{T0}, v{G}
        v_lshlrev_b32 v{T0}, 4, v{T0}
        v_lshl_add_u32 v{T0}, v{R}, 7, v{T0}
        v_add_u32 v{c.hb[0]}, {c.stg}, v{T0}
        v_xor_b32 v{c.hb[1]}, 64, v{c.hb[0]}
        s_lshl_b32 s{sT0}, s{sMH}, 13
        s_add_u32 s{sT0}, s{sT0}, 2048
        v_add_u32 v{c.xb[0]}, s{sT0}, v{c.hb[0]}
        v_add_u32 v{c.xb[1]}, s{sT0}, v{c.hb[1]}
        """)
        rho_local(a, T0, T1)
        a(f"v_mul_u32_u24 v{T0}, 480, v{T0}\nv_and_b32 v{T1}, 3, v{LANE}\nv_lshl_add_u32 v{T0}, v{T1}, 3, v{T0}")
        for f in range(4):
            a(f"s_lshl_b32 s{sT0}, s{sNT+f}, 5\ns_add_u32 s{sT0}, s{sT0}, {c.xsz+c.stg}\nv_add_u32 v{c.wb[f]}, s{sT0}, v{T0}")
        a(f"v_lshlrev_b32 v{c.VRA}, 4, v{R}")
        a(f"""
        s_lshl_b32 s{sT0}, s{sRB}, 7
        s_lshl_b32 s{sT1}, s{sMH}, 6
        s_add_u32 s{sT1}, s{sT1}, s{sT0}
        s_lshl_b32 s{sT1}, s{sT1}, 4
        s_add_u32 s{sPFO}, s{sT1}, {STO}
        s_sub_u32 s{sT0}, s{sT0}, 16
        s_max_i32 s{sT0}, s{sT0}, 0
        s_lshl_b32 s{sT0}, s{sT0}, 4
        s_add_u32 s{P_WQ}, s{sT0}, {STO}
        """)
        for r in range(c.acc[0][0], lowtop): a(f"v_mov_b32 v{r}, 0")
        for s in range(2):
            for r in range(4): a(f"v_mov_b32 v{c.XH[s]+r}, 0x3f803f80")
    pre_loop(c, q_setup)
    rec = [[f"buffer_load_dwordx4 {vr(c.REC+4*i,4)}, v{c.VRA}, {sr(SFL,4)}, s{sPFO} offen offset:{256*i} sc1"] for i in range(4)]
    rec.append([f"buffer_load_dwordx4 {vr(c.REC+16,4)}, v{c.VRA}, {sr(SFL,4)}, s{P_WQ} offen sc1"])
    CSR = lowtop; CA = 11; WA = 15
    assert CSR + 16 <= WREG and WA + 6 <= c.VTF
    c.tailx = [lines(f"""
        s_lshl_b32 s{sT3}, s{sMH}, 6
        s_add_u32 s{sT3}, s{sT3}, 16
        s_mul_i32 s{sT3}, s{sT3}, {RS}
        v_mul_u32_u24 v{T2}, {RS}, v{R}
        v_lshlrev_b32 v{T3}, 4, v{G}""")]
    for f in range(4):
        c.tailx.append(lines(f"""
        s_lshl_b32 s{sT0}, s{sNT+f}, 6
        s_add_u32 s{sT0}, s{sT0}, {L_CS}
        v_add_u32 v{CA+f}, s{sT0}, v{T3}
        s_mul_i32 s{sT0}, s{sNT+f}, 52
        s_lshr_b32 s{sT0}, s{sT0}, 8
        s_mul_i32 s{sT2}, s{sT0}, 5
        s_sub_u32 s{sT2}, s{sNT+f}, s{sT2}
        s_lshl_b32 s{sT2}, s{sT2}, 2
        s_mul_i32 s{sT0}, s{sT0}, 192
        v_add_u32 v{T0}, s{sT2}, v{G}"""))
        c.tailx.append(lines(f"""
        v_mul_u32_u24 v{T1}, 52, v{T0}
        v_lshrrev_b32 v{T1}, 8, v{T1}
        v_add_u32 v{T0}, v{T0}, v{T1}"""))
        c.tailx.append(lines(f"v_lshl_add_u32 v{T0}, v{T0}, 3, v{T2}") + ([f"v_add_u32 v{WA+4+f}, s{sT0}, v{T0}"] if f < 2 else []) +
                       lines(f"s_add_u32 s{sT0}, s{sT0}, s{sT3}\nv_add_u32 v{WA+f}, s{sT0}, v{T0}"))
    main_loop(a, c, S, "q", rec)
    a(f"s_not_b64 exec, {sr(sMSK,2)}")
    for f in range(2): a(f"ds_write_b128 v{CA+f}, {vr(c.acch[f],4)}")
    a("s_mov_b64 exec, -1")
    a(f"s_waitcnt vmcnt({c.yrec})")
    poll(a, sum(rec, []), [c.REC+4*i+2 for i in range(5)], True)
    a("s_waitcnt lgkmcnt(0)\ns_barrier")
    for f in range(4): a(f"ds_read_b128 {vr(CSR+4*f,4)}, v{CA+f}")
    rest = [p for p in list(range(30, 38)) + list(range(30)) if p not in c.early]
    I = Inter(a, [wfrag(p) for p in rest], qevery)
    TP = c.VPS
    for f in range(4):
        I(f"s_waitcnt lgkmcnt({3-f if f == 0 else 15})" if f == 0 else "s_nop 0")
        if f == 1: I("s_waitcnt lgkmcnt(5)")
        tl = [(c.acc[f][i], WA+f, i*16*RS, c.REC+4*i) for i in range(4)]
        if f < 2: tl.append((c.acch[f], WA+4+f, 0, c.REC+16))
        for (ac, ad, off, st) in tl:
            I(f"""
            v_pk_mul_f32 {vr(TP,2)}, {vr(CSR+4*f,2)}, {vr(st,2)} op_sel:[0,1] op_sel_hi:[1,1]
            v_pk_mul_f32 {vr(TP+2,2)}, {vr(CSR+4*f+2,2)}, {vr(st,2)} op_sel:[0,1] op_sel_hi:[1,1]
            v_pk_fma_f32 {vr(ac,2)}, {vr(ac,2)}, {vr(st,2)}, {vr(TP,2)} op_sel:[0,0,0] op_sel_hi:[1,0,1]
            v_pk_fma_f32 {vr(ac+2,2)}, {vr(ac+2,2)}, {vr(st,2)}, {vr(TP+2,2)} op_sel:[0,0,0] op_sel_hi:[1,0,1]
            v_cvt_pk_bf16_f32 v{ac}, v{ac}, v{ac+1}
            v_cvt_pk_bf16_f32 v{ac+1}, v{ac+2}, v{ac+3}
            ds_write_b64 v{ad}, {vr(ac,2)} offset:{off}
            """)
    al = Alloc(11)
    AB = al(); OV = al(); OV1 = al(); L31 = al()
    MX = al(); SM_ = al()
    Q = al(12, 2); KB = [al(10, 2) for _ in range(5)]
    L = al(8, 2); PL = al(8); PH = al(8); O = al(20, 2); TPa = al(4)
    assert al.n <= WREG, al.n
    I(f"""
    s_and_b32 s{sT0}, s{sW}, 1
    s_lshr_b32 s{sT3}, s{sW}, 1
    s_lshl_b32 s{sT2}, s{sT3}, 5
    s_add_u32 s{sT2}, s{sT2}, 2
    v_and_b32 v{L31}, 31, v{LANE}
    v_add_u32 v{T0}, s{sT2}, v{L31}
    v_mul_u32_u24 v{T0}, {RS}, v{T0}
    v_lshrrev_b32 v{T1}, 5, v{LANE}
    v_mul_u32_u24 v{T2}, 48, v{T1}
    s_mul_i32 s{sT2}, s{sT0}, 96
    v_add3_u32 v{AB}, v{T0}, v{T2}, s{sT2}
    s_lshl_b32 s{sT2}, s{sCB}, 1
    s_add_u32 s{sT2}, s{sT2}, s{sT0}
    s_mul_i32 s{sT2}, s{sT2}, 5
    v_lshl_add_u32 v{T1}, v{T1}, 1, s{sT2}
    v_bfe_u32 v{T0}, v{LANE}, 4, 1
    v_lshlrev_b32 v{T0}, 10, v{T0}
    v_lshl_add_u32 v{T0}, v{R}, 4, v{T0}
    v_lshrrev_b32 v{T2}, 2, v{T1}
    v_lshl_add_u32 v{T2}, v{T2}, 12, v{T0}
    v_and_b32 v{T3}, 3, v{T1}
    v_lshl_add_u32 v{OV}, v{T3}, 8, v{T2}
    v_add_u32 v{T1}, 1, v{T1}
    v_lshrrev_b32 v{T2}, 2, v{T1}
    v_lshl_add_u32 v{T2}, v{T2}, 12, v{T0}
    v_and_b32 v{T3}, 3, v{T1}
    v_lshl_add_u32 v{OV1}, v{T3}, 8, v{T2}
    s_lshl_b32 s{sKX}, s{sRB}, 1
    s_add_u32 s{sKX}, s{sKX}, s{sMH}
    s_mul_i32 s{sKX}, s{sKX}, {74*4096}
    s_and_b32 s{sT1}, s{sT3}, 1
    s_lshl_b32 s{sT1}, s{sT1}, 11
    s_add_u32 s{sKX}, s{sKX}, s{sT1}
    s_add_u32 s{sT2}, s{sT2}, 4
    s_lshr_b32 s{sKW}, s{sT2}, 2
    s_lshl_b32 s{sKW}, s{sKW}, 12
    s_and_b32 s{sT2}, s{sT2}, 3
    s_lshl_b32 s{sT2}, s{sT2}, 8
    s_add_u32 s{sKW}, s{sKW}, s{sT2}
    s_add_u32 s{sKW}, s{sKW}, s{sKX}
    s_waitcnt lgkmcnt(0)
    s_barrier
    """)
    OV2 = T0
    S(5)
    def rd(dst, off):
        return f"ds_read_b128 {vr(dst,4)}, v{AB} offset:{off}\nds_read_b128 {vr(dst+4,4)}, v{AB} offset:{off+16}\nds_read_b64 {vr(dst+8,2)}, v{AB} offset:{off+32}"
    offs = [(14-2*w)*RS+192 for w in range(8)] + [(14-2*w)*RS+384 for w in range(8)]
    issued = 0
    def issue(n):
        nonlocal issued
        for _ in range(n):
            if issued < 16:
                I(rd(KB[issued % 5], offs[issued])); issued += 1
    def need(idx): I(f"s_waitcnt lgkmcnt({3*(issued-1-idx)})")
    I(rd(Q, 14*RS)); issue(4)
    for w in range(8): I(f"v_mov_b32 v{L+w}, 0")
    for d in range(20): I(f"v_mov_b32 v{O+d}, 0")
    for wp in range(4):
        w0, w1 = 2*wp, 2*wp+1
        need(w1)
        for d in range(10):
            for w in (w0, w1): I(f"v_dot2c_f32_bf16 v{L+w}, v{Q+d}, v{KB[w%5]+d}")
        issue(3 if wp == 0 else 2)
    lm = a.uid("Lm")
    a(f"s_or_b32 s{sT2}, s{sRB}, s{sT3}\ns_cmp_lg_u32 s{sT2}, 0\ns_cbranch_scc1 {lm}")
    a(f"v_mov_b32 v{TPa}, {f32(-1e9)}")
    for w in range(1, 8):
        a(f"v_cmp_le_u32 vcc, {2*w}, v{L31}\ns_nop 1\nv_cndmask_b32 v{L+w}, v{TPa}, v{L+w}, vcc")
    a.label(lm)
    cexp = (20 ** -0.5) * math.log2(math.e)
    I(f"""
    v_max3_f32 v{MX}, v{L}, v{L+1}, v{L+2}
    v_max3_f32 v{SM_}, v{L+3}, v{L+4}, v{L+5}
    v_max3_f32 v{MX}, v{MX}, v{L+6}, v{L+7}
    v_max_f32 v{MX}, v{MX}, v{SM_}
    """)
    for w in range(8): I(f"v_sub_f32 v{L+w}, v{L+w}, v{MX}")
    for w in range(8): I(f"v_mul_f32 v{L+w}, {f32(cexp)}, v{L+w}")
    for w in range(8): I(f"v_exp_f32 v{L+w}, v{L+w}")
    I(f"""
    v_add_f32 v{TPa}, v{L}, v{L+1}
    v_add_f32 v{TPa+1}, v{L+2}, v{L+3}
    v_add_f32 v{TPa+2}, v{L+4}, v{L+5}
    v_add_f32 v{TPa+3}, v{L+6}, v{L+7}
    v_add_f32 v{TPa}, v{TPa}, v{TPa+1}
    v_add_f32 v{TPa+2}, v{TPa+2}, v{TPa+3}
    v_add_f32 v{SM_}, v{TPa}, v{TPa+2}
    v_rcp_f32 v{SM_}, v{SM_}
    s_nop 0
    """)
    for w in range(8): I(f"v_mul_f32 v{L+w}, v{L+w}, v{SM_}")
    for w in range(8): I(f"v_cvt_pk_bf16_f32 v{PL+w}, v{L+w}, 0\nv_cvt_pk_bf16_f32 v{PH+w}, 0, v{L+w}")
    for w in range(8):
        need(8+w)
        for d in range(10):
            I(f"v_dot2c_f32_bf16 v{O+2*d}, v{KB[(8+w)%5]+d}, v{PL+w}\nv_dot2c_f32_bf16 v{O+2*d+1}, v{KB[(8+w)%5]+d}, v{PH+w}")
        issue(1)
    I.flush()
    for u in (0,1,2,3,8,9,4,5,6,7): a(f"v_cvt_pk_bf16_f32 v{Q+u}, v{O+2*u}, v{O+2*u+1}")
    a(f"""
    buffer_store_dwordx4 {vr(Q,4)}, v{OV}, {sr(SHO,4)}, s{sKX} offen sc1
    v_permlane32_swap_b32 v{Q+8}, v{Q+10}
    v_permlane32_swap_b32 v{Q+9}, v{Q+11}
    buffer_store_dwordx4 {vr(Q+4,4)}, v{OV1}, {sr(SHO,4)}, s{sKX} offen sc1
    s_mov_b32 exec_hi, 0
    buffer_store_dwordx4 {vr(Q+8,4)}, v{OV2}, {sr(SHO,4)}, s{sKW} offen sc1
    s_mov_b64 exec, -1
    """)
    a(f"s_add_u32 s{sT0}, s{sRB}, 16\ns_lshl_b32 s{sT0}, s{sT0}, 7\ns_lshl_b32 s{sT1}, s{sCB}, 3\ns_add_u32 s{sKX}, s{sT0}, s{sT1}")
    S(6)
    a("s_barrier")
    emit([wfrag(p) for p in range(38, 38+NB)])
    publish(NB)
    emit([wfrag(p) for p in range(38+NB, 45)])
    a("s_branch Lphase2")
    a.label("Lffn")
    c = Cfg()
    c.nM, c.nF, c.nh, c.wrow, c.wrowb, c.stg, c.xsz, c.nxm, c.duty = 5, 3, 0, 384, 3456, 49152, 20480, 4, ('noduty' not in EXP)
    al = alloc_common(c)
    B1 = al(8, 2)
    c.acc = [[al(4,4) for i in range(5)] for f in range(3)]
    lowtop = al.n
    eal = al
    al = Alloc(WREG)
    c.X = [[al(4,4) for i in range(5)] for s in range(2)]
    c.W = [[al(4,4) for f in range(3)] for s in range(2)]
    assert al.n <= 208
    c.early = (list(range(20, 30)) + [18, 19] + list(range(30, 38)))[:nearly]
    def duty_setup():
        lq2, lx2, ld2 = a.uid("Ld"), a.uid("Ld"), a.uid("Ld")
        a(f"""
        s_lshr_b32 s{sT2}, s2, 3
        s_sub_u32 s{sT2}, s{sT2}, 16
        s_and_b32 s{sT0}, s2, 1
        s_bfe_u32 s{sT1}, s2, 0x20001
        s_cmp_ge_u32 s{sW}, 2
        s_cbranch_scc1 {lq2}
        s_mul_i32 s{sT0}, s{sT0}, 1008
        s_lshl_b32 s{sT2}, s{sT2}, 1
        s_add_u32 s{sT2}, s{sT2}, s{sW}
        s_mul_i32 s{sT2}, s{sT2}, 34
        s_add_u32 s{sT0}, s{sT0}, s{sT2}
        v_min_u32 v{T0}, 33, v{LANE}
        v_add_u32 v{T0}, s{sT0}, v{T0}
        v_mul_u32_u24 v254, 1280, v{T0}
        s_mov_b32 s{sPFS}, 128
        s_mov_b32 s{sPFO}, {128*PF}
        """)
        srd(a, STMP, P_X, XB)
        a(f"s_branch {ld2}")
        a.label(lq2)
        a(f"""
        v_min_u32 v{T0}, 35, v{LANE}
        v_mul_u32_u24 v{T1}, 57, v{T0}
        v_lshrrev_b32 v{T1}, 9, v{T1}
        v_mul_u32_u24 v{T3}, 9, v{T1}
        v_sub_u32 v{T0}, v{T0}, v{T3}
        s_lshl_b32 s{sT2}, s{sT2}, 2
        v_add_u32 v{T1}, s{sT2}, v{T1}
        s_cmp_ge_u32 s{sW}, 3
        s_cbranch_scc1 {lx2}
        v_mul_u32_u24 v{T1}, 3840, v{T1}
        v_mul_u32_u24 v{T3}, 43, v{T0}
        v_lshrrev_b32 v{T3}, 7, v{T3}
        v_mul_u32_u24 v{T3}, 896, v{T3}
        v_lshl_add_u32 v{T0}, v{T0}, 7, v{T3}
        v_add_u32 v254, v{T0}, v{T1}
        s_mul_i32 s{sT1}, s{sT1}, 320
        s_and_b32 s{sT1}, s{sT1}, 0xffffff80
        s_mov_b32 s{sPFS}, {64*3840}
        s_add_u32 s{sPFO}, s{sT1}, {64*3840*PF}
        """)
        srd(a, STMP, P_WQ, 640*3840)
        a(f"s_branch {ld2}")
        a.label(lx2)
        a(f"""
        v_mul_u32_u24 v{T1}, 3456, v{T1}
        v_lshl_add_u32 v254, v{T0}, 7, v{T1}
        s_mul_i32 s{sT1}, s{sT1}, 768
        s_mov_b32 s{sPFS}, {64*3456}
        s_add_u32 s{sPFO}, s{sT1}, {64*3456*PF}
        """)
        srd(a, STMP, P_W1, 640*3456)
        a.label(ld2)
    a(f"""
    s_sub_u32 s{sT2}, s{sT2}, 16
    s_lshl_b32 s{sT1}, s{sT1}, 4
    s_add_u32 s{sT1}, s{sT1}, s{sT2}
    s_cmp_ge_u32 s{sT1}, 63
    s_cbranch_scc1 Lidle
    s_mul_i32 s{sCB}, s{sT1}, 37
    s_lshr_b32 s{sCB}, s{sCB}, 8
    s_sub_u32 s{sT3}, s{sCB}, s{sT0}
    s_mul_i32 s{sT3}, s{sT3}, 7
    s_sub_u32 s{sRB}, s{sT1}, s{sT3}
    s_mul_i32 s{sT3}, s{sRB}, {FROWS}
    s_lshl_b32 s{sT0}, s{sW}, 3
    s_add_u32 s{sT3}, s{sT3}, s{sT0}
    s_mul_i32 s{sXO}, s{sT3}, 1280
    s_add_u32 s{sXO+1}, s{sXO}, 81920
    s_add_u32 s{sXO+2}, s{sXO}, 163840
    """)
    w_voff(c, 24)
    a(f"""
    s_and_b32 s{sT0}, s{sW}, 3
    s_lshl_b32 s{sT0}, s{sT0}, 1
    v_xor_b32 v{T0}, s{sT0}, v{T0}
    v_lshl_add_u32 v{c.VW}, v{T0}, 4, v{T1}
    s_mul_i32 s{sT0}, s{sCB}, 384
    s_add_u32 s{sWO}, s{sWO}, s{sT0}
    """)
    srd(a, SW, P_W1, 640*3456)
    RHO = c.hb[0]
    def f_setup():
        a(f"""
        s_lshr_b32 s{sMH}, s{sW}, 2
        s_bfe_u32 s{sT0}, s{sW}, 0x10001
        s_and_b32 s{sT1}, s{sW}, 1
        s_mul_i32 s{sT0}, s{sT0}, 6
        s_lshl_b32 s{sT2}, s{sT1}, 2
        s_add_u32 s{sNT}, s{sT0}, s{sT2}
        s_add_u32 s{sNT+1}, s{sNT}, 1
        s_add_u32 s{sNT+2}, s{sT0}, s{sT1}
        s_add_u32 s{sNT+2}, s{sNT+2}, 2
        s_cmp_eq_u32 s{sMH}, 0
        s_cselect_b32 s{sMSK}, -1, 0x7fff7fff
        s_cselect_b32 s{sMSK+1}, -1, 0x7fff7fff
        v_lshrrev_b32 v{T0}, 1, v{R}
        v_xor_b32 v{T0}, v{T0}, v{G}
        v_lshlrev_b32 v{T0}, 4, v{T0}
        v_lshl_add_u32 v{T0}, v{R}, 7, v{T0}
        s_mul_i32 s{sT0}, s{sMH}, {5*2048}
        s_add_u32 s{sT0}, s{sT0}, {c.stg}
        v_add_u32 v{c.xb[0]}, s{sT0}, v{T0}
        v_xor_b32 v{c.xb[1]}, 64, v{c.xb[0]}
        """)
        rho_local(a, T0, T1)
        a(f"""
        v_bfe_u32 v{T2}, v{T0}, 1, 2
        v_mul_u32_u24 v{T0}, 384, v{T0}
        v_and_b32 v{T1}, 3, v{LANE}
        v_lshl_add_u32 v{T0}, v{T1}, 3, v{T0}
        v_add_u32 v{T0}, {c.xsz+c.stg}, v{T0}
        """)
        for f in range(3):
            a(f"v_xor_b32 v{T1}, s{sNT+f}, v{T2}\nv_lshl_add_u32 v{c.wb[f]}, v{T1}, 5, v{T0}")
        a(f"""
        s_mul_i32 s{sT0}, s{sRB}, {FROWS}
        s_mul_i32 s{sT1}, s{sMH}, 80
        s_add_u32 s{sT0}, s{sT0}, s{sT1}
        v_add_u32 v{RHO}, s{sT0}, v{R}
        v_lshlrev_b32 v{T0}, 4, v{RHO}
        v_add_u32 v{c.VRA}, {STO}, v{T0}
        """)
        for r in range(c.acc[0][0], lowtop): a(f"v_mov_b32 v{r}, 0")
        for s in range(2):
            for r in range(4): a(f"v_mov_b32 v{c.X[s][4]+r}, 0x3f803f80")
        srd(a, STMP, P_B1, 3456)
        a(f"v_lshlrev_b32 v{T0}, 3, v{G}\ns_mul_i32 s{sT2}, s{sCB}, 384")
        for f in range(3):
            a(f"s_lshl_b32 s{sT1}, s{sNT+f}, 5\ns_add_u32 s{sT1}, s{sT1}, s{sT2}")
            a(f"buffer_load_dwordx2 {vr(B1+2*f,2)}, v{T0}, {sr(STMP,4)}, s{sT1} offen")
        if c.duty: duty_setup()
    pre_loop(c, f_setup)
    rec = [[f"v_add_u32 v{T3}, {256*i}, v{c.VRA}", f"v_min_u32 v{T3}, {STO+2047*16}, v{T3}",
            f"buffer_load_dwordx4 {vr(c.REC+4*i,4)}, v{T3}, {sr(SFL,4)}, 0 offen sc1"] for i in range(5)]
    CA = 17
    c.tailx = [[f"v_lshlrev_b32 v{T3}, 4, v{G}"]] + [lines(f"s_lshl_b32 s{sT0}, s{sNT+f}, 6\ns_add_u32 s{sT0}, s{sT0}, {L_CS}\nv_add_u32 v{CA+f}, s{sT0}, v{T3}") for f in range(3)]
    main_loop(a, c, S, "f", rec)
    a(f"s_waitcnt vmcnt({c.yrec})")
    poll(a, sum(rec, []), [c.REC+4*i+2 for i in range(5)], True)
    lc = a.uid("Lc")
    a(f"s_cmp_eq_u32 s{sMH}, 0\ns_cbranch_scc1 {lc}\ns_not_b64 exec, {sr(sMSK,2)}")
    for f in range(3): a(f"ds_write_b128 v{CA+f}, {vr(c.acc[f][4],4)}")
    a("s_mov_b64 exec, -1\ns_waitcnt lgkmcnt(0)")
    a.label(lc)
    a("s_barrier")
    CC = c.VPS; VA = 11
    CSR = eal(12, 2); TT = [eal(2,2) for _ in range(4)] + [12, B1+6]
    assert eal.n <= WREG, eal.n
    for f in range(3): a(f"ds_read_b128 {vr(CSR+4*f,4)}, v{CA+f}")
    BFp = [c.REC+4*i+2 for i in range(5)] + [B1+4]
    OUTP = [B1, 16]; SG = 20
    assert RHO == 15
    rest = [p for p in list(range(30, 45)) + list(range(30)) if p not in c.early]
    I = Inter(a, [wfrag(p) for p in rest], fevery)
    c0 = -2*math.sqrt(2/math.pi)*math.log2(math.e); c1 = c0*0.044715
    for j in range(5): I(f"v_lshlrev_b32 v{BFp[j]}, 16, v{B1+j}\nv_and_b32 v{BFp[j]+1}, 0xffff0000, v{B1+j}")
    I(f"v_lshlrev_b32 v{B1+4}, 16, v{B1+5}\nv_and_b32 v{B1+5}, 0xffff0000, v{B1+5}")
    I(f"v_mov_b32 v{CC}, {f32(c0)}\nv_mov_b32 v{CC+1}, {f32(c1)}\nv_mov_b32 v{CC+2}, 1.0")
    I(f"""
    v_and_b32 v{T2}, 15, v{RHO}
    v_lshlrev_b32 v{T2}, 4, v{T2}
    v_lshl_add_u32 v{T1}, v{G}, 8, v{T2}
    v_and_b32 v{T3}, 1, v{G}
    v_lshl_add_u32 v14, v{T3}, 8, v{T2}
    v_lshrrev_b32 v{T0}, 4, v{RHO}
    v_lshrrev_b32 v{T3}, 5, v{LANE}
    v_add_u32 v{RHO}, v{T0}, v{T3}
    s_mul_i32 s{sT2}, s{sCB}, 6
    s_add_u32 s{sT2}, s{sT2}, 20
    s_lshr_b32 s{sT0}, s{sNT}, 1
    s_add_u32 s{sT0}, s{sT0}, s{sT2}
    s_lshl_b32 s{sKX}, s{sT0}, 12
    s_lshr_b32 s{sT0}, s{sNT+2}, 1
    s_add_u32 s{sT0}, s{sT0}, s{sT2}
    s_lshl_b32 s{sKW}, s{sT0}, 12
    s_and_b32 s{sT0}, s{sNT+2}, 1
    s_lshl_b32 s{sT0}, s{sT0}, 9
    s_add_u32 s{sKW}, s{sKW}, s{sT0}
    s_mov_b32 s{sT3}, {74*4096}
    s_waitcnt lgkmcnt(0)
    """)
    a(f"s_cmp_eq_u32 s{sMH}, 0\ns_cselect_b32 s{sMSK}, -1, 0x00ff00ff\ns_mov_b32 s{sMSK+1}, s{sMSK}")
    def gelu_pair(h, cs, b, st, t, dst):
        return [f"v_pk_fma_f32 {vr(t,2)}, {vr(cs,2)}, {vr(st,2)}, {vr(b,2)} op_sel:[0,1,0] op_sel_hi:[1,1,1]",
                f"v_pk_fma_f32 {vr(h,2)}, {vr(h,2)}, {vr(st,2)}, {vr(t,2)} op_sel:[0,0,0] op_sel_hi:[1,0,1]",
                f"v_pk_mul_f32 {vr(t,2)}, {vr(h,2)}, {vr(h,2)}",
                f"v_pk_fma_f32 {vr(t,2)}, {vr(t,2)}, {vr(CC,2)}, {vr(CC,2)} op_sel:[0,1,0] op_sel_hi:[1,1,0]",
                f"v_pk_mul_f32 {vr(t,2)}, {vr(t,2)}, {vr(h,2)}",
                f"v_exp_f32 v{t}, v{t}",
                f"v_exp_f32 v{t+1}, v{t+1}",
                f"v_pk_add_f32 {vr(t,2)}, {vr(t,2)}, {vr(CC+2,2)} op_sel_hi:[1,0]",
                f"v_rcp_f32 v{t}, v{t}",
                f"v_rcp_f32 v{t+1}, v{t+1}",
                f"v_pk_mul_f32 {vr(t,2)}, {vr(t,2)}, {vr(h,2)}",
                f"v_cvt_pk_bf16_f32 v{dst}, v{t}, v{t+1}"]
    def blkaddr(dst, tile, low):
        I(f"""
        v_lshrrev_b32 v{T2}, 2, v{tile}
        v_mul_lo_u32 v{T2}, v{T2}, s{sT3}
        v_and_b32 v{T3}, 3, v{tile}
        v_lshl_add_u32 v{T2}, v{T3}, 10, v{T2}
        v_add_u32 v{dst}, v{T2}, v{low}
        """)
    for i in range(5):
        o = OUTP[i & 1]
        streams = [gelu_pair(c.acc[f][i]+2*hp, CSR+4*f+2*hp, BFp[2*f+hp], c.REC+4*i, TT[2*f+hp],
                             (o+2*f+hp) if f < 2 else (SG+2*(i&1)+hp)) for f in range(3) for hp in range(2)]
        for k in range(len(streams[0])):
            for s in streams: I(s[k])
        blkaddr(VA, T0, T1)
        I(f"v_add_u32 v{T0}, 1, v{T0}")
        if i == 4: a(f"s_mov_b64 exec, {sr(sMSK,2)}")
        a(f"buffer_store_dwordx4 {vr(o,4)}, v{VA}, {sr(SHO,4)}, s{sKX} offen sc1")
        if i == 4: a("s_mov_b64 exec, -1")
        if i & 1 or i == 4:
            a(f"v_permlane32_swap_b32 v{SG}, v{SG+2}\nv_permlane32_swap_b32 v{SG+1}, v{SG+3}")
            blkaddr(VA, RHO, 14)
            I(f"v_add_u32 v{RHO}, 2, v{RHO}")
            if i == 4: a(f"s_mov_b32 exec_lo, s{sMSK}\ns_mov_b32 exec_hi, 0")
            a(f"buffer_store_dwordx4 {vr(SG,4)}, v{VA}, {sr(SHO,4)}, s{sKW} offen sc1")
            if i == 4: a("s_mov_b64 exec, -1")
    left = len(I.g)
    a(f"s_lshl_b32 s{sT0}, s{sRB}, 7\ns_lshl_b32 s{sT1}, s{sCB}, 3\ns_add_u32 s{sKX}, s{sT0}, s{sT1}")
    S(6)
    nb = min(left, NB)
    I.flush(left - nb)
    publish(nb)
    I.flush()
    a("s_branch Lphase2")
    a.label("Lidle")
    late_srds()
    if c.duty:
        duty_setup()
        emit([duty(a, 10-PF)])
    side_loads(a)
    p2_setup(a, 11)
    side_work(a, 0, 12, spart=False)
    a(f"v_mov_b32 v14, 0\nv_mov_b32 v15, 0\ns_waitcnt vmcnt(0)\ns_barrier")
    nonce_get(a, 14, 12)
    a("s_nop 1")
    side_work(a, None, 12, tpart=False)
    poll(a, [f"buffer_load_dwordx2 v[14:15], v11, {sr(SFL,4)}, 0 offen sc1"], [14], False)
    for l in p2_ldsbases(): a(l)
    emit([wfrag(p) for p in c.early + rest])
    a.label("Lphase2")
    l9 = a.uid("L9")
    a(f"s_cmp_ge_u32 s{sW}, 2\ns_cbranch_scc1 {l9}")
    emit([wfrag(p) for p in range(45, 50)])
    a.label(l9)
    al = Alloc(12)
    VFD = al(2, 2); VLA = al(); VLB = al()
    acc = [[al(4,4) for m in range(4)] for n in range(5)]
    RING = [al(16, 4), al(16, 4)]
    XR = al(6, 2)
    assert al.n <= WREG, al.n
    S(8)
    poll(a, [f"buffer_load_dwordx2 {vr(VFD,2)}, v{VF}, {sr(SFL,4)}, 0 offen sc1"], [VFD], False)
    S(9)
    Wslot = [WREG+20*t for t in range(6)]
    abuf = {0: RING[0], 1: RING[1], 2: RING[0], 3: Wslot[0], 4: RING[1], 5: Wslot[1], 6: RING[0], 7: Wslot[0], 8: RING[1], 9: Wslot[1]}
    issue_after = {0: [2, 3], 1: [4, 5], 2: [6], 3: [7], 4: [8], 5: [9]}
    wloc = {t: Wslot[t] for t in range(6)}
    wloc.update({6: Wslot[2], 7: Wslot[3], 8: Wslot[4], 9: Wslot[5]})
    B2 = [Wslot[0]+16, Wslot[0]+18, Wslot[1]+16]
    def aload(t):
        a(f"s_lshl_b32 s{sTM}, s{sK+t}, 12")
        for m in range(4): a(f"buffer_load_dwordx4 {vr(abuf[t]+4*m,4)}, v{VL}, {sr(SPF,4)}, s{sTM} offen offset:{1024*m} sc1")
    ops = []
    for t in (0, 1): aload(t); ops += [t]*4
    SOX, SOB = [sKX, sKW, sDELTA], [sSLOT, sW1K, sMH]
    a(f"v_add_u32 v{VLA}, s{sFILL}, v{VL}\nv_add_u32 v{VLB}, s{sFW}, v{VL}\ns_mul_i32 s{sT0}, s{sC2}, 160")
    for j in range(3):
        a(f"""
        s_add_u32 s{sT1}, s{sW}, {8*j}
        s_mul_i32 s{sT2}, s{sT1}, 52
        s_lshr_b32 s{sT2}, s{sT2}, 8
        s_mul_i32 s{sT3}, s{sT2}, 5
        s_sub_u32 s{sT1}, s{sT1}, s{sT3}
        s_lshl_b32 s{sT1}, s{sT1}, 5
        s_mul_i32 s{sT2}, s{sT2}, 20480
        s_add_u32 s{SOX[j]}, s{sT2}, s{sT1}
        s_add_u32 s{SOB[j]}, s{sT0}, s{sT1}
        """)
    srd(a, STMP, P_B2, 1280)
    srd(a, SW, P_OUT, XB)
    for t in range(10):
        if t == 9: a(f"s_cmp_ge_u32 s{sW}, 2\ns_cbranch_scc1 Lp2done")
        younger = len(ops) - 1 - max(i for i, o in enumerate(ops) if o == t)
        a(f"s_waitcnt vmcnt({younger})" + (" lgkmcnt(0)" if t == 6 else ""))
        for n in range(5):
            for m in range(4): a(mfma(acc[n][m], wloc[t]+4*n, abuf[t]+4*m, t == 0))
        if 2 <= t <= 5:
            for n in range(5):
                phi = (t+4)*5+n
                ad, off = (VLA, (phi-30)*1024) if phi < 38 else (VLB, (phi-38)*1024)
                a(f"ds_read_b128 {vr(wloc[t+4]+4*n,4)}, v{ad} offset:{off}")
        for tt in issue_after.get(t, []): aload(tt); ops += [tt]*4
        if t == 5:
            a(f"v_lshlrev_b32 v{T1}, 3, v{G}")
            for j in range(3): a(f"buffer_load_dwordx2 {vr(XR+2*j,2)}, v{VXO}, {sr(SX,4)}, s{SOX[j]} offen"); ops.append('x')
            for j in range(3): a(f"buffer_load_dwordx2 {vr(B2[j],2)}, v{T1}, {sr(STMP,4)}, s{SOB[j]} offen"); ops.append('b')
        S(40+t)
    a.label("Lp2done")
    a("s_nop 7")
    for m in range(4):
        for n in range(5):
            q = m*5+n
            ad, off = (VLA, q*1024) if q < 8 else (VLB, (q-8)*1024)
            a(f"ds_write_b128 v{ad}, {vr(acc[n][m],4)} offset:{off}")
    a(f"""
    s_lshl_b32 s{sT0}, s{sW}, 10
    v_add_u32 v{T0}, s{sT0}, v{VL}
    v_add_u32 v{T2}, {L_A}, v{T0}
    v_add_u32 v{T3}, {4*12288}, v{T0}
    """)
    S(52)
    a("s_waitcnt lgkmcnt(0)\ns_barrier")
    S(53)
    P = [[acc[0][0] + (j*8+s)*4 for s in range(8)] for j in range(3)]
    assert P[2][7]+4 <= XR
    def rdtile(j):
        for s in range(8):
            if j == 0: ad, off = T2, s*8192
            else: ad, off = (T0 if s < 4 else T3), (s%4)*12288 + (j-1)*8192
            a(f"ds_read_b128 {vr(P[j][s],4)}, v{ad} offset:{off}")
    L2E = f32(-math.log2(math.e))
    def fin(j):
        p = P[j]
        Sx, Y, Z = p[0], p[2], p[3]
        for h in (0, 2):
            for k in (0, 2, 4, 6): a(f"v_pk_add_f32 {vr(p[k]+h,2)}, {vr(p[k]+h,2)}, {vr(p[k+1]+h,2)}")
        def unp(x, q):
            a(f"v_lshlrev_b32 v{x}, 16, v{q}\nv_and_b32 v{x+1}, 0xffff0000, v{q}\nv_lshlrev_b32 v{x+2}, 16, v{q+1}\nv_and_b32 v{x+3}, 0xffff0000, v{q+1}")
        unp(Z, B2[j])
        for h in (0, 2):
            a(f"v_pk_add_f32 {vr(p[2]+h,2)}, {vr(p[2]+h,2)}, {vr(p[4]+h,2)}")
            a(f"v_pk_add_f32 {vr(p[6]+h,2)}, {vr(p[6]+h,2)}, {vr(Z+h,2)}")
        for h in (0, 2): a(f"v_pk_add_f32 {vr(Y+h,2)}, {vr(Y+h,2)}, {vr(p[6]+h,2)}")
        for r in range(4): a(f"v_mul_f32 v{Z+r}, {L2E}, v{Y+r}")
        for r in range(4): a(f"v_exp_f32 v{Z+r}, v{Z+r}")
        for r in range(4): a(f"v_add_f32 v{Z+r}, 1.0, v{Z+r}")
        for r in range(4): a(f"v_rcp_f32 v{Z+r}, v{Z+r}")
        for h in (0, 2): a(f"v_pk_mul_f32 {vr(Y+h,2)}, {vr(Y+h,2)}, {vr(Sx+h,2)}")
        unp(p[4], XR+2*j)
        for r in range(4): a(f"v_fma_f32 v{Y+r}, v{Y+r}, v{Z+r}, v{p[4]+r}")
        a(f"v_cvt_pk_bf16_f32 v{Sx}, v{Y}, v{Y+1}\nv_cvt_pk_bf16_f32 v{Sx+1}, v{Y+2}, v{Y+3}")
        a(f"buffer_store_dwordx2 {vr(Sx,2)}, v{VXO}, {sr(SW,4)}, s{SOX[j]} offen")
    rdtile(0); rdtile(1)
    a("s_waitcnt vmcnt(0) lgkmcnt(8)")
    l3 = a.uid("L3")
    a(f"s_cmp_ge_u32 s{sW}, 4\ns_cbranch_scc1 {l3}")
    rdtile(2)
    a.label(l3)
    fin(0)
    a("s_waitcnt lgkmcnt(0)")
    fin(1)
    a(f"s_cmp_ge_u32 s{sW}, 4\ns_cbranch_scc1 Lfin")
    fin(2)
    a.label("Lfin")
    S.finish(54)
    a.label("Lend")
    a("s_endpgm")
    ref = open(f"cdna_kernels/{NAME}.s.ref").read().split("\n")
    hdr = [l for l in ref if l.startswith(";") and "@launch" not in l]
    out = "\n".join(hdr) + f"\n; @launch grid=(256,1,1) block=(512,1,1) lds={LDS_TOTAL}\n"
    out += '.amdgcn_target "amdgcn-amd-amdhsa--gfx950"\n' + khead(name) + a.text() + kd(name, 256, 102)
    return out

if __name__ == "__main__":
    path = sys.argv[1]
    kw = eval("dict(" + (sys.argv[2] if len(sys.argv) > 2 else "") + ")")
    open(path, "w").write(gen(**kw))
```

```python
from asmlib import *
import math, sys
NAME = "recurrent_scan__sliding_local_dilated__dense_activation_gelu__prompt"
XB = 2048*640*2
HO_SZ = 32*74*4096
WT_OFF, WT_SZ = 0xB00000, 8*74*5*1024
FLB = 0x400000
TFO, STO = FLB+0x1000, FLB+0x4000
FL_SZ = FLB + 0x10000
BIG = 0x7ff00000
RS = 592
L_TST, L_CS, L_A = 147456, 93184, 98304
LDS_TOTAL = 163840
FROWS = 152

SX, SW, SHO, SPF, SWT, SFL, SDBG, STMP = 4, 8, 16, 20, 24, 28, 32, 36
sXO = 12; sWO = 15
P_X, P_WQ, P_WO, P_W1, P_B1, P_W2, P_B2, P_OUT, P_DBG, P_WS = 40, 42, 44, 48, 50, 52, 54, 56, 58, 60
(sW, sRB, sCB, sI, sKX, sKW, sTM, sFILL, sDELTA, sSLOT, sW1K, sT0, sT1, sT2, sT3, sMH) = range(62, 78)
sNT = 78; sNON = 82; sMSK = 84; sR2, sC2 = 86, 87; sK = 88; sSP = 98; sN2 = 99
sWM = 100
sFW, sWB = 3, 47
sHF = 43
sPFO, sPFS = 46, 50
sRM, sRH = 48, 49
sTS = [44, 45, 52, 53]
VF, LANE, G, R, T0, T1, T2, T3, VST, VL, VXO = 0, 1, 2, 3, 4, 5, 6, 7, 8, 9, 10
WREG = 136
SIDE = 232
EXP = set(); PFF = ""; DN = 2; DMASK = 0b101; DPRE = 2; SP = dict(tw=1, nonce=3, sl=3, sw=5, tf=5); TFL = "nt"; RECIT = 9

def mfma(d, a_, b_, c0=False): return f"v_mfma_f32_16x16x32_bf16 {vr(d,4)}, {vr(a_,4)}, {vr(b_,4)}, " + ("0" if c0 else vr(d,4))
def chunks(l, n): return [l[i:i+n] for i in range(0, len(l), n)]
def merge(groups, n): return [sum(g, []) for g in chunks(groups, n)]
def lines(t): return [l.strip() for l in t.strip("\n").split("\n") if l.strip()]
def srd(a, d, p, size, off=None):
    if off is None: a(f"s_mov_b32 s{d}, s{p}\ns_mov_b32 s{d+1}, s{p+1}")
    else: a(f"s_add_u32 s{d}, s{p}, {off}\ns_addc_u32 s{d+1}, s{p+1}, 0")
    a(f"s_mov_b32 s{d+2}, {size}\ns_mov_b32 s{d+3}, 0x00020000")

class St:
    def __init__(s, a, on): s.a, s.on = a, on
    def start(s):
        if s.on: s.a(f"s_memtime s[0:1]\nv_mov_b32 v{VST}, 0\ns_waitcnt lgkmcnt(0)\nv_writelane_b32 v{VST}, s0, 0\ns_memrealtime s[0:1]\ns_waitcnt lgkmcnt(0)\nv_writelane_b32 v{VST}, s0, 62")
    def __call__(s, i):
        if s.on: s.a(f"s_memtime s[0:1]\ns_waitcnt lgkmcnt(0)\nv_writelane_b32 v{VST}, s0, {i}")
    def dyn(s, base):
        if s.on and ((base == 30 and 'nobar' not in EXP) or 'lst' in EXP):
            s.a(f"s_memtime s[0:1]\ns_add_u32 m0, s{sI}, {base}\ns_waitcnt lgkmcnt(0)\nv_writelane_b32 v{VST}, s0, m0")
    def finish(s, i):
        if not s.on: return
        s.a(f"""
        s_waitcnt vmcnt(0)
        s_memtime s[0:1]
        s_waitcnt lgkmcnt(0)
        v_writelane_b32 v{VST}, s0, {i}
        s_memrealtime s[0:1]
        s_waitcnt lgkmcnt(0)
        v_writelane_b32 v{VST}, s0, 63
        s_lshl_b32 s3, s2, 3
        s_add_u32 s3, s3, s{sW}
        s_lshl_b32 s3, s3, 8
        s_add_u32 s3, s3, {STAMP_OFF}
        s_add_u32 s{STMP}, s{P_WS}, s3
        s_addc_u32 s{STMP+1}, s{P_WS+1}, 0
        s_mov_b32 s{STMP+2}, 256
        s_mov_b32 s{STMP+3}, 0x00020000
        v_lshlrev_b32 v{T0}, 2, v{LANE}
        buffer_store_dword v{VST}, v{T0}, {sr(STMP,4)}, 0 offen
        """)
class Cfg: pass

def dma_x(c, a, u):
    g = [f"s_add_u32 m0, s{sFILL}, {u*8192}", f"s_add_u32 s{sTM}, s{sXO+u}, s{sKX}", f"buffer_load_dwordx4 v{c.VX}, {sr(SX,4)}, s{sTM} offen lds"]
    if u == 2:
        lab = a.uid("Lsk")
        g = [f"s_cmp_ge_u32 s{sW}, {c.nxm}", f"s_cbranch_scc1 {lab}"] + g + [lab + ":"]
    return g
def dma_w(c, a, u):
    return [f"s_add_u32 m0, s{sFW}, {u*16*c.wrow}", f"s_add_u32 s{sTM}, s{sKW}, {u*16*c.wrowb}", f"s_mov_b64 exec, {sr(sWM,2)}",
            f"buffer_load_dwordx4 v{c.VW}, {sr(SW,4)}, s{sTM} offen lds", "s_mov_b64 exec, -1"]
def dmaA(c, a): return [dma_x(c,a,0), dma_x(c,a,1), dma_x(c,a,2), dma_w(c,a,0)]
def dmaB(c, a): return [dma_w(c,a,1), dma_w(c,a,2), dma_w(c,a,3)]

def reads(c, st, s):
    r = []
    for i in range(c.nM):
        ins = f"ds_read_b128 {vr(c.X[st][i],4)}, v{c.xb[s]} offset:{i*2048}"
        if (not c.nh) and i == c.nM-1: r.append([f"s_mov_b64 exec, {sr(sMSK,2)}", ins, "s_mov_b64 exec, -1"])
        else: r.append([ins])
    if c.nh: r.append([f"s_mov_b64 exec, {sr(sMSK,2)}", f"ds_read_b128 {vr(c.XH[st],4)}, v{c.hb[s]}", "s_mov_b64 exec, -1"])
    for f in range(c.nF):
        r.append([f"ds_read_b64_tr_b16 {vr(c.W[st][f],2)}, v{c.wb[f]} offset:{s*32*c.wrow}"])
        r.append([f"ds_read_b64_tr_b16 {vr(c.W[st][f]+2,2)}, v{c.wb[f]} offset:{s*32*c.wrow+8*c.wrow}"])
    return r
def mfmas(c, st, c0=False):
    m = []
    for f in range(c.nF):
        for i in range(c.nM): m.append(mfma(c.acc[f][i], c.W[st][f], c.X[st][i], c0))
        if f < c.nh: m.append(mfma(c.acch[f], c.W[st][f], c.XH[st], c0))
    return m
def spread(main, items):
    out = []
    for i, m in enumerate(main):
        out.append(m)
        for p, g in items:
            if p == i or (i == len(main)-1 and p > i): out.extend(g)
    return out
def even(groups, n, lo=1):
    k = len(groups)
    return [(lo + (j*(n-lo))//k, g) for j, g in enumerate(groups)] if k else []

def stat_row(a):
    a(f"""
    s_and_b32 s{sT0}, s2, 1
    s_lshl_b32 s{sT0}, s{sT0}, 10
    s_bfe_u32 s{sT2}, s2, 0x20001
    s_lshl_b32 s{sT2}, s{sT2}, 8
    s_add_u32 s{sT0}, s{sT0}, s{sT2}
    s_and_b32 s{sT2}, s2, 0xf8
    s_add_u32 s{sT0}, s{sT0}, s{sT2}
    s_sub_u32 s{sT2}, s{sW}, 6
    s_lshl_b32 s{sT2}, s{sT2}, 2
    s_add_u32 s{sT0}, s{sT0}, s{sT2}
    """)
def nonce_get(a, vN, vPS):
    l0, l1, l2, l3 = a.uid("Lno"), a.uid("Lno"), a.uid("Lno"), a.uid("Lno")
    assert vN == vPS + 2 and vPS % 2 == 0
    a(f"s_mov_b32 s{sSP}, 0")
    a.label(l0)
    a(f"""
    v_readfirstlane_b32 s{sNON}, v{vN}
    v_readfirstlane_b32 s{sNON+1}, v{vN+1}
    s_add_u32 s{sSP}, s{sSP}, 1
    s_cmp_gt_u32 s{sSP}, 100000
    s_cbranch_scc1 {l1}
    s_cmp_lg_u32 s{sNON}, 0
    s_cbranch_scc1 {l1}
    v_mov_b32 v{T0}, 0
    buffer_load_dwordx2 {vr(vN,2)}, v{T0}, {sr(SDBG,4)}, 0 offen sc1
    s_waitcnt vmcnt(0)
    s_branch {l0}
    """)
    a.label(l1)
    a(f"""
    s_cmp_lg_u32 s{sW}, 0
    s_cbranch_scc1 {l2}
    s_lshl_b32 s{sT1}, s2, 3
    v_mov_b32 v{T0}, {TFO}
    s_mov_b64 exec, 1
    buffer_store_dwordx2 {vr(vN,2)}, v{T0}, {sr(SFL,4)}, s{sT1} offen sc1
    s_mov_b64 exec, -1
    """)
    a.label(l2)
    a(f"s_cmp_lt_u32 s{sW}, 6\ns_cbranch_scc1 {l3}")
    stat_row(a)
    a(f"""
    s_lshl_b32 s{sT0}, s{sT0}, 4
    s_add_u32 s{sT0}, s{sT0}, {STO}
    v_lshlrev_b32 v{T0}, 4, v{G}
    s_mov_b32 exec_lo, 0x00010001
    s_mov_b32 exec_hi, 0x00010001
    buffer_store_dwordx4 {vr(vPS,4)}, v{T0}, {sr(SFL,4)}, s{sT0} offen sc1
    s_mov_b64 exec, -1
    """)
    a.label(l3)
def poll(a, loads, cmps, preloaded):
    l0, l1, l2 = a.uid("Lpo"), a.uid("Lpo"), a.uid("Lpo")
    a(f"s_mov_b32 s{sSP}, 0")
    if preloaded: a(f"s_branch {l2}")
    a.label(l0)
    for l in loads: a(l)
    a("s_waitcnt vmcnt(0)")
    a.label(l2)
    for k, v in enumerate(cmps):
        if k == 0: a(f"v_cmp_eq_u64 vcc, {sr(sNON,2)}, {vr(v,2)}")
        else: a(f"v_cmp_eq_u64 {sr(sT1,2)}, {sr(sNON,2)}, {vr(v,2)}\ns_nop 0\ns_and_b64 vcc, vcc, {sr(sT1,2)}")
    a(f"""
    s_add_u32 s{sSP}, s{sSP}, 1
    s_cmp_gt_u32 s{sSP}, 100000
    s_cbranch_scc1 {l1}
    s_cmp_eq_u64 vcc, -1
    s_cbranch_scc0 {l0}
    """)
    a.label(l1)

def wfrag(phi):
    t, n = divmod(phi, 5)
    pre = [f"s_mul_i32 s{sTM}, s{sK+t}, 5120"]
    if phi < 30:
        if n < 4: return pre + [f"buffer_load_dwordx4 {vr(WREG+4*phi,4)}, v{VL}, {sr(SWT,4)}, s{sTM} offen offset:{1024*n} sc1"]
        return pre + [f"s_add_u32 s{sTM}, s{sTM}, 4096", f"buffer_load_dwordx4 {vr(WREG+4*phi,4)}, v{VL}, {sr(SWT,4)}, s{sTM} offen sc1"]
    base, o = (sFILL, (phi-30)*1024) if phi < 38 else (sFW, (phi-38)*1024)
    return [f"s_add_u32 m0, s{base}, {o}"] + pre + [f"s_add_u32 s{sTM}, s{sTM}, {1024*n}", f"buffer_load_dwordx4 v{VL}, {sr(SWT,4)}, s{sTM} offen sc1 lds"]
def p2_ldsbases():
    return [f"s_lshl_b32 s{sFILL}, s{sW}, 13", f"s_add_u32 s{sFILL}, s{sFILL}, {L_A}", f"s_mul_i32 s{sFW}, s{sW}, 12288"]

def stage_set(c, st):
    slot = ((st+1) % 3) * c.stg
    return lines(f"s_add_u32 s{sFILL}, s{sW1K}, {slot}\ns_add_u32 s{sFW}, s{sWB}, {slot}\ns_mov_b32 s{sKX}, {128*st}\ns_add_u32 s{sKW}, s{sWO}, {64*st*c.wrowb}")
def duty(a, stages, it=None):
    if not stages: return []
    lab = a.uid("Ldu")
    g = []
    if it is not None: g += [f"s_cmp_lg_u32 s{sI}, {it}", f"s_cbranch_scc1 {lab}"]
    g += [f"s_cmp_ge_u32 s{sW}, 4", f"s_cbranch_scc1 {lab}"]
    for st in stages:
        g += [f"s_mul_i32 s{sTM}, s{sPFS}, {st}", f"s_add_u32 s{sTM}, s{sTM}, s{sPFO}", f"buffer_load_dword v255, v254, {sr(STMP,4)}, s{sTM} offen {PFF}"]
    return g + [lab + ":"]

def iteration(a, c, S, kind, extra1=(), extra2=(), pre2=None):
    bases = list(c.xb) + (list(c.hb) if c.nh else []) + list(c.wb)
    prio = 'noprio' not in EXP
    a("s_waitcnt lgkmcnt(0)")
    M = mfmas(c, 0, kind == 0); n = len(M)
    rb = merge(reads(c, 1, 1), 2)
    items = [(k, g) for k, g in enumerate(rb)]
    if prio: items = [(0, ["s_setprio 1"]), (n//2, ["s_setprio 0"])] + items
    if kind != 9:
        items.append((0, [f"s_add_u32 s{sT1}, s{sSLOT}, {c.stg}", f"s_cmp_eq_u32 s{sT1}, {3*c.stg}", f"s_cselect_b32 s{sT1}, 0, s{sT1}", f"s_sub_u32 s{sDELTA}, s{sT1}, s{sSLOT}"]))
        up = chunks([f"v_add_u32 v{b}, s{sDELTA}, v{b}" for b in bases], 2)
        for k, g in enumerate(up): items.append((len(rb) + k, g))
    if kind in ('loop', 7): items += even(dmaB(c, a), n-4, 2)
    if kind == 0:
        A2 = dmaA(c, a); A2[0] = stage_set(c, 2) + A2[0]
        items += even(dmaB(c, a) + A2 + dmaB(c, a), n-4, 0)
    items += even(list(extra1), n-2, 1)
    if kind in ('loop', 0):
        items.append((n-4, [f"s_add_u32 s{sFILL}, s{sSLOT}, s{sW1K}", f"s_add_u32 s{sFW}, s{sSLOT}, s{sWB}"]))
        items.append((n-3, [f"s_add_u32 s{sKX}, s{sKX}, 128", f"s_add_u32 s{sKW}, s{sKW}, {64*c.wrowb}"]))
    if kind != 9: items.append((n-3, [f"s_mov_b32 s{sSLOT}, s{sT1}"]))
    for l in spread(M, items): a(l)
    S.dyn(10)
    if kind in ('loop', 0, 7): a(f"s_waitcnt vmcnt(6) lgkmcnt(0)")
    elif kind == 8: a(f"s_waitcnt vmcnt({c.y8}) lgkmcnt(0)")
    else: a("s_waitcnt lgkmcnt(0)")
    S.dyn(20)
    a("s_barrier")
    S.dyn(30)
    if prio: a("s_setprio 3")
    if pre2: pre2()
    M = mfmas(c, 1)
    items = []
    if kind != 9: items = [(k, g) for k, g in enumerate(merge(reads(c, 0, 0), 2))]
    if prio: items.append((n//2, ["s_setprio 2"]))
    if kind in ('loop', 0):
        items += even(dmaA(c, a), n, 2)
        if kind == 0: items.append((0, duty(a, c.duty.get(0))))
        else:
            for it in range(1, 7): items.append((0, duty(a, c.duty.get(it), it)))
    items += even(list(extra2), n, 0)
    for l in spread(M, items): a(l)

def main_loop(a, c, S, tag, rec_loads):
    iteration(a, c, S, 0)
    nonce_get(a, c.VN, c.VPS)
    a(f"s_mov_b32 s{sI}, 1")
    a.label(f"Lloop_{tag}")
    iteration(a, c, S, 'loop')
    lx = a.uid("Ls")
    tf = f"buffer_load_dwordx2 {vr(c.VN,2)}, v{c.VTF}, {sr(SFL,4)}, 0 offen sc1"
    a(f"s_cmp_lg_u32 s{sI}, 5\ns_cbranch_scc1 {lx}")
    a(tf)
    a.label(lx)
    a(f"s_add_u32 s{sI}, s{sI}, 1\ns_cmp_lt_u32 s{sI}, 7\ns_cbranch_scc1 Lloop_{tag}")
    early = [wfrag(p) for p in c.early]
    e = chunks(early, (len(early)+4)//5)
    def pre7():
        poll(a, [tf], [c.VN], True)
        for l in p2_ldsbases(): a(l)
    iteration(a, c, S, 7, extra2=e[0], pre2=pre7)
    a(f"s_add_u32 s{sI}, s{sI}, 1")
    c.y8 = len(e[0]) + len(e[1]) + len(rec_loads)
    iteration(a, c, S, 8, extra1=rec_loads + e[1], extra2=e[2])
    a(f"s_add_u32 s{sI}, s{sI}, 1")
    iteration(a, c, S, 9, extra1=e[3], extra2=e[4] + c.tailx)
    a("s_setprio 0")
    c.yrec = len(e[1]) + len(e[2]) + len(e[3]) + len(e[4])
    S(4)

def rho_local(a, d, t):
    a(f"v_bfe_u32 v{d}, v{LANE}, 2, 3\nv_lshrrev_b32 v{t}, 5, v{LANE}\nv_lshl_add_u32 v{d}, v{t}, 4, v{d}")

def side_loads(a, stat=True):
    ld, lst, lh, lj = a.uid("Lt"), a.uid("Lt"), a.uid("Lt"), a.uid("Lt")
    sU, sKp, sCh = sK, sK+1, sK+2
    A0, A1, ST0, ST1 = SIDE, SIDE+1, SIDE+2, SIDE+3
    a(f"s_cmp_ge_u32 s{sW}, 6\ns_cbranch_scc1 {lst}")
    a(f"""
    s_mul_i32 s{sU}, s2, 3
    s_add_u32 s{sU}, s{sU}, s{sW}
    s_sub_u32 s{sU}, s{sU}, 3
    s_min_u32 s{sU}, s{sU}, 739
    s_mul_i32 s{sKp}, s{sU}, 6554
    s_lshr_b32 s{sKp}, s{sKp}, 16
    s_mul_i32 s{sT0}, s{sKp}, 10
    s_sub_u32 s{sCh}, s{sU}, s{sT0}
    v_lshrrev_b32 v{T0}, 5, v{LANE}
    s_cmp_ge_u32 s{sKp}, 20
    s_cbranch_scc1 {lh}
    """)
    for e, (A, ST) in enumerate(((A0, ST0), (A1, ST1))):
        a(f"""
        s_lshl_b32 s{sT0}, s{sKp}, 2
        s_add_u32 s{sT0}, s{sT0}, {2*e}
        v_add_u32 v{T1}, s{sT0}, v{T0}
        v_mul_u32_u24 v{T2}, 205, v{T1}
        v_lshrrev_b32 v{T2}, 10, v{T2}
        v_mul_u32_u24 v{T3}, 5, v{T2}
        v_sub_u32 v{T1}, v{T1}, v{T3}
        v_mul_u32_u24 v{A}, 40, v{T2}
        v_lshrrev_b32 v{T2}, 1, v{T1}
        v_mul_u32_u24 v{T2}, 20, v{T2}
        v_and_b32 v{T3}, 1, v{T1}
        v_lshl_add_u32 v{T2}, v{T3}, 3, v{T2}
        v_cmp_eq_u32 vcc, 4, v{T1}
        v_mov_b32 v{ST}, 20
        s_nop 0
        v_cndmask_b32 v{T2}, v{T2}, 16, vcc
        v_cndmask_b32 v{ST}, 4, v{ST}, vcc
        v_add_u32 v{A}, v{A}, v{T2}
        """)
    a("s_waitcnt lgkmcnt(0)")
    srd(a, SPF, P_WO, 640*1280)
    a(f"s_branch {lj}")
    a.label(lh)
    a(f"""
    s_sub_u32 s{sT0}, s{sKp}, 20
    s_mul_i32 s{sT1}, s{sT0}, 86
    s_lshr_b32 s{sT1}, s{sT1}, 8
    s_mul_i32 s{sT1}, s{sT1}, 3
    s_sub_u32 s{sT1}, s{sT0}, s{sT1}
    s_lshl_b32 s{sT0}, s{sT0}, 5
    v_lshl_add_u32 v{A0}, v{T0}, 2, s{sT0}
    s_cmp_eq_u32 s{sT1}, 1
    s_cselect_b32 s{sT1}, 16, 8
    s_cselect_b32 s{sT2}, 8, 16
    v_add_u32 v{A1}, s{sT1}, v{A0}
    v_mov_b32 v{ST0}, s{sT2}
    v_mov_b32 v{ST1}, s{sT2}
    """)
    a("s_waitcnt lgkmcnt(0)")
    srd(a, SPF, P_W2, 1728*1280)
    a.label(lj)
    a(f"""
    v_bfe_u32 v{T1}, v{LANE}, 3, 2
    v_and_b32 v{T2}, 7, v{LANE}
    v_lshlrev_b32 v{T2}, 4, v{T2}
    s_lshl_b32 s{sT0}, s{sCh}, 7
    s_lshl_b32 s{sT1}, s{sW}, 12
    """)
    for q in range(4):
        A, ST = ((A0, ST0), (A1, ST1))[q & 1]
        a(f"v_add_u32 v{T3}, v{A}, v{T1}")
        if q >> 1: a(f"v_add_u32 v{T3}, v{T3}, v{ST}")
        a(f"v_mul_u32_u24 v{T3}, 1280, v{T3}\nv_add_u32 v{T3}, v{T3}, v{T2}\ns_add_u32 m0, s{sT1}, {L_TST-3*4096+1024*q}\ns_nop 0")
        a(f"buffer_load_dwordx4 v{T3}, {sr(SPF,4)}, s{sT0} offen {TFL} lds")
    a(f"s_mul_i32 s{sT2}, s{sKp}, 5\ns_lshl_b32 s{sT3}, s{sCh}, 2")
    for t in range(4):
        a(f"""
        s_add_u32 s{sT0}, s{sT3}, {t}
        s_mul_i32 s{sT1}, s{sT0}, 52
        s_lshr_b32 s{sT1}, s{sT1}, 8
        s_mul_i32 s{sT1}, s{sT1}, 365
        s_add_u32 s{sT0}, s{sT0}, s{sT1}
        s_add_u32 s{sT0}, s{sT0}, s{sT2}
        s_lshl_b32 s{sTS[t]}, s{sT0}, 10
        """)
    a(f"s_branch {ld}")
    a.label(lst)
    if stat: stat_loads(a, False)
    a.label(ld)
def stat_loads(a, guard=True):
    stat_row(a)
    a(f"s_mul_i32 s{sT0}, s{sT0}, 1280\nv_mul_u32_u24 v{T0}, 1280, v{G}\nv_lshl_add_u32 v{T0}, v{R}, 4, v{T0}\ns_waitcnt lgkmcnt(0)")
    srd(a, SX, P_X, XB)
    for i in range(5): a(f"buffer_load_dwordx4 {vr(SIDE+4*i,4)}, v{T0}, {sr(SX,4)}, s{sT0} offen offset:{256*i}")
for u in range(1001): assert (u*6554)>>16 == u//10
for u in range(80): assert (u*205)>>10 == u//5
for u in range(54): assert (u*86)>>8 == u//3
for N in range(40): assert (N*52)>>8 == N//5

def side_work(a, younger, vPS):
    lab, ls = a.uid("Ltw"), a.uid("Ltw")
    a(f"s_cmp_lt_u32 s{sW}, 3\ns_cbranch_scc1 {lab}")
    a(f"s_waitcnt vmcnt({younger})")
    a(f"s_cmp_ge_u32 s{sW}, 6\ns_cbranch_scc1 {ls}")
    t_part(a)
    a(f"s_branch {lab}")
    a.label(ls)
    s_part(a, vPS)
    a.label(lab)
def t_part(a):
    tmp = SIDE
    a(f"""
    v_lshrrev_b32 v{T0}, 2, v{LANE}
    v_lshlrev_b32 v{T0}, 7, v{T0}
    v_and_b32 v{T1}, 3, v{LANE}
    v_lshl_add_u32 v{T0}, v{T1}, 3, v{T0}
    s_lshl_b32 s{sT0}, s{sW}, 12
    s_add_u32 s{sT0}, s{sT0}, {L_TST-3*4096}
    v_add_u32 v{T0}, s{sT0}, v{T0}
    """)
    for t in range(4):
        a(f"ds_read_b64_tr_b16 {vr(tmp+4*t,2)}, v{T0} offset:{32*t}")
        a(f"ds_read_b64_tr_b16 {vr(tmp+4*t+2,2)}, v{T0} offset:{32*t+2048}")
    for t in range(4):
        a(f"s_waitcnt lgkmcnt({6-2*t})\nbuffer_store_dwordx4 {vr(tmp+4*t,4)}, v{VL}, {sr(SFL,4)}, s{sTS[t]} offen sc1")
def s_part(a, vPS):
    tmp = SIDE
    s, q = vPS, vPS+1
    a(f"v_mov_b32 v{s}, 0\nv_mov_b32 v{q}, 0\nv_mov_b32 v{T0}, 0x3f803f80")
    for j in range(20):
        a(f"v_dot2c_f32_bf16 v{s}, v{tmp+j}, v{T0}\nv_dot2c_f32_bf16 v{q}, v{tmp+j}, v{tmp+j}")
    a("s_nop 2")
    for sh in (8, 4, 2, 1):
        a(f"v_add_f32_dpp v{s}, v{s}, v{s} row_ror:{sh} row_mask:0xf bank_mask:0xf")
        a(f"v_add_f32_dpp v{q}, v{q}, v{q} row_ror:{sh} row_mask:0xf bank_mask:0xf")
        a("s_nop 0")
    a(f"""
    v_mul_f32 v{s}, {f32(1/640)}, v{s}
    v_mul_f32 v{q}, {f32(1/640)}, v{q}
    v_fma_f32 v{q}, -v{s}, v{s}, v{q}
    v_max_f32 v{q}, 0, v{q}
    v_cvt_pk_bf16_f32 v{T0}, v{s}, v{q}
    v_lshlrev_b32 v{T1}, 16, v{T0}
    v_and_b32 v{q}, 0xffff0000, v{T0}
    v_add_f32 v{q}, {f32(1e-5)}, v{q}
    v_cvt_pk_bf16_f32 v{q}, v{q}, v{q}
    v_and_b32 v{q}, 0xffff0000, v{q}
    v_sqrt_f32 v{q}, v{q}
    s_nop 0
    v_cvt_pk_bf16_f32 v{q}, v{q}, v{q}
    v_and_b32 v{q}, 0xffff0000, v{q}
    v_rcp_f32 v{s}, v{q}
    s_nop 0
    v_mul_f32 v{q}, v{T1}, v{s}
    v_sub_f32 v{q}, 0, v{q}
    """)

def p2_setup(a, VTF):
    a(f"""
    s_and_b32 s{sT0}, s2, 7
    s_lshl_b32 s{sR2}, s{sT0}, 2
    s_bfe_u32 s{sT1}, s2, 0x20003
    s_add_u32 s{sR2}, s{sR2}, s{sT1}
    s_lshr_b32 s{sC2}, s2, 5
    s_cmp_lt_u32 s{sW}, 2
    s_cselect_b32 s{sN2}, 10, 9
    s_lshl_b32 s{sT1}, s{sT1}, 1
    s_add_u32 s{sT1}, s{sT1}, s{sC2}
    s_cmp_ge_u32 s{sT1}, s{sN2}
    s_cselect_b32 s{sT2}, s{sN2}, 0
    s_sub_u32 s{sK}, s{sT1}, s{sT2}
    """)
    for t in range(1, 10):
        a(f"s_add_u32 s{sK+t}, s{sK+t-1}, 1\ns_cmp_eq_u32 s{sK+t}, s{sN2}\ns_cselect_b32 s{sK+t}, 0, s{sK+t}")
    a(f"s_cmp_lt_u32 s{sW}, 2\ns_cselect_b32 s{sK+9}, s{sK+9}, 0x10000")
    a(f"""
    s_mul_i32 s{sT3}, s{sW}, 9
    s_min_u32 s{sT2}, s{sW}, 2
    s_add_u32 s{sT3}, s{sT3}, s{sT2}
    v_lshrrev_b32 v{T0}, 1, v{LANE}
    s_sub_u32 s{sT2}, s{sN2}, 1
    v_min_u32 v{T0}, s{sT2}, v{T0}
    v_add_u32 v{T0}, s{sT3}, v{T0}
    v_mul_u32_u24 v{T0}, 10, v{T0}
    s_mul_i32 s{sT2}, s{sC2}, 5
    s_lshr_b32 s{sT2}, s{sT2}, 2
    v_and_b32 v{T1}, 1, v{LANE}
    v_add3_u32 v{T0}, v{T0}, v{T1}, s{sT2}
    v_mul_u32_u24 v{T0}, 21846, v{T0}
    v_lshrrev_b32 v{T0}, 16, v{T0}
    v_lshlrev_b32 v{T0}, 3, v{T0}
    v_add_u32 v{VTF}, {TFO}, v{T0}
    s_mul_i32 s{sT2}, s{sC2}, 74
    s_add_u32 s{sT2}, s{sT2}, s{sT3}
    s_mul_i32 s{sT2}, s{sT2}, 5120
    s_add_u32 s{sT2}, s{sT2}, {WT_OFF}
    s_add_u32 s{SWT}, s{P_WS}, s{sT2}
    s_addc_u32 s{SWT+1}, s{P_WS+1}, 0
    s_mul_i32 s{SWT+2}, s{sN2}, 5120
    s_mov_b32 s{SWT+3}, 0x00020000
    s_mul_i32 s{sT2}, s{sR2}, 74
    s_add_u32 s{sT2}, s{sT2}, s{sT3}
    s_lshl_b32 s{sT2}, s{sT2}, 12
    s_add_u32 s{SPF}, s{P_WS}, s{sT2}
    s_addc_u32 s{SPF+1}, s{P_WS+1}, 0
    s_lshl_b32 s{SPF+2}, s{sN2}, 12
    s_mov_b32 s{SPF+3}, 0x00020000
    """)
    ly, lyd = a.uid("Ly"), a.uid("Ly")
    a(f"""
    s_cmp_ge_u32 s{sW}, 2
    s_cbranch_scc1 {ly}
    s_lshr_b32 s{sT0}, s{sR2}, 1
    s_lshl_b32 s{sT0}, s{sT0}, 7
    s_lshl_b32 s{sT1}, s{sW}, 5
    s_add_u32 s{sT0}, s{sT0}, s{sT1}
    s_add_u32 s{sT0}, s{sT0}, {FLB+16*128}
    v_and_b32 v{T0}, 3, v{LANE}
    v_lshl_add_u32 v{VF}, v{T0}, 3, s{sT0}
    s_branch {lyd}
    """)
    a.label(ly)
    a(f"""
    s_lshl_b32 s{sT0}, s{sR2}, 6
    s_add_u32 s{sT1}, s{sT0}, 63
    s_mul_i32 s{sT0}, s{sT0}, 27595
    s_lshr_b32 s{sT0}, s{sT0}, 22
    s_mul_i32 s{sT1}, s{sT1}, 27595
    s_lshr_b32 s{sT1}, s{sT1}, 22
    s_sub_u32 s{sT1}, s{sT1}, s{sT0}
    s_lshl_b32 s{sT1}, s{sT1}, 7
    s_lshl_b32 s{sT0}, s{sT0}, 7
    s_sub_u32 s{sT2}, s{sW}, 2
    s_mul_i32 s{sT2}, s{sT2}, 3
    s_lshr_b32 s{sT2}, s{sT2}, 1
    s_lshl_b32 s{sT2}, s{sT2}, 3
    s_add_u32 s{sT0}, s{sT0}, s{sT2}
    s_add_u32 s{sT0}, s{sT0}, {FLB}
    v_and_b32 v{T0}, 1, v{LANE}
    v_lshlrev_b32 v{T0}, 3, v{T0}
    v_bfe_u32 v{T1}, v{LANE}, 1, 1
    v_mul_u32_u24 v{T1}, s{sT1}, v{T1}
    v_add3_u32 v{VF}, v{T0}, v{T1}, s{sT0}
    """)
    a.label(lyd)
    a(f"""
    s_lshl_b32 s{sT0}, s{sR2}, 6
    v_add_u32 v{T0}, s{sT0}, v{R}
    v_mul_u32_u24 v{T0}, 1280, v{T0}
    v_lshl_add_u32 v{T0}, v{G}, 3, v{T0}
    s_mul_i32 s{sT0}, s{sC2}, 160
    v_add_u32 v{VXO}, s{sT0}, v{T0}
    """)
for u in range(740): assert (u*21846)>>16 == u//3
for x in range(2048): assert (x*27595)>>22 == x//152

class Inter:
    def __init__(s, a, groups, every): s.a, s.g, s.e, s.n = a, list(groups), every, 0
    def __call__(s, txt):
        for l in lines(txt):
            s.a(l); s.n += 1
            if s.n % s.e == 0 and s.g:
                for x in s.g.pop(0): s.a(x)
    def flush(s, keep=0):
        while len(s.g) > keep:
            for x in s.g.pop(0): s.a(x)

def gen(stamps=False, PF=4, pff="", qevery=14, fevery=11, exp="", NB=4, dq={}, df={'pre':[4,5],0:[6,7],2:[8,9]}, tfl="nt", nearly=10):
    global EXP, PFF, DN, DMASK, DPRE, TFL
    EXP = set(exp.split()); PFF = pff; TFL = tfl
    assert PF % 2 == 0 and sorted(sum(dq.values(), []) + sum(df.values(), [])) == list(range(PF, 10))
    a = Asm(); S = St(a, stamps)
    name = NAME + "_kernel"
    def emit(groups):
        for g in groups:
            for l in g: a(l)
    a(f"s_cmp_ge_u32 s2, 256\ns_cbranch_scc1 Lend")
    a(f"s_load_dwordx16 s[40:55], s[0:1], 0\ns_load_dwordx4 s[56:59], s[0:1], 64\ns_load_dwordx2 s[60:61], s[0:1], 80")
    a(f"""
    v_lshrrev_b32 v{T0}, 6, v0
    v_and_b32 v{LANE}, 63, v0
    v_readfirstlane_b32 s{sW}, v{T0}
    v_lshrrev_b32 v{G}, 4, v{LANE}
    v_and_b32 v{R}, 15, v{LANE}
    v_lshlrev_b32 v{VL}, 4, v{LANE}
    s_lshl_b32 s{sW1K}, s{sW}, 10
    s_mov_b32 s{sI}, 0
    v_lshrrev_b32 v{T0}, 3, v{LANE}
    v_mul_u32_u24 v{T0}, 1280, v{T0}
    s_lshl_b32 s{sT0}, s{sW}, 2
    v_add_u32 v{T1}, s{sT0}, v{G}
    v_xor_b32 v{T1}, v{T1}, v{LANE}
    v_and_b32 v{T1}, 7, v{T1}
    v_lshl_add_u32 v11, v{T1}, 4, v{T0}
    s_and_b32 s{sT0}, s{sW}, 1
    s_lshl_b32 s{sT0}, s{sT0}, 1
    s_and_b32 s{sT1}, s{sW}, 2
    s_lshl_b32 s{sT1}, s{sT1}, 2
    s_add_u32 s{sT0}, s{sT0}, s{sT1}
    s_and_b32 s{sT1}, s{sW}, 4
    s_add_u32 s{sWO}, s{sT0}, s{sT1}
    """)
    def pf_addr(nrow_cu, kper, nst, cidx_s, VD):
        pass
    lx, lq, ld, lw = a.uid("Lpf"), a.uid("Lpf"), a.uid("Lpf"), a.uid("Lpf")
    a(f"""
    s_lshr_b32 s{sT2}, s2, 3
    s_and_b32 s{sT0}, s2, 1
    s_bfe_u32 s{sT1}, s2, 0x20001
    """)
    if PF:
        a(f"""
        s_cmp_ge_u32 s{sW}, 3
        s_cbranch_scc1 {lw}
        s_cmp_ge_u32 s{sW}, 1
        s_cbranch_scc1 {lq}
        s_mul_i32 s{sT0}, s{sT0}, 1008
        s_mul_i32 s{sT2}, s{sT2}, 34
        s_add_u32 s{sT0}, s{sT0}, s{sT2}
        v_min_u32 v{T0}, 33, v{LANE}
        v_add_u32 v{T0}, s{sT0}, v{T0}
        v_mul_u32_u24 v{T0}, 1280, v{T0}
        s_waitcnt lgkmcnt(0)
        """)
        srd(a, SX, P_X, XB)
        for s_ in range(PF): a(f"buffer_load_dword v255, v{T0}, {sr(SX,4)}, 0 offen offset:{128*s_} {pff}")
        a(f"s_branch {ld}")
        a.label(lq)
        a(f"""
        v_min_u32 v{T0}, 35, v{LANE}
        v_mul_u32_u24 v{T1}, 57, v{T0}
        v_lshrrev_b32 v{T1}, 9, v{T1}
        v_mul_u32_u24 v{T3}, 9, v{T1}
        v_sub_u32 v{T0}, v{T0}, v{T3}
        v_lshrrev_b32 v{T3}, 1, v{T1}
        v_mul_u32_u24 v{T3}, 62, v{T3}
        v_add_u32 v{T1}, v{T1}, v{T3}
        s_lshl_b32 s{sT2}, s{sT2}, 1
        v_add_u32 v{T1}, s{sT2}, v{T1}
        s_cmp_eq_u32 s{sW}, 2
        s_cbranch_scc1 {lx}
        v_mul_u32_u24 v{T1}, 3840, v{T1}
        v_mul_u32_u24 v{T3}, 43, v{T0}
        v_lshrrev_b32 v{T3}, 7, v{T3}
        v_mul_u32_u24 v{T3}, 896, v{T3}
        v_lshl_add_u32 v{T0}, v{T0}, 7, v{T3}
        v_add_u32 v{T0}, v{T0}, v{T1}
        s_mul_i32 s{sT1}, s{sT1}, 320
        s_and_b32 s{sT1}, s{sT1}, 0xffffff80
        s_waitcnt lgkmcnt(0)
        """)
        srd(a, SPF, P_WQ, 640*3840)
        for s_ in range(PF//2): a(f"buffer_load_dword v255, v{T0}, {sr(SPF,4)}, s{sT1} offen {pff}\ns_add_u32 s{sT1}, s{sT1}, {128*3840}")
        a(f"s_branch {ld}")
        a.label(lx)
        a(f"v_mul_u32_u24 v{T1}, 3456, v{T1}\nv_lshl_add_u32 v{T0}, v{T0}, 7, v{T1}\ns_mul_i32 s{sT1}, s{sT1}, 768\ns_waitcnt lgkmcnt(0)")
        srd(a, SPF, P_W1, 640*3456)
        for s_ in range(PF//2): a(f"buffer_load_dword v255, v{T0}, {sr(SPF,4)}, s{sT1} offen {pff}\ns_add_u32 s{sT1}, s{sT1}, {128*3456}")
        a(f"s_branch {ld}")
        for l in range(54): assert (l*57)>>9 == l//9
    a.label(lw)
    ln = a.uid("Ln")
    a(f"s_cmp_lg_u32 s2, 0\ns_cbranch_scc1 {ln}\ns_cmp_lg_u32 s{sW}, 7\ns_cbranch_scc1 {ln}\ns_waitcnt lgkmcnt(0)")
    srd(a, SDBG, P_DBG, 256)
    a(f"""
    s_memrealtime {sr(sNON,2)}
    s_waitcnt lgkmcnt(0)
    s_or_b32 s{sNON}, s{sNON}, 1
    v_mov_b32 v{T0}, s{sNON}
    v_mov_b32 v{T1}, s{sNON+1}
    v_mov_b32 v{T2}, 0
    s_mov_b64 exec, 1
    buffer_store_dwordx2 {vr(T0,2)}, v{T2}, {sr(SDBG,4)}, 0 offen sc1
    s_mov_b64 exec, -1
    """)
    a.label(ln)
    side_loads(a)
    a.label(ld)
    S.start()
    srd(a, SX, P_X, XB)
    a(f"""
    s_and_b32 s{sT0}, s2, 1
    s_bfe_u32 s{sT1}, s2, 0x20001
    s_lshr_b32 s{sT2}, s2, 3
    s_cmp_ge_u32 s{sT2}, 16
    s_cbranch_scc1 Lffn
    """)
    def late_srds():
        srd(a, SHO, P_WS, HO_SZ); srd(a, SFL, P_WS, FL_SZ, WT_OFF); srd(a, SDBG, P_DBG, 256)
    def set_stage(c, st): emit([stage_set(c, st)])
    def pretouch(flagoff_s):
        lp = a.uid("Lpt")
        a(f"s_cmp_lg_u32 s{sW}, 7\ns_cbranch_scc1 {lp}")
        stat_row(a)
        a(f"""
        s_lshl_b32 s{sT0}, s{sT0}, 4
        s_add_u32 s{sT0}, s{sT0}, {STO}
        v_mov_b32 v{T0}, s{sT0}
        s_lshl_b32 s{sT0}, s2, 3
        s_add_u32 s{sT0}, s{sT0}, {TFO}
        v_writelane_b32 v{T0}, s{sT0}, 1
        """)
        if flagoff_s is not None:
            a(f"s_add_u32 s{sT0}, s{flagoff_s}, {FLB}\nv_writelane_b32 v{T0}, s{sT0}, 2")
        a(f"buffer_load_dword v255, v{T0}, {sr(SFL,4)}, 0 offen sc1")
        a.label(lp)
    def pre_loop(c, setup):
        emit([duty(a, c.duty.get('pre0'))])
        late_srds()
        if 'nopt' not in EXP: pretouch(sHF)
        setup()
        p2_setup(a, c.VTF)
        S(1)
        a("s_barrier")
        set_stage(c, 0); emit(dmaA(c, a) + dmaB(c, a))
        side_work(a, 6, c.VPS)
        a(f"v_mov_b32 v{T0}, 0")
        a(f"buffer_load_dwordx2 {vr(c.VN,2)}, v{T0}, {sr(SDBG,4)}, 0 offen sc1")
        a("s_barrier")
        set_stage(c, 1); emit(dmaA(c, a))
        a(f"s_waitcnt vmcnt(4)")
        S(2)
        a("s_barrier")
        S(3)
        emit(reads(c, 0, 0))
        emit([duty(a, c.duty.get('pre'))])
        a(f"s_mov_b32 s{sSLOT}, {c.stg}")
    def alloc_common(c):
        al = Alloc(11)
        c.VX = al(); c.VW = al()
        c.xb = [al(), al()]; c.hb = [al(), al()]; c.wb = [al() for _ in range(c.nF)]
        c.VTF = al(); c.VRA = al(); c.VPS = al(2, 4); c.VN = al(2, 2); c.REC = al(20, 4)
        assert c.VPS == 24
        return al
    def w_voff(c, P):
        a(f"""
        v_cmp_le_u32 vcc, {P}, v{LANE}
        v_mov_b32 v{T1}, {c.wrowb}
        v_subrev_u32 v{T0}, {P}, v{LANE}
        v_cndmask_b32 v{T0}, v{LANE}, v{T0}, vcc
        v_cndmask_b32 v{T1}, 0, v{T1}, vcc
        s_mov_b32 s{sWM}, -1
        s_mov_b32 s{sWM+1}, {(1 << (2*P-32)) - 1}
        s_mul_i32 s{sWB}, s{sW}, {2*c.wrow}
        s_add_u32 s{sWB}, s{sWB}, {c.xsz}
        s_mul_i32 s{sWO}, s{sWO}, {c.wrowb}
        """)
    def publish(younger):
        lp = a.uid("Lp")
        a(f"""
        s_waitcnt vmcnt({younger})
        s_barrier
        s_cmp_lg_u32 s{sW}, 0
        s_cbranch_scc1 {lp}
        v_mov_b32 v{T0}, s{sNON}
        v_mov_b32 v{T1}, s{sNON+1}
        v_mov_b32 v{T2}, {FLB}
        s_mov_b64 exec, 1
        buffer_store_dwordx2 {vr(T0,2)}, v{T2}, {sr(SFL,4)}, s{sHF} offen sc1
        s_mov_b64 exec, -1
        """)
        a.label(lp)
        S(7)
    def duty_setup():
        lq2, lx2, ld2 = a.uid("Ld"), a.uid("Ld"), a.uid("Ld")
        a(f"""
        s_bfe_u32 s{sT2}, s2, 0x40003
        s_and_b32 s{sT0}, s2, 1
        s_bfe_u32 s{sT1}, s2, 0x20001
        s_cmp_ge_u32 s{sW}, 2
        s_cbranch_scc1 {lq2}
        s_mul_i32 s{sT0}, s{sT0}, 1008
        s_lshl_b32 s{sT2}, s{sT2}, 1
        s_add_u32 s{sT2}, s{sT2}, s{sW}
        s_mul_i32 s{sT2}, s{sT2}, 34
        s_add_u32 s{sT0}, s{sT0}, s{sT2}
        v_min_u32 v{T0}, 33, v{LANE}
        v_add_u32 v{T0}, s{sT0}, v{T0}
        v_mul_u32_u24 v254, 1280, v{T0}
        s_mov_b32 s{sPFS}, 128
        s_mov_b32 s{sPFO}, 0
        """)
        srd(a, STMP, P_X, XB)
        a(f"s_branch {ld2}")
        a.label(lq2)
        a(f"""
        v_min_u32 v{T0}, 35, v{LANE}
        v_mul_u32_u24 v{T1}, 57, v{T0}
        v_lshrrev_b32 v{T1}, 9, v{T1}
        v_mul_u32_u24 v{T3}, 9, v{T1}
        v_sub_u32 v{T0}, v{T0}, v{T3}
        s_lshl_b32 s{sT2}, s{sT2}, 2
        v_add_u32 v{T1}, s{sT2}, v{T1}
        s_cmp_ge_u32 s{sW}, 3
        s_cbranch_scc1 {lx2}
        v_mul_u32_u24 v{T1}, 3840, v{T1}
        v_mul_u32_u24 v{T3}, 43, v{T0}
        v_lshrrev_b32 v{T3}, 7, v{T3}
        v_mul_u32_u24 v{T3}, 896, v{T3}
        v_lshl_add_u32 v{T0}, v{T0}, 7, v{T3}
        v_add_u32 v254, v{T0}, v{T1}
        s_mul_i32 s{sT1}, s{sT1}, 320
        s_and_b32 s{sT1}, s{sT1}, 0xffffff80
        s_mov_b32 s{sPFS}, {64*3840}
        s_mov_b32 s{sPFO}, s{sT1}
        """)
        srd(a, STMP, P_WQ, 640*3840)
        a(f"s_branch {ld2}")
        a.label(lx2)
        a(f"""
        v_mul_u32_u24 v{T1}, 3456, v{T1}
        v_lshl_add_u32 v254, v{T0}, 7, v{T1}
        s_mul_i32 s{sT1}, s{sT1}, 768
        s_mov_b32 s{sPFS}, {64*3456}
        s_mov_b32 s{sPFO}, s{sT1}
        """)
        srd(a, STMP, P_W1, 640*3456)
        a.label(ld2)
    c = Cfg()
    c.nM, c.nF, c.nh, c.wrow, c.wrowb, c.stg, c.xsz, c.nxm, c.duty = 4, 4, 2, 480, 3840, 49152, 18432, 2, dq
    al = alloc_common(c)
    c.acc = [[al(4,4) for i in range(4)] for f in range(4)]
    c.acch = [al(4,4) for f in range(2)]
    lowtop = al.n
    al = Alloc(WREG)
    c.X = [[al(4,4) for i in range(4)] for s in range(2)]
    c.XH = [al(4,4) for s in range(2)]
    c.W = [[al(4,4) for f in range(4)] for s in range(2)]
    assert al.n == 208
    c.early = (list(range(20, 30)) + [18, 19] + list(range(30, 38)))[:nearly]
    a(f"""
    s_lshl_b32 s{sRB}, s{sT0}, 3
    s_and_b32 s{sT3}, s{sT2}, 7
    s_add_u32 s{sRB}, s{sRB}, s{sT3}
    s_lshl_b32 s{sCB}, s{sT1}, 1
    s_lshr_b32 s{sT3}, s{sT2}, 3
    s_add_u32 s{sCB}, s{sCB}, s{sT3}
    s_lshl_b32 s{sT3}, s{sRB}, 7
    s_lshl_b32 s{sT0}, s{sW}, 3
    s_add_u32 s{sT3}, s{sT3}, s{sT0}
    s_sub_u32 s{sT3}, s{sT3}, 16
    s_max_i32 s{sT0}, s{sT3}, 0
    s_mul_i32 s{sXO}, s{sT0}, 1280
    s_add_u32 s{sT3}, s{sT3}, 64
    s_mul_i32 s{sXO+1}, s{sT3}, 1280
    s_add_u32 s{sXO+2}, s{sXO+1}, 81920
    """)
    w_voff(c, 30)
    a(f"""
    v_mul_u32_u24 v{T2}, 26, v{T0}
    v_lshrrev_b32 v{T2}, 8, v{T2}
    v_mul_u32_u24 v{T2}, 1120, v{T2}
    v_lshl_add_u32 v{T0}, v{T0}, 4, v{T2}
    v_add_u32 v{c.VW}, v{T0}, v{T1}
    s_mul_i32 s{sT0}, s{sCB}, 160
    s_add_u32 s{sWO}, s{sWO}, s{sT0}
    """)
    srd(a, SW, P_WQ, 640*3840)
    if c.duty: duty_setup()
    a(f"s_add_u32 s{sT0}, s{sRB}, 16\ns_lshl_b32 s{sT0}, s{sT0}, 7\ns_lshl_b32 s{sT1}, s{sCB}, 3\ns_add_u32 s{sHF}, s{sT0}, s{sT1}")
    def q_setup():
        a(f"s_lshr_b32 s{sMH}, s{sW}, 2\ns_and_b32 s{sT0}, s{sW}, 3\ns_lshl_b32 s{sT0}, s{sT0}, 2\ns_lshl_b32 s{sT1}, s{sMH}, 1")
        for f in range(4):
            a(f"s_xor_b32 s{sT2}, s{sT1}, {f}\ns_add_u32 s{sT2}, s{sT2}, s{sT0}\ns_min_u32 s{sNT+f}, s{sT2}, 14")
        a(f"""
        s_mov_b32 s{sMSK}, 0xfffefffe
        s_mov_b32 s{sMSK+1}, 0xfffefffe
        v_lshrrev_b32 v{T0}, 1, v{R}
        v_xor_b32 v{T0}, v{T0}, v{G}
        v_lshlrev_b32 v{T0}, 4, v{T0}
        v_lshl_add_u32 v{T0}, v{R}, 7, v{T0}
        v_add_u32 v{c.hb[0]}, {c.stg}, v{T0}
        v_xor_b32 v{c.hb[1]}, 64, v{c.hb[0]}
        s_lshl_b32 s{sT0}, s{sMH}, 13
        s_add_u32 s{sT0}, s{sT0}, 2048
        v_add_u32 v{c.xb[0]}, s{sT0}, v{c.hb[0]}
        v_add_u32 v{c.xb[1]}, s{sT0}, v{c.hb[1]}
        """)
        rho_local(a, T0, T1)
        a(f"v_mul_u32_u24 v{T0}, 480, v{T0}\nv_and_b32 v{T1}, 3, v{LANE}\nv_lshl_add_u32 v{T0}, v{T1}, 3, v{T0}")
        for f in range(4):
            a(f"s_lshl_b32 s{sT0}, s{sNT+f}, 5\ns_add_u32 s{sT0}, s{sT0}, {c.xsz+c.stg}\nv_add_u32 v{c.wb[f]}, s{sT0}, v{T0}")
        a(f"v_lshlrev_b32 v{c.VRA}, 4, v{R}")
        a(f"""
        s_lshl_b32 s{sT0}, s{sRB}, 7
        s_lshl_b32 s{sT1}, s{sMH}, 6
        s_add_u32 s{sT1}, s{sT1}, s{sT0}
        s_lshl_b32 s{sT1}, s{sT1}, 4
        s_add_u32 s{sRM}, s{sT1}, {STO}
        s_sub_u32 s{sT0}, s{sT0}, 16
        s_max_i32 s{sT0}, s{sT0}, 0
        s_lshl_b32 s{sT0}, s{sT0}, 4
        s_add_u32 s{sRH}, s{sT0}, {STO}
        """)
        for s in range(2):
            for r in range(4): a(f"v_mov_b32 v{c.XH[s]+r}, 0x3f803f80")
    pre_loop(c, q_setup)
    rec = [[f"buffer_load_dwordx4 {vr(c.REC+4*i,4)}, v{c.VRA}, {sr(SFL,4)}, s{sRM} offen offset:{256*i} sc1"] for i in range(4)]
    rec.append([f"buffer_load_dwordx4 {vr(c.REC+16,4)}, v{c.VRA}, {sr(SFL,4)}, s{sRH} offen sc1"])
    CSR = lowtop; CA = 11; WA = 15
    assert CSR + 16 <= WREG and WA + 6 <= c.VTF
    c.tailx = [lines(f"""
        s_lshl_b32 s{sT3}, s{sMH}, 6
        s_add_u32 s{sT3}, s{sT3}, 16
        s_mul_i32 s{sT3}, s{sT3}, {RS}
        v_mul_u32_u24 v{T2}, {RS}, v{R}
        v_lshlrev_b32 v{T3}, 4, v{G}""")]
    for f in range(4):
        c.tailx.append(lines(f"""
        s_lshl_b32 s{sT0}, s{sNT+f}, 6
        s_add_u32 s{sT0}, s{sT0}, {L_CS}
        v_add_u32 v{CA+f}, s{sT0}, v{T3}
        s_mul_i32 s{sT0}, s{sNT+f}, 52
        s_lshr_b32 s{sT0}, s{sT0}, 8
        s_mul_i32 s{sT2}, s{sT0}, 5
        s_sub_u32 s{sT2}, s{sNT+f}, s{sT2}
        s_lshl_b32 s{sT2}, s{sT2}, 2
        s_mul_i32 s{sT0}, s{sT0}, 192
        v_add_u32 v{T0}, s{sT2}, v{G}"""))
        c.tailx.append(lines(f"""
        v_mul_u32_u24 v{T1}, 52, v{T0}
        v_lshrrev_b32 v{T1}, 8, v{T1}
        v_add_u32 v{T0}, v{T0}, v{T1}"""))
        c.tailx.append(lines(f"v_lshl_add_u32 v{T0}, v{T0}, 3, v{T2}") + ([f"v_add_u32 v{WA+4+f}, s{sT0}, v{T0}"] if f < 2 else []) +
                       lines(f"s_add_u32 s{sT0}, s{sT0}, s{sT3}\nv_add_u32 v{WA+f}, s{sT0}, v{T0}"))
    main_loop(a, c, S, "q", rec)
    a(f"s_not_b64 exec, {sr(sMSK,2)}")
    for f in range(2): a(f"ds_write_b128 v{CA+f}, {vr(c.acch[f],4)}")
    a("s_mov_b64 exec, -1")
    a(f"s_waitcnt vmcnt({c.yrec})")
    poll(a, sum(rec, []), [c.REC+4*i+2 for i in range(5)], True)
    S(55)
    a("s_waitcnt lgkmcnt(0)\ns_barrier")
    S(56)
    for f in range(4): a(f"ds_read_b128 {vr(CSR+4*f,4)}, v{CA+f}")
    rest = [p for p in list(range(30, 38)) + list(range(30)) if p not in c.early]
    I = Inter(a, [wfrag(p) for p in rest], qevery)
    TP = c.VPS
    for f in range(4):
        I(f"s_waitcnt lgkmcnt({3-f if f == 0 else 15})" if f == 0 else "s_nop 0")
        if f == 1: I("s_waitcnt lgkmcnt(5)")
        tl = [(c.acc[f][i], WA+f, i*16*RS, c.REC+4*i) for i in range(4)]
        if f < 2: tl.append((c.acch[f], WA+4+f, 0, c.REC+16))
        for (ac, ad, off, st) in tl:
            I(f"""
            v_pk_mul_f32 {vr(TP,2)}, {vr(CSR+4*f,2)}, {vr(st,2)} op_sel:[0,1] op_sel_hi:[1,1]
            v_pk_mul_f32 {vr(TP+2,2)}, {vr(CSR+4*f+2,2)}, {vr(st,2)} op_sel:[0,1] op_sel_hi:[1,1]
            v_pk_fma_f32 {vr(ac,2)}, {vr(ac,2)}, {vr(st,2)}, {vr(TP,2)} op_sel:[0,0,0] op_sel_hi:[1,0,1]
            v_pk_fma_f32 {vr(ac+2,2)}, {vr(ac+2,2)}, {vr(st,2)}, {vr(TP+2,2)} op_sel:[0,0,0] op_sel_hi:[1,0,1]
            v_cvt_pk_bf16_f32 v{ac}, v{ac}, v{ac+1}
            v_cvt_pk_bf16_f32 v{ac+1}, v{ac+2}, v{ac+3}
            ds_write_b64 v{ad}, {vr(ac,2)} offset:{off}
            """)
    S(57)
    al = Alloc(11)
    AB = al(); OV = al(); OV1 = al(); L31 = al()
    MX = al(); SM_ = al()
    Q = al(12, 2); KB = [al(10, 2) for _ in range(5)]
    L = al(8, 2); PL = al(8); PH = al(8); O = al(20, 2); TPa = al(4)
    assert al.n <= WREG, al.n
    I(f"""
    s_and_b32 s{sT0}, s{sW}, 1
    s_lshr_b32 s{sT3}, s{sW}, 1
    s_lshl_b32 s{sT2}, s{sT3}, 5
    s_add_u32 s{sT2}, s{sT2}, 2
    v_and_b32 v{L31}, 31, v{LANE}
    v_add_u32 v{T0}, s{sT2}, v{L31}
    v_mul_u32_u24 v{T0}, {RS}, v{T0}
    v_lshrrev_b32 v{T1}, 5, v{LANE}
    v_mul_u32_u24 v{T2}, 48, v{T1}
    s_mul_i32 s{sT2}, s{sT0}, 96
    v_add3_u32 v{AB}, v{T0}, v{T2}, s{sT2}
    s_lshl_b32 s{sT2}, s{sCB}, 1
    s_add_u32 s{sT2}, s{sT2}, s{sT0}
    s_mul_i32 s{sT2}, s{sT2}, 5
    v_lshl_add_u32 v{T1}, v{T1}, 1, s{sT2}
    v_bfe_u32 v{T0}, v{LANE}, 4, 1
    v_lshlrev_b32 v{T0}, 10, v{T0}
    v_lshl_add_u32 v{T0}, v{R}, 4, v{T0}
    v_lshrrev_b32 v{T2}, 2, v{T1}
    v_lshl_add_u32 v{T2}, v{T2}, 12, v{T0}
    v_and_b32 v{T3}, 3, v{T1}
    v_lshl_add_u32 v{OV}, v{T3}, 8, v{T2}
    v_add_u32 v{T1}, 1, v{T1}
    v_lshrrev_b32 v{T2}, 2, v{T1}
    v_lshl_add_u32 v{T2}, v{T2}, 12, v{T0}
    v_and_b32 v{T3}, 3, v{T1}
    v_lshl_add_u32 v{OV1}, v{T3}, 8, v{T2}
    s_lshl_b32 s{sKX}, s{sRB}, 1
    s_add_u32 s{sKX}, s{sKX}, s{sMH}
    s_mul_i32 s{sKX}, s{sKX}, {74*4096}
    s_and_b32 s{sT1}, s{sT3}, 1
    s_lshl_b32 s{sT1}, s{sT1}, 11
    s_add_u32 s{sKX}, s{sKX}, s{sT1}
    s_add_u32 s{sT2}, s{sT2}, 4
    s_lshr_b32 s{sKW}, s{sT2}, 2
    s_lshl_b32 s{sKW}, s{sKW}, 12
    s_and_b32 s{sT2}, s{sT2}, 3
    s_lshl_b32 s{sT2}, s{sT2}, 8
    s_add_u32 s{sKW}, s{sKW}, s{sT2}
    s_add_u32 s{sKW}, s{sKW}, s{sKX}
    s_waitcnt lgkmcnt(0)
    s_barrier
    """)
    OV2 = T0
    S(5)
    def rd(dst, off):
        return f"ds_read_b128 {vr(dst,4)}, v{AB} offset:{off}\nds_read_b128 {vr(dst+4,4)}, v{AB} offset:{off+16}\nds_read_b64 {vr(dst+8,2)}, v{AB} offset:{off+32}"
    offs = [(14-2*w)*RS+192 for w in range(8)] + [(14-2*w)*RS+384 for w in range(8)]
    issued = 0
    def issue(n):
        nonlocal issued
        for _ in range(n):
            if issued < 16:
                I(rd(KB[issued % 5], offs[issued])); issued += 1
    def need(idx): I(f"s_waitcnt lgkmcnt({3*(issued-1-idx)})")
    I(rd(Q, 14*RS)); issue(4)
    for w in range(8): I(f"v_mov_b32 v{L+w}, 0")
    for d in range(20): I(f"v_mov_b32 v{O+d}, 0")
    for wp in range(4):
        w0, w1 = 2*wp, 2*wp+1
        need(w1)
        for d in range(10):
            for w in (w0, w1): I(f"v_dot2c_f32_bf16 v{L+w}, v{Q+d}, v{KB[w%5]+d}")
        issue(3 if wp == 0 else 2)
    lm = a.uid("Lm")
    a(f"s_or_b32 s{sT2}, s{sRB}, s{sT3}\ns_cmp_lg_u32 s{sT2}, 0\ns_cbranch_scc1 {lm}")
    a(f"v_mov_b32 v{TPa}, {f32(-1e9)}")
    for w in range(1, 8):
        a(f"v_cmp_le_u32 vcc, {2*w}, v{L31}\ns_nop 1\nv_cndmask_b32 v{L+w}, v{TPa}, v{L+w}, vcc")
    a.label(lm)
    cexp = (20 ** -0.5) * math.log2(math.e)
    I(f"""
    v_max3_f32 v{MX}, v{L}, v{L+1}, v{L+2}
    v_max3_f32 v{SM_}, v{L+3}, v{L+4}, v{L+5}
    v_max3_f32 v{MX}, v{MX}, v{L+6}, v{L+7}
    v_max_f32 v{MX}, v{MX}, v{SM_}
    """)
    for w in range(8): I(f"v_sub_f32 v{L+w}, v{L+w}, v{MX}")
    for w in range(8): I(f"v_mul_f32 v{L+w}, {f32(cexp)}, v{L+w}")
    for w in range(8): I(f"v_exp_f32 v{L+w}, v{L+w}")
    I(f"""
    v_add_f32 v{TPa}, v{L}, v{L+1}
    v_add_f32 v{TPa+1}, v{L+2}, v{L+3}
    v_add_f32 v{TPa+2}, v{L+4}, v{L+5}
    v_add_f32 v{TPa+3}, v{L+6}, v{L+7}
    v_add_f32 v{TPa}, v{TPa}, v{TPa+1}
    v_add_f32 v{TPa+2}, v{TPa+2}, v{TPa+3}
    v_add_f32 v{SM_}, v{TPa}, v{TPa+2}
    v_rcp_f32 v{SM_}, v{SM_}
    s_nop 0
    """)
    for w in range(8): I(f"v_mul_f32 v{L+w}, v{L+w}, v{SM_}")
    for w in range(8): I(f"v_cvt_pk_bf16_f32 v{PL+w}, v{L+w}, 0\nv_cvt_pk_bf16_f32 v{PH+w}, 0, v{L+w}")
    for w in range(8):
        need(8+w)
        for d in range(10):
            I(f"v_dot2c_f32_bf16 v{O+2*d}, v{KB[(8+w)%5]+d}, v{PL+w}\nv_dot2c_f32_bf16 v{O+2*d+1}, v{KB[(8+w)%5]+d}, v{PH+w}")
        issue(1)
    S(58)
    qleft = I.g; I.g = []
    for u in (0,1,2,3,8,9,4,5,6,7): a(f"v_cvt_pk_bf16_f32 v{Q+u}, v{O+2*u}, v{O+2*u+1}")
    a(f"""
    buffer_store_dwordx4 {vr(Q,4)}, v{OV}, {sr(SHO,4)}, s{sKX} offen sc1
    v_permlane32_swap_b32 v{Q+8}, v{Q+10}
    v_permlane32_swap_b32 v{Q+9}, v{Q+11}
    buffer_store_dwordx4 {vr(Q+4,4)}, v{OV1}, {sr(SHO,4)}, s{sKX} offen sc1
    s_mov_b32 exec_hi, 0
    buffer_store_dwordx4 {vr(Q+8,4)}, v{OV2}, {sr(SHO,4)}, s{sKW} offen sc1
    s_mov_b64 exec, -1
    """)
    S(6)
    a("s_barrier")
    qleft = qleft + [wfrag(p) for p in range(38, 45)]
    emit(qleft[:NB])
    publish(NB)
    emit(qleft[NB:])
    a("s_branch Lphase2")
    a.label("Lffn")
    c = Cfg()
    c.nM, c.nF, c.nh, c.wrow, c.wrowb, c.stg, c.xsz, c.nxm, c.duty = 5, 3, 0, 384, 3456, 49152, 20480, 4, df
    al = alloc_common(c)
    B1 = al(8, 2)
    c.acc = [[al(4,4) for i in range(5)] for f in range(3)]
    lowtop = al.n
    eal = al
    al = Alloc(WREG)
    c.X = [[al(4,4) for i in range(5)] for s in range(2)]
    c.W = [[al(4,4) for f in range(3)] for s in range(2)]
    assert al.n <= 208
    c.early = (list(range(20, 30)) + [18, 19] + list(range(30, 38)))[:nearly]
    a(f"""
    s_sub_u32 s{sT2}, s{sT2}, 16
    s_lshl_b32 s{sT1}, s{sT1}, 4
    s_add_u32 s{sT1}, s{sT1}, s{sT2}
    s_cmp_ge_u32 s{sT1}, 63
    s_cbranch_scc1 Lidle
    s_mul_i32 s{sCB}, s{sT1}, 37
    s_lshr_b32 s{sCB}, s{sCB}, 8
    s_sub_u32 s{sT3}, s{sCB}, s{sT0}
    s_mul_i32 s{sT3}, s{sT3}, 7
    s_sub_u32 s{sRB}, s{sT1}, s{sT3}
    s_mul_i32 s{sT3}, s{sRB}, {FROWS}
    s_lshl_b32 s{sT0}, s{sW}, 3
    s_add_u32 s{sT3}, s{sT3}, s{sT0}
    s_mul_i32 s{sXO}, s{sT3}, 1280
    s_add_u32 s{sXO+1}, s{sXO}, 81920
    s_add_u32 s{sXO+2}, s{sXO}, 163840
    """)
    w_voff(c, 24)
    a(f"""
    s_and_b32 s{sT0}, s{sW}, 3
    s_lshl_b32 s{sT0}, s{sT0}, 1
    v_xor_b32 v{T0}, s{sT0}, v{T0}
    v_lshl_add_u32 v{c.VW}, v{T0}, 4, v{T1}
    s_mul_i32 s{sT0}, s{sCB}, 384
    s_add_u32 s{sWO}, s{sWO}, s{sT0}
    """)
    srd(a, SW, P_W1, 640*3456)
    srd(a, SWT, P_B1, 3456)
    if c.duty: duty_setup()
    a(f"s_lshl_b32 s{sT0}, s{sRB}, 7\ns_lshl_b32 s{sT1}, s{sCB}, 3\ns_add_u32 s{sHF}, s{sT0}, s{sT1}")
    RHO = c.hb[0]
    def f_setup():
        a(f"""
        s_lshr_b32 s{sMH}, s{sW}, 2
        s_bfe_u32 s{sT0}, s{sW}, 0x10001
        s_and_b32 s{sT1}, s{sW}, 1
        s_mul_i32 s{sT0}, s{sT0}, 6
        s_lshl_b32 s{sT2}, s{sT1}, 2
        s_add_u32 s{sNT}, s{sT0}, s{sT2}
        s_add_u32 s{sNT+1}, s{sNT}, 1
        s_add_u32 s{sNT+2}, s{sT0}, s{sT1}
        s_add_u32 s{sNT+2}, s{sNT+2}, 2
        s_cmp_eq_u32 s{sMH}, 0
        s_cselect_b32 s{sMSK}, -1, 0x7fff7fff
        s_cselect_b32 s{sMSK+1}, -1, 0x7fff7fff
        v_lshrrev_b32 v{T0}, 1, v{R}
        v_xor_b32 v{T0}, v{T0}, v{G}
        v_lshlrev_b32 v{T0}, 4, v{T0}
        v_lshl_add_u32 v{T0}, v{R}, 7, v{T0}
        s_mul_i32 s{sT0}, s{sMH}, {5*2048}
        s_add_u32 s{sT0}, s{sT0}, {c.stg}
        v_add_u32 v{c.xb[0]}, s{sT0}, v{T0}
        v_xor_b32 v{c.xb[1]}, 64, v{c.xb[0]}
        """)
        rho_local(a, T0, T1)
        a(f"""
        v_bfe_u32 v{T2}, v{T0}, 1, 2
        v_mul_u32_u24 v{T0}, 384, v{T0}
        v_and_b32 v{T1}, 3, v{LANE}
        v_lshl_add_u32 v{T0}, v{T1}, 3, v{T0}
        v_add_u32 v{T0}, {c.xsz+c.stg}, v{T0}
        """)
        for f in range(3):
            a(f"v_xor_b32 v{T1}, s{sNT+f}, v{T2}\nv_lshl_add_u32 v{c.wb[f]}, v{T1}, 5, v{T0}")
        a(f"""
        s_mul_i32 s{sT0}, s{sRB}, {FROWS}
        s_mul_i32 s{sT1}, s{sMH}, 80
        s_add_u32 s{sT0}, s{sT0}, s{sT1}
        v_add_u32 v{RHO}, s{sT0}, v{R}
        v_lshlrev_b32 v{T0}, 4, v{RHO}
        v_add_u32 v{c.VRA}, {STO}, v{T0}
        """)
        for s in range(2):
            for r in range(4): a(f"v_mov_b32 v{c.X[s][4]+r}, 0x3f803f80")
        a(f"v_lshlrev_b32 v{T0}, 3, v{G}\ns_mul_i32 s{sT2}, s{sCB}, 384")
        for f in range(3):
            a(f"s_lshl_b32 s{sT1}, s{sNT+f}, 5\ns_add_u32 s{sT1}, s{sT1}, s{sT2}")
            a(f"buffer_load_dwordx2 {vr(B1+2*f,2)}, v{T0}, {sr(SWT,4)}, s{sT1} offen")
    pre_loop(c, f_setup)
    rec = [[f"v_add_u32 v{T3}, {256*i}, v{c.VRA}", f"v_min_u32 v{T3}, {STO+2047*16}, v{T3}",
            f"buffer_load_dwordx4 {vr(c.REC+4*i,4)}, v{T3}, {sr(SFL,4)}, 0 offen sc1"] for i in range(5)]
    CA = 17
    c.tailx = [[f"v_lshlrev_b32 v{T3}, 4, v{G}"]] + [lines(f"s_lshl_b32 s{sT0}, s{sNT+f}, 6\ns_add_u32 s{sT0}, s{sT0}, {L_CS}\nv_add_u32 v{CA+f}, s{sT0}, v{T3}") for f in range(3)]
    main_loop(a, c, S, "f", rec)
    a(f"s_waitcnt vmcnt({c.yrec})")
    poll(a, sum(rec, []), [c.REC+4*i+2 for i in range(5)], True)
    lc = a.uid("Lc")
    a(f"s_cmp_eq_u32 s{sMH}, 0\ns_cbranch_scc1 {lc}\ns_not_b64 exec, {sr(sMSK,2)}")
    for f in range(3): a(f"ds_write_b128 v{CA+f}, {vr(c.acc[f][4],4)}")
    a("s_mov_b64 exec, -1\ns_waitcnt lgkmcnt(0)")
    a.label(lc)
    a("s_barrier")
    CC = c.VPS; VA = 11
    CSR = eal(12, 2); TT = [eal(2,2) for _ in range(4)] + [12, B1+6]
    assert eal.n <= WREG, eal.n
    for f in range(3): a(f"ds_read_b128 {vr(CSR+4*f,4)}, v{CA+f}")
    BFp = [c.REC+4*i+2 for i in range(5)] + [B1+4]
    OUTP = [B1, 16]; SG = 20
    assert RHO == 15
    rest = [p for p in list(range(30, 45)) + list(range(30)) if p not in c.early]
    I = Inter(a, [wfrag(p) for p in rest], fevery)
    c0 = -2*math.sqrt(2/math.pi)*math.log2(math.e); c1 = c0*0.044715
    for j in range(5): I(f"v_lshlrev_b32 v{BFp[j]}, 16, v{B1+j}\nv_and_b32 v{BFp[j]+1}, 0xffff0000, v{B1+j}")
    I(f"v_lshlrev_b32 v{B1+4}, 16, v{B1+5}\nv_and_b32 v{B1+5}, 0xffff0000, v{B1+5}")
    I(f"v_mov_b32 v{CC}, {f32(c0)}\nv_mov_b32 v{CC+1}, {f32(c1)}\nv_mov_b32 v{CC+2}, 1.0")
    I(f"""
    v_and_b32 v{T2}, 15, v{RHO}
    v_lshlrev_b32 v{T2}, 4, v{T2}
    v_lshl_add_u32 v{T1}, v{G}, 8, v{T2}
    v_and_b32 v{T3}, 1, v{G}
    v_lshl_add_u32 v14, v{T3}, 8, v{T2}
    v_lshrrev_b32 v{T0}, 4, v{RHO}
    v_lshrrev_b32 v{T3}, 5, v{LANE}
    v_add_u32 v{RHO}, v{T0}, v{T3}
    s_mul_i32 s{sT2}, s{sCB}, 6
    s_add_u32 s{sT2}, s{sT2}, 20
    s_lshr_b32 s{sT0}, s{sNT}, 1
    s_add_u32 s{sT0}, s{sT0}, s{sT2}
    s_lshl_b32 s{sKX}, s{sT0}, 12
    s_lshr_b32 s{sT0}, s{sNT+2}, 1
    s_add_u32 s{sT0}, s{sT0}, s{sT2}
    s_lshl_b32 s{sKW}, s{sT0}, 12
    s_and_b32 s{sT0}, s{sNT+2}, 1
    s_lshl_b32 s{sT0}, s{sT0}, 9
    s_add_u32 s{sKW}, s{sKW}, s{sT0}
    s_mov_b32 s{sT3}, {74*4096}
    s_waitcnt lgkmcnt(0)
    """)
    a(f"s_cmp_eq_u32 s{sMH}, 0\ns_cselect_b32 s{sMSK}, -1, 0x00ff00ff\ns_mov_b32 s{sMSK+1}, s{sMSK}")
    def gelu_pair(h, cs, b, st, t, dst):
        return [f"v_pk_fma_f32 {vr(t,2)}, {vr(cs,2)}, {vr(st,2)}, {vr(b,2)} op_sel:[0,1,0] op_sel_hi:[1,1,1]",
                f"v_pk_fma_f32 {vr(h,2)}, {vr(h,2)}, {vr(st,2)}, {vr(t,2)} op_sel:[0,0,0] op_sel_hi:[1,0,1]",
                f"v_pk_mul_f32 {vr(t,2)}, {vr(h,2)}, {vr(h,2)}",
                f"v_pk_fma_f32 {vr(t,2)}, {vr(t,2)}, {vr(CC,2)}, {vr(CC,2)} op_sel:[0,1,0] op_sel_hi:[1,1,0]",
                f"v_pk_mul_f32 {vr(t,2)}, {vr(t,2)}, {vr(h,2)}",
                f"v_exp_f32 v{t}, v{t}",
                f"v_exp_f32 v{t+1}, v{t+1}",
                f"v_pk_add_f32 {vr(t,2)}, {vr(t,2)}, {vr(CC+2,2)} op_sel_hi:[1,0]",
                f"v_rcp_f32 v{t}, v{t}",
                f"v_rcp_f32 v{t+1}, v{t+1}",
                f"v_pk_mul_f32 {vr(t,2)}, {vr(t,2)}, {vr(h,2)}",
                f"v_cvt_pk_bf16_f32 v{dst}, v{t}, v{t+1}"]
    def blkaddr(dst, tile, low):
        I(f"""
        v_lshrrev_b32 v{T2}, 2, v{tile}
        v_mul_lo_u32 v{T2}, v{T2}, s{sT3}
        v_and_b32 v{T3}, 3, v{tile}
        v_lshl_add_u32 v{T2}, v{T3}, 10, v{T2}
        v_add_u32 v{dst}, v{T2}, v{low}
        """)
    for i in range(5):
        o = OUTP[i & 1]
        streams = [gelu_pair(c.acc[f][i]+2*hp, CSR+4*f+2*hp, BFp[2*f+hp], c.REC+4*i, TT[2*f+hp],
                             (o+2*f+hp) if f < 2 else (SG+2*(i&1)+hp)) for f in range(3) for hp in range(2)]
        for k in range(len(streams[0])):
            for s in streams: I(s[k])
        blkaddr(VA, T0, T1)
        I(f"v_add_u32 v{T0}, 1, v{T0}")
        if i == 4: a(f"s_mov_b64 exec, {sr(sMSK,2)}")
        a(f"buffer_store_dwordx4 {vr(o,4)}, v{VA}, {sr(SHO,4)}, s{sKX} offen sc1")
        if i == 4: a("s_mov_b64 exec, -1")
        if i & 1 or i == 4:
            a(f"v_permlane32_swap_b32 v{SG}, v{SG+2}\nv_permlane32_swap_b32 v{SG+1}, v{SG+3}")
            blkaddr(VA, RHO, 14)
            I(f"v_add_u32 v{RHO}, 2, v{RHO}")
            if i == 4: a(f"s_mov_b32 exec_lo, s{sMSK}\ns_mov_b32 exec_hi, 0")
            a(f"buffer_store_dwordx4 {vr(SG,4)}, v{VA}, {sr(SHO,4)}, s{sKW} offen sc1")
            if i == 4: a("s_mov_b64 exec, -1")
    left = len(I.g)
    S(6)
    nb = min(left, NB)
    I.flush(left - nb)
    publish(nb)
    I.flush()
    a("s_branch Lphase2")
    a.label("Lidle")
    late_srds()
    if c.duty:
        duty_setup()
        emit([duty(a, sorted(sum(df.values(), [])))])
    pretouch(None)
    p2_setup(a, 11)
    side_work(a, 0, 12)
    a(f"v_mov_b32 v14, 0\nv_mov_b32 v15, 0\ns_waitcnt vmcnt(0)\ns_barrier")
    nonce_get(a, 14, 12)
    poll(a, [f"buffer_load_dwordx2 v[14:15], v11, {sr(SFL,4)}, 0 offen sc1"], [14], False)
    for l in p2_ldsbases(): a(l)
    emit([wfrag(p) for p in c.early + rest])
    a.label("Lphase2")
    l9 = a.uid("L9")
    a(f"s_cmp_ge_u32 s{sW}, 2\ns_cbranch_scc1 {l9}")
    emit([wfrag(p) for p in range(45, 50)])
    a.label(l9)
    al = Alloc(12)
    VFD = al(2, 2); VLA = al(); VLB = al()
    acc = [[al(4,4) for m in range(4)] for n in range(5)]
    RING = [al(16, 4), al(16, 4)]
    XR = al(6, 2)
    assert al.n <= WREG, al.n
    S(8)
    poll(a, [f"buffer_load_dwordx2 {vr(VFD,2)}, v{VF}, {sr(SFL,4)}, 0 offen sc1"], [VFD], False)
    S(9)
    Wslot = [WREG+20*t for t in range(6)]
    abuf = {0: RING[0], 1: RING[1], 2: RING[0], 3: Wslot[0], 4: RING[1], 5: Wslot[1], 6: RING[0], 7: Wslot[0], 8: RING[1], 9: Wslot[1]}
    issue_after = {0: [2, 3], 1: [4, 5], 2: [6], 3: [7], 4: [8], 5: [9]}
    wloc = {t: Wslot[t] for t in range(6)}
    wloc.update({6: Wslot[2], 7: Wslot[3], 8: Wslot[4], 9: Wslot[5]})
    B2 = [Wslot[0]+16, Wslot[0]+18, Wslot[1]+16]
    def aload(t):
        a(f"s_lshl_b32 s{sTM}, s{sK+t}, 12")
        for m in range(4): a(f"buffer_load_dwordx4 {vr(abuf[t]+4*m,4)}, v{VL}, {sr(SPF,4)}, s{sTM} offen offset:{1024*m} sc1")
    ops = []
    for t in (0, 1): aload(t); ops += [t]*4
    SOX, SOB = [sKX, sKW, sDELTA], [sSLOT, sW1K, sMH]
    a(f"v_add_u32 v{VLA}, s{sFILL}, v{VL}\nv_add_u32 v{VLB}, s{sFW}, v{VL}\ns_mul_i32 s{sT0}, s{sC2}, 160")
    for j in range(3):
        a(f"""
        s_add_u32 s{sT1}, s{sW}, {8*j}
        s_mul_i32 s{sT2}, s{sT1}, 52
        s_lshr_b32 s{sT2}, s{sT2}, 8
        s_mul_i32 s{sT3}, s{sT2}, 5
        s_sub_u32 s{sT1}, s{sT1}, s{sT3}
        s_lshl_b32 s{sT1}, s{sT1}, 5
        s_mul_i32 s{sT2}, s{sT2}, 20480
        s_add_u32 s{SOX[j]}, s{sT2}, s{sT1}
        s_add_u32 s{SOB[j]}, s{sT0}, s{sT1}
        """)
    srd(a, STMP, P_B2, 1280)
    srd(a, SW, P_OUT, XB)
    for t in range(10):
        if t == 9: a(f"s_cmp_ge_u32 s{sW}, 2\ns_cbranch_scc1 Lp2done")
        younger = len(ops) - 1 - max(i for i, o in enumerate(ops) if o == t)
        a(f"s_waitcnt vmcnt({younger})" + (" lgkmcnt(0)" if t == 6 else ""))
        for n in range(5):
            for m in range(4): a(mfma(acc[n][m], wloc[t]+4*n, abuf[t]+4*m, t == 0))
        if 2 <= t <= 5:
            for n in range(5):
                phi = (t+4)*5+n
                ad, off = (VLA, (phi-30)*1024) if phi < 38 else (VLB, (phi-38)*1024)
                a(f"ds_read_b128 {vr(wloc[t+4]+4*n,4)}, v{ad} offset:{off}")
        for tt in issue_after.get(t, []): aload(tt); ops += [tt]*4
        if t == 5:
            a(f"v_lshlrev_b32 v{T1}, 3, v{G}")
            for j in range(3): a(f"buffer_load_dwordx2 {vr(XR+2*j,2)}, v{VXO}, {sr(SX,4)}, s{SOX[j]} offen"); ops.append('x')
            for j in range(3): a(f"buffer_load_dwordx2 {vr(B2[j],2)}, v{T1}, {sr(STMP,4)}, s{SOB[j]} offen"); ops.append('b')
        S(40+t)
    a.label("Lp2done")
    a("s_nop 7")
    for m in range(4):
        for n in range(5):
            q = m*5+n
            ad, off = (VLA, q*1024) if q < 8 else (VLB, (q-8)*1024)
            a(f"ds_write_b128 v{ad}, {vr(acc[n][m],4)} offset:{off}")
    a(f"""
    s_lshl_b32 s{sT0}, s{sW}, 10
    v_add_u32 v{T0}, s{sT0}, v{VL}
    v_add_u32 v{T2}, {L_A}, v{T0}
    v_add_u32 v{T3}, {4*12288}, v{T0}
    """)
    S(52)
    a("s_waitcnt lgkmcnt(0)\ns_barrier")
    S(53)
    P = [[acc[0][0] + (j*8+s)*4 for s in range(8)] for j in range(3)]
    assert P[2][7]+4 <= XR
    def rdtile(j):
        for s in range(8):
            if j == 0: ad, off = T2, s*8192
            else: ad, off = (T0 if s < 4 else T3), (s%4)*12288 + (j-1)*8192
            a(f"ds_read_b128 {vr(P[j][s],4)}, v{ad} offset:{off}")
    L2E = f32(-math.log2(math.e))
    def fin(j):
        p = P[j]
        Sx, Y, Z = p[0], p[2], p[3]
        for h in (0, 2):
            for k in (0, 2, 4, 6): a(f"v_pk_add_f32 {vr(p[k]+h,2)}, {vr(p[k]+h,2)}, {vr(p[k+1]+h,2)}")
        def unp(x, q):
            a(f"v_lshlrev_b32 v{x}, 16, v{q}\nv_and_b32 v{x+1}, 0xffff0000, v{q}\nv_lshlrev_b32 v{x+2}, 16, v{q+1}\nv_and_b32 v{x+3}, 0xffff0000, v{q+1}")
        unp(Z, B2[j])
        for h in (0, 2):
            a(f"v_pk_add_f32 {vr(p[2]+h,2)}, {vr(p[2]+h,2)}, {vr(p[4]+h,2)}")
            a(f"v_pk_add_f32 {vr(p[6]+h,2)}, {vr(p[6]+h,2)}, {vr(Z+h,2)}")
        for h in (0, 2): a(f"v_pk_add_f32 {vr(Y+h,2)}, {vr(Y+h,2)}, {vr(p[6]+h,2)}")
        for r in range(4): a(f"v_mul_f32 v{Z+r}, {L2E}, v{Y+r}")
        for r in range(4): a(f"v_exp_f32 v{Z+r}, v{Z+r}")
        for r in range(4): a(f"v_add_f32 v{Z+r}, 1.0, v{Z+r}")
        for r in range(4): a(f"v_rcp_f32 v{Z+r}, v{Z+r}")
        for h in (0, 2): a(f"v_pk_mul_f32 {vr(Y+h,2)}, {vr(Y+h,2)}, {vr(Sx+h,2)}")
        unp(p[4], XR+2*j)
        for r in range(4): a(f"v_fma_f32 v{Y+r}, v{Y+r}, v{Z+r}, v{p[4]+r}")
        a(f"v_cvt_pk_bf16_f32 v{Sx}, v{Y}, v{Y+1}\nv_cvt_pk_bf16_f32 v{Sx+1}, v{Y+2}, v{Y+3}")
        a(f"buffer_store_dwordx2 {vr(Sx,2)}, v{VXO}, {sr(SW,4)}, s{SOX[j]} offen")
    rdtile(0); rdtile(1)
    a("s_waitcnt vmcnt(0) lgkmcnt(8)")
    l3 = a.uid("L3")
    a(f"s_cmp_ge_u32 s{sW}, 4\ns_cbranch_scc1 {l3}")
    rdtile(2)
    a.label(l3)
    fin(0)
    a("s_waitcnt lgkmcnt(0)")
    fin(1)
    a(f"s_cmp_ge_u32 s{sW}, 4\ns_cbranch_scc1 Lfin")
    fin(2)
    a.label("Lfin")
    S.finish(54)
    a.label("Lend")
    a("s_endpgm")
    ref = open(f"cdna_kernels/{NAME}.s.ref").read().split("\n")
    hdr = [l for l in ref if l.startswith(";") and "@launch" not in l]
    out = "\n".join(hdr) + f"\n; @launch grid=(256,1,1) block=(512,1,1) lds={LDS_TOTAL}\n"
    out += '.amdgcn_target "amdgcn-amd-amdhsa--gfx950"\n' + khead(name) + a.text() + kd(name, 256, 102)
    return out

if __name__ == "__main__":
    path = sys.argv[1]
    kw = eval("dict(" + (sys.argv[2] if len(sys.argv) > 2 else "") + ")")
    open(path, "w").write(gen(**kw))
```

```python
from asmlib import *
import math, sys
NAME = "recurrent_scan__sliding_local_dilated__dense_activation_gelu__prompt"
XB = 2048*640*2
HO_SZ = 32*74*4096
WT_OFF, WT_SZ = 0xB00000, 8*74*5*1024
FLB = 0x400000
TFO, STO = FLB+0x1000, FLB+0x4000
FL_SZ = FLB + 0x10000
BIG = 0x7ff00000
RS = 592
L_TST, L_CS, L_A = 147456, 93184, 98304
LDS_TOTAL = 163840
FROWS = 152

SX, SW, SHO, SPF, SWT, SFL, SDBG, STMP = 4, 8, 16, 20, 24, 28, 32, 36
sXO = 12; sWO = 15
P_X, P_WQ, P_WO, P_W1, P_B1, P_W2, P_B2, P_OUT, P_DBG, P_WS = 40, 42, 44, 48, 50, 52, 54, 56, 58, 60
(sW, sRB, sCB, sI, sKX, sKW, sTM, sFILL, sDELTA, sSLOT, sW1K, sT0, sT1, sT2, sT3, sMH) = range(62, 78)
sNT = 78; sNON = 82; sMSK = 84; sR2, sC2 = 86, 87; sK = 88; sSP = 98; sN2 = 99
sWM = 100
sFW, sWB = 3, 47
sHF = 43
sPFO, sPFS = 46, 50
sRM, sRH = 48, 49
sTS = [44, 45, 52, 53]
VF, LANE, G, R, T0, T1, T2, T3, VST, VL, VXO = 0, 1, 2, 3, 4, 5, 6, 7, 8, 9, 10
WREG = 136
SIDE = 232
EXP = set(); PFF = ""; DN = 2; DMASK = 0b101; DPRE = 2; SP = dict(tw=1, nonce=3, sl=3, sw=5, tf=5); TFL = "nt"; RECIT = 9

def mfma(d, a_, b_, c0=False): return f"v_mfma_f32_16x16x32_bf16 {vr(d,4)}, {vr(a_,4)}, {vr(b_,4)}, " + ("0" if c0 else vr(d,4))
def chunks(l, n): return [l[i:i+n] for i in range(0, len(l), n)]
def merge(groups, n): return [sum(g, []) for g in chunks(groups, n)]
def lines(t): return [l.strip() for l in t.strip("\n").split("\n") if l.strip()]
def srd(a, d, p, size, off=None):
    if off is None: a(f"s_mov_b32 s{d}, s{p}\ns_mov_b32 s{d+1}, s{p+1}")
    else: a(f"s_add_u32 s{d}, s{p}, {off}\ns_addc_u32 s{d+1}, s{p+1}, 0")
    a(f"s_mov_b32 s{d+2}, {size}\ns_mov_b32 s{d+3}, 0x00020000")

class St:
    def __init__(s, a, on): s.a, s.on = a, on
    def start(s):
        if s.on: s.a(f"s_memtime s[0:1]\nv_mov_b32 v{VST}, 0\ns_waitcnt lgkmcnt(0)\nv_writelane_b32 v{VST}, s0, 0\ns_memrealtime s[0:1]\ns_waitcnt lgkmcnt(0)\nv_writelane_b32 v{VST}, s0, 62")
    def __call__(s, i):
        if s.on: s.a(f"s_memtime s[0:1]\ns_waitcnt lgkmcnt(0)\nv_writelane_b32 v{VST}, s0, {i}")
    def dyn(s, base):
        if s.on and ((base == 30 and 'nobar' not in EXP) or 'lst' in EXP):
            s.a(f"s_memtime s[0:1]\ns_add_u32 m0, s{sI}, {base}\ns_waitcnt lgkmcnt(0)\nv_writelane_b32 v{VST}, s0, m0")
    def finish(s, i):
        if not s.on: return
        s.a(f"""
        s_waitcnt vmcnt(0)
        s_memtime s[0:1]
        s_waitcnt lgkmcnt(0)
        v_writelane_b32 v{VST}, s0, {i}
        s_memrealtime s[0:1]
        s_waitcnt lgkmcnt(0)
        v_writelane_b32 v{VST}, s0, 63
        s_lshl_b32 s3, s2, 3
        s_add_u32 s3, s3, s{sW}
        s_lshl_b32 s3, s3, 8
        s_add_u32 s3, s3, {STAMP_OFF}
        s_add_u32 s{STMP}, s{P_WS}, s3
        s_addc_u32 s{STMP+1}, s{P_WS+1}, 0
        s_mov_b32 s{STMP+2}, 256
        s_mov_b32 s{STMP+3}, 0x00020000
        v_lshlrev_b32 v{T0}, 2, v{LANE}
        buffer_store_dword v{VST}, v{T0}, {sr(STMP,4)}, 0 offen
        """)
class Cfg: pass

def dma_x(c, a, u):
    g = [f"s_add_u32 m0, s{sFILL}, {u*8192}", f"s_add_u32 s{sTM}, s{sXO+u}, s{sKX}", f"buffer_load_dwordx4 v{c.VX}, {sr(SX,4)}, s{sTM} offen lds"]
    if u == 2:
        lab = a.uid("Lsk")
        g = [f"s_cmp_ge_u32 s{sW}, {c.nxm}", f"s_cbranch_scc1 {lab}"] + g + [lab + ":"]
    return g
def dma_w(c, a, u):
    return [f"s_add_u32 m0, s{sFW}, {u*16*c.wrow}", f"s_add_u32 s{sTM}, s{sKW}, {u*16*c.wrowb}", f"s_mov_b64 exec, {sr(sWM,2)}",
            f"buffer_load_dwordx4 v{c.VW}, {sr(SW,4)}, s{sTM} offen lds", "s_mov_b64 exec, -1"]
def dmaA(c, a): return [dma_x(c,a,0), dma_x(c,a,1), dma_x(c,a,2), dma_w(c,a,0)]
def dmaB(c, a): return [dma_w(c,a,1), dma_w(c,a,2), dma_w(c,a,3)]

def reads(c, st, s):
    r = []
    for i in range(c.nM):
        ins = f"ds_read_b128 {vr(c.X[st][i],4)}, v{c.xb[s]} offset:{i*2048}"
        if (not c.nh) and i == c.nM-1: r.append([f"s_mov_b64 exec, {sr(sMSK,2)}", ins, "s_mov_b64 exec, -1"])
        else: r.append([ins])
    if c.nh: r.append([f"s_mov_b64 exec, {sr(sMSK,2)}", f"ds_read_b128 {vr(c.XH[st],4)}, v{c.hb[s]}", "s_mov_b64 exec, -1"])
    for f in range(c.nF):
        r.append([f"ds_read_b64_tr_b16 {vr(c.W[st][f],2)}, v{c.wb[f]} offset:{s*32*c.wrow}"])
        r.append([f"ds_read_b64_tr_b16 {vr(c.W[st][f]+2,2)}, v{c.wb[f]} offset:{s*32*c.wrow+8*c.wrow}"])
    return r
def mfmas(c, st, c0=False):
    m = []
    for f in range(c.nF):
        for i in range(c.nM): m.append(mfma(c.acc[f][i], c.W[st][f], c.X[st][i], c0))
        if f < c.nh: m.append(mfma(c.acch[f], c.W[st][f], c.XH[st], c0))
    return m
def spread(main, items):
    out = []
    for i, m in enumerate(main):
        out.append(m)
        for p, g in items:
            if p == i or (i == len(main)-1 and p > i): out.extend(g)
    return out
def even(groups, n, lo=1):
    k = len(groups)
    return [(lo + (j*(n-lo))//k, g) for j, g in enumerate(groups)] if k else []

def stat_row(a):
    a(f"""
    s_and_b32 s{sT0}, s2, 1
    s_lshl_b32 s{sT0}, s{sT0}, 10
    s_bfe_u32 s{sT2}, s2, 0x20001
    s_lshl_b32 s{sT2}, s{sT2}, 8
    s_add_u32 s{sT0}, s{sT0}, s{sT2}
    s_and_b32 s{sT2}, s2, 0xf8
    s_add_u32 s{sT0}, s{sT0}, s{sT2}
    s_sub_u32 s{sT2}, s{sW}, 6
    s_lshl_b32 s{sT2}, s{sT2}, 2
    s_add_u32 s{sT0}, s{sT0}, s{sT2}
    """)
def nonce_get(a, vN, vPS):
    l0, l1, l2, l3 = a.uid("Lno"), a.uid("Lno"), a.uid("Lno"), a.uid("Lno")
    assert vN == vPS + 2 and vPS % 2 == 0
    a(f"s_mov_b32 s{sSP}, 0")
    a.label(l0)
    a(f"""
    v_readfirstlane_b32 s{sNON}, v{vN}
    v_readfirstlane_b32 s{sNON+1}, v{vN+1}
    s_add_u32 s{sSP}, s{sSP}, 1
    s_cmp_gt_u32 s{sSP}, 100000
    s_cbranch_scc1 {l1}
    s_cmp_lg_u32 s{sNON}, 0
    s_cbranch_scc1 {l1}
    v_mov_b32 v{T0}, 0
    buffer_load_dwordx2 {vr(vN,2)}, v{T0}, {sr(SDBG,4)}, 0 offen sc1
    s_waitcnt vmcnt(0)
    s_branch {l0}
    """)
    a.label(l1)
    a(f"""
    s_cmp_lg_u32 s{sW}, 0
    s_cbranch_scc1 {l2}
    s_lshl_b32 s{sT1}, s2, 3
    v_mov_b32 v{T0}, {TFO}
    s_mov_b64 exec, 1
    buffer_store_dwordx2 {vr(vN,2)}, v{T0}, {sr(SFL,4)}, s{sT1} offen sc1
    s_mov_b64 exec, -1
    """)
    a.label(l2)
    a(f"s_cmp_lt_u32 s{sW}, 6\ns_cbranch_scc1 {l3}")
    stat_row(a)
    a(f"""
    s_lshl_b32 s{sT0}, s{sT0}, 4
    s_add_u32 s{sT0}, s{sT0}, {STO}
    v_lshlrev_b32 v{T0}, 4, v{G}
    s_mov_b32 exec_lo, 0x00010001
    s_mov_b32 exec_hi, 0x00010001
    buffer_store_dwordx4 {vr(vPS,4)}, v{T0}, {sr(SFL,4)}, s{sT0} offen sc1
    s_mov_b64 exec, -1
    """)
    a.label(l3)
def poll(a, loads, cmps, preloaded):
    l0, l1, l2 = a.uid("Lpo"), a.uid("Lpo"), a.uid("Lpo")
    a(f"s_mov_b32 s{sSP}, 0")
    if preloaded: a(f"s_branch {l2}")
    a.label(l0)
    for l in loads: a(l)
    a("s_waitcnt vmcnt(0)")
    a.label(l2)
    for k, v in enumerate(cmps):
        if k == 0: a(f"v_cmp_eq_u64 vcc, {sr(sNON,2)}, {vr(v,2)}")
        else: a(f"v_cmp_eq_u64 {sr(sT1,2)}, {sr(sNON,2)}, {vr(v,2)}\ns_nop 0\ns_and_b64 vcc, vcc, {sr(sT1,2)}")
    a(f"""
    s_add_u32 s{sSP}, s{sSP}, 1
    s_cmp_gt_u32 s{sSP}, 100000
    s_cbranch_scc1 {l1}
    s_cmp_eq_u64 vcc, -1
    s_cbranch_scc0 {l0}
    """)
    a.label(l1)

def wfrag(phi):
    t, n = divmod(phi, 5)
    pre = [f"s_mul_i32 s{sTM}, s{sK+t}, 5120"]
    if phi < 30:
        if n < 4: return pre + [f"buffer_load_dwordx4 {vr(WREG+4*phi,4)}, v{VL}, {sr(SWT,4)}, s{sTM} offen offset:{1024*n} sc1"]
        return pre + [f"s_add_u32 s{sTM}, s{sTM}, 4096", f"buffer_load_dwordx4 {vr(WREG+4*phi,4)}, v{VL}, {sr(SWT,4)}, s{sTM} offen sc1"]
    base, o = (sFILL, (phi-30)*1024) if phi < 38 else (sFW, (phi-38)*1024)
    return [f"s_add_u32 m0, s{base}, {o}"] + pre + [f"s_add_u32 s{sTM}, s{sTM}, {1024*n}", f"buffer_load_dwordx4 v{VL}, {sr(SWT,4)}, s{sTM} offen sc1 lds"]
def p2_ldsbases():
    return [f"s_lshl_b32 s{sFILL}, s{sW}, 13", f"s_add_u32 s{sFILL}, s{sFILL}, {L_A}", f"s_mul_i32 s{sFW}, s{sW}, 12288"]

def stage_set(c, st):
    slot = ((st+1) % 3) * c.stg
    return lines(f"s_add_u32 s{sFILL}, s{sW1K}, {slot}\ns_add_u32 s{sFW}, s{sWB}, {slot}\ns_mov_b32 s{sKX}, {128*st}\ns_add_u32 s{sKW}, s{sWO}, {64*st*c.wrowb}")
def duty(a, stages, it=None):
    if not stages: return []
    lab = a.uid("Ldu")
    g = []
    if it is not None: g += [f"s_cmp_lg_u32 s{sI}, {it}", f"s_cbranch_scc1 {lab}"]
    g += [f"s_cmp_ge_u32 s{sW}, 4", f"s_cbranch_scc1 {lab}"]
    for st in stages:
        g += [f"s_mul_i32 s{sTM}, s{sPFS}, {st}", f"s_add_u32 s{sTM}, s{sTM}, s{sPFO}", f"buffer_load_dword v255, v254, {sr(STMP,4)}, s{sTM} offen {PFF}"]
    return g + [lab + ":"]

def iteration(a, c, S, kind, extra1=(), extra2=(), pre2=None):
    bases = list(c.xb) + (list(c.hb) if c.nh else []) + list(c.wb)
    prio = 'noprio' not in EXP
    a("s_waitcnt lgkmcnt(0)")
    M = mfmas(c, 0, kind == 0); n = len(M)
    rb = merge(reads(c, 1, 1), 2)
    items = [(k, g) for k, g in enumerate(rb)]
    if prio: items = [(0, ["s_setprio 1"]), (n//2, ["s_setprio 0"])] + items
    if kind != 9:
        items.append((0, [f"s_add_u32 s{sT1}, s{sSLOT}, {c.stg}", f"s_cmp_eq_u32 s{sT1}, {3*c.stg}", f"s_cselect_b32 s{sT1}, 0, s{sT1}", f"s_sub_u32 s{sDELTA}, s{sT1}, s{sSLOT}"]))
        up = chunks([f"v_add_u32 v{b}, s{sDELTA}, v{b}" for b in bases], 2)
        for k, g in enumerate(up): items.append((len(rb) + k, g))
    if kind in ('loop', 7): items += even(dmaB(c, a), n-4, 2)
    if kind == 0:
        A2 = dmaA(c, a); A2[0] = stage_set(c, 2) + A2[0]
        items += even(dmaB(c, a) + A2 + dmaB(c, a), n-4, 0)
    items += even(list(extra1), n-2, 1)
    if kind in ('loop', 0):
        items.append((n-4, [f"s_add_u32 s{sFILL}, s{sSLOT}, s{sW1K}", f"s_add_u32 s{sFW}, s{sSLOT}, s{sWB}"]))
        items.append((n-3, [f"s_add_u32 s{sKX}, s{sKX}, 128", f"s_add_u32 s{sKW}, s{sKW}, {64*c.wrowb}"]))
    if kind != 9: items.append((n-3, [f"s_mov_b32 s{sSLOT}, s{sT1}"]))
    for l in spread(M, items): a(l)
    S.dyn(10)
    if kind in ('loop', 0, 7): a(f"s_waitcnt vmcnt(6) lgkmcnt(0)")
    elif kind == 8: a(f"s_waitcnt vmcnt({c.y8}) lgkmcnt(0)")
    else: a("s_waitcnt lgkmcnt(0)")
    S.dyn(20)
    a("s_barrier")
    S.dyn(30)
    if prio: a("s_setprio 3")
    if pre2: pre2()
    M = mfmas(c, 1)
    items = []
    if kind != 9: items = [(k, g) for k, g in enumerate(merge(reads(c, 0, 0), 2))]
    if prio: items.append((n//2, ["s_setprio 2"]))
    if kind in ('loop', 0):
        items += even(dmaA(c, a), n, 2)
        if kind == 0: items.append((0, duty(a, c.duty.get(0))))
        else:
            for it in range(1, 7): items.append((0, duty(a, c.duty.get(it), it)))
    items += even(list(extra2), n, 0)
    for l in spread(M, items): a(l)

def main_loop(a, c, S, tag, rec_loads):
    iteration(a, c, S, 0)
    nonce_get(a, c.VN, c.VPS)
    a(f"s_mov_b32 s{sI}, 1")
    a.label(f"Lloop_{tag}")
    iteration(a, c, S, 'loop')
    lx = a.uid("Ls")
    tf = f"buffer_load_dwordx2 {vr(c.VN,2)}, v{c.VTF}, {sr(SFL,4)}, 0 offen sc1"
    a(f"s_cmp_lg_u32 s{sI}, 5\ns_cbranch_scc1 {lx}")
    a(tf)
    a.label(lx)
    a(f"s_add_u32 s{sI}, s{sI}, 1\ns_cmp_lt_u32 s{sI}, 7\ns_cbranch_scc1 Lloop_{tag}")
    early = [wfrag(p) for p in c.early]
    e = chunks(early, (len(early)+4)//5)
    def pre7():
        poll(a, [tf], [c.VN], True)
        for l in p2_ldsbases(): a(l)
    iteration(a, c, S, 7, extra2=e[0], pre2=pre7)
    a(f"s_add_u32 s{sI}, s{sI}, 1")
    c.y8 = len(e[0]) + len(e[1]) + len(rec_loads)
    iteration(a, c, S, 8, extra1=rec_loads + e[1], extra2=e[2])
    a(f"s_add_u32 s{sI}, s{sI}, 1")
    iteration(a, c, S, 9, extra1=e[3], extra2=e[4] + c.tailx)
    a("s_setprio 0")
    c.yrec = len(e[1]) + len(e[2]) + len(e[3]) + len(e[4])
    S(4)

def rho_local(a, d, t):
    a(f"v_bfe_u32 v{d}, v{LANE}, 2, 3\nv_lshrrev_b32 v{t}, 5, v{LANE}\nv_lshl_add_u32 v{d}, v{t}, 4, v{d}")

def side_loads(a, stat=True):
    ld, lst, lh, lj = a.uid("Lt"), a.uid("Lt"), a.uid("Lt"), a.uid("Lt")
    sU, sKp, sCh = sK, sK+1, sK+2
    A0, A1, ST0, ST1 = SIDE, SIDE+1, SIDE+2, SIDE+3
    a(f"s_cmp_ge_u32 s{sW}, 6\ns_cbranch_scc1 {lst}")
    a(f"""
    s_mul_i32 s{sU}, s2, 3
    s_add_u32 s{sU}, s{sU}, s{sW}
    s_sub_u32 s{sU}, s{sU}, 3
    s_min_u32 s{sU}, s{sU}, 739
    s_mul_i32 s{sKp}, s{sU}, 6554
    s_lshr_b32 s{sKp}, s{sKp}, 16
    s_mul_i32 s{sT0}, s{sKp}, 10
    s_sub_u32 s{sCh}, s{sU}, s{sT0}
    v_lshrrev_b32 v{T0}, 5, v{LANE}
    s_cmp_ge_u32 s{sKp}, 20
    s_cbranch_scc1 {lh}
    """)
    for e, (A, ST) in enumerate(((A0, ST0), (A1, ST1))):
        a(f"""
        s_lshl_b32 s{sT0}, s{sKp}, 2
        s_add_u32 s{sT0}, s{sT0}, {2*e}
        v_add_u32 v{T1}, s{sT0}, v{T0}
        v_mul_u32_u24 v{T2}, 205, v{T1}
        v_lshrrev_b32 v{T2}, 10, v{T2}
        v_mul_u32_u24 v{T3}, 5, v{T2}
        v_sub_u32 v{T1}, v{T1}, v{T3}
        v_mul_u32_u24 v{A}, 40, v{T2}
        v_lshrrev_b32 v{T2}, 1, v{T1}
        v_mul_u32_u24 v{T2}, 20, v{T2}
        v_and_b32 v{T3}, 1, v{T1}
        v_lshl_add_u32 v{T2}, v{T3}, 3, v{T2}
        v_cmp_eq_u32 vcc, 4, v{T1}
        v_mov_b32 v{ST}, 20
        s_nop 0
        v_cndmask_b32 v{T2}, v{T2}, 16, vcc
        v_cndmask_b32 v{ST}, 4, v{ST}, vcc
        v_add_u32 v{A}, v{A}, v{T2}
        """)
    a("s_waitcnt lgkmcnt(0)")
    srd(a, SPF, P_WO, 640*1280)
    a(f"s_branch {lj}")
    a.label(lh)
    a(f"""
    s_sub_u32 s{sT0}, s{sKp}, 20
    s_mul_i32 s{sT1}, s{sT0}, 86
    s_lshr_b32 s{sT1}, s{sT1}, 8
    s_mul_i32 s{sT1}, s{sT1}, 3
    s_sub_u32 s{sT1}, s{sT0}, s{sT1}
    s_lshl_b32 s{sT0}, s{sT0}, 5
    v_lshl_add_u32 v{A0}, v{T0}, 2, s{sT0}
    s_cmp_eq_u32 s{sT1}, 1
    s_cselect_b32 s{sT1}, 16, 8
    s_cselect_b32 s{sT2}, 8, 16
    v_add_u32 v{A1}, s{sT1}, v{A0}
    v_mov_b32 v{ST0}, s{sT2}
    v_mov_b32 v{ST1}, s{sT2}
    """)
    a("s_waitcnt lgkmcnt(0)")
    srd(a, SPF, P_W2, 1728*1280)
    a.label(lj)
    a(f"""
    v_bfe_u32 v{T1}, v{LANE}, 3, 2
    v_and_b32 v{T2}, 7, v{LANE}
    v_lshlrev_b32 v{T2}, 4, v{T2}
    s_lshl_b32 s{sT0}, s{sCh}, 7
    s_lshl_b32 s{sT1}, s{sW}, 12
    """)
    for q in range(4):
        A, ST = ((A0, ST0), (A1, ST1))[q & 1]
        a(f"v_add_u32 v{T3}, v{A}, v{T1}")
        if q >> 1: a(f"v_add_u32 v{T3}, v{T3}, v{ST}")
        a(f"v_mul_u32_u24 v{T3}, 1280, v{T3}\nv_add_u32 v{T3}, v{T3}, v{T2}\ns_add_u32 m0, s{sT1}, {L_TST-3*4096+1024*q}\ns_nop 0")
        a(f"buffer_load_dwordx4 v{T3}, {sr(SPF,4)}, s{sT0} offen {TFL} lds")
    a(f"s_mul_i32 s{sT2}, s{sKp}, 5\ns_lshl_b32 s{sT3}, s{sCh}, 2")
    for t in range(4):
        a(f"""
        s_add_u32 s{sT0}, s{sT3}, {t}
        s_mul_i32 s{sT1}, s{sT0}, 52
        s_lshr_b32 s{sT1}, s{sT1}, 8
        s_mul_i32 s{sT1}, s{sT1}, 365
        s_add_u32 s{sT0}, s{sT0}, s{sT1}
        s_add_u32 s{sT0}, s{sT0}, s{sT2}
        s_lshl_b32 s{sTS[t]}, s{sT0}, 10
        """)
    a(f"s_branch {ld}")
    a.label(lst)
    if stat: stat_loads(a, False)
    a.label(ld)
def stat_loads(a, guard=True):
    stat_row(a)
    a(f"s_mul_i32 s{sT0}, s{sT0}, 1280\nv_mul_u32_u24 v{T0}, 1280, v{G}\nv_lshl_add_u32 v{T0}, v{R}, 4, v{T0}\ns_waitcnt lgkmcnt(0)")
    srd(a, SX, P_X, XB)
    for i in range(5): a(f"buffer_load_dwordx4 {vr(SIDE+4*i,4)}, v{T0}, {sr(SX,4)}, s{sT0} offen offset:{256*i}")
for u in range(1001): assert (u*6554)>>16 == u//10
for u in range(80): assert (u*205)>>10 == u//5
for u in range(54): assert (u*86)>>8 == u//3
for N in range(40): assert (N*52)>>8 == N//5

def side_work(a, younger, vPS):
    lab, ls = a.uid("Ltw"), a.uid("Ltw")
    a(f"s_cmp_lt_u32 s{sW}, 3\ns_cbranch_scc1 {lab}")
    a(f"s_waitcnt vmcnt({younger})")
    a(f"s_cmp_ge_u32 s{sW}, 6\ns_cbranch_scc1 {ls}")
    t_part(a)
    a(f"s_branch {lab}")
    a.label(ls)
    s_part(a, vPS)
    a.label(lab)
def t_part(a):
    tmp = SIDE
    a(f"""
    v_lshrrev_b32 v{T0}, 2, v{LANE}
    v_lshlrev_b32 v{T0}, 7, v{T0}
    v_and_b32 v{T1}, 3, v{LANE}
    v_lshl_add_u32 v{T0}, v{T1}, 3, v{T0}
    s_lshl_b32 s{sT0}, s{sW}, 12
    s_add_u32 s{sT0}, s{sT0}, {L_TST-3*4096}
    v_add_u32 v{T0}, s{sT0}, v{T0}
    """)
    for t in range(4):
        a(f"ds_read_b64_tr_b16 {vr(tmp+4*t,2)}, v{T0} offset:{32*t}")
        a(f"ds_read_b64_tr_b16 {vr(tmp+4*t+2,2)}, v{T0} offset:{32*t+2048}")
    for t in range(4):
        a(f"s_waitcnt lgkmcnt({6-2*t})\nbuffer_store_dwordx4 {vr(tmp+4*t,4)}, v{VL}, {sr(SFL,4)}, s{sTS[t]} offen sc1")
def s_part(a, vPS):
    tmp = SIDE
    s, q = vPS, vPS+1
    a(f"v_mov_b32 v{s}, 0\nv_mov_b32 v{q}, 0\nv_mov_b32 v{T0}, 0x3f803f80")
    for j in range(20):
        a(f"v_dot2c_f32_bf16 v{s}, v{tmp+j}, v{T0}\nv_dot2c_f32_bf16 v{q}, v{tmp+j}, v{tmp+j}")
    a("s_nop 2")
    for sh in (8, 4, 2, 1):
        a(f"v_add_f32_dpp v{s}, v{s}, v{s} row_ror:{sh} row_mask:0xf bank_mask:0xf")
        a(f"v_add_f32_dpp v{q}, v{q}, v{q} row_ror:{sh} row_mask:0xf bank_mask:0xf")
        a("s_nop 0")
    a(f"""
    v_mul_f32 v{s}, {f32(1/640)}, v{s}
    v_mul_f32 v{q}, {f32(1/640)}, v{q}
    v_fma_f32 v{q}, -v{s}, v{s}, v{q}
    v_max_f32 v{q}, 0, v{q}
    v_cvt_pk_bf16_f32 v{T0}, v{s}, v{q}
    v_lshlrev_b32 v{T1}, 16, v{T0}
    v_and_b32 v{q}, 0xffff0000, v{T0}
    v_add_f32 v{q}, {f32(1e-5)}, v{q}
    v_cvt_pk_bf16_f32 v{q}, v{q}, v{q}
    v_and_b32 v{q}, 0xffff0000, v{q}
    v_sqrt_f32 v{q}, v{q}
    s_nop 0
    v_cvt_pk_bf16_f32 v{q}, v{q}, v{q}
    v_and_b32 v{q}, 0xffff0000, v{q}
    v_rcp_f32 v{s}, v{q}
    s_nop 0
    v_mul_f32 v{q}, v{T1}, v{s}
    v_sub_f32 v{q}, 0, v{q}
    """)

def p2_setup(a, VTF):
    a(f"""
    s_and_b32 s{sT0}, s2, 7
    s_lshl_b32 s{sR2}, s{sT0}, 2
    s_bfe_u32 s{sT1}, s2, 0x20003
    s_add_u32 s{sR2}, s{sR2}, s{sT1}
    s_lshr_b32 s{sC2}, s2, 5
    s_cmp_lt_u32 s{sW}, 2
    s_cselect_b32 s{sN2}, 10, 9
    s_lshl_b32 s{sT1}, s{sT1}, 1
    s_add_u32 s{sT1}, s{sT1}, s{sC2}
    s_cmp_ge_u32 s{sT1}, s{sN2}
    s_cselect_b32 s{sT2}, s{sN2}, 0
    s_sub_u32 s{sK}, s{sT1}, s{sT2}
    """)
    for t in range(1, 10):
        a(f"s_add_u32 s{sK+t}, s{sK+t-1}, 1\ns_cmp_eq_u32 s{sK+t}, s{sN2}\ns_cselect_b32 s{sK+t}, 0, s{sK+t}")
    a(f"s_cmp_lt_u32 s{sW}, 2\ns_cselect_b32 s{sK+9}, s{sK+9}, 0x10000")
    a(f"""
    s_mul_i32 s{sT3}, s{sW}, 9
    s_min_u32 s{sT2}, s{sW}, 2
    s_add_u32 s{sT3}, s{sT3}, s{sT2}
    v_lshrrev_b32 v{T0}, 1, v{LANE}
    s_sub_u32 s{sT2}, s{sN2}, 1
    v_min_u32 v{T0}, s{sT2}, v{T0}
    v_add_u32 v{T0}, s{sT3}, v{T0}
    v_mul_u32_u24 v{T0}, 10, v{T0}
    s_mul_i32 s{sT2}, s{sC2}, 5
    s_lshr_b32 s{sT2}, s{sT2}, 2
    v_and_b32 v{T1}, 1, v{LANE}
    v_add3_u32 v{T0}, v{T0}, v{T1}, s{sT2}
    v_mul_u32_u24 v{T0}, 21846, v{T0}
    v_lshrrev_b32 v{T0}, 16, v{T0}
    v_lshlrev_b32 v{T0}, 3, v{T0}
    v_add_u32 v{VTF}, {TFO}, v{T0}
    s_mul_i32 s{sT2}, s{sC2}, 74
    s_add_u32 s{sT2}, s{sT2}, s{sT3}
    s_mul_i32 s{sT2}, s{sT2}, 5120
    s_add_u32 s{sT2}, s{sT2}, {WT_OFF}
    s_add_u32 s{SWT}, s{P_WS}, s{sT2}
    s_addc_u32 s{SWT+1}, s{P_WS+1}, 0
    s_mul_i32 s{SWT+2}, s{sN2}, 5120
    s_mov_b32 s{SWT+3}, 0x00020000
    s_mul_i32 s{sT2}, s{sR2}, 74
    s_add_u32 s{sT2}, s{sT2}, s{sT3}
    s_lshl_b32 s{sT2}, s{sT2}, 12
    s_add_u32 s{SPF}, s{P_WS}, s{sT2}
    s_addc_u32 s{SPF+1}, s{P_WS+1}, 0
    s_lshl_b32 s{SPF+2}, s{sN2}, 12
    s_mov_b32 s{SPF+3}, 0x00020000
    """)
    ly, lyd = a.uid("Ly"), a.uid("Ly")
    a(f"""
    s_cmp_ge_u32 s{sW}, 2
    s_cbranch_scc1 {ly}
    s_lshr_b32 s{sT0}, s{sR2}, 1
    s_lshl_b32 s{sT0}, s{sT0}, 7
    s_lshl_b32 s{sT1}, s{sW}, 5
    s_add_u32 s{sT0}, s{sT0}, s{sT1}
    s_add_u32 s{sT0}, s{sT0}, {FLB+16*128}
    v_and_b32 v{T0}, 3, v{LANE}
    v_lshl_add_u32 v{VF}, v{T0}, 3, s{sT0}
    s_branch {lyd}
    """)
    a.label(ly)
    a(f"""
    s_lshl_b32 s{sT0}, s{sR2}, 6
    s_add_u32 s{sT1}, s{sT0}, 63
    s_mul_i32 s{sT0}, s{sT0}, 27595
    s_lshr_b32 s{sT0}, s{sT0}, 22
    s_mul_i32 s{sT1}, s{sT1}, 27595
    s_lshr_b32 s{sT1}, s{sT1}, 22
    s_sub_u32 s{sT1}, s{sT1}, s{sT0}
    s_lshl_b32 s{sT1}, s{sT1}, 7
    s_lshl_b32 s{sT0}, s{sT0}, 7
    s_sub_u32 s{sT2}, s{sW}, 2
    s_mul_i32 s{sT2}, s{sT2}, 3
    s_lshr_b32 s{sT2}, s{sT2}, 1
    s_lshl_b32 s{sT2}, s{sT2}, 3
    s_add_u32 s{sT0}, s{sT0}, s{sT2}
    s_add_u32 s{sT0}, s{sT0}, {FLB}
    v_and_b32 v{T0}, 1, v{LANE}
    v_lshlrev_b32 v{T0}, 3, v{T0}
    v_bfe_u32 v{T1}, v{LANE}, 1, 1
    v_mul_u32_u24 v{T1}, s{sT1}, v{T1}
    v_add3_u32 v{VF}, v{T0}, v{T1}, s{sT0}
    """)
    a.label(lyd)
    a(f"""
    s_lshl_b32 s{sT0}, s{sR2}, 6
    v_add_u32 v{T0}, s{sT0}, v{R}
    v_mul_u32_u24 v{T0}, 1280, v{T0}
    v_lshl_add_u32 v{T0}, v{G}, 3, v{T0}
    s_mul_i32 s{sT0}, s{sC2}, 160
    v_add_u32 v{VXO}, s{sT0}, v{T0}
    """)
for u in range(740): assert (u*21846)>>16 == u//3
for x in range(2048): assert (x*27595)>>22 == x//152

class Inter:
    def __init__(s, a, groups, every): s.a, s.g, s.e, s.n = a, list(groups), every, 0
    def __call__(s, txt):
        for l in lines(txt):
            s.a(l); s.n += 1
            if s.n % s.e == 0 and s.g:
                for x in s.g.pop(0): s.a(x)
    def flush(s, keep=0):
        while len(s.g) > keep:
            for x in s.g.pop(0): s.a(x)

def gen(stamps=False, PF=4, pff="", qevery=14, fevery=11, exp="", NB=4, dq={}, df={'pre':[4,5],0:[6,7],2:[8,9]}, tfl="nt", nearly=10, TLB=0):
    global EXP, PFF, DN, DMASK, DPRE, TFL
    EXP = set(exp.split()); PFF = pff; TFL = tfl
    assert PF % 2 == 0 and sorted(sum(dq.values(), []) + sum(df.values(), [])) == list(range(PF, 10))
    a = Asm(); S = St(a, stamps)
    name = NAME + "_kernel"
    def emit(groups):
        for g in groups:
            for l in g: a(l)
    a(f"s_cmp_ge_u32 s2, 256\ns_cbranch_scc1 Lend")
    a(f"s_load_dwordx16 s[40:55], s[0:1], 0\ns_load_dwordx4 s[56:59], s[0:1], 64\ns_load_dwordx2 s[60:61], s[0:1], 80")
    a(f"""
    v_lshrrev_b32 v{T0}, 6, v0
    v_and_b32 v{LANE}, 63, v0
    v_readfirstlane_b32 s{sW}, v{T0}
    v_lshrrev_b32 v{G}, 4, v{LANE}
    v_and_b32 v{R}, 15, v{LANE}
    v_lshlrev_b32 v{VL}, 4, v{LANE}
    s_lshl_b32 s{sW1K}, s{sW}, 10
    s_mov_b32 s{sI}, 0
    v_lshrrev_b32 v{T0}, 3, v{LANE}
    v_mul_u32_u24 v{T0}, 1280, v{T0}
    s_lshl_b32 s{sT0}, s{sW}, 2
    v_add_u32 v{T1}, s{sT0}, v{G}
    v_xor_b32 v{T1}, v{T1}, v{LANE}
    v_and_b32 v{T1}, 7, v{T1}
    v_lshl_add_u32 v11, v{T1}, 4, v{T0}
    s_and_b32 s{sT0}, s{sW}, 1
    s_lshl_b32 s{sT0}, s{sT0}, 1
    s_and_b32 s{sT1}, s{sW}, 2
    s_lshl_b32 s{sT1}, s{sT1}, 2
    s_add_u32 s{sT0}, s{sT0}, s{sT1}
    s_and_b32 s{sT1}, s{sW}, 4
    s_add_u32 s{sWO}, s{sT0}, s{sT1}
    """)
    def pf_addr(nrow_cu, kper, nst, cidx_s, VD):
        pass
    lx, lq, ld, lw = a.uid("Lpf"), a.uid("Lpf"), a.uid("Lpf"), a.uid("Lpf")
    a(f"""
    s_lshr_b32 s{sT2}, s2, 3
    s_and_b32 s{sT0}, s2, 1
    s_bfe_u32 s{sT1}, s2, 0x20001
    """)
    if PF:
        a(f"""
        s_cmp_ge_u32 s{sW}, 3
        s_cbranch_scc1 {lw}
        s_cmp_ge_u32 s{sW}, 1
        s_cbranch_scc1 {lq}
        s_mul_i32 s{sT0}, s{sT0}, 1008
        s_mul_i32 s{sT2}, s{sT2}, 34
        s_add_u32 s{sT0}, s{sT0}, s{sT2}
        v_min_u32 v{T0}, 33, v{LANE}
        v_add_u32 v{T0}, s{sT0}, v{T0}
        v_mul_u32_u24 v{T0}, 1280, v{T0}
        s_waitcnt lgkmcnt(0)
        """)
        srd(a, SX, P_X, XB)
        for s_ in range(PF): a(f"buffer_load_dword v255, v{T0}, {sr(SX,4)}, 0 offen offset:{128*s_} {pff}")
        a(f"s_branch {ld}")
        a.label(lq)
        a(f"""
        v_min_u32 v{T0}, 35, v{LANE}
        v_mul_u32_u24 v{T1}, 57, v{T0}
        v_lshrrev_b32 v{T1}, 9, v{T1}
        v_mul_u32_u24 v{T3}, 9, v{T1}
        v_sub_u32 v{T0}, v{T0}, v{T3}
        v_lshrrev_b32 v{T3}, 1, v{T1}
        v_mul_u32_u24 v{T3}, 62, v{T3}
        v_add_u32 v{T1}, v{T1}, v{T3}
        s_lshl_b32 s{sT2}, s{sT2}, 1
        v_add_u32 v{T1}, s{sT2}, v{T1}
        s_cmp_eq_u32 s{sW}, 2
        s_cbranch_scc1 {lx}
        v_mul_u32_u24 v{T1}, 3840, v{T1}
        v_mul_u32_u24 v{T3}, 43, v{T0}
        v_lshrrev_b32 v{T3}, 7, v{T3}
        v_mul_u32_u24 v{T3}, 896, v{T3}
        v_lshl_add_u32 v{T0}, v{T0}, 7, v{T3}
        v_add_u32 v{T0}, v{T0}, v{T1}
        s_mul_i32 s{sT1}, s{sT1}, 320
        s_and_b32 s{sT1}, s{sT1}, 0xffffff80
        s_waitcnt lgkmcnt(0)
        """)
        srd(a, SPF, P_WQ, 640*3840)
        for s_ in range(PF//2): a(f"buffer_load_dword v255, v{T0}, {sr(SPF,4)}, s{sT1} offen {pff}\ns_add_u32 s{sT1}, s{sT1}, {128*3840}")
        a(f"s_branch {ld}")
        a.label(lx)
        a(f"v_mul_u32_u24 v{T1}, 3456, v{T1}\nv_lshl_add_u32 v{T0}, v{T0}, 7, v{T1}\ns_mul_i32 s{sT1}, s{sT1}, 768\ns_waitcnt lgkmcnt(0)")
        srd(a, SPF, P_W1, 640*3456)
        for s_ in range(PF//2): a(f"buffer_load_dword v255, v{T0}, {sr(SPF,4)}, s{sT1} offen {pff}\ns_add_u32 s{sT1}, s{sT1}, {128*3456}")
        a(f"s_branch {ld}")
        for l in range(54): assert (l*57)>>9 == l//9
    a.label(lw)
    ln = a.uid("Ln")
    a(f"s_cmp_lg_u32 s2, 0\ns_cbranch_scc1 {ln}\ns_cmp_lg_u32 s{sW}, 7\ns_cbranch_scc1 {ln}\ns_waitcnt lgkmcnt(0)")
    srd(a, SDBG, P_DBG, 256)
    a(f"""
    s_memrealtime {sr(sNON,2)}
    s_waitcnt lgkmcnt(0)
    s_or_b32 s{sNON}, s{sNON}, 1
    v_mov_b32 v{T0}, s{sNON}
    v_mov_b32 v{T1}, s{sNON+1}
    v_mov_b32 v{T2}, 0
    s_mov_b64 exec, 1
    buffer_store_dwordx2 {vr(T0,2)}, v{T2}, {sr(SDBG,4)}, 0 offen sc1
    s_mov_b64 exec, -1
    """)
    a.label(ln)
    side_loads(a)
    a.label(ld)
    S.start()
    srd(a, SX, P_X, XB)
    a(f"""
    s_and_b32 s{sT0}, s2, 1
    s_bfe_u32 s{sT1}, s2, 0x20001
    s_lshr_b32 s{sT2}, s2, 3
    s_cmp_ge_u32 s{sT2}, 16
    s_cbranch_scc1 Lffn
    """)
    def late_srds():
        srd(a, SHO, P_WS, HO_SZ); srd(a, SFL, P_WS, FL_SZ, WT_OFF); srd(a, SDBG, P_DBG, 256)
    def set_stage(c, st): emit([stage_set(c, st)])
    def pretouch(flagoff_s):
        lp = a.uid("Lpt")
        a(f"s_cmp_lg_u32 s{sW}, 7\ns_cbranch_scc1 {lp}")
        stat_row(a)
        a(f"""
        s_lshl_b32 s{sT0}, s{sT0}, 4
        s_add_u32 s{sT0}, s{sT0}, {STO}
        v_mov_b32 v{T0}, s{sT0}
        s_lshl_b32 s{sT0}, s2, 3
        s_add_u32 s{sT0}, s{sT0}, {TFO}
        v_writelane_b32 v{T0}, s{sT0}, 1
        """)
        if flagoff_s is not None:
            a(f"s_add_u32 s{sT0}, s{flagoff_s}, {FLB}\nv_writelane_b32 v{T0}, s{sT0}, 2")
        a(f"buffer_load_dword v255, v{T0}, {sr(SFL,4)}, 0 offen sc1")
        if TLB:
            a(f"v_lshlrev_b32 v{T0}, {TLB}, v{LANE}")
            a(f"buffer_load_dword v255, v{T0}, {sr(SHO,4)}, 0 offen sc1")
            a(f"buffer_load_dword v255, v{T0}, {sr(SFL,4)}, 0 offen sc1")
            srd(a, SPF, P_OUT, XB)
            a(f"buffer_load_dword v255, v{T0}, {sr(SPF,4)}, 0 offen sc1")
            srd(a, SPF, P_B2, 1280)
            a(f"buffer_load_dword v255, v{T0}, {sr(SPF,4)}, 0 offen")
        a.label(lp)
    def pre_loop(c, setup):
        emit([duty(a, c.duty.get('pre0'))])
        late_srds()
        if 'nopt' not in EXP: pretouch(sHF)
        setup()
        p2_setup(a, c.VTF)
        S(1)
        a("s_barrier")
        set_stage(c, 0); emit(dmaA(c, a) + dmaB(c, a))
        side_work(a, 6, c.VPS)
        a(f"v_mov_b32 v{T0}, 0")
        a(f"buffer_load_dwordx2 {vr(c.VN,2)}, v{T0}, {sr(SDBG,4)}, 0 offen sc1")
        a("s_barrier")
        set_stage(c, 1); emit(dmaA(c, a))
        a(f"s_waitcnt vmcnt(4)")
        S(2)
        a("s_barrier")
        S(3)
        emit(reads(c, 0, 0))
        emit([duty(a, c.duty.get('pre'))])
        a(f"s_mov_b32 s{sSLOT}, {c.stg}")
    def alloc_common(c):
        al = Alloc(11)
        c.VX = al(); c.VW = al()
        c.xb = [al(), al()]; c.hb = [al(), al()]; c.wb = [al() for _ in range(c.nF)]
        c.VTF = al(); c.VRA = al(); c.VPS = al(2, 4); c.VN = al(2, 2); c.REC = al(20, 4)
        assert c.VPS == 24
        return al
    def w_voff(c, P):
        a(f"""
        v_cmp_le_u32 vcc, {P}, v{LANE}
        v_mov_b32 v{T1}, {c.wrowb}
        v_subrev_u32 v{T0}, {P}, v{LANE}
        v_cndmask_b32 v{T0}, v{LANE}, v{T0}, vcc
        v_cndmask_b32 v{T1}, 0, v{T1}, vcc
        s_mov_b32 s{sWM}, -1
        s_mov_b32 s{sWM+1}, {(1 << (2*P-32)) - 1}
        s_mul_i32 s{sWB}, s{sW}, {2*c.wrow}
        s_add_u32 s{sWB}, s{sWB}, {c.xsz}
        s_mul_i32 s{sWO}, s{sWO}, {c.wrowb}
        """)
    def publish(younger):
        lp = a.uid("Lp")
        a(f"""
        s_waitcnt vmcnt({younger})
        s_barrier
        s_cmp_lg_u32 s{sW}, 0
        s_cbranch_scc1 {lp}
        v_mov_b32 v{T0}, s{sNON}
        v_mov_b32 v{T1}, s{sNON+1}
        v_mov_b32 v{T2}, {FLB}
        s_mov_b64 exec, 1
        buffer_store_dwordx2 {vr(T0,2)}, v{T2}, {sr(SFL,4)}, s{sHF} offen sc1
        s_mov_b64 exec, -1
        """)
        a.label(lp)
        S(7)
    def duty_setup():
        lq2, lx2, ld2 = a.uid("Ld"), a.uid("Ld"), a.uid("Ld")
        a(f"""
        s_bfe_u32 s{sT2}, s2, 0x40003
        s_and_b32 s{sT0}, s2, 1
        s_bfe_u32 s{sT1}, s2, 0x20001
        s_cmp_ge_u32 s{sW}, 2
        s_cbranch_scc1 {lq2}
        s_mul_i32 s{sT0}, s{sT0}, 1008
        s_lshl_b32 s{sT2}, s{sT2}, 1
        s_add_u32 s{sT2}, s{sT2}, s{sW}
        s_mul_i32 s{sT2}, s{sT2}, 34
        s_add_u32 s{sT0}, s{sT0}, s{sT2}
        v_min_u32 v{T0}, 33, v{LANE}
        v_add_u32 v{T0}, s{sT0}, v{T0}
        v_mul_u32_u24 v254, 1280, v{T0}
        s_mov_b32 s{sPFS}, 128
        s_mov_b32 s{sPFO}, 0
        """)
        srd(a, STMP, P_X, XB)
        a(f"s_branch {ld2}")
        a.label(lq2)
        a(f"""
        v_min_u32 v{T0}, 35, v{LANE}
        v_mul_u32_u24 v{T1}, 57, v{T0}
        v_lshrrev_b32 v{T1}, 9, v{T1}
        v_mul_u32_u24 v{T3}, 9, v{T1}
        v_sub_u32 v{T0}, v{T0}, v{T3}
        s_lshl_b32 s{sT2}, s{sT2}, 2
        v_add_u32 v{T1}, s{sT2}, v{T1}
        s_cmp_ge_u32 s{sW}, 3
        s_cbranch_scc1 {lx2}
        v_mul_u32_u24 v{T1}, 3840, v{T1}
        v_mul_u32_u24 v{T3}, 43, v{T0}
        v_lshrrev_b32 v{T3}, 7, v{T3}
        v_mul_u32_u24 v{T3}, 896, v{T3}
        v_lshl_add_u32 v{T0}, v{T0}, 7, v{T3}
        v_add_u32 v254, v{T0}, v{T1}
        s_mul_i32 s{sT1}, s{sT1}, 320
        s_and_b32 s{sT1}, s{sT1}, 0xffffff80
        s_mov_b32 s{sPFS}, {64*3840}
        s_mov_b32 s{sPFO}, s{sT1}
        """)
        srd(a, STMP, P_WQ, 640*3840)
        a(f"s_branch {ld2}")
        a.label(lx2)
        a(f"""
        v_mul_u32_u24 v{T1}, 3456, v{T1}
        v_lshl_add_u32 v254, v{T0}, 7, v{T1}
        s_mul_i32 s{sT1}, s{sT1}, 768
        s_mov_b32 s{sPFS}, {64*3456}
        s_mov_b32 s{sPFO}, s{sT1}
        """)
        srd(a, STMP, P_W1, 640*3456)
        a.label(ld2)
    c = Cfg()
    c.nM, c.nF, c.nh, c.wrow, c.wrowb, c.stg, c.xsz, c.nxm, c.duty = 4, 4, 2, 480, 3840, 49152, 18432, 2, dq
    al = alloc_common(c)
    c.acc = [[al(4,4) for i in range(4)] for f in range(4)]
    c.acch = [al(4,4) for f in range(2)]
    lowtop = al.n
    al = Alloc(WREG)
    c.X = [[al(4,4) for i in range(4)] for s in range(2)]
    c.XH = [al(4,4) for s in range(2)]
    c.W = [[al(4,4) for f in range(4)] for s in range(2)]
    assert al.n == 208
    c.early = (list(range(20, 30)) + [18, 19] + list(range(30, 38)))[:nearly]
    a(f"""
    s_lshl_b32 s{sRB}, s{sT0}, 3
    s_and_b32 s{sT3}, s{sT2}, 7
    s_add_u32 s{sRB}, s{sRB}, s{sT3}
    s_lshl_b32 s{sCB}, s{sT1}, 1
    s_lshr_b32 s{sT3}, s{sT2}, 3
    s_add_u32 s{sCB}, s{sCB}, s{sT3}
    s_lshl_b32 s{sT3}, s{sRB}, 7
    s_lshl_b32 s{sT0}, s{sW}, 3
    s_add_u32 s{sT3}, s{sT3}, s{sT0}
    s_sub_u32 s{sT3}, s{sT3}, 16
    s_max_i32 s{sT0}, s{sT3}, 0
    s_mul_i32 s{sXO}, s{sT0}, 1280
    s_add_u32 s{sT3}, s{sT3}, 64
    s_mul_i32 s{sXO+1}, s{sT3}, 1280
    s_add_u32 s{sXO+2}, s{sXO+1}, 81920
    """)
    w_voff(c, 30)
    a(f"""
    v_mul_u32_u24 v{T2}, 26, v{T0}
    v_lshrrev_b32 v{T2}, 8, v{T2}
    v_mul_u32_u24 v{T2}, 1120, v{T2}
    v_lshl_add_u32 v{T0}, v{T0}, 4, v{T2}
    v_add_u32 v{c.VW}, v{T0}, v{T1}
    s_mul_i32 s{sT0}, s{sCB}, 160
    s_add_u32 s{sWO}, s{sWO}, s{sT0}
    """)
    srd(a, SW, P_WQ, 640*3840)
    if c.duty: duty_setup()
    a(f"s_add_u32 s{sT0}, s{sRB}, 16\ns_lshl_b32 s{sT0}, s{sT0}, 7\ns_lshl_b32 s{sT1}, s{sCB}, 3\ns_add_u32 s{sHF}, s{sT0}, s{sT1}")
    def q_setup():
        a(f"s_lshr_b32 s{sMH}, s{sW}, 2\ns_and_b32 s{sT0}, s{sW}, 3\ns_lshl_b32 s{sT0}, s{sT0}, 2\ns_lshl_b32 s{sT1}, s{sMH}, 1")
        for f in range(4):
            a(f"s_xor_b32 s{sT2}, s{sT1}, {f}\ns_add_u32 s{sT2}, s{sT2}, s{sT0}\ns_min_u32 s{sNT+f}, s{sT2}, 14")
        a(f"""
        s_mov_b32 s{sMSK}, 0xfffefffe
        s_mov_b32 s{sMSK+1}, 0xfffefffe
        v_lshrrev_b32 v{T0}, 1, v{R}
        v_xor_b32 v{T0}, v{T0}, v{G}
        v_lshlrev_b32 v{T0}, 4, v{T0}
        v_lshl_add_u32 v{T0}, v{R}, 7, v{T0}
        v_add_u32 v{c.hb[0]}, {c.stg}, v{T0}
        v_xor_b32 v{c.hb[1]}, 64, v{c.hb[0]}
        s_lshl_b32 s{sT0}, s{sMH}, 13
        s_add_u32 s{sT0}, s{sT0}, 2048
        v_add_u32 v{c.xb[0]}, s{sT0}, v{c.hb[0]}
        v_add_u32 v{c.xb[1]}, s{sT0}, v{c.hb[1]}
        """)
        rho_local(a, T0, T1)
        a(f"v_mul_u32_u24 v{T0}, 480, v{T0}\nv_and_b32 v{T1}, 3, v{LANE}\nv_lshl_add_u32 v{T0}, v{T1}, 3, v{T0}")
        for f in range(4):
            a(f"s_lshl_b32 s{sT0}, s{sNT+f}, 5\ns_add_u32 s{sT0}, s{sT0}, {c.xsz+c.stg}\nv_add_u32 v{c.wb[f]}, s{sT0}, v{T0}")
        a(f"v_lshlrev_b32 v{c.VRA}, 4, v{R}")
        a(f"""
        s_lshl_b32 s{sT0}, s{sRB}, 7
        s_lshl_b32 s{sT1}, s{sMH}, 6
        s_add_u32 s{sT1}, s{sT1}, s{sT0}
        s_lshl_b32 s{sT1}, s{sT1}, 4
        s_add_u32 s{sRM}, s{sT1}, {STO}
        s_sub_u32 s{sT0}, s{sT0}, 16
        s_max_i32 s{sT0}, s{sT0}, 0
        s_lshl_b32 s{sT0}, s{sT0}, 4
        s_add_u32 s{sRH}, s{sT0}, {STO}
        """)
        for s in range(2):
            for r in range(4): a(f"v_mov_b32 v{c.XH[s]+r}, 0x3f803f80")
    pre_loop(c, q_setup)
    rec = [[f"buffer_load_dwordx4 {vr(c.REC+4*i,4)}, v{c.VRA}, {sr(SFL,4)}, s{sRM} offen offset:{256*i} sc1"] for i in range(4)]
    rec.append([f"buffer_load_dwordx4 {vr(c.REC+16,4)}, v{c.VRA}, {sr(SFL,4)}, s{sRH} offen sc1"])
    CSR = lowtop; CA = 11; WA = 15
    assert CSR + 16 <= WREG and WA + 6 <= c.VTF
    c.tailx = [lines(f"""
        s_lshl_b32 s{sT3}, s{sMH}, 6
        s_add_u32 s{sT3}, s{sT3}, 16
        s_mul_i32 s{sT3}, s{sT3}, {RS}
        v_mul_u32_u24 v{T2}, {RS}, v{R}
        v_lshlrev_b32 v{T3}, 4, v{G}""")]
    for f in range(4):
        c.tailx.append(lines(f"""
        s_lshl_b32 s{sT0}, s{sNT+f}, 6
        s_add_u32 s{sT0}, s{sT0}, {L_CS}
        v_add_u32 v{CA+f}, s{sT0}, v{T3}
        s_mul_i32 s{sT0}, s{sNT+f}, 52
        s_lshr_b32 s{sT0}, s{sT0}, 8
        s_mul_i32 s{sT2}, s{sT0}, 5
        s_sub_u32 s{sT2}, s{sNT+f}, s{sT2}
        s_lshl_b32 s{sT2}, s{sT2}, 2
        s_mul_i32 s{sT0}, s{sT0}, 192
        v_add_u32 v{T0}, s{sT2}, v{G}"""))
        c.tailx.append(lines(f"""
        v_mul_u32_u24 v{T1}, 52, v{T0}
        v_lshrrev_b32 v{T1}, 8, v{T1}
        v_add_u32 v{T0}, v{T0}, v{T1}"""))
        c.tailx.append(lines(f"v_lshl_add_u32 v{T0}, v{T0}, 3, v{T2}") + ([f"v_add_u32 v{WA+4+f}, s{sT0}, v{T0}"] if f < 2 else []) +
                       lines(f"s_add_u32 s{sT0}, s{sT0}, s{sT3}\nv_add_u32 v{WA+f}, s{sT0}, v{T0}"))
    main_loop(a, c, S, "q", rec)
    a(f"s_not_b64 exec, {sr(sMSK,2)}")
    for f in range(2): a(f"ds_write_b128 v{CA+f}, {vr(c.acch[f],4)}")
    a("s_mov_b64 exec, -1")
    a(f"s_waitcnt vmcnt({c.yrec})")
    poll(a, sum(rec, []), [c.REC+4*i+2 for i in range(5)], True)
    S(55)
    a("s_waitcnt lgkmcnt(0)\ns_barrier")
    S(56)
    for f in range(4): a(f"ds_read_b128 {vr(CSR+4*f,4)}, v{CA+f}")
    rest = [p for p in list(range(30, 38)) + list(range(30)) if p not in c.early]
    I = Inter(a, [wfrag(p) for p in rest], qevery)
    TP = c.VPS
    for f in range(4):
        I(f"s_waitcnt lgkmcnt({3-f if f == 0 else 15})" if f == 0 else "s_nop 0")
        if f == 1: I("s_waitcnt lgkmcnt(5)")
        tl = [(c.acc[f][i], WA+f, i*16*RS, c.REC+4*i) for i in range(4)]
        if f < 2: tl.append((c.acch[f], WA+4+f, 0, c.REC+16))
        for (ac, ad, off, st) in tl:
            I(f"""
            v_pk_mul_f32 {vr(TP,2)}, {vr(CSR+4*f,2)}, {vr(st,2)} op_sel:[0,1] op_sel_hi:[1,1]
            v_pk_mul_f32 {vr(TP+2,2)}, {vr(CSR+4*f+2,2)}, {vr(st,2)} op_sel:[0,1] op_sel_hi:[1,1]
            v_pk_fma_f32 {vr(ac,2)}, {vr(ac,2)}, {vr(st,2)}, {vr(TP,2)} op_sel:[0,0,0] op_sel_hi:[1,0,1]
            v_pk_fma_f32 {vr(ac+2,2)}, {vr(ac+2,2)}, {vr(st,2)}, {vr(TP+2,2)} op_sel:[0,0,0] op_sel_hi:[1,0,1]
            v_cvt_pk_bf16_f32 v{ac}, v{ac}, v{ac+1}
            v_cvt_pk_bf16_f32 v{ac+1}, v{ac+2}, v{ac+3}
            ds_write_b64 v{ad}, {vr(ac,2)} offset:{off}
            """)
    S(57)
    al = Alloc(11)
    AB = al(); OV = al(); OV1 = al(); L31 = al()
    MX = al(); SM_ = al()
    Q = al(12, 2); KB = [al(10, 2) for _ in range(5)]
    L = al(8, 2); PL = al(8); PH = al(8); O = al(20, 2); TPa = al(4)
    assert al.n <= WREG, al.n
    I(f"""
    s_and_b32 s{sT0}, s{sW}, 1
    s_lshr_b32 s{sT3}, s{sW}, 1
    s_lshl_b32 s{sT2}, s{sT3}, 5
    s_add_u32 s{sT2}, s{sT2}, 2
    v_and_b32 v{L31}, 31, v{LANE}
    v_add_u32 v{T0}, s{sT2}, v{L31}
    v_mul_u32_u24 v{T0}, {RS}, v{T0}
    v_lshrrev_b32 v{T1}, 5, v{LANE}
    v_mul_u32_u24 v{T2}, 48, v{T1}
    s_mul_i32 s{sT2}, s{sT0}, 96
    v_add3_u32 v{AB}, v{T0}, v{T2}, s{sT2}
    s_lshl_b32 s{sT2}, s{sCB}, 1
    s_add_u32 s{sT2}, s{sT2}, s{sT0}
    s_mul_i32 s{sT2}, s{sT2}, 5
    v_lshl_add_u32 v{T1}, v{T1}, 1, s{sT2}
    v_bfe_u32 v{T0}, v{LANE}, 4, 1
    v_lshlrev_b32 v{T0}, 10, v{T0}
    v_lshl_add_u32 v{T0}, v{R}, 4, v{T0}
    v_lshrrev_b32 v{T2}, 2, v{T1}
    v_lshl_add_u32 v{T2}, v{T2}, 12, v{T0}
    v_and_b32 v{T3}, 3, v{T1}
    v_lshl_add_u32 v{OV}, v{T3}, 8, v{T2}
    v_add_u32 v{T1}, 1, v{T1}
    v_lshrrev_b32 v{T2}, 2, v{T1}
    v_lshl_add_u32 v{T2}, v{T2}, 12, v{T0}
    v_and_b32 v{T3}, 3, v{T1}
    v_lshl_add_u32 v{OV1}, v{T3}, 8, v{T2}
    s_lshl_b32 s{sKX}, s{sRB}, 1
    s_add_u32 s{sKX}, s{sKX}, s{sMH}
    s_mul_i32 s{sKX}, s{sKX}, {74*4096}
    s_and_b32 s{sT1}, s{sT3}, 1
    s_lshl_b32 s{sT1}, s{sT1}, 11
    s_add_u32 s{sKX}, s{sKX}, s{sT1}
    s_add_u32 s{sT2}, s{sT2}, 4
    s_lshr_b32 s{sKW}, s{sT2}, 2
    s_lshl_b32 s{sKW}, s{sKW}, 12
    s_and_b32 s{sT2}, s{sT2}, 3
    s_lshl_b32 s{sT2}, s{sT2}, 8
    s_add_u32 s{sKW}, s{sKW}, s{sT2}
    s_add_u32 s{sKW}, s{sKW}, s{sKX}
    s_waitcnt lgkmcnt(0)
    s_barrier
    """)
    OV2 = T0
    S(5)
    def rd(dst, off):
        return f"ds_read_b128 {vr(dst,4)}, v{AB} offset:{off}\nds_read_b128 {vr(dst+4,4)}, v{AB} offset:{off+16}\nds_read_b64 {vr(dst+8,2)}, v{AB} offset:{off+32}"
    offs = [(14-2*w)*RS+192 for w in range(8)] + [(14-2*w)*RS+384 for w in range(8)]
    issued = 0
    def issue(n):
        nonlocal issued
        for _ in range(n):
            if issued < 16:
                I(rd(KB[issued % 5], offs[issued])); issued += 1
    def need(idx): I(f"s_waitcnt lgkmcnt({3*(issued-1-idx)})")
    I(rd(Q, 14*RS)); issue(4)
    for w in range(8): I(f"v_mov_b32 v{L+w}, 0")
    for d in range(20): I(f"v_mov_b32 v{O+d}, 0")
    for wp in range(4):
        w0, w1 = 2*wp, 2*wp+1
        need(w1)
        for d in range(10):
            for w in (w0, w1): I(f"v_dot2c_f32_bf16 v{L+w}, v{Q+d}, v{KB[w%5]+d}")
        issue(3 if wp == 0 else 2)
    lm = a.uid("Lm")
    a(f"s_or_b32 s{sT2}, s{sRB}, s{sT3}\ns_cmp_lg_u32 s{sT2}, 0\ns_cbranch_scc1 {lm}")
    a(f"v_mov_b32 v{TPa}, {f32(-1e9)}")
    for w in range(1, 8):
        a(f"v_cmp_le_u32 vcc, {2*w}, v{L31}\ns_nop 1\nv_cndmask_b32 v{L+w}, v{TPa}, v{L+w}, vcc")
    a.label(lm)
    cexp = (20 ** -0.5) * math.log2(math.e)
    I(f"""
    v_max3_f32 v{MX}, v{L}, v{L+1}, v{L+2}
    v_max3_f32 v{SM_}, v{L+3}, v{L+4}, v{L+5}
    v_max3_f32 v{MX}, v{MX}, v{L+6}, v{L+7}
    v_max_f32 v{MX}, v{MX}, v{SM_}
    """)
    for w in range(8): I(f"v_sub_f32 v{L+w}, v{L+w}, v{MX}")
    for w in range(8): I(f"v_mul_f32 v{L+w}, {f32(cexp)}, v{L+w}")
    for w in range(8): I(f"v_exp_f32 v{L+w}, v{L+w}")
    I(f"""
    v_add_f32 v{TPa}, v{L}, v{L+1}
    v_add_f32 v{TPa+1}, v{L+2}, v{L+3}
    v_add_f32 v{TPa+2}, v{L+4}, v{L+5}
    v_add_f32 v{TPa+3}, v{L+6}, v{L+7}
    v_add_f32 v{TPa}, v{TPa}, v{TPa+1}
    v_add_f32 v{TPa+2}, v{TPa+2}, v{TPa+3}
    v_add_f32 v{SM_}, v{TPa}, v{TPa+2}
    v_rcp_f32 v{SM_}, v{SM_}
    s_nop 0
    """)
    for w in range(8): I(f"v_mul_f32 v{L+w}, v{L+w}, v{SM_}")
    for w in range(8): I(f"v_cvt_pk_bf16_f32 v{PL+w}, v{L+w}, 0\nv_cvt_pk_bf16_f32 v{PH+w}, 0, v{L+w}")
    for w in range(8):
        need(8+w)
        for d in range(10):
            I(f"v_dot2c_f32_bf16 v{O+2*d}, v{KB[(8+w)%5]+d}, v{PL+w}\nv_dot2c_f32_bf16 v{O+2*d+1}, v{KB[(8+w)%5]+d}, v{PH+w}")
        issue(1)
    S(58)
    qleft = I.g; I.g = []
    for u in (0,1,2,3,8,9,4,5,6,7): a(f"v_cvt_pk_bf16_f32 v{Q+u}, v{O+2*u}, v{O+2*u+1}")
    a(f"""
    buffer_store_dwordx4 {vr(Q,4)}, v{OV}, {sr(SHO,4)}, s{sKX} offen sc1
    v_permlane32_swap_b32 v{Q+8}, v{Q+10}
    v_permlane32_swap_b32 v{Q+9}, v{Q+11}
    buffer_store_dwordx4 {vr(Q+4,4)}, v{OV1}, {sr(SHO,4)}, s{sKX} offen sc1
    s_mov_b32 exec_hi, 0
    buffer_store_dwordx4 {vr(Q+8,4)}, v{OV2}, {sr(SHO,4)}, s{sKW} offen sc1
    s_mov_b64 exec, -1
    """)
    S(6)
    a("s_barrier")
    qleft = qleft + [wfrag(p) for p in range(38, 45)]
    emit(qleft[:NB])
    publish(NB)
    emit(qleft[NB:])
    a("s_branch Lphase2")
    a.label("Lffn")
    c = Cfg()
    c.nM, c.nF, c.nh, c.wrow, c.wrowb, c.stg, c.xsz, c.nxm, c.duty = 5, 3, 0, 384, 3456, 49152, 20480, 4, df
    al = alloc_common(c)
    B1 = al(8, 2)
    c.acc = [[al(4,4) for i in range(5)] for f in range(3)]
    lowtop = al.n
    eal = al
    al = Alloc(WREG)
    c.X = [[al(4,4) for i in range(5)] for s in range(2)]
    c.W = [[al(4,4) for f in range(3)] for s in range(2)]
    assert al.n <= 208
    c.early = (list(range(20, 30)) + [18, 19] + list(range(30, 38)))[:nearly]
    a(f"""
    s_sub_u32 s{sT2}, s{sT2}, 16
    s_lshl_b32 s{sT1}, s{sT1}, 4
    s_add_u32 s{sT1}, s{sT1}, s{sT2}
    s_cmp_ge_u32 s{sT1}, 63
    s_cbranch_scc1 Lidle
    s_mul_i32 s{sCB}, s{sT1}, 37
    s_lshr_b32 s{sCB}, s{sCB}, 8
    s_sub_u32 s{sT3}, s{sCB}, s{sT0}
    s_mul_i32 s{sT3}, s{sT3}, 7
    s_sub_u32 s{sRB}, s{sT1}, s{sT3}
    s_mul_i32 s{sT3}, s{sRB}, {FROWS}
    s_lshl_b32 s{sT0}, s{sW}, 3
    s_add_u32 s{sT3}, s{sT3}, s{sT0}
    s_mul_i32 s{sXO}, s{sT3}, 1280
    s_add_u32 s{sXO+1}, s{sXO}, 81920
    s_add_u32 s{sXO+2}, s{sXO}, 163840
    """)
    w_voff(c, 24)
    a(f"""
    s_and_b32 s{sT0}, s{sW}, 3
    s_lshl_b32 s{sT0}, s{sT0}, 1
    v_xor_b32 v{T0}, s{sT0}, v{T0}
    v_lshl_add_u32 v{c.VW}, v{T0}, 4, v{T1}
    s_mul_i32 s{sT0}, s{sCB}, 384
    s_add_u32 s{sWO}, s{sWO}, s{sT0}
    """)
    srd(a, SW, P_W1, 640*3456)
    srd(a, SWT, P_B1, 3456)
    if c.duty: duty_setup()
    a(f"s_lshl_b32 s{sT0}, s{sRB}, 7\ns_lshl_b32 s{sT1}, s{sCB}, 3\ns_add_u32 s{sHF}, s{sT0}, s{sT1}")
    RHO = c.hb[0]
    def f_setup():
        a(f"""
        s_lshr_b32 s{sMH}, s{sW}, 2
        s_bfe_u32 s{sT0}, s{sW}, 0x10001
        s_and_b32 s{sT1}, s{sW}, 1
        s_mul_i32 s{sT0}, s{sT0}, 6
        s_lshl_b32 s{sT2}, s{sT1}, 2
        s_add_u32 s{sNT}, s{sT0}, s{sT2}
        s_add_u32 s{sNT+1}, s{sNT}, 1
        s_add_u32 s{sNT+2}, s{sT0}, s{sT1}
        s_add_u32 s{sNT+2}, s{sNT+2}, 2
        s_cmp_eq_u32 s{sMH}, 0
        s_cselect_b32 s{sMSK}, -1, 0x7fff7fff
        s_cselect_b32 s{sMSK+1}, -1, 0x7fff7fff
        v_lshrrev_b32 v{T0}, 1, v{R}
        v_xor_b32 v{T0}, v{T0}, v{G}
        v_lshlrev_b32 v{T0}, 4, v{T0}
        v_lshl_add_u32 v{T0}, v{R}, 7, v{T0}
        s_mul_i32 s{sT0}, s{sMH}, {5*2048}
        s_add_u32 s{sT0}, s{sT0}, {c.stg}
        v_add_u32 v{c.xb[0]}, s{sT0}, v{T0}
        v_xor_b32 v{c.xb[1]}, 64, v{c.xb[0]}
        """)
        rho_local(a, T0, T1)
        a(f"""
        v_bfe_u32 v{T2}, v{T0}, 1, 2
        v_mul_u32_u24 v{T0}, 384, v{T0}
        v_and_b32 v{T1}, 3, v{LANE}
        v_lshl_add_u32 v{T0}, v{T1}, 3, v{T0}
        v_add_u32 v{T0}, {c.xsz+c.stg}, v{T0}
        """)
        for f in range(3):
            a(f"v_xor_b32 v{T1}, s{sNT+f}, v{T2}\nv_lshl_add_u32 v{c.wb[f]}, v{T1}, 5, v{T0}")
        a(f"""
        s_mul_i32 s{sT0}, s{sRB}, {FROWS}
        s_mul_i32 s{sT1}, s{sMH}, 80
        s_add_u32 s{sT0}, s{sT0}, s{sT1}
        v_add_u32 v{RHO}, s{sT0}, v{R}
        v_lshlrev_b32 v{T0}, 4, v{RHO}
        v_add_u32 v{c.VRA}, {STO}, v{T0}
        """)
        for s in range(2):
            for r in range(4): a(f"v_mov_b32 v{c.X[s][4]+r}, 0x3f803f80")
        a(f"v_lshlrev_b32 v{T0}, 3, v{G}\ns_mul_i32 s{sT2}, s{sCB}, 384")
        for f in range(3):
            a(f"s_lshl_b32 s{sT1}, s{sNT+f}, 5\ns_add_u32 s{sT1}, s{sT1}, s{sT2}")
            a(f"buffer_load_dwordx2 {vr(B1+2*f,2)}, v{T0}, {sr(SWT,4)}, s{sT1} offen")
    pre_loop(c, f_setup)
    rec = [[f"v_add_u32 v{T3}, {256*i}, v{c.VRA}", f"v_min_u32 v{T3}, {STO+2047*16}, v{T3}",
            f"buffer_load_dwordx4 {vr(c.REC+4*i,4)}, v{T3}, {sr(SFL,4)}, 0 offen sc1"] for i in range(5)]
    CA = 17
    c.tailx = [[f"v_lshlrev_b32 v{T3}, 4, v{G}"]] + [lines(f"s_lshl_b32 s{sT0}, s{sNT+f}, 6\ns_add_u32 s{sT0}, s{sT0}, {L_CS}\nv_add_u32 v{CA+f}, s{sT0}, v{T3}") for f in range(3)]
    main_loop(a, c, S, "f", rec)
    a(f"s_waitcnt vmcnt({c.yrec})")
    poll(a, sum(rec, []), [c.REC+4*i+2 for i in range(5)], True)
    lc = a.uid("Lc")
    a(f"s_cmp_eq_u32 s{sMH}, 0\ns_cbranch_scc1 {lc}\ns_not_b64 exec, {sr(sMSK,2)}")
    for f in range(3): a(f"ds_write_b128 v{CA+f}, {vr(c.acc[f][4],4)}")
    a("s_mov_b64 exec, -1\ns_waitcnt lgkmcnt(0)")
    a.label(lc)
    a("s_barrier")
    CC = c.VPS; VA = 11
    CSR = eal(12, 2); TT = [eal(2,2) for _ in range(4)] + [12, B1+6]
    assert eal.n <= WREG, eal.n
    for f in range(3): a(f"ds_read_b128 {vr(CSR+4*f,4)}, v{CA+f}")
    BFp = [c.REC+4*i+2 for i in range(5)] + [B1+4]
    OUTP = [B1, 16]; SG = 20
    assert RHO == 15
    rest = [p for p in list(range(30, 45)) + list(range(30)) if p not in c.early]
    I = Inter(a, [wfrag(p) for p in rest], fevery)
    c0 = -2*math.sqrt(2/math.pi)*math.log2(math.e); c1 = c0*0.044715
    for j in range(5): I(f"v_lshlrev_b32 v{BFp[j]}, 16, v{B1+j}\nv_and_b32 v{BFp[j]+1}, 0xffff0000, v{B1+j}")
    I(f"v_lshlrev_b32 v{B1+4}, 16, v{B1+5}\nv_and_b32 v{B1+5}, 0xffff0000, v{B1+5}")
    I(f"v_mov_b32 v{CC}, {f32(c0)}\nv_mov_b32 v{CC+1}, {f32(c1)}\nv_mov_b32 v{CC+2}, 1.0")
    I(f"""
    v_and_b32 v{T2}, 15, v{RHO}
    v_lshlrev_b32 v{T2}, 4, v{T2}
    v_lshl_add_u32 v{T1}, v{G}, 8, v{T2}
    v_and_b32 v{T3}, 1, v{G}
    v_lshl_add_u32 v14, v{T3}, 8, v{T2}
    v_lshrrev_b32 v{T0}, 4, v{RHO}
    v_lshrrev_b32 v{T3}, 5, v{LANE}
    v_add_u32 v{RHO}, v{T0}, v{T3}
    s_mul_i32 s{sT2}, s{sCB}, 6
    s_add_u32 s{sT2}, s{sT2}, 20
    s_lshr_b32 s{sT0}, s{sNT}, 1
    s_add_u32 s{sT0}, s{sT0}, s{sT2}
    s_lshl_b32 s{sKX}, s{sT0}, 12
    s_lshr_b32 s{sT0}, s{sNT+2}, 1
    s_add_u32 s{sT0}, s{sT0}, s{sT2}
    s_lshl_b32 s{sKW}, s{sT0}, 12
    s_and_b32 s{sT0}, s{sNT+2}, 1
    s_lshl_b32 s{sT0}, s{sT0}, 9
    s_add_u32 s{sKW}, s{sKW}, s{sT0}
    s_mov_b32 s{sT3}, {74*4096}
    s_waitcnt lgkmcnt(0)
    """)
    a(f"s_cmp_eq_u32 s{sMH}, 0\ns_cselect_b32 s{sMSK}, -1, 0x00ff00ff\ns_mov_b32 s{sMSK+1}, s{sMSK}")
    def gelu_pair(h, cs, b, st, t, dst):
        return [f"v_pk_fma_f32 {vr(t,2)}, {vr(cs,2)}, {vr(st,2)}, {vr(b,2)} op_sel:[0,1,0] op_sel_hi:[1,1,1]",
                f"v_pk_fma_f32 {vr(h,2)}, {vr(h,2)}, {vr(st,2)}, {vr(t,2)} op_sel:[0,0,0] op_sel_hi:[1,0,1]",
                f"v_pk_mul_f32 {vr(t,2)}, {vr(h,2)}, {vr(h,2)}",
                f"v_pk_fma_f32 {vr(t,2)}, {vr(t,2)}, {vr(CC,2)}, {vr(CC,2)} op_sel:[0,1,0] op_sel_hi:[1,1,0]",
                f"v_pk_mul_f32 {vr(t,2)}, {vr(t,2)}, {vr(h,2)}",
                f"v_exp_f32 v{t}, v{t}",
                f"v_exp_f32 v{t+1}, v{t+1}",
                f"v_pk_add_f32 {vr(t,2)}, {vr(t,2)}, {vr(CC+2,2)} op_sel_hi:[1,0]",
                f"v_rcp_f32 v{t}, v{t}",
                f"v_rcp_f32 v{t+1}, v{t+1}",
                f"v_pk_mul_f32 {vr(t,2)}, {vr(t,2)}, {vr(h,2)}",
                f"v_cvt_pk_bf16_f32 v{dst}, v{t}, v{t+1}"]
    def blkaddr(dst, tile, low):
        I(f"""
        v_lshrrev_b32 v{T2}, 2, v{tile}
        v_mul_lo_u32 v{T2}, v{T2}, s{sT3}
        v_and_b32 v{T3}, 3, v{tile}
        v_lshl_add_u32 v{T2}, v{T3}, 10, v{T2}
        v_add_u32 v{dst}, v{T2}, v{low}
        """)
    for i in range(5):
        o = OUTP[i & 1]
        streams = [gelu_pair(c.acc[f][i]+2*hp, CSR+4*f+2*hp, BFp[2*f+hp], c.REC+4*i, TT[2*f+hp],
                             (o+2*f+hp) if f < 2 else (SG+2*(i&1)+hp)) for f in range(3) for hp in range(2)]
        for k in range(len(streams[0])):
            for s in streams: I(s[k])
        blkaddr(VA, T0, T1)
        I(f"v_add_u32 v{T0}, 1, v{T0}")
        if i == 4: a(f"s_mov_b64 exec, {sr(sMSK,2)}")
        a(f"buffer_store_dwordx4 {vr(o,4)}, v{VA}, {sr(SHO,4)}, s{sKX} offen sc1")
        if i == 4: a("s_mov_b64 exec, -1")
        if i & 1 or i == 4:
            a(f"v_permlane32_swap_b32 v{SG}, v{SG+2}\nv_permlane32_swap_b32 v{SG+1}, v{SG+3}")
            blkaddr(VA, RHO, 14)
            I(f"v_add_u32 v{RHO}, 2, v{RHO}")
            if i == 4: a(f"s_mov_b32 exec_lo, s{sMSK}\ns_mov_b32 exec_hi, 0")
            a(f"buffer_store_dwordx4 {vr(SG,4)}, v{VA}, {sr(SHO,4)}, s{sKW} offen sc1")
            if i == 4: a("s_mov_b64 exec, -1")
    left = len(I.g)
    S(6)
    nb = min(left, NB)
    I.flush(left - nb)
    publish(nb)
    I.flush()
    a("s_branch Lphase2")
    a.label("Lidle")
    late_srds()
    if c.duty:
        duty_setup()
        emit([duty(a, sorted(sum(df.values(), [])))])
    pretouch(None)
    p2_setup(a, 11)
    side_work(a, 0, 12)
    a(f"v_mov_b32 v14, 0\nv_mov_b32 v15, 0\ns_waitcnt vmcnt(0)\ns_barrier")
    nonce_get(a, 14, 12)
    poll(a, [f"buffer_load_dwordx2 v[14:15], v11, {sr(SFL,4)}, 0 offen sc1"], [14], False)
    for l in p2_ldsbases(): a(l)
    emit([wfrag(p) for p in c.early + rest])
    a.label("Lphase2")
    l9 = a.uid("L9")
    a(f"s_cmp_ge_u32 s{sW}, 2\ns_cbranch_scc1 {l9}")
    emit([wfrag(p) for p in range(45, 50)])
    a.label(l9)
    al = Alloc(12)
    VFD = al(2, 2); VLA = al(); VLB = al()
    acc = [[al(4,4) for m in range(4)] for n in range(5)]
    RING = [al(16, 4), al(16, 4)]
    XR = al(6, 2)
    assert al.n <= WREG, al.n
    S(8)
    poll(a, [f"buffer_load_dwordx2 {vr(VFD,2)}, v{VF}, {sr(SFL,4)}, 0 offen sc1"], [VFD], False)
    S(9)
    Wslot = [WREG+20*t for t in range(6)]
    abuf = {0: RING[0], 1: RING[1], 2: RING[0], 3: Wslot[0], 4: RING[1], 5: Wslot[1], 6: RING[0], 7: Wslot[0], 8: RING[1], 9: Wslot[1]}
    issue_after = {0: [2, 3], 1: [4, 5], 2: [6], 3: [7], 4: [8], 5: [9]}
    wloc = {t: Wslot[t] for t in range(6)}
    wloc.update({6: Wslot[2], 7: Wslot[3], 8: Wslot[4], 9: Wslot[5]})
    B2 = [Wslot[0]+16, Wslot[0]+18, Wslot[1]+16]
    def aload(t):
        a(f"s_lshl_b32 s{sTM}, s{sK+t}, 12")
        for m in range(4): a(f"buffer_load_dwordx4 {vr(abuf[t]+4*m,4)}, v{VL}, {sr(SPF,4)}, s{sTM} offen offset:{1024*m} sc1")
    ops = []
    for t in (0, 1): aload(t); ops += [t]*4
    SOX, SOB = [sKX, sKW, sDELTA], [sSLOT, sW1K, sMH]
    a(f"v_add_u32 v{VLA}, s{sFILL}, v{VL}\nv_add_u32 v{VLB}, s{sFW}, v{VL}\ns_mul_i32 s{sT0}, s{sC2}, 160")
    for j in range(3):
        a(f"""
        s_add_u32 s{sT1}, s{sW}, {8*j}
        s_mul_i32 s{sT2}, s{sT1}, 52
        s_lshr_b32 s{sT2}, s{sT2}, 8
        s_mul_i32 s{sT3}, s{sT2}, 5
        s_sub_u32 s{sT1}, s{sT1}, s{sT3}
        s_lshl_b32 s{sT1}, s{sT1}, 5
        s_mul_i32 s{sT2}, s{sT2}, 20480
        s_add_u32 s{SOX[j]}, s{sT2}, s{sT1}
        s_add_u32 s{SOB[j]}, s{sT0}, s{sT1}
        """)
    srd(a, STMP, P_B2, 1280)
    srd(a, SW, P_OUT, XB)
    for t in range(10):
        if t == 9: a(f"s_cmp_ge_u32 s{sW}, 2\ns_cbranch_scc1 Lp2done")
        younger = len(ops) - 1 - max(i for i, o in enumerate(ops) if o == t)
        a(f"s_waitcnt vmcnt({younger})" + (" lgkmcnt(0)" if t == 6 else ""))
        for n in range(5):
            for m in range(4): a(mfma(acc[n][m], wloc[t]+4*n, abuf[t]+4*m, t == 0))
        if 2 <= t <= 5:
            for n in range(5):
                phi = (t+4)*5+n
                ad, off = (VLA, (phi-30)*1024) if phi < 38 else (VLB, (phi-38)*1024)
                a(f"ds_read_b128 {vr(wloc[t+4]+4*n,4)}, v{ad} offset:{off}")
        for tt in issue_after.get(t, []): aload(tt); ops += [tt]*4
        if t == 5:
            a(f"v_lshlrev_b32 v{T1}, 3, v{G}")
            for j in range(3): a(f"buffer_load_dwordx2 {vr(XR+2*j,2)}, v{VXO}, {sr(SX,4)}, s{SOX[j]} offen"); ops.append('x')
            for j in range(3): a(f"buffer_load_dwordx2 {vr(B2[j],2)}, v{T1}, {sr(STMP,4)}, s{SOB[j]} offen"); ops.append('b')
        S(40+t)
    a.label("Lp2done")
    a("s_nop 7")
    for m in range(4):
        for n in range(5):
            q = m*5+n
            ad, off = (VLA, q*1024) if q < 8 else (VLB, (q-8)*1024)
            a(f"ds_write_b128 v{ad}, {vr(acc[n][m],4)} offset:{off}")
    a(f"""
    s_lshl_b32 s{sT0}, s{sW}, 10
    v_add_u32 v{T0}, s{sT0}, v{VL}
    v_add_u32 v{T2}, {L_A}, v{T0}
    v_add_u32 v{T3}, {4*12288}, v{T0}
    """)
    S(52)
    a("s_waitcnt lgkmcnt(0)\ns_barrier")
    S(53)
    P = [[acc[0][0] + (j*8+s)*4 for s in range(8)] for j in range(3)]
    assert P[2][7]+4 <= XR
    def rdtile(j):
        for s in range(8):
            if j == 0: ad, off = T2, s*8192
            else: ad, off = (T0 if s < 4 else T3), (s%4)*12288 + (j-1)*8192
            a(f"ds_read_b128 {vr(P[j][s],4)}, v{ad} offset:{off}")
    L2E = f32(-math.log2(math.e))
    def fin(j):
        p = P[j]
        Sx, Y, Z = p[0], p[2], p[3]
        for h in (0, 2):
            for k in (0, 2, 4, 6): a(f"v_pk_add_f32 {vr(p[k]+h,2)}, {vr(p[k]+h,2)}, {vr(p[k+1]+h,2)}")
        def unp(x, q):
            a(f"v_lshlrev_b32 v{x}, 16, v{q}\nv_and_b32 v{x+1}, 0xffff0000, v{q}\nv_lshlrev_b32 v{x+2}, 16, v{q+1}\nv_and_b32 v{x+3}, 0xffff0000, v{q+1}")
        unp(Z, B2[j])
        for h in (0, 2):
            a(f"v_pk_add_f32 {vr(p[2]+h,2)}, {vr(p[2]+h,2)}, {vr(p[4]+h,2)}")
            a(f"v_pk_add_f32 {vr(p[6]+h,2)}, {vr(p[6]+h,2)}, {vr(Z+h,2)}")
        for h in (0, 2): a(f"v_pk_add_f32 {vr(Y+h,2)}, {vr(Y+h,2)}, {vr(p[6]+h,2)}")
        for r in range(4): a(f"v_mul_f32 v{Z+r}, {L2E}, v{Y+r}")
        for r in range(4): a(f"v_exp_f32 v{Z+r}, v{Z+r}")
        for r in range(4): a(f"v_add_f32 v{Z+r}, 1.0, v{Z+r}")
        for r in range(4): a(f"v_rcp_f32 v{Z+r}, v{Z+r}")
        for h in (0, 2): a(f"v_pk_mul_f32 {vr(Y+h,2)}, {vr(Y+h,2)}, {vr(Sx+h,2)}")
        unp(p[4], XR+2*j)
        for r in range(4): a(f"v_fma_f32 v{Y+r}, v{Y+r}, v{Z+r}, v{p[4]+r}")
        a(f"v_cvt_pk_bf16_f32 v{Sx}, v{Y}, v{Y+1}\nv_cvt_pk_bf16_f32 v{Sx+1}, v{Y+2}, v{Y+3}")
        a(f"buffer_store_dwordx2 {vr(Sx,2)}, v{VXO}, {sr(SW,4)}, s{SOX[j]} offen")
    rdtile(0); rdtile(1)
    a("s_waitcnt vmcnt(0) lgkmcnt(8)")
    l3 = a.uid("L3")
    a(f"s_cmp_ge_u32 s{sW}, 4\ns_cbranch_scc1 {l3}")
    rdtile(2)
    a.label(l3)
    fin(0)
    a("s_waitcnt lgkmcnt(0)")
    fin(1)
    a(f"s_cmp_ge_u32 s{sW}, 4\ns_cbranch_scc1 Lfin")
    fin(2)
    a.label("Lfin")
    S.finish(54)
    a.label("Lend")
    a("s_endpgm")
    ref = open(f"cdna_kernels/{NAME}.s.ref").read().split("\n")
    hdr = [l for l in ref if l.startswith(";") and "@launch" not in l]
    out = "\n".join(hdr) + f"\n; @launch grid=(256,1,1) block=(512,1,1) lds={LDS_TOTAL}\n"
    out += '.amdgcn_target "amdgcn-amd-amdhsa--gfx950"\n' + khead(name) + a.text() + kd(name, 256, 102)
    return out

if __name__ == "__main__":
    path = sys.argv[1]
    kw = eval("dict(" + (sys.argv[2] if len(sys.argv) > 2 else "") + ")")
    open(path, "w").write(gen(**kw))
```

```python
from asmlib import *
import math, sys
NAME = "recurrent_scan__sliding_local_dilated__dense_activation_gelu__prompt"
XB = 2048*640*2
HO_SZ = 32*74*4096
WT_OFF, WT_SZ = 0xB00000, 8*74*5*1024
FLB = 0x400000
TFO, STO = FLB+0x1000, FLB+0x4000
FL_SZ = FLB + 0x10000
BIG = 0x7ff00000
RS = 592
L_TST, L_CS, L_A = 147456, 93184, 98304
LDS_TOTAL = 163840
FROWS = 152

SX, SW, SHO, SPF, SWT, SFL, SDBG, STMP = 4, 8, 16, 20, 24, 28, 32, 36
sXO = 12; sWO = 15
P_X, P_WQ, P_WO, P_W1, P_B1, P_W2, P_B2, P_OUT, P_DBG, P_WS = 40, 42, 44, 48, 50, 52, 54, 56, 58, 60
(sW, sRB, sCB, sI, sKX, sKW, sTM, sFILL, sDELTA, sSLOT, sW1K, sT0, sT1, sT2, sT3, sMH) = range(62, 78)
sNT = 78; sNON = 82; sMSK = 84; sR2, sC2 = 50, 51; sK = 88; sSP = 98; sN2 = 99
sWM = 100
sFW, sWB = 3, 47
sHF = 43
sPFO, sPFS, sPG = 46, 86, 87
sRM, sRH = 48, 49
sTS = [44, 45, 52, 53]
VF, LANE, G, R, T0, T1, T2, T3, VST, VL, VXO = 0, 1, 2, 3, 4, 5, 6, 7, 8, 9, 10
WREG = 136
SIDE = 232
EXP = set(); PFF = ""; DN = 2; DMASK = 0b101; DPRE = 2; SP = dict(tw=1, nonce=3, sl=3, sw=5, tf=5); TFL = "nt"; RECIT = 9

def mfma(d, a_, b_, c0=False): return f"v_mfma_f32_16x16x32_bf16 {vr(d,4)}, {vr(a_,4)}, {vr(b_,4)}, " + ("0" if c0 else vr(d,4))
def chunks(l, n): return [l[i:i+n] for i in range(0, len(l), n)]
def merge(groups, n): return [sum(g, []) for g in chunks(groups, n)]
def lines(t): return [l.strip() for l in t.strip("\n").split("\n") if l.strip()]
def srd(a, d, p, size, off=None):
    if off is None: a(f"s_mov_b32 s{d}, s{p}\ns_mov_b32 s{d+1}, s{p+1}")
    else: a(f"s_add_u32 s{d}, s{p}, {off}\ns_addc_u32 s{d+1}, s{p+1}, 0")
    a(f"s_mov_b32 s{d+2}, {size}\ns_mov_b32 s{d+3}, 0x00020000")

class St:
    def __init__(s, a, on): s.a, s.on = a, on
    def start(s):
        if s.on: s.a(f"s_memtime s[0:1]\nv_mov_b32 v{VST}, 0\ns_waitcnt lgkmcnt(0)\nv_writelane_b32 v{VST}, s0, 59\nv_writelane_b32 v{VST}, s94, 0\nv_writelane_b32 v{VST}, s96, 62")
    def __call__(s, i):
        if s.on: s.a(f"s_memtime s[0:1]\ns_waitcnt lgkmcnt(0)\nv_writelane_b32 v{VST}, s0, {i}")
    def dyn(s, base):
        if s.on and ((base == 30 and 'nobar' not in EXP) or 'lst' in EXP):
            s.a(f"s_memtime s[0:1]\ns_add_u32 m0, s{sI}, {base}\ns_waitcnt lgkmcnt(0)\nv_writelane_b32 v{VST}, s0, m0")
    def finish(s, i):
        if not s.on: return
        s.a(f"""
        s_waitcnt vmcnt(0)
        s_memtime s[0:1]
        s_waitcnt lgkmcnt(0)
        v_writelane_b32 v{VST}, s0, {i}
        s_memrealtime s[0:1]
        s_waitcnt lgkmcnt(0)
        v_writelane_b32 v{VST}, s0, 63
        s_lshl_b32 s3, s2, 3
        s_add_u32 s3, s3, s{sW}
        s_lshl_b32 s3, s3, 8
        s_add_u32 s3, s3, {STAMP_OFF}
        s_add_u32 s{STMP}, s{P_WS}, s3
        s_addc_u32 s{STMP+1}, s{P_WS+1}, 0
        s_mov_b32 s{STMP+2}, 256
        s_mov_b32 s{STMP+3}, 0x00020000
        v_lshlrev_b32 v{T0}, 2, v{LANE}
        buffer_store_dword v{VST}, v{T0}, {sr(STMP,4)}, 0 offen
        """)
class Cfg: pass

def dma_x(c, a, u):
    g = [f"s_add_u32 m0, s{sFILL}, {u*8192}", f"s_add_u32 s{sTM}, s{sXO+u}, s{sKX}", f"buffer_load_dwordx4 v{c.VX}, {sr(SX,4)}, s{sTM} offen lds"]
    if u == 2:
        lab = a.uid("Lsk")
        g = [f"s_cmp_ge_u32 s{sW}, {c.nxm}", f"s_cbranch_scc1 {lab}"] + g + [lab + ":"]
    return g
def dma_w(c, a, u):
    return [f"s_add_u32 m0, s{sFW}, {u*16*c.wrow}", f"s_add_u32 s{sTM}, s{sKW}, {u*16*c.wrowb}", f"s_mov_b64 exec, {sr(sWM,2)}",
            f"buffer_load_dwordx4 v{c.VW}, {sr(SW,4)}, s{sTM} offen lds", "s_mov_b64 exec, -1"]
def dmaA(c, a): return [dma_x(c,a,0), dma_x(c,a,1), dma_x(c,a,2), dma_w(c,a,0)]
def dmaB(c, a): return [dma_w(c,a,1), dma_w(c,a,2), dma_w(c,a,3)]

def reads(c, st, s):
    r = []
    for i in range(c.nM):
        ins = f"ds_read_b128 {vr(c.X[st][i],4)}, v{c.xb[s]} offset:{i*2048}"
        if (not c.nh) and i == c.nM-1: r.append([f"s_mov_b64 exec, {sr(sMSK,2)}", ins, "s_mov_b64 exec, -1"])
        else: r.append([ins])
    if c.nh: r.append([f"s_mov_b64 exec, {sr(sMSK,2)}", f"ds_read_b128 {vr(c.XH[st],4)}, v{c.hb[s]}", "s_mov_b64 exec, -1"])
    for f in range(c.nF):
        r.append([f"ds_read_b64_tr_b16 {vr(c.W[st][f],2)}, v{c.wb[f]} offset:{s*32*c.wrow}"])
        r.append([f"ds_read_b64_tr_b16 {vr(c.W[st][f]+2,2)}, v{c.wb[f]} offset:{s*32*c.wrow+8*c.wrow}"])
    return r
def mfmas(c, st, c0=False):
    m = []
    for f in range(c.nF):
        for i in range(c.nM): m.append(mfma(c.acc[f][i], c.W[st][f], c.X[st][i], c0))
        if f < c.nh: m.append(mfma(c.acch[f], c.W[st][f], c.XH[st], c0))
    return m
def spread(main, items):
    out = []
    for i, m in enumerate(main):
        out.append(m)
        for p, g in items:
            if p == i or (i == len(main)-1 and p > i): out.extend(g)
    return out
def even(groups, n, lo=1):
    k = len(groups)
    return [(lo + (j*(n-lo))//k, g) for j, g in enumerate(groups)] if k else []

def stat_row(a):
    a(f"""
    s_and_b32 s{sT0}, s2, 1
    s_lshl_b32 s{sT0}, s{sT0}, 10
    s_bfe_u32 s{sT2}, s2, 0x20001
    s_lshl_b32 s{sT2}, s{sT2}, 8
    s_add_u32 s{sT0}, s{sT0}, s{sT2}
    s_and_b32 s{sT2}, s2, 0xf8
    s_add_u32 s{sT0}, s{sT0}, s{sT2}
    s_sub_u32 s{sT2}, s{sW}, 6
    s_lshl_b32 s{sT2}, s{sT2}, 2
    s_add_u32 s{sT0}, s{sT0}, s{sT2}
    """)
def nonce_get(a, vN, vPS):
    l0, l1, l2, l3 = a.uid("Lno"), a.uid("Lno"), a.uid("Lno"), a.uid("Lno")
    assert vN == vPS + 2 and vPS % 2 == 0
    a(f"s_mov_b32 s{sSP}, 0")
    a.label(l0)
    a(f"""
    v_readfirstlane_b32 s{sNON}, v{vN}
    v_readfirstlane_b32 s{sNON+1}, v{vN+1}
    s_add_u32 s{sSP}, s{sSP}, 1
    s_cmp_gt_u32 s{sSP}, 100000
    s_cbranch_scc1 {l1}
    s_cmp_lg_u32 s{sNON}, 0
    s_cbranch_scc1 {l1}
    v_mov_b32 v{T0}, 0
    buffer_load_dwordx2 {vr(vN,2)}, v{T0}, {sr(SDBG,4)}, 0 offen sc1
    s_waitcnt vmcnt(0)
    s_branch {l0}
    """)
    a.label(l1)
    a(f"""
    s_cmp_lg_u32 s{sW}, 0
    s_cbranch_scc1 {l2}
    s_lshl_b32 s{sT1}, s2, 3
    v_mov_b32 v{T0}, {TFO}
    s_mov_b64 exec, 1
    buffer_store_dwordx2 {vr(vN,2)}, v{T0}, {sr(SFL,4)}, s{sT1} offen sc1
    s_mov_b64 exec, -1
    """)
    a.label(l2)
def poll(a, loads, cmps, preloaded):
    l0, l1, l2 = a.uid("Lpo"), a.uid("Lpo"), a.uid("Lpo")
    a(f"s_mov_b32 s{sSP}, 0")
    if preloaded: a(f"s_branch {l2}")
    a.label(l0)
    for l in loads: a(l)
    a("s_waitcnt vmcnt(0)")
    a.label(l2)
    for k, v in enumerate(cmps):
        if k == 0: a(f"v_cmp_eq_u64 vcc, {sr(sNON,2)}, {vr(v,2)}")
        else: a(f"v_cmp_eq_u64 {sr(sT1,2)}, {sr(sNON,2)}, {vr(v,2)}\ns_nop 0\ns_and_b64 vcc, vcc, {sr(sT1,2)}")
    a(f"""
    s_add_u32 s{sSP}, s{sSP}, 1
    s_cmp_gt_u32 s{sSP}, 100000
    s_cbranch_scc1 {l1}
    s_cmp_eq_u64 vcc, -1
    s_cbranch_scc0 {l0}
    """)
    a.label(l1)

def wfrag(phi):
    t, n = divmod(phi, 5)
    pre = [f"s_mul_i32 s{sTM}, s{sK+t}, 5120"]
    if phi < 30:
        if n < 4: return pre + [f"buffer_load_dwordx4 {vr(WREG+4*phi,4)}, v{VL}, {sr(SWT,4)}, s{sTM} offen offset:{1024*n} sc1"]
        return pre + [f"s_add_u32 s{sTM}, s{sTM}, 4096", f"buffer_load_dwordx4 {vr(WREG+4*phi,4)}, v{VL}, {sr(SWT,4)}, s{sTM} offen sc1"]
    base, o = (sFILL, (phi-30)*1024) if phi < 38 else (sFW, (phi-38)*1024)
    return [f"s_add_u32 m0, s{base}, {o}"] + pre + [f"s_add_u32 s{sTM}, s{sTM}, {1024*n}", f"buffer_load_dwordx4 v{VL}, {sr(SWT,4)}, s{sTM} offen sc1 lds"]
def p2_ldsbases():
    return [f"s_lshl_b32 s{sFILL}, s{sW}, 13", f"s_add_u32 s{sFILL}, s{sFILL}, {L_A}", f"s_mul_i32 s{sFW}, s{sW}, 12288"]

def stage_set(c, st):
    slot = ((st+1) % 3) * c.stg
    return lines(f"s_add_u32 s{sFILL}, s{sW1K}, {slot}\ns_add_u32 s{sFW}, s{sWB}, {slot}\ns_mov_b32 s{sKX}, {128*st}\ns_add_u32 s{sKW}, s{sWO}, {64*st*c.wrowb}")
def duty(a, n=2, guard=True):
    lab = a.uid("Ldu")
    g = [f"s_bitcmp1_b32 {DMASK}, s{sI}", f"s_cbranch_scc0 {lab}"] if guard else []
    for _ in range(n):
        g += lines(f"""
        s_cmp_ge_u32 s{sPFO}, s{sPG}
        s_cbranch_scc1 {lab}
        buffer_load_dword v255, v254, {sr(STMP,4)}, s{sPFO} offen {PFF}
        s_add_u32 s{sPFO}, s{sPFO}, s{sPFS}""")
    return g + [lab + ":"]

def iteration(a, c, S, kind, extra1=(), extra2=(), pre2=None):
    bases = list(c.xb) + (list(c.hb) if c.nh else []) + list(c.wb)
    prio = 'noprio' not in EXP
    a("s_waitcnt lgkmcnt(0)")
    M = mfmas(c, 0, kind == 0); n = len(M)
    rb = merge(reads(c, 1, 1), 2)
    items = [(k, g) for k, g in enumerate(rb)]
    if prio: items = [(0, ["s_setprio 1"]), (n//2, ["s_setprio 0"])] + items
    if kind != 9:
        items.append((0, [f"s_add_u32 s{sT1}, s{sSLOT}, {c.stg}", f"s_cmp_eq_u32 s{sT1}, {3*c.stg}", f"s_cselect_b32 s{sT1}, 0, s{sT1}", f"s_sub_u32 s{sDELTA}, s{sT1}, s{sSLOT}"]))
        up = chunks([f"v_add_u32 v{b}, s{sDELTA}, v{b}" for b in bases], 2)
        for k, g in enumerate(up): items.append((len(rb) + k, g))
    if kind in ('loop', 7): items += even(dmaB(c, a), n-4, 2)
    if kind == 0:
        A2 = dmaA(c, a); A2[0] = stage_set(c, 2) + A2[0]
        items += even(dmaB(c, a) + A2 + dmaB(c, a), n-4, 0)
    items += even(list(extra1), n-2, 1)
    if kind in ('loop', 0):
        items.append((n-4, [f"s_add_u32 s{sFILL}, s{sSLOT}, s{sW1K}", f"s_add_u32 s{sFW}, s{sSLOT}, s{sWB}"]))
        items.append((n-3, [f"s_add_u32 s{sKX}, s{sKX}, 128", f"s_add_u32 s{sKW}, s{sKW}, {64*c.wrowb}"]))
    if kind != 9: items.append((n-3, [f"s_mov_b32 s{sSLOT}, s{sT1}"]))
    for l in spread(M, items): a(l)
    S.dyn(10)
    if kind in ('loop', 0, 7): a(f"s_waitcnt vmcnt(6) lgkmcnt(0)")
    elif kind == 8: a(f"s_waitcnt vmcnt({c.y8}) lgkmcnt(0)")
    else: a("s_waitcnt lgkmcnt(0)")
    S.dyn(20)
    a("s_barrier")
    S.dyn(30)
    if prio: a("s_setprio 3")
    if pre2: pre2()
    M = mfmas(c, 1)
    items = []
    if kind != 9: items = [(k, g) for k, g in enumerate(merge(reads(c, 0, 0), 2))]
    if prio: items.append((n//2, ["s_setprio 2"]))
    if kind in ('loop', 0):
        items += even(dmaA(c, a), n, 2)
        if c.duty: items.append((0, duty(a)))
    items += even(list(extra2), n, 0)
    for l in spread(M, items): a(l)

def main_loop(a, c, S, tag, rec_loads):
    iteration(a, c, S, 0)
    if 'tup' in EXP: nonce_get(a, c.VN, c.VPS)
    else: t_work(a)
    a(f"s_mov_b32 s{sI}, 1")
    a.label(f"Lloop_{tag}")
    iteration(a, c, S, 'loop')
    lx, l3, l5 = a.uid("Ls"), a.uid("Ls"), a.uid("Ls")
    tf = f"buffer_load_dwordx2 {vr(c.VN,2)}, v{c.VTF}, {sr(SFL,4)}, 0 offen sc1"
    a(f"s_bitcmp1_b32 0x2c, s{sI}\ns_cbranch_scc0 {lx}")
    a(f"s_cmp_lg_u32 s{sI}, 2\ns_cbranch_scc1 {l3}")
    if 'tup' not in EXP: nonce_get(a, c.VN, c.VPS)
    a(f"s_branch {lx}")
    a.label(l3)
    a(f"s_cmp_lg_u32 s{sI}, 3\ns_cbranch_scc1 {l5}")
    stat_loads(a)
    a(f"s_branch {lx}")
    a.label(l5)
    a(tf)
    s_work(a, c.VPS)
    a.label(lx)
    a(f"s_add_u32 s{sI}, s{sI}, 1\ns_cmp_lt_u32 s{sI}, 7\ns_cbranch_scc1 Lloop_{tag}")
    early = [wfrag(p) for p in c.early]
    e = chunks(early, (len(early)+4)//5)
    def pre7():
        poll(a, [tf], [c.VN], True)
        for l in p2_ldsbases(): a(l)
    iteration(a, c, S, 7, extra2=e[0], pre2=pre7)
    a(f"s_add_u32 s{sI}, s{sI}, 1")
    c.y8 = len(e[0]) + len(e[1])
    iteration(a, c, S, 8, extra1=e[1], extra2=rec_loads + e[2])
    a(f"s_add_u32 s{sI}, s{sI}, 1")
    iteration(a, c, S, 9, extra1=e[3], extra2=e[4] + c.tailx)
    a("s_setprio 0")
    c.yrec = len(e[2]) + len(e[3]) + len(e[4])
    S(4)

def rho_local(a, d, t):
    a(f"v_bfe_u32 v{d}, v{LANE}, 2, 3\nv_lshrrev_b32 v{t}, 5, v{LANE}\nv_lshl_add_u32 v{d}, v{t}, 4, v{d}")

def t_issue(a, guard=True):
    ld = a.uid("Lti")
    if guard: a(f"s_sub_u32 s{sT1}, s{sW}, 3\ns_cmp_gt_u32 s{sT1}, 2\ns_cbranch_scc1 {ld}")
    a(f"s_lshl_b32 s{sT1}, s{sW}, 12")
    for q in range(4):
        a(f"s_add_u32 m0, s{sT1}, {L_TST-3*4096+1024*q}\ns_nop 0")
        a(f"buffer_load_dwordx4 v{SIDE+4+q}, {sr(STMP,4)}, 0 offen {TFL} lds")
    a.label(ld)
def side_loads(a, stat=True, issue=True):
    ld, lst, lh, lj = a.uid("Lt"), a.uid("Lt"), a.uid("Lt"), a.uid("Lt")
    sU, sKp, sCh = sKX, sKW, sDELTA
    A0, A1, ST0, ST1 = SIDE, SIDE+1, SIDE+2, SIDE+3
    for q in range(4): a(f"v_mov_b32 v{SIDE+4+q}, 0")
    a(f"s_cmp_lt_u32 s{sW}, 3\ns_cbranch_scc1 {ld}\ns_cmp_ge_u32 s{sW}, 6\ns_cbranch_scc1 {lst}")
    a(f"""
    s_mul_i32 s{sU}, s2, 3
    s_add_u32 s{sU}, s{sU}, s{sW}
    s_sub_u32 s{sU}, s{sU}, 3
    s_min_u32 s{sU}, s{sU}, 739
    s_mul_i32 s{sKp}, s{sU}, 6554
    s_lshr_b32 s{sKp}, s{sKp}, 16
    s_mul_i32 s{sT0}, s{sKp}, 10
    s_sub_u32 s{sCh}, s{sU}, s{sT0}
    v_lshrrev_b32 v{T0}, 5, v{LANE}
    s_cmp_ge_u32 s{sKp}, 20
    s_cbranch_scc1 {lh}
    """)
    for e, (A, ST) in enumerate(((A0, ST0), (A1, ST1))):
        a(f"""
        s_lshl_b32 s{sT0}, s{sKp}, 2
        s_add_u32 s{sT0}, s{sT0}, {2*e}
        v_add_u32 v{T1}, s{sT0}, v{T0}
        v_mul_u32_u24 v{T2}, 205, v{T1}
        v_lshrrev_b32 v{T2}, 10, v{T2}
        v_mul_u32_u24 v{T3}, 5, v{T2}
        v_sub_u32 v{T1}, v{T1}, v{T3}
        v_mul_u32_u24 v{A}, 40, v{T2}
        v_lshrrev_b32 v{T2}, 1, v{T1}
        v_mul_u32_u24 v{T2}, 20, v{T2}
        v_and_b32 v{T3}, 1, v{T1}
        v_lshl_add_u32 v{T2}, v{T3}, 3, v{T2}
        v_cmp_eq_u32 vcc, 4, v{T1}
        v_mov_b32 v{ST}, 20
        s_nop 0
        v_cndmask_b32 v{T2}, v{T2}, 16, vcc
        v_cndmask_b32 v{ST}, 4, v{ST}, vcc
        v_add_u32 v{A}, v{A}, v{T2}
        """)
    a("s_waitcnt lgkmcnt(0)")
    srd(a, STMP, P_WO, 640*1280)
    a(f"s_branch {lj}")
    a.label(lh)
    a(f"""
    s_sub_u32 s{sT0}, s{sKp}, 20
    s_mul_i32 s{sT1}, s{sT0}, 86
    s_lshr_b32 s{sT1}, s{sT1}, 8
    s_mul_i32 s{sT1}, s{sT1}, 3
    s_sub_u32 s{sT1}, s{sT0}, s{sT1}
    s_lshl_b32 s{sT0}, s{sT0}, 5
    v_lshl_add_u32 v{A0}, v{T0}, 2, s{sT0}
    s_cmp_eq_u32 s{sT1}, 1
    s_cselect_b32 s{sT1}, 16, 8
    s_cselect_b32 s{sT2}, 8, 16
    v_add_u32 v{A1}, s{sT1}, v{A0}
    v_mov_b32 v{ST0}, s{sT2}
    v_mov_b32 v{ST1}, s{sT2}
    """)
    a("s_waitcnt lgkmcnt(0)")
    srd(a, STMP, P_W2, 1728*1280)
    a.label(lj)
    a(f"""
    v_bfe_u32 v{T1}, v{LANE}, 3, 2
    v_and_b32 v{T2}, 7, v{LANE}
    v_lshlrev_b32 v{T2}, 4, v{T2}
    s_lshl_b32 s{sT0}, s{sCh}, 7
    s_lshl_b32 s{sT1}, s{sW}, 12
    """)
    for q in range(4):
        A, ST = ((A0, ST0), (A1, ST1))[q & 1]
        a(f"v_add_u32 v{T3}, v{A}, v{T1}")
        if q >> 1: a(f"v_add_u32 v{T3}, v{T3}, v{ST}")
        a(f"v_mul_u32_u24 v{T3}, 1280, v{T3}\nv_add3_u32 v{SIDE+4+q}, v{T3}, v{T2}, s{sT0}")
    if issue: t_issue(a, False)
    a(f"s_mul_i32 s{sT2}, s{sKp}, 5\ns_lshl_b32 s{sT3}, s{sCh}, 2")
    for t in range(4):
        a(f"""
        s_add_u32 s{sT0}, s{sT3}, {t}
        s_mul_i32 s{sT1}, s{sT0}, 52
        s_lshr_b32 s{sT1}, s{sT1}, 8
        s_mul_i32 s{sT1}, s{sT1}, 365
        s_add_u32 s{sT0}, s{sT0}, s{sT1}
        s_add_u32 s{sT0}, s{sT0}, s{sT2}
        s_lshl_b32 s{sTS[t]}, s{sT0}, 10
        """)
    a(f"s_branch {ld}")
    a.label(lst)
    if stat: stat_loads(a, False)
    a.label(ld)
def stat_loads(a, guard=True):
    ld = a.uid("Lsl")
    if guard: a(f"s_cmp_lt_u32 s{sW}, 6\ns_cbranch_scc1 {ld}")
    stat_row(a)
    a(f"s_mul_i32 s{sT0}, s{sT0}, 1280\nv_mul_u32_u24 v{T0}, 1280, v{G}\nv_lshl_add_u32 v{T0}, v{R}, 4, v{T0}")
    for i in range(5): a(f"buffer_load_dwordx4 {vr(SIDE+4*i,4)}, v{T0}, {sr(SX,4)}, s{sT0} offen offset:{256*i}")
    a.label(ld)
for u in range(1001): assert (u*6554)>>16 == u//10
for u in range(80): assert (u*205)>>10 == u//5
for u in range(54): assert (u*86)>>8 == u//3
for N in range(40): assert (N*52)>>8 == N//5

def t_work(a):
    lab = a.uid("Ltw")
    a(f"s_sub_u32 s{sT1}, s{sW}, 3\ns_cmp_gt_u32 s{sT1}, 2\ns_cbranch_scc1 {lab}")
    t_part(a)
    a.label(lab)
def s_work(a, vPS):
    lab = a.uid("Ltw")
    a(f"s_cmp_lt_u32 s{sW}, 6\ns_cbranch_scc1 {lab}")
    s_part(a, SIDE+20)
    a(f"v_mov_b32 v{SIDE}, v{SIDE+20}\nv_mov_b32 v{SIDE+1}, v{SIDE+21}\nv_mov_b32 v{SIDE+2}, s{sNON}\nv_mov_b32 v{SIDE+3}, s{sNON+1}")
    stat_row(a)
    a(f"""
    s_lshl_b32 s{sT0}, s{sT0}, 4
    s_add_u32 s{sT0}, s{sT0}, {STO}
    v_lshlrev_b32 v{T0}, 4, v{G}
    s_mov_b32 exec_lo, 0x00010001
    s_mov_b32 exec_hi, 0x00010001
    buffer_store_dwordx4 {vr(SIDE,4)}, v{T0}, {sr(SFL,4)}, s{sT0} offen sc1
    s_mov_b64 exec, -1
    """)
    a.label(lab)
def t_part(a):
    tmp = SIDE
    a(f"""
    v_lshrrev_b32 v{T0}, 2, v{LANE}
    v_lshlrev_b32 v{T0}, 7, v{T0}
    v_and_b32 v{T1}, 3, v{LANE}
    v_lshl_add_u32 v{T0}, v{T1}, 3, v{T0}
    s_lshl_b32 s{sT0}, s{sW}, 12
    s_add_u32 s{sT0}, s{sT0}, {L_TST-3*4096}
    v_add_u32 v{T0}, s{sT0}, v{T0}
    """)
    for t in range(4):
        a(f"ds_read_b64_tr_b16 {vr(tmp+4*t,2)}, v{T0} offset:{32*t}")
        a(f"ds_read_b64_tr_b16 {vr(tmp+4*t+2,2)}, v{T0} offset:{32*t+2048}")
    for t in range(4):
        a(f"s_waitcnt lgkmcnt({6-2*t})\nbuffer_store_dwordx4 {vr(tmp+4*t,4)}, v{VL}, {sr(SFL,4)}, s{sTS[t]} offen sc1")
def s_part(a, vPS):
    tmp = SIDE
    s, q = vPS, vPS+1
    a(f"v_mov_b32 v{s}, 0\nv_mov_b32 v{q}, 0\nv_mov_b32 v{T0}, 0x3f803f80")
    for j in range(20):
        a(f"v_dot2c_f32_bf16 v{s}, v{tmp+j}, v{T0}\nv_dot2c_f32_bf16 v{q}, v{tmp+j}, v{tmp+j}")
    a("s_nop 2")
    for sh in (8, 4, 2, 1):
        a(f"v_add_f32_dpp v{s}, v{s}, v{s} row_ror:{sh} row_mask:0xf bank_mask:0xf")
        a(f"v_add_f32_dpp v{q}, v{q}, v{q} row_ror:{sh} row_mask:0xf bank_mask:0xf")
        a("s_nop 0")
    a(f"""
    v_mul_f32 v{s}, {f32(1/640)}, v{s}
    v_mul_f32 v{q}, {f32(1/640)}, v{q}
    v_fma_f32 v{q}, -v{s}, v{s}, v{q}
    v_max_f32 v{q}, 0, v{q}
    v_cvt_pk_bf16_f32 v{T0}, v{s}, v{q}
    v_lshlrev_b32 v{T1}, 16, v{T0}
    v_and_b32 v{q}, 0xffff0000, v{T0}
    v_add_f32 v{q}, {f32(1e-5)}, v{q}
    v_cvt_pk_bf16_f32 v{q}, v{q}, v{q}
    v_and_b32 v{q}, 0xffff0000, v{q}
    v_sqrt_f32 v{q}, v{q}
    s_nop 0
    v_cvt_pk_bf16_f32 v{q}, v{q}, v{q}
    v_and_b32 v{q}, 0xffff0000, v{q}
    v_rcp_f32 v{s}, v{q}
    s_nop 0
    v_mul_f32 v{q}, v{T1}, v{s}
    v_sub_f32 v{q}, 0, v{q}
    """)

def p2_setup(a, VTF):
    a(f"""
    s_and_b32 s{sT0}, s2, 7
    s_lshl_b32 s{sR2}, s{sT0}, 2
    s_bfe_u32 s{sT1}, s2, 0x20003
    s_add_u32 s{sR2}, s{sR2}, s{sT1}
    s_lshr_b32 s{sC2}, s2, 5
    s_cmp_lt_u32 s{sW}, 2
    s_cselect_b32 s{sN2}, 10, 9
    s_lshl_b32 s{sT1}, s{sT1}, 1
    s_add_u32 s{sT1}, s{sT1}, s{sC2}
    s_cmp_ge_u32 s{sT1}, s{sN2}
    s_cselect_b32 s{sT2}, s{sN2}, 0
    s_sub_u32 s{sK}, s{sT1}, s{sT2}
    """)
    for t in range(1, 10):
        a(f"s_add_u32 s{sK+t}, s{sK+t-1}, 1\ns_cmp_eq_u32 s{sK+t}, s{sN2}\ns_cselect_b32 s{sK+t}, 0, s{sK+t}")
    a(f"s_cmp_lt_u32 s{sW}, 2\ns_cselect_b32 s{sK+9}, s{sK+9}, 0x10000")
    a(f"""
    s_mul_i32 s{sT3}, s{sW}, 9
    s_min_u32 s{sT2}, s{sW}, 2
    s_add_u32 s{sT3}, s{sT3}, s{sT2}
    v_lshrrev_b32 v{T0}, 1, v{LANE}
    s_sub_u32 s{sT2}, s{sN2}, 1
    v_min_u32 v{T0}, s{sT2}, v{T0}
    v_add_u32 v{T0}, s{sT3}, v{T0}
    v_mul_u32_u24 v{T0}, 10, v{T0}
    s_mul_i32 s{sT2}, s{sC2}, 5
    s_lshr_b32 s{sT2}, s{sT2}, 2
    v_and_b32 v{T1}, 1, v{LANE}
    v_add3_u32 v{T0}, v{T0}, v{T1}, s{sT2}
    v_mul_u32_u24 v{T0}, 21846, v{T0}
    v_lshrrev_b32 v{T0}, 16, v{T0}
    v_lshlrev_b32 v{T0}, 3, v{T0}
    v_add_u32 v{VTF}, {TFO}, v{T0}
    s_mul_i32 s{sT2}, s{sC2}, 74
    s_add_u32 s{sT2}, s{sT2}, s{sT3}
    s_mul_i32 s{sT2}, s{sT2}, 5120
    s_add_u32 s{sT2}, s{sT2}, {WT_OFF}
    s_add_u32 s{SWT}, s{P_WS}, s{sT2}
    s_addc_u32 s{SWT+1}, s{P_WS+1}, 0
    s_mul_i32 s{SWT+2}, s{sN2}, 5120
    s_mov_b32 s{SWT+3}, 0x00020000
    s_mul_i32 s{sT2}, s{sR2}, 74
    s_add_u32 s{sT2}, s{sT2}, s{sT3}
    s_lshl_b32 s{sT2}, s{sT2}, 12
    s_add_u32 s{SPF}, s{P_WS}, s{sT2}
    s_addc_u32 s{SPF+1}, s{P_WS+1}, 0
    s_lshl_b32 s{SPF+2}, s{sN2}, 12
    s_mov_b32 s{SPF+3}, 0x00020000
    """)
    ly, lyd = a.uid("Ly"), a.uid("Ly")
    a(f"""
    s_cmp_ge_u32 s{sW}, 2
    s_cbranch_scc1 {ly}
    s_lshr_b32 s{sT0}, s{sR2}, 1
    s_lshl_b32 s{sT0}, s{sT0}, 7
    s_lshl_b32 s{sT1}, s{sW}, 5
    s_add_u32 s{sT0}, s{sT0}, s{sT1}
    s_add_u32 s{sT0}, s{sT0}, {FLB+16*128}
    v_and_b32 v{T0}, 3, v{LANE}
    v_lshl_add_u32 v{VF}, v{T0}, 3, s{sT0}
    s_branch {lyd}
    """)
    a.label(ly)
    a(f"""
    s_lshl_b32 s{sT0}, s{sR2}, 6
    s_add_u32 s{sT1}, s{sT0}, 63
    s_mul_i32 s{sT0}, s{sT0}, 27595
    s_lshr_b32 s{sT0}, s{sT0}, 22
    s_mul_i32 s{sT1}, s{sT1}, 27595
    s_lshr_b32 s{sT1}, s{sT1}, 22
    s_sub_u32 s{sT1}, s{sT1}, s{sT0}
    s_lshl_b32 s{sT1}, s{sT1}, 7
    s_lshl_b32 s{sT0}, s{sT0}, 7
    s_sub_u32 s{sT2}, s{sW}, 2
    s_mul_i32 s{sT2}, s{sT2}, 3
    s_lshr_b32 s{sT2}, s{sT2}, 1
    s_lshl_b32 s{sT2}, s{sT2}, 3
    s_add_u32 s{sT0}, s{sT0}, s{sT2}
    s_add_u32 s{sT0}, s{sT0}, {FLB}
    v_and_b32 v{T0}, 1, v{LANE}
    v_lshlrev_b32 v{T0}, 3, v{T0}
    v_bfe_u32 v{T1}, v{LANE}, 1, 1
    v_mul_u32_u24 v{T1}, s{sT1}, v{T1}
    v_add3_u32 v{VF}, v{T0}, v{T1}, s{sT0}
    """)
    a.label(lyd)
    a(f"""
    s_lshl_b32 s{sT0}, s{sR2}, 6
    v_add_u32 v{T0}, s{sT0}, v{R}
    v_mul_u32_u24 v{T0}, 1280, v{T0}
    v_lshl_add_u32 v{T0}, v{G}, 3, v{T0}
    s_mul_i32 s{sT0}, s{sC2}, 160
    v_add_u32 v{VXO}, s{sT0}, v{T0}
    """)
for u in range(740): assert (u*21846)>>16 == u//3
for x in range(2048): assert (x*27595)>>22 == x//152

class Inter:
    def __init__(s, a, groups, every): s.a, s.g, s.e, s.n = a, list(groups), every, 0
    def __call__(s, txt):
        for l in lines(txt):
            s.a(l); s.n += 1
            if s.n % s.e == 0 and s.g:
                for x in s.g.pop(0): s.a(x)
    def flush(s, keep=0):
        while len(s.g) > keep:
            for x in s.g.pop(0): s.a(x)

def gen(stamps=False, PF=4, pff="", qevery=14, fevery=11, exp="", NB=4, dmask=0b10101, tfl="nt", nearly=10, TLB=0):
    global EXP, PFF, DN, DMASK, DPRE, TFL
    EXP = set(exp.split()); PFF = pff; TFL = tfl; DMASK = dmask
    a = Asm(); S = St(a, stamps)
    name = NAME + "_kernel"
    def emit(groups):
        for g in groups:
            for l in g: a(l)
    if stamps: a("s_memrealtime s[96:97]\ns_memtime s[94:95]")
    a(f"s_cmp_ge_u32 s2, 256\ns_cbranch_scc1 Lend")
    if 'badmap' in EXP: a("s_and_b32 s3, s2, 31\ns_lshl_b32 s3, s3, 3\ns_lshr_b32 s2, s2, 5\ns_or_b32 s2, s2, s3")
    a(f"s_load_dwordx16 s[40:55], s[0:1], 0\ns_load_dwordx4 s[56:59], s[0:1], 64\ns_load_dwordx2 s[60:61], s[0:1], 80")
    a(f"""
    v_lshrrev_b32 v{T0}, 6, v0
    v_and_b32 v{LANE}, 63, v0
    v_readfirstlane_b32 s{sW}, v{T0}
    v_lshrrev_b32 v{G}, 4, v{LANE}
    v_and_b32 v{R}, 15, v{LANE}
    v_lshlrev_b32 v{VL}, 4, v{LANE}
    s_lshl_b32 s{sW1K}, s{sW}, 10
    s_mov_b32 s{sI}, 0
    v_lshrrev_b32 v{T0}, 3, v{LANE}
    v_mul_u32_u24 v{T0}, 1280, v{T0}
    s_lshl_b32 s{sT0}, s{sW}, 2
    v_add_u32 v{T1}, s{sT0}, v{G}
    v_xor_b32 v{T1}, v{T1}, v{LANE}
    v_and_b32 v{T1}, 7, v{T1}
    v_lshl_add_u32 v11, v{T1}, 4, v{T0}
    s_and_b32 s{sT0}, s{sW}, 1
    s_lshl_b32 s{sT0}, s{sT0}, 1
    s_and_b32 s{sT1}, s{sW}, 2
    s_lshl_b32 s{sT1}, s{sT1}, 2
    s_add_u32 s{sT0}, s{sT0}, s{sT1}
    s_and_b32 s{sT1}, s{sW}, 4
    s_add_u32 s{sWO}, s{sT0}, s{sT1}
    """)
    def pf_addr(nrow_cu, kper, nst, cidx_s, VD):
        pass
    lx, lq, ld, lw = a.uid("Lpf"), a.uid("Lpf"), a.uid("Lpf"), a.uid("Lpf")
    a(f"""
    s_bfe_u32 s{sT2}, s2, 0x40003
    s_lshr_b32 s{sT3}, s2, 7
    s_and_b32 s{sT0}, s2, 1
    s_bfe_u32 s{sT1}, s2, 0x20001
    s_mov_b32 s{sPG}, 0
    v_mov_b32 v254, 0
    s_cmp_ge_u32 s{sW}, 3
    s_cbranch_scc1 {lw}
    s_cmp_ge_u32 s{sW}, 1
    s_cbranch_scc1 {lq}
    s_lshl_b32 s{sT0}, s{sT0}, 10
    s_lshl_b32 s{sT1}, s{sT1}, 8
    s_lshl_b32 s{sT2}, s{sT2}, 4
    s_add_u32 s{sT0}, s{sT0}, s{sT1}
    s_add_u32 s{sT0}, s{sT0}, s{sT2}
    v_add_u32 v{T0}, s{sT0}, v{R}
    v_mul_u32_u24 v{T0}, 1280, v{T0}
    v_and_b32 v{T1}, 1, v{G}
    v_lshl_add_u32 v254, v{T1}, 7, v{T0}
    s_lshl_b32 s{sT0}, s{sT3}, 8
    s_mov_b32 s{sPFS}, 256
    s_mov_b32 s{sPG}, 1280
    s_waitcnt lgkmcnt(0)
    s_mov_b32 s{sPFO}, 512
    """)
    srd(a, STMP, P_X, XB)
    a(f"buffer_load_dword v255, v254, {sr(STMP,4)}, s{sT0} offen {pff}")
    a(f"s_branch {ld}")
    a.label(lq)
    a(f"""
    s_cmp_eq_u32 s{sW}, 2
    s_cbranch_scc1 {lx}
    v_min_u32 v{T0}, 35, v{LANE}
    v_mul_u32_u24 v{T1}, 57, v{T0}
    v_lshrrev_b32 v{T1}, 9, v{T1}
    v_mul_u32_u24 v{T3}, 9, v{T1}
    v_sub_u32 v{T0}, v{T0}, v{T3}
    s_lshl_b32 s{sT2}, s{sT2}, 2
    v_add_u32 v{T1}, s{sT2}, v{T1}
    v_mul_u32_u24 v{T1}, 3840, v{T1}
    v_mul_u32_u24 v{T3}, 43, v{T0}
    v_lshrrev_b32 v{T3}, 7, v{T3}
    v_mul_u32_u24 v{T3}, 896, v{T3}
    v_lshl_add_u32 v{T0}, v{T0}, 7, v{T3}
    s_mul_i32 s{sT1}, s{sT1}, 320
    s_and_b32 s{sT1}, s{sT1}, 0xffffff80
    v_add3_u32 v254, v{T0}, v{T1}, s{sT1}
    s_mul_i32 s{sT0}, s{sT3}, {128*3840}
    s_add_u32 s{sT1}, s{sT0}, {64*3840}
    s_mov_b32 s{sPFS}, {64*3840}
    s_mov_b32 s{sPG}, {640*3840}
    s_waitcnt lgkmcnt(0)
    s_mov_b32 s{sPFO}, {256*3840}
    """)
    srd(a, STMP, P_WQ, 640*3840)
    a(f"buffer_load_dword v255, v254, {sr(STMP,4)}, s{sT0} offen {pff}")
    a(f"buffer_load_dword v255, v254, {sr(STMP,4)}, s{sT1} offen {pff}")
    a(f"s_branch {ld}")
    a.label(lx)
    a(f"""
    s_and_b32 s{sT0}, s2, 127
    s_mul_i32 s{sT0}, s{sT0}, 3456
    v_min_u32 v{T0}, 26, v{LANE}
    v_lshl_add_u32 v254, v{T0}, 7, s{sT0}
    s_mul_i32 s{sT0}, s{sT3}, {128*3456}
    s_mov_b32 s{sPFS}, {128*3456}
    s_mov_b32 s{sPG}, {640*3456}
    s_waitcnt lgkmcnt(0)
    s_mov_b32 s{sPFO}, {256*3456}
    """)
    srd(a, STMP, P_W1, 640*3456)
    a(f"buffer_load_dword v255, v254, {sr(STMP,4)}, s{sT0} offen {pff}")
    a(f"s_branch {ld}")
    a.label(lw)
    ln = a.uid("Ln")
    a(f"s_cmp_lg_u32 s2, 0\ns_cbranch_scc1 {ln}\ns_cmp_lg_u32 s{sW}, 7\ns_cbranch_scc1 {ln}\ns_waitcnt lgkmcnt(0)")
    srd(a, SDBG, P_DBG, 256)
    a(f"""
    s_memrealtime {sr(sNON,2)}
    s_waitcnt lgkmcnt(0)
    s_or_b32 s{sNON}, s{sNON}, 1
    v_mov_b32 v{T0}, s{sNON}
    v_mov_b32 v{T1}, s{sNON+1}
    v_mov_b32 v{T2}, 0
    s_mov_b64 exec, 1
    buffer_store_dwordx2 {vr(T0,2)}, v{T2}, {sr(SDBG,4)}, 0 offen sc1
    s_mov_b64 exec, -1
    """)
    a.label(ln)
    a("s_waitcnt lgkmcnt(0)")
    srd(a, STMP, P_X, XB)
    a(f"s_mov_b32 s{sPFS}, 0\ns_mov_b32 s{sPFO}, 0")
    if 'tup' in EXP: side_loads(a, stat=False)
    a.label(ld)
    S.start()
    srd(a, SX, P_X, XB)
    a(f"""
    s_and_b32 s{sT0}, s2, 1
    s_bfe_u32 s{sT1}, s2, 0x20001
    s_lshr_b32 s{sT2}, s2, 3
    s_cmp_ge_u32 s{sT2}, 16
    s_cbranch_scc1 Lffn
    """)
    def late_srds():
        srd(a, SHO, P_WS, HO_SZ); srd(a, SFL, P_WS, FL_SZ, WT_OFF); srd(a, SDBG, P_DBG, 256)
    def set_stage(c, st): emit([stage_set(c, st)])
    def pretouch(flagoff_s):
        lp = a.uid("Lpt")
        a(f"s_cmp_lg_u32 s{sW}, 7\ns_cbranch_scc1 {lp}")
        stat_row(a)
        a(f"""
        s_lshl_b32 s{sT0}, s{sT0}, 4
        s_add_u32 s{sT0}, s{sT0}, {STO}
        v_mov_b32 v{T0}, s{sT0}
        s_lshl_b32 s{sT0}, s2, 3
        s_add_u32 s{sT0}, s{sT0}, {TFO}
        v_writelane_b32 v{T0}, s{sT0}, 1
        """)
        if flagoff_s is not None:
            a(f"s_add_u32 s{sT0}, s{flagoff_s}, {FLB}\nv_writelane_b32 v{T0}, s{sT0}, 2")
        a(f"buffer_load_dword v255, v{T0}, {sr(SFL,4)}, 0 offen sc1")
        if TLB:
            a(f"v_lshlrev_b32 v{T0}, {TLB}, v{LANE}")
            a(f"buffer_load_dword v255, v{T0}, {sr(SHO,4)}, 0 offen sc1")
            a(f"buffer_load_dword v255, v{T0}, {sr(SFL,4)}, 0 offen sc1")
            srd(a, SPF, P_OUT, XB)
            a(f"buffer_load_dword v255, v{T0}, {sr(SPF,4)}, 0 offen sc1")
            srd(a, SPF, P_B2, 1280)
            a(f"buffer_load_dword v255, v{T0}, {sr(SPF,4)}, 0 offen")
        a.label(lp)
    def pre_loop(c, setup):
        late_srds()
        if 'nopt' not in EXP: pretouch(sHF)
        setup()
        if 'tup' not in EXP: side_loads(a, stat=False, issue=False)
        p2_setup(a, c.VTF)
        S(1)
        a("s_barrier")
        set_stage(c, 0); emit(dmaA(c, a) + dmaB(c, a))
        if 'tup' in EXP:
            a('s_waitcnt vmcnt(6)'); t_work(a)
        a(f"v_mov_b32 v{T0}, 0")
        a(f"buffer_load_dwordx2 {vr(c.VN,2)}, v{T0}, {sr(SDBG,4)}, 0 offen sc1")
        a("s_barrier")
        set_stage(c, 1); emit(dmaA(c, a))
        a(f"s_waitcnt vmcnt(4)")
        S(2)
        a("s_barrier")
        S(3)
        emit(reads(c, 0, 0))
        if 'tup' not in EXP: t_issue(a)
        a(f"s_mov_b32 s{sSLOT}, {c.stg}")
    def alloc_common(c):
        al = Alloc(11)
        c.VX = al(); c.VW = al()
        c.xb = [al(), al()]; c.hb = [al(), al()]; c.wb = [al() for _ in range(c.nF)]
        c.VTF = al(); c.VRA = al(); c.VPS = al(2, 4); c.VN = al(2, 2); c.REC = al(20, 4)
        assert c.VPS == 24
        return al
    def w_voff(c, P):
        a(f"""
        v_cmp_le_u32 vcc, {P}, v{LANE}
        v_mov_b32 v{T1}, {c.wrowb}
        v_subrev_u32 v{T0}, {P}, v{LANE}
        v_cndmask_b32 v{T0}, v{LANE}, v{T0}, vcc
        v_cndmask_b32 v{T1}, 0, v{T1}, vcc
        s_mov_b32 s{sWM}, -1
        s_mov_b32 s{sWM+1}, {(1 << (2*P-32)) - 1}
        s_mul_i32 s{sWB}, s{sW}, {2*c.wrow}
        s_add_u32 s{sWB}, s{sWB}, {c.xsz}
        s_mul_i32 s{sWO}, s{sWO}, {c.wrowb}
        """)
    def publish(younger):
        lp = a.uid("Lp")
        a(f"""
        s_waitcnt vmcnt({younger})
        s_barrier
        s_cmp_lg_u32 s{sW}, 0
        s_cbranch_scc1 {lp}
        v_mov_b32 v{T0}, s{sNON}
        v_mov_b32 v{T1}, s{sNON+1}
        v_mov_b32 v{T2}, {FLB}
        s_mov_b64 exec, 1
        buffer_store_dwordx2 {vr(T0,2)}, v{T2}, {sr(SFL,4)}, s{sHF} offen sc1
        s_mov_b64 exec, -1
        """)
        a.label(lp)
        S(7)
    c = Cfg()
    c.nM, c.nF, c.nh, c.wrow, c.wrowb, c.stg, c.xsz, c.nxm, c.duty = 4, 4, 2, 480, 3840, 49152, 18432, 2, False
    al = alloc_common(c)
    c.acc = [[al(4,4) for i in range(4)] for f in range(4)]
    c.acch = [al(4,4) for f in range(2)]
    lowtop = al.n
    al = Alloc(WREG)
    c.X = [[al(4,4) for i in range(4)] for s in range(2)]
    c.XH = [al(4,4) for s in range(2)]
    c.W = [[al(4,4) for f in range(4)] for s in range(2)]
    assert al.n == 208
    c.early = (list(range(20, 30)) + [18, 19] + list(range(30, 38)))[:nearly]
    a(f"""
    s_lshl_b32 s{sRB}, s{sT0}, 3
    s_and_b32 s{sT3}, s{sT2}, 7
    s_add_u32 s{sRB}, s{sRB}, s{sT3}
    s_lshl_b32 s{sCB}, s{sT1}, 1
    s_lshr_b32 s{sT3}, s{sT2}, 3
    s_add_u32 s{sCB}, s{sCB}, s{sT3}
    s_lshl_b32 s{sT3}, s{sRB}, 7
    s_lshl_b32 s{sT0}, s{sW}, 3
    s_add_u32 s{sT3}, s{sT3}, s{sT0}
    s_sub_u32 s{sT3}, s{sT3}, 16
    s_max_i32 s{sT0}, s{sT3}, 0
    s_mul_i32 s{sXO}, s{sT0}, 1280
    s_add_u32 s{sT3}, s{sT3}, 64
    s_mul_i32 s{sXO+1}, s{sT3}, 1280
    s_add_u32 s{sXO+2}, s{sXO+1}, 81920
    """)
    w_voff(c, 30)
    a(f"""
    v_mul_u32_u24 v{T2}, 26, v{T0}
    v_lshrrev_b32 v{T2}, 8, v{T2}
    v_mul_u32_u24 v{T2}, 1120, v{T2}
    v_lshl_add_u32 v{T0}, v{T0}, 4, v{T2}
    v_add_u32 v{c.VW}, v{T0}, v{T1}
    s_mul_i32 s{sT0}, s{sCB}, 160
    s_add_u32 s{sWO}, s{sWO}, s{sT0}
    """)
    srd(a, SW, P_WQ, 640*3840)
    a(f"s_add_u32 s{sT0}, s{sRB}, 16\ns_lshl_b32 s{sT0}, s{sT0}, 7\ns_lshl_b32 s{sT1}, s{sCB}, 3\ns_add_u32 s{sHF}, s{sT0}, s{sT1}")
    def q_setup():
        a(f"s_lshr_b32 s{sMH}, s{sW}, 2\ns_and_b32 s{sT0}, s{sW}, 3\ns_lshl_b32 s{sT0}, s{sT0}, 2\ns_lshl_b32 s{sT1}, s{sMH}, 1")
        for f in range(4):
            a(f"s_xor_b32 s{sT2}, s{sT1}, {f}\ns_add_u32 s{sT2}, s{sT2}, s{sT0}\ns_min_u32 s{sNT+f}, s{sT2}, 14")
        a(f"""
        s_mov_b32 s{sMSK}, 0xfffefffe
        s_mov_b32 s{sMSK+1}, 0xfffefffe
        v_lshrrev_b32 v{T0}, 1, v{R}
        v_xor_b32 v{T0}, v{T0}, v{G}
        v_lshlrev_b32 v{T0}, 4, v{T0}
        v_lshl_add_u32 v{T0}, v{R}, 7, v{T0}
        v_add_u32 v{c.hb[0]}, {c.stg}, v{T0}
        v_xor_b32 v{c.hb[1]}, 64, v{c.hb[0]}
        s_lshl_b32 s{sT0}, s{sMH}, 13
        s_add_u32 s{sT0}, s{sT0}, 2048
        v_add_u32 v{c.xb[0]}, s{sT0}, v{c.hb[0]}
        v_add_u32 v{c.xb[1]}, s{sT0}, v{c.hb[1]}
        """)
        rho_local(a, T0, T1)
        a(f"v_mul_u32_u24 v{T0}, 480, v{T0}\nv_and_b32 v{T1}, 3, v{LANE}\nv_lshl_add_u32 v{T0}, v{T1}, 3, v{T0}")
        for f in range(4):
            a(f"s_lshl_b32 s{sT0}, s{sNT+f}, 5\ns_add_u32 s{sT0}, s{sT0}, {c.xsz+c.stg}\nv_add_u32 v{c.wb[f]}, s{sT0}, v{T0}")
        a(f"v_lshlrev_b32 v{c.VRA}, 4, v{R}")
        a(f"""
        s_lshl_b32 s{sT0}, s{sRB}, 7
        s_lshl_b32 s{sT1}, s{sMH}, 6
        s_add_u32 s{sT1}, s{sT1}, s{sT0}
        s_lshl_b32 s{sT1}, s{sT1}, 4
        s_add_u32 s{sRM}, s{sT1}, {STO}
        s_sub_u32 s{sT0}, s{sT0}, 16
        s_max_i32 s{sT0}, s{sT0}, 0
        s_lshl_b32 s{sT0}, s{sT0}, 4
        s_add_u32 s{sRH}, s{sT0}, {STO}
        """)
        for s in range(2):
            for r in range(4): a(f"v_mov_b32 v{c.XH[s]+r}, 0x3f803f80")
    pre_loop(c, q_setup)
    rec = [[f"buffer_load_dwordx4 {vr(c.REC+4*i,4)}, v{c.VRA}, {sr(SFL,4)}, s{sRM} offen offset:{256*i} sc1"] for i in range(4)]
    rec.append([f"buffer_load_dwordx4 {vr(c.REC+16,4)}, v{c.VRA}, {sr(SFL,4)}, s{sRH} offen sc1"])
    CSR = lowtop; CA = 11; WA = 15
    assert CSR + 16 <= WREG and WA + 6 <= c.VTF
    c.tailx = [lines(f"""
        s_lshl_b32 s{sT3}, s{sMH}, 6
        s_add_u32 s{sT3}, s{sT3}, 16
        s_mul_i32 s{sT3}, s{sT3}, {RS}
        v_mul_u32_u24 v{T2}, {RS}, v{R}
        v_lshlrev_b32 v{T3}, 4, v{G}""")]
    for f in range(4):
        c.tailx.append(lines(f"""
        s_lshl_b32 s{sT0}, s{sNT+f}, 6
        s_add_u32 s{sT0}, s{sT0}, {L_CS}
        v_add_u32 v{CA+f}, s{sT0}, v{T3}
        s_mul_i32 s{sT0}, s{sNT+f}, 52
        s_lshr_b32 s{sT0}, s{sT0}, 8
        s_mul_i32 s{sT2}, s{sT0}, 5
        s_sub_u32 s{sT2}, s{sNT+f}, s{sT2}
        s_lshl_b32 s{sT2}, s{sT2}, 2
        s_mul_i32 s{sT0}, s{sT0}, 192
        v_add_u32 v{T0}, s{sT2}, v{G}"""))
        c.tailx.append(lines(f"""
        v_mul_u32_u24 v{T1}, 52, v{T0}
        v_lshrrev_b32 v{T1}, 8, v{T1}
        v_add_u32 v{T0}, v{T0}, v{T1}"""))
        c.tailx.append(lines(f"v_lshl_add_u32 v{T0}, v{T0}, 3, v{T2}") + ([f"v_add_u32 v{WA+4+f}, s{sT0}, v{T0}"] if f < 2 else []) +
                       lines(f"s_add_u32 s{sT0}, s{sT0}, s{sT3}\nv_add_u32 v{WA+f}, s{sT0}, v{T0}"))
    main_loop(a, c, S, "q", rec)
    a(f"s_not_b64 exec, {sr(sMSK,2)}")
    for f in range(2): a(f"ds_write_b128 v{CA+f}, {vr(c.acch[f],4)}")
    a("s_mov_b64 exec, -1")
    a(f"s_waitcnt vmcnt({c.yrec})")
    poll(a, sum(rec, []), [c.REC+4*i+2 for i in range(5)], True)
    S(55)
    a("s_waitcnt lgkmcnt(0)\ns_barrier")
    S(56)
    for f in range(4): a(f"ds_read_b128 {vr(CSR+4*f,4)}, v{CA+f}")
    rest = [p for p in list(range(30, 38)) + list(range(30)) if p not in c.early]
    I = Inter(a, [wfrag(p) for p in rest], qevery)
    TP = c.VPS
    for f in range(4):
        I(f"s_waitcnt lgkmcnt({3-f if f == 0 else 15})" if f == 0 else "s_nop 0")
        if f == 1: I("s_waitcnt lgkmcnt(5)")
        tl = [(c.acc[f][i], WA+f, i*16*RS, c.REC+4*i) for i in range(4)]
        if f < 2: tl.append((c.acch[f], WA+4+f, 0, c.REC+16))
        for (ac, ad, off, st) in tl:
            I(f"""
            v_pk_mul_f32 {vr(TP,2)}, {vr(CSR+4*f,2)}, {vr(st,2)} op_sel:[0,1] op_sel_hi:[1,1]
            v_pk_mul_f32 {vr(TP+2,2)}, {vr(CSR+4*f+2,2)}, {vr(st,2)} op_sel:[0,1] op_sel_hi:[1,1]
            v_pk_fma_f32 {vr(ac,2)}, {vr(ac,2)}, {vr(st,2)}, {vr(TP,2)} op_sel:[0,0,0] op_sel_hi:[1,0,1]
            v_pk_fma_f32 {vr(ac+2,2)}, {vr(ac+2,2)}, {vr(st,2)}, {vr(TP+2,2)} op_sel:[0,0,0] op_sel_hi:[1,0,1]
            v_cvt_pk_bf16_f32 v{ac}, v{ac}, v{ac+1}
            v_cvt_pk_bf16_f32 v{ac+1}, v{ac+2}, v{ac+3}
            ds_write_b64 v{ad}, {vr(ac,2)} offset:{off}
            """)
    S(57)
    al = Alloc(11)
    AB = al(); OV = al(); OV1 = al(); L31 = al()
    MX = al(); SM_ = al()
    Q = al(12, 2); KB = [al(10, 2) for _ in range(5)]
    L = al(8, 2); PL = al(8); PH = al(8); O = al(20, 2); TPa = al(4)
    assert al.n <= WREG, al.n
    I(f"""
    s_and_b32 s{sT0}, s{sW}, 1
    s_lshr_b32 s{sT3}, s{sW}, 1
    s_lshl_b32 s{sT2}, s{sT3}, 5
    s_add_u32 s{sT2}, s{sT2}, 2
    v_and_b32 v{L31}, 31, v{LANE}
    v_add_u32 v{T0}, s{sT2}, v{L31}
    v_mul_u32_u24 v{T0}, {RS}, v{T0}
    v_lshrrev_b32 v{T1}, 5, v{LANE}
    v_mul_u32_u24 v{T2}, 48, v{T1}
    s_mul_i32 s{sT2}, s{sT0}, 96
    v_add3_u32 v{AB}, v{T0}, v{T2}, s{sT2}
    s_lshl_b32 s{sT2}, s{sCB}, 1
    s_add_u32 s{sT2}, s{sT2}, s{sT0}
    s_mul_i32 s{sT2}, s{sT2}, 5
    v_lshl_add_u32 v{T1}, v{T1}, 1, s{sT2}
    v_bfe_u32 v{T0}, v{LANE}, 4, 1
    v_lshlrev_b32 v{T0}, 10, v{T0}
    v_lshl_add_u32 v{T0}, v{R}, 4, v{T0}
    v_lshrrev_b32 v{T2}, 2, v{T1}
    v_lshl_add_u32 v{T2}, v{T2}, 12, v{T0}
    v_and_b32 v{T3}, 3, v{T1}
    v_lshl_add_u32 v{OV}, v{T3}, 8, v{T2}
    v_add_u32 v{T1}, 1, v{T1}
    v_lshrrev_b32 v{T2}, 2, v{T1}
    v_lshl_add_u32 v{T2}, v{T2}, 12, v{T0}
    v_and_b32 v{T3}, 3, v{T1}
    v_lshl_add_u32 v{OV1}, v{T3}, 8, v{T2}
    s_lshl_b32 s{sKX}, s{sRB}, 1
    s_add_u32 s{sKX}, s{sKX}, s{sMH}
    s_mul_i32 s{sKX}, s{sKX}, {74*4096}
    s_and_b32 s{sT1}, s{sT3}, 1
    s_lshl_b32 s{sT1}, s{sT1}, 11
    s_add_u32 s{sKX}, s{sKX}, s{sT1}
    s_add_u32 s{sT2}, s{sT2}, 4
    s_lshr_b32 s{sKW}, s{sT2}, 2
    s_lshl_b32 s{sKW}, s{sKW}, 12
    s_and_b32 s{sT2}, s{sT2}, 3
    s_lshl_b32 s{sT2}, s{sT2}, 8
    s_add_u32 s{sKW}, s{sKW}, s{sT2}
    s_add_u32 s{sKW}, s{sKW}, s{sKX}
    s_waitcnt lgkmcnt(0)
    s_barrier
    """)
    OV2 = T0
    S(5)
    def rd(dst, off):
        return f"ds_read_b128 {vr(dst,4)}, v{AB} offset:{off}\nds_read_b128 {vr(dst+4,4)}, v{AB} offset:{off+16}\nds_read_b64 {vr(dst+8,2)}, v{AB} offset:{off+32}"
    offs = [(14-2*w)*RS+192 for w in range(8)] + [(14-2*w)*RS+384 for w in range(8)]
    issued = 0
    def issue(n):
        nonlocal issued
        for _ in range(n):
            if issued < 16:
                I(rd(KB[issued % 5], offs[issued])); issued += 1
    def need(idx): I(f"s_waitcnt lgkmcnt({3*(issued-1-idx)})")
    I(rd(Q, 14*RS)); issue(4)
    for w in range(8): I(f"v_mov_b32 v{L+w}, 0")
    for d in range(20): I(f"v_mov_b32 v{O+d}, 0")
    for wp in range(4):
        w0, w1 = 2*wp, 2*wp+1
        need(w1)
        for d in range(10):
            for w in (w0, w1): I(f"v_dot2c_f32_bf16 v{L+w}, v{Q+d}, v{KB[w%5]+d}")
        issue(3 if wp == 0 else 2)
    lm = a.uid("Lm")
    a(f"s_or_b32 s{sT2}, s{sRB}, s{sT3}\ns_cmp_lg_u32 s{sT2}, 0\ns_cbranch_scc1 {lm}")
    a(f"v_mov_b32 v{TPa}, {f32(-1e9)}")
    for w in range(1, 8):
        a(f"v_cmp_le_u32 vcc, {2*w}, v{L31}\ns_nop 1\nv_cndmask_b32 v{L+w}, v{TPa}, v{L+w}, vcc")
    a.label(lm)
    cexp = (20 ** -0.5) * math.log2(math.e)
    I(f"""
    v_max3_f32 v{MX}, v{L}, v{L+1}, v{L+2}
    v_max3_f32 v{SM_}, v{L+3}, v{L+4}, v{L+5}
    v_max3_f32 v{MX}, v{MX}, v{L+6}, v{L+7}
    v_max_f32 v{MX}, v{MX}, v{SM_}
    """)
    for w in range(8): I(f"v_sub_f32 v{L+w}, v{L+w}, v{MX}")
    for w in range(8): I(f"v_mul_f32 v{L+w}, {f32(cexp)}, v{L+w}")
    for w in range(8): I(f"v_exp_f32 v{L+w}, v{L+w}")
    I(f"""
    v_add_f32 v{TPa}, v{L}, v{L+1}
    v_add_f32 v{TPa+1}, v{L+2}, v{L+3}
    v_add_f32 v{TPa+2}, v{L+4}, v{L+5}
    v_add_f32 v{TPa+3}, v{L+6}, v{L+7}
    v_add_f32 v{TPa}, v{TPa}, v{TPa+1}
    v_add_f32 v{TPa+2}, v{TPa+2}, v{TPa+3}
    v_add_f32 v{SM_}, v{TPa}, v{TPa+2}
    v_rcp_f32 v{SM_}, v{SM_}
    s_nop 0
    """)
    for w in range(8): I(f"v_mul_f32 v{L+w}, v{L+w}, v{SM_}")
    for w in range(8): I(f"v_cvt_pk_bf16_f32 v{PL+w}, v{L+w}, 0\nv_cvt_pk_bf16_f32 v{PH+w}, 0, v{L+w}")
    for w in range(8):
        need(8+w)
        for d in range(10):
            I(f"v_dot2c_f32_bf16 v{O+2*d}, v{KB[(8+w)%5]+d}, v{PL+w}\nv_dot2c_f32_bf16 v{O+2*d+1}, v{KB[(8+w)%5]+d}, v{PH+w}")
        issue(1)
    S(58)
    qleft = I.g; I.g = []
    for u in (0,1,2,3,8,9,4,5,6,7): a(f"v_cvt_pk_bf16_f32 v{Q+u}, v{O+2*u}, v{O+2*u+1}")
    a(f"""
    buffer_store_dwordx4 {vr(Q,4)}, v{OV}, {sr(SHO,4)}, s{sKX} offen sc1
    v_permlane32_swap_b32 v{Q+8}, v{Q+10}
    v_permlane32_swap_b32 v{Q+9}, v{Q+11}
    buffer_store_dwordx4 {vr(Q+4,4)}, v{OV1}, {sr(SHO,4)}, s{sKX} offen sc1
    s_mov_b32 exec_hi, 0
    buffer_store_dwordx4 {vr(Q+8,4)}, v{OV2}, {sr(SHO,4)}, s{sKW} offen sc1
    s_mov_b64 exec, -1
    """)
    S(6)
    a("s_barrier")
    qleft = qleft + [wfrag(p) for p in range(38, 45)]
    emit(qleft[:NB])
    publish(NB)
    emit(qleft[NB:])
    a("s_branch Lphase2")
    a.label("Lffn")
    c = Cfg()
    c.nM, c.nF, c.nh, c.wrow, c.wrowb, c.stg, c.xsz, c.nxm, c.duty = 5, 3, 0, 384, 3456, 49152, 20480, 4, True
    al = alloc_common(c)
    B1 = al(8, 2)
    c.acc = [[al(4,4) for i in range(5)] for f in range(3)]
    lowtop = al.n
    eal = al
    al = Alloc(WREG)
    c.X = [[al(4,4) for i in range(5)] for s in range(2)]
    c.W = [[al(4,4) for f in range(3)] for s in range(2)]
    assert al.n <= 208
    c.early = (list(range(20, 30)) + [18, 19] + list(range(30, 38)))[:nearly]
    a(f"""
    s_sub_u32 s{sT2}, s{sT2}, 16
    s_lshl_b32 s{sT1}, s{sT1}, 4
    s_add_u32 s{sT1}, s{sT1}, s{sT2}
    s_cmp_ge_u32 s{sT1}, 63
    s_cbranch_scc1 Lidle
    s_mul_i32 s{sCB}, s{sT1}, 37
    s_lshr_b32 s{sCB}, s{sCB}, 8
    s_sub_u32 s{sT3}, s{sCB}, s{sT0}
    s_mul_i32 s{sT3}, s{sT3}, 7
    s_sub_u32 s{sRB}, s{sT1}, s{sT3}
    s_mul_i32 s{sT3}, s{sRB}, {FROWS}
    s_lshl_b32 s{sT0}, s{sW}, 3
    s_add_u32 s{sT3}, s{sT3}, s{sT0}
    s_mul_i32 s{sXO}, s{sT3}, 1280
    s_add_u32 s{sXO+1}, s{sXO}, 81920
    s_add_u32 s{sXO+2}, s{sXO}, 163840
    """)
    w_voff(c, 24)
    a(f"""
    s_and_b32 s{sT0}, s{sW}, 3
    s_lshl_b32 s{sT0}, s{sT0}, 1
    v_xor_b32 v{T0}, s{sT0}, v{T0}
    v_lshl_add_u32 v{c.VW}, v{T0}, 4, v{T1}
    s_mul_i32 s{sT0}, s{sCB}, 384
    s_add_u32 s{sWO}, s{sWO}, s{sT0}
    """)
    srd(a, SW, P_W1, 640*3456)
    srd(a, SWT, P_B1, 3456)
    a(f"s_lshl_b32 s{sT0}, s{sRB}, 7\ns_lshl_b32 s{sT1}, s{sCB}, 3\ns_add_u32 s{sHF}, s{sT0}, s{sT1}")
    RHO = c.hb[0]
    def f_setup():
        a(f"""
        s_lshr_b32 s{sMH}, s{sW}, 2
        s_bfe_u32 s{sT0}, s{sW}, 0x10001
        s_and_b32 s{sT1}, s{sW}, 1
        s_mul_i32 s{sT0}, s{sT0}, 6
        s_lshl_b32 s{sT2}, s{sT1}, 2
        s_add_u32 s{sNT}, s{sT0}, s{sT2}
        s_add_u32 s{sNT+1}, s{sNT}, 1
        s_add_u32 s{sNT+2}, s{sT0}, s{sT1}
        s_add_u32 s{sNT+2}, s{sNT+2}, 2
        s_cmp_eq_u32 s{sMH}, 0
        s_cselect_b32 s{sMSK}, -1, 0x7fff7fff
        s_cselect_b32 s{sMSK+1}, -1, 0x7fff7fff
        v_lshrrev_b32 v{T0}, 1, v{R}
        v_xor_b32 v{T0}, v{T0}, v{G}
        v_lshlrev_b32 v{T0}, 4, v{T0}
        v_lshl_add_u32 v{T0}, v{R}, 7, v{T0}
        s_mul_i32 s{sT0}, s{sMH}, {5*2048}
        s_add_u32 s{sT0}, s{sT0}, {c.stg}
        v_add_u32 v{c.xb[0]}, s{sT0}, v{T0}
        v_xor_b32 v{c.xb[1]}, 64, v{c.xb[0]}
        """)
        rho_local(a, T0, T1)
        a(f"""
        v_bfe_u32 v{T2}, v{T0}, 1, 2
        v_mul_u32_u24 v{T0}, 384, v{T0}
        v_and_b32 v{T1}, 3, v{LANE}
        v_lshl_add_u32 v{T0}, v{T1}, 3, v{T0}
        v_add_u32 v{T0}, {c.xsz+c.stg}, v{T0}
        """)
        for f in range(3):
            a(f"v_xor_b32 v{T1}, s{sNT+f}, v{T2}\nv_lshl_add_u32 v{c.wb[f]}, v{T1}, 5, v{T0}")
        a(f"""
        s_mul_i32 s{sT0}, s{sRB}, {FROWS}
        s_mul_i32 s{sT1}, s{sMH}, 80
        s_add_u32 s{sT0}, s{sT0}, s{sT1}
        v_add_u32 v{RHO}, s{sT0}, v{R}
        v_lshlrev_b32 v{T0}, 4, v{RHO}
        v_add_u32 v{c.VRA}, {STO}, v{T0}
        """)
        for s in range(2):
            for r in range(4): a(f"v_mov_b32 v{c.X[s][4]+r}, 0x3f803f80")
        a(f"v_lshlrev_b32 v{T0}, 3, v{G}\ns_mul_i32 s{sT2}, s{sCB}, 384")
        for f in range(3):
            a(f"s_lshl_b32 s{sT1}, s{sNT+f}, 5\ns_add_u32 s{sT1}, s{sT1}, s{sT2}")
            a(f"buffer_load_dwordx2 {vr(B1+2*f,2)}, v{T0}, {sr(SWT,4)}, s{sT1} offen")
    pre_loop(c, f_setup)
    rec = [[f"v_add_u32 v{T3}, {256*i}, v{c.VRA}", f"v_min_u32 v{T3}, {STO+2047*16}, v{T3}",
            f"buffer_load_dwordx4 {vr(c.REC+4*i,4)}, v{T3}, {sr(SFL,4)}, 0 offen sc1"] for i in range(5)]
    CA = 17
    c.tailx = [[f"v_lshlrev_b32 v{T3}, 4, v{G}"]] + [lines(f"s_lshl_b32 s{sT0}, s{sNT+f}, 6\ns_add_u32 s{sT0}, s{sT0}, {L_CS}\nv_add_u32 v{CA+f}, s{sT0}, v{T3}") for f in range(3)]
    main_loop(a, c, S, "f", rec)
    a(f"s_waitcnt vmcnt({c.yrec})")
    poll(a, sum(rec, []), [c.REC+4*i+2 for i in range(5)], True)
    lc = a.uid("Lc")
    a(f"s_cmp_eq_u32 s{sMH}, 0\ns_cbranch_scc1 {lc}\ns_not_b64 exec, {sr(sMSK,2)}")
    for f in range(3): a(f"ds_write_b128 v{CA+f}, {vr(c.acc[f][4],4)}")
    a("s_mov_b64 exec, -1\ns_waitcnt lgkmcnt(0)")
    a.label(lc)
    a("s_barrier")
    CC = c.VPS; VA = 11
    CSR = eal(12, 2); TT = [eal(2,2) for _ in range(4)] + [12, B1+6]
    assert eal.n <= WREG, eal.n
    for f in range(3): a(f"ds_read_b128 {vr(CSR+4*f,4)}, v{CA+f}")
    BFp = [c.REC+4*i+2 for i in range(5)] + [B1+4]
    OUTP = [B1, 16]; SG = 20
    assert RHO == 15
    rest = [p for p in list(range(30, 45)) + list(range(30)) if p not in c.early]
    I = Inter(a, [wfrag(p) for p in rest], fevery)
    c0 = -2*math.sqrt(2/math.pi)*math.log2(math.e); c1 = c0*0.044715
    for j in range(5): I(f"v_lshlrev_b32 v{BFp[j]}, 16, v{B1+j}\nv_and_b32 v{BFp[j]+1}, 0xffff0000, v{B1+j}")
    I(f"v_lshlrev_b32 v{B1+4}, 16, v{B1+5}\nv_and_b32 v{B1+5}, 0xffff0000, v{B1+5}")
    I(f"v_mov_b32 v{CC}, {f32(c0)}\nv_mov_b32 v{CC+1}, {f32(c1)}\nv_mov_b32 v{CC+2}, 1.0")
    I(f"""
    v_and_b32 v{T2}, 15, v{RHO}
    v_lshlrev_b32 v{T2}, 4, v{T2}
    v_lshl_add_u32 v{T1}, v{G}, 8, v{T2}
    v_and_b32 v{T3}, 1, v{G}
    v_lshl_add_u32 v14, v{T3}, 8, v{T2}
    v_lshrrev_b32 v{T0}, 4, v{RHO}
    v_lshrrev_b32 v{T3}, 5, v{LANE}
    v_add_u32 v{RHO}, v{T0}, v{T3}
    s_mul_i32 s{sT2}, s{sCB}, 6
    s_add_u32 s{sT2}, s{sT2}, 20
    s_lshr_b32 s{sT0}, s{sNT}, 1
    s_add_u32 s{sT0}, s{sT0}, s{sT2}
    s_lshl_b32 s{sKX}, s{sT0}, 12
    s_lshr_b32 s{sT0}, s{sNT+2}, 1
    s_add_u32 s{sT0}, s{sT0}, s{sT2}
    s_lshl_b32 s{sKW}, s{sT0}, 12
    s_and_b32 s{sT0}, s{sNT+2}, 1
    s_lshl_b32 s{sT0}, s{sT0}, 9
    s_add_u32 s{sKW}, s{sKW}, s{sT0}
    s_mov_b32 s{sT3}, {74*4096}
    s_waitcnt lgkmcnt(0)
    """)
    a(f"s_cmp_eq_u32 s{sMH}, 0\ns_cselect_b32 s{sMSK}, -1, 0x00ff00ff\ns_mov_b32 s{sMSK+1}, s{sMSK}")
    def gelu_pair(h, cs, b, st, t, dst):
        return [f"v_pk_fma_f32 {vr(t,2)}, {vr(cs,2)}, {vr(st,2)}, {vr(b,2)} op_sel:[0,1,0] op_sel_hi:[1,1,1]",
                f"v_pk_fma_f32 {vr(h,2)}, {vr(h,2)}, {vr(st,2)}, {vr(t,2)} op_sel:[0,0,0] op_sel_hi:[1,0,1]",
                f"v_pk_mul_f32 {vr(t,2)}, {vr(h,2)}, {vr(h,2)}",
                f"v_pk_fma_f32 {vr(t,2)}, {vr(t,2)}, {vr(CC,2)}, {vr(CC,2)} op_sel:[0,1,0] op_sel_hi:[1,1,0]",
                f"v_pk_mul_f32 {vr(t,2)}, {vr(t,2)}, {vr(h,2)}",
                f"v_exp_f32 v{t}, v{t}",
                f"v_exp_f32 v{t+1}, v{t+1}",
                f"v_pk_add_f32 {vr(t,2)}, {vr(t,2)}, {vr(CC+2,2)} op_sel_hi:[1,0]",
                f"v_rcp_f32 v{t}, v{t}",
                f"v_rcp_f32 v{t+1}, v{t+1}",
                f"v_pk_mul_f32 {vr(t,2)}, {vr(t,2)}, {vr(h,2)}",
                f"v_cvt_pk_bf16_f32 v{dst}, v{t}, v{t+1}"]
    def blkaddr(dst, tile, low):
        I(f"""
        v_lshrrev_b32 v{T2}, 2, v{tile}
        v_mul_lo_u32 v{T2}, v{T2}, s{sT3}
        v_and_b32 v{T3}, 3, v{tile}
        v_lshl_add_u32 v{T2}, v{T3}, 10, v{T2}
        v_add_u32 v{dst}, v{T2}, v{low}
        """)
    for i in range(5):
        o = OUTP[i & 1]
        streams = [gelu_pair(c.acc[f][i]+2*hp, CSR+4*f+2*hp, BFp[2*f+hp], c.REC+4*i, TT[2*f+hp],
                             (o+2*f+hp) if f < 2 else (SG+2*(i&1)+hp)) for f in range(3) for hp in range(2)]
        for k in range(len(streams[0])):
            for s in streams: I(s[k])
        blkaddr(VA, T0, T1)
        I(f"v_add_u32 v{T0}, 1, v{T0}")
        if i == 4: a(f"s_mov_b64 exec, {sr(sMSK,2)}")
        a(f"buffer_store_dwordx4 {vr(o,4)}, v{VA}, {sr(SHO,4)}, s{sKX} offen sc1")
        if i == 4: a("s_mov_b64 exec, -1")
        if i & 1 or i == 4:
            a(f"v_permlane32_swap_b32 v{SG}, v{SG+2}\nv_permlane32_swap_b32 v{SG+1}, v{SG+3}")
            blkaddr(VA, RHO, 14)
            I(f"v_add_u32 v{RHO}, 2, v{RHO}")
            if i == 4: a(f"s_mov_b32 exec_lo, s{sMSK}\ns_mov_b32 exec_hi, 0")
            a(f"buffer_store_dwordx4 {vr(SG,4)}, v{VA}, {sr(SHO,4)}, s{sKW} offen sc1")
            if i == 4: a("s_mov_b64 exec, -1")
    left = len(I.g)
    S(6)
    nb = min(left, NB)
    I.flush(left - nb)
    publish(nb)
    I.flush()
    a("s_branch Lphase2")
    a.label("Lidle")
    late_srds()
    emit([duty(a, 6, False)])
    pretouch(None)
    if 'tup' not in EXP: side_loads(a, stat=False)
    stat_loads(a)
    p2_setup(a, 11)
    a("s_waitcnt vmcnt(0)")
    t_work(a)
    a(f"v_mov_b32 v14, 0\nv_mov_b32 v15, 0\ns_waitcnt vmcnt(0)\ns_barrier")
    nonce_get(a, 14, 12)
    a("s_nop 1")
    s_work(a, 12)
    poll(a, [f"buffer_load_dwordx2 v[14:15], v11, {sr(SFL,4)}, 0 offen sc1"], [14], False)
    for l in p2_ldsbases(): a(l)
    emit([wfrag(p) for p in c.early + rest])
    a.label("Lphase2")
    l9 = a.uid("L9")
    a(f"s_cmp_ge_u32 s{sW}, 2\ns_cbranch_scc1 {l9}")
    emit([wfrag(p) for p in range(45, 50)])
    a.label(l9)
    al = Alloc(12)
    VFD = al(2, 2); VLA = al(); VLB = al()
    acc = [[al(4,4) for m in range(4)] for n in range(5)]
    RING = [al(16, 4), al(16, 4)]
    XR = al(6, 2)
    assert al.n <= WREG, al.n
    S(8)
    poll(a, [f"buffer_load_dwordx2 {vr(VFD,2)}, v{VF}, {sr(SFL,4)}, 0 offen sc1"], [VFD], False)
    S(9)
    Wslot = [WREG+20*t for t in range(6)]
    abuf = {0: RING[0], 1: RING[1], 2: RING[0], 3: Wslot[0], 4: RING[1], 5: Wslot[1], 6: RING[0], 7: Wslot[0], 8: RING[1], 9: Wslot[1]}
    issue_after = {0: [2, 3], 1: [4, 5], 2: [6], 3: [7], 4: [8], 5: [9]}
    wloc = {t: Wslot[t] for t in range(6)}
    wloc.update({6: Wslot[2], 7: Wslot[3], 8: Wslot[4], 9: Wslot[5]})
    B2 = [Wslot[0]+16, Wslot[0]+18, Wslot[1]+16]
    def aload(t):
        a(f"s_lshl_b32 s{sTM}, s{sK+t}, 12")
        for m in range(4): a(f"buffer_load_dwordx4 {vr(abuf[t]+4*m,4)}, v{VL}, {sr(SPF,4)}, s{sTM} offen offset:{1024*m} sc1")
    ops = []
    for t in (0, 1): aload(t); ops += [t]*4
    SOX, SOB = [sKX, sKW, sDELTA], [sSLOT, sW1K, sMH]
    a(f"v_add_u32 v{VLA}, s{sFILL}, v{VL}\nv_add_u32 v{VLB}, s{sFW}, v{VL}\ns_mul_i32 s{sT0}, s{sC2}, 160")
    for j in range(3):
        a(f"""
        s_add_u32 s{sT1}, s{sW}, {8*j}
        s_mul_i32 s{sT2}, s{sT1}, 52
        s_lshr_b32 s{sT2}, s{sT2}, 8
        s_mul_i32 s{sT3}, s{sT2}, 5
        s_sub_u32 s{sT1}, s{sT1}, s{sT3}
        s_lshl_b32 s{sT1}, s{sT1}, 5
        s_mul_i32 s{sT2}, s{sT2}, 20480
        s_add_u32 s{SOX[j]}, s{sT2}, s{sT1}
        s_add_u32 s{SOB[j]}, s{sT0}, s{sT1}
        """)
    srd(a, STMP, P_B2, 1280)
    srd(a, SW, P_OUT, XB)
    for t in range(10):
        if t == 9: a(f"s_cmp_ge_u32 s{sW}, 2\ns_cbranch_scc1 Lp2done")
        younger = len(ops) - 1 - max(i for i, o in enumerate(ops) if o == t)
        a(f"s_waitcnt vmcnt({younger})" + (" lgkmcnt(0)" if t == 6 else ""))
        for n in range(5):
            for m in range(4): a(mfma(acc[n][m], wloc[t]+4*n, abuf[t]+4*m, t == 0))
        if 2 <= t <= 5:
            for n in range(5):
                phi = (t+4)*5+n
                ad, off = (VLA, (phi-30)*1024) if phi < 38 else (VLB, (phi-38)*1024)
                a(f"ds_read_b128 {vr(wloc[t+4]+4*n,4)}, v{ad} offset:{off}")
        for tt in issue_after.get(t, []): aload(tt); ops += [tt]*4
        if t == 5:
            a(f"v_lshlrev_b32 v{T1}, 3, v{G}")
            for j in range(3): a(f"buffer_load_dwordx2 {vr(XR+2*j,2)}, v{VXO}, {sr(SX,4)}, s{SOX[j]} offen"); ops.append('x')
            for j in range(3): a(f"buffer_load_dwordx2 {vr(B2[j],2)}, v{T1}, {sr(STMP,4)}, s{SOB[j]} offen"); ops.append('b')
        S(40+t)
    a.label("Lp2done")
    a("s_nop 7")
    for m in range(4):
        for n in range(5):
            q = m*5+n
            ad, off = (VLA, q*1024) if q < 8 else (VLB, (q-8)*1024)
            a(f"ds_write_b128 v{ad}, {vr(acc[n][m],4)} offset:{off}")
    a(f"""
    s_lshl_b32 s{sT0}, s{sW}, 10
    v_add_u32 v{T0}, s{sT0}, v{VL}
    v_add_u32 v{T2}, {L_A}, v{T0}
    v_add_u32 v{T3}, {4*12288}, v{T0}
    """)
    S(52)
    a("s_waitcnt lgkmcnt(0)\ns_barrier")
    S(53)
    P = [[acc[0][0] + (j*8+s)*4 for s in range(8)] for j in range(3)]
    assert P[2][7]+4 <= XR
    def rdtile(j):
        for s in range(8):
            if j == 0: ad, off = T2, s*8192
            else: ad, off = (T0 if s < 4 else T3), (s%4)*12288 + (j-1)*8192
            a(f"ds_read_b128 {vr(P[j][s],4)}, v{ad} offset:{off}")
    L2E = f32(-math.log2(math.e))
    def fin(j):
        p = P[j]
        Sx, Y, Z = p[0], p[2], p[3]
        for h in (0, 2):
            for k in (0, 2, 4, 6): a(f"v_pk_add_f32 {vr(p[k]+h,2)}, {vr(p[k]+h,2)}, {vr(p[k+1]+h,2)}")
        def unp(x, q):
            a(f"v_lshlrev_b32 v{x}, 16, v{q}\nv_and_b32 v{x+1}, 0xffff0000, v{q}\nv_lshlrev_b32 v{x+2}, 16, v{q+1}\nv_and_b32 v{x+3}, 0xffff0000, v{q+1}")
        unp(Z, B2[j])
        for h in (0, 2):
            a(f"v_pk_add_f32 {vr(p[2]+h,2)}, {vr(p[2]+h,2)}, {vr(p[4]+h,2)}")
            a(f"v_pk_add_f32 {vr(p[6]+h,2)}, {vr(p[6]+h,2)}, {vr(Z+h,2)}")
        for h in (0, 2): a(f"v_pk_add_f32 {vr(Y+h,2)}, {vr(Y+h,2)}, {vr(p[6]+h,2)}")
        for r in range(4): a(f"v_mul_f32 v{Z+r}, {L2E}, v{Y+r}")
        for r in range(4): a(f"v_exp_f32 v{Z+r}, v{Z+r}")
        for r in range(4): a(f"v_add_f32 v{Z+r}, 1.0, v{Z+r}")
        for r in range(4): a(f"v_rcp_f32 v{Z+r}, v{Z+r}")
        for h in (0, 2): a(f"v_pk_mul_f32 {vr(Y+h,2)}, {vr(Y+h,2)}, {vr(Sx+h,2)}")
        unp(p[4], XR+2*j)
        for r in range(4): a(f"v_fma_f32 v{Y+r}, v{Y+r}, v{Z+r}, v{p[4]+r}")
        a(f"v_cvt_pk_bf16_f32 v{Sx}, v{Y}, v{Y+1}\nv_cvt_pk_bf16_f32 v{Sx+1}, v{Y+2}, v{Y+3}")
        a(f"buffer_store_dwordx2 {vr(Sx,2)}, v{VXO}, {sr(SW,4)}, s{SOX[j]} offen")
    rdtile(0); rdtile(1)
    a("s_waitcnt vmcnt(0) lgkmcnt(8)")
    l3 = a.uid("L3")
    a(f"s_cmp_ge_u32 s{sW}, 4\ns_cbranch_scc1 {l3}")
    rdtile(2)
    a.label(l3)
    fin(0)
    a("s_waitcnt lgkmcnt(0)")
    fin(1)
    a(f"s_cmp_ge_u32 s{sW}, 4\ns_cbranch_scc1 Lfin")
    fin(2)
    a.label("Lfin")
    S.finish(54)
    a.label("Lend")
    a("s_endpgm")
    ref = open(f"cdna_kernels/{NAME}.s.ref").read().split("\n")
    hdr = [l for l in ref if l.startswith(";") and "@launch" not in l]
    out = "\n".join(hdr) + f"\n; @launch grid=(256,1,1) block=(512,1,1) lds={LDS_TOTAL}\n"
    out += '.amdgcn_target "amdgcn-amd-amdhsa--gfx950"\n' + khead(name) + a.text() + kd(name, 256, 102)
    return out

if __name__ == "__main__":
    path = sys.argv[1]
    kw = eval("dict(" + (sys.argv[2] if len(sys.argv) > 2 else "") + ")")
    open(path, "w").write(gen(**kw))
```

```python
from asmlib import *
import math, sys
NAME = "recurrent_scan__sliding_local_dilated__dense_activation_gelu__prompt"
XB = 2048*640*2
HO_SZ = 32*74*4096
WT_OFF, WT_SZ = 0xB00000, 8*74*5*1024
FLB = 0x400000
TFO, STO = FLB+0x1000, FLB+0x4000
FL_SZ = FLB + 0x10000
BIG = 0x7ff00000
RS = 592
L_TST, L_CS, L_A = 147456, 93184, 98304
LDS_TOTAL = 163840
FROWS = 152

SX, SW, SHO, SPF, SWT, SFL, SDBG, STMP = 4, 8, 16, 20, 24, 28, 32, 36
sXO = 12; sWO = 15
P_X, P_WQ, P_WO, P_W1, P_B1, P_W2, P_B2, P_OUT, P_DBG, P_WS = 40, 42, 44, 48, 50, 52, 54, 56, 58, 60
(sW, sRB, sCB, sI, sKX, sKW, sTM, sFILL, sDELTA, sSLOT, sW1K, sT0, sT1, sT2, sT3, sMH) = range(62, 78)
sNT = 78; sNON = 82; sMSK = 84; sR2, sC2 = 50, 51; sK = 88; sSP = 98; sN2 = 99
sWM = 100
sFW, sWB = 3, 47
sHF = 43
sPFO, sPFS, sPG = 46, 86, 87
sRM, sRH = 48, 49
sTS = [44, 45, 52, 53]
VF, LANE, G, R, T0, T1, T2, T3, VST, VL, VXO = 0, 1, 2, 3, 4, 5, 6, 7, 8, 9, 10
WREG = 136
SIDE = 232
EXP = set(); PFF = ""; DN = 2; DMASK = 0b101; DPRE = 2; SP = dict(tw=1, nonce=3, sl=3, sw=5, tf=5); TFL = "nt"; RECIT = 9

def mfma(d, a_, b_, c0=False): return f"v_mfma_f32_16x16x32_bf16 {vr(d,4)}, {vr(a_,4)}, {vr(b_,4)}, " + ("0" if c0 else vr(d,4))
def chunks(l, n): return [l[i:i+n] for i in range(0, len(l), n)]
def merge(groups, n): return [sum(g, []) for g in chunks(groups, n)]
def lines(t): return [l.strip() for l in t.strip("\n").split("\n") if l.strip()]
def srd(a, d, p, size, off=None):
    if off is None: a(f"s_mov_b32 s{d}, s{p}\ns_mov_b32 s{d+1}, s{p+1}")
    else: a(f"s_add_u32 s{d}, s{p}, {off}\ns_addc_u32 s{d+1}, s{p+1}, 0")
    a(f"s_mov_b32 s{d+2}, {size}\ns_mov_b32 s{d+3}, 0x00020000")

class St:
    def __init__(s, a, on): s.a, s.on = a, on
    def start(s):
        if s.on: s.a(f"s_memtime s[0:1]\nv_mov_b32 v{VST}, 0\ns_waitcnt lgkmcnt(0)\nv_writelane_b32 v{VST}, s0, 59\nv_writelane_b32 v{VST}, s94, 0\nv_writelane_b32 v{VST}, s96, 62")
    def __call__(s, i):
        if s.on: s.a(f"s_memtime s[0:1]\ns_waitcnt lgkmcnt(0)\nv_writelane_b32 v{VST}, s0, {i}")
    def dyn(s, base):
        if s.on and ((base == 30 and 'nobar' not in EXP) or 'lst' in EXP):
            s.a(f"s_memtime s[0:1]\ns_add_u32 m0, s{sI}, {base}\ns_waitcnt lgkmcnt(0)\nv_writelane_b32 v{VST}, s0, m0")
    def finish(s, i):
        if not s.on: return
        s.a(f"""
        s_waitcnt vmcnt(0)
        s_memtime s[0:1]
        s_waitcnt lgkmcnt(0)
        v_writelane_b32 v{VST}, s0, {i}
        s_memrealtime s[0:1]
        s_waitcnt lgkmcnt(0)
        v_writelane_b32 v{VST}, s0, 63
        s_lshl_b32 s3, s2, 3
        s_add_u32 s3, s3, s{sW}
        s_lshl_b32 s3, s3, 8
        s_add_u32 s3, s3, {STAMP_OFF}
        s_add_u32 s{STMP}, s{P_WS}, s3
        s_addc_u32 s{STMP+1}, s{P_WS+1}, 0
        s_mov_b32 s{STMP+2}, 256
        s_mov_b32 s{STMP+3}, 0x00020000
        v_lshlrev_b32 v{T0}, 2, v{LANE}
        buffer_store_dword v{VST}, v{T0}, {sr(STMP,4)}, 0 offen
        """)
        if 'dbg' in EXP:
            s.a(f"""
            v_readlane_b32 s{sT0}, v{VST}, 0
            v_readlane_b32 s{sT1}, v{VST}, 62
            v_readlane_b32 s{sT2}, v{VST}, 63
            s_not_b32 s{sT1}, s{sT1}
            v_mov_b32 v{T1}, 0
            v_writelane_b32 v{T1}, s{sT1}, 2
            v_writelane_b32 v{T1}, s{sT2}, 3
            """)
            for k, idx in enumerate((59, 3, 4, 7, 9, 53, 54)):
                s.a(f"v_readlane_b32 s{sT3}, v{VST}, {idx}\ns_nop 3\ns_sub_u32 s{sT2}, s{sT3}, s{sT0}\ns_cmp_eq_u32 s{sT3}, 0\ns_cselect_b32 s{sT2}, 0, s{sT2}\nv_writelane_b32 v{T1}, s{sT2}, {4+k}")
            s.a(f"""
            v_readlane_b32 s{sT1}, v{VST}, 62
            s_nop 3
            v_writelane_b32 v{T1}, s{sT1}, 11
            s_mov_b32 exec_lo, 0xffc
            s_mov_b32 exec_hi, 0
            buffer_atomic_umax v{T1}, v{T0}, {sr(SDBG,4)}, 0 offen
            """)
class Cfg: pass

def dma_x(c, a, u):
    g = [f"s_add_u32 m0, s{sFILL}, {u*8192}", f"s_add_u32 s{sTM}, s{sXO+u}, s{sKX}", f"buffer_load_dwordx4 v{c.VX}, {sr(SX,4)}, s{sTM} offen lds"]
    if u == 2:
        lab = a.uid("Lsk")
        g = [f"s_cmp_ge_u32 s{sW}, {c.nxm}", f"s_cbranch_scc1 {lab}"] + g + [lab + ":"]
    return g
def dma_w(c, a, u):
    return [f"s_add_u32 m0, s{sFW}, {u*16*c.wrow}", f"s_add_u32 s{sTM}, s{sKW}, {u*16*c.wrowb}", f"s_mov_b64 exec, {sr(sWM,2)}",
            f"buffer_load_dwordx4 v{c.VW}, {sr(SW,4)}, s{sTM} offen lds", "s_mov_b64 exec, -1"]
def dmaA(c, a): return [dma_x(c,a,0), dma_x(c,a,1), dma_x(c,a,2), dma_w(c,a,0)]
def dmaB(c, a): return [dma_w(c,a,1), dma_w(c,a,2), dma_w(c,a,3)]

def reads(c, st, s):
    r = []
    for i in range(c.nM):
        ins = f"ds_read_b128 {vr(c.X[st][i],4)}, v{c.xb[s]} offset:{i*2048}"
        if (not c.nh) and i == c.nM-1: r.append([f"s_mov_b64 exec, {sr(sMSK,2)}", ins, "s_mov_b64 exec, -1"])
        else: r.append([ins])
    if c.nh: r.append([f"s_mov_b64 exec, {sr(sMSK,2)}", f"ds_read_b128 {vr(c.XH[st],4)}, v{c.hb[s]}", "s_mov_b64 exec, -1"])
    for f in range(c.nF):
        r.append([f"ds_read_b64_tr_b16 {vr(c.W[st][f],2)}, v{c.wb[f]} offset:{s*32*c.wrow}"])
        r.append([f"ds_read_b64_tr_b16 {vr(c.W[st][f]+2,2)}, v{c.wb[f]} offset:{s*32*c.wrow+8*c.wrow}"])
    return r
def mfmas(c, st, c0=False):
    m = []
    for f in range(c.nF):
        for i in range(c.nM): m.append(mfma(c.acc[f][i], c.W[st][f], c.X[st][i], c0))
        if f < c.nh: m.append(mfma(c.acch[f], c.W[st][f], c.XH[st], c0))
    return m
def spread(main, items):
    out = []
    for i, m in enumerate(main):
        out.append(m)
        for p, g in items:
            if p == i or (i == len(main)-1 and p > i): out.extend(g)
    return out
def even(groups, n, lo=1):
    k = len(groups)
    return [(lo + (j*(n-lo))//k, g) for j, g in enumerate(groups)] if k else []

def stat_row(a):
    a(f"""
    s_and_b32 s{sT0}, s2, 1
    s_lshl_b32 s{sT0}, s{sT0}, 10
    s_bfe_u32 s{sT2}, s2, 0x20001
    s_lshl_b32 s{sT2}, s{sT2}, 8
    s_add_u32 s{sT0}, s{sT0}, s{sT2}
    s_and_b32 s{sT2}, s2, 0xf8
    s_add_u32 s{sT0}, s{sT0}, s{sT2}
    s_sub_u32 s{sT2}, s{sW}, 6
    s_lshl_b32 s{sT2}, s{sT2}, 2
    s_add_u32 s{sT0}, s{sT0}, s{sT2}
    """)
def nonce_get(a, vN, vPS):
    l0, l1, l2, l3 = a.uid("Lno"), a.uid("Lno"), a.uid("Lno"), a.uid("Lno")
    assert vN == vPS + 2 and vPS % 2 == 0
    a(f"s_mov_b32 s{sSP}, 0")
    a.label(l0)
    a(f"""
    v_readfirstlane_b32 s{sNON}, v{vN}
    v_readfirstlane_b32 s{sNON+1}, v{vN+1}
    s_add_u32 s{sSP}, s{sSP}, 1
    s_cmp_gt_u32 s{sSP}, 100000
    s_cbranch_scc1 {l1}
    s_cmp_lg_u32 s{sNON}, 0
    s_cbranch_scc1 {l1}
    v_mov_b32 v{T0}, 0
    buffer_load_dwordx2 {vr(vN,2)}, v{T0}, {sr(SDBG,4)}, 0 offen sc1
    s_waitcnt vmcnt(0)
    s_branch {l0}
    """)
    a.label(l1)
    a(f"""
    s_cmp_lg_u32 s{sW}, 0
    s_cbranch_scc1 {l2}
    s_lshl_b32 s{sT1}, s2, 3
    v_mov_b32 v{T0}, {TFO}
    s_mov_b64 exec, 1
    buffer_store_dwordx2 {vr(vN,2)}, v{T0}, {sr(SFL,4)}, s{sT1} offen sc1
    s_mov_b64 exec, -1
    """)
    a.label(l2)
def poll(a, loads, cmps, preloaded):
    l0, l1, l2 = a.uid("Lpo"), a.uid("Lpo"), a.uid("Lpo")
    a(f"s_mov_b32 s{sSP}, 0")
    if preloaded: a(f"s_branch {l2}")
    a.label(l0)
    for l in loads: a(l)
    a("s_waitcnt vmcnt(0)")
    a.label(l2)
    for k, v in enumerate(cmps):
        if k == 0: a(f"v_cmp_eq_u64 vcc, {sr(sNON,2)}, {vr(v,2)}")
        else: a(f"v_cmp_eq_u64 {sr(sT1,2)}, {sr(sNON,2)}, {vr(v,2)}\ns_nop 0\ns_and_b64 vcc, vcc, {sr(sT1,2)}")
    a(f"""
    s_add_u32 s{sSP}, s{sSP}, 1
    s_cmp_gt_u32 s{sSP}, 100000
    s_cbranch_scc1 {l1}
    s_cmp_eq_u64 vcc, -1
    s_cbranch_scc0 {l0}
    """)
    a.label(l1)

def wfrag(phi):
    t, n = divmod(phi, 5)
    pre = [f"s_mul_i32 s{sTM}, s{sK+t}, 5120"]
    if phi < 30:
        if n < 4: return pre + [f"buffer_load_dwordx4 {vr(WREG+4*phi,4)}, v{VL}, {sr(SWT,4)}, s{sTM} offen offset:{1024*n} sc1"]
        return pre + [f"s_add_u32 s{sTM}, s{sTM}, 4096", f"buffer_load_dwordx4 {vr(WREG+4*phi,4)}, v{VL}, {sr(SWT,4)}, s{sTM} offen sc1"]
    base, o = (sFILL, (phi-30)*1024) if phi < 38 else (sFW, (phi-38)*1024)
    return [f"s_add_u32 m0, s{base}, {o}"] + pre + [f"s_add_u32 s{sTM}, s{sTM}, {1024*n}", f"buffer_load_dwordx4 v{VL}, {sr(SWT,4)}, s{sTM} offen sc1 lds"]
def p2_ldsbases():
    return [f"s_lshl_b32 s{sFILL}, s{sW}, 13", f"s_add_u32 s{sFILL}, s{sFILL}, {L_A}", f"s_mul_i32 s{sFW}, s{sW}, 12288"]

def stage_set(c, st):
    slot = ((st+1) % 3) * c.stg
    return lines(f"s_add_u32 s{sFILL}, s{sW1K}, {slot}\ns_add_u32 s{sFW}, s{sWB}, {slot}\ns_mov_b32 s{sKX}, {128*st}\ns_add_u32 s{sKW}, s{sWO}, {64*st*c.wrowb}")
def duty(a, n=2, guard=True):
    lab = a.uid("Ldu")
    g = [f"s_bitcmp1_b32 {DMASK}, s{sI}", f"s_cbranch_scc0 {lab}"] if guard else []
    for _ in range(n):
        g += lines(f"""
        s_cmp_ge_u32 s{sPFO}, s{sPG}
        s_cbranch_scc1 {lab}
        buffer_load_dword v255, v254, {sr(STMP,4)}, s{sPFO} offen {PFF}
        s_add_u32 s{sPFO}, s{sPFO}, s{sPFS}""")
    return g + [lab + ":"]

def iteration(a, c, S, kind, extra1=(), extra2=(), pre2=None):
    bases = list(c.xb) + (list(c.hb) if c.nh else []) + list(c.wb)
    prio = 'noprio' not in EXP
    a("s_waitcnt lgkmcnt(0)")
    M = mfmas(c, 0, kind == 0); n = len(M)
    rb = merge(reads(c, 1, 1), 2)
    items = [(k, g) for k, g in enumerate(rb)]
    if prio: items = [(0, ["s_setprio 1"]), (n//2, ["s_setprio 0"])] + items
    if kind != 9:
        items.append((0, [f"s_add_u32 s{sT1}, s{sSLOT}, {c.stg}", f"s_cmp_eq_u32 s{sT1}, {3*c.stg}", f"s_cselect_b32 s{sT1}, 0, s{sT1}", f"s_sub_u32 s{sDELTA}, s{sT1}, s{sSLOT}"]))
        up = chunks([f"v_add_u32 v{b}, s{sDELTA}, v{b}" for b in bases], 2)
        for k, g in enumerate(up): items.append((len(rb) + k, g))
    if kind in ('loop', 7): items += even(dmaB(c, a), n-4, 2)
    if kind == 0:
        A2 = dmaA(c, a); A2[0] = stage_set(c, 2) + A2[0]
        items += even(dmaB(c, a) + A2 + dmaB(c, a), n-4, 0)
    items += even(list(extra1), n-2, 1)
    if kind in ('loop', 0):
        items.append((n-4, [f"s_add_u32 s{sFILL}, s{sSLOT}, s{sW1K}", f"s_add_u32 s{sFW}, s{sSLOT}, s{sWB}"]))
        items.append((n-3, [f"s_add_u32 s{sKX}, s{sKX}, 128", f"s_add_u32 s{sKW}, s{sKW}, {64*c.wrowb}"]))
    if kind != 9: items.append((n-3, [f"s_mov_b32 s{sSLOT}, s{sT1}"]))
    for l in spread(M, items): a(l)
    S.dyn(10)
    if kind in ('loop', 0, 7): a(f"s_waitcnt vmcnt(6) lgkmcnt(0)")
    elif kind == 8: a(f"s_waitcnt vmcnt({c.y8}) lgkmcnt(0)")
    else: a("s_waitcnt lgkmcnt(0)")
    S.dyn(20)
    a("s_barrier")
    S.dyn(30)
    if prio: a("s_setprio 3")
    if pre2: pre2()
    M = mfmas(c, 1)
    items = []
    if kind != 9: items = [(k, g) for k, g in enumerate(merge(reads(c, 0, 0), 2))]
    if prio: items.append((n//2, ["s_setprio 2"]))
    if kind in ('loop', 0):
        items += even(dmaA(c, a), n, 2)
        if c.duty: items.append((0, duty(a)))
    items += even(list(extra2), n, 0)
    for l in spread(M, items): a(l)

def main_loop(a, c, S, tag, rec_loads):
    iteration(a, c, S, 0)
    if 'tup' in EXP: nonce_get(a, c.VN, c.VPS)
    else: t_work(a)
    a(f"s_mov_b32 s{sI}, 1")
    a.label(f"Lloop_{tag}")
    iteration(a, c, S, 'loop')
    lx, l3, l5 = a.uid("Ls"), a.uid("Ls"), a.uid("Ls")
    tf = f"buffer_load_dwordx2 {vr(c.VN,2)}, v{c.VTF}, {sr(SFL,4)}, 0 offen sc1"
    a(f"s_bitcmp1_b32 0x2c, s{sI}\ns_cbranch_scc0 {lx}")
    a(f"s_cmp_lg_u32 s{sI}, 2\ns_cbranch_scc1 {l3}")
    if 'tup' not in EXP: nonce_get(a, c.VN, c.VPS)
    a(f"s_branch {lx}")
    a.label(l3)
    a(f"s_cmp_lg_u32 s{sI}, 3\ns_cbranch_scc1 {l5}")
    stat_loads(a)
    a(f"s_branch {lx}")
    a.label(l5)
    a(tf)
    s_work(a, c.VPS)
    a.label(lx)
    a(f"s_add_u32 s{sI}, s{sI}, 1\ns_cmp_lt_u32 s{sI}, 7\ns_cbranch_scc1 Lloop_{tag}")
    early = [wfrag(p) for p in c.early]
    e = chunks(early, (len(early)+4)//5)
    def pre7():
        poll(a, [tf], [c.VN], True)
        for l in p2_ldsbases(): a(l)
    iteration(a, c, S, 7, extra2=e[0], pre2=pre7)
    a(f"s_add_u32 s{sI}, s{sI}, 1")
    c.y8 = len(e[0]) + len(e[1])
    iteration(a, c, S, 8, extra1=e[1], extra2=rec_loads + e[2])
    a(f"s_add_u32 s{sI}, s{sI}, 1")
    iteration(a, c, S, 9, extra1=e[3], extra2=e[4] + c.tailx)
    a("s_setprio 0")
    c.yrec = len(e[2]) + len(e[3]) + len(e[4])
    S(4)

def rho_local(a, d, t):
    a(f"v_bfe_u32 v{d}, v{LANE}, 2, 3\nv_lshrrev_b32 v{t}, 5, v{LANE}\nv_lshl_add_u32 v{d}, v{t}, 4, v{d}")

def t_issue(a, guard=True):
    ld = a.uid("Lti")
    if guard: a(f"s_sub_u32 s{sT1}, s{sW}, 3\ns_cmp_gt_u32 s{sT1}, 2\ns_cbranch_scc1 {ld}")
    a(f"s_lshl_b32 s{sT1}, s{sW}, 12")
    for q in range(4):
        a(f"s_add_u32 m0, s{sT1}, {L_TST-3*4096+1024*q}\ns_nop 0")
        a(f"buffer_load_dwordx4 v{SIDE+4+q}, {sr(STMP,4)}, 0 offen {TFL} lds")
    a.label(ld)
def side_loads(a, stat=True, issue=True):
    ld, lst, lh, lj = a.uid("Lt"), a.uid("Lt"), a.uid("Lt"), a.uid("Lt")
    sU, sKp, sCh = sKX, sKW, sDELTA
    A0, A1, ST0, ST1 = SIDE, SIDE+1, SIDE+2, SIDE+3
    for q in range(4): a(f"v_mov_b32 v{SIDE+4+q}, 0")
    a(f"s_cmp_lt_u32 s{sW}, 3\ns_cbranch_scc1 {ld}\ns_cmp_ge_u32 s{sW}, 6\ns_cbranch_scc1 {lst}")
    a(f"""
    s_mul_i32 s{sU}, s2, 3
    s_add_u32 s{sU}, s{sU}, s{sW}
    s_sub_u32 s{sU}, s{sU}, 3
    s_min_u32 s{sU}, s{sU}, 739
    s_mul_i32 s{sKp}, s{sU}, 6554
    s_lshr_b32 s{sKp}, s{sKp}, 16
    s_mul_i32 s{sT0}, s{sKp}, 10
    s_sub_u32 s{sCh}, s{sU}, s{sT0}
    v_lshrrev_b32 v{T0}, 5, v{LANE}
    s_cmp_ge_u32 s{sKp}, 20
    s_cbranch_scc1 {lh}
    """)
    for e, (A, ST) in enumerate(((A0, ST0), (A1, ST1))):
        a(f"""
        s_lshl_b32 s{sT0}, s{sKp}, 2
        s_add_u32 s{sT0}, s{sT0}, {2*e}
        v_add_u32 v{T1}, s{sT0}, v{T0}
        v_mul_u32_u24 v{T2}, 205, v{T1}
        v_lshrrev_b32 v{T2}, 10, v{T2}
        v_mul_u32_u24 v{T3}, 5, v{T2}
        v_sub_u32 v{T1}, v{T1}, v{T3}
        v_mul_u32_u24 v{A}, 40, v{T2}
        v_lshrrev_b32 v{T2}, 1, v{T1}
        v_mul_u32_u24 v{T2}, 20, v{T2}
        v_and_b32 v{T3}, 1, v{T1}
        v_lshl_add_u32 v{T2}, v{T3}, 3, v{T2}
        v_cmp_eq_u32 vcc, 4, v{T1}
        v_mov_b32 v{ST}, 20
        s_nop 0
        v_cndmask_b32 v{T2}, v{T2}, 16, vcc
        v_cndmask_b32 v{ST}, 4, v{ST}, vcc
        v_add_u32 v{A}, v{A}, v{T2}
        """)
    a("s_waitcnt lgkmcnt(0)")
    srd(a, STMP, P_WO, 640*1280)
    a(f"s_branch {lj}")
    a.label(lh)
    a(f"""
    s_sub_u32 s{sT0}, s{sKp}, 20
    s_mul_i32 s{sT1}, s{sT0}, 86
    s_lshr_b32 s{sT1}, s{sT1}, 8
    s_mul_i32 s{sT1}, s{sT1}, 3
    s_sub_u32 s{sT1}, s{sT0}, s{sT1}
    s_lshl_b32 s{sT0}, s{sT0}, 5
    v_lshl_add_u32 v{A0}, v{T0}, 2, s{sT0}
    s_cmp_eq_u32 s{sT1}, 1
    s_cselect_b32 s{sT1}, 16, 8
    s_cselect_b32 s{sT2}, 8, 16
    v_add_u32 v{A1}, s{sT1}, v{A0}
    v_mov_b32 v{ST0}, s{sT2}
    v_mov_b32 v{ST1}, s{sT2}
    """)
    a("s_waitcnt lgkmcnt(0)")
    srd(a, STMP, P_W2, 1728*1280)
    a.label(lj)
    a(f"""
    v_bfe_u32 v{T1}, v{LANE}, 3, 2
    v_and_b32 v{T2}, 7, v{LANE}
    v_lshlrev_b32 v{T2}, 4, v{T2}
    s_lshl_b32 s{sT0}, s{sCh}, 7
    s_lshl_b32 s{sT1}, s{sW}, 12
    """)
    for q in range(4):
        A, ST = ((A0, ST0), (A1, ST1))[q & 1]
        a(f"v_add_u32 v{T3}, v{A}, v{T1}")
        if q >> 1: a(f"v_add_u32 v{T3}, v{T3}, v{ST}")
        a(f"v_mul_u32_u24 v{T3}, 1280, v{T3}\nv_add3_u32 v{SIDE+4+q}, v{T3}, v{T2}, s{sT0}")
    if issue: t_issue(a, False)
    a(f"s_mul_i32 s{sT2}, s{sKp}, 5\ns_lshl_b32 s{sT3}, s{sCh}, 2")
    for t in range(4):
        a(f"""
        s_add_u32 s{sT0}, s{sT3}, {t}
        s_mul_i32 s{sT1}, s{sT0}, 52
        s_lshr_b32 s{sT1}, s{sT1}, 8
        s_mul_i32 s{sT1}, s{sT1}, 365
        s_add_u32 s{sT0}, s{sT0}, s{sT1}
        s_add_u32 s{sT0}, s{sT0}, s{sT2}
        s_lshl_b32 s{sTS[t]}, s{sT0}, 10
        """)
    a(f"s_branch {ld}")
    a.label(lst)
    if stat: stat_loads(a, False)
    a.label(ld)
def stat_loads(a, guard=True):
    ld = a.uid("Lsl")
    if guard: a(f"s_cmp_lt_u32 s{sW}, 6\ns_cbranch_scc1 {ld}")
    stat_row(a)
    a(f"s_mul_i32 s{sT0}, s{sT0}, 1280\nv_mul_u32_u24 v{T0}, 1280, v{G}\nv_lshl_add_u32 v{T0}, v{R}, 4, v{T0}")
    for i in range(5): a(f"buffer_load_dwordx4 {vr(SIDE+4*i,4)}, v{T0}, {sr(SX,4)}, s{sT0} offen offset:{256*i}")
    a.label(ld)
for u in range(1001): assert (u*6554)>>16 == u//10
for u in range(80): assert (u*205)>>10 == u//5
for u in range(54): assert (u*86)>>8 == u//3
for N in range(40): assert (N*52)>>8 == N//5

def t_work(a):
    lab = a.uid("Ltw")
    a(f"s_sub_u32 s{sT1}, s{sW}, 3\ns_cmp_gt_u32 s{sT1}, 2\ns_cbranch_scc1 {lab}")
    t_part(a)
    a.label(lab)
def s_work(a, vPS):
    lab = a.uid("Ltw")
    a(f"s_cmp_lt_u32 s{sW}, 6\ns_cbranch_scc1 {lab}")
    s_part(a, SIDE+20)
    a(f"v_mov_b32 v{SIDE}, v{SIDE+20}\nv_mov_b32 v{SIDE+1}, v{SIDE+21}\nv_mov_b32 v{SIDE+2}, s{sNON}\nv_mov_b32 v{SIDE+3}, s{sNON+1}")
    stat_row(a)
    a(f"""
    s_lshl_b32 s{sT0}, s{sT0}, 4
    s_add_u32 s{sT0}, s{sT0}, {STO}
    v_lshlrev_b32 v{T0}, 4, v{G}
    s_mov_b32 exec_lo, 0x00010001
    s_mov_b32 exec_hi, 0x00010001
    buffer_store_dwordx4 {vr(SIDE,4)}, v{T0}, {sr(SFL,4)}, s{sT0} offen sc1
    s_mov_b64 exec, -1
    """)
    a.label(lab)
def t_part(a):
    tmp = SIDE
    a(f"""
    v_lshrrev_b32 v{T0}, 2, v{LANE}
    v_lshlrev_b32 v{T0}, 7, v{T0}
    v_and_b32 v{T1}, 3, v{LANE}
    v_lshl_add_u32 v{T0}, v{T1}, 3, v{T0}
    s_lshl_b32 s{sT0}, s{sW}, 12
    s_add_u32 s{sT0}, s{sT0}, {L_TST-3*4096}
    v_add_u32 v{T0}, s{sT0}, v{T0}
    """)
    for t in range(4):
        a(f"ds_read_b64_tr_b16 {vr(tmp+4*t,2)}, v{T0} offset:{32*t}")
        a(f"ds_read_b64_tr_b16 {vr(tmp+4*t+2,2)}, v{T0} offset:{32*t+2048}")
    for t in range(4):
        a(f"s_waitcnt lgkmcnt({6-2*t})\nbuffer_store_dwordx4 {vr(tmp+4*t,4)}, v{VL}, {sr(SFL,4)}, s{sTS[t]} offen sc1")
def s_part(a, vPS):
    tmp = SIDE
    s, q = vPS, vPS+1
    a(f"v_mov_b32 v{s}, 0\nv_mov_b32 v{q}, 0\nv_mov_b32 v{T0}, 0x3f803f80")
    for j in range(20):
        a(f"v_dot2c_f32_bf16 v{s}, v{tmp+j}, v{T0}\nv_dot2c_f32_bf16 v{q}, v{tmp+j}, v{tmp+j}")
    a("s_nop 2")
    for sh in (8, 4, 2, 1):
        a(f"v_add_f32_dpp v{s}, v{s}, v{s} row_ror:{sh} row_mask:0xf bank_mask:0xf")
        a(f"v_add_f32_dpp v{q}, v{q}, v{q} row_ror:{sh} row_mask:0xf bank_mask:0xf")
        a("s_nop 0")
    a(f"""
    v_mul_f32 v{s}, {f32(1/640)}, v{s}
    v_mul_f32 v{q}, {f32(1/640)}, v{q}
    v_fma_f32 v{q}, -v{s}, v{s}, v{q}
    v_max_f32 v{q}, 0, v{q}
    v_cvt_pk_bf16_f32 v{T0}, v{s}, v{q}
    v_lshlrev_b32 v{T1}, 16, v{T0}
    v_and_b32 v{q}, 0xffff0000, v{T0}
    v_add_f32 v{q}, {f32(1e-5)}, v{q}
    v_cvt_pk_bf16_f32 v{q}, v{q}, v{q}
    v_and_b32 v{q}, 0xffff0000, v{q}
    v_sqrt_f32 v{q}, v{q}
    s_nop 0
    v_cvt_pk_bf16_f32 v{q}, v{q}, v{q}
    v_and_b32 v{q}, 0xffff0000, v{q}
    v_rcp_f32 v{s}, v{q}
    s_nop 0
    v_mul_f32 v{q}, v{T1}, v{s}
    v_sub_f32 v{q}, 0, v{q}
    """)

def p2_setup(a, VTF):
    a(f"""
    s_and_b32 s{sT0}, s2, 7
    s_lshl_b32 s{sR2}, s{sT0}, 2
    s_bfe_u32 s{sT1}, s2, 0x20003
    s_add_u32 s{sR2}, s{sR2}, s{sT1}
    s_lshr_b32 s{sC2}, s2, 5
    s_cmp_lt_u32 s{sW}, 2
    s_cselect_b32 s{sN2}, 10, 9
    s_lshl_b32 s{sT1}, s{sT1}, 1
    s_add_u32 s{sT1}, s{sT1}, s{sC2}
    s_cmp_ge_u32 s{sT1}, s{sN2}
    s_cselect_b32 s{sT2}, s{sN2}, 0
    s_sub_u32 s{sK}, s{sT1}, s{sT2}
    """)
    for t in range(1, 10):
        a(f"s_add_u32 s{sK+t}, s{sK+t-1}, 1\ns_cmp_eq_u32 s{sK+t}, s{sN2}\ns_cselect_b32 s{sK+t}, 0, s{sK+t}")
    a(f"s_cmp_lt_u32 s{sW}, 2\ns_cselect_b32 s{sK+9}, s{sK+9}, 0x10000")
    a(f"""
    s_mul_i32 s{sT3}, s{sW}, 9
    s_min_u32 s{sT2}, s{sW}, 2
    s_add_u32 s{sT3}, s{sT3}, s{sT2}
    v_lshrrev_b32 v{T0}, 1, v{LANE}
    s_sub_u32 s{sT2}, s{sN2}, 1
    v_min_u32 v{T0}, s{sT2}, v{T0}
    v_add_u32 v{T0}, s{sT3}, v{T0}
    v_mul_u32_u24 v{T0}, 10, v{T0}
    s_mul_i32 s{sT2}, s{sC2}, 5
    s_lshr_b32 s{sT2}, s{sT2}, 2
    v_and_b32 v{T1}, 1, v{LANE}
    v_add3_u32 v{T0}, v{T0}, v{T1}, s{sT2}
    v_mul_u32_u24 v{T0}, 21846, v{T0}
    v_lshrrev_b32 v{T0}, 16, v{T0}
    v_lshlrev_b32 v{T0}, 3, v{T0}
    v_add_u32 v{VTF}, {TFO}, v{T0}
    s_mul_i32 s{sT2}, s{sC2}, 74
    s_add_u32 s{sT2}, s{sT2}, s{sT3}
    s_mul_i32 s{sT2}, s{sT2}, 5120
    s_add_u32 s{sT2}, s{sT2}, {WT_OFF}
    s_add_u32 s{SWT}, s{P_WS}, s{sT2}
    s_addc_u32 s{SWT+1}, s{P_WS+1}, 0
    s_mul_i32 s{SWT+2}, s{sN2}, 5120
    s_mov_b32 s{SWT+3}, 0x00020000
    s_mul_i32 s{sT2}, s{sR2}, 74
    s_add_u32 s{sT2}, s{sT2}, s{sT3}
    s_lshl_b32 s{sT2}, s{sT2}, 12
    s_add_u32 s{SPF}, s{P_WS}, s{sT2}
    s_addc_u32 s{SPF+1}, s{P_WS+1}, 0
    s_lshl_b32 s{SPF+2}, s{sN2}, 12
    s_mov_b32 s{SPF+3}, 0x00020000
    """)
    ly, lyd = a.uid("Ly"), a.uid("Ly")
    a(f"""
    s_cmp_ge_u32 s{sW}, 2
    s_cbranch_scc1 {ly}
    s_lshr_b32 s{sT0}, s{sR2}, 1
    s_lshl_b32 s{sT0}, s{sT0}, 7
    s_lshl_b32 s{sT1}, s{sW}, 5
    s_add_u32 s{sT0}, s{sT0}, s{sT1}
    s_add_u32 s{sT0}, s{sT0}, {FLB+16*128}
    v_and_b32 v{T0}, 3, v{LANE}
    v_lshl_add_u32 v{VF}, v{T0}, 3, s{sT0}
    s_branch {lyd}
    """)
    a.label(ly)
    a(f"""
    s_lshl_b32 s{sT0}, s{sR2}, 6
    s_add_u32 s{sT1}, s{sT0}, 63
    s_mul_i32 s{sT0}, s{sT0}, 27595
    s_lshr_b32 s{sT0}, s{sT0}, 22
    s_mul_i32 s{sT1}, s{sT1}, 27595
    s_lshr_b32 s{sT1}, s{sT1}, 22
    s_sub_u32 s{sT1}, s{sT1}, s{sT0}
    s_lshl_b32 s{sT1}, s{sT1}, 7
    s_lshl_b32 s{sT0}, s{sT0}, 7
    s_sub_u32 s{sT2}, s{sW}, 2
    s_mul_i32 s{sT2}, s{sT2}, 3
    s_lshr_b32 s{sT2}, s{sT2}, 1
    s_lshl_b32 s{sT2}, s{sT2}, 3
    s_add_u32 s{sT0}, s{sT0}, s{sT2}
    s_add_u32 s{sT0}, s{sT0}, {FLB}
    v_and_b32 v{T0}, 1, v{LANE}
    v_lshlrev_b32 v{T0}, 3, v{T0}
    v_bfe_u32 v{T1}, v{LANE}, 1, 1
    v_mul_u32_u24 v{T1}, s{sT1}, v{T1}
    v_add3_u32 v{VF}, v{T0}, v{T1}, s{sT0}
    """)
    a.label(lyd)
    a(f"""
    s_lshl_b32 s{sT0}, s{sR2}, 6
    v_add_u32 v{T0}, s{sT0}, v{R}
    v_mul_u32_u24 v{T0}, 1280, v{T0}
    v_lshl_add_u32 v{T0}, v{G}, 3, v{T0}
    s_mul_i32 s{sT0}, s{sC2}, 160
    v_add_u32 v{VXO}, s{sT0}, v{T0}
    """)
for u in range(740): assert (u*21846)>>16 == u//3
for x in range(2048): assert (x*27595)>>22 == x//152

class Inter:
    def __init__(s, a, groups, every): s.a, s.g, s.e, s.n = a, list(groups), every, 0
    def __call__(s, txt):
        for l in lines(txt):
            s.a(l); s.n += 1
            if s.n % s.e == 0 and s.g:
                for x in s.g.pop(0): s.a(x)
    def flush(s, keep=0):
        while len(s.g) > keep:
            for x in s.g.pop(0): s.a(x)

def gen(stamps=False, PF=4, pff="", qevery=14, fevery=11, exp="", NB=4, dmask=0b10101, tfl="nt", nearly=10, TLB=0):
    global EXP, PFF, DN, DMASK, DPRE, TFL
    EXP = set(exp.split()); PFF = pff; TFL = tfl; DMASK = dmask
    a = Asm(); S = St(a, stamps)
    name = NAME + "_kernel"
    def emit(groups):
        for g in groups:
            for l in g: a(l)
    if stamps: a("s_memrealtime s[96:97]\ns_memtime s[94:95]")
    a(f"s_cmp_ge_u32 s2, 256\ns_cbranch_scc1 Lend")
    if 'badmap' in EXP: a("s_and_b32 s3, s2, 31\ns_lshl_b32 s3, s3, 3\ns_lshr_b32 s2, s2, 5\ns_or_b32 s2, s2, s3")
    a(f"s_load_dwordx16 s[40:55], s[0:1], 0\ns_load_dwordx4 s[56:59], s[0:1], 64\ns_load_dwordx2 s[60:61], s[0:1], 80")
    a(f"""
    v_lshrrev_b32 v{T0}, 6, v0
    v_and_b32 v{LANE}, 63, v0
    v_readfirstlane_b32 s{sW}, v{T0}
    v_lshrrev_b32 v{G}, 4, v{LANE}
    v_and_b32 v{R}, 15, v{LANE}
    v_lshlrev_b32 v{VL}, 4, v{LANE}
    s_lshl_b32 s{sW1K}, s{sW}, 10
    s_mov_b32 s{sI}, 0
    v_lshrrev_b32 v{T0}, 3, v{LANE}
    v_mul_u32_u24 v{T0}, 1280, v{T0}
    s_lshl_b32 s{sT0}, s{sW}, 2
    v_add_u32 v{T1}, s{sT0}, v{G}
    v_xor_b32 v{T1}, v{T1}, v{LANE}
    v_and_b32 v{T1}, 7, v{T1}
    v_lshl_add_u32 v11, v{T1}, 4, v{T0}
    s_and_b32 s{sT0}, s{sW}, 1
    s_lshl_b32 s{sT0}, s{sT0}, 1
    s_and_b32 s{sT1}, s{sW}, 2
    s_lshl_b32 s{sT1}, s{sT1}, 2
    s_add_u32 s{sT0}, s{sT0}, s{sT1}
    s_and_b32 s{sT1}, s{sW}, 4
    s_add_u32 s{sWO}, s{sT0}, s{sT1}
    """)
    def pf_addr(nrow_cu, kper, nst, cidx_s, VD):
        pass
    lx, lq, ld, lw = a.uid("Lpf"), a.uid("Lpf"), a.uid("Lpf"), a.uid("Lpf")
    a(f"""
    s_bfe_u32 s{sT2}, s2, 0x40003
    s_lshr_b32 s{sT3}, s2, 7
    s_and_b32 s{sT0}, s2, 1
    s_bfe_u32 s{sT1}, s2, 0x20001
    s_mov_b32 s{sPG}, 0
    v_mov_b32 v254, 0
    s_cmp_ge_u32 s{sW}, 3
    s_cbranch_scc1 {lw}
    s_cmp_ge_u32 s{sW}, 1
    s_cbranch_scc1 {lq}
    s_lshl_b32 s{sT0}, s{sT0}, 10
    s_lshl_b32 s{sT1}, s{sT1}, 8
    s_lshl_b32 s{sT2}, s{sT2}, 4
    s_add_u32 s{sT0}, s{sT0}, s{sT1}
    s_add_u32 s{sT0}, s{sT0}, s{sT2}
    v_add_u32 v{T0}, s{sT0}, v{R}
    v_mul_u32_u24 v{T0}, 1280, v{T0}
    v_and_b32 v{T1}, 1, v{G}
    v_lshl_add_u32 v254, v{T1}, 7, v{T0}
    s_lshl_b32 s{sT0}, s{sT3}, 8
    s_mov_b32 s{sPFS}, 256
    s_mov_b32 s{sPG}, 1280
    s_waitcnt lgkmcnt(0)
    s_mov_b32 s{sPFO}, 512
    """)
    srd(a, STMP, P_X, XB)
    a(f"buffer_load_dword v255, v254, {sr(STMP,4)}, s{sT0} offen {pff}")
    a(f"s_branch {ld}")
    a.label(lq)
    a(f"""
    s_cmp_eq_u32 s{sW}, 2
    s_cbranch_scc1 {lx}
    v_min_u32 v{T0}, 35, v{LANE}
    v_mul_u32_u24 v{T1}, 57, v{T0}
    v_lshrrev_b32 v{T1}, 9, v{T1}
    v_mul_u32_u24 v{T3}, 9, v{T1}
    v_sub_u32 v{T0}, v{T0}, v{T3}
    s_lshl_b32 s{sT2}, s{sT2}, 2
    v_add_u32 v{T1}, s{sT2}, v{T1}
    v_mul_u32_u24 v{T1}, 3840, v{T1}
    v_mul_u32_u24 v{T3}, 43, v{T0}
    v_lshrrev_b32 v{T3}, 7, v{T3}
    v_mul_u32_u24 v{T3}, 896, v{T3}
    v_lshl_add_u32 v{T0}, v{T0}, 7, v{T3}
    s_mul_i32 s{sT1}, s{sT1}, 320
    s_and_b32 s{sT1}, s{sT1}, 0xffffff80
    v_add3_u32 v254, v{T0}, v{T1}, s{sT1}
    s_mul_i32 s{sT0}, s{sT3}, {128*3840}
    s_add_u32 s{sT1}, s{sT0}, {64*3840}
    s_mov_b32 s{sPFS}, {64*3840}
    s_mov_b32 s{sPG}, {640*3840}
    s_waitcnt lgkmcnt(0)
    s_mov_b32 s{sPFO}, {256*3840}
    """)
    srd(a, STMP, P_WQ, 640*3840)
    a(f"buffer_load_dword v255, v254, {sr(STMP,4)}, s{sT0} offen {pff}")
    a(f"buffer_load_dword v255, v254, {sr(STMP,4)}, s{sT1} offen {pff}")
    a(f"s_branch {ld}")
    a.label(lx)
    a(f"""
    s_and_b32 s{sT0}, s2, 127
    s_mul_i32 s{sT0}, s{sT0}, 3456
    v_min_u32 v{T0}, 26, v{LANE}
    v_lshl_add_u32 v254, v{T0}, 7, s{sT0}
    s_mul_i32 s{sT0}, s{sT3}, {128*3456}
    s_mov_b32 s{sPFS}, {128*3456}
    s_mov_b32 s{sPG}, {640*3456}
    s_waitcnt lgkmcnt(0)
    s_mov_b32 s{sPFO}, {256*3456}
    """)
    srd(a, STMP, P_W1, 640*3456)
    a(f"buffer_load_dword v255, v254, {sr(STMP,4)}, s{sT0} offen {pff}")
    a(f"s_branch {ld}")
    a.label(lw)
    ln = a.uid("Ln")
    a(f"s_cmp_lg_u32 s2, 0\ns_cbranch_scc1 {ln}\ns_cmp_lg_u32 s{sW}, 7\ns_cbranch_scc1 {ln}\ns_waitcnt lgkmcnt(0)")
    srd(a, SDBG, P_DBG, 256)
    a(f"""
    s_memrealtime {sr(sNON,2)}
    s_waitcnt lgkmcnt(0)
    s_or_b32 s{sNON}, s{sNON}, 1
    v_mov_b32 v{T0}, s{sNON}
    v_mov_b32 v{T1}, s{sNON+1}
    v_mov_b32 v{T2}, 0
    s_mov_b64 exec, 1
    buffer_store_dwordx2 {vr(T0,2)}, v{T2}, {sr(SDBG,4)}, 0 offen sc1
    s_mov_b64 exec, -1
    """)
    a.label(ln)
    a("s_waitcnt lgkmcnt(0)")
    srd(a, STMP, P_X, XB)
    a(f"s_mov_b32 s{sPFS}, 0\ns_mov_b32 s{sPFO}, 0")
    if 'tup' in EXP: side_loads(a, stat=False)
    a.label(ld)
    S.start()
    srd(a, SX, P_X, XB)
    a(f"""
    s_and_b32 s{sT0}, s2, 1
    s_bfe_u32 s{sT1}, s2, 0x20001
    s_lshr_b32 s{sT2}, s2, 3
    s_cmp_ge_u32 s{sT2}, 16
    s_cbranch_scc1 Lffn
    """)
    def late_srds():
        srd(a, SHO, P_WS, HO_SZ); srd(a, SFL, P_WS, FL_SZ, WT_OFF); srd(a, SDBG, P_DBG, 256)
    def set_stage(c, st): emit([stage_set(c, st)])
    def pretouch(flagoff_s):
        lp = a.uid("Lpt")
        a(f"s_cmp_lg_u32 s{sW}, 7\ns_cbranch_scc1 {lp}")
        stat_row(a)
        a(f"""
        s_lshl_b32 s{sT0}, s{sT0}, 4
        s_add_u32 s{sT0}, s{sT0}, {STO}
        v_mov_b32 v{T0}, s{sT0}
        s_lshl_b32 s{sT0}, s2, 3
        s_add_u32 s{sT0}, s{sT0}, {TFO}
        v_writelane_b32 v{T0}, s{sT0}, 1
        """)
        if flagoff_s is not None:
            a(f"s_add_u32 s{sT0}, s{flagoff_s}, {FLB}\nv_writelane_b32 v{T0}, s{sT0}, 2")
        a(f"buffer_load_dword v255, v{T0}, {sr(SFL,4)}, 0 offen sc1")
        if TLB:
            a(f"v_lshlrev_b32 v{T0}, {TLB}, v{LANE}")
            a(f"buffer_load_dword v255, v{T0}, {sr(SHO,4)}, 0 offen sc1")
            a(f"buffer_load_dword v255, v{T0}, {sr(SFL,4)}, 0 offen sc1")
            srd(a, SPF, P_OUT, XB)
            a(f"buffer_load_dword v255, v{T0}, {sr(SPF,4)}, 0 offen sc1")
            srd(a, SPF, P_B2, 1280)
            a(f"buffer_load_dword v255, v{T0}, {sr(SPF,4)}, 0 offen")
        a.label(lp)
    def pre_loop(c, setup):
        late_srds()
        if 'nopt' not in EXP: pretouch(sHF)
        setup()
        if 'tup' not in EXP: side_loads(a, stat=False, issue=False)
        p2_setup(a, c.VTF)
        S(1)
        a("s_barrier")
        set_stage(c, 0); emit(dmaA(c, a) + dmaB(c, a))
        if 'tup' in EXP:
            a('s_waitcnt vmcnt(6)'); t_work(a)
        a(f"v_mov_b32 v{T0}, 0")
        a(f"buffer_load_dwordx2 {vr(c.VN,2)}, v{T0}, {sr(SDBG,4)}, 0 offen sc1")
        a("s_barrier")
        set_stage(c, 1); emit(dmaA(c, a))
        a(f"s_waitcnt vmcnt(4)")
        S(2)
        a("s_barrier")
        S(3)
        emit(reads(c, 0, 0))
        if 'tup' not in EXP: t_issue(a)
        a(f"s_mov_b32 s{sSLOT}, {c.stg}")
    def alloc_common(c):
        al = Alloc(11)
        c.VX = al(); c.VW = al()
        c.xb = [al(), al()]; c.hb = [al(), al()]; c.wb = [al() for _ in range(c.nF)]
        c.VTF = al(); c.VRA = al(); c.VPS = al(2, 4); c.VN = al(2, 2); c.REC = al(20, 4)
        assert c.VPS == 24
        return al
    def w_voff(c, P):
        a(f"""
        v_cmp_le_u32 vcc, {P}, v{LANE}
        v_mov_b32 v{T1}, {c.wrowb}
        v_subrev_u32 v{T0}, {P}, v{LANE}
        v_cndmask_b32 v{T0}, v{LANE}, v{T0}, vcc
        v_cndmask_b32 v{T1}, 0, v{T1}, vcc
        s_mov_b32 s{sWM}, -1
        s_mov_b32 s{sWM+1}, {(1 << (2*P-32)) - 1}
        s_mul_i32 s{sWB}, s{sW}, {2*c.wrow}
        s_add_u32 s{sWB}, s{sWB}, {c.xsz}
        s_mul_i32 s{sWO}, s{sWO}, {c.wrowb}
        """)
    def publish(younger):
        lp = a.uid("Lp")
        a(f"""
        s_waitcnt vmcnt({younger})
        s_barrier
        s_cmp_lg_u32 s{sW}, 0
        s_cbranch_scc1 {lp}
        v_mov_b32 v{T0}, s{sNON}
        v_mov_b32 v{T1}, s{sNON+1}
        v_mov_b32 v{T2}, {FLB}
        s_mov_b64 exec, 1
        buffer_store_dwordx2 {vr(T0,2)}, v{T2}, {sr(SFL,4)}, s{sHF} offen sc1
        s_mov_b64 exec, -1
        """)
        a.label(lp)
        S(7)
    c = Cfg()
    c.nM, c.nF, c.nh, c.wrow, c.wrowb, c.stg, c.xsz, c.nxm, c.duty = 4, 4, 2, 480, 3840, 49152, 18432, 2, False
    al = alloc_common(c)
    c.acc = [[al(4,4) for i in range(4)] for f in range(4)]
    c.acch = [al(4,4) for f in range(2)]
    lowtop = al.n
    al = Alloc(WREG)
    c.X = [[al(4,4) for i in range(4)] for s in range(2)]
    c.XH = [al(4,4) for s in range(2)]
    c.W = [[al(4,4) for f in range(4)] for s in range(2)]
    assert al.n == 208
    c.early = (list(range(20, 30)) + [18, 19] + list(range(30, 38)))[:nearly]
    a(f"""
    s_lshl_b32 s{sRB}, s{sT0}, 3
    s_and_b32 s{sT3}, s{sT2}, 7
    s_add_u32 s{sRB}, s{sRB}, s{sT3}
    s_lshl_b32 s{sCB}, s{sT1}, 1
    s_lshr_b32 s{sT3}, s{sT2}, 3
    s_add_u32 s{sCB}, s{sCB}, s{sT3}
    s_lshl_b32 s{sT3}, s{sRB}, 7
    s_lshl_b32 s{sT0}, s{sW}, 3
    s_add_u32 s{sT3}, s{sT3}, s{sT0}
    s_sub_u32 s{sT3}, s{sT3}, 16
    s_max_i32 s{sT0}, s{sT3}, 0
    s_mul_i32 s{sXO}, s{sT0}, 1280
    s_add_u32 s{sT3}, s{sT3}, 64
    s_mul_i32 s{sXO+1}, s{sT3}, 1280
    s_add_u32 s{sXO+2}, s{sXO+1}, 81920
    """)
    w_voff(c, 30)
    a(f"""
    v_mul_u32_u24 v{T2}, 26, v{T0}
    v_lshrrev_b32 v{T2}, 8, v{T2}
    v_mul_u32_u24 v{T2}, 1120, v{T2}
    v_lshl_add_u32 v{T0}, v{T0}, 4, v{T2}
    v_add_u32 v{c.VW}, v{T0}, v{T1}
    s_mul_i32 s{sT0}, s{sCB}, 160
    s_add_u32 s{sWO}, s{sWO}, s{sT0}
    """)
    srd(a, SW, P_WQ, 640*3840)
    a(f"s_add_u32 s{sT0}, s{sRB}, 16\ns_lshl_b32 s{sT0}, s{sT0}, 7\ns_lshl_b32 s{sT1}, s{sCB}, 3\ns_add_u32 s{sHF}, s{sT0}, s{sT1}")
    def q_setup():
        a(f"s_lshr_b32 s{sMH}, s{sW}, 2\ns_and_b32 s{sT0}, s{sW}, 3\ns_lshl_b32 s{sT0}, s{sT0}, 2\ns_lshl_b32 s{sT1}, s{sMH}, 1")
        for f in range(4):
            a(f"s_xor_b32 s{sT2}, s{sT1}, {f}\ns_add_u32 s{sT2}, s{sT2}, s{sT0}\ns_min_u32 s{sNT+f}, s{sT2}, 14")
        a(f"""
        s_mov_b32 s{sMSK}, 0xfffefffe
        s_mov_b32 s{sMSK+1}, 0xfffefffe
        v_lshrrev_b32 v{T0}, 1, v{R}
        v_xor_b32 v{T0}, v{T0}, v{G}
        v_lshlrev_b32 v{T0}, 4, v{T0}
        v_lshl_add_u32 v{T0}, v{R}, 7, v{T0}
        v_add_u32 v{c.hb[0]}, {c.stg}, v{T0}
        v_xor_b32 v{c.hb[1]}, 64, v{c.hb[0]}
        s_lshl_b32 s{sT0}, s{sMH}, 13
        s_add_u32 s{sT0}, s{sT0}, 2048
        v_add_u32 v{c.xb[0]}, s{sT0}, v{c.hb[0]}
        v_add_u32 v{c.xb[1]}, s{sT0}, v{c.hb[1]}
        """)
        rho_local(a, T0, T1)
        a(f"v_mul_u32_u24 v{T0}, 480, v{T0}\nv_and_b32 v{T1}, 3, v{LANE}\nv_lshl_add_u32 v{T0}, v{T1}, 3, v{T0}")
        for f in range(4):
            a(f"s_lshl_b32 s{sT0}, s{sNT+f}, 5\ns_add_u32 s{sT0}, s{sT0}, {c.xsz+c.stg}\nv_add_u32 v{c.wb[f]}, s{sT0}, v{T0}")
        a(f"v_lshlrev_b32 v{c.VRA}, 4, v{R}")
        a(f"""
        s_lshl_b32 s{sT0}, s{sRB}, 7
        s_lshl_b32 s{sT1}, s{sMH}, 6
        s_add_u32 s{sT1}, s{sT1}, s{sT0}
        s_lshl_b32 s{sT1}, s{sT1}, 4
        s_add_u32 s{sRM}, s{sT1}, {STO}
        s_sub_u32 s{sT0}, s{sT0}, 16
        s_max_i32 s{sT0}, s{sT0}, 0
        s_lshl_b32 s{sT0}, s{sT0}, 4
        s_add_u32 s{sRH}, s{sT0}, {STO}
        """)
        for s in range(2):
            for r in range(4): a(f"v_mov_b32 v{c.XH[s]+r}, 0x3f803f80")
    pre_loop(c, q_setup)
    rec = [[f"buffer_load_dwordx4 {vr(c.REC+4*i,4)}, v{c.VRA}, {sr(SFL,4)}, s{sRM} offen offset:{256*i} sc1"] for i in range(4)]
    rec.append([f"buffer_load_dwordx4 {vr(c.REC+16,4)}, v{c.VRA}, {sr(SFL,4)}, s{sRH} offen sc1"])
    CSR = lowtop; CA = 11; WA = 15
    assert CSR + 16 <= WREG and WA + 6 <= c.VTF
    c.tailx = [lines(f"""
        s_lshl_b32 s{sT3}, s{sMH}, 6
        s_add_u32 s{sT3}, s{sT3}, 16
        s_mul_i32 s{sT3}, s{sT3}, {RS}
        v_mul_u32_u24 v{T2}, {RS}, v{R}
        v_lshlrev_b32 v{T3}, 4, v{G}""")]
    for f in range(4):
        c.tailx.append(lines(f"""
        s_lshl_b32 s{sT0}, s{sNT+f}, 6
        s_add_u32 s{sT0}, s{sT0}, {L_CS}
        v_add_u32 v{CA+f}, s{sT0}, v{T3}
        s_mul_i32 s{sT0}, s{sNT+f}, 52
        s_lshr_b32 s{sT0}, s{sT0}, 8
        s_mul_i32 s{sT2}, s{sT0}, 5
        s_sub_u32 s{sT2}, s{sNT+f}, s{sT2}
        s_lshl_b32 s{sT2}, s{sT2}, 2
        s_mul_i32 s{sT0}, s{sT0}, 192
        v_add_u32 v{T0}, s{sT2}, v{G}"""))
        c.tailx.append(lines(f"""
        v_mul_u32_u24 v{T1}, 52, v{T0}
        v_lshrrev_b32 v{T1}, 8, v{T1}
        v_add_u32 v{T0}, v{T0}, v{T1}"""))
        c.tailx.append(lines(f"v_lshl_add_u32 v{T0}, v{T0}, 3, v{T2}") + ([f"v_add_u32 v{WA+4+f}, s{sT0}, v{T0}"] if f < 2 else []) +
                       lines(f"s_add_u32 s{sT0}, s{sT0}, s{sT3}\nv_add_u32 v{WA+f}, s{sT0}, v{T0}"))
    main_loop(a, c, S, "q", rec)
    a(f"s_not_b64 exec, {sr(sMSK,2)}")
    for f in range(2): a(f"ds_write_b128 v{CA+f}, {vr(c.acch[f],4)}")
    a("s_mov_b64 exec, -1")
    a(f"s_waitcnt vmcnt({c.yrec})")
    poll(a, sum(rec, []), [c.REC+4*i+2 for i in range(5)], True)
    S(55)
    a("s_waitcnt lgkmcnt(0)\ns_barrier")
    S(56)
    for f in range(4): a(f"ds_read_b128 {vr(CSR+4*f,4)}, v{CA+f}")
    rest = [p for p in list(range(30, 38)) + list(range(30)) if p not in c.early]
    I = Inter(a, [wfrag(p) for p in rest], qevery)
    TP = c.VPS
    for f in range(4):
        I(f"s_waitcnt lgkmcnt({3-f if f == 0 else 15})" if f == 0 else "s_nop 0")
        if f == 1: I("s_waitcnt lgkmcnt(5)")
        tl = [(c.acc[f][i], WA+f, i*16*RS, c.REC+4*i) for i in range(4)]
        if f < 2: tl.append((c.acch[f], WA+4+f, 0, c.REC+16))
        for (ac, ad, off, st) in tl:
            I(f"""
            v_pk_mul_f32 {vr(TP,2)}, {vr(CSR+4*f,2)}, {vr(st,2)} op_sel:[0,1] op_sel_hi:[1,1]
            v_pk_mul_f32 {vr(TP+2,2)}, {vr(CSR+4*f+2,2)}, {vr(st,2)} op_sel:[0,1] op_sel_hi:[1,1]
            v_pk_fma_f32 {vr(ac,2)}, {vr(ac,2)}, {vr(st,2)}, {vr(TP,2)} op_sel:[0,0,0] op_sel_hi:[1,0,1]
            v_pk_fma_f32 {vr(ac+2,2)}, {vr(ac+2,2)}, {vr(st,2)}, {vr(TP+2,2)} op_sel:[0,0,0] op_sel_hi:[1,0,1]
            v_cvt_pk_bf16_f32 v{ac}, v{ac}, v{ac+1}
            v_cvt_pk_bf16_f32 v{ac+1}, v{ac+2}, v{ac+3}
            ds_write_b64 v{ad}, {vr(ac,2)} offset:{off}
            """)
    S(57)
    al = Alloc(11)
    AB = al(); OV = al(); OV1 = al(); L31 = al()
    MX = al(); SM_ = al()
    Q = al(12, 2); KB = [al(10, 2) for _ in range(5)]
    L = al(8, 2); PL = al(8); PH = al(8); O = al(20, 2); TPa = al(4)
    assert al.n <= WREG, al.n
    I(f"""
    s_and_b32 s{sT0}, s{sW}, 1
    s_lshr_b32 s{sT3}, s{sW}, 1
    s_lshl_b32 s{sT2}, s{sT3}, 5
    s_add_u32 s{sT2}, s{sT2}, 2
    v_and_b32 v{L31}, 31, v{LANE}
    v_add_u32 v{T0}, s{sT2}, v{L31}
    v_mul_u32_u24 v{T0}, {RS}, v{T0}
    v_lshrrev_b32 v{T1}, 5, v{LANE}
    v_mul_u32_u24 v{T2}, 48, v{T1}
    s_mul_i32 s{sT2}, s{sT0}, 96
    v_add3_u32 v{AB}, v{T0}, v{T2}, s{sT2}
    s_lshl_b32 s{sT2}, s{sCB}, 1
    s_add_u32 s{sT2}, s{sT2}, s{sT0}
    s_mul_i32 s{sT2}, s{sT2}, 5
    v_lshl_add_u32 v{T1}, v{T1}, 1, s{sT2}
    v_bfe_u32 v{T0}, v{LANE}, 4, 1
    v_lshlrev_b32 v{T0}, 10, v{T0}
    v_lshl_add_u32 v{T0}, v{R}, 4, v{T0}
    v_lshrrev_b32 v{T2}, 2, v{T1}
    v_lshl_add_u32 v{T2}, v{T2}, 12, v{T0}
    v_and_b32 v{T3}, 3, v{T1}
    v_lshl_add_u32 v{OV}, v{T3}, 8, v{T2}
    v_add_u32 v{T1}, 1, v{T1}
    v_lshrrev_b32 v{T2}, 2, v{T1}
    v_lshl_add_u32 v{T2}, v{T2}, 12, v{T0}
    v_and_b32 v{T3}, 3, v{T1}
    v_lshl_add_u32 v{OV1}, v{T3}, 8, v{T2}
    s_lshl_b32 s{sKX}, s{sRB}, 1
    s_add_u32 s{sKX}, s{sKX}, s{sMH}
    s_mul_i32 s{sKX}, s{sKX}, {74*4096}
    s_and_b32 s{sT1}, s{sT3}, 1
    s_lshl_b32 s{sT1}, s{sT1}, 11
    s_add_u32 s{sKX}, s{sKX}, s{sT1}
    s_add_u32 s{sT2}, s{sT2}, 4
    s_lshr_b32 s{sKW}, s{sT2}, 2
    s_lshl_b32 s{sKW}, s{sKW}, 12
    s_and_b32 s{sT2}, s{sT2}, 3
    s_lshl_b32 s{sT2}, s{sT2}, 8
    s_add_u32 s{sKW}, s{sKW}, s{sT2}
    s_add_u32 s{sKW}, s{sKW}, s{sKX}
    s_waitcnt lgkmcnt(0)
    s_barrier
    """)
    OV2 = T0
    S(5)
    def rd(dst, off):
        return f"ds_read_b128 {vr(dst,4)}, v{AB} offset:{off}\nds_read_b128 {vr(dst+4,4)}, v{AB} offset:{off+16}\nds_read_b64 {vr(dst+8,2)}, v{AB} offset:{off+32}"
    offs = [(14-2*w)*RS+192 for w in range(8)] + [(14-2*w)*RS+384 for w in range(8)]
    issued = 0
    def issue(n):
        nonlocal issued
        for _ in range(n):
            if issued < 16:
                I(rd(KB[issued % 5], offs[issued])); issued += 1
    def need(idx): I(f"s_waitcnt lgkmcnt({3*(issued-1-idx)})")
    I(rd(Q, 14*RS)); issue(4)
    for w in range(8): I(f"v_mov_b32 v{L+w}, 0")
    for d in range(20): I(f"v_mov_b32 v{O+d}, 0")
    for wp in range(4):
        w0, w1 = 2*wp, 2*wp+1
        need(w1)
        for d in range(10):
            for w in (w0, w1): I(f"v_dot2c_f32_bf16 v{L+w}, v{Q+d}, v{KB[w%5]+d}")
        issue(3 if wp == 0 else 2)
    lm = a.uid("Lm")
    a(f"s_or_b32 s{sT2}, s{sRB}, s{sT3}\ns_cmp_lg_u32 s{sT2}, 0\ns_cbranch_scc1 {lm}")
    a(f"v_mov_b32 v{TPa}, {f32(-1e9)}")
    for w in range(1, 8):
        a(f"v_cmp_le_u32 vcc, {2*w}, v{L31}\ns_nop 1\nv_cndmask_b32 v{L+w}, v{TPa}, v{L+w}, vcc")
    a.label(lm)
    cexp = (20 ** -0.5) * math.log2(math.e)
    I(f"""
    v_max3_f32 v{MX}, v{L}, v{L+1}, v{L+2}
    v_max3_f32 v{SM_}, v{L+3}, v{L+4}, v{L+5}
    v_max3_f32 v{MX}, v{MX}, v{L+6}, v{L+7}
    v_max_f32 v{MX}, v{MX}, v{SM_}
    """)
    for w in range(8): I(f"v_sub_f32 v{L+w}, v{L+w}, v{MX}")
    for w in range(8): I(f"v_mul_f32 v{L+w}, {f32(cexp)}, v{L+w}")
    for w in range(8): I(f"v_exp_f32 v{L+w}, v{L+w}")
    I(f"""
    v_add_f32 v{TPa}, v{L}, v{L+1}
    v_add_f32 v{TPa+1}, v{L+2}, v{L+3}
    v_add_f32 v{TPa+2}, v{L+4}, v{L+5}
    v_add_f32 v{TPa+3}, v{L+6}, v{L+7}
    v_add_f32 v{TPa}, v{TPa}, v{TPa+1}
    v_add_f32 v{TPa+2}, v{TPa+2}, v{TPa+3}
    v_add_f32 v{SM_}, v{TPa}, v{TPa+2}
    v_rcp_f32 v{SM_}, v{SM_}
    s_nop 0
    """)
    for w in range(8): I(f"v_mul_f32 v{L+w}, v{L+w}, v{SM_}")
    for w in range(8): I(f"v_cvt_pk_bf16_f32 v{PL+w}, v{L+w}, 0\nv_cvt_pk_bf16_f32 v{PH+w}, 0, v{L+w}")
    for w in range(8):
        need(8+w)
        for d in range(10):
            I(f"v_dot2c_f32_bf16 v{O+2*d}, v{KB[(8+w)%5]+d}, v{PL+w}\nv_dot2c_f32_bf16 v{O+2*d+1}, v{KB[(8+w)%5]+d}, v{PH+w}")
        issue(1)
    S(58)
    qleft = I.g; I.g = []
    for u in (0,1,2,3,8,9,4,5,6,7): a(f"v_cvt_pk_bf16_f32 v{Q+u}, v{O+2*u}, v{O+2*u+1}")
    a(f"""
    buffer_store_dwordx4 {vr(Q,4)}, v{OV}, {sr(SHO,4)}, s{sKX} offen sc1
    v_permlane32_swap_b32 v{Q+8}, v{Q+10}
    v_permlane32_swap_b32 v{Q+9}, v{Q+11}
    buffer_store_dwordx4 {vr(Q+4,4)}, v{OV1}, {sr(SHO,4)}, s{sKX} offen sc1
    s_mov_b32 exec_hi, 0
    buffer_store_dwordx4 {vr(Q+8,4)}, v{OV2}, {sr(SHO,4)}, s{sKW} offen sc1
    s_mov_b64 exec, -1
    """)
    S(6)
    a("s_barrier")
    qleft = qleft + [wfrag(p) for p in range(38, 45)]
    emit(qleft[:NB])
    publish(NB)
    emit(qleft[NB:])
    a("s_branch Lphase2")
    a.label("Lffn")
    c = Cfg()
    c.nM, c.nF, c.nh, c.wrow, c.wrowb, c.stg, c.xsz, c.nxm, c.duty = 5, 3, 0, 384, 3456, 49152, 20480, 4, True
    al = alloc_common(c)
    B1 = al(8, 2)
    c.acc = [[al(4,4) for i in range(5)] for f in range(3)]
    lowtop = al.n
    eal = al
    al = Alloc(WREG)
    c.X = [[al(4,4) for i in range(5)] for s in range(2)]
    c.W = [[al(4,4) for f in range(3)] for s in range(2)]
    assert al.n <= 208
    c.early = (list(range(20, 30)) + [18, 19] + list(range(30, 38)))[:nearly]
    a(f"""
    s_sub_u32 s{sT2}, s{sT2}, 16
    s_lshl_b32 s{sT1}, s{sT1}, 4
    s_add_u32 s{sT1}, s{sT1}, s{sT2}
    s_cmp_ge_u32 s{sT1}, 63
    s_cbranch_scc1 Lidle
    s_mul_i32 s{sCB}, s{sT1}, 37
    s_lshr_b32 s{sCB}, s{sCB}, 8
    s_sub_u32 s{sT3}, s{sCB}, s{sT0}
    s_mul_i32 s{sT3}, s{sT3}, 7
    s_sub_u32 s{sRB}, s{sT1}, s{sT3}
    s_mul_i32 s{sT3}, s{sRB}, {FROWS}
    s_lshl_b32 s{sT0}, s{sW}, 3
    s_add_u32 s{sT3}, s{sT3}, s{sT0}
    s_mul_i32 s{sXO}, s{sT3}, 1280
    s_add_u32 s{sXO+1}, s{sXO}, 81920
    s_add_u32 s{sXO+2}, s{sXO}, 163840
    """)
    w_voff(c, 24)
    a(f"""
    s_and_b32 s{sT0}, s{sW}, 3
    s_lshl_b32 s{sT0}, s{sT0}, 1
    v_xor_b32 v{T0}, s{sT0}, v{T0}
    v_lshl_add_u32 v{c.VW}, v{T0}, 4, v{T1}
    s_mul_i32 s{sT0}, s{sCB}, 384
    s_add_u32 s{sWO}, s{sWO}, s{sT0}
    """)
    srd(a, SW, P_W1, 640*3456)
    srd(a, SWT, P_B1, 3456)
    a(f"s_lshl_b32 s{sT0}, s{sRB}, 7\ns_lshl_b32 s{sT1}, s{sCB}, 3\ns_add_u32 s{sHF}, s{sT0}, s{sT1}")
    RHO = c.hb[0]
    def f_setup():
        a(f"""
        s_lshr_b32 s{sMH}, s{sW}, 2
        s_bfe_u32 s{sT0}, s{sW}, 0x10001
        s_and_b32 s{sT1}, s{sW}, 1
        s_mul_i32 s{sT0}, s{sT0}, 6
        s_lshl_b32 s{sT2}, s{sT1}, 2
        s_add_u32 s{sNT}, s{sT0}, s{sT2}
        s_add_u32 s{sNT+1}, s{sNT}, 1
        s_add_u32 s{sNT+2}, s{sT0}, s{sT1}
        s_add_u32 s{sNT+2}, s{sNT+2}, 2
        s_cmp_eq_u32 s{sMH}, 0
        s_cselect_b32 s{sMSK}, -1, 0x7fff7fff
        s_cselect_b32 s{sMSK+1}, -1, 0x7fff7fff
        v_lshrrev_b32 v{T0}, 1, v{R}
        v_xor_b32 v{T0}, v{T0}, v{G}
        v_lshlrev_b32 v{T0}, 4, v{T0}
        v_lshl_add_u32 v{T0}, v{R}, 7, v{T0}
        s_mul_i32 s{sT0}, s{sMH}, {5*2048}
        s_add_u32 s{sT0}, s{sT0}, {c.stg}
        v_add_u32 v{c.xb[0]}, s{sT0}, v{T0}
        v_xor_b32 v{c.xb[1]}, 64, v{c.xb[0]}
        """)
        rho_local(a, T0, T1)
        a(f"""
        v_bfe_u32 v{T2}, v{T0}, 1, 2
        v_mul_u32_u24 v{T0}, 384, v{T0}
        v_and_b32 v{T1}, 3, v{LANE}
        v_lshl_add_u32 v{T0}, v{T1}, 3, v{T0}
        v_add_u32 v{T0}, {c.xsz+c.stg}, v{T0}
        """)
        for f in range(3):
            a(f"v_xor_b32 v{T1}, s{sNT+f}, v{T2}\nv_lshl_add_u32 v{c.wb[f]}, v{T1}, 5, v{T0}")
        a(f"""
        s_mul_i32 s{sT0}, s{sRB}, {FROWS}
        s_mul_i32 s{sT1}, s{sMH}, 80
        s_add_u32 s{sT0}, s{sT0}, s{sT1}
        v_add_u32 v{RHO}, s{sT0}, v{R}
        v_lshlrev_b32 v{T0}, 4, v{RHO}
        v_add_u32 v{c.VRA}, {STO}, v{T0}
        """)
        for s in range(2):
            for r in range(4): a(f"v_mov_b32 v{c.X[s][4]+r}, 0x3f803f80")
        a(f"v_lshlrev_b32 v{T0}, 3, v{G}\ns_mul_i32 s{sT2}, s{sCB}, 384")
        for f in range(3):
            a(f"s_lshl_b32 s{sT1}, s{sNT+f}, 5\ns_add_u32 s{sT1}, s{sT1}, s{sT2}")
            a(f"buffer_load_dwordx2 {vr(B1+2*f,2)}, v{T0}, {sr(SWT,4)}, s{sT1} offen")
    pre_loop(c, f_setup)
    rec = [[f"v_add_u32 v{T3}, {256*i}, v{c.VRA}", f"v_min_u32 v{T3}, {STO+2047*16}, v{T3}",
            f"buffer_load_dwordx4 {vr(c.REC+4*i,4)}, v{T3}, {sr(SFL,4)}, 0 offen sc1"] for i in range(5)]
    CA = 17
    c.tailx = [[f"v_lshlrev_b32 v{T3}, 4, v{G}"]] + [lines(f"s_lshl_b32 s{sT0}, s{sNT+f}, 6\ns_add_u32 s{sT0}, s{sT0}, {L_CS}\nv_add_u32 v{CA+f}, s{sT0}, v{T3}") for f in range(3)]
    main_loop(a, c, S, "f", rec)
    a(f"s_waitcnt vmcnt({c.yrec})")
    poll(a, sum(rec, []), [c.REC+4*i+2 for i in range(5)], True)
    lc = a.uid("Lc")
    a(f"s_cmp_eq_u32 s{sMH}, 0\ns_cbranch_scc1 {lc}\ns_not_b64 exec, {sr(sMSK,2)}")
    for f in range(3): a(f"ds_write_b128 v{CA+f}, {vr(c.acc[f][4],4)}")
    a("s_mov_b64 exec, -1\ns_waitcnt lgkmcnt(0)")
    a.label(lc)
    a("s_barrier")
    CC = c.VPS; VA = 11
    CSR = eal(12, 2); TT = [eal(2,2) for _ in range(4)] + [12, B1+6]
    assert eal.n <= WREG, eal.n
    for f in range(3): a(f"ds_read_b128 {vr(CSR+4*f,4)}, v{CA+f}")
    BFp = [c.REC+4*i+2 for i in range(5)] + [B1+4]
    OUTP = [B1, 16]; SG = 20
    assert RHO == 15
    rest = [p for p in list(range(30, 45)) + list(range(30)) if p not in c.early]
    I = Inter(a, [wfrag(p) for p in rest], fevery)
    c0 = -2*math.sqrt(2/math.pi)*math.log2(math.e); c1 = c0*0.044715
    for j in range(5): I(f"v_lshlrev_b32 v{BFp[j]}, 16, v{B1+j}\nv_and_b32 v{BFp[j]+1}, 0xffff0000, v{B1+j}")
    I(f"v_lshlrev_b32 v{B1+4}, 16, v{B1+5}\nv_and_b32 v{B1+5}, 0xffff0000, v{B1+5}")
    I(f"v_mov_b32 v{CC}, {f32(c0)}\nv_mov_b32 v{CC+1}, {f32(c1)}\nv_mov_b32 v{CC+2}, 1.0")
    I(f"""
    v_and_b32 v{T2}, 15, v{RHO}
    v_lshlrev_b32 v{T2}, 4, v{T2}
    v_lshl_add_u32 v{T1}, v{G}, 8, v{T2}
    v_and_b32 v{T3}, 1, v{G}
    v_lshl_add_u32 v14, v{T3}, 8, v{T2}
    v_lshrrev_b32 v{T0}, 4, v{RHO}
    v_lshrrev_b32 v{T3}, 5, v{LANE}
    v_add_u32 v{RHO}, v{T0}, v{T3}
    s_mul_i32 s{sT2}, s{sCB}, 6
    s_add_u32 s{sT2}, s{sT2}, 20
    s_lshr_b32 s{sT0}, s{sNT}, 1
    s_add_u32 s{sT0}, s{sT0}, s{sT2}
    s_lshl_b32 s{sKX}, s{sT0}, 12
    s_lshr_b32 s{sT0}, s{sNT+2}, 1
    s_add_u32 s{sT0}, s{sT0}, s{sT2}
    s_lshl_b32 s{sKW}, s{sT0}, 12
    s_and_b32 s{sT0}, s{sNT+2}, 1
    s_lshl_b32 s{sT0}, s{sT0}, 9
    s_add_u32 s{sKW}, s{sKW}, s{sT0}
    s_mov_b32 s{sT3}, {74*4096}
    s_waitcnt lgkmcnt(0)
    """)
    a(f"s_cmp_eq_u32 s{sMH}, 0\ns_cselect_b32 s{sMSK}, -1, 0x00ff00ff\ns_mov_b32 s{sMSK+1}, s{sMSK}")
    def gelu_pair(h, cs, b, st, t, dst):
        return [f"v_pk_fma_f32 {vr(t,2)}, {vr(cs,2)}, {vr(st,2)}, {vr(b,2)} op_sel:[0,1,0] op_sel_hi:[1,1,1]",
                f"v_pk_fma_f32 {vr(h,2)}, {vr(h,2)}, {vr(st,2)}, {vr(t,2)} op_sel:[0,0,0] op_sel_hi:[1,0,1]",
                f"v_pk_mul_f32 {vr(t,2)}, {vr(h,2)}, {vr(h,2)}",
                f"v_pk_fma_f32 {vr(t,2)}, {vr(t,2)}, {vr(CC,2)}, {vr(CC,2)} op_sel:[0,1,0] op_sel_hi:[1,1,0]",
                f"v_pk_mul_f32 {vr(t,2)}, {vr(t,2)}, {vr(h,2)}",
                f"v_exp_f32 v{t}, v{t}",
                f"v_exp_f32 v{t+1}, v{t+1}",
                f"v_pk_add_f32 {vr(t,2)}, {vr(t,2)}, {vr(CC+2,2)} op_sel_hi:[1,0]",
                f"v_rcp_f32 v{t}, v{t}",
                f"v_rcp_f32 v{t+1}, v{t+1}",
                f"v_pk_mul_f32 {vr(t,2)}, {vr(t,2)}, {vr(h,2)}",
                f"v_cvt_pk_bf16_f32 v{dst}, v{t}, v{t+1}"]
    def blkaddr(dst, tile, low):
        I(f"""
        v_lshrrev_b32 v{T2}, 2, v{tile}
        v_mul_lo_u32 v{T2}, v{T2}, s{sT3}
        v_and_b32 v{T3}, 3, v{tile}
        v_lshl_add_u32 v{T2}, v{T3}, 10, v{T2}
        v_add_u32 v{dst}, v{T2}, v{low}
        """)
    for i in range(5):
        o = OUTP[i & 1]
        streams = [gelu_pair(c.acc[f][i]+2*hp, CSR+4*f+2*hp, BFp[2*f+hp], c.REC+4*i, TT[2*f+hp],
                             (o+2*f+hp) if f < 2 else (SG+2*(i&1)+hp)) for f in range(3) for hp in range(2)]
        for k in range(len(streams[0])):
            for s in streams: I(s[k])
        blkaddr(VA, T0, T1)
        I(f"v_add_u32 v{T0}, 1, v{T0}")
        if i == 4: a(f"s_mov_b64 exec, {sr(sMSK,2)}")
        a(f"buffer_store_dwordx4 {vr(o,4)}, v{VA}, {sr(SHO,4)}, s{sKX} offen sc1")
        if i == 4: a("s_mov_b64 exec, -1")
        if i & 1 or i == 4:
            a(f"v_permlane32_swap_b32 v{SG}, v{SG+2}\nv_permlane32_swap_b32 v{SG+1}, v{SG+3}")
            blkaddr(VA, RHO, 14)
            I(f"v_add_u32 v{RHO}, 2, v{RHO}")
            if i == 4: a(f"s_mov_b32 exec_lo, s{sMSK}\ns_mov_b32 exec_hi, 0")
            a(f"buffer_store_dwordx4 {vr(SG,4)}, v{VA}, {sr(SHO,4)}, s{sKW} offen sc1")
            if i == 4: a("s_mov_b64 exec, -1")
    left = len(I.g)
    S(6)
    nb = min(left, NB)
    I.flush(left - nb)
    publish(nb)
    I.flush()
    a("s_branch Lphase2")
    a.label("Lidle")
    late_srds()
    emit([duty(a, 6, False)])
    pretouch(None)
    if 'tup' not in EXP: side_loads(a, stat=False)
    stat_loads(a)
    p2_setup(a, 11)
    a("s_waitcnt vmcnt(0)")
    t_work(a)
    a(f"v_mov_b32 v14, 0\nv_mov_b32 v15, 0\ns_waitcnt vmcnt(0)\ns_barrier")
    nonce_get(a, 14, 12)
    a("s_nop 1")
    s_work(a, 12)
    poll(a, [f"buffer_load_dwordx2 v[14:15], v11, {sr(SFL,4)}, 0 offen sc1"], [14], False)
    for l in p2_ldsbases(): a(l)
    emit([wfrag(p) for p in c.early + rest])
    a.label("Lphase2")
    l9 = a.uid("L9")
    a(f"s_cmp_ge_u32 s{sW}, 2\ns_cbranch_scc1 {l9}")
    emit([wfrag(p) for p in range(45, 50)])
    a.label(l9)
    al = Alloc(12)
    VFD = al(2, 2); VLA = al(); VLB = al()
    acc = [[al(4,4) for m in range(4)] for n in range(5)]
    RING = [al(16, 4), al(16, 4)]
    XR = al(6, 2)
    assert al.n <= WREG, al.n
    S(8)
    poll(a, [f"buffer_load_dwordx2 {vr(VFD,2)}, v{VF}, {sr(SFL,4)}, 0 offen sc1"], [VFD], False)
    S(9)
    Wslot = [WREG+20*t for t in range(6)]
    abuf = {0: RING[0], 1: RING[1], 2: RING[0], 3: Wslot[0], 4: RING[1], 5: Wslot[1], 6: RING[0], 7: Wslot[0], 8: RING[1], 9: Wslot[1]}
    issue_after = {0: [2, 3], 1: [4, 5], 2: [6], 3: [7], 4: [8], 5: [9]}
    wloc = {t: Wslot[t] for t in range(6)}
    wloc.update({6: Wslot[2], 7: Wslot[3], 8: Wslot[4], 9: Wslot[5]})
    B2 = [Wslot[0]+16, Wslot[0]+18, Wslot[1]+16]
    def aload(t):
        a(f"s_lshl_b32 s{sTM}, s{sK+t}, 12")
        for m in range(4): a(f"buffer_load_dwordx4 {vr(abuf[t]+4*m,4)}, v{VL}, {sr(SPF,4)}, s{sTM} offen offset:{1024*m} sc1")
    ops = []
    for t in (0, 1): aload(t); ops += [t]*4
    SOX, SOB = [sKX, sKW, sDELTA], [sSLOT, sW1K, sMH]
    a(f"v_add_u32 v{VLA}, s{sFILL}, v{VL}\nv_add_u32 v{VLB}, s{sFW}, v{VL}\ns_mul_i32 s{sT0}, s{sC2}, 160")
    for j in range(3):
        a(f"""
        s_add_u32 s{sT1}, s{sW}, {8*j}
        s_mul_i32 s{sT2}, s{sT1}, 52
        s_lshr_b32 s{sT2}, s{sT2}, 8
        s_mul_i32 s{sT3}, s{sT2}, 5
        s_sub_u32 s{sT1}, s{sT1}, s{sT3}
        s_lshl_b32 s{sT1}, s{sT1}, 5
        s_mul_i32 s{sT2}, s{sT2}, 20480
        s_add_u32 s{SOX[j]}, s{sT2}, s{sT1}
        s_add_u32 s{SOB[j]}, s{sT0}, s{sT1}
        """)
    srd(a, STMP, P_B2, 1280)
    srd(a, SW, P_OUT, XB)
    for t in range(10):
        if t == 9: a(f"s_cmp_ge_u32 s{sW}, 2\ns_cbranch_scc1 Lp2done")
        younger = len(ops) - 1 - max(i for i, o in enumerate(ops) if o == t)
        a(f"s_waitcnt vmcnt({younger})" + (" lgkmcnt(0)" if t == 6 else ""))
        for n in range(5):
            for m in range(4): a(mfma(acc[n][m], wloc[t]+4*n, abuf[t]+4*m, t == 0))
        if 2 <= t <= 5:
            for n in range(5):
                phi = (t+4)*5+n
                ad, off = (VLA, (phi-30)*1024) if phi < 38 else (VLB, (phi-38)*1024)
                a(f"ds_read_b128 {vr(wloc[t+4]+4*n,4)}, v{ad} offset:{off}")
        for tt in issue_after.get(t, []): aload(tt); ops += [tt]*4
        if t == 5:
            a(f"v_lshlrev_b32 v{T1}, 3, v{G}")
            for j in range(3): a(f"buffer_load_dwordx2 {vr(XR+2*j,2)}, v{VXO}, {sr(SX,4)}, s{SOX[j]} offen"); ops.append('x')
            for j in range(3): a(f"buffer_load_dwordx2 {vr(B2[j],2)}, v{T1}, {sr(STMP,4)}, s{SOB[j]} offen"); ops.append('b')
        S(40+t)
    a.label("Lp2done")
    a("s_nop 7")
    for m in range(4):
        for n in range(5):
            q = m*5+n
            ad, off = (VLA, q*1024) if q < 8 else (VLB, (q-8)*1024)
            a(f"ds_write_b128 v{ad}, {vr(acc[n][m],4)} offset:{off}")
    a(f"""
    s_lshl_b32 s{sT0}, s{sW}, 10
    v_add_u32 v{T0}, s{sT0}, v{VL}
    v_add_u32 v{T2}, {L_A}, v{T0}
    v_add_u32 v{T3}, {4*12288}, v{T0}
    """)
    S(52)
    a("s_waitcnt lgkmcnt(0)\ns_barrier")
    S(53)
    P = [[acc[0][0] + (j*8+s)*4 for s in range(8)] for j in range(3)]
    assert P[2][7]+4 <= XR
    def rdtile(j):
        for s in range(8):
            if j == 0: ad, off = T2, s*8192
            else: ad, off = (T0 if s < 4 else T3), (s%4)*12288 + (j-1)*8192
            a(f"ds_read_b128 {vr(P[j][s],4)}, v{ad} offset:{off}")
    L2E = f32(-math.log2(math.e))
    def fin(j):
        p = P[j]
        Sx, Y, Z = p[0], p[2], p[3]
        for h in (0, 2):
            for k in (0, 2, 4, 6): a(f"v_pk_add_f32 {vr(p[k]+h,2)}, {vr(p[k]+h,2)}, {vr(p[k+1]+h,2)}")
        def unp(x, q):
            a(f"v_lshlrev_b32 v{x}, 16, v{q}\nv_and_b32 v{x+1}, 0xffff0000, v{q}\nv_lshlrev_b32 v{x+2}, 16, v{q+1}\nv_and_b32 v{x+3}, 0xffff0000, v{q+1}")
        unp(Z, B2[j])
        for h in (0, 2):
            a(f"v_pk_add_f32 {vr(p[2]+h,2)}, {vr(p[2]+h,2)}, {vr(p[4]+h,2)}")
            a(f"v_pk_add_f32 {vr(p[6]+h,2)}, {vr(p[6]+h,2)}, {vr(Z+h,2)}")
        for h in (0, 2): a(f"v_pk_add_f32 {vr(Y+h,2)}, {vr(Y+h,2)}, {vr(p[6]+h,2)}")
        for r in range(4): a(f"v_mul_f32 v{Z+r}, {L2E}, v{Y+r}")
        for r in range(4): a(f"v_exp_f32 v{Z+r}, v{Z+r}")
        for r in range(4): a(f"v_add_f32 v{Z+r}, 1.0, v{Z+r}")
        for r in range(4): a(f"v_rcp_f32 v{Z+r}, v{Z+r}")
        for h in (0, 2): a(f"v_pk_mul_f32 {vr(Y+h,2)}, {vr(Y+h,2)}, {vr(Sx+h,2)}")
        unp(p[4], XR+2*j)
        for r in range(4): a(f"v_fma_f32 v{Y+r}, v{Y+r}, v{Z+r}, v{p[4]+r}")
        a(f"v_cvt_pk_bf16_f32 v{Sx}, v{Y}, v{Y+1}\nv_cvt_pk_bf16_f32 v{Sx+1}, v{Y+2}, v{Y+3}")
        a(f"buffer_store_dwordx2 {vr(Sx,2)}, v{VXO}, {sr(SW,4)}, s{SOX[j]} offen")
    rdtile(0); rdtile(1)
    a("s_waitcnt vmcnt(0) lgkmcnt(8)")
    l3 = a.uid("L3")
    a(f"s_cmp_ge_u32 s{sW}, 4\ns_cbranch_scc1 {l3}")
    rdtile(2)
    a.label(l3)
    fin(0)
    a("s_waitcnt lgkmcnt(0)")
    fin(1)
    a(f"s_cmp_ge_u32 s{sW}, 4\ns_cbranch_scc1 Lfin")
    fin(2)
    a.label("Lfin")
    S.finish(54)
    a.label("Lend")
    a("s_endpgm")
    ref = open(f"cdna_kernels/{NAME}.s.ref").read().split("\n")
    hdr = [l for l in ref if l.startswith(";") and "@launch" not in l]
    out = "\n".join(hdr) + f"\n; @launch grid=(256,1,1) block=(512,1,1) lds={LDS_TOTAL}\n"
    out += '.amdgcn_target "amdgcn-amd-amdhsa--gfx950"\n' + khead(name) + a.text() + kd(name, 256, 102)
    return out

if __name__ == "__main__":
    path = sys.argv[1]
    kw = eval("dict(" + (sys.argv[2] if len(sys.argv) > 2 else "") + ")")
    open(path, "w").write(gen(**kw))
```

```python
from asmlib import *
import math, sys
NAME = "recurrent_scan__sliding_local_dilated__dense_activation_gelu__prompt"
XB = 2048*640*2
HO_SZ = 32*74*4096
WT_OFF, WT_SZ = 0xB00000, 8*74*5*1024
FLB = 0x400000
TFO, STO = FLB+0x1000, FLB+0x4000
FL_SZ = FLB + 0x10000
BIG = 0x7ff00000
RS = 592
L_TST, L_CS, L_A = 147456, 93184, 98304
LDS_TOTAL = 163840
FROWS = 152

SX, SW, SHO, SPF, SWT, SFL, SDBG, STMP = 4, 8, 16, 20, 24, 28, 32, 36
sXO = 12; sWO = 15
P_X, P_WQ, P_WO, P_W1, P_B1, P_W2, P_B2, P_OUT, P_DBG, P_WS = 40, 42, 44, 48, 50, 52, 54, 56, 58, 60
(sW, sRB, sCB, sI, sKX, sKW, sTM, sFILL, sDELTA, sSLOT, sW1K, sT0, sT1, sT2, sT3, sMH) = range(62, 78)
sNT = 78; sNON = 82; sMSK = 84; sR2, sC2 = 50, 51; sK = 88; sSP = 98; sN2 = 99
sWM = 100
sFW, sWB = 3, 47
sHF = 43
sPFO, sPFS, sPG = 46, 86, 87
sRM, sRH = 48, 49
sTS = [44, 45, 52, 53]
VF, LANE, G, R, T0, T1, T2, T3, VST, VL, VXO = 0, 1, 2, 3, 4, 5, 6, 7, 8, 9, 10
WREG = 136
SIDE = 232
EXP = set(); PFF = ""; DN = 2; DMASK = 0b101; DPRE = 2; SP = dict(tw=1, nonce=3, sl=3, sw=5, tf=5); TFL = "nt"; RECIT = 9

def mfma(d, a_, b_, c0=False): return f"v_mfma_f32_16x16x32_bf16 {vr(d,4)}, {vr(a_,4)}, {vr(b_,4)}, " + ("0" if c0 else vr(d,4))
def chunks(l, n): return [l[i:i+n] for i in range(0, len(l), n)]
def merge(groups, n): return [sum(g, []) for g in chunks(groups, n)]
def lines(t): return [l.strip() for l in t.strip("\n").split("\n") if l.strip()]
def srd(a, d, p, size, off=None):
    if off is None: a(f"s_mov_b32 s{d}, s{p}\ns_mov_b32 s{d+1}, s{p+1}")
    else: a(f"s_add_u32 s{d}, s{p}, {off}\ns_addc_u32 s{d+1}, s{p+1}, 0")
    a(f"s_mov_b32 s{d+2}, {size}\ns_mov_b32 s{d+3}, 0x00020000")

class St:
    def __init__(s, a, on): s.a, s.on = a, on
    def start(s):
        if s.on: s.a(f"s_memtime s[0:1]\nv_mov_b32 v{VST}, 0\ns_waitcnt lgkmcnt(0)\nv_writelane_b32 v{VST}, s0, 59\nv_writelane_b32 v{VST}, s94, 0\nv_writelane_b32 v{VST}, s96, 62")
    def __call__(s, i):
        if s.on: s.a(f"s_memtime s[0:1]\ns_waitcnt lgkmcnt(0)\nv_writelane_b32 v{VST}, s0, {i}")
    def dyn(s, base):
        if s.on and ((base == 30 and 'nobar' not in EXP) or 'lst' in EXP):
            s.a(f"s_memtime s[0:1]\ns_add_u32 m0, s{sI}, {base}\ns_waitcnt lgkmcnt(0)\nv_writelane_b32 v{VST}, s0, m0")
    def finish(s, i):
        if not s.on: return
        s.a(f"""
        s_waitcnt vmcnt(0)
        s_memtime s[0:1]
        s_waitcnt lgkmcnt(0)
        v_writelane_b32 v{VST}, s0, {i}
        s_memrealtime s[0:1]
        s_waitcnt lgkmcnt(0)
        v_writelane_b32 v{VST}, s0, 63
        s_lshl_b32 s3, s2, 3
        s_add_u32 s3, s3, s{sW}
        s_lshl_b32 s3, s3, 8
        s_add_u32 s3, s3, {STAMP_OFF}
        s_add_u32 s{STMP}, s{P_WS}, s3
        s_addc_u32 s{STMP+1}, s{P_WS+1}, 0
        s_mov_b32 s{STMP+2}, 256
        s_mov_b32 s{STMP+3}, 0x00020000
        v_lshlrev_b32 v{T0}, 2, v{LANE}
        buffer_store_dword v{VST}, v{T0}, {sr(STMP,4)}, 0 offen
        """)
        if 'dbg' in EXP:
            s.a(f"""
            v_readlane_b32 s{sT0}, v{VST}, 0
            v_readlane_b32 s{sT1}, v{VST}, 62
            v_readlane_b32 s{sT2}, v{VST}, 63
            s_not_b32 s{sT1}, s{sT1}
            v_mov_b32 v{T1}, 0
            v_writelane_b32 v{T1}, s{sT1}, 2
            v_writelane_b32 v{T1}, s{sT2}, 3
            """)
            for k, idx in enumerate((59, 3, 4, 7, 9, 53, 54)):
                s.a(f"v_readlane_b32 s{sT3}, v{VST}, {idx}\ns_nop 3\ns_sub_u32 s{sT2}, s{sT3}, s{sT0}\ns_cmp_eq_u32 s{sT3}, 0\ns_cselect_b32 s{sT2}, 0, s{sT2}\nv_writelane_b32 v{T1}, s{sT2}, {4+k}")
            s.a(f"""
            v_readlane_b32 s{sT1}, v{VST}, 62
            s_nop 3
            v_writelane_b32 v{T1}, s{sT1}, 11
            s_mov_b32 exec_lo, 0xffc
            s_mov_b32 exec_hi, 0
            buffer_atomic_umax v{T1}, v{T0}, {sr(SDBG,4)}, 0 offen
            """)
class Cfg: pass

def dma_x(c, a, u):
    g = [f"s_add_u32 m0, s{sFILL}, {u*8192}", f"s_add_u32 s{sTM}, s{sXO+u}, s{sKX}", f"buffer_load_dwordx4 v{c.VX}, {sr(SX,4)}, s{sTM} offen lds"]
    if u == 2:
        lab = a.uid("Lsk")
        g = [f"s_cmp_ge_u32 s{sW}, {c.nxm}", f"s_cbranch_scc1 {lab}"] + g + [lab + ":"]
    return g
def dma_w(c, a, u):
    return [f"s_add_u32 m0, s{sFW}, {u*16*c.wrow}", f"s_add_u32 s{sTM}, s{sKW}, {u*16*c.wrowb}", f"s_mov_b64 exec, {sr(sWM,2)}",
            f"buffer_load_dwordx4 v{c.VW}, {sr(SW,4)}, s{sTM} offen lds", "s_mov_b64 exec, -1"]
def dmaA(c, a): return [dma_x(c,a,0), dma_x(c,a,1), dma_x(c,a,2), dma_w(c,a,0)]
def dmaB(c, a): return [dma_w(c,a,1), dma_w(c,a,2), dma_w(c,a,3)]

def reads(c, st, s):
    r = []
    for i in range(c.nM):
        ins = f"ds_read_b128 {vr(c.X[st][i],4)}, v{c.xb[s]} offset:{i*2048}"
        if (not c.nh) and i == c.nM-1: r.append([f"s_mov_b64 exec, {sr(sMSK,2)}", ins, "s_mov_b64 exec, -1"])
        else: r.append([ins])
    if c.nh: r.append([f"s_mov_b64 exec, {sr(sMSK,2)}", f"ds_read_b128 {vr(c.XH[st],4)}, v{c.hb[s]}", "s_mov_b64 exec, -1"])
    for f in range(c.nF):
        r.append([f"ds_read_b64_tr_b16 {vr(c.W[st][f],2)}, v{c.wb[f]} offset:{s*32*c.wrow}"])
        r.append([f"ds_read_b64_tr_b16 {vr(c.W[st][f]+2,2)}, v{c.wb[f]} offset:{s*32*c.wrow+8*c.wrow}"])
    return r
def mfmas(c, st, c0=False):
    m = []
    for f in range(c.nF):
        for i in range(c.nM): m.append(mfma(c.acc[f][i], c.W[st][f], c.X[st][i], c0))
        if f < c.nh: m.append(mfma(c.acch[f], c.W[st][f], c.XH[st], c0))
    return m
def spread(main, items):
    out = []
    for i, m in enumerate(main):
        out.append(m)
        for p, g in items:
            if p == i or (i == len(main)-1 and p > i): out.extend(g)
    return out
def even(groups, n, lo=1):
    k = len(groups)
    return [(lo + (j*(n-lo))//k, g) for j, g in enumerate(groups)] if k else []

def stat_row(a):
    a(f"""
    s_and_b32 s{sT0}, s2, 1
    s_lshl_b32 s{sT0}, s{sT0}, 10
    s_bfe_u32 s{sT2}, s2, 0x20001
    s_lshl_b32 s{sT2}, s{sT2}, 8
    s_add_u32 s{sT0}, s{sT0}, s{sT2}
    s_and_b32 s{sT2}, s2, 0xf8
    s_add_u32 s{sT0}, s{sT0}, s{sT2}
    s_sub_u32 s{sT2}, s{sW}, 6
    s_lshl_b32 s{sT2}, s{sT2}, 2
    s_add_u32 s{sT0}, s{sT0}, s{sT2}
    """)
def nonce_get(a, vN, vPS):
    l0, l1, l2, l3 = a.uid("Lno"), a.uid("Lno"), a.uid("Lno"), a.uid("Lno")
    assert vN == vPS + 2 and vPS % 2 == 0
    a(f"s_mov_b32 s{sSP}, 0")
    a.label(l0)
    a(f"""
    v_readfirstlane_b32 s{sNON}, v{vN}
    v_readfirstlane_b32 s{sNON+1}, v{vN+1}
    s_add_u32 s{sSP}, s{sSP}, 1
    s_cmp_gt_u32 s{sSP}, 100000
    s_cbranch_scc1 {l1}
    s_cmp_lg_u32 s{sNON}, 0
    s_cbranch_scc1 {l1}
    v_mov_b32 v{T0}, 0
    buffer_load_dwordx2 {vr(vN,2)}, v{T0}, {sr(SDBG,4)}, 0 offen sc1
    s_waitcnt vmcnt(0)
    s_branch {l0}
    """)
    a.label(l1)
    a(f"""
    s_cmp_lg_u32 s{sW}, 0
    s_cbranch_scc1 {l2}
    s_lshl_b32 s{sT1}, s2, 3
    v_mov_b32 v{T0}, {TFO}
    s_mov_b64 exec, 1
    buffer_store_dwordx2 {vr(vN,2)}, v{T0}, {sr(SFL,4)}, s{sT1} offen sc1
    s_mov_b64 exec, -1
    """)
    a.label(l2)
def poll(a, loads, cmps, preloaded):
    l0, l1, l2 = a.uid("Lpo"), a.uid("Lpo"), a.uid("Lpo")
    a(f"s_mov_b32 s{sSP}, 0")
    if preloaded: a(f"s_branch {l2}")
    a.label(l0)
    for l in loads: a(l)
    a("s_waitcnt vmcnt(0)")
    a.label(l2)
    for k, v in enumerate(cmps):
        if k == 0: a(f"v_cmp_eq_u64 vcc, {sr(sNON,2)}, {vr(v,2)}")
        else: a(f"v_cmp_eq_u64 {sr(sT1,2)}, {sr(sNON,2)}, {vr(v,2)}\ns_nop 0\ns_and_b64 vcc, vcc, {sr(sT1,2)}")
    a(f"""
    s_add_u32 s{sSP}, s{sSP}, 1
    s_cmp_gt_u32 s{sSP}, 100000
    s_cbranch_scc1 {l1}
    s_cmp_eq_u64 vcc, -1
    s_cbranch_scc0 {l0}
    """)
    a.label(l1)

def wfrag(phi):
    t, n = divmod(phi, 5)
    pre = [f"s_mul_i32 s{sTM}, s{sK+t}, 5120"]
    if phi < 30:
        if n < 4: return pre + [f"buffer_load_dwordx4 {vr(WREG+4*phi,4)}, v{VL}, {sr(SWT,4)}, s{sTM} offen offset:{1024*n} sc1"]
        return pre + [f"s_add_u32 s{sTM}, s{sTM}, 4096", f"buffer_load_dwordx4 {vr(WREG+4*phi,4)}, v{VL}, {sr(SWT,4)}, s{sTM} offen sc1"]
    base, o = (sFILL, (phi-30)*1024) if phi < 38 else (sFW, (phi-38)*1024)
    return [f"s_add_u32 m0, s{base}, {o}"] + pre + [f"s_add_u32 s{sTM}, s{sTM}, {1024*n}", f"buffer_load_dwordx4 v{VL}, {sr(SWT,4)}, s{sTM} offen sc1 lds"]
def p2_ldsbases():
    return [f"s_lshl_b32 s{sFILL}, s{sW}, 13", f"s_add_u32 s{sFILL}, s{sFILL}, {L_A}", f"s_mul_i32 s{sFW}, s{sW}, 12288"]

def stage_set(c, st):
    slot = ((st+1) % 3) * c.stg
    return lines(f"s_add_u32 s{sFILL}, s{sW1K}, {slot}\ns_add_u32 s{sFW}, s{sWB}, {slot}\ns_mov_b32 s{sKX}, {128*st}\ns_add_u32 s{sKW}, s{sWO}, {64*st*c.wrowb}")
def duty(a, n=2, guard=True):
    lab = a.uid("Ldu")
    g = [f"s_bitcmp1_b32 {DMASK}, s{sI}", f"s_cbranch_scc0 {lab}"] if guard else []
    for _ in range(n):
        g += lines(f"""
        s_cmp_ge_u32 s{sPFO}, s{sPG}
        s_cbranch_scc1 {lab}
        buffer_load_dword v255, v254, {sr(STMP,4)}, s{sPFO} offen {PFF}
        s_add_u32 s{sPFO}, s{sPFO}, s{sPFS}""")
    return g + [lab + ":"]

def iteration(a, c, S, kind, extra1=(), extra2=(), pre2=None):
    bases = list(c.xb) + (list(c.hb) if c.nh else []) + list(c.wb)
    prio = 'noprio' not in EXP
    a("s_waitcnt lgkmcnt(0)")
    M = mfmas(c, 0, kind == 0); n = len(M)
    rb = merge(reads(c, 1, 1), 2)
    items = [(k, g) for k, g in enumerate(rb)]
    if prio: items = [(0, ["s_setprio 1"]), (n//2, ["s_setprio 0"])] + items
    if kind != 9:
        items.append((0, [f"s_add_u32 s{sT1}, s{sSLOT}, {c.stg}", f"s_cmp_eq_u32 s{sT1}, {3*c.stg}", f"s_cselect_b32 s{sT1}, 0, s{sT1}", f"s_sub_u32 s{sDELTA}, s{sT1}, s{sSLOT}"]))
        up = chunks([f"v_add_u32 v{b}, s{sDELTA}, v{b}" for b in bases], 2)
        for k, g in enumerate(up): items.append((len(rb) + k, g))
    if kind in ('loop', 7): items += even(dmaB(c, a), n-4, 2)
    if kind == 0:
        A2 = dmaA(c, a); A2[0] = stage_set(c, 2) + A2[0]
        items += even(dmaB(c, a) + A2 + dmaB(c, a), n-4, 0)
    items += even(list(extra1), n-2, 1)
    if kind in ('loop', 0):
        items.append((n-4, [f"s_add_u32 s{sFILL}, s{sSLOT}, s{sW1K}", f"s_add_u32 s{sFW}, s{sSLOT}, s{sWB}"]))
        items.append((n-3, [f"s_add_u32 s{sKX}, s{sKX}, 128", f"s_add_u32 s{sKW}, s{sKW}, {64*c.wrowb}"]))
    if kind != 9: items.append((n-3, [f"s_mov_b32 s{sSLOT}, s{sT1}"]))
    for l in spread(M, items): a(l)
    S.dyn(10)
    if kind in ('loop', 0, 7): a(f"s_waitcnt vmcnt(6) lgkmcnt(0)")
    elif kind == 8: a(f"s_waitcnt vmcnt({c.y8}) lgkmcnt(0)")
    else: a("s_waitcnt lgkmcnt(0)")
    S.dyn(20)
    a("s_barrier")
    S.dyn(30)
    if prio: a("s_setprio 3")
    if pre2: pre2()
    M = mfmas(c, 1)
    items = []
    if kind != 9: items = [(k, g) for k, g in enumerate(merge(reads(c, 0, 0), 2))]
    if prio: items.append((n//2, ["s_setprio 2"]))
    if kind in ('loop', 0):
        items += even(dmaA(c, a), n, 2)
        if c.duty: items.append((0, duty(a)))
    items += even(list(extra2), n, 0)
    for l in spread(M, items): a(l)

def main_loop(a, c, S, tag, rec_loads):
    iteration(a, c, S, 0)
    if 'tup' in EXP: nonce_get(a, c.VN, c.VPS)
    else: t_work(a)
    a(f"s_mov_b32 s{sI}, 1")
    a.label(f"Lloop_{tag}")
    iteration(a, c, S, 'loop')
    lx, l3, l5 = a.uid("Ls"), a.uid("Ls"), a.uid("Ls")
    tf = f"buffer_load_dwordx2 {vr(c.VN,2)}, v{c.VTF}, {sr(SFL,4)}, 0 offen sc1"
    a(f"s_bitcmp1_b32 0x2c, s{sI}\ns_cbranch_scc0 {lx}")
    a(f"s_cmp_lg_u32 s{sI}, 2\ns_cbranch_scc1 {l3}")
    if 'tup' not in EXP: nonce_get(a, c.VN, c.VPS)
    a(f"s_branch {lx}")
    a.label(l3)
    a(f"s_cmp_lg_u32 s{sI}, 3\ns_cbranch_scc1 {l5}")
    stat_loads(a)
    a(f"s_branch {lx}")
    a.label(l5)
    a(tf)
    s_work(a, c.VPS)
    a.label(lx)
    a(f"s_add_u32 s{sI}, s{sI}, 1\ns_cmp_lt_u32 s{sI}, 7\ns_cbranch_scc1 Lloop_{tag}")
    early = [wfrag(p) for p in c.early]
    e = chunks(early, (len(early)+4)//5)
    def pre7():
        poll(a, [tf], [c.VN], True)
        for l in p2_ldsbases(): a(l)
    iteration(a, c, S, 7, extra2=e[0], pre2=pre7)
    a(f"s_add_u32 s{sI}, s{sI}, 1")
    c.y8 = len(e[0]) + len(e[1])
    iteration(a, c, S, 8, extra1=e[1], extra2=rec_loads + e[2])
    a(f"s_add_u32 s{sI}, s{sI}, 1")
    iteration(a, c, S, 9, extra1=e[3], extra2=e[4] + c.tailx)
    a("s_setprio 0")
    c.yrec = len(e[2]) + len(e[3]) + len(e[4])
    S(4)

def rho_local(a, d, t):
    a(f"v_bfe_u32 v{d}, v{LANE}, 2, 3\nv_lshrrev_b32 v{t}, 5, v{LANE}\nv_lshl_add_u32 v{d}, v{t}, 4, v{d}")

def t_issue(a, guard=True):
    ld = a.uid("Lti")
    if guard: a(f"s_sub_u32 s{sT1}, s{sW}, 3\ns_cmp_gt_u32 s{sT1}, 2\ns_cbranch_scc1 {ld}")
    a(f"s_lshl_b32 s{sT1}, s{sW}, 12")
    for q in range(4):
        a(f"s_add_u32 m0, s{sT1}, {L_TST-3*4096+1024*q}\ns_nop 0")
        a(f"buffer_load_dwordx4 v{SIDE+4+q}, {sr(STMP,4)}, 0 offen {TFL} lds")
    a.label(ld)
def side_loads(a, stat=True, issue=True):
    ld, lst, lh, lj = a.uid("Lt"), a.uid("Lt"), a.uid("Lt"), a.uid("Lt")
    sU, sKp, sCh = sKX, sKW, sDELTA
    A0, A1, ST0, ST1 = SIDE, SIDE+1, SIDE+2, SIDE+3
    for q in range(4): a(f"v_mov_b32 v{SIDE+4+q}, 0")
    a(f"s_cmp_lt_u32 s{sW}, 3\ns_cbranch_scc1 {ld}\ns_cmp_ge_u32 s{sW}, 6\ns_cbranch_scc1 {lst}")
    a(f"""
    s_mul_i32 s{sU}, s2, 3
    s_add_u32 s{sU}, s{sU}, s{sW}
    s_sub_u32 s{sU}, s{sU}, 3
    s_min_u32 s{sU}, s{sU}, 739
    s_mul_i32 s{sKp}, s{sU}, 6554
    s_lshr_b32 s{sKp}, s{sKp}, 16
    s_mul_i32 s{sT0}, s{sKp}, 10
    s_sub_u32 s{sCh}, s{sU}, s{sT0}
    v_lshrrev_b32 v{T0}, 5, v{LANE}
    s_cmp_ge_u32 s{sKp}, 20
    s_cbranch_scc1 {lh}
    """)
    for e, (A, ST) in enumerate(((A0, ST0), (A1, ST1))):
        a(f"""
        s_lshl_b32 s{sT0}, s{sKp}, 2
        s_add_u32 s{sT0}, s{sT0}, {2*e}
        v_add_u32 v{T1}, s{sT0}, v{T0}
        v_mul_u32_u24 v{T2}, 205, v{T1}
        v_lshrrev_b32 v{T2}, 10, v{T2}
        v_mul_u32_u24 v{T3}, 5, v{T2}
        v_sub_u32 v{T1}, v{T1}, v{T3}
        v_mul_u32_u24 v{A}, 40, v{T2}
        v_lshrrev_b32 v{T2}, 1, v{T1}
        v_mul_u32_u24 v{T2}, 20, v{T2}
        v_and_b32 v{T3}, 1, v{T1}
        v_lshl_add_u32 v{T2}, v{T3}, 3, v{T2}
        v_cmp_eq_u32 vcc, 4, v{T1}
        v_mov_b32 v{ST}, 20
        s_nop 0
        v_cndmask_b32 v{T2}, v{T2}, 16, vcc
        v_cndmask_b32 v{ST}, 4, v{ST}, vcc
        v_add_u32 v{A}, v{A}, v{T2}
        """)
    a("s_waitcnt lgkmcnt(0)")
    srd(a, STMP, P_WO, 640*1280)
    a(f"s_branch {lj}")
    a.label(lh)
    a(f"""
    s_sub_u32 s{sT0}, s{sKp}, 20
    s_mul_i32 s{sT1}, s{sT0}, 86
    s_lshr_b32 s{sT1}, s{sT1}, 8
    s_mul_i32 s{sT1}, s{sT1}, 3
    s_sub_u32 s{sT1}, s{sT0}, s{sT1}
    s_lshl_b32 s{sT0}, s{sT0}, 5
    v_lshl_add_u32 v{A0}, v{T0}, 2, s{sT0}
    s_cmp_eq_u32 s{sT1}, 1
    s_cselect_b32 s{sT1}, 16, 8
    s_cselect_b32 s{sT2}, 8, 16
    v_add_u32 v{A1}, s{sT1}, v{A0}
    v_mov_b32 v{ST0}, s{sT2}
    v_mov_b32 v{ST1}, s{sT2}
    """)
    a("s_waitcnt lgkmcnt(0)")
    srd(a, STMP, P_W2, 1728*1280)
    a.label(lj)
    a(f"""
    v_bfe_u32 v{T1}, v{LANE}, 3, 2
    v_and_b32 v{T2}, 7, v{LANE}
    v_lshlrev_b32 v{T2}, 4, v{T2}
    s_lshl_b32 s{sT0}, s{sCh}, 7
    s_lshl_b32 s{sT1}, s{sW}, 12
    """)
    for q in range(4):
        A, ST = ((A0, ST0), (A1, ST1))[q & 1]
        a(f"v_add_u32 v{T3}, v{A}, v{T1}")
        if q >> 1: a(f"v_add_u32 v{T3}, v{T3}, v{ST}")
        a(f"v_mul_u32_u24 v{T3}, 1280, v{T3}\nv_add3_u32 v{SIDE+4+q}, v{T3}, v{T2}, s{sT0}")
    if issue: t_issue(a, False)
    a(f"s_mul_i32 s{sT2}, s{sKp}, 5\ns_lshl_b32 s{sT3}, s{sCh}, 2")
    for t in range(4):
        a(f"""
        s_add_u32 s{sT0}, s{sT3}, {t}
        s_mul_i32 s{sT1}, s{sT0}, 52
        s_lshr_b32 s{sT1}, s{sT1}, 8
        s_mul_i32 s{sT1}, s{sT1}, 365
        s_add_u32 s{sT0}, s{sT0}, s{sT1}
        s_add_u32 s{sT0}, s{sT0}, s{sT2}
        s_lshl_b32 s{sTS[t]}, s{sT0}, 10
        """)
    a(f"s_branch {ld}")
    a.label(lst)
    if stat: stat_loads(a, False)
    a.label(ld)
def stat_loads(a, guard=True):
    ld = a.uid("Lsl")
    if guard: a(f"s_cmp_lt_u32 s{sW}, 6\ns_cbranch_scc1 {ld}")
    stat_row(a)
    a(f"s_mul_i32 s{sT0}, s{sT0}, 1280\nv_mul_u32_u24 v{T0}, 1280, v{G}\nv_lshl_add_u32 v{T0}, v{R}, 4, v{T0}")
    for i in range(5): a(f"buffer_load_dwordx4 {vr(SIDE+4*i,4)}, v{T0}, {sr(SX,4)}, s{sT0} offen offset:{256*i}")
    a.label(ld)
for u in range(1001): assert (u*6554)>>16 == u//10
for u in range(80): assert (u*205)>>10 == u//5
for u in range(54): assert (u*86)>>8 == u//3
for N in range(40): assert (N*52)>>8 == N//5

def t_work(a):
    lab = a.uid("Ltw")
    a(f"s_sub_u32 s{sT1}, s{sW}, 3\ns_cmp_gt_u32 s{sT1}, 2\ns_cbranch_scc1 {lab}")
    t_part(a)
    a.label(lab)
def s_work(a, vPS):
    lab = a.uid("Ltw")
    a(f"s_cmp_lt_u32 s{sW}, 6\ns_cbranch_scc1 {lab}")
    s_part(a, SIDE+20)
    a(f"v_mov_b32 v{SIDE}, v{SIDE+20}\nv_mov_b32 v{SIDE+1}, v{SIDE+21}\nv_mov_b32 v{SIDE+2}, s{sNON}\nv_mov_b32 v{SIDE+3}, s{sNON+1}")
    stat_row(a)
    a(f"""
    s_lshl_b32 s{sT0}, s{sT0}, 4
    s_add_u32 s{sT0}, s{sT0}, {STO}
    v_lshlrev_b32 v{T0}, 4, v{G}
    s_mov_b32 exec_lo, 0x00010001
    s_mov_b32 exec_hi, 0x00010001
    buffer_store_dwordx4 {vr(SIDE,4)}, v{T0}, {sr(SFL,4)}, s{sT0} offen sc1
    s_mov_b64 exec, -1
    """)
    a.label(lab)
def t_part(a):
    tmp = SIDE
    a(f"""
    v_lshrrev_b32 v{T0}, 2, v{LANE}
    v_lshlrev_b32 v{T0}, 7, v{T0}
    v_and_b32 v{T1}, 3, v{LANE}
    v_lshl_add_u32 v{T0}, v{T1}, 3, v{T0}
    s_lshl_b32 s{sT0}, s{sW}, 12
    s_add_u32 s{sT0}, s{sT0}, {L_TST-3*4096}
    v_add_u32 v{T0}, s{sT0}, v{T0}
    """)
    for t in range(4):
        a(f"ds_read_b64_tr_b16 {vr(tmp+4*t,2)}, v{T0} offset:{32*t}")
        a(f"ds_read_b64_tr_b16 {vr(tmp+4*t+2,2)}, v{T0} offset:{32*t+2048}")
    for t in range(4):
        a(f"s_waitcnt lgkmcnt({6-2*t})\nbuffer_store_dwordx4 {vr(tmp+4*t,4)}, v{VL}, {sr(SFL,4)}, s{sTS[t]} offen sc1")
def s_part(a, vPS):
    tmp = SIDE
    s, q = vPS, vPS+1
    a(f"v_mov_b32 v{s}, 0\nv_mov_b32 v{q}, 0\nv_mov_b32 v{T0}, 0x3f803f80")
    for j in range(20):
        a(f"v_dot2c_f32_bf16 v{s}, v{tmp+j}, v{T0}\nv_dot2c_f32_bf16 v{q}, v{tmp+j}, v{tmp+j}")
    a("s_nop 2")
    for sh in (8, 4, 2, 1):
        a(f"v_add_f32_dpp v{s}, v{s}, v{s} row_ror:{sh} row_mask:0xf bank_mask:0xf")
        a(f"v_add_f32_dpp v{q}, v{q}, v{q} row_ror:{sh} row_mask:0xf bank_mask:0xf")
        a("s_nop 0")
    a(f"""
    v_mul_f32 v{s}, {f32(1/640)}, v{s}
    v_mul_f32 v{q}, {f32(1/640)}, v{q}
    v_fma_f32 v{q}, -v{s}, v{s}, v{q}
    v_max_f32 v{q}, 0, v{q}
    v_cvt_pk_bf16_f32 v{T0}, v{s}, v{q}
    v_lshlrev_b32 v{T1}, 16, v{T0}
    v_and_b32 v{q}, 0xffff0000, v{T0}
    v_add_f32 v{q}, {f32(1e-5)}, v{q}
    v_cvt_pk_bf16_f32 v{q}, v{q}, v{q}
    v_and_b32 v{q}, 0xffff0000, v{q}
    v_sqrt_f32 v{q}, v{q}
    s_nop 0
    v_cvt_pk_bf16_f32 v{q}, v{q}, v{q}
    v_and_b32 v{q}, 0xffff0000, v{q}
    v_rcp_f32 v{s}, v{q}
    s_nop 0
    v_mul_f32 v{q}, v{T1}, v{s}
    v_sub_f32 v{q}, 0, v{q}
    """)

def p2_setup(a, VTF):
    a(f"""
    s_and_b32 s{sT0}, s2, 7
    s_lshl_b32 s{sR2}, s{sT0}, 2
    s_bfe_u32 s{sT1}, s2, 0x20003
    s_add_u32 s{sR2}, s{sR2}, s{sT1}
    s_lshr_b32 s{sC2}, s2, 5
    s_cmp_lt_u32 s{sW}, 2
    s_cselect_b32 s{sN2}, 10, 9
    s_lshl_b32 s{sT1}, s{sT1}, 1
    s_add_u32 s{sT1}, s{sT1}, s{sC2}
    s_cmp_ge_u32 s{sT1}, s{sN2}
    s_cselect_b32 s{sT2}, s{sN2}, 0
    s_sub_u32 s{sK}, s{sT1}, s{sT2}
    """)
    for t in range(1, 10):
        a(f"s_add_u32 s{sK+t}, s{sK+t-1}, 1\ns_cmp_eq_u32 s{sK+t}, s{sN2}\ns_cselect_b32 s{sK+t}, 0, s{sK+t}")
    a(f"s_cmp_lt_u32 s{sW}, 2\ns_cselect_b32 s{sK+9}, s{sK+9}, 0x10000")
    a(f"""
    s_mul_i32 s{sT3}, s{sW}, 9
    s_min_u32 s{sT2}, s{sW}, 2
    s_add_u32 s{sT3}, s{sT3}, s{sT2}
    v_lshrrev_b32 v{T0}, 1, v{LANE}
    s_sub_u32 s{sT2}, s{sN2}, 1
    v_min_u32 v{T0}, s{sT2}, v{T0}
    v_add_u32 v{T0}, s{sT3}, v{T0}
    v_mul_u32_u24 v{T0}, 10, v{T0}
    s_mul_i32 s{sT2}, s{sC2}, 5
    s_lshr_b32 s{sT2}, s{sT2}, 2
    v_and_b32 v{T1}, 1, v{LANE}
    v_add3_u32 v{T0}, v{T0}, v{T1}, s{sT2}
    v_mul_u32_u24 v{T0}, 21846, v{T0}
    v_lshrrev_b32 v{T0}, 16, v{T0}
    v_lshlrev_b32 v{T0}, 3, v{T0}
    v_add_u32 v{VTF}, {TFO}, v{T0}
    s_mul_i32 s{sT2}, s{sC2}, 74
    s_add_u32 s{sT2}, s{sT2}, s{sT3}
    s_mul_i32 s{sT2}, s{sT2}, 5120
    s_add_u32 s{sT2}, s{sT2}, {WT_OFF}
    s_add_u32 s{SWT}, s{P_WS}, s{sT2}
    s_addc_u32 s{SWT+1}, s{P_WS+1}, 0
    s_mul_i32 s{SWT+2}, s{sN2}, 5120
    s_mov_b32 s{SWT+3}, 0x00020000
    s_mul_i32 s{sT2}, s{sR2}, 74
    s_add_u32 s{sT2}, s{sT2}, s{sT3}
    s_lshl_b32 s{sT2}, s{sT2}, 12
    s_add_u32 s{SPF}, s{P_WS}, s{sT2}
    s_addc_u32 s{SPF+1}, s{P_WS+1}, 0
    s_lshl_b32 s{SPF+2}, s{sN2}, 12
    s_mov_b32 s{SPF+3}, 0x00020000
    """)
    ly, lyd = a.uid("Ly"), a.uid("Ly")
    a(f"""
    s_cmp_ge_u32 s{sW}, 2
    s_cbranch_scc1 {ly}
    s_lshr_b32 s{sT0}, s{sR2}, 1
    s_lshl_b32 s{sT0}, s{sT0}, 7
    s_lshl_b32 s{sT1}, s{sW}, 5
    s_add_u32 s{sT0}, s{sT0}, s{sT1}
    s_add_u32 s{sT0}, s{sT0}, {FLB+16*128}
    v_and_b32 v{T0}, 3, v{LANE}
    v_lshl_add_u32 v{VF}, v{T0}, 3, s{sT0}
    s_branch {lyd}
    """)
    a.label(ly)
    a(f"""
    s_lshl_b32 s{sT0}, s{sR2}, 6
    s_add_u32 s{sT1}, s{sT0}, 63
    s_mul_i32 s{sT0}, s{sT0}, 27595
    s_lshr_b32 s{sT0}, s{sT0}, 22
    s_mul_i32 s{sT1}, s{sT1}, 27595
    s_lshr_b32 s{sT1}, s{sT1}, 22
    s_sub_u32 s{sT1}, s{sT1}, s{sT0}
    s_lshl_b32 s{sT1}, s{sT1}, 7
    s_lshl_b32 s{sT0}, s{sT0}, 7
    s_sub_u32 s{sT2}, s{sW}, 2
    s_mul_i32 s{sT2}, s{sT2}, 3
    s_lshr_b32 s{sT2}, s{sT2}, 1
    s_lshl_b32 s{sT2}, s{sT2}, 3
    s_add_u32 s{sT0}, s{sT0}, s{sT2}
    s_add_u32 s{sT0}, s{sT0}, {FLB}
    v_and_b32 v{T0}, 1, v{LANE}
    v_lshlrev_b32 v{T0}, 3, v{T0}
    v_bfe_u32 v{T1}, v{LANE}, 1, 1
    v_mul_u32_u24 v{T1}, s{sT1}, v{T1}
    v_add3_u32 v{VF}, v{T0}, v{T1}, s{sT0}
    """)
    a.label(lyd)
    a(f"""
    s_lshl_b32 s{sT0}, s{sR2}, 6
    v_add_u32 v{T0}, s{sT0}, v{R}
    v_mul_u32_u24 v{T0}, 1280, v{T0}
    v_lshl_add_u32 v{T0}, v{G}, 3, v{T0}
    s_mul_i32 s{sT0}, s{sC2}, 160
    v_add_u32 v{VXO}, s{sT0}, v{T0}
    """)
for u in range(740): assert (u*21846)>>16 == u//3
for x in range(2048): assert (x*27595)>>22 == x//152

class Inter:
    def __init__(s, a, groups, every): s.a, s.g, s.e, s.n = a, list(groups), every, 0
    def __call__(s, txt):
        for l in lines(txt):
            s.a(l); s.n += 1
            if s.n % s.e == 0 and s.g:
                for x in s.g.pop(0): s.a(x)
    def flush(s, keep=0):
        while len(s.g) > keep:
            for x in s.g.pop(0): s.a(x)

def gen(stamps=False, PF=4, pff="", qevery=14, fevery=11, exp="", NB=4, dmask=0b10101, tfl="nt", nearly=10, TLB=0):
    global EXP, PFF, DN, DMASK, DPRE, TFL
    EXP = set(exp.split()); PFF = pff; TFL = tfl; DMASK = dmask
    a = Asm(); S = St(a, stamps)
    name = NAME + "_kernel"
    def emit(groups):
        for g in groups:
            for l in g: a(l)
    if stamps: a("s_memrealtime s[96:97]\ns_memtime s[94:95]")
    a(f"s_cmp_ge_u32 s2, 256\ns_cbranch_scc1 Lend")
    if 'badmap' in EXP: a("s_and_b32 s3, s2, 31\ns_lshl_b32 s3, s3, 3\ns_lshr_b32 s2, s2, 5\ns_or_b32 s2, s2, s3")
    a(f"s_load_dwordx16 s[40:55], s[0:1], 0\ns_load_dwordx4 s[56:59], s[0:1], 64\ns_load_dwordx2 s[60:61], s[0:1], 80")
    a(f"""
    v_lshrrev_b32 v{T0}, 6, v0
    v_and_b32 v{LANE}, 63, v0
    v_readfirstlane_b32 s{sW}, v{T0}
    v_lshrrev_b32 v{G}, 4, v{LANE}
    v_and_b32 v{R}, 15, v{LANE}
    v_lshlrev_b32 v{VL}, 4, v{LANE}
    s_lshl_b32 s{sW1K}, s{sW}, 10
    s_mov_b32 s{sI}, 0
    v_lshrrev_b32 v{T0}, 3, v{LANE}
    v_mul_u32_u24 v{T0}, 1280, v{T0}
    s_lshl_b32 s{sT0}, s{sW}, 2
    v_add_u32 v{T1}, s{sT0}, v{G}
    v_xor_b32 v{T1}, v{T1}, v{LANE}
    v_and_b32 v{T1}, 7, v{T1}
    v_lshl_add_u32 v11, v{T1}, 4, v{T0}
    s_and_b32 s{sT0}, s{sW}, 1
    s_lshl_b32 s{sT0}, s{sT0}, 1
    s_and_b32 s{sT1}, s{sW}, 2
    s_lshl_b32 s{sT1}, s{sT1}, 2
    s_add_u32 s{sT0}, s{sT0}, s{sT1}
    s_and_b32 s{sT1}, s{sW}, 4
    s_add_u32 s{sWO}, s{sT0}, s{sT1}
    """)
    def pf_addr(nrow_cu, kper, nst, cidx_s, VD):
        pass
    lx, lq, ld, lw = a.uid("Lpf"), a.uid("Lpf"), a.uid("Lpf"), a.uid("Lpf")
    a(f"""
    s_bfe_u32 s{sT2}, s2, 0x40003
    s_lshr_b32 s{sT3}, s2, 7
    s_and_b32 s{sT0}, s2, 1
    s_bfe_u32 s{sT1}, s2, 0x20001
    s_mov_b32 s{sPG}, 0
    v_mov_b32 v254, 0
    s_cmp_ge_u32 s{sW}, 3
    s_cbranch_scc1 {lw}
    s_cmp_ge_u32 s{sW}, 1
    s_cbranch_scc1 {lq}
    s_lshl_b32 s{sT0}, s{sT0}, 10
    s_lshl_b32 s{sT1}, s{sT1}, 8
    s_lshl_b32 s{sT2}, s{sT2}, 4
    s_add_u32 s{sT0}, s{sT0}, s{sT1}
    s_add_u32 s{sT0}, s{sT0}, s{sT2}
    v_add_u32 v{T0}, s{sT0}, v{R}
    v_mul_u32_u24 v{T0}, 1280, v{T0}
    v_and_b32 v{T1}, 1, v{G}
    v_lshl_add_u32 v254, v{T1}, 7, v{T0}
    s_lshl_b32 s{sT0}, s{sT3}, 8
    s_mov_b32 s{sPFS}, 256
    s_mov_b32 s{sPG}, 1280
    s_waitcnt lgkmcnt(0)
    s_mov_b32 s{sPFO}, 512
    """)
    srd(a, STMP, P_X, XB)
    a(f"buffer_load_dword v255, v254, {sr(STMP,4)}, s{sT0} offen {pff}")
    a(f"s_branch {ld}")
    a.label(lq)
    a(f"""
    s_cmp_eq_u32 s{sW}, 2
    s_cbranch_scc1 {lx}
    v_min_u32 v{T0}, 35, v{LANE}
    v_mul_u32_u24 v{T1}, 57, v{T0}
    v_lshrrev_b32 v{T1}, 9, v{T1}
    v_mul_u32_u24 v{T3}, 9, v{T1}
    v_sub_u32 v{T0}, v{T0}, v{T3}
    s_lshl_b32 s{sT2}, s{sT2}, 2
    v_add_u32 v{T1}, s{sT2}, v{T1}
    v_mul_u32_u24 v{T1}, 3840, v{T1}
    v_mul_u32_u24 v{T3}, 43, v{T0}
    v_lshrrev_b32 v{T3}, 7, v{T3}
    v_mul_u32_u24 v{T3}, 896, v{T3}
    v_lshl_add_u32 v{T0}, v{T0}, 7, v{T3}
    s_mul_i32 s{sT1}, s{sT1}, 320
    s_and_b32 s{sT1}, s{sT1}, 0xffffff80
    v_add3_u32 v254, v{T0}, v{T1}, s{sT1}
    s_mul_i32 s{sT0}, s{sT3}, {128*3840}
    s_add_u32 s{sT1}, s{sT0}, {64*3840}
    s_mov_b32 s{sPFS}, {64*3840}
    s_mov_b32 s{sPG}, {640*3840}
    s_waitcnt lgkmcnt(0)
    s_mov_b32 s{sPFO}, {256*3840}
    """)
    srd(a, STMP, P_WQ, 640*3840)
    a(f"buffer_load_dword v255, v254, {sr(STMP,4)}, s{sT0} offen {pff}")
    a(f"buffer_load_dword v255, v254, {sr(STMP,4)}, s{sT1} offen {pff}")
    a(f"s_branch {ld}")
    a.label(lx)
    a(f"""
    s_and_b32 s{sT0}, s2, 127
    s_mul_i32 s{sT0}, s{sT0}, 3456
    v_min_u32 v{T0}, 26, v{LANE}
    v_lshl_add_u32 v254, v{T0}, 7, s{sT0}
    s_mul_i32 s{sT0}, s{sT3}, {128*3456}
    s_mov_b32 s{sPFS}, {128*3456}
    s_mov_b32 s{sPG}, {640*3456}
    s_waitcnt lgkmcnt(0)
    s_mov_b32 s{sPFO}, {256*3456}
    """)
    srd(a, STMP, P_W1, 640*3456)
    a(f"buffer_load_dword v255, v254, {sr(STMP,4)}, s{sT0} offen {pff}")
    a(f"s_branch {ld}")
    a.label(lw)
    if 'cpf' in EXP:
        lc_ = a.uid("Lcp")
        a(f"""
        s_cmp_lg_u32 s{sW}, 7
        s_cbranch_scc1 {lc_}
        s_getpc_b64 {sr(sNON,2)}
        s_and_b32 s{sNON}, s{sNON}, 0xffffff00
        s_lshr_b32 s{sT0}, s2, 3
        s_mul_i32 s{sT0}, s{sT0}, 10
        v_min_u32 v{T0}, 9, v{LANE}
        v_add_u32 v{T0}, s{sT0}, v{T0}
        v_lshlrev_b32 v{T0}, 7, v{T0}
        v_min_u32 v{T0}, Lend-{lc_}, v{T0}
        global_load_dword v255, v{T0}, {sr(sNON,2)}
        """)
        a.label(lc_)
    ln = a.uid("Ln")
    a(f"s_cmp_lg_u32 s2, 0\ns_cbranch_scc1 {ln}\ns_cmp_lg_u32 s{sW}, 7\ns_cbranch_scc1 {ln}\ns_waitcnt lgkmcnt(0)")
    srd(a, SDBG, P_DBG, 256)
    a(f"""
    s_memrealtime {sr(sNON,2)}
    s_waitcnt lgkmcnt(0)
    s_or_b32 s{sNON}, s{sNON}, 1
    v_mov_b32 v{T0}, s{sNON}
    v_mov_b32 v{T1}, s{sNON+1}
    v_mov_b32 v{T2}, 0
    s_mov_b64 exec, 1
    buffer_store_dwordx2 {vr(T0,2)}, v{T2}, {sr(SDBG,4)}, 0 offen sc1
    s_mov_b64 exec, -1
    """)
    a.label(ln)
    a("s_waitcnt lgkmcnt(0)")
    srd(a, STMP, P_X, XB)
    a(f"s_mov_b32 s{sPFS}, 0\ns_mov_b32 s{sPFO}, 0")
    if 'tup' in EXP: side_loads(a, stat=False)
    a.label(ld)
    S.start()
    srd(a, SX, P_X, XB)
    a(f"""
    s_and_b32 s{sT0}, s2, 1
    s_bfe_u32 s{sT1}, s2, 0x20001
    s_lshr_b32 s{sT2}, s2, 3
    s_cmp_ge_u32 s{sT2}, 16
    s_cbranch_scc1 Lffn
    """)
    def late_srds():
        srd(a, SHO, P_WS, HO_SZ); srd(a, SFL, P_WS, FL_SZ, WT_OFF); srd(a, SDBG, P_DBG, 256)
    def set_stage(c, st): emit([stage_set(c, st)])
    def pretouch(flagoff_s):
        lp = a.uid("Lpt")
        a(f"s_cmp_lg_u32 s{sW}, 7\ns_cbranch_scc1 {lp}")
        stat_row(a)
        a(f"""
        s_lshl_b32 s{sT0}, s{sT0}, 4
        s_add_u32 s{sT0}, s{sT0}, {STO}
        v_mov_b32 v{T0}, s{sT0}
        s_lshl_b32 s{sT0}, s2, 3
        s_add_u32 s{sT0}, s{sT0}, {TFO}
        v_writelane_b32 v{T0}, s{sT0}, 1
        """)
        if flagoff_s is not None:
            a(f"s_add_u32 s{sT0}, s{flagoff_s}, {FLB}\nv_writelane_b32 v{T0}, s{sT0}, 2")
        a(f"buffer_load_dword v255, v{T0}, {sr(SFL,4)}, 0 offen sc1")
        if TLB:
            a(f"v_lshlrev_b32 v{T0}, {TLB}, v{LANE}")
            a(f"buffer_load_dword v255, v{T0}, {sr(SHO,4)}, 0 offen sc1")
            a(f"buffer_load_dword v255, v{T0}, {sr(SFL,4)}, 0 offen sc1")
            srd(a, SPF, P_OUT, XB)
            a(f"buffer_load_dword v255, v{T0}, {sr(SPF,4)}, 0 offen sc1")
            srd(a, SPF, P_B2, 1280)
            a(f"buffer_load_dword v255, v{T0}, {sr(SPF,4)}, 0 offen")
        a.label(lp)
    def pre_loop(c, setup):
        late_srds()
        if 'nopt' not in EXP: pretouch(sHF)
        setup()
        if 'tup' not in EXP: side_loads(a, stat=False, issue=False)
        p2_setup(a, c.VTF)
        S(1)
        a("s_barrier")
        set_stage(c, 0); emit(dmaA(c, a) + dmaB(c, a))
        if 'tup' in EXP:
            a('s_waitcnt vmcnt(6)'); t_work(a)
        a(f"v_mov_b32 v{T0}, 0")
        a(f"buffer_load_dwordx2 {vr(c.VN,2)}, v{T0}, {sr(SDBG,4)}, 0 offen sc1")
        a("s_barrier")
        set_stage(c, 1); emit(dmaA(c, a))
        a(f"s_waitcnt vmcnt(4)")
        S(2)
        a("s_barrier")
        S(3)
        emit(reads(c, 0, 0))
        if 'tup' not in EXP: t_issue(a)
        a(f"s_mov_b32 s{sSLOT}, {c.stg}")
    def alloc_common(c):
        al = Alloc(11)
        c.VX = al(); c.VW = al()
        c.xb = [al(), al()]; c.hb = [al(), al()]; c.wb = [al() for _ in range(c.nF)]
        c.VTF = al(); c.VRA = al(); c.VPS = al(2, 4); c.VN = al(2, 2); c.REC = al(20, 4)
        assert c.VPS == 24
        return al
    def w_voff(c, P):
        a(f"""
        v_cmp_le_u32 vcc, {P}, v{LANE}
        v_mov_b32 v{T1}, {c.wrowb}
        v_subrev_u32 v{T0}, {P}, v{LANE}
        v_cndmask_b32 v{T0}, v{LANE}, v{T0}, vcc
        v_cndmask_b32 v{T1}, 0, v{T1}, vcc
        s_mov_b32 s{sWM}, -1
        s_mov_b32 s{sWM+1}, {(1 << (2*P-32)) - 1}
        s_mul_i32 s{sWB}, s{sW}, {2*c.wrow}
        s_add_u32 s{sWB}, s{sWB}, {c.xsz}
        s_mul_i32 s{sWO}, s{sWO}, {c.wrowb}
        """)
    def publish(younger):
        lp = a.uid("Lp")
        a(f"""
        s_waitcnt vmcnt({younger})
        s_barrier
        s_cmp_lg_u32 s{sW}, 0
        s_cbranch_scc1 {lp}
        v_mov_b32 v{T0}, s{sNON}
        v_mov_b32 v{T1}, s{sNON+1}
        v_mov_b32 v{T2}, {FLB}
        s_mov_b64 exec, 1
        buffer_store_dwordx2 {vr(T0,2)}, v{T2}, {sr(SFL,4)}, s{sHF} offen sc1
        s_mov_b64 exec, -1
        """)
        a.label(lp)
        S(7)
    c = Cfg()
    c.nM, c.nF, c.nh, c.wrow, c.wrowb, c.stg, c.xsz, c.nxm, c.duty = 4, 4, 2, 480, 3840, 49152, 18432, 2, False
    al = alloc_common(c)
    c.acc = [[al(4,4) for i in range(4)] for f in range(4)]
    c.acch = [al(4,4) for f in range(2)]
    lowtop = al.n
    al = Alloc(WREG)
    c.X = [[al(4,4) for i in range(4)] for s in range(2)]
    c.XH = [al(4,4) for s in range(2)]
    c.W = [[al(4,4) for f in range(4)] for s in range(2)]
    assert al.n == 208
    c.early = (list(range(20, 30)) + [18, 19] + list(range(30, 38)))[:nearly]
    a(f"""
    s_lshl_b32 s{sRB}, s{sT0}, 3
    s_and_b32 s{sT3}, s{sT2}, 7
    s_add_u32 s{sRB}, s{sRB}, s{sT3}
    s_lshl_b32 s{sCB}, s{sT1}, 1
    s_lshr_b32 s{sT3}, s{sT2}, 3
    s_add_u32 s{sCB}, s{sCB}, s{sT3}
    s_lshl_b32 s{sT3}, s{sRB}, 7
    s_lshl_b32 s{sT0}, s{sW}, 3
    s_add_u32 s{sT3}, s{sT3}, s{sT0}
    s_sub_u32 s{sT3}, s{sT3}, 16
    s_max_i32 s{sT0}, s{sT3}, 0
    s_mul_i32 s{sXO}, s{sT0}, 1280
    s_add_u32 s{sT3}, s{sT3}, 64
    s_mul_i32 s{sXO+1}, s{sT3}, 1280
    s_add_u32 s{sXO+2}, s{sXO+1}, 81920
    """)
    w_voff(c, 30)
    a(f"""
    v_mul_u32_u24 v{T2}, 26, v{T0}
    v_lshrrev_b32 v{T2}, 8, v{T2}
    v_mul_u32_u24 v{T2}, 1120, v{T2}
    v_lshl_add_u32 v{T0}, v{T0}, 4, v{T2}
    v_add_u32 v{c.VW}, v{T0}, v{T1}
    s_mul_i32 s{sT0}, s{sCB}, 160
    s_add_u32 s{sWO}, s{sWO}, s{sT0}
    """)
    srd(a, SW, P_WQ, 640*3840)
    a(f"s_add_u32 s{sT0}, s{sRB}, 16\ns_lshl_b32 s{sT0}, s{sT0}, 7\ns_lshl_b32 s{sT1}, s{sCB}, 3\ns_add_u32 s{sHF}, s{sT0}, s{sT1}")
    def q_setup():
        a(f"s_lshr_b32 s{sMH}, s{sW}, 2\ns_and_b32 s{sT0}, s{sW}, 3\ns_lshl_b32 s{sT0}, s{sT0}, 2\ns_lshl_b32 s{sT1}, s{sMH}, 1")
        for f in range(4):
            a(f"s_xor_b32 s{sT2}, s{sT1}, {f}\ns_add_u32 s{sT2}, s{sT2}, s{sT0}\ns_min_u32 s{sNT+f}, s{sT2}, 14")
        a(f"""
        s_mov_b32 s{sMSK}, 0xfffefffe
        s_mov_b32 s{sMSK+1}, 0xfffefffe
        v_lshrrev_b32 v{T0}, 1, v{R}
        v_xor_b32 v{T0}, v{T0}, v{G}
        v_lshlrev_b32 v{T0}, 4, v{T0}
        v_lshl_add_u32 v{T0}, v{R}, 7, v{T0}
        v_add_u32 v{c.hb[0]}, {c.stg}, v{T0}
        v_xor_b32 v{c.hb[1]}, 64, v{c.hb[0]}
        s_lshl_b32 s{sT0}, s{sMH}, 13
        s_add_u32 s{sT0}, s{sT0}, 2048
        v_add_u32 v{c.xb[0]}, s{sT0}, v{c.hb[0]}
        v_add_u32 v{c.xb[1]}, s{sT0}, v{c.hb[1]}
        """)
        rho_local(a, T0, T1)
        a(f"v_mul_u32_u24 v{T0}, 480, v{T0}\nv_and_b32 v{T1}, 3, v{LANE}\nv_lshl_add_u32 v{T0}, v{T1}, 3, v{T0}")
        for f in range(4):
            a(f"s_lshl_b32 s{sT0}, s{sNT+f}, 5\ns_add_u32 s{sT0}, s{sT0}, {c.xsz+c.stg}\nv_add_u32 v{c.wb[f]}, s{sT0}, v{T0}")
        a(f"v_lshlrev_b32 v{c.VRA}, 4, v{R}")
        a(f"""
        s_lshl_b32 s{sT0}, s{sRB}, 7
        s_lshl_b32 s{sT1}, s{sMH}, 6
        s_add_u32 s{sT1}, s{sT1}, s{sT0}
        s_lshl_b32 s{sT1}, s{sT1}, 4
        s_add_u32 s{sRM}, s{sT1}, {STO}
        s_sub_u32 s{sT0}, s{sT0}, 16
        s_max_i32 s{sT0}, s{sT0}, 0
        s_lshl_b32 s{sT0}, s{sT0}, 4
        s_add_u32 s{sRH}, s{sT0}, {STO}
        """)
        for s in range(2):
            for r in range(4): a(f"v_mov_b32 v{c.XH[s]+r}, 0x3f803f80")
    pre_loop(c, q_setup)
    rec = [[f"buffer_load_dwordx4 {vr(c.REC+4*i,4)}, v{c.VRA}, {sr(SFL,4)}, s{sRM} offen offset:{256*i} sc1"] for i in range(4)]
    rec.append([f"buffer_load_dwordx4 {vr(c.REC+16,4)}, v{c.VRA}, {sr(SFL,4)}, s{sRH} offen sc1"])
    CSR = lowtop; CA = 11; WA = 15
    assert CSR + 16 <= WREG and WA + 6 <= c.VTF
    c.tailx = [lines(f"""
        s_lshl_b32 s{sT3}, s{sMH}, 6
        s_add_u32 s{sT3}, s{sT3}, 16
        s_mul_i32 s{sT3}, s{sT3}, {RS}
        v_mul_u32_u24 v{T2}, {RS}, v{R}
        v_lshlrev_b32 v{T3}, 4, v{G}""")]
    for f in range(4):
        c.tailx.append(lines(f"""
        s_lshl_b32 s{sT0}, s{sNT+f}, 6
        s_add_u32 s{sT0}, s{sT0}, {L_CS}
        v_add_u32 v{CA+f}, s{sT0}, v{T3}
        s_mul_i32 s{sT0}, s{sNT+f}, 52
        s_lshr_b32 s{sT0}, s{sT0}, 8
        s_mul_i32 s{sT2}, s{sT0}, 5
        s_sub_u32 s{sT2}, s{sNT+f}, s{sT2}
        s_lshl_b32 s{sT2}, s{sT2}, 2
        s_mul_i32 s{sT0}, s{sT0}, 192
        v_add_u32 v{T0}, s{sT2}, v{G}"""))
        c.tailx.append(lines(f"""
        v_mul_u32_u24 v{T1}, 52, v{T0}
        v_lshrrev_b32 v{T1}, 8, v{T1}
        v_add_u32 v{T0}, v{T0}, v{T1}"""))
        c.tailx.append(lines(f"v_lshl_add_u32 v{T0}, v{T0}, 3, v{T2}") + ([f"v_add_u32 v{WA+4+f}, s{sT0}, v{T0}"] if f < 2 else []) +
                       lines(f"s_add_u32 s{sT0}, s{sT0}, s{sT3}\nv_add_u32 v{WA+f}, s{sT0}, v{T0}"))
    main_loop(a, c, S, "q", rec)
    a(f"s_not_b64 exec, {sr(sMSK,2)}")
    for f in range(2): a(f"ds_write_b128 v{CA+f}, {vr(c.acch[f],4)}")
    a("s_mov_b64 exec, -1")
    a(f"s_waitcnt vmcnt({c.yrec})")
    poll(a, sum(rec, []), [c.REC+4*i+2 for i in range(5)], True)
    S(55)
    a("s_waitcnt lgkmcnt(0)\ns_barrier")
    S(56)
    for f in range(4): a(f"ds_read_b128 {vr(CSR+4*f,4)}, v{CA+f}")
    rest = [p for p in list(range(30, 38)) + list(range(30)) if p not in c.early]
    I = Inter(a, [wfrag(p) for p in rest], qevery)
    TP = c.VPS
    for f in range(4):
        I(f"s_waitcnt lgkmcnt({3-f if f == 0 else 15})" if f == 0 else "s_nop 0")
        if f == 1: I("s_waitcnt lgkmcnt(5)")
        tl = [(c.acc[f][i], WA+f, i*16*RS, c.REC+4*i) for i in range(4)]
        if f < 2: tl.append((c.acch[f], WA+4+f, 0, c.REC+16))
        for (ac, ad, off, st) in tl:
            I(f"""
            v_pk_mul_f32 {vr(TP,2)}, {vr(CSR+4*f,2)}, {vr(st,2)} op_sel:[0,1] op_sel_hi:[1,1]
            v_pk_mul_f32 {vr(TP+2,2)}, {vr(CSR+4*f+2,2)}, {vr(st,2)} op_sel:[0,1] op_sel_hi:[1,1]
            v_pk_fma_f32 {vr(ac,2)}, {vr(ac,2)}, {vr(st,2)}, {vr(TP,2)} op_sel:[0,0,0] op_sel_hi:[1,0,1]
            v_pk_fma_f32 {vr(ac+2,2)}, {vr(ac+2,2)}, {vr(st,2)}, {vr(TP+2,2)} op_sel:[0,0,0] op_sel_hi:[1,0,1]
            v_cvt_pk_bf16_f32 v{ac}, v{ac}, v{ac+1}
            v_cvt_pk_bf16_f32 v{ac+1}, v{ac+2}, v{ac+3}
            ds_write_b64 v{ad}, {vr(ac,2)} offset:{off}
            """)
    S(57)
    al = Alloc(11)
    AB = al(); OV = al(); OV1 = al(); L31 = al()
    MX = al(); SM_ = al()
    Q = al(12, 2); KB = [al(10, 2) for _ in range(5)]
    L = al(8, 2); PL = al(8); PH = al(8); O = al(20, 2); TPa = al(4)
    assert al.n <= WREG, al.n
    I(f"""
    s_and_b32 s{sT0}, s{sW}, 1
    s_lshr_b32 s{sT3}, s{sW}, 1
    s_lshl_b32 s{sT2}, s{sT3}, 5
    s_add_u32 s{sT2}, s{sT2}, 2
    v_and_b32 v{L31}, 31, v{LANE}
    v_add_u32 v{T0}, s{sT2}, v{L31}
    v_mul_u32_u24 v{T0}, {RS}, v{T0}
    v_lshrrev_b32 v{T1}, 5, v{LANE}
    v_mul_u32_u24 v{T2}, 48, v{T1}
    s_mul_i32 s{sT2}, s{sT0}, 96
    v_add3_u32 v{AB}, v{T0}, v{T2}, s{sT2}
    s_lshl_b32 s{sT2}, s{sCB}, 1
    s_add_u32 s{sT2}, s{sT2}, s{sT0}
    s_mul_i32 s{sT2}, s{sT2}, 5
    v_lshl_add_u32 v{T1}, v{T1}, 1, s{sT2}
    v_bfe_u32 v{T0}, v{LANE}, 4, 1
    v_lshlrev_b32 v{T0}, 10, v{T0}
    v_lshl_add_u32 v{T0}, v{R}, 4, v{T0}
    v_lshrrev_b32 v{T2}, 2, v{T1}
    v_lshl_add_u32 v{T2}, v{T2}, 12, v{T0}
    v_and_b32 v{T3}, 3, v{T1}
    v_lshl_add_u32 v{OV}, v{T3}, 8, v{T2}
    v_add_u32 v{T1}, 1, v{T1}
    v_lshrrev_b32 v{T2}, 2, v{T1}
    v_lshl_add_u32 v{T2}, v{T2}, 12, v{T0}
    v_and_b32 v{T3}, 3, v{T1}
    v_lshl_add_u32 v{OV1}, v{T3}, 8, v{T2}
    s_lshl_b32 s{sKX}, s{sRB}, 1
    s_add_u32 s{sKX}, s{sKX}, s{sMH}
    s_mul_i32 s{sKX}, s{sKX}, {74*4096}
    s_and_b32 s{sT1}, s{sT3}, 1
    s_lshl_b32 s{sT1}, s{sT1}, 11
    s_add_u32 s{sKX}, s{sKX}, s{sT1}
    s_add_u32 s{sT2}, s{sT2}, 4
    s_lshr_b32 s{sKW}, s{sT2}, 2
    s_lshl_b32 s{sKW}, s{sKW}, 12
    s_and_b32 s{sT2}, s{sT2}, 3
    s_lshl_b32 s{sT2}, s{sT2}, 8
    s_add_u32 s{sKW}, s{sKW}, s{sT2}
    s_add_u32 s{sKW}, s{sKW}, s{sKX}
    s_waitcnt lgkmcnt(0)
    s_barrier
    """)
    OV2 = T0
    S(5)
    def rd(dst, off):
        return f"ds_read_b128 {vr(dst,4)}, v{AB} offset:{off}\nds_read_b128 {vr(dst+4,4)}, v{AB} offset:{off+16}\nds_read_b64 {vr(dst+8,2)}, v{AB} offset:{off+32}"
    offs = [(14-2*w)*RS+192 for w in range(8)] + [(14-2*w)*RS+384 for w in range(8)]
    issued = 0
    def issue(n):
        nonlocal issued
        for _ in range(n):
            if issued < 16:
                I(rd(KB[issued % 5], offs[issued])); issued += 1
    def need(idx): I(f"s_waitcnt lgkmcnt({3*(issued-1-idx)})")
    I(rd(Q, 14*RS)); issue(4)
    for w in range(8): I(f"v_mov_b32 v{L+w}, 0")
    for d in range(20): I(f"v_mov_b32 v{O+d}, 0")
    for wp in range(4):
        w0, w1 = 2*wp, 2*wp+1
        need(w1)
        for d in range(10):
            for w in (w0, w1): I(f"v_dot2c_f32_bf16 v{L+w}, v{Q+d}, v{KB[w%5]+d}")
        issue(3 if wp == 0 else 2)
    lm = a.uid("Lm")
    a(f"s_or_b32 s{sT2}, s{sRB}, s{sT3}\ns_cmp_lg_u32 s{sT2}, 0\ns_cbranch_scc1 {lm}")
    a(f"v_mov_b32 v{TPa}, {f32(-1e9)}")
    for w in range(1, 8):
        a(f"v_cmp_le_u32 vcc, {2*w}, v{L31}\ns_nop 1\nv_cndmask_b32 v{L+w}, v{TPa}, v{L+w}, vcc")
    a.label(lm)
    cexp = (20 ** -0.5) * math.log2(math.e)
    I(f"""
    v_max3_f32 v{MX}, v{L}, v{L+1}, v{L+2}
    v_max3_f32 v{SM_}, v{L+3}, v{L+4}, v{L+5}
    v_max3_f32 v{MX}, v{MX}, v{L+6}, v{L+7}
    v_max_f32 v{MX}, v{MX}, v{SM_}
    """)
    for w in range(8): I(f"v_sub_f32 v{L+w}, v{L+w}, v{MX}")
    for w in range(8): I(f"v_mul_f32 v{L+w}, {f32(cexp)}, v{L+w}")
    for w in range(8): I(f"v_exp_f32 v{L+w}, v{L+w}")
    I(f"""
    v_add_f32 v{TPa}, v{L}, v{L+1}
    v_add_f32 v{TPa+1}, v{L+2}, v{L+3}
    v_add_f32 v{TPa+2}, v{L+4}, v{L+5}
    v_add_f32 v{TPa+3}, v{L+6}, v{L+7}
    v_add_f32 v{TPa}, v{TPa}, v{TPa+1}
    v_add_f32 v{TPa+2}, v{TPa+2}, v{TPa+3}
    v_add_f32 v{SM_}, v{TPa}, v{TPa+2}
    v_rcp_f32 v{SM_}, v{SM_}
    s_nop 0
    """)
    for w in range(8): I(f"v_mul_f32 v{L+w}, v{L+w}, v{SM_}")
    for w in range(8): I(f"v_cvt_pk_bf16_f32 v{PL+w}, v{L+w}, 0\nv_cvt_pk_bf16_f32 v{PH+w}, 0, v{L+w}")
    for w in range(8):
        need(8+w)
        for d in range(10):
            I(f"v_dot2c_f32_bf16 v{O+2*d}, v{KB[(8+w)%5]+d}, v{PL+w}\nv_dot2c_f32_bf16 v{O+2*d+1}, v{KB[(8+w)%5]+d}, v{PH+w}")
        issue(1)
    S(58)
    qleft = I.g; I.g = []
    for u in (0,1,2,3,8,9,4,5,6,7): a(f"v_cvt_pk_bf16_f32 v{Q+u}, v{O+2*u}, v{O+2*u+1}")
    a(f"""
    buffer_store_dwordx4 {vr(Q,4)}, v{OV}, {sr(SHO,4)}, s{sKX} offen sc1
    v_permlane32_swap_b32 v{Q+8}, v{Q+10}
    v_permlane32_swap_b32 v{Q+9}, v{Q+11}
    buffer_store_dwordx4 {vr(Q+4,4)}, v{OV1}, {sr(SHO,4)}, s{sKX} offen sc1
    s_mov_b32 exec_hi, 0
    buffer_store_dwordx4 {vr(Q+8,4)}, v{OV2}, {sr(SHO,4)}, s{sKW} offen sc1
    s_mov_b64 exec, -1
    """)
    S(6)
    a("s_barrier")
    qleft = qleft + [wfrag(p) for p in range(38, 45)]
    emit(qleft[:NB])
    publish(NB)
    emit(qleft[NB:])
    a("s_branch Lphase2")
    a.label("Lffn")
    c = Cfg()
    c.nM, c.nF, c.nh, c.wrow, c.wrowb, c.stg, c.xsz, c.nxm, c.duty = 5, 3, 0, 384, 3456, 49152, 20480, 4, True
    al = alloc_common(c)
    B1 = al(8, 2)
    c.acc = [[al(4,4) for i in range(5)] for f in range(3)]
    lowtop = al.n
    eal = al
    al = Alloc(WREG)
    c.X = [[al(4,4) for i in range(5)] for s in range(2)]
    c.W = [[al(4,4) for f in range(3)] for s in range(2)]
    assert al.n <= 208
    c.early = (list(range(20, 30)) + [18, 19] + list(range(30, 38)))[:nearly]
    a(f"""
    s_sub_u32 s{sT2}, s{sT2}, 16
    s_lshl_b32 s{sT1}, s{sT1}, 4
    s_add_u32 s{sT1}, s{sT1}, s{sT2}
    s_cmp_ge_u32 s{sT1}, 63
    s_cbranch_scc1 Lidle
    s_mul_i32 s{sCB}, s{sT1}, 37
    s_lshr_b32 s{sCB}, s{sCB}, 8
    s_sub_u32 s{sT3}, s{sCB}, s{sT0}
    s_mul_i32 s{sT3}, s{sT3}, 7
    s_sub_u32 s{sRB}, s{sT1}, s{sT3}
    s_mul_i32 s{sT3}, s{sRB}, {FROWS}
    s_lshl_b32 s{sT0}, s{sW}, 3
    s_add_u32 s{sT3}, s{sT3}, s{sT0}
    s_mul_i32 s{sXO}, s{sT3}, 1280
    s_add_u32 s{sXO+1}, s{sXO}, 81920
    s_add_u32 s{sXO+2}, s{sXO}, 163840
    """)
    w_voff(c, 24)
    a(f"""
    s_and_b32 s{sT0}, s{sW}, 3
    s_lshl_b32 s{sT0}, s{sT0}, 1
    v_xor_b32 v{T0}, s{sT0}, v{T0}
    v_lshl_add_u32 v{c.VW}, v{T0}, 4, v{T1}
    s_mul_i32 s{sT0}, s{sCB}, 384
    s_add_u32 s{sWO}, s{sWO}, s{sT0}
    """)
    srd(a, SW, P_W1, 640*3456)
    srd(a, SWT, P_B1, 3456)
    a(f"s_lshl_b32 s{sT0}, s{sRB}, 7\ns_lshl_b32 s{sT1}, s{sCB}, 3\ns_add_u32 s{sHF}, s{sT0}, s{sT1}")
    RHO = c.hb[0]
    def f_setup():
        a(f"""
        s_lshr_b32 s{sMH}, s{sW}, 2
        s_bfe_u32 s{sT0}, s{sW}, 0x10001
        s_and_b32 s{sT1}, s{sW}, 1
        s_mul_i32 s{sT0}, s{sT0}, 6
        s_lshl_b32 s{sT2}, s{sT1}, 2
        s_add_u32 s{sNT}, s{sT0}, s{sT2}
        s_add_u32 s{sNT+1}, s{sNT}, 1
        s_add_u32 s{sNT+2}, s{sT0}, s{sT1}
        s_add_u32 s{sNT+2}, s{sNT+2}, 2
        s_cmp_eq_u32 s{sMH}, 0
        s_cselect_b32 s{sMSK}, -1, 0x7fff7fff
        s_cselect_b32 s{sMSK+1}, -1, 0x7fff7fff
        v_lshrrev_b32 v{T0}, 1, v{R}
        v_xor_b32 v{T0}, v{T0}, v{G}
        v_lshlrev_b32 v{T0}, 4, v{T0}
        v_lshl_add_u32 v{T0}, v{R}, 7, v{T0}
        s_mul_i32 s{sT0}, s{sMH}, {5*2048}
        s_add_u32 s{sT0}, s{sT0}, {c.stg}
        v_add_u32 v{c.xb[0]}, s{sT0}, v{T0}
        v_xor_b32 v{c.xb[1]}, 64, v{c.xb[0]}
        """)
        rho_local(a, T0, T1)
        a(f"""
        v_bfe_u32 v{T2}, v{T0}, 1, 2
        v_mul_u32_u24 v{T0}, 384, v{T0}
        v_and_b32 v{T1}, 3, v{LANE}
        v_lshl_add_u32 v{T0}, v{T1}, 3, v{T0}
        v_add_u32 v{T0}, {c.xsz+c.stg}, v{T0}
        """)
        for f in range(3):
            a(f"v_xor_b32 v{T1}, s{sNT+f}, v{T2}\nv_lshl_add_u32 v{c.wb[f]}, v{T1}, 5, v{T0}")
        a(f"""
        s_mul_i32 s{sT0}, s{sRB}, {FROWS}
        s_mul_i32 s{sT1}, s{sMH}, 80
        s_add_u32 s{sT0}, s{sT0}, s{sT1}
        v_add_u32 v{RHO}, s{sT0}, v{R}
        v_lshlrev_b32 v{T0}, 4, v{RHO}
        v_add_u32 v{c.VRA}, {STO}, v{T0}
        """)
        for s in range(2):
            for r in range(4): a(f"v_mov_b32 v{c.X[s][4]+r}, 0x3f803f80")
        a(f"v_lshlrev_b32 v{T0}, 3, v{G}\ns_mul_i32 s{sT2}, s{sCB}, 384")
        for f in range(3):
            a(f"s_lshl_b32 s{sT1}, s{sNT+f}, 5\ns_add_u32 s{sT1}, s{sT1}, s{sT2}")
            a(f"buffer_load_dwordx2 {vr(B1+2*f,2)}, v{T0}, {sr(SWT,4)}, s{sT1} offen")
    pre_loop(c, f_setup)
    rec = [[f"v_add_u32 v{T3}, {256*i}, v{c.VRA}", f"v_min_u32 v{T3}, {STO+2047*16}, v{T3}",
            f"buffer_load_dwordx4 {vr(c.REC+4*i,4)}, v{T3}, {sr(SFL,4)}, 0 offen sc1"] for i in range(5)]
    CA = 17
    c.tailx = [[f"v_lshlrev_b32 v{T3}, 4, v{G}"]] + [lines(f"s_lshl_b32 s{sT0}, s{sNT+f}, 6\ns_add_u32 s{sT0}, s{sT0}, {L_CS}\nv_add_u32 v{CA+f}, s{sT0}, v{T3}") for f in range(3)]
    main_loop(a, c, S, "f", rec)
    a(f"s_waitcnt vmcnt({c.yrec})")
    poll(a, sum(rec, []), [c.REC+4*i+2 for i in range(5)], True)
    lc = a.uid("Lc")
    a(f"s_cmp_eq_u32 s{sMH}, 0\ns_cbranch_scc1 {lc}\ns_not_b64 exec, {sr(sMSK,2)}")
    for f in range(3): a(f"ds_write_b128 v{CA+f}, {vr(c.acc[f][4],4)}")
    a("s_mov_b64 exec, -1\ns_waitcnt lgkmcnt(0)")
    a.label(lc)
    a("s_barrier")
    CC = c.VPS; VA = 11
    CSR = eal(12, 2); TT = [eal(2,2) for _ in range(4)] + [12, B1+6]
    assert eal.n <= WREG, eal.n
    for f in range(3): a(f"ds_read_b128 {vr(CSR+4*f,4)}, v{CA+f}")
    BFp = [c.REC+4*i+2 for i in range(5)] + [B1+4]
    OUTP = [B1, 16]; SG = 20
    assert RHO == 15
    rest = [p for p in list(range(30, 45)) + list(range(30)) if p not in c.early]
    I = Inter(a, [wfrag(p) for p in rest], fevery)
    c0 = -2*math.sqrt(2/math.pi)*math.log2(math.e); c1 = c0*0.044715
    for j in range(5): I(f"v_lshlrev_b32 v{BFp[j]}, 16, v{B1+j}\nv_and_b32 v{BFp[j]+1}, 0xffff0000, v{B1+j}")
    I(f"v_lshlrev_b32 v{B1+4}, 16, v{B1+5}\nv_and_b32 v{B1+5}, 0xffff0000, v{B1+5}")
    I(f"v_mov_b32 v{CC}, {f32(c0)}\nv_mov_b32 v{CC+1}, {f32(c1)}\nv_mov_b32 v{CC+2}, 1.0")
    I(f"""
    v_and_b32 v{T2}, 15, v{RHO}
    v_lshlrev_b32 v{T2}, 4, v{T2}
    v_lshl_add_u32 v{T1}, v{G}, 8, v{T2}
    v_and_b32 v{T3}, 1, v{G}
    v_lshl_add_u32 v14, v{T3}, 8, v{T2}
    v_lshrrev_b32 v{T0}, 4, v{RHO}
    v_lshrrev_b32 v{T3}, 5, v{LANE}
    v_add_u32 v{RHO}, v{T0}, v{T3}
    s_mul_i32 s{sT2}, s{sCB}, 6
    s_add_u32 s{sT2}, s{sT2}, 20
    s_lshr_b32 s{sT0}, s{sNT}, 1
    s_add_u32 s{sT0}, s{sT0}, s{sT2}
    s_lshl_b32 s{sKX}, s{sT0}, 12
    s_lshr_b32 s{sT0}, s{sNT+2}, 1
    s_add_u32 s{sT0}, s{sT0}, s{sT2}
    s_lshl_b32 s{sKW}, s{sT0}, 12
    s_and_b32 s{sT0}, s{sNT+2}, 1
    s_lshl_b32 s{sT0}, s{sT0}, 9
    s_add_u32 s{sKW}, s{sKW}, s{sT0}
    s_mov_b32 s{sT3}, {74*4096}
    s_waitcnt lgkmcnt(0)
    """)
    a(f"s_cmp_eq_u32 s{sMH}, 0\ns_cselect_b32 s{sMSK}, -1, 0x00ff00ff\ns_mov_b32 s{sMSK+1}, s{sMSK}")
    def gelu_pair(h, cs, b, st, t, dst):
        return [f"v_pk_fma_f32 {vr(t,2)}, {vr(cs,2)}, {vr(st,2)}, {vr(b,2)} op_sel:[0,1,0] op_sel_hi:[1,1,1]",
                f"v_pk_fma_f32 {vr(h,2)}, {vr(h,2)}, {vr(st,2)}, {vr(t,2)} op_sel:[0,0,0] op_sel_hi:[1,0,1]",
                f"v_pk_mul_f32 {vr(t,2)}, {vr(h,2)}, {vr(h,2)}",
                f"v_pk_fma_f32 {vr(t,2)}, {vr(t,2)}, {vr(CC,2)}, {vr(CC,2)} op_sel:[0,1,0] op_sel_hi:[1,1,0]",
                f"v_pk_mul_f32 {vr(t,2)}, {vr(t,2)}, {vr(h,2)}",
                f"v_exp_f32 v{t}, v{t}",
                f"v_exp_f32 v{t+1}, v{t+1}",
                f"v_pk_add_f32 {vr(t,2)}, {vr(t,2)}, {vr(CC+2,2)} op_sel_hi:[1,0]",
                f"v_rcp_f32 v{t}, v{t}",
                f"v_rcp_f32 v{t+1}, v{t+1}",
                f"v_pk_mul_f32 {vr(t,2)}, {vr(t,2)}, {vr(h,2)}",
                f"v_cvt_pk_bf16_f32 v{dst}, v{t}, v{t+1}"]
    def blkaddr(dst, tile, low):
        I(f"""
        v_lshrrev_b32 v{T2}, 2, v{tile}
        v_mul_lo_u32 v{T2}, v{T2}, s{sT3}
        v_and_b32 v{T3}, 3, v{tile}
        v_lshl_add_u32 v{T2}, v{T3}, 10, v{T2}
        v_add_u32 v{dst}, v{T2}, v{low}
        """)
    for i in range(5):
        o = OUTP[i & 1]
        streams = [gelu_pair(c.acc[f][i]+2*hp, CSR+4*f+2*hp, BFp[2*f+hp], c.REC+4*i, TT[2*f+hp],
                             (o+2*f+hp) if f < 2 else (SG+2*(i&1)+hp)) for f in range(3) for hp in range(2)]
        for k in range(len(streams[0])):
            for s in streams: I(s[k])
        blkaddr(VA, T0, T1)
        I(f"v_add_u32 v{T0}, 1, v{T0}")
        if i == 4: a(f"s_mov_b64 exec, {sr(sMSK,2)}")
        a(f"buffer_store_dwordx4 {vr(o,4)}, v{VA}, {sr(SHO,4)}, s{sKX} offen sc1")
        if i == 4: a("s_mov_b64 exec, -1")
        if i & 1 or i == 4:
            a(f"v_permlane32_swap_b32 v{SG}, v{SG+2}\nv_permlane32_swap_b32 v{SG+1}, v{SG+3}")
            blkaddr(VA, RHO, 14)
            I(f"v_add_u32 v{RHO}, 2, v{RHO}")
            if i == 4: a(f"s_mov_b32 exec_lo, s{sMSK}\ns_mov_b32 exec_hi, 0")
            a(f"buffer_store_dwordx4 {vr(SG,4)}, v{VA}, {sr(SHO,4)}, s{sKW} offen sc1")
            if i == 4: a("s_mov_b64 exec, -1")
    left = len(I.g)
    S(6)
    nb = min(left, NB)
    I.flush(left - nb)
    publish(nb)
    I.flush()
    a("s_branch Lphase2")
    a.label("Lidle")
    late_srds()
    emit([duty(a, 6, False)])
    pretouch(None)
    if 'tup' not in EXP: side_loads(a, stat=False)
    stat_loads(a)
    p2_setup(a, 11)
    a("s_waitcnt vmcnt(0)")
    t_work(a)
    a(f"v_mov_b32 v14, 0\nv_mov_b32 v15, 0\ns_waitcnt vmcnt(0)\ns_barrier")
    nonce_get(a, 14, 12)
    a("s_nop 1")
    s_work(a, 12)
    poll(a, [f"buffer_load_dwordx2 v[14:15], v11, {sr(SFL,4)}, 0 offen sc1"], [14], False)
    for l in p2_ldsbases(): a(l)
    emit([wfrag(p) for p in c.early + rest])
    a.label("Lphase2")
    l9 = a.uid("L9")
    a(f"s_cmp_ge_u32 s{sW}, 2\ns_cbranch_scc1 {l9}")
    emit([wfrag(p) for p in range(45, 50)])
    a.label(l9)
    al = Alloc(12)
    VFD = al(2, 2); VLA = al(); VLB = al()
    acc = [[al(4,4) for m in range(4)] for n in range(5)]
    RING = [al(16, 4), al(16, 4)]
    XR = al(6, 2)
    assert al.n <= WREG, al.n
    S(8)
    poll(a, [f"buffer_load_dwordx2 {vr(VFD,2)}, v{VF}, {sr(SFL,4)}, 0 offen sc1"], [VFD], False)
    S(9)
    Wslot = [WREG+20*t for t in range(6)]
    abuf = {0: RING[0], 1: RING[1], 2: RING[0], 3: Wslot[0], 4: RING[1], 5: Wslot[1], 6: RING[0], 7: Wslot[0], 8: RING[1], 9: Wslot[1]}
    issue_after = {0: [2, 3], 1: [4, 5], 2: [6], 3: [7], 4: [8], 5: [9]}
    wloc = {t: Wslot[t] for t in range(6)}
    wloc.update({6: Wslot[2], 7: Wslot[3], 8: Wslot[4], 9: Wslot[5]})
    B2 = [Wslot[0]+16, Wslot[0]+18, Wslot[1]+16]
    def aload(t):
        a(f"s_lshl_b32 s{sTM}, s{sK+t}, 12")
        for m in range(4): a(f"buffer_load_dwordx4 {vr(abuf[t]+4*m,4)}, v{VL}, {sr(SPF,4)}, s{sTM} offen offset:{1024*m} sc1")
    ops = []
    for t in (0, 1): aload(t); ops += [t]*4
    SOX, SOB = [sKX, sKW, sDELTA], [sSLOT, sW1K, sMH]
    a(f"v_add_u32 v{VLA}, s{sFILL}, v{VL}\nv_add_u32 v{VLB}, s{sFW}, v{VL}\ns_mul_i32 s{sT0}, s{sC2}, 160")
    for j in range(3):
        a(f"""
        s_add_u32 s{sT1}, s{sW}, {8*j}
        s_mul_i32 s{sT2}, s{sT1}, 52
        s_lshr_b32 s{sT2}, s{sT2}, 8
        s_mul_i32 s{sT3}, s{sT2}, 5
        s_sub_u32 s{sT1}, s{sT1}, s{sT3}
        s_lshl_b32 s{sT1}, s{sT1}, 5
        s_mul_i32 s{sT2}, s{sT2}, 20480
        s_add_u32 s{SOX[j]}, s{sT2}, s{sT1}
        s_add_u32 s{SOB[j]}, s{sT0}, s{sT1}
        """)
    srd(a, STMP, P_B2, 1280)
    srd(a, SW, P_OUT, XB)
    for t in range(10):
        if t == 9: a(f"s_cmp_ge_u32 s{sW}, 2\ns_cbranch_scc1 Lp2done")
        younger = len(ops) - 1 - max(i for i, o in enumerate(ops) if o == t)
        a(f"s_waitcnt vmcnt({younger})" + (" lgkmcnt(0)" if t == 6 else ""))
        for n in range(5):
            for m in range(4): a(mfma(acc[n][m], wloc[t]+4*n, abuf[t]+4*m, t == 0))
        if 2 <= t <= 5:
            for n in range(5):
                phi = (t+4)*5+n
                ad, off = (VLA, (phi-30)*1024) if phi < 38 else (VLB, (phi-38)*1024)
                a(f"ds_read_b128 {vr(wloc[t+4]+4*n,4)}, v{ad} offset:{off}")
        for tt in issue_after.get(t, []): aload(tt); ops += [tt]*4
        if t == 5:
            a(f"v_lshlrev_b32 v{T1}, 3, v{G}")
            for j in range(3): a(f"buffer_load_dwordx2 {vr(XR+2*j,2)}, v{VXO}, {sr(SX,4)}, s{SOX[j]} offen"); ops.append('x')
            for j in range(3): a(f"buffer_load_dwordx2 {vr(B2[j],2)}, v{T1}, {sr(STMP,4)}, s{SOB[j]} offen"); ops.append('b')
        S(40+t)
    a.label("Lp2done")
    a("s_nop 7")
    for m in range(4):
        for n in range(5):
            q = m*5+n
            ad, off = (VLA, q*1024) if q < 8 else (VLB, (q-8)*1024)
            a(f"ds_write_b128 v{ad}, {vr(acc[n][m],4)} offset:{off}")
    a(f"""
    s_lshl_b32 s{sT0}, s{sW}, 10
    v_add_u32 v{T0}, s{sT0}, v{VL}
    v_add_u32 v{T2}, {L_A}, v{T0}
    v_add_u32 v{T3}, {4*12288}, v{T0}
    """)
    S(52)
    a("s_waitcnt lgkmcnt(0)\ns_barrier")
    S(53)
    P = [[acc[0][0] + (j*8+s)*4 for s in range(8)] for j in range(3)]
    assert P[2][7]+4 <= XR
    def rdtile(j):
        for s in range(8):
            if j == 0: ad, off = T2, s*8192
            else: ad, off = (T0 if s < 4 else T3), (s%4)*12288 + (j-1)*8192
            a(f"ds_read_b128 {vr(P[j][s],4)}, v{ad} offset:{off}")
    L2E = f32(-math.log2(math.e))
    def fin(j):
        p = P[j]
        Sx, Y, Z = p[0], p[2], p[3]
        for h in (0, 2):
            for k in (0, 2, 4, 6): a(f"v_pk_add_f32 {vr(p[k]+h,2)}, {vr(p[k]+h,2)}, {vr(p[k+1]+h,2)}")
        def unp(x, q):
            a(f"v_lshlrev_b32 v{x}, 16, v{q}\nv_and_b32 v{x+1}, 0xffff0000, v{q}\nv_lshlrev_b32 v{x+2}, 16, v{q+1}\nv_and_b32 v{x+3}, 0xffff0000, v{q+1}")
        unp(Z, B2[j])
        for h in (0, 2):
            a(f"v_pk_add_f32 {vr(p[2]+h,2)}, {vr(p[2]+h,2)}, {vr(p[4]+h,2)}")
            a(f"v_pk_add_f32 {vr(p[6]+h,2)}, {vr(p[6]+h,2)}, {vr(Z+h,2)}")
        for h in (0, 2): a(f"v_pk_add_f32 {vr(Y+h,2)}, {vr(Y+h,2)}, {vr(p[6]+h,2)}")
        for r in range(4): a(f"v_mul_f32 v{Z+r}, {L2E}, v{Y+r}")
        for r in range(4): a(f"v_exp_f32 v{Z+r}, v{Z+r}")
        for r in range(4): a(f"v_add_f32 v{Z+r}, 1.0, v{Z+r}")
        for r in range(4): a(f"v_rcp_f32 v{Z+r}, v{Z+r}")
        for h in (0, 2): a(f"v_pk_mul_f32 {vr(Y+h,2)}, {vr(Y+h,2)}, {vr(Sx+h,2)}")
        unp(p[4], XR+2*j)
        for r in range(4): a(f"v_fma_f32 v{Y+r}, v{Y+r}, v{Z+r}, v{p[4]+r}")
        a(f"v_cvt_pk_bf16_f32 v{Sx}, v{Y}, v{Y+1}\nv_cvt_pk_bf16_f32 v{Sx+1}, v{Y+2}, v{Y+3}")
        a(f"buffer_store_dwordx2 {vr(Sx,2)}, v{VXO}, {sr(SW,4)}, s{SOX[j]} offen")
    rdtile(0); rdtile(1)
    a("s_waitcnt vmcnt(0) lgkmcnt(8)")
    l3 = a.uid("L3")
    a(f"s_cmp_ge_u32 s{sW}, 4\ns_cbranch_scc1 {l3}")
    rdtile(2)
    a.label(l3)
    fin(0)
    a("s_waitcnt lgkmcnt(0)")
    fin(1)
    a(f"s_cmp_ge_u32 s{sW}, 4\ns_cbranch_scc1 Lfin")
    fin(2)
    a.label("Lfin")
    S.finish(54)
    a.label("Lend")
    a("s_endpgm")
    ref = open(f"cdna_kernels/{NAME}.s.ref").read().split("\n")
    hdr = [l for l in ref if l.startswith(";") and "@launch" not in l]
    out = "\n".join(hdr) + f"\n; @launch grid=(256,1,1) block=(512,1,1) lds={LDS_TOTAL}\n"
    out += '.amdgcn_target "amdgcn-amd-amdhsa--gfx950"\n' + khead(name) + a.text() + kd(name, 256, 102)
    return out

if __name__ == "__main__":
    path = sys.argv[1]
    kw = eval("dict(" + (sys.argv[2] if len(sys.argv) > 2 else "") + ")")
    open(path, "w").write(gen(**kw))
```

```python
from asmlib import *
import math, sys
NAME = "recurrent_scan__sliding_local_dilated__dense_activation_gelu__prompt"
XB = 2048*640*2
HO_SZ = 32*74*4096
WT_OFF, WT_SZ = 0xB00000, 8*74*5*1024
FLB = 0x400000
TFO, STO = FLB+0x1000, FLB+0x4000
FL_SZ = FLB + 0x10000
BIG = 0x7ff00000
RS = 592
L_TST, L_CS, L_A = 147456, 88064, 98304
LA_ = list(range(25, 33)); LB = [33, 34] + list(range(36, 45)) + [35]
WR0 = 156
VFD = 12
LDS_TOTAL = 163840
FROWS = 152

SX, SW, SHO, SPF, SWT, SFL, SDBG, STMP = 4, 8, 16, 20, 24, 28, 32, 36
sXO = 12; sWO = 15
P_X, P_WQ, P_WO, P_W1, P_B1, P_W2, P_B2, P_OUT, P_DBG, P_WS = 40, 42, 44, 48, 50, 52, 54, 56, 58, 60
(sW, sRB, sCB, sI, sKX, sKW, sTM, sFILL, sDELTA, sSLOT, sW1K, sT0, sT1, sT2, sT3, sMH) = range(62, 78)
sNT = 78; sNON = 82; sMSK = 84; sR2, sC2 = 50, 51; sK = 88; sSP = 98; sN2 = 99
sWM = 100
sFW, sWB = 3, 47
sHF = 43
sPFO, sPFS, sPG = 46, 86, 87
sRM, sRH = 48, 49
sTS = [44, 45, 52, 53]
VF, LANE, G, R, T0, T1, T2, T3, VST, VL, VXO = 0, 1, 2, 3, 4, 5, 6, 7, 8, 9, 10
WREG = 136
SIDE = 232
MAP2 = 81; ROTA = 2; EXP = set(); PFF = ""; DN = 2; DMASK = 0b101; DPRE = 2; SP = dict(tw=1, nonce=3, sl=3, sw=5, tf=5); TFL = "nt"; RECIT = 9

def mfma(d, a_, b_, c0=False): return f"v_mfma_f32_16x16x32_bf16 {vr(d,4)}, {vr(a_,4)}, {vr(b_,4)}, " + ("0" if c0 else vr(d,4))
def chunks(l, n): return [l[i:i+n] for i in range(0, len(l), n)]
def merge(groups, n): return [sum(g, []) for g in chunks(groups, n)]
def lines(t): return [l.strip() for l in t.strip("\n").split("\n") if l.strip()]
def srd(a, d, p, size, off=None):
    if off is None: a(f"s_mov_b32 s{d}, s{p}\ns_mov_b32 s{d+1}, s{p+1}")
    else: a(f"s_add_u32 s{d}, s{p}, {off}\ns_addc_u32 s{d+1}, s{p+1}, 0")
    a(f"s_mov_b32 s{d+2}, {size}\ns_mov_b32 s{d+3}, 0x00020000")

class St:
    def __init__(s, a, on): s.a, s.on = a, on
    def start(s):
        if s.on: s.a(f"s_memtime s[0:1]\nv_mov_b32 v{VST}, 0\ns_waitcnt lgkmcnt(0)\nv_writelane_b32 v{VST}, s0, 59\nv_writelane_b32 v{VST}, s94, 0\nv_writelane_b32 v{VST}, s96, 62")
    def __call__(s, i):
        if s.on: s.a(f"s_memtime s[0:1]\ns_waitcnt lgkmcnt(0)\nv_writelane_b32 v{VST}, s0, {i}")
    def dyn(s, base):
        if s.on and ((base == 30 and 'nobar' not in EXP) or 'lst' in EXP):
            s.a(f"s_memtime s[0:1]\ns_add_u32 m0, s{sI}, {base}\ns_waitcnt lgkmcnt(0)\nv_writelane_b32 v{VST}, s0, m0")
    def finish(s, i):
        if not s.on: return
        s.a(f"""
        s_waitcnt vmcnt(0)
        s_memtime s[0:1]
        s_waitcnt lgkmcnt(0)
        v_writelane_b32 v{VST}, s0, {i}
        s_memrealtime s[0:1]
        s_waitcnt lgkmcnt(0)
        v_writelane_b32 v{VST}, s0, 63
        s_lshl_b32 s3, s2, 3
        s_add_u32 s3, s3, s{sW}
        s_lshl_b32 s3, s3, 8
        s_add_u32 s3, s3, {STAMP_OFF}
        s_add_u32 s{STMP}, s{P_WS}, s3
        s_addc_u32 s{STMP+1}, s{P_WS+1}, 0
        s_mov_b32 s{STMP+2}, 256
        s_mov_b32 s{STMP+3}, 0x00020000
        v_lshlrev_b32 v{T0}, 2, v{LANE}
        buffer_store_dword v{VST}, v{T0}, {sr(STMP,4)}, 0 offen
        """)
class Cfg: inloop = False

def dma_x(c, a, u):
    g = [f"s_add_u32 m0, s{sFILL}, {u*8192}", f"s_add_u32 s{sTM}, s{sXO+u}, s{sKX}", f"buffer_load_dwordx4 v{c.VX}, {sr(SX,4)}, s{sTM} offen lds"]
    if u == 2:
        lab = a.uid("Lsk")
        g = [f"s_cmp_ge_u32 s{sW}, {c.nxm}", f"s_cbranch_scc1 {lab}"] + g + [lab + ":"]
    return g
def dma_w(c, a, u):
    return [f"s_add_u32 m0, s{sFW}, {u*16*c.wrow}", f"s_add_u32 s{sTM}, s{sKW}, {u*16*c.wrowb}", f"s_mov_b64 exec, {sr(sWM,2)}",
            f"buffer_load_dwordx4 v{c.VW}, {sr(SW,4)}, s{sTM} offen lds", "s_mov_b64 exec, -1"]
def dmaA(c, a):
    if 'xdma' in EXP and c.inloop: return []
    return [dma_x(c,a,0), dma_x(c,a,1), dma_x(c,a,2), dma_w(c,a,0)]
def dmaB(c, a):
    if 'xdma' in EXP and c.inloop: return []
    return [dma_w(c,a,1), dma_w(c,a,2), dma_w(c,a,3)]

def guard(a, groups, old):
    out = []
    for g in groups:
        lab = a.uid("Lg")
        out.append([f"s_cbranch_vcc{'z' if old else 'nz'} {lab}"] + g + [lab + ":"])
    return out
SETVCC = None
def reads(c, st, s):
    r = []
    if 'xrd' in EXP and c.inloop: return [['s_nop 0']]
    for i in range(c.nM):
        ins = f"ds_read_b128 {vr(c.X[st][i],4)}, v{c.xb[s]} offset:{i*2048}"
        if (not c.nh) and i == c.nM-1: r.append([f"s_mov_b64 exec, {sr(sMSK,2)}", ins, "s_mov_b64 exec, -1"])
        else: r.append([ins])
    if c.nh: r.append([f"s_mov_b64 exec, {sr(sMSK,2)}", f"ds_read_b128 {vr(c.XH[st],4)}, v{c.hb[s]}", "s_mov_b64 exec, -1"])
    for f in range(c.nF):
        r.append([f"ds_read_b64_tr_b16 {vr(c.W[st][f],2)}, v{c.wb[f]} offset:{s*32*c.wrow}"])
        r.append([f"ds_read_b64_tr_b16 {vr(c.W[st][f]+2,2)}, v{c.wb[f]} offset:{s*32*c.wrow+8*c.wrow}"])
    return r
def mfmas(c, st, c0=False):
    m = []
    for f in range(c.nF):
        for i in range(c.nM): m.append(mfma(c.acc[f][i], c.W[st][f], c.X[st][i], c0))
        if f < c.nh: m.append(mfma(c.acch[f], c.W[st][f], c.XH[st], c0))
    return m
def spread(main, items):
    out = []
    for i, m in enumerate(main):
        out.append(m)
        for p, g in items:
            if p == i or (i == len(main)-1 and p > i): out.extend(g)
    return out
def even(groups, n, lo=1):
    k = len(groups)
    return [(lo + (j*(n-lo))//k, g) for j, g in enumerate(groups)] if k else []

def stat_row(a):
    a(f"""
    s_and_b32 s{sT0}, s2, 1
    s_lshl_b32 s{sT0}, s{sT0}, 10
    s_bfe_u32 s{sT2}, s2, 0x20001
    s_lshl_b32 s{sT2}, s{sT2}, 8
    s_add_u32 s{sT0}, s{sT0}, s{sT2}
    s_and_b32 s{sT2}, s2, 0xf8
    s_add_u32 s{sT0}, s{sT0}, s{sT2}
    s_sub_u32 s{sT2}, s{sW}, 6
    s_lshl_b32 s{sT2}, s{sT2}, 2
    s_add_u32 s{sT0}, s{sT0}, s{sT2}
    """)
def nonce_get(a, vN, vPS):
    l0, l1, l2, l3 = a.uid("Lno"), a.uid("Lno"), a.uid("Lno"), a.uid("Lno")
    assert vN == vPS + 2 and vPS % 2 == 0
    a(f"s_mov_b32 s{sSP}, 0")
    a.label(l0)
    a(f"""
    v_readfirstlane_b32 s{sNON}, v{vN}
    v_readfirstlane_b32 s{sNON+1}, v{vN+1}
    s_add_u32 s{sSP}, s{sSP}, 1
    s_cmp_gt_u32 s{sSP}, 100000
    s_cbranch_scc1 {l1}
    s_cmp_lg_u32 s{sNON}, 0
    s_cbranch_scc1 {l1}
    v_mov_b32 v{T0}, 0
    buffer_load_dwordx2 {vr(vN,2)}, v{T0}, {sr(SDBG,4)}, 0 offen sc1
    s_waitcnt vmcnt(0)
    s_branch {l0}
    """)
    a.label(l1)
    a(f"""
    s_cmp_lg_u32 s{sW}, 0
    s_cbranch_scc1 {l2}
    s_lshl_b32 s{sT1}, s2, 3
    v_mov_b32 v{T0}, {TFO}
    s_mov_b64 exec, 1
    buffer_store_dwordx2 {vr(vN,2)}, v{T0}, {sr(SFL,4)}, s{sT1} offen sc1
    s_mov_b64 exec, -1
    """)
    a.label(l2)
def poll(a, loads, cmps, preloaded, sleep=0):
    l0, l1, l2 = a.uid("Lpo"), a.uid("Lpo"), a.uid("Lpo")
    a(f"s_mov_b32 s{sSP}, 0")
    if preloaded: a(f"s_branch {l2}")
    a.label(l0)
    for l in loads: a(l)
    a("s_waitcnt vmcnt(0)")
    a.label(l2)
    for k, v in enumerate(cmps):
        if k == 0: a(f"v_cmp_eq_u64 vcc, {sr(sNON,2)}, {vr(v,2)}")
        else: a(f"v_cmp_eq_u64 {sr(sT1,2)}, {sr(sNON,2)}, {vr(v,2)}\ns_nop 0\ns_and_b64 vcc, vcc, {sr(sT1,2)}")
    a(f"""
    s_add_u32 s{sSP}, s{sSP}, 1
    s_cmp_gt_u32 s{sSP}, 100000
    s_cbranch_scc1 {l1}
    s_cmp_eq_u64 vcc, -1
    """)
    if sleep: a(f"s_cbranch_scc1 {l1}\ns_sleep {sleep}\ns_branch {l0}")
    else: a(f"s_cbranch_scc0 {l0}")
    a.label(l1)

def wfrag(phi, dst=None):
    t, n = divmod(phi, 5)
    pre = [f"s_mul_i32 s{sTM}, s{sK+t}, 5120"]
    if phi < 25 or dst is not None:
        d = WR0+4*phi if dst is None else dst
        if n < 4: return pre + [f"buffer_load_dwordx4 {vr(d,4)}, v{VL}, {sr(SWT,4)}, s{sTM} offen offset:{1024*n} sc1"]
        return pre + [f"s_add_u32 s{sTM}, s{sTM}, 4096", f"buffer_load_dwordx4 {vr(d,4)}, v{VL}, {sr(SWT,4)}, s{sTM} offen sc1"]
    base, o = (sFILL, (phi-25)*1024) if phi < 33 else (sFW, (phi-33)*1024)
    return [f"s_add_u32 m0, s{base}, {o}"] + pre + [f"s_add_u32 s{sTM}, s{sTM}, {1024*n}", f"buffer_load_dwordx4 v{VL}, {sr(SWT,4)}, s{sTM} offen sc1 lds"]
def p2_ldsbases():
    return [f"s_lshl_b32 s{sFILL}, s{sW}, 13", f"s_add_u32 s{sFILL}, s{sFILL}, {L_A}", f"s_mul_i32 s{sFW}, s{sW}, 12288"]

def stage_set(c, st):
    slot = ((st+1) % 3) * c.stg
    return lines(f"s_add_u32 s{sFILL}, s{sW1K}, {slot}\ns_add_u32 s{sFW}, s{sWB}, {slot}\ns_mov_b32 s{sKX}, {128*st}\ns_add_u32 s{sKW}, s{sWO}, {64*st*c.wrowb}")
def duty(a, n=2, guard=True):
    lab = a.uid("Ldu")
    g = [f"s_bitcmp1_b32 {DMASK}, s{sI}", f"s_cbranch_scc0 {lab}"] if guard else []
    for _ in range(n):
        g += lines(f"""
        s_cmp_ge_u32 s{sPFO}, s{sPG}
        s_cbranch_scc1 {lab}
        buffer_load_dword v255, v254, {sr(STMP,4)}, s{sPFO} offen {PFF}
        s_add_u32 s{sPFO}, s{sPFO}, s{sPFS}""")
    return g + [lab + ":"]

def iteration(a, c, S, kind, extra1=(), extra2=(), pre2=None):
    bases = list(c.xb) + (list(c.hb) if c.nh else []) + list(c.wb)
    prio = 'noprio' not in EXP
    a("s_waitcnt lgkmcnt(0)")
    M = mfmas(c, 0, kind == 0); n = len(M)
    rb = merge(reads(c, 1, 1), 2)
    items = [(k, g) for k, g in enumerate(rb)]
    if prio: items = [(0, ["s_setprio 1"]), (n//2, ["s_setprio 0"])] + items
    if kind != 9:
        items.append((0, [f"s_add_u32 s{sT1}, s{sSLOT}, {c.stg}", f"s_cmp_eq_u32 s{sT1}, {3*c.stg}", f"s_cselect_b32 s{sT1}, 0, s{sT1}", f"s_sub_u32 s{sDELTA}, s{sT1}, s{sSLOT}"]))
        up = chunks([f"v_add_u32 v{b}, s{sDELTA}, v{b}" for b in bases], 2)
        for k, g in enumerate(up): items.append((len(rb) + k, g))
    stg = 'stag' in EXP
    if kind in ('loop', 7): items += even(guard(a, dmaA(c, a) + dmaB(c, a), False), n-4, 0) if stg else even(dmaB(c, a), n-4, 2)
    if kind == 0:
        A2 = dmaA(c, a); A2[0] = stage_set(c, 2) + A2[0]
        items += even(dmaB(c, a) + A2 + dmaB(c, a), n-4, 0)
    items += even(list(extra1), n-2, 1)
    if kind in ('loop', 0):
        items.append((n-4, [f"s_add_u32 s{sFILL}, s{sSLOT}, s{sW1K}", f"s_add_u32 s{sFW}, s{sSLOT}, s{sWB}"]))
        items.append((n-3, [f"s_add_u32 s{sKX}, s{sKX}, 128", f"s_add_u32 s{sKW}, s{sKW}, {64*c.wrowb}"]))
    if kind != 9: items.append((n-3, [f"s_mov_b32 s{sSLOT}, s{sT1}"]))
    for l in spread(M, items): a(l)
    S.dyn(10)
    if kind in ('loop', 0, 7): a(f"s_waitcnt vmcnt(6) lgkmcnt(0)")
    elif kind == 8: a(f"s_waitcnt vmcnt({c.y8}) lgkmcnt(0)")
    else: a("s_waitcnt lgkmcnt(0)")
    S.dyn(20)
    if not ('xbar' in EXP and kind == 'loop'): a("s_barrier")
    S.dyn(30)
    if prio: a("s_setprio 3")
    if pre2: pre2()
    M = mfmas(c, 1)
    items = []
    if kind != 9: items = [(k, g) for k, g in enumerate(merge(reads(c, 0, 0), 2))]
    if prio: items.append((n//2, ["s_setprio 2"]))
    if kind in ('loop', 0):
        items += even(guard(a, dmaA(c, a) + dmaB(c, a), True), n, 1) if stg else even(dmaA(c, a), n, 2)
        if c.duty: items.append((0, duty(a)))
    items += even(list(extra2), n, 0)
    for l in spread(M, items): a(l)

def main_loop(a, c, S, tag, rec_loads):
    a(f"s_cmp_lt_u32 s{sW}, 4\ns_cselect_b64 vcc, -1, 0")
    iteration(a, c, S, 0)
    if 'tup' in EXP: nonce_get(a, c.VN, c.VPS)
    else: t_work(a)
    a(f"s_mov_b32 s{sI}, 1")
    S(40)
    a.label(f"Lloop_{tag}")
    c.inloop = True
    iteration(a, c, S, 'loop')
    c.inloop = False
    lx, l3, l5 = a.uid("Ls"), a.uid("Ls"), a.uid("Ls")
    tf = f"buffer_load_dwordx2 {vr(c.VN,2)}, v{c.VTF}, {sr(SFL,4)}, 0 offen sc1"
    a(f"s_bitcmp1_b32 0x2c, s{sI}\ns_cbranch_scc0 {lx}")
    a(f"s_cmp_lg_u32 s{sI}, 2\ns_cbranch_scc1 {l3}")
    if 'tup' not in EXP: nonce_get(a, c.VN, c.VPS)
    a(f"s_branch {lx}")
    a.label(l3)
    a(f"s_cmp_lg_u32 s{sI}, 3\ns_cbranch_scc1 {l5}")
    stat_loads(a)
    a(f"s_branch {lx}")
    a.label(l5)
    a(tf)
    s_work(a, c.VPS)
    a.label(lx)
    a(f"s_add_u32 s{sI}, s{sI}, 1\ns_cmp_lt_u32 s{sI}, 7\ns_cbranch_scc1 Lloop_{tag}")
    S(41)
    early = [wfrag(p) for p in c.early]
    e = chunks(early, (len(early)+4)//5)
    def pre7():
        poll(a, [tf], [c.VN], True)
        for l in p2_ldsbases(): a(l)
    iteration(a, c, S, 7, extra2=e[0], pre2=pre7)
    a(f"s_add_u32 s{sI}, s{sI}, 1")
    c.y8 = len(e[0]) + len(e[1])
    iteration(a, c, S, 8, extra1=e[1], extra2=rec_loads + e[2])
    a(f"s_add_u32 s{sI}, s{sI}, 1")
    iteration(a, c, S, 9, extra1=e[3], extra2=e[4] + c.tailx)
    a("s_setprio 0")
    c.yrec = len(e[2]) + len(e[3]) + len(e[4])
    S(4)

def rho_local(a, d, t):
    a(f"v_bfe_u32 v{d}, v{LANE}, 2, 3\nv_lshrrev_b32 v{t}, 5, v{LANE}\nv_lshl_add_u32 v{d}, v{t}, 4, v{d}")

def t_issue(a, guard=True):
    ld = a.uid("Lti")
    if guard: a(f"s_sub_u32 s{sT1}, s{sW}, 3\ns_cmp_gt_u32 s{sT1}, 2\ns_cbranch_scc1 {ld}")
    a(f"s_lshl_b32 s{sT1}, s{sW}, 12")
    for q in range(4):
        a(f"s_add_u32 m0, s{sT1}, {L_TST-3*4096+1024*q}\ns_nop 0")
        a(f"buffer_load_dwordx4 v{SIDE+4+q}, {sr(STMP,4)}, 0 offen {TFL} lds")
    a.label(ld)
def side_loads(a, stat=True, issue=True):
    ld, lst, lh, lj = a.uid("Lt"), a.uid("Lt"), a.uid("Lt"), a.uid("Lt")
    sU, sKp, sCh = sKX, sKW, sDELTA
    A0, A1, ST0, ST1 = SIDE, SIDE+1, SIDE+2, SIDE+3
    for q in range(4): a(f"v_mov_b32 v{SIDE+4+q}, 0")
    a(f"s_cmp_lt_u32 s{sW}, 3\ns_cbranch_scc1 {ld}\ns_cmp_ge_u32 s{sW}, 6\ns_cbranch_scc1 {lst}")
    a(f"""
    s_mul_i32 s{sU}, s2, 3
    s_add_u32 s{sU}, s{sU}, s{sW}
    s_sub_u32 s{sU}, s{sU}, 3
    s_min_u32 s{sU}, s{sU}, 739
    s_mul_i32 s{sKp}, s{sU}, 6554
    s_lshr_b32 s{sKp}, s{sKp}, 16
    s_mul_i32 s{sT0}, s{sKp}, 10
    s_sub_u32 s{sCh}, s{sU}, s{sT0}
    v_lshrrev_b32 v{T0}, 5, v{LANE}
    s_cmp_ge_u32 s{sKp}, 20
    s_cbranch_scc1 {lh}
    """)
    for e, (A, ST) in enumerate(((A0, ST0), (A1, ST1))):
        a(f"""
        s_lshl_b32 s{sT0}, s{sKp}, 2
        s_add_u32 s{sT0}, s{sT0}, {2*e}
        v_add_u32 v{T1}, s{sT0}, v{T0}
        v_mul_u32_u24 v{T2}, 205, v{T1}
        v_lshrrev_b32 v{T2}, 10, v{T2}
        v_mul_u32_u24 v{T3}, 5, v{T2}
        v_sub_u32 v{T1}, v{T1}, v{T3}
        v_mul_u32_u24 v{A}, 40, v{T2}
        v_lshrrev_b32 v{T2}, 1, v{T1}
        v_mul_u32_u24 v{T2}, 20, v{T2}
        v_and_b32 v{T3}, 1, v{T1}
        v_lshl_add_u32 v{T2}, v{T3}, 3, v{T2}
        v_cmp_eq_u32 vcc, 4, v{T1}
        v_mov_b32 v{ST}, 20
        s_nop 0
        v_cndmask_b32 v{T2}, v{T2}, 16, vcc
        v_cndmask_b32 v{ST}, 4, v{ST}, vcc
        v_add_u32 v{A}, v{A}, v{T2}
        """)
    a("s_waitcnt lgkmcnt(0)")
    srd(a, STMP, P_WO, 640*1280)
    a(f"s_branch {lj}")
    a.label(lh)
    a(f"""
    s_sub_u32 s{sT0}, s{sKp}, 20
    s_mul_i32 s{sT1}, s{sT0}, 86
    s_lshr_b32 s{sT1}, s{sT1}, 8
    s_mul_i32 s{sT1}, s{sT1}, 3
    s_sub_u32 s{sT1}, s{sT0}, s{sT1}
    s_lshl_b32 s{sT0}, s{sT0}, 5
    v_lshl_add_u32 v{A0}, v{T0}, 2, s{sT0}
    s_cmp_eq_u32 s{sT1}, 1
    s_cselect_b32 s{sT1}, 16, 8
    s_cselect_b32 s{sT2}, 8, 16
    v_add_u32 v{A1}, s{sT1}, v{A0}
    v_mov_b32 v{ST0}, s{sT2}
    v_mov_b32 v{ST1}, s{sT2}
    """)
    a("s_waitcnt lgkmcnt(0)")
    srd(a, STMP, P_W2, 1728*1280)
    a.label(lj)
    a(f"""
    v_bfe_u32 v{T1}, v{LANE}, 3, 2
    v_and_b32 v{T2}, 7, v{LANE}
    v_lshlrev_b32 v{T2}, 4, v{T2}
    s_lshl_b32 s{sT0}, s{sCh}, 7
    s_lshl_b32 s{sT1}, s{sW}, 12
    """)
    for q in range(4):
        A, ST = ((A0, ST0), (A1, ST1))[q & 1]
        a(f"v_add_u32 v{T3}, v{A}, v{T1}")
        if q >> 1: a(f"v_add_u32 v{T3}, v{T3}, v{ST}")
        a(f"v_mul_u32_u24 v{T3}, 1280, v{T3}\nv_add3_u32 v{SIDE+4+q}, v{T3}, v{T2}, s{sT0}")
    if issue: t_issue(a, False)
    a(f"s_mul_i32 s{sT2}, s{sKp}, 5\ns_lshl_b32 s{sT3}, s{sCh}, 2")
    for t in range(4):
        a(f"""
        s_add_u32 s{sT0}, s{sT3}, {t}
        s_mul_i32 s{sT1}, s{sT0}, 52
        s_lshr_b32 s{sT1}, s{sT1}, 8
        s_mul_i32 s{sT1}, s{sT1}, 365
        s_add_u32 s{sT0}, s{sT0}, s{sT1}
        s_add_u32 s{sT0}, s{sT0}, s{sT2}
        s_lshl_b32 s{sTS[t]}, s{sT0}, 10
        """)
    a(f"s_branch {ld}")
    a.label(lst)
    if stat: stat_loads(a, False)
    a.label(ld)
def stat_loads(a, guard=True):
    ld = a.uid("Lsl")
    if guard: a(f"s_cmp_lt_u32 s{sW}, 6\ns_cbranch_scc1 {ld}")
    stat_row(a)
    a(f"s_mul_i32 s{sT0}, s{sT0}, 1280\nv_mul_u32_u24 v{T0}, 1280, v{G}\nv_lshl_add_u32 v{T0}, v{R}, 4, v{T0}")
    for i in range(5): a(f"buffer_load_dwordx4 {vr(SIDE+4*i,4)}, v{T0}, {sr(SX,4)}, s{sT0} offen offset:{256*i}")
    a.label(ld)
for u in range(1001): assert (u*6554)>>16 == u//10
for u in range(80): assert (u*205)>>10 == u//5
for u in range(54): assert (u*86)>>8 == u//3
for N in range(40): assert (N*52)>>8 == N//5

def t_work(a):
    lab = a.uid("Ltw")
    a(f"s_sub_u32 s{sT1}, s{sW}, 3\ns_cmp_gt_u32 s{sT1}, 2\ns_cbranch_scc1 {lab}")
    t_part(a)
    a.label(lab)
def s_work(a, vPS):
    lab = a.uid("Ltw")
    a(f"s_cmp_lt_u32 s{sW}, 6\ns_cbranch_scc1 {lab}")
    s_part(a, SIDE+20)
    a(f"v_mov_b32 v{SIDE}, v{SIDE+20}\nv_mov_b32 v{SIDE+1}, v{SIDE+21}\nv_mov_b32 v{SIDE+2}, s{sNON}\nv_mov_b32 v{SIDE+3}, s{sNON+1}")
    stat_row(a)
    a(f"""
    s_lshl_b32 s{sT0}, s{sT0}, 4
    s_add_u32 s{sT0}, s{sT0}, {STO}
    v_lshlrev_b32 v{T0}, 4, v{G}
    s_mov_b32 exec_lo, 0x00010001
    s_mov_b32 exec_hi, 0x00010001
    buffer_store_dwordx4 {vr(SIDE,4)}, v{T0}, {sr(SFL,4)}, s{sT0} offen sc1
    s_mov_b64 exec, -1
    """)
    a.label(lab)
def t_part(a):
    tmp = SIDE
    a(f"""
    v_lshrrev_b32 v{T0}, 2, v{LANE}
    v_lshlrev_b32 v{T0}, 7, v{T0}
    v_and_b32 v{T1}, 3, v{LANE}
    v_lshl_add_u32 v{T0}, v{T1}, 3, v{T0}
    s_lshl_b32 s{sT0}, s{sW}, 12
    s_add_u32 s{sT0}, s{sT0}, {L_TST-3*4096}
    v_add_u32 v{T0}, s{sT0}, v{T0}
    """)
    for t in range(4):
        a(f"ds_read_b64_tr_b16 {vr(tmp+4*t,2)}, v{T0} offset:{32*t}")
        a(f"ds_read_b64_tr_b16 {vr(tmp+4*t+2,2)}, v{T0} offset:{32*t+2048}")
    for t in range(4):
        a(f"s_waitcnt lgkmcnt({6-2*t})\nbuffer_store_dwordx4 {vr(tmp+4*t,4)}, v{VL}, {sr(SFL,4)}, s{sTS[t]} offen sc1")
def s_part(a, vPS):
    tmp = SIDE
    s, q = vPS, vPS+1
    a(f"v_mov_b32 v{s}, 0\nv_mov_b32 v{q}, 0\nv_mov_b32 v{T0}, 0x3f803f80")
    for j in range(20):
        a(f"v_dot2c_f32_bf16 v{s}, v{tmp+j}, v{T0}\nv_dot2c_f32_bf16 v{q}, v{tmp+j}, v{tmp+j}")
    a("s_nop 2")
    for sh in (8, 4, 2, 1):
        a(f"v_add_f32_dpp v{s}, v{s}, v{s} row_ror:{sh} row_mask:0xf bank_mask:0xf")
        a(f"v_add_f32_dpp v{q}, v{q}, v{q} row_ror:{sh} row_mask:0xf bank_mask:0xf")
        a("s_nop 0")
    a(f"""
    v_mul_f32 v{s}, {f32(1/640)}, v{s}
    v_mul_f32 v{q}, {f32(1/640)}, v{q}
    v_fma_f32 v{q}, -v{s}, v{s}, v{q}
    v_max_f32 v{q}, 0, v{q}
    v_cvt_pk_bf16_f32 v{T0}, v{s}, v{q}
    v_lshlrev_b32 v{T1}, 16, v{T0}
    v_and_b32 v{q}, 0xffff0000, v{T0}
    v_add_f32 v{q}, {f32(1e-5)}, v{q}
    v_cvt_pk_bf16_f32 v{q}, v{q}, v{q}
    v_and_b32 v{q}, 0xffff0000, v{q}
    v_sqrt_f32 v{q}, v{q}
    s_nop 0
    v_cvt_pk_bf16_f32 v{q}, v{q}, v{q}
    v_and_b32 v{q}, 0xffff0000, v{q}
    v_rcp_f32 v{s}, v{q}
    s_nop 0
    v_mul_f32 v{q}, v{T1}, v{s}
    v_sub_f32 v{q}, 0, v{q}
    """)

def p2_setup(a, VTF):
    if MAP2 == 81:
        a(f"""
    s_and_b32 s{sT0}, s2, 7
    s_lshl_b32 s{sR2}, s{sT0}, 2
    s_bfe_u32 s{sT1}, s2, 0x20003
    s_add_u32 s{sR2}, s{sR2}, s{sT1}
    s_lshr_b32 s{sC2}, s2, 5
    s_lshl_b32 s{sT1}, s{sT1}, 1
    s_mul_i32 s{sT0}, s{sC2}, {ROTA}
    s_lshr_b32 s{sT0}, s{sT0}, 1
    s_add_u32 s{sT1}, s{sT1}, s{sT0}
    """)
    else:
        a(f"""
    s_and_b32 s{sT0}, s2, 3
    s_lshl_b32 s{sR2}, s{sT0}, 3
    s_bfe_u32 s{sT1}, s2, 0x30003
    s_add_u32 s{sR2}, s{sR2}, s{sT1}
    s_and_b32 s{sC2}, s2, 4
    s_lshr_b32 s{sT0}, s2, 6
    s_add_u32 s{sC2}, s{sC2}, s{sT0}
    s_mul_i32 s{sT0}, s{sT0}, {ROTA}
    s_add_u32 s{sT1}, s{sT1}, s{sT0}
    """)
    a(f"""
    s_cmp_lt_u32 s{sW}, 2
    s_cselect_b32 s{sN2}, 10, 9
    s_cmp_ge_u32 s{sT1}, s{sN2}
    s_cselect_b32 s{sT2}, s{sN2}, 0
    s_sub_u32 s{sK}, s{sT1}, s{sT2}
    """)
    for t in range(1, 10):
        a(f"s_add_u32 s{sK+t}, s{sK+t-1}, 1\ns_cmp_eq_u32 s{sK+t}, s{sN2}\ns_cselect_b32 s{sK+t}, 0, s{sK+t}")
    a(f"""
    s_mul_i32 s{sT3}, s{sW}, 9
    s_min_u32 s{sT2}, s{sW}, 2
    s_add_u32 s{sT3}, s{sT3}, s{sT2}
    v_lshrrev_b32 v{T0}, 1, v{LANE}
    s_sub_u32 s{sT2}, s{sN2}, 1
    v_min_u32 v{T0}, s{sT2}, v{T0}
    v_add_u32 v{T0}, s{sT3}, v{T0}
    v_mul_u32_u24 v{T0}, 10, v{T0}
    s_mul_i32 s{sT2}, s{sC2}, 5
    s_lshr_b32 s{sT2}, s{sT2}, 2
    v_and_b32 v{T1}, 1, v{LANE}
    v_add3_u32 v{T0}, v{T0}, v{T1}, s{sT2}
    v_mul_u32_u24 v{T0}, 21846, v{T0}
    v_lshrrev_b32 v{T0}, 16, v{T0}
    v_lshlrev_b32 v{T0}, 3, v{T0}
    v_add_u32 v{VTF}, {TFO}, v{T0}
    s_mul_i32 s{sT2}, s{sC2}, 74
    s_add_u32 s{sT2}, s{sT2}, s{sT3}
    s_mul_i32 s{sT2}, s{sT2}, 5120
    s_add_u32 s{sT2}, s{sT2}, {WT_OFF}
    s_add_u32 s{SWT}, s{P_WS}, s{sT2}
    s_addc_u32 s{SWT+1}, s{P_WS+1}, 0
    s_mul_i32 s{SWT+2}, s{sN2}, {0 if 'now' in EXP else 5120}
    s_mov_b32 s{SWT+3}, 0x00020000
    s_mul_i32 s{sT2}, s{sR2}, 74
    s_add_u32 s{sT2}, s{sT2}, s{sT3}
    s_lshl_b32 s{sT2}, s{sT2}, 12
    s_add_u32 s{SPF}, s{P_WS}, s{sT2}
    s_addc_u32 s{SPF+1}, s{P_WS+1}, 0
    s_lshl_b32 s{SPF+2}, s{sN2}, 12
    {f"s_mov_b32 s{SPF+2}, 0" if 'noa' in EXP else ""}
    s_mov_b32 s{SPF+3}, 0x00020000
    """)
    ly, lyd = a.uid("Ly"), a.uid("Ly")
    a(f"""
    s_cmp_ge_u32 s{sW}, 2
    s_cbranch_scc1 {ly}
    s_lshr_b32 s{sT0}, s{sR2}, 1
    s_lshl_b32 s{sT0}, s{sT0}, 7
    s_lshl_b32 s{sT1}, s{sW}, 5
    s_add_u32 s{sT0}, s{sT0}, s{sT1}
    s_add_u32 s{sT0}, s{sT0}, {FLB+16*128}
    v_and_b32 v{T0}, 3, v{LANE}
    v_lshl_add_u32 v{VF}, v{T0}, 3, s{sT0}
    s_branch {lyd}
    """)
    a.label(ly)
    a(f"""
    s_lshl_b32 s{sT0}, s{sR2}, 6
    s_add_u32 s{sT1}, s{sT0}, 63
    s_mul_i32 s{sT0}, s{sT0}, 27595
    s_lshr_b32 s{sT0}, s{sT0}, 22
    s_mul_i32 s{sT1}, s{sT1}, 27595
    s_lshr_b32 s{sT1}, s{sT1}, 22
    s_sub_u32 s{sT1}, s{sT1}, s{sT0}
    s_lshl_b32 s{sT1}, s{sT1}, 7
    s_lshl_b32 s{sT0}, s{sT0}, 7
    s_sub_u32 s{sT2}, s{sW}, 2
    s_mul_i32 s{sT2}, s{sT2}, 3
    s_lshr_b32 s{sT2}, s{sT2}, 1
    s_lshl_b32 s{sT2}, s{sT2}, 3
    s_add_u32 s{sT0}, s{sT0}, s{sT2}
    s_add_u32 s{sT0}, s{sT0}, {FLB}
    v_and_b32 v{T0}, 1, v{LANE}
    v_lshlrev_b32 v{T0}, 3, v{T0}
    v_bfe_u32 v{T1}, v{LANE}, 1, 1
    v_mul_u32_u24 v{T1}, s{sT1}, v{T1}
    v_add3_u32 v{VF}, v{T0}, v{T1}, s{sT0}
    """)
    a.label(lyd)
    a(f"""
    s_lshl_b32 s{sT0}, s{sR2}, 6
    v_add_u32 v{T0}, s{sT0}, v{R}
    v_mul_u32_u24 v{T0}, 1280, v{T0}
    v_lshl_add_u32 v{T0}, v{G}, 3, v{T0}
    s_mul_i32 s{sT0}, s{sC2}, 160
    v_add_u32 v{VXO}, s{sT0}, v{T0}
    """)
for u in range(740): assert (u*21846)>>16 == u//3
for x in range(2048): assert (x*27595)>>22 == x//152

class Inter:
    def __init__(s, a, groups, every): s.a, s.g, s.e, s.n = a, list(groups), every, 0
    def __call__(s, txt):
        for l in lines(txt):
            s.a(l); s.n += 1
            if s.n % s.e == 0 and s.g:
                for x in s.g.pop(0): s.a(x)
    def flush(s, keep=0):
        while len(s.g) > keep:
            for x in s.g.pop(0): s.a(x)

def gen(stamps=False, PF=4, pff="", SLEEP=0, qevery=16, fn1=30, map2=81, rota=2, fevery=25, OSF='', exp="tup", NB=4, dmask=0b10101, tfl="nt", nearly=10, TLB=0):
    global EXP, PFF, DN, DMASK, DPRE, TFL, MAP2, ROTA
    MAP2 = map2; ROTA = rota
    EXP = set(exp.split()); PFF = pff; TFL = tfl; DMASK = dmask
    a = Asm(); S = St(a, stamps)
    name = NAME + "_kernel"
    def emit(groups):
        for g in groups:
            for l in g: a(l)
    if stamps: a("s_memrealtime s[96:97]\ns_memtime s[94:95]")
    a(f"s_cmp_ge_u32 s2, 256\ns_cbranch_scc1 Lend")
    if 'badmap' in EXP: a("s_and_b32 s3, s2, 31\ns_lshl_b32 s3, s3, 3\ns_lshr_b32 s2, s2, 5\ns_or_b32 s2, s2, s3")
    a(f"s_load_dwordx16 s[40:55], s[0:1], 0\ns_load_dwordx4 s[56:59], s[0:1], 64\ns_load_dwordx2 s[60:61], s[0:1], 80")
    a(f"""
    v_lshrrev_b32 v{T0}, 6, v0
    v_and_b32 v{LANE}, 63, v0
    v_readfirstlane_b32 s{sW}, v{T0}
    v_lshrrev_b32 v{G}, 4, v{LANE}
    v_and_b32 v{R}, 15, v{LANE}
    v_lshlrev_b32 v{VL}, 4, v{LANE}
    s_lshl_b32 s{sW1K}, s{sW}, 10
    s_mov_b32 s{sI}, 0
    v_lshrrev_b32 v{T0}, 3, v{LANE}
    v_mul_u32_u24 v{T0}, 1280, v{T0}
    s_lshl_b32 s{sT0}, s{sW}, 2
    v_add_u32 v{T1}, s{sT0}, v{G}
    v_xor_b32 v{T1}, v{T1}, v{LANE}
    v_and_b32 v{T1}, 7, v{T1}
    v_lshl_add_u32 v11, v{T1}, 4, v{T0}
    s_and_b32 s{sT0}, s{sW}, 1
    s_lshl_b32 s{sT0}, s{sT0}, 1
    s_and_b32 s{sT1}, s{sW}, 2
    s_lshl_b32 s{sT1}, s{sT1}, 2
    s_add_u32 s{sT0}, s{sT0}, s{sT1}
    s_and_b32 s{sT1}, s{sW}, 4
    s_add_u32 s{sWO}, s{sT0}, s{sT1}
    """)
    def pf_addr(nrow_cu, kper, nst, cidx_s, VD):
        pass
    lx, lq, ld, lw = a.uid("Lpf"), a.uid("Lpf"), a.uid("Lpf"), a.uid("Lpf")
    a(f"""
    s_bfe_u32 s{sT2}, s2, 0x40003
    s_lshr_b32 s{sT3}, s2, 7
    s_and_b32 s{sT0}, s2, 1
    s_bfe_u32 s{sT1}, s2, 0x20001
    s_mov_b32 s{sPG}, 0
    v_mov_b32 v254, 0
    s_cmp_ge_u32 s{sW}, 3
    s_cbranch_scc1 {lw}
    s_cmp_ge_u32 s{sW}, 1
    s_cbranch_scc1 {lq}
    s_lshl_b32 s{sT0}, s{sT0}, 10
    s_lshl_b32 s{sT1}, s{sT1}, 8
    s_lshl_b32 s{sT2}, s{sT2}, 4
    s_add_u32 s{sT0}, s{sT0}, s{sT1}
    s_add_u32 s{sT0}, s{sT0}, s{sT2}
    v_add_u32 v{T0}, s{sT0}, v{R}
    v_mul_u32_u24 v{T0}, 1280, v{T0}
    v_and_b32 v{T1}, 1, v{G}
    v_lshl_add_u32 v254, v{T1}, 7, v{T0}
    s_lshl_b32 s{sT0}, s{sT3}, 8
    s_mov_b32 s{sPFS}, 256
    s_mov_b32 s{sPG}, 1280
    s_waitcnt lgkmcnt(0)
    s_mov_b32 s{sPFO}, 512
    """)
    srd(a, STMP, P_X, XB)
    a(f"buffer_load_dword v255, v254, {sr(STMP,4)}, s{sT0} offen {pff}")
    a(f"s_branch {ld}")
    a.label(lq)
    a(f"""
    s_cmp_eq_u32 s{sW}, 2
    s_cbranch_scc1 {lx}
    v_min_u32 v{T0}, 35, v{LANE}
    v_mul_u32_u24 v{T1}, 57, v{T0}
    v_lshrrev_b32 v{T1}, 9, v{T1}
    v_mul_u32_u24 v{T3}, 9, v{T1}
    v_sub_u32 v{T0}, v{T0}, v{T3}
    s_lshl_b32 s{sT2}, s{sT2}, 2
    v_add_u32 v{T1}, s{sT2}, v{T1}
    v_mul_u32_u24 v{T1}, 3840, v{T1}
    v_mul_u32_u24 v{T3}, 43, v{T0}
    v_lshrrev_b32 v{T3}, 7, v{T3}
    v_mul_u32_u24 v{T3}, 896, v{T3}
    v_lshl_add_u32 v{T0}, v{T0}, 7, v{T3}
    s_mul_i32 s{sT1}, s{sT1}, 320
    s_and_b32 s{sT1}, s{sT1}, 0xffffff80
    v_add3_u32 v254, v{T0}, v{T1}, s{sT1}
    s_mul_i32 s{sT0}, s{sT3}, {128*3840}
    s_add_u32 s{sT1}, s{sT0}, {64*3840}
    s_mov_b32 s{sPFS}, {64*3840}
    s_mov_b32 s{sPG}, {640*3840}
    s_waitcnt lgkmcnt(0)
    s_mov_b32 s{sPFO}, {256*3840}
    """)
    srd(a, STMP, P_WQ, 640*3840)
    a(f"buffer_load_dword v255, v254, {sr(STMP,4)}, s{sT0} offen {pff}")
    a(f"buffer_load_dword v255, v254, {sr(STMP,4)}, s{sT1} offen {pff}")
    a(f"s_branch {ld}")
    a.label(lx)
    a(f"""
    s_and_b32 s{sT0}, s2, 127
    s_mul_i32 s{sT0}, s{sT0}, 3456
    v_min_u32 v{T0}, 26, v{LANE}
    v_lshl_add_u32 v254, v{T0}, 7, s{sT0}
    s_mul_i32 s{sT0}, s{sT3}, {128*3456}
    s_mov_b32 s{sPFS}, {128*3456}
    s_mov_b32 s{sPG}, {640*3456}
    s_waitcnt lgkmcnt(0)
    s_mov_b32 s{sPFO}, {256*3456}
    """)
    srd(a, STMP, P_W1, 640*3456)
    a(f"buffer_load_dword v255, v254, {sr(STMP,4)}, s{sT0} offen {pff}")
    a(f"s_branch {ld}")
    a.label(lw)
    if 'cpf' in EXP:
        lc_ = a.uid("Lcp")
        a(f"""
        s_cmp_lg_u32 s{sW}, 7
        s_cbranch_scc1 {lc_}
        s_getpc_b64 {sr(sNON,2)}
        s_and_b32 s{sNON}, s{sNON}, 0xffffff00
        s_lshr_b32 s{sT0}, s2, 3
        s_mul_i32 s{sT0}, s{sT0}, 10
        v_min_u32 v{T0}, 9, v{LANE}
        v_add_u32 v{T0}, s{sT0}, v{T0}
        v_lshlrev_b32 v{T0}, 7, v{T0}
        v_min_u32 v{T0}, Lend-{lc_}, v{T0}
        global_load_dword v255, v{T0}, {sr(sNON,2)}
        """)
        a.label(lc_)
    ln = a.uid("Ln")
    a(f"s_cmp_lg_u32 s2, 0\ns_cbranch_scc1 {ln}\ns_cmp_lg_u32 s{sW}, 7\ns_cbranch_scc1 {ln}\ns_waitcnt lgkmcnt(0)")
    srd(a, SDBG, P_DBG, 256)
    a(f"""
    s_memrealtime {sr(sNON,2)}
    s_waitcnt lgkmcnt(0)
    s_or_b32 s{sNON}, s{sNON}, 1
    v_mov_b32 v{T0}, s{sNON}
    v_mov_b32 v{T1}, s{sNON+1}
    v_mov_b32 v{T2}, 0
    s_mov_b64 exec, 1
    buffer_store_dwordx2 {vr(T0,2)}, v{T2}, {sr(SDBG,4)}, 0 offen sc1
    s_mov_b64 exec, -1
    """)
    a.label(ln)
    a("s_waitcnt lgkmcnt(0)")
    srd(a, STMP, P_X, XB)
    a(f"s_mov_b32 s{sPFS}, 0\ns_mov_b32 s{sPFO}, 0")
    if 'tup' in EXP: side_loads(a, stat=False)
    a.label(ld)
    S.start()
    srd(a, SX, P_X, XB)
    a(f"""
    s_and_b32 s{sT0}, s2, 1
    s_bfe_u32 s{sT1}, s2, 0x20001
    s_lshr_b32 s{sT2}, s2, 3
    s_cmp_ge_u32 s{sT2}, 16
    s_cbranch_scc1 Lffn
    """)
    def late_srds():
        srd(a, SHO, P_WS, 0 if 'nost' in EXP else HO_SZ); srd(a, SFL, P_WS, FL_SZ, WT_OFF); srd(a, SDBG, P_DBG, 256)
    def set_stage(c, st): emit([stage_set(c, st)])
    def pretouch(flagoff_s):
        lp = a.uid("Lpt")
        a(f"s_cmp_lg_u32 s{sW}, 7\ns_cbranch_scc1 {lp}")
        stat_row(a)
        a(f"""
        s_lshl_b32 s{sT0}, s{sT0}, 4
        s_add_u32 s{sT0}, s{sT0}, {STO}
        v_mov_b32 v{T0}, s{sT0}
        s_lshl_b32 s{sT0}, s2, 3
        s_add_u32 s{sT0}, s{sT0}, {TFO}
        v_writelane_b32 v{T0}, s{sT0}, 1
        """)
        if flagoff_s is not None:
            a(f"s_add_u32 s{sT0}, s{flagoff_s}, {FLB}\nv_writelane_b32 v{T0}, s{sT0}, 2")
        a(f"buffer_load_dword v255, v{T0}, {sr(SFL,4)}, 0 offen sc1")
        if TLB:
            a(f"v_lshlrev_b32 v{T0}, {TLB}, v{LANE}")
            a(f"buffer_load_dword v255, v{T0}, {sr(SHO,4)}, 0 offen sc1")
            a(f"buffer_load_dword v255, v{T0}, {sr(SFL,4)}, 0 offen sc1")
            srd(a, SPF, P_OUT, XB)
            a(f"buffer_load_dword v255, v{T0}, {sr(SPF,4)}, 0 offen sc1")
            srd(a, SPF, P_B2, 1280)
            a(f"buffer_load_dword v255, v{T0}, {sr(SPF,4)}, 0 offen")
        a.label(lp)
    def pre_loop(c, setup):
        if 'd0e' in EXP: set_stage(c, 0); emit(dmaA(c, a) + dmaB(c, a))
        late_srds()
        if 'nopt' not in EXP: pretouch(sHF)
        setup()
        if 'tup' not in EXP: side_loads(a, stat=False, issue=False)
        p2_setup(a, c.VTF)
        S(1)
        if 'd0e' not in EXP:
            a("s_barrier")
            set_stage(c, 0); emit(dmaA(c, a) + dmaB(c, a))
        if 'tup' in EXP:
            a('s_waitcnt vmcnt(6)'); t_work(a)
        a(f"v_mov_b32 v{T0}, 0")
        a(f"buffer_load_dwordx2 {vr(c.VN,2)}, v{T0}, {sr(SDBG,4)}, 0 offen sc1")
        a("s_barrier")
        set_stage(c, 1); emit(dmaA(c, a))
        a(f"s_waitcnt vmcnt(4)")
        S(2)
        a("s_barrier")
        S(3)
        emit(reads(c, 0, 0))
        if 'tup' not in EXP: t_issue(a)
        a(f"s_mov_b32 s{sSLOT}, {c.stg}")
    def alloc_common(c):
        al = Alloc(11)
        c.VX = al(); c.VW = al()
        c.xb = [al(), al()]; c.hb = [al(), al()]; c.wb = [al() for _ in range(c.nF)]
        c.VTF = al(); c.VRA = al(); c.VPS = al(2, 4); c.VN = al(2, 2); c.REC = al(20, 4)
        assert c.VPS == 24
        return al
    def w_voff(c, P):
        a(f"""
        v_cmp_le_u32 vcc, {P}, v{LANE}
        v_mov_b32 v{T1}, {c.wrowb}
        v_subrev_u32 v{T0}, {P}, v{LANE}
        v_cndmask_b32 v{T0}, v{LANE}, v{T0}, vcc
        v_cndmask_b32 v{T1}, 0, v{T1}, vcc
        s_mov_b32 s{sWM}, -1
        s_mov_b32 s{sWM+1}, {(1 << (2*P-32)) - 1}
        s_mul_i32 s{sWB}, s{sW}, {2*c.wrow}
        s_add_u32 s{sWB}, s{sWB}, {c.xsz}
        s_mul_i32 s{sWO}, s{sWO}, {c.wrowb}
        """)
    def half(groups, young):
        if not groups: return
        lh = a.uid("Lh")
        a(f"s_cmp_ge_u32 s{sW}, 4\ns_cbranch_scc{0 if young else 1} {lh}")
        emit(groups)
        a.label(lh)
    FLD = f"buffer_load_dwordx2 {vr(VFD,2)}, v{VF}, {sr(SFL,4)}, 0 offen sc1"
    def publish(younger, old_extra=0):
        lp, lw1 = a.uid("Lp"), a.uid("Lp")
        if old_extra:
            a(f"s_waitcnt vmcnt({younger+old_extra})\ns_cmp_lt_u32 s{sW}, 4\ns_cbranch_scc1 {lw1}")
        a(f"s_waitcnt vmcnt({younger})")
        a.label(lw1)
        a(f"""
        s_barrier
        s_cmp_lg_u32 s{sW}, 0
        s_cbranch_scc1 {lp}
        v_mov_b32 v{T0}, s{sNON}
        v_mov_b32 v{T1}, s{sNON+1}
        v_mov_b32 v{T2}, {FLB}
        s_mov_b64 exec, 1
        buffer_store_dwordx2 {vr(T0,2)}, v{T2}, {sr(SFL,4)}, s{sHF} offen sc1
        s_mov_b64 exec, -1
        """)
        a.label(lp)
        S(7)
    c = Cfg()
    c.nM, c.nF, c.nh, c.wrow, c.wrowb, c.stg, c.xsz, c.nxm, c.duty = 4, 4, 2, 480, 3840, 49152, 18432, 2, False
    al = alloc_common(c)
    c.acc = [[al(4,4) for i in range(4)] for f in range(4)]
    c.acch = [al(4,4) for f in range(2)]
    lowtop = al.n
    al = Alloc(WREG)
    c.X = [[al(4,4) for i in range(4)] for s in range(2)]
    c.XH = [al(4,4) for s in range(2)]
    c.W = [[al(4,4) for f in range(4)] for s in range(2)]
    assert al.n == 208
    c.early = (list(range(15, 25)) + LA_ + [13, 14])[:nearly]
    a(f"""
    s_lshl_b32 s{sRB}, s{sT0}, 3
    s_and_b32 s{sT3}, s{sT2}, 7
    s_add_u32 s{sRB}, s{sRB}, s{sT3}
    s_lshl_b32 s{sCB}, s{sT1}, 1
    s_lshr_b32 s{sT3}, s{sT2}, 3
    s_add_u32 s{sCB}, s{sCB}, s{sT3}
    s_lshl_b32 s{sT3}, s{sRB}, 7
    s_lshl_b32 s{sT0}, s{sW}, 3
    s_add_u32 s{sT3}, s{sT3}, s{sT0}
    s_sub_u32 s{sT3}, s{sT3}, 16
    s_max_i32 s{sT0}, s{sT3}, 0
    s_mul_i32 s{sXO}, s{sT0}, 1280
    s_add_u32 s{sT3}, s{sT3}, 64
    s_mul_i32 s{sXO+1}, s{sT3}, 1280
    s_add_u32 s{sXO+2}, s{sXO+1}, 81920
    """)
    w_voff(c, 30)
    a(f"""
    v_mul_u32_u24 v{T2}, 26, v{T0}
    v_lshrrev_b32 v{T2}, 8, v{T2}
    v_mul_u32_u24 v{T2}, 1120, v{T2}
    v_lshl_add_u32 v{T0}, v{T0}, 4, v{T2}
    v_add_u32 v{c.VW}, v{T0}, v{T1}
    s_mul_i32 s{sT0}, s{sCB}, 160
    s_add_u32 s{sWO}, s{sWO}, s{sT0}
    """)
    srd(a, SW, P_WQ, 640*3840)
    a(f"s_add_u32 s{sT0}, s{sRB}, 16\ns_lshl_b32 s{sT0}, s{sT0}, 7\ns_lshl_b32 s{sT1}, s{sCB}, 3\ns_add_u32 s{sHF}, s{sT0}, s{sT1}")
    def q_setup():
        a(f"s_lshr_b32 s{sMH}, s{sW}, 2\ns_and_b32 s{sT0}, s{sW}, 3\ns_lshl_b32 s{sT0}, s{sT0}, 2\ns_lshl_b32 s{sT1}, s{sMH}, 1")
        for f in range(4):
            a(f"s_xor_b32 s{sT2}, s{sT1}, {f}\ns_add_u32 s{sT2}, s{sT2}, s{sT0}\ns_min_u32 s{sNT+f}, s{sT2}, 14")
        a(f"""
        s_mov_b32 s{sMSK}, 0xfffefffe
        s_mov_b32 s{sMSK+1}, 0xfffefffe
        v_lshrrev_b32 v{T0}, 1, v{R}
        v_xor_b32 v{T0}, v{T0}, v{G}
        v_lshlrev_b32 v{T0}, 4, v{T0}
        v_lshl_add_u32 v{T0}, v{R}, 7, v{T0}
        v_add_u32 v{c.hb[0]}, {c.stg}, v{T0}
        v_xor_b32 v{c.hb[1]}, 64, v{c.hb[0]}
        s_lshl_b32 s{sT0}, s{sMH}, 13
        s_add_u32 s{sT0}, s{sT0}, 2048
        v_add_u32 v{c.xb[0]}, s{sT0}, v{c.hb[0]}
        v_add_u32 v{c.xb[1]}, s{sT0}, v{c.hb[1]}
        """)
        rho_local(a, T0, T1)
        a(f"v_mul_u32_u24 v{T0}, 480, v{T0}\nv_and_b32 v{T1}, 3, v{LANE}\nv_lshl_add_u32 v{T0}, v{T1}, 3, v{T0}")
        for f in range(4):
            a(f"s_lshl_b32 s{sT0}, s{sNT+f}, 5\ns_add_u32 s{sT0}, s{sT0}, {c.xsz+c.stg}\nv_add_u32 v{c.wb[f]}, s{sT0}, v{T0}")
        a(f"v_lshlrev_b32 v{c.VRA}, 4, v{R}")
        a(f"""
        s_lshl_b32 s{sT0}, s{sRB}, 7
        s_lshl_b32 s{sT1}, s{sMH}, 6
        s_add_u32 s{sT1}, s{sT1}, s{sT0}
        s_lshl_b32 s{sT1}, s{sT1}, 4
        s_add_u32 s{sRM}, s{sT1}, {STO}
        s_sub_u32 s{sT0}, s{sT0}, 16
        s_max_i32 s{sT0}, s{sT0}, 0
        s_lshl_b32 s{sT0}, s{sT0}, 4
        s_add_u32 s{sRH}, s{sT0}, {STO}
        """)
        for s in range(2):
            for r in range(4): a(f"v_mov_b32 v{c.XH[s]+r}, 0x3f803f80")
    pre_loop(c, q_setup)
    rec = [[f"buffer_load_dwordx4 {vr(c.REC+4*i,4)}, v{c.VRA}, {sr(SFL,4)}, s{sRM} offen offset:{256*i} sc1"] for i in range(4)]
    rec.append([f"buffer_load_dwordx4 {vr(c.REC+16,4)}, v{c.VRA}, {sr(SFL,4)}, s{sRH} offen sc1"])
    CSR = lowtop; CA = 11; WA = 15
    assert CSR + 16 <= WREG and WA + 6 <= c.VTF
    c.tailx = [lines(f"""
        s_lshl_b32 s{sT3}, s{sMH}, 6
        s_add_u32 s{sT3}, s{sT3}, 16
        s_mul_i32 s{sT3}, s{sT3}, {RS}
        v_mul_u32_u24 v{T2}, {RS}, v{R}
        v_lshlrev_b32 v{T3}, 4, v{G}""")]
    for f in range(4):
        c.tailx.append(lines(f"""
        s_lshl_b32 s{sT0}, s{sNT+f}, 6
        s_add_u32 s{sT0}, s{sT0}, {L_CS}
        v_add_u32 v{CA+f}, s{sT0}, v{T3}
        s_mul_i32 s{sT0}, s{sNT+f}, 52
        s_lshr_b32 s{sT0}, s{sT0}, 8
        s_mul_i32 s{sT2}, s{sT0}, 5
        s_sub_u32 s{sT2}, s{sNT+f}, s{sT2}
        s_lshl_b32 s{sT2}, s{sT2}, 2
        s_mul_i32 s{sT0}, s{sT0}, 192
        v_add_u32 v{T0}, s{sT2}, v{G}"""))
        c.tailx.append(lines(f"""
        v_mul_u32_u24 v{T1}, 52, v{T0}
        v_lshrrev_b32 v{T1}, 8, v{T1}
        v_add_u32 v{T0}, v{T0}, v{T1}"""))
        c.tailx.append(lines(f"v_lshl_add_u32 v{T0}, v{T0}, 3, v{T2}") + ([f"v_add_u32 v{WA+4+f}, s{sT0}, v{T0}"] if f < 2 else []) +
                       lines(f"s_add_u32 s{sT0}, s{sT0}, s{sT3}\nv_add_u32 v{WA+f}, s{sT0}, v{T0}"))
    main_loop(a, c, S, "q", rec)
    a(f"s_not_b64 exec, {sr(sMSK,2)}")
    for f in range(2): a(f"ds_write_b128 v{CA+f}, {vr(c.acch[f],4)}")
    a("s_mov_b64 exec, -1")
    a(f"s_waitcnt vmcnt({c.yrec})")
    poll(a, sum(rec, []), [c.REC+4*i+2 for i in range(5)], True)
    S(55)
    a("s_waitcnt lgkmcnt(0)\ns_barrier")
    S(56)
    for f in range(4): a(f"ds_read_b128 {vr(CSR+4*f,4)}, v{CA+f}")
    rest = [p for p in LA_ + list(range(25)) if p not in c.early]
    rg = [wfrag(p) for p in rest]
    I = Inter(a, [], 1000)
    TP = c.VPS
    for f in range(4):
        I(f"s_waitcnt lgkmcnt({3-f if f == 0 else 15})" if f == 0 else "s_nop 0")
        if f == 1: I("s_waitcnt lgkmcnt(5)")
        tl = [(c.acc[f][i], WA+f, i*16*RS, c.REC+4*i) for i in range(4)]
        if f < 2: tl.append((c.acch[f], WA+4+f, 0, c.REC+16))
        for (ac, ad, off, st) in tl:
            I(f"""
            v_pk_mul_f32 {vr(TP,2)}, {vr(CSR+4*f,2)}, {vr(st,2)} op_sel:[0,1] op_sel_hi:[1,1]
            v_pk_mul_f32 {vr(TP+2,2)}, {vr(CSR+4*f+2,2)}, {vr(st,2)} op_sel:[0,1] op_sel_hi:[1,1]
            v_pk_fma_f32 {vr(ac,2)}, {vr(ac,2)}, {vr(st,2)}, {vr(TP,2)} op_sel:[0,0,0] op_sel_hi:[1,0,1]
            v_pk_fma_f32 {vr(ac+2,2)}, {vr(ac+2,2)}, {vr(st,2)}, {vr(TP+2,2)} op_sel:[0,0,0] op_sel_hi:[1,0,1]
            v_cvt_pk_bf16_f32 v{ac}, v{ac}, v{ac+1}
            v_cvt_pk_bf16_f32 v{ac+1}, v{ac+2}, v{ac+3}
            ds_write_b64 v{ad}, {vr(ac,2)} offset:{off}
            """)
    S(57)
    al = Alloc(11)
    AB = al(); OV = al(); OV1 = al(); L31 = al()
    MX = al(); SM_ = al()
    Q = al(12, 2); KB = [al(10, 2) for _ in range(5)]
    L = al(8, 2); PL = al(8); PH = al(8); O = al(20, 2); TPa = al(4)
    assert al.n <= WREG, al.n
    I(f"""
    s_and_b32 s{sT0}, s{sW}, 1
    s_lshr_b32 s{sT3}, s{sW}, 1
    s_lshl_b32 s{sT2}, s{sT3}, 5
    s_add_u32 s{sT2}, s{sT2}, 2
    v_and_b32 v{L31}, 31, v{LANE}
    v_add_u32 v{T0}, s{sT2}, v{L31}
    v_mul_u32_u24 v{T0}, {RS}, v{T0}
    v_lshrrev_b32 v{T1}, 5, v{LANE}
    v_mul_u32_u24 v{T2}, 48, v{T1}
    s_mul_i32 s{sT2}, s{sT0}, 96
    v_add3_u32 v{AB}, v{T0}, v{T2}, s{sT2}
    s_lshl_b32 s{sT2}, s{sCB}, 1
    s_add_u32 s{sT2}, s{sT2}, s{sT0}
    s_mul_i32 s{sT2}, s{sT2}, 5
    v_lshl_add_u32 v{T1}, v{T1}, 1, s{sT2}
    v_bfe_u32 v{T0}, v{LANE}, 4, 1
    v_lshlrev_b32 v{T0}, 10, v{T0}
    v_lshl_add_u32 v{T0}, v{R}, 4, v{T0}
    v_lshrrev_b32 v{T2}, 2, v{T1}
    v_lshl_add_u32 v{T2}, v{T2}, 12, v{T0}
    v_and_b32 v{T3}, 3, v{T1}
    v_lshl_add_u32 v{OV}, v{T3}, 8, v{T2}
    v_add_u32 v{T1}, 1, v{T1}
    v_lshrrev_b32 v{T2}, 2, v{T1}
    v_lshl_add_u32 v{T2}, v{T2}, 12, v{T0}
    v_and_b32 v{T3}, 3, v{T1}
    v_lshl_add_u32 v{OV1}, v{T3}, 8, v{T2}
    s_lshl_b32 s{sKX}, s{sRB}, 1
    s_add_u32 s{sKX}, s{sKX}, s{sMH}
    s_mul_i32 s{sKX}, s{sKX}, {74*4096}
    s_and_b32 s{sT1}, s{sT3}, 1
    s_lshl_b32 s{sT1}, s{sT1}, 11
    s_add_u32 s{sKX}, s{sKX}, s{sT1}
    s_add_u32 s{sT2}, s{sT2}, 4
    s_lshr_b32 s{sKW}, s{sT2}, 2
    s_lshl_b32 s{sKW}, s{sKW}, 12
    s_and_b32 s{sT2}, s{sT2}, 3
    s_lshl_b32 s{sT2}, s{sT2}, 8
    s_add_u32 s{sKW}, s{sKW}, s{sT2}
    s_add_u32 s{sKW}, s{sKW}, s{sKX}
    """)
    a("s_waitcnt lgkmcnt(0)\ns_barrier")
    OV2 = T0
    S(5)
    def rd(dst, off):
        return f"ds_read_b128 {vr(dst,4)}, v{AB} offset:{off}\nds_read_b128 {vr(dst+4,4)}, v{AB} offset:{off+16}\nds_read_b64 {vr(dst+8,2)}, v{AB} offset:{off+32}"
    offs = [(14-2*w)*RS+192 for w in range(8)] + [(14-2*w)*RS+384 for w in range(8)]
    issued = 0
    def issue(n):
        nonlocal issued
        for _ in range(n):
            if issued < 16:
                I(rd(KB[issued % 5], offs[issued])); issued += 1
    def need(idx): I(f"s_waitcnt lgkmcnt({3*(issued-1-idx)})")
    I(rd(Q, 14*RS)); issue(4)
    I.g = list(rg); I.e = qevery
    for w in range(8): I(f"v_mov_b32 v{L+w}, 0")
    for d in range(20): I(f"v_mov_b32 v{O+d}, 0")
    for wp in range(4):
        w0, w1 = 2*wp, 2*wp+1
        need(w1)
        for d in range(10):
            for w in (w0, w1): I(f"v_dot2c_f32_bf16 v{L+w}, v{Q+d}, v{KB[w%5]+d}")
        issue(3 if wp == 0 else 2)
    lm = a.uid("Lm")
    a(f"s_or_b32 s{sT2}, s{sRB}, s{sT3}\ns_cmp_lg_u32 s{sT2}, 0\ns_cbranch_scc1 {lm}")
    a(f"v_mov_b32 v{TPa}, {f32(-1e9)}")
    for w in range(1, 8):
        a(f"v_cmp_le_u32 vcc, {2*w}, v{L31}\ns_nop 1\nv_cndmask_b32 v{L+w}, v{TPa}, v{L+w}, vcc")
    a.label(lm)
    cexp = (20 ** -0.5) * math.log2(math.e)
    I(f"""
    v_max3_f32 v{MX}, v{L}, v{L+1}, v{L+2}
    v_max3_f32 v{SM_}, v{L+3}, v{L+4}, v{L+5}
    v_max3_f32 v{MX}, v{MX}, v{L+6}, v{L+7}
    v_max_f32 v{MX}, v{MX}, v{SM_}
    """)
    for w in range(8): I(f"v_sub_f32 v{L+w}, v{L+w}, v{MX}")
    for w in range(8): I(f"v_mul_f32 v{L+w}, {f32(cexp)}, v{L+w}")
    for w in range(8): I(f"v_exp_f32 v{L+w}, v{L+w}")
    I(f"""
    v_add_f32 v{TPa}, v{L}, v{L+1}
    v_add_f32 v{TPa+1}, v{L+2}, v{L+3}
    v_add_f32 v{TPa+2}, v{L+4}, v{L+5}
    v_add_f32 v{TPa+3}, v{L+6}, v{L+7}
    v_add_f32 v{TPa}, v{TPa}, v{TPa+1}
    v_add_f32 v{TPa+2}, v{TPa+2}, v{TPa+3}
    v_add_f32 v{SM_}, v{TPa}, v{TPa+2}
    v_rcp_f32 v{SM_}, v{SM_}
    s_nop 0
    """)
    for w in range(8): I(f"v_mul_f32 v{L+w}, v{L+w}, v{SM_}")
    for w in range(8): I(f"v_cvt_pk_bf16_f32 v{PL+w}, v{L+w}, 0\nv_cvt_pk_bf16_f32 v{PH+w}, 0, v{L+w}")
    for w in range(8):
        need(8+w)
        for d in range(10):
            I(f"v_dot2c_f32_bf16 v{O+2*d}, v{KB[(8+w)%5]+d}, v{PL+w}\nv_dot2c_f32_bf16 v{O+2*d+1}, v{KB[(8+w)%5]+d}, v{PH+w}")
        issue(1)
    S(58)
    for u in (0,1,2,3,8,9,4,5,6,7): a(f"v_cvt_pk_bf16_f32 v{Q+u}, v{O+2*u}, v{O+2*u+1}")
    a(f"""
    buffer_store_dwordx4 {vr(Q,4)}, v{OV}, {sr(SHO,4)}, s{sKX} offen sc1
    v_permlane32_swap_b32 v{Q+8}, v{Q+10}
    v_permlane32_swap_b32 v{Q+9}, v{Q+11}
    buffer_store_dwordx4 {vr(Q+4,4)}, v{OV1}, {sr(SHO,4)}, s{sKX} offen sc1
    s_mov_b32 exec_hi, 0
    buffer_store_dwordx4 {vr(Q+8,4)}, v{OV2}, {sr(SHO,4)}, s{sKW} offen sc1
    s_mov_b64 exec, -1
    """)
    S(6)
    if NB: a("s_barrier")
    qleft = I.g + [wfrag(p) for p in LB]
    sp = 'spoll' in EXP or 'nofld' in EXP
    if not sp: a(FLD)
    emit(qleft[:NB])
    publish(NB+(not sp))
    emit(qleft[NB:])
    if not sp: a(f"s_waitcnt vmcnt({len(qleft)})")
    a("s_branch Lphase2")
    a.label("Lffn")
    c = Cfg()
    c.nM, c.nF, c.nh, c.wrow, c.wrowb, c.stg, c.xsz, c.nxm, c.duty = 5, 3, 0, 384, 3456, 49152, 20480, 4, True
    al = alloc_common(c)
    B1 = al(8, 2)
    c.acc = [[al(4,4) for i in range(5)] for f in range(3)]
    lowtop = al.n
    eal = al
    al = Alloc(WREG)
    c.X = [[al(4,4) for i in range(5)] for s in range(2)]
    c.W = [[al(4,4) for f in range(3)] for s in range(2)]
    assert al.n <= 208
    c.early = (list(range(15, 25)) + LA_ + [13, 14])[:nearly]
    a(f"""
    s_sub_u32 s{sT2}, s{sT2}, 16
    s_lshl_b32 s{sT1}, s{sT1}, 4
    s_add_u32 s{sT1}, s{sT1}, s{sT2}
    s_cmp_ge_u32 s{sT1}, 63
    s_cbranch_scc1 Lidle
    s_mul_i32 s{sCB}, s{sT1}, 37
    s_lshr_b32 s{sCB}, s{sCB}, 8
    s_sub_u32 s{sT3}, s{sCB}, s{sT0}
    s_mul_i32 s{sT3}, s{sT3}, 7
    s_sub_u32 s{sRB}, s{sT1}, s{sT3}
    s_mul_i32 s{sT3}, s{sRB}, {FROWS}
    s_lshl_b32 s{sT0}, s{sW}, 3
    s_add_u32 s{sT3}, s{sT3}, s{sT0}
    s_mul_i32 s{sXO}, s{sT3}, 1280
    s_add_u32 s{sXO+1}, s{sXO}, 81920
    s_add_u32 s{sXO+2}, s{sXO}, 163840
    """)
    w_voff(c, 24)
    a(f"""
    s_and_b32 s{sT0}, s{sW}, 3
    s_lshl_b32 s{sT0}, s{sT0}, 1
    v_xor_b32 v{T0}, s{sT0}, v{T0}
    v_lshl_add_u32 v{c.VW}, v{T0}, 4, v{T1}
    s_mul_i32 s{sT0}, s{sCB}, 384
    s_add_u32 s{sWO}, s{sWO}, s{sT0}
    """)
    srd(a, SW, P_W1, 640*3456)
    srd(a, SWT, P_B1, 3456)
    a(f"s_lshl_b32 s{sT0}, s{sRB}, 7\ns_lshl_b32 s{sT1}, s{sCB}, 3\ns_add_u32 s{sHF}, s{sT0}, s{sT1}")
    RHO = c.hb[0]
    def f_setup():
        a(f"""
        s_lshr_b32 s{sMH}, s{sW}, 2
        s_bfe_u32 s{sT0}, s{sW}, 0x10001
        s_and_b32 s{sT1}, s{sW}, 1
        s_mul_i32 s{sT0}, s{sT0}, 6
        s_lshl_b32 s{sT2}, s{sT1}, 2
        s_add_u32 s{sNT}, s{sT0}, s{sT2}
        s_add_u32 s{sNT+1}, s{sNT}, 1
        s_add_u32 s{sNT+2}, s{sT0}, s{sT1}
        s_add_u32 s{sNT+2}, s{sNT+2}, 2
        s_cmp_eq_u32 s{sMH}, 0
        s_cselect_b32 s{sMSK}, -1, 0x7fff7fff
        s_cselect_b32 s{sMSK+1}, -1, 0x7fff7fff
        v_lshrrev_b32 v{T0}, 1, v{R}
        v_xor_b32 v{T0}, v{T0}, v{G}
        v_lshlrev_b32 v{T0}, 4, v{T0}
        v_lshl_add_u32 v{T0}, v{R}, 7, v{T0}
        s_mul_i32 s{sT0}, s{sMH}, {5*2048}
        s_add_u32 s{sT0}, s{sT0}, {c.stg}
        v_add_u32 v{c.xb[0]}, s{sT0}, v{T0}
        v_xor_b32 v{c.xb[1]}, 64, v{c.xb[0]}
        """)
        rho_local(a, T0, T1)
        a(f"""
        v_bfe_u32 v{T2}, v{T0}, 1, 2
        v_mul_u32_u24 v{T0}, 384, v{T0}
        v_and_b32 v{T1}, 3, v{LANE}
        v_lshl_add_u32 v{T0}, v{T1}, 3, v{T0}
        v_add_u32 v{T0}, {c.xsz+c.stg}, v{T0}
        """)
        for f in range(3):
            a(f"v_xor_b32 v{T1}, s{sNT+f}, v{T2}\nv_lshl_add_u32 v{c.wb[f]}, v{T1}, 5, v{T0}")
        a(f"""
        s_mul_i32 s{sT0}, s{sRB}, {FROWS}
        s_mul_i32 s{sT1}, s{sMH}, 80
        s_add_u32 s{sT0}, s{sT0}, s{sT1}
        v_add_u32 v{RHO}, s{sT0}, v{R}
        v_lshlrev_b32 v{T0}, 4, v{RHO}
        v_add_u32 v{c.VRA}, {STO}, v{T0}
        """)
        for s in range(2):
            for r in range(4): a(f"v_mov_b32 v{c.X[s][4]+r}, 0x3f803f80")
        a(f"v_lshlrev_b32 v{T0}, 3, v{G}\ns_mul_i32 s{sT2}, s{sCB}, 384")
        for f in range(3):
            a(f"s_lshl_b32 s{sT1}, s{sNT+f}, 5\ns_add_u32 s{sT1}, s{sT1}, s{sT2}")
            a(f"buffer_load_dwordx2 {vr(B1+2*f,2)}, v{T0}, {sr(SWT,4)}, s{sT1} offen")
    pre_loop(c, f_setup)
    rec = [[f"v_add_u32 v{T3}, {256*i}, v{c.VRA}", f"v_min_u32 v{T3}, {STO+2047*16}, v{T3}",
            f"buffer_load_dwordx4 {vr(c.REC+4*i,4)}, v{T3}, {sr(SFL,4)}, 0 offen sc1"] for i in range(5)]
    CA = 17
    c.tailx = [[f"v_lshlrev_b32 v{T3}, 4, v{G}"]] + [lines(f"s_lshl_b32 s{sT0}, s{sNT+f}, 6\ns_add_u32 s{sT0}, s{sT0}, {L_CS}\nv_add_u32 v{CA+f}, s{sT0}, v{T3}") for f in range(3)]
    main_loop(a, c, S, "f", rec)
    a(f"s_waitcnt vmcnt({c.yrec})")
    poll(a, sum(rec, []), [c.REC+4*i+2 for i in range(5)], True)
    lc = a.uid("Lc")
    a(f"s_cmp_eq_u32 s{sMH}, 0\ns_cbranch_scc1 {lc}\ns_not_b64 exec, {sr(sMSK,2)}")
    for f in range(3): a(f"ds_write_b128 v{CA+f}, {vr(c.acc[f][4],4)}")
    a("s_mov_b64 exec, -1\ns_waitcnt lgkmcnt(0)")
    a.label(lc)
    a("s_barrier")
    CC = c.VPS; VA = 11
    CSR = eal(12, 2); TT = [eal(2,2) for _ in range(4)] + [12, B1+6]
    assert eal.n <= WREG, eal.n
    for f in range(3): a(f"ds_read_b128 {vr(CSR+4*f,4)}, v{CA+f}")
    BFp = [c.REC+4*i+2 for i in range(5)] + [B1+4]
    OUTP = [B1, 16]; SG = 20
    assert RHO == 15
    rest = [p for p in list(range(25)) + LA_ + LB if p not in c.early]
    rg = [wfrag(p) for p in rest]
    F1, F2 = rg[:fn1], rg[fn1:]
    I = Inter(a, [], 1000)
    if fevery:
        I = Inter(a, F1, fevery); F1 = []
    half(F1, True)
    c0 = -2*math.sqrt(2/math.pi)*math.log2(math.e); c1 = c0*0.044715
    for j in range(5): I(f"v_lshlrev_b32 v{BFp[j]}, 16, v{B1+j}\nv_and_b32 v{BFp[j]+1}, 0xffff0000, v{B1+j}")
    I(f"v_lshlrev_b32 v{B1+4}, 16, v{B1+5}\nv_and_b32 v{B1+5}, 0xffff0000, v{B1+5}")
    I(f"v_mov_b32 v{CC}, {f32(c0)}\nv_mov_b32 v{CC+1}, {f32(c1)}\nv_mov_b32 v{CC+2}, 1.0")
    I(f"""
    v_and_b32 v{T2}, 15, v{RHO}
    v_lshlrev_b32 v{T2}, 4, v{T2}
    v_lshl_add_u32 v{T1}, v{G}, 8, v{T2}
    v_and_b32 v{T3}, 1, v{G}
    v_lshl_add_u32 v14, v{T3}, 8, v{T2}
    v_lshrrev_b32 v{T0}, 4, v{RHO}
    v_lshrrev_b32 v{T3}, 5, v{LANE}
    v_add_u32 v{RHO}, v{T0}, v{T3}
    s_mul_i32 s{sT2}, s{sCB}, 6
    s_add_u32 s{sT2}, s{sT2}, 20
    s_lshr_b32 s{sT0}, s{sNT}, 1
    s_add_u32 s{sT0}, s{sT0}, s{sT2}
    s_lshl_b32 s{sKX}, s{sT0}, 12
    s_lshr_b32 s{sT0}, s{sNT+2}, 1
    s_add_u32 s{sT0}, s{sT0}, s{sT2}
    s_lshl_b32 s{sKW}, s{sT0}, 12
    s_and_b32 s{sT0}, s{sNT+2}, 1
    s_lshl_b32 s{sT0}, s{sT0}, 9
    s_add_u32 s{sKW}, s{sKW}, s{sT0}
    s_mov_b32 s{sT3}, {74*4096}
    s_waitcnt lgkmcnt(0)
    """)
    a(f"s_cmp_eq_u32 s{sMH}, 0\ns_cselect_b32 s{sMSK}, -1, 0x00ff00ff\ns_mov_b32 s{sMSK+1}, s{sMSK}")
    def gelu_pair(h, cs, b, st, t, dst):
        return [f"v_pk_fma_f32 {vr(t,2)}, {vr(cs,2)}, {vr(st,2)}, {vr(b,2)} op_sel:[0,1,0] op_sel_hi:[1,1,1]",
                f"v_pk_fma_f32 {vr(h,2)}, {vr(h,2)}, {vr(st,2)}, {vr(t,2)} op_sel:[0,0,0] op_sel_hi:[1,0,1]",
                f"v_pk_mul_f32 {vr(t,2)}, {vr(h,2)}, {vr(h,2)}",
                f"v_pk_fma_f32 {vr(t,2)}, {vr(t,2)}, {vr(CC,2)}, {vr(CC,2)} op_sel:[0,1,0] op_sel_hi:[1,1,0]",
                f"v_pk_mul_f32 {vr(t,2)}, {vr(t,2)}, {vr(h,2)}",
                f"v_exp_f32 v{t}, v{t}",
                f"v_exp_f32 v{t+1}, v{t+1}",
                f"v_pk_add_f32 {vr(t,2)}, {vr(t,2)}, {vr(CC+2,2)} op_sel_hi:[1,0]",
                f"v_rcp_f32 v{t}, v{t}",
                f"v_rcp_f32 v{t+1}, v{t+1}",
                f"v_pk_mul_f32 {vr(t,2)}, {vr(t,2)}, {vr(h,2)}",
                f"v_cvt_pk_bf16_f32 v{dst}, v{t}, v{t+1}"]
    def blkaddr(dst, tile, low):
        I(f"""
        v_lshrrev_b32 v{T2}, 2, v{tile}
        v_mul_lo_u32 v{T2}, v{T2}, s{sT3}
        v_and_b32 v{T3}, 3, v{tile}
        v_lshl_add_u32 v{T2}, v{T3}, 10, v{T2}
        v_add_u32 v{dst}, v{T2}, v{low}
        """)
    for i in range(5):
        o = OUTP[i & 1]
        streams = [gelu_pair(c.acc[f][i]+2*hp, CSR+4*f+2*hp, BFp[2*f+hp], c.REC+4*i, TT[2*f+hp],
                             (o+2*f+hp) if f < 2 else (SG+2*(i&1)+hp)) for f in range(3) for hp in range(2)]
        for k in range(len(streams[0])):
            for s in streams: I(s[k])
        blkaddr(VA, T0, T1)
        I(f"v_add_u32 v{T0}, 1, v{T0}")
        if i == 4: a(f"s_mov_b64 exec, {sr(sMSK,2)}")
        a(f"buffer_store_dwordx4 {vr(o,4)}, v{VA}, {sr(SHO,4)}, s{sKX} offen sc1")
        if i == 4: a("s_mov_b64 exec, -1")
        if i & 1 or i == 4:
            a(f"v_permlane32_swap_b32 v{SG}, v{SG+2}\nv_permlane32_swap_b32 v{SG+1}, v{SG+3}")
            blkaddr(VA, RHO, 14)
            I(f"v_add_u32 v{RHO}, 2, v{RHO}")
            if i == 4: a(f"s_mov_b32 exec_lo, s{sMSK}\ns_mov_b32 exec_hi, 0")
            a(f"buffer_store_dwordx4 {vr(SG,4)}, v{VA}, {sr(SHO,4)}, s{sKW} offen sc1")
            if i == 4: a("s_mov_b64 exec, -1")
    S(6)
    F2 = I.g + F2
    half(F1, False)
    if not sp: a(FLD)
    nb = min(len(F2)-1, NB)
    assert nb >= 0
    emit(F2[:nb])
    publish(nb+(not sp), len(F1))
    emit(F2[nb:])
    if not sp: a(f"s_waitcnt vmcnt({len(F2)})")
    a("s_branch Lphase2")
    a.label("Lidle")
    late_srds()
    emit([duty(a, 6, False)])
    pretouch(None)
    if 'tup' not in EXP: side_loads(a, stat=False)
    stat_loads(a)
    p2_setup(a, 11)
    a("s_waitcnt vmcnt(0)")
    t_work(a)
    a(f"v_mov_b32 v14, 0\nv_mov_b32 v15, 0\ns_waitcnt vmcnt(0)\ns_barrier")
    nonce_get(a, 14, 12)
    a("s_nop 1")
    s_work(a, 12)
    poll(a, [f"buffer_load_dwordx2 v[14:15], v11, {sr(SFL,4)}, 0 offen sc1"], [14], False)
    for l in p2_ldsbases(): a(l)
    emit([wfrag(p) for p in c.early + rest])
    a(f"v_mov_b32 v{VFD}, 0\nv_mov_b32 v{VFD+1}, 0")
    a.label("Lphase2")
    al = Alloc(12)
    al(2, 2); VLA = al(); VLB = al()
    acc = [[al(4,4) for m in range(4)] for n in range(5)]
    BUF = [al(16, 4), al(16, 4), WREG]
    XR = al(6, 2)
    B2 = [al(2, 2), WREG+16, WREG+18]
    assert al.n <= WREG, al.n
    S(8)
    if 'spoll' in EXP:
        l0, l1 = a.uid("Lsp"), a.uid("Lsp")
        a(f"v_readlane_b32 s{sPFO}, v{VF}, 0\nv_readlane_b32 s{sPFS}, v{VF}, 2\ns_mov_b32 s{sSP}, 0\ns_nop 3")
        a.label(l0)
        a(f"""
        s_buffer_load_dwordx4 s[12:15], {sr(SFL,4)}, s{sPFO} glc
        s_buffer_load_dwordx4 {sr(STMP,4)}, {sr(SFL,4)}, s{sPFS} glc
        s_add_u32 s{sSP}, s{sSP}, 1
        s_cmp_gt_u32 s{sSP}, 400000
        s_cbranch_scc1 {l1}
        s_waitcnt lgkmcnt(0)
        s_cmp_lg_u64 s[12:13], {sr(sNON,2)}
        s_cbranch_scc1 {l0}
        s_cmp_lg_u64 s[14:15], {sr(sNON,2)}
        s_cbranch_scc1 {l0}
        s_cmp_lg_u64 {sr(STMP,2)}, {sr(sNON,2)}
        s_cbranch_scc1 {l0}
        s_cmp_lg_u64 {sr(STMP+2,2)}, {sr(sNON,2)}
        s_cbranch_scc1 {l0}
        """)
        a.label(l1)
        a("s_waitcnt lgkmcnt(0)")
    elif 'nopoll' not in EXP: poll(a, [FLD], [VFD], 'nofld' not in EXP, SLEEP)
    S(9)
    RS_ = [WR0+20*t for t in range(5)]
    abuf = {u: BUF[u % 3] for u in range(9)}; abuf[9] = RS_[0]
    wloc = {u: RS_[u] for u in range(5)}
    wloc.update({5: RS_[0], 6: RS_[1], 7: RS_[2], 8: RS_[3], 9: RS_[4]})
    def aload(t):
        g = [[f"buffer_load_dwordx4 {vr(abuf[t]+4*m,4)}, v{VL}, {sr(SPF,4)}, s{sT3} offen offset:{1024*m} sc1"] for m in range(4)]
        g[0] = [f"s_lshl_b32 s{sT3}, s{sK+t}, 12"] + g[0]
        return g
    ops = []
    for t in (0, 1, 2): emit(aload(t)); ops += [t]*4
    SOX, SOB = [sKX, sKW, sDELTA], [sSLOT, sW1K, sMH]
    setup = [lines(f"v_add_u32 v{VLA}, s{sFILL}, v{VL}\nv_add_u32 v{VLB}, s{sFW}, v{VL}\ns_mul_i32 s{sT0}, s{sC2}, 160")]
    for j in range(3):
        setup += chunks(lines(f"""
        s_add_u32 s{sT1}, s{sW}, {8*j}
        s_mul_i32 s{sT2}, s{sT1}, 52
        s_lshr_b32 s{sT2}, s{sT2}, 8
        s_mul_i32 s{sT3}, s{sT2}, 5
        s_sub_u32 s{sT1}, s{sT1}, s{sT3}
        s_lshl_b32 s{sT1}, s{sT1}, 5
        s_mul_i32 s{sT2}, s{sT2}, 20480
        s_add_u32 s{SOX[j]}, s{sT2}, s{sT1}
        s_add_u32 s{SOB[j]}, s{sT0}, s{sT1}
        """), 3)
    for d, p, sz in ((STMP, P_B2, 1280), (SW, P_OUT, XB)):
        setup += [[f"s_mov_b32 s{d}, s{p}", f"s_mov_b32 s{d+1}, s{p+1}"], [f"s_mov_b32 s{d+2}, {sz}", f"s_mov_b32 s{d+3}, 0x00020000"]]
    setup.append([f"v_lshlrev_b32 v{T1}, 3, v{G}"])
    def pw(n, m):
        q = m*5+n
        ad, off = (VLA, q*1024) if q < 8 else (VLB, (q-8)*1024)
        return f"ds_write_b128 v{ad}, {vr(acc[n][m],4)} offset:{off}"
    def sonly(groups):
        lab = a.uid("Lso")
        return [f"s_cmp_ge_u32 s{sW}, 2", f"s_cbranch_scc1 {lab}"] + sum(groups, []) + [lab + ":"]
    tl = [(n, m) for n in range(5) for m in range(4)]
    for t in (0, 1, 2, 3, 4, 5, 6, 7, 9, 8):
        if t == 9:
            a(f"s_cmp_ge_u32 s{sW}, 2\ns_cbranch_scc1 Lp2skip")
            a(f"s_waitcnt vmcnt(6)")
        else:
            if t == 8: a.label("Lp2skip")
            younger = len(ops) - 1 - max(i for i, o in enumerate(ops) if o == t)
            a(f"s_waitcnt vmcnt({younger})" + (" lgkmcnt(0)" if t == 5 else ""))
        M = [mfma(acc[n][m], wloc[t]+4*n, abuf[t]+4*m, t == 0) for (n, m) in tl]
        items = []
        if t == 0: items += even(setup, 20, 0)
        if 1 <= t <= 6:
            items += [(0+5*k, g) for k, g in enumerate(aload(t+2))]; ops += [t+2]*4
        if 1 <= t <= 4:
            for n in range(5):
                phi = (t+4)*5+n
                ad, off = (VLA, (phi-25)*1024) if phi < 33 else (VLB, (phi-33)*1024)
                items.append((2+4*n, [f"ds_read_b128 {vr(wloc[t+4]+4*n,4)}, v{ad} offset:{off}"]))
        if t == 5: items.append((18, sonly([wfrag(45+n, wloc[9]+4*n) for n in range(5)])))
        if t == 6: items.append((18, sonly(aload(9))))
        if t == 7:
            for j in range(3): items.append((1+6*j, [f"buffer_load_dwordx2 {vr(XR+2*j,2)}, v{VXO}, {sr(SX,4)}, s{SOX[j]} offen"])); ops.append('x')
            for j in range(3): items.append((4+6*j, [f"buffer_load_dwordx2 {vr(B2[j],2)}, v{T1}, {sr(STMP,4)}, s{SOB[j]} offen"])); ops.append('b')
        if t == 8: items += [(k, [pw(*tl[k-8])]) for k in range(8, 20)]
        for l in spread(M, items): a(l)
        if t == 8:
            a("s_nop 0")
            for k in range(12, 20): a(pw(*tl[k]))
        if t != 8 and 'p2st' in EXP: S(40+t)
    a(f"""
    s_lshl_b32 s{sT0}, s{sW}, 10
    v_add_u32 v{T0}, s{sT0}, v{VL}
    v_add_u32 v{T2}, {L_A}, v{T0}
    v_add_u32 v{T3}, {4*12288}, v{T0}
    """)
    S(52)
    a("s_waitcnt lgkmcnt(0)\ns_barrier")
    S(53)
    P = [[acc[0][0] + (j*8+s)*4 for s in range(8)] for j in range(3)]
    assert P[2][7]+4 <= XR
    def rdtile(j):
        for s in range(8):
            if j == 0: ad, off = T2, s*8192
            else: ad, off = (T0 if s < 4 else T3), (s%4)*12288 + (j-1)*8192
            a(f"ds_read_b128 {vr(P[j][s],4)}, v{ad} offset:{off}")
    L2E = f32(-math.log2(math.e))
    def fin(j):
        o = []
        p = P[j]
        Sx, Y, Z = p[0], p[2], p[3]
        for h in (0, 2):
            for k in (0, 2, 4, 6): o.append(f"v_pk_add_f32 {vr(p[k]+h,2)}, {vr(p[k]+h,2)}, {vr(p[k+1]+h,2)}")
        def unp(x, q):
            return lines(f"v_lshlrev_b32 v{x}, 16, v{q}\nv_and_b32 v{x+1}, 0xffff0000, v{q}\nv_lshlrev_b32 v{x+2}, 16, v{q+1}\nv_and_b32 v{x+3}, 0xffff0000, v{q+1}")
        o += unp(Z, B2[j])
        for h in (0, 2):
            o.append(f"v_pk_add_f32 {vr(p[2]+h,2)}, {vr(p[2]+h,2)}, {vr(p[4]+h,2)}")
            o.append(f"v_pk_add_f32 {vr(p[6]+h,2)}, {vr(p[6]+h,2)}, {vr(Z+h,2)}")
        for h in (0, 2): o.append(f"v_pk_add_f32 {vr(Y+h,2)}, {vr(Y+h,2)}, {vr(p[6]+h,2)}")
        for r in range(4): o.append(f"v_mul_f32 v{Z+r}, {L2E}, v{Y+r}")
        for r in range(4): o.append(f"v_exp_f32 v{Z+r}, v{Z+r}")
        for r in range(4): o.append(f"v_add_f32 v{Z+r}, 1.0, v{Z+r}")
        for r in range(4): o.append(f"v_rcp_f32 v{Z+r}, v{Z+r}")
        for h in (0, 2): o.append(f"v_pk_mul_f32 {vr(Y+h,2)}, {vr(Y+h,2)}, {vr(Sx+h,2)}")
        o += unp(p[4], XR+2*j)
        for r in range(4): o.append(f"v_fma_f32 v{Y+r}, v{Y+r}, v{Z+r}, v{p[4]+r}")
        o += [f"v_cvt_pk_bf16_f32 v{Sx}, v{Y}, v{Y+1}", f"v_cvt_pk_bf16_f32 v{Sx+1}, v{Y+2}, v{Y+3}",
              f"buffer_store_dwordx2 {vr(Sx,2)}, v{VXO}, {sr(SW,4)}, s{SOX[j]} offen {OSF}"]
        return o
    rdtile(0); rdtile(1)
    l3 = a.uid("L3")
    a(f"s_cmp_ge_u32 s{sW}, 4\ns_cbranch_scc1 {l3}")
    rdtile(2)
    a("s_waitcnt vmcnt(0) lgkmcnt(8)")
    for x, y in zip(fin(0), fin(1)): a(x); a(y)
    a("s_waitcnt lgkmcnt(0)")
    for x in fin(2): a(x)
    a("s_branch Lfin")
    a.label(l3)
    a("s_waitcnt vmcnt(0) lgkmcnt(0)")
    for x, y in zip(fin(0), fin(1)): a(x); a(y)
    a.label("Lfin")
    S.finish(54)
    a.label("Lend")
    a("s_endpgm")
    ref = open(f"cdna_kernels/{NAME}.s.ref").read().split("\n")
    hdr = [l for l in ref if l.startswith(";") and "@launch" not in l]
    out = "\n".join(hdr) + f"\n; @launch grid=(256,1,1) block=(512,1,1) lds={LDS_TOTAL}\n"
    out += '.amdgcn_target "amdgcn-amd-amdhsa--gfx950"\n' + khead(name) + a.text() + kd(name, 256, 102)
    return out

if __name__ == "__main__":
    path = sys.argv[1]
    kw = eval("dict(" + (sys.argv[2] if len(sys.argv) > 2 else "") + ")")
    open(path, "w").write(gen(**kw))
```

```python
from asmlib import *
import math, sys
NAME = "recurrent_scan__sliding_local_dilated__dense_activation_gelu__prompt"
XB = 2048*640*2
HO_SZ = 32*74*4096
WT_OFF, WT_SZ = 0xB00000, 8*74*5*1024
FLB = 0x400000
TFO, STO = FLB+0x1000, FLB+0x4000
FL_SZ = FLB + 0x10000
BIG = 0x7ff00000
RS = 592
L_TST, L_CS, L_A = 147456, 88064, 98304
LA_ = list(range(25, 33)); LB = [33, 34] + list(range(36, 45)) + [35]
WR0 = 156
VFD = 12
LDS_TOTAL = 163840
FROWS = 152

SX, SW, SHO, SPF, SWT, SFL, SDBG, STMP = 4, 8, 16, 20, 24, 28, 32, 36
sXA, sXB, sEM, sWO = 12, 13, 14, 15
P_X, P_WQ, P_WO, P_W1, P_B1, P_W2, P_B2, P_OUT, P_DBG, P_WS = 40, 42, 44, 48, 50, 52, 54, 56, 58, 60
(sW, sRB, sCB, sI, sKX, sKW, sTM, sFILL, sDELTA, sSLOT, sW1K, sT0, sT1, sT2, sT3, sMH) = range(62, 78)
sNT = 78; sNON = 82; sMSK = 84; sR2, sC2 = 50, 51; sK = 88; sSP = 98; sN2 = 99
sWM = 100
sFW, sWB = 3, 47
sHF = 43
sPFO, sPFS, sPG = 46, 86, 87
sRM, sRH = 48, 49
sTS = [44, 45, 52, 53]
VF, LANE, G, R, T0, T1, T2, T3, VST, VL, VXO = 0, 1, 2, 3, 4, 5, 6, 7, 8, 9, 10
WREG = 136
SIDE = 232
RT = 5; MAP2 = 81; ROTA = 2; EXP = set(); PFF = ""; DN = 2; DMASK = 0b101; DPRE = 2; SP = dict(tw=1, nonce=3, sl=3, sw=5, tf=5); TFL = "nt"; RECIT = 9

def mfma(d, a_, b_, c0=False): return f"v_mfma_f32_16x16x32_bf16 {vr(d,4)}, {vr(a_,4)}, {vr(b_,4)}, " + ("0" if c0 else vr(d,4))
def chunks(l, n): return [l[i:i+n] for i in range(0, len(l), n)]
def merge(groups, n): return [sum(g, []) for g in chunks(groups, n)]
def lines(t): return [l.strip() for l in t.strip("\n").split("\n") if l.strip()]
def srd(a, d, p, size, off=None):
    if off is None: a(f"s_mov_b32 s{d}, s{p}\ns_mov_b32 s{d+1}, s{p+1}")
    else: a(f"s_add_u32 s{d}, s{p}, {off}\ns_addc_u32 s{d+1}, s{p+1}, 0")
    a(f"s_mov_b32 s{d+2}, {size}\ns_mov_b32 s{d+3}, 0x00020000")

class St:
    def __init__(s, a, on): s.a, s.on = a, on
    def start(s):
        if s.on: s.a(f"s_memtime s[0:1]\nv_mov_b32 v{VST}, 0\ns_waitcnt lgkmcnt(0)\nv_writelane_b32 v{VST}, s0, 59\nv_writelane_b32 v{VST}, s94, 0\nv_writelane_b32 v{VST}, s96, 62")
    def __call__(s, i):
        if s.on: s.a(f"s_memtime s[0:1]\ns_waitcnt lgkmcnt(0)\nv_writelane_b32 v{VST}, s0, {i}")
    def dyn(s, base):
        if s.on and ((base == 30 and 'nobar' not in EXP) or 'lst' in EXP):
            s.a(f"s_memtime s[0:1]\ns_add_u32 m0, s{sI}, {base}\ns_waitcnt lgkmcnt(0)\nv_writelane_b32 v{VST}, s0, m0")
    def finish(s, i):
        if not s.on: return
        s.a(f"""
        s_waitcnt vmcnt(0)
        s_memtime s[0:1]
        s_waitcnt lgkmcnt(0)
        v_writelane_b32 v{VST}, s0, {i}
        s_memrealtime s[0:1]
        s_waitcnt lgkmcnt(0)
        v_writelane_b32 v{VST}, s0, 63
        s_lshl_b32 s3, s2, 3
        s_add_u32 s3, s3, s{sW}
        s_lshl_b32 s3, s3, 8
        s_add_u32 s3, s3, {STAMP_OFF}
        s_add_u32 s{STMP}, s{P_WS}, s3
        s_addc_u32 s{STMP+1}, s{P_WS+1}, 0
        s_mov_b32 s{STMP+2}, 256
        s_mov_b32 s{STMP+3}, 0x00020000
        v_lshlrev_b32 v{T0}, 2, v{LANE}
        buffer_store_dword v{VST}, v{T0}, {sr(STMP,4)}, 0 offen
        """)
class Cfg: inloop = False

def wld(c, u):
    ld = f"buffer_load_dwordx4 v{c.VW[u]}, {sr(SW,4)}, s{sKW} offen offset:{1024*u} lds"
    return [f"s_mov_b64 exec, {sr(sWM,2)}", ld, "s_mov_b64 exec, -1"] if u == 3 else [ld]
def dmaA(c, a):
    lab = a.uid("Lsk")
    return [[f"s_add_u32 m0, s{sFILL}, s{sW1K}", f"s_add_u32 s{sXA}, s{sXA}, 128"],
            [f"buffer_load_dwordx4 v{c.VX[0]}, {sr(SX,4)}, s{sXA} offen lds"],
            [f"buffer_load_dwordx4 v{c.VX[1]}, {sr(SX,4)}, s{sXA} offen offset:1024 lds"],
            [f"s_cbranch_vccz {lab}", f"s_add_u32 m0, s{sFILL}, s{sEM}", f"s_add_u32 s{sXB}, s{sXB}, 128",
             f"buffer_load_dwordx4 v{c.VX[2]}, {sr(SX,4)}, s{sXB} offen lds", lab + ":"],
            [f"s_add_u32 m0, s{sFILL}, s{sWB}", f"s_add_u32 s{sKW}, s{sKW}, {64*c.wrowb}"]] + ([wld(c, 0)] if c.nW == 4 else [])
def dmaB(c, a): return [wld(c, u) for u in range(c.nW-3, c.nW)]
def guard(a, groups, old):
    out = []
    for g in groups:
        lab = a.uid("Lg")
        out.append([f"s_cbranch_vcc{'z' if old else 'nz'} {lab}"] + g + [lab + ":"])
    return out
SETVCC = None
def reads(c, st, s):
    r = []
    if 'xrd' in EXP and c.inloop: return [['s_nop 0']]
    for i in range(c.nM):
        ins = f"ds_read_b128 {vr(c.X[st][i],4)}, v{c.xb[s]} offset:{i*2048}"
        if (not c.nh) and i == c.nM-1: r.append([f"s_mov_b64 exec, {sr(sMSK,2)}", ins, "s_mov_b64 exec, -1"])
        else: r.append([ins])
    if c.nh: r.append([f"s_mov_b64 exec, {sr(sMSK,2)}", f"ds_read_b128 {vr(c.XH[st],4)}, v{c.hb[s]}", "s_mov_b64 exec, -1"])
    for f in range(c.nF):
        r.append([f"ds_read_b64_tr_b16 {vr(c.W[st][f],2)}, v{c.wb[f]} offset:{s*32*c.wrow}"])
        r.append([f"ds_read_b64_tr_b16 {vr(c.W[st][f]+2,2)}, v{c.wb[f]} offset:{s*32*c.wrow+8*c.wrow}"])
    return r
def mfmas(c, st, c0=False):
    m = []
    for f in range(c.nF):
        for i in range(c.nM): m.append(mfma(c.acc[f][i], c.W[st][f], c.X[st][i], c0))
        if f < c.nh: m.append(mfma(c.acch[f], c.W[st][f], c.XH[st], c0))
    return m
def spread(main, items):
    out = []
    for i, m in enumerate(main):
        out.append(m)
        for p, g in items:
            if p == i or (i == len(main)-1 and p > i): out.extend(g)
    return out
def even(groups, n, lo=1):
    k = len(groups)
    return [(lo + (j*(n-lo))//k, g) for j, g in enumerate(groups)] if k else []

def stat_row(a):
    a(f"""
    s_and_b32 s{sT0}, s2, 1
    s_lshl_b32 s{sT0}, s{sT0}, 10
    s_bfe_u32 s{sT2}, s2, 0x20001
    s_lshl_b32 s{sT2}, s{sT2}, 8
    s_add_u32 s{sT0}, s{sT0}, s{sT2}
    s_and_b32 s{sT2}, s2, 0xf8
    s_add_u32 s{sT0}, s{sT0}, s{sT2}
    s_sub_u32 s{sT2}, s{sW}, 6
    s_lshl_b32 s{sT2}, s{sT2}, 2
    s_add_u32 s{sT0}, s{sT0}, s{sT2}
    """)
def nonce_get(a, vN, vPS):
    l0, l1, l2, l3 = a.uid("Lno"), a.uid("Lno"), a.uid("Lno"), a.uid("Lno")
    assert vN == vPS + 2 and vPS % 2 == 0
    a(f"s_mov_b32 s{sSP}, 0")
    a.label(l0)
    a(f"""
    v_readfirstlane_b32 s{sNON}, v{vN}
    v_readfirstlane_b32 s{sNON+1}, v{vN+1}
    s_add_u32 s{sSP}, s{sSP}, 1
    s_cmp_gt_u32 s{sSP}, 100000
    s_cbranch_scc1 {l1}
    s_cmp_lg_u32 s{sNON}, 0
    s_cbranch_scc1 {l1}
    v_mov_b32 v{T0}, 0
    buffer_load_dwordx2 {vr(vN,2)}, v{T0}, {sr(SDBG,4)}, 0 offen sc1
    s_waitcnt vmcnt(0)
    s_branch {l0}
    """)
    a.label(l1)
    a(f"""
    s_cmp_lg_u32 s{sW}, 0
    s_cbranch_scc1 {l2}
    s_lshl_b32 s{sT1}, s2, 3
    v_mov_b32 v{T0}, {TFO}
    s_mov_b64 exec, 1
    buffer_store_dwordx2 {vr(vN,2)}, v{T0}, {sr(SFL,4)}, s{sT1} offen sc1
    s_mov_b64 exec, -1
    """)
    a.label(l2)
def poll(a, loads, cmps, preloaded, sleep=0):
    l0, l1, l2 = a.uid("Lpo"), a.uid("Lpo"), a.uid("Lpo")
    a(f"s_mov_b32 s{sSP}, 0")
    if preloaded: a(f"s_branch {l2}")
    a.label(l0)
    for l in loads: a(l)
    a("s_waitcnt vmcnt(0)")
    a.label(l2)
    for k, v in enumerate(cmps):
        if k == 0: a(f"v_cmp_eq_u64 vcc, {sr(sNON,2)}, {vr(v,2)}")
        else: a(f"v_cmp_eq_u64 {sr(sT1,2)}, {sr(sNON,2)}, {vr(v,2)}\ns_nop 0\ns_and_b64 vcc, vcc, {sr(sT1,2)}")
    a(f"""
    s_add_u32 s{sSP}, s{sSP}, 1
    s_cmp_gt_u32 s{sSP}, 100000
    s_cbranch_scc1 {l1}
    s_cmp_eq_u64 vcc, -1
    """)
    if sleep: a(f"s_cbranch_scc1 {l1}\ns_sleep {sleep}\ns_branch {l0}")
    else: a(f"s_cbranch_scc0 {l0}")
    a.label(l1)

def wfrag(phi, dst=None):
    t, n = divmod(phi, 5)
    pre = [f"s_mul_i32 s{sTM}, s{sK+t}, 5120"]
    if phi < 25 or dst is not None:
        d = WR0+4*phi if dst is None else dst
        if n < 4: return pre + [f"buffer_load_dwordx4 {vr(d,4)}, v{VL}, {sr(SWT,4)}, s{sTM} offen offset:{1024*n} sc1"]
        return pre + [f"s_add_u32 s{sTM}, s{sTM}, 4096", f"buffer_load_dwordx4 {vr(d,4)}, v{VL}, {sr(SWT,4)}, s{sTM} offen sc1"]
    base, o = (sFILL, (phi-25)*1024) if phi < 33 else (sFW, (phi-33)*1024)
    return [f"s_add_u32 m0, s{base}, {o}"] + pre + [f"s_add_u32 s{sTM}, s{sTM}, {1024*n}", f"buffer_load_dwordx4 v{VL}, {sr(SWT,4)}, s{sTM} offen sc1 lds"]
def p2_ldsbases():
    return [f"s_lshl_b32 s{sFILL}, s{sW}, 13", f"s_add_u32 s{sFILL}, s{sFILL}, {L_A}", f"s_mul_i32 s{sFW}, s{sW}, 12288"]

def stage_set(c, st):
    return [f"s_mov_b32 s{sFILL}, {((st+1) % 3) * c.stg}"]
def duty(a, n=2, guard=True):
    lab = a.uid("Ldu")
    g = [f"s_bitcmp1_b32 {DMASK}, s{sI}", f"s_cbranch_scc0 {lab}"] if guard else []
    for _ in range(n):
        g += lines(f"""
        s_cmp_ge_u32 s{sPFO}, s{sPG}
        s_cbranch_scc1 {lab}
        buffer_load_dword v255, v254, {sr(STMP,4)}, s{sPFO} offen {PFF}
        s_add_u32 s{sPFO}, s{sPFO}, s{sPFS}""")
    return g + [lab + ":"]

def atoms(group):
    if any(l.endswith(":") for l in group): return [group]
    out = []; k = 0
    while k < len(group):
        if group[k].startswith("s_mov_b64 exec"): out.append(group[k:k+3]); k += 3
        else: out.append([group[k]]); k += 1
    return out
def balance(M, streams, last):
    items = []
    for units, lo, hi in streams:
        tot = sum(len(u) for u in units); acc = 0
        for u in units:
            items.append((lo + (acc*(hi-lo+1))//max(tot, 1), u)); acc += len(u)
    return spread(M, items)

def iteration(a, c, S, kind, extra1=(), extra2=(), pre2=None):
    prio = 'noprio' not in EXP
    a("s_waitcnt lgkmcnt(0)")
    M = mfmas(c, 0, kind == 0); n = len(M)
    upd = lambda b: [f"v_add_u32 v{b}, s{sDELTA}, v{b}"]
    rd = reads(c, 1, 1); nx = c.nM + (1 if c.nh else 0)
    R = rd[:nx]
    if kind != 9: R = R + [upd(c.xb[1])] + ([upd(c.hb[1])] if c.nh else [])
    for f in range(c.nF):
        R += rd[nx+2*f:nx+2*f+2]
        if kind != 9 and f: R.append(upd(c.wb[f-1]))
    late = []
    if kind != 9: late = [upd(c.wb[c.nF-1]), upd(c.xb[0])] + ([upd(c.hb[0])] if c.nh else [])
    Sx = []; S0 = []
    if kind != 9:
        S0 = [[f"s_add_u32 s{sT1}, s{sSLOT}, {c.stg}", f"s_cmp_eq_u32 s{sT1}, {3*c.stg}", f"s_cselect_b32 s{sT1}, 0, s{sT1}"], [f"s_sub_u32 s{sDELTA}, s{sT1}, s{sSLOT}"]]
    if kind in ('loop', 7): Sx += dmaB(c, a)
    if kind == 0: Sx += dmaB(c, a) + [stage_set(c, 2)] + dmaA(c, a) + dmaB(c, a)
    Sx += sum([atoms(g) for g in extra1], [])
    if kind in ('loop', 0):
        Sx += [[f"s_mov_b32 s{sFILL}, s{sSLOT}"]]
    if kind != 9: Sx.append([f"s_mov_b32 s{sSLOT}, s{sT1}"])
    st = [(S0, 0, 1), (Sx, 0 if kind == 0 else 2, n-2), (R, 0, n-RT), (late, n-RT+1, n-2)]
    if prio: st = [([["s_setprio 1"]], 0, 0), ([["s_setprio 0"]], n//2, n//2)] + st
    for l in balance(M, st, n): a(l)
    S.dyn(10)
    if kind in ('loop', 0, 7): a(f"s_waitcnt vmcnt({c.nW+2}) lgkmcnt(0)")
    elif kind == 8: a(f"s_waitcnt vmcnt({c.y8}) lgkmcnt(0)")
    else: a("s_waitcnt lgkmcnt(0)")
    S.dyn(20)
    a("s_barrier")
    S.dyn(30)
    if prio: a("s_setprio 3")
    if pre2: pre2()
    M = mfmas(c, 1)
    R = reads(c, 0, 0) if kind != 9 else []
    Sx = []
    if kind in ('loop', 0):
        if c.duty: Sx.append(duty(a))
        Sx += dmaA(c, a)
    Sx += sum([atoms(g) for g in extra2], [])
    st = [(Sx, 0, n-3), (R, 0, n-RT)]
    if kind == 'loop':
        st.append(([[f"s_bitcmp1_b32 0x28, s{sI}", f"s_cbranch_scc1 Lspec_{c.tag}", f"Lret_{c.tag}:"]], n-3, n-3))
        st.append(([[f"s_add_u32 s{sI}, s{sI}, 1", f"s_cmp_lt_u32 s{sI}, 7"]], n-2, n-2))
    if prio: st.append(([["s_setprio 2"]], n//2, n//2))
    for l in balance(M, st, n): a(l)

def main_loop(a, c, S, tag, rec_loads):
    iteration(a, c, S, 0)
    if 'tup' in EXP: nonce_get(a, c.VN, c.VPS)
    else: t_work(a)
    a(f"s_mov_b32 s{sI}, 1")
    S(40)
    a.label(f"Lloop_{tag}")
    c.inloop = True; c.tag = tag
    iteration(a, c, S, 'loop')
    c.inloop = False
    a(f"s_cbranch_scc1 Lloop_{tag}")
    a(f"s_branch Lpost_{tag}")
    l5 = a.uid("Ls")
    tf = f"buffer_load_dwordx2 {vr(c.VN,2)}, v{c.VTF}, {sr(SFL,4)}, 0 offen sc1"
    a.label(f"Lspec_{tag}")
    a(f"s_cmp_lg_u32 s{sI}, 3\ns_cbranch_scc1 {l5}")
    stat_loads(a)
    a(f"s_branch Lret_{tag}")
    a.label(l5)
    a(tf)
    s_work(a, c.VPS)
    a(f"s_branch Lret_{tag}")
    a.label(f"Lpost_{tag}")
    S(41)
    early = [wfrag(p) for p in c.early]
    e = chunks(early, (len(early)+4)//5)
    def pre7():
        poll(a, [tf], [c.VN], True)
        for l in p2_ldsbases(): a(l)
    iteration(a, c, S, 7, extra2=e[0], pre2=pre7)
    a(f"s_add_u32 s{sI}, s{sI}, 1")
    c.y8 = len(e[0]) + len(e[1])
    iteration(a, c, S, 8, extra1=e[1], extra2=rec_loads + e[2])
    a(f"s_add_u32 s{sI}, s{sI}, 1")
    iteration(a, c, S, 9, extra1=e[3], extra2=e[4] + c.tailx)
    a("s_setprio 0")
    c.yrec = len(e[2]) + len(e[3]) + len(e[4])
    S(4)

def rho_local(a, d, t):
    a(f"v_bfe_u32 v{d}, v{LANE}, 2, 3\nv_lshrrev_b32 v{t}, 5, v{LANE}\nv_lshl_add_u32 v{d}, v{t}, 4, v{d}")

def t_issue(a, guard=True):
    ld = a.uid("Lti")
    if guard: a(f"s_sub_u32 s{sT1}, s{sW}, 3\ns_cmp_gt_u32 s{sT1}, 2\ns_cbranch_scc1 {ld}")
    a(f"s_lshl_b32 s{sT1}, s{sW}, 12")
    for q in range(4):
        a(f"s_add_u32 m0, s{sT1}, {L_TST-3*4096+1024*q}\ns_nop 0")
        a(f"buffer_load_dwordx4 v{SIDE+4+q}, {sr(STMP,4)}, 0 offen {TFL} lds")
    a.label(ld)
def side_loads(a, stat=True, issue=True):
    ld, lst, lh, lj = a.uid("Lt"), a.uid("Lt"), a.uid("Lt"), a.uid("Lt")
    sU, sKp, sCh = sKX, sKW, sDELTA
    A0, A1, ST0, ST1 = SIDE, SIDE+1, SIDE+2, SIDE+3
    for q in range(4): a(f"v_mov_b32 v{SIDE+4+q}, 0")
    a(f"s_cmp_lt_u32 s{sW}, 3\ns_cbranch_scc1 {ld}\ns_cmp_ge_u32 s{sW}, 6\ns_cbranch_scc1 {lst}")
    a(f"""
    s_mul_i32 s{sU}, s2, 3
    s_add_u32 s{sU}, s{sU}, s{sW}
    s_sub_u32 s{sU}, s{sU}, 3
    s_min_u32 s{sU}, s{sU}, 739
    s_mul_i32 s{sKp}, s{sU}, 6554
    s_lshr_b32 s{sKp}, s{sKp}, 16
    s_mul_i32 s{sT0}, s{sKp}, 10
    s_sub_u32 s{sCh}, s{sU}, s{sT0}
    v_lshrrev_b32 v{T0}, 5, v{LANE}
    s_cmp_ge_u32 s{sKp}, 20
    s_cbranch_scc1 {lh}
    """)
    for e, (A, ST) in enumerate(((A0, ST0), (A1, ST1))):
        a(f"""
        s_lshl_b32 s{sT0}, s{sKp}, 2
        s_add_u32 s{sT0}, s{sT0}, {2*e}
        v_add_u32 v{T1}, s{sT0}, v{T0}
        v_mul_u32_u24 v{T2}, 205, v{T1}
        v_lshrrev_b32 v{T2}, 10, v{T2}
        v_mul_u32_u24 v{T3}, 5, v{T2}
        v_sub_u32 v{T1}, v{T1}, v{T3}
        v_mul_u32_u24 v{A}, 40, v{T2}
        v_lshrrev_b32 v{T2}, 1, v{T1}
        v_mul_u32_u24 v{T2}, 20, v{T2}
        v_and_b32 v{T3}, 1, v{T1}
        v_lshl_add_u32 v{T2}, v{T3}, 3, v{T2}
        v_cmp_eq_u32 vcc, 4, v{T1}
        v_mov_b32 v{ST}, 20
        s_nop 0
        v_cndmask_b32 v{T2}, v{T2}, 16, vcc
        v_cndmask_b32 v{ST}, 4, v{ST}, vcc
        v_add_u32 v{A}, v{A}, v{T2}
        """)
    a("s_waitcnt lgkmcnt(0)")
    srd(a, STMP, P_WO, 640*1280)
    a(f"s_branch {lj}")
    a.label(lh)
    a(f"""
    s_sub_u32 s{sT0}, s{sKp}, 20
    s_mul_i32 s{sT1}, s{sT0}, 86
    s_lshr_b32 s{sT1}, s{sT1}, 8
    s_mul_i32 s{sT1}, s{sT1}, 3
    s_sub_u32 s{sT1}, s{sT0}, s{sT1}
    s_lshl_b32 s{sT0}, s{sT0}, 5
    v_lshl_add_u32 v{A0}, v{T0}, 2, s{sT0}
    s_cmp_eq_u32 s{sT1}, 1
    s_cselect_b32 s{sT1}, 16, 8
    s_cselect_b32 s{sT2}, 8, 16
    v_add_u32 v{A1}, s{sT1}, v{A0}
    v_mov_b32 v{ST0}, s{sT2}
    v_mov_b32 v{ST1}, s{sT2}
    """)
    a("s_waitcnt lgkmcnt(0)")
    srd(a, STMP, P_W2, 1728*1280)
    a.label(lj)
    a(f"""
    v_bfe_u32 v{T1}, v{LANE}, 3, 2
    v_and_b32 v{T2}, 7, v{LANE}
    v_lshlrev_b32 v{T2}, 4, v{T2}
    s_lshl_b32 s{sT0}, s{sCh}, 7
    s_lshl_b32 s{sT1}, s{sW}, 12
    """)
    for q in range(4):
        A, ST = ((A0, ST0), (A1, ST1))[q & 1]
        a(f"v_add_u32 v{T3}, v{A}, v{T1}")
        if q >> 1: a(f"v_add_u32 v{T3}, v{T3}, v{ST}")
        a(f"v_mul_u32_u24 v{T3}, 1280, v{T3}\nv_add3_u32 v{SIDE+4+q}, v{T3}, v{T2}, s{sT0}")
    if issue: t_issue(a, False)
    a(f"s_mul_i32 s{sT2}, s{sKp}, 5\ns_lshl_b32 s{sT3}, s{sCh}, 2")
    for t in range(4):
        a(f"""
        s_add_u32 s{sT0}, s{sT3}, {t}
        s_mul_i32 s{sT1}, s{sT0}, 52
        s_lshr_b32 s{sT1}, s{sT1}, 8
        s_mul_i32 s{sT1}, s{sT1}, 365
        s_add_u32 s{sT0}, s{sT0}, s{sT1}
        s_add_u32 s{sT0}, s{sT0}, s{sT2}
        s_lshl_b32 s{sTS[t]}, s{sT0}, 10
        """)
    a(f"s_branch {ld}")
    a.label(lst)
    if stat: stat_loads(a, False)
    a.label(ld)
def stat_loads(a, guard=True):
    ld = a.uid("Lsl")
    if guard: a(f"s_cmp_lt_u32 s{sW}, 6\ns_cbranch_scc1 {ld}")
    stat_row(a)
    a(f"s_mul_i32 s{sT0}, s{sT0}, 1280\nv_mul_u32_u24 v{T0}, 1280, v{G}\nv_lshl_add_u32 v{T0}, v{R}, 4, v{T0}")
    for i in range(5): a(f"buffer_load_dwordx4 {vr(SIDE+4*i,4)}, v{T0}, {sr(SX,4)}, s{sT0} offen offset:{256*i}")
    a.label(ld)
for u in range(1001): assert (u*6554)>>16 == u//10
for u in range(80): assert (u*205)>>10 == u//5
for u in range(54): assert (u*86)>>8 == u//3
for N in range(40): assert (N*52)>>8 == N//5

def t_work(a):
    lab = a.uid("Ltw")
    a(f"s_sub_u32 s{sT1}, s{sW}, 3\ns_cmp_gt_u32 s{sT1}, 2\ns_cbranch_scc1 {lab}")
    t_part(a)
    a.label(lab)
def s_work(a, vPS):
    lab = a.uid("Ltw")
    a(f"s_cmp_lt_u32 s{sW}, 6\ns_cbranch_scc1 {lab}")
    s_part(a, SIDE+20)
    a(f"v_mov_b32 v{SIDE}, v{SIDE+20}\nv_mov_b32 v{SIDE+1}, v{SIDE+21}\nv_mov_b32 v{SIDE+2}, s{sNON}\nv_mov_b32 v{SIDE+3}, s{sNON+1}")
    stat_row(a)
    a(f"""
    s_lshl_b32 s{sT0}, s{sT0}, 4
    s_add_u32 s{sT0}, s{sT0}, {STO}
    v_lshlrev_b32 v{T0}, 4, v{G}
    s_mov_b32 exec_lo, 0x00010001
    s_mov_b32 exec_hi, 0x00010001
    buffer_store_dwordx4 {vr(SIDE,4)}, v{T0}, {sr(SFL,4)}, s{sT0} offen sc1
    s_mov_b64 exec, -1
    """)
    a.label(lab)
def t_part(a):
    tmp = SIDE
    a(f"""
    v_lshrrev_b32 v{T0}, 2, v{LANE}
    v_lshlrev_b32 v{T0}, 7, v{T0}
    v_and_b32 v{T1}, 3, v{LANE}
    v_lshl_add_u32 v{T0}, v{T1}, 3, v{T0}
    s_lshl_b32 s{sT0}, s{sW}, 12
    s_add_u32 s{sT0}, s{sT0}, {L_TST-3*4096}
    v_add_u32 v{T0}, s{sT0}, v{T0}
    """)
    for t in range(4):
        a(f"ds_read_b64_tr_b16 {vr(tmp+4*t,2)}, v{T0} offset:{32*t}")
        a(f"ds_read_b64_tr_b16 {vr(tmp+4*t+2,2)}, v{T0} offset:{32*t+2048}")
    for t in range(4):
        a(f"s_waitcnt lgkmcnt({6-2*t})\nbuffer_store_dwordx4 {vr(tmp+4*t,4)}, v{VL}, {sr(SFL,4)}, s{sTS[t]} offen sc1")
def s_part(a, vPS):
    tmp = SIDE
    s, q = vPS, vPS+1
    a(f"v_mov_b32 v{s}, 0\nv_mov_b32 v{q}, 0\nv_mov_b32 v{T0}, 0x3f803f80")
    for j in range(20):
        a(f"v_dot2c_f32_bf16 v{s}, v{tmp+j}, v{T0}\nv_dot2c_f32_bf16 v{q}, v{tmp+j}, v{tmp+j}")
    a("s_nop 2")
    for sh in (8, 4, 2, 1):
        a(f"v_add_f32_dpp v{s}, v{s}, v{s} row_ror:{sh} row_mask:0xf bank_mask:0xf")
        a(f"v_add_f32_dpp v{q}, v{q}, v{q} row_ror:{sh} row_mask:0xf bank_mask:0xf")
        a("s_nop 0")
    a(f"""
    v_mul_f32 v{s}, {f32(1/640)}, v{s}
    v_mul_f32 v{q}, {f32(1/640)}, v{q}
    v_fma_f32 v{q}, -v{s}, v{s}, v{q}
    v_max_f32 v{q}, 0, v{q}
    v_cvt_pk_bf16_f32 v{T0}, v{s}, v{q}
    v_lshlrev_b32 v{T1}, 16, v{T0}
    v_and_b32 v{q}, 0xffff0000, v{T0}
    v_add_f32 v{q}, {f32(1e-5)}, v{q}
    v_cvt_pk_bf16_f32 v{q}, v{q}, v{q}
    v_and_b32 v{q}, 0xffff0000, v{q}
    v_sqrt_f32 v{q}, v{q}
    s_nop 0
    v_cvt_pk_bf16_f32 v{q}, v{q}, v{q}
    v_and_b32 v{q}, 0xffff0000, v{q}
    v_rcp_f32 v{s}, v{q}
    s_nop 0
    v_mul_f32 v{q}, v{T1}, v{s}
    v_sub_f32 v{q}, 0, v{q}
    """)

def p2_setup(a, VTF):
    if MAP2 == 81:
        a(f"""
    s_and_b32 s{sT0}, s2, 7
    s_lshl_b32 s{sR2}, s{sT0}, 2
    s_bfe_u32 s{sT1}, s2, 0x20003
    s_add_u32 s{sR2}, s{sR2}, s{sT1}
    s_lshr_b32 s{sC2}, s2, 5
    s_lshl_b32 s{sT1}, s{sT1}, 1
    s_mul_i32 s{sT0}, s{sC2}, {ROTA}
    s_lshr_b32 s{sT0}, s{sT0}, 1
    s_add_u32 s{sT1}, s{sT1}, s{sT0}
    """)
    else:
        a(f"""
    s_and_b32 s{sT0}, s2, 3
    s_lshl_b32 s{sR2}, s{sT0}, 3
    s_bfe_u32 s{sT1}, s2, 0x30003
    s_add_u32 s{sR2}, s{sR2}, s{sT1}
    s_and_b32 s{sC2}, s2, 4
    s_lshr_b32 s{sT0}, s2, 6
    s_add_u32 s{sC2}, s{sC2}, s{sT0}
    s_mul_i32 s{sT0}, s{sT0}, {ROTA}
    s_add_u32 s{sT1}, s{sT1}, s{sT0}
    """)
    a(f"""
    s_cmp_lt_u32 s{sW}, 2
    s_cselect_b32 s{sN2}, 10, 9
    s_cmp_ge_u32 s{sT1}, s{sN2}
    s_cselect_b32 s{sT2}, s{sN2}, 0
    s_sub_u32 s{sK}, s{sT1}, s{sT2}
    """)
    for t in range(1, 10):
        a(f"s_add_u32 s{sK+t}, s{sK+t-1}, 1\ns_cmp_eq_u32 s{sK+t}, s{sN2}\ns_cselect_b32 s{sK+t}, 0, s{sK+t}")
    a(f"""
    s_mul_i32 s{sT3}, s{sW}, 9
    s_min_u32 s{sT2}, s{sW}, 2
    s_add_u32 s{sT3}, s{sT3}, s{sT2}
    v_lshrrev_b32 v{T0}, 1, v{LANE}
    s_sub_u32 s{sT2}, s{sN2}, 1
    v_min_u32 v{T0}, s{sT2}, v{T0}
    v_add_u32 v{T0}, s{sT3}, v{T0}
    v_mul_u32_u24 v{T0}, 10, v{T0}
    s_mul_i32 s{sT2}, s{sC2}, 5
    s_lshr_b32 s{sT2}, s{sT2}, 2
    v_and_b32 v{T1}, 1, v{LANE}
    v_add3_u32 v{T0}, v{T0}, v{T1}, s{sT2}
    v_mul_u32_u24 v{T0}, 21846, v{T0}
    v_lshrrev_b32 v{T0}, 16, v{T0}
    v_lshlrev_b32 v{T0}, 3, v{T0}
    v_add_u32 v{VTF}, {TFO}, v{T0}
    s_mul_i32 s{sT2}, s{sC2}, 74
    s_add_u32 s{sT2}, s{sT2}, s{sT3}
    s_mul_i32 s{sT2}, s{sT2}, 5120
    s_add_u32 s{sT2}, s{sT2}, {WT_OFF}
    s_add_u32 s{SWT}, s{P_WS}, s{sT2}
    s_addc_u32 s{SWT+1}, s{P_WS+1}, 0
    s_mul_i32 s{SWT+2}, s{sN2}, {0 if 'now' in EXP else 5120}
    s_mov_b32 s{SWT+3}, 0x00020000
    s_mul_i32 s{sT2}, s{sR2}, 74
    s_add_u32 s{sT2}, s{sT2}, s{sT3}
    s_lshl_b32 s{sT2}, s{sT2}, 12
    s_add_u32 s{SPF}, s{P_WS}, s{sT2}
    s_addc_u32 s{SPF+1}, s{P_WS+1}, 0
    s_lshl_b32 s{SPF+2}, s{sN2}, 12
    {f"s_mov_b32 s{SPF+2}, 0" if 'noa' in EXP else ""}
    s_mov_b32 s{SPF+3}, 0x00020000
    """)
    ly, lyd = a.uid("Ly"), a.uid("Ly")
    a(f"""
    s_cmp_ge_u32 s{sW}, 2
    s_cbranch_scc1 {ly}
    s_lshr_b32 s{sT0}, s{sR2}, 1
    s_lshl_b32 s{sT0}, s{sT0}, 7
    s_lshl_b32 s{sT1}, s{sW}, 5
    s_add_u32 s{sT0}, s{sT0}, s{sT1}
    s_add_u32 s{sT0}, s{sT0}, {FLB+16*128}
    v_and_b32 v{T0}, 3, v{LANE}
    v_lshl_add_u32 v{VF}, v{T0}, 3, s{sT0}
    s_branch {lyd}
    """)
    a.label(ly)
    a(f"""
    s_lshl_b32 s{sT0}, s{sR2}, 6
    s_add_u32 s{sT1}, s{sT0}, 63
    s_mul_i32 s{sT0}, s{sT0}, 27595
    s_lshr_b32 s{sT0}, s{sT0}, 22
    s_mul_i32 s{sT1}, s{sT1}, 27595
    s_lshr_b32 s{sT1}, s{sT1}, 22
    s_sub_u32 s{sT1}, s{sT1}, s{sT0}
    s_lshl_b32 s{sT1}, s{sT1}, 7
    s_lshl_b32 s{sT0}, s{sT0}, 7
    s_sub_u32 s{sT2}, s{sW}, 2
    s_mul_i32 s{sT2}, s{sT2}, 3
    s_lshr_b32 s{sT2}, s{sT2}, 1
    s_lshl_b32 s{sT2}, s{sT2}, 3
    s_add_u32 s{sT0}, s{sT0}, s{sT2}
    s_add_u32 s{sT0}, s{sT0}, {FLB}
    v_and_b32 v{T0}, 1, v{LANE}
    v_lshlrev_b32 v{T0}, 3, v{T0}
    v_bfe_u32 v{T1}, v{LANE}, 1, 1
    v_mul_u32_u24 v{T1}, s{sT1}, v{T1}
    v_add3_u32 v{VF}, v{T0}, v{T1}, s{sT0}
    """)
    a.label(lyd)
    a(f"""
    s_lshl_b32 s{sT0}, s{sR2}, 6
    v_add_u32 v{T0}, s{sT0}, v{R}
    v_mul_u32_u24 v{T0}, 1280, v{T0}
    v_lshl_add_u32 v{T0}, v{G}, 3, v{T0}
    s_mul_i32 s{sT0}, s{sC2}, 160
    v_add_u32 v{VXO}, s{sT0}, v{T0}
    """)
for u in range(740): assert (u*21846)>>16 == u//3
for x in range(2048): assert (x*27595)>>22 == x//152

class Inter:
    def __init__(s, a, groups, every): s.a, s.g, s.e, s.n = a, list(groups), every, 0
    def __call__(s, txt):
        for l in lines(txt):
            s.a(l); s.n += 1
            if s.n % s.e == 0 and s.g:
                for x in s.g.pop(0): s.a(x)
    def flush(s, keep=0):
        while len(s.g) > keep:
            for x in s.g.pop(0): s.a(x)

def gen(stamps=False, PF=4, pff="", SLEEP=0, LP=None, rt=4, qevery=16, fn1=30, map2=81, rota=2, fevery=25, OSF='', exp="tup nofld", NB=0, dmask=0b10101, tfl="nt", nearly=10, TLB=0):
    global EXP, PFF, DN, DMASK, DPRE, TFL, MAP2, ROTA
    MAP2 = map2; ROTA = rota
    global RT
    RT = rt
    EXP = set(exp.split()); PFF = pff; TFL = tfl; DMASK = dmask
    a = Asm(); S = St(a, stamps)
    name = NAME + "_kernel"
    def emit(groups):
        for g in groups:
            for l in g: a(l)
    if stamps: a("s_memrealtime s[96:97]\ns_memtime s[94:95]")
    a(f"s_cmp_ge_u32 s2, 256\ns_cbranch_scc1 Lend")
    if 'badmap' in EXP: a("s_and_b32 s3, s2, 31\ns_lshl_b32 s3, s3, 3\ns_lshr_b32 s2, s2, 5\ns_or_b32 s2, s2, s3")
    a(f"s_load_dwordx16 s[40:55], s[0:1], 0\ns_load_dwordx4 s[56:59], s[0:1], 64\ns_load_dwordx2 s[60:61], s[0:1], 80")
    a(f"""
    v_lshrrev_b32 v{T0}, 6, v0
    v_and_b32 v{LANE}, 63, v0
    v_readfirstlane_b32 s{sW}, v{T0}
    v_lshrrev_b32 v{G}, 4, v{LANE}
    v_and_b32 v{R}, 15, v{LANE}
    v_lshlrev_b32 v{VL}, 4, v{LANE}
    s_lshl_b32 s{sW1K}, s{sW}, 11
    s_mov_b32 s{sI}, 0
    """)
    def pf_addr(nrow_cu, kper, nst, cidx_s, VD):
        pass
    lx, lq, ld, lw = a.uid("Lpf"), a.uid("Lpf"), a.uid("Lpf"), a.uid("Lpf")
    a(f"""
    s_bfe_u32 s{sT2}, s2, 0x40003
    s_lshr_b32 s{sT3}, s2, 7
    s_and_b32 s{sT0}, s2, 1
    s_bfe_u32 s{sT1}, s2, 0x20001
    s_mov_b32 s{sPG}, 0
    v_mov_b32 v254, 0
    s_cmp_ge_u32 s{sW}, 3
    s_cbranch_scc1 {lw}
    s_cmp_ge_u32 s{sW}, 1
    s_cbranch_scc1 {lq}
    s_lshl_b32 s{sT0}, s{sT0}, 10
    s_lshl_b32 s{sT1}, s{sT1}, 8
    s_lshl_b32 s{sT2}, s{sT2}, 4
    s_add_u32 s{sT0}, s{sT0}, s{sT1}
    s_add_u32 s{sT0}, s{sT0}, s{sT2}
    v_add_u32 v{T0}, s{sT0}, v{R}
    v_mul_u32_u24 v{T0}, 1280, v{T0}
    v_and_b32 v{T1}, 1, v{G}
    v_lshl_add_u32 v254, v{T1}, 7, v{T0}
    s_lshl_b32 s{sT0}, s{sT3}, 8
    s_mov_b32 s{sPFS}, 256
    s_mov_b32 s{sPG}, 1280
    s_waitcnt lgkmcnt(0)
    s_mov_b32 s{sPFO}, 512
    """)
    srd(a, STMP, P_X, XB)
    a(f"buffer_load_dword v255, v254, {sr(STMP,4)}, s{sT0} offen {pff}")
    a(f"s_branch {ld}")
    a.label(lq)
    a(f"""
    s_cmp_eq_u32 s{sW}, 2
    s_cbranch_scc1 {lx}
    v_min_u32 v{T0}, 35, v{LANE}
    v_mul_u32_u24 v{T1}, 57, v{T0}
    v_lshrrev_b32 v{T1}, 9, v{T1}
    v_mul_u32_u24 v{T3}, 9, v{T1}
    v_sub_u32 v{T0}, v{T0}, v{T3}
    s_lshl_b32 s{sT2}, s{sT2}, 2
    v_add_u32 v{T1}, s{sT2}, v{T1}
    v_mul_u32_u24 v{T1}, 3840, v{T1}
    v_mul_u32_u24 v{T3}, 43, v{T0}
    v_lshrrev_b32 v{T3}, 7, v{T3}
    v_mul_u32_u24 v{T3}, 896, v{T3}
    v_lshl_add_u32 v{T0}, v{T0}, 7, v{T3}
    s_mul_i32 s{sT1}, s{sT1}, 320
    s_and_b32 s{sT1}, s{sT1}, 0xffffff80
    v_add3_u32 v254, v{T0}, v{T1}, s{sT1}
    s_mul_i32 s{sT0}, s{sT3}, {128*3840}
    s_add_u32 s{sT1}, s{sT0}, {64*3840}
    s_mov_b32 s{sPFS}, {64*3840}
    s_mov_b32 s{sPG}, {640*3840}
    s_waitcnt lgkmcnt(0)
    s_mov_b32 s{sPFO}, {256*3840}
    """)
    srd(a, STMP, P_WQ, 640*3840)
    a(f"buffer_load_dword v255, v254, {sr(STMP,4)}, s{sT0} offen {pff}")
    a(f"buffer_load_dword v255, v254, {sr(STMP,4)}, s{sT1} offen {pff}")
    a(f"s_branch {ld}")
    a.label(lx)
    a(f"""
    s_and_b32 s{sT0}, s2, 127
    s_mul_i32 s{sT0}, s{sT0}, 3456
    v_min_u32 v{T0}, 26, v{LANE}
    v_lshl_add_u32 v254, v{T0}, 7, s{sT0}
    s_mul_i32 s{sT0}, s{sT3}, {128*3456}
    s_mov_b32 s{sPFS}, {128*3456}
    s_mov_b32 s{sPG}, {640*3456}
    s_waitcnt lgkmcnt(0)
    s_mov_b32 s{sPFO}, {256*3456}
    """)
    srd(a, STMP, P_W1, 640*3456)
    a(f"buffer_load_dword v255, v254, {sr(STMP,4)}, s{sT0} offen {pff}")
    a(f"s_branch {ld}")
    a.label(lw)
    if 'cpf' in EXP:
        lc_ = a.uid("Lcp")
        a(f"""
        s_cmp_lg_u32 s{sW}, 7
        s_cbranch_scc1 {lc_}
        s_getpc_b64 {sr(sNON,2)}
        s_and_b32 s{sNON}, s{sNON}, 0xffffff00
        s_lshr_b32 s{sT0}, s2, 3
        s_mul_i32 s{sT0}, s{sT0}, 10
        v_min_u32 v{T0}, 9, v{LANE}
        v_add_u32 v{T0}, s{sT0}, v{T0}
        v_lshlrev_b32 v{T0}, 7, v{T0}
        v_min_u32 v{T0}, Lend-{lc_}, v{T0}
        global_load_dword v255, v{T0}, {sr(sNON,2)}
        """)
        a.label(lc_)
    ln = a.uid("Ln")
    a(f"s_cmp_lg_u32 s2, 0\ns_cbranch_scc1 {ln}\ns_cmp_lg_u32 s{sW}, 7\ns_cbranch_scc1 {ln}\ns_waitcnt lgkmcnt(0)")
    srd(a, SDBG, P_DBG, 256)
    a(f"""
    s_memrealtime {sr(sNON,2)}
    s_waitcnt lgkmcnt(0)
    s_or_b32 s{sNON}, s{sNON}, 1
    v_mov_b32 v{T0}, s{sNON}
    v_mov_b32 v{T1}, s{sNON+1}
    v_mov_b32 v{T2}, 0
    s_mov_b64 exec, 1
    buffer_store_dwordx2 {vr(T0,2)}, v{T2}, {sr(SDBG,4)}, 0 offen sc1
    s_mov_b64 exec, -1
    """)
    a.label(ln)
    a("s_waitcnt lgkmcnt(0)")
    srd(a, STMP, P_X, XB)
    a(f"s_mov_b32 s{sPFS}, 0\ns_mov_b32 s{sPFO}, 0")
    if 'tup' in EXP: side_loads(a, stat=False)
    a.label(ld)
    S.start()
    srd(a, SX, P_X, XB)
    a(f"""
    s_and_b32 s{sT0}, s2, 1
    s_bfe_u32 s{sT1}, s2, 0x20001
    s_lshr_b32 s{sT2}, s2, 3
    s_cmp_ge_u32 s{sT2}, 16
    s_cbranch_scc1 Lffn
    """)
    def late_srds():
        srd(a, SHO, P_WS, 0 if 'nost' in EXP else HO_SZ); srd(a, SFL, P_WS, FL_SZ, WT_OFF); srd(a, SDBG, P_DBG, 256)
    def set_stage(c, st): emit([stage_set(c, st)])
    def pretouch(flagoff_s):
        lp = a.uid("Lpt")
        a(f"s_cmp_lg_u32 s{sW}, 7\ns_cbranch_scc1 {lp}")
        stat_row(a)
        a(f"""
        s_lshl_b32 s{sT0}, s{sT0}, 4
        s_add_u32 s{sT0}, s{sT0}, {STO}
        v_mov_b32 v{T0}, s{sT0}
        s_lshl_b32 s{sT0}, s2, 3
        s_add_u32 s{sT0}, s{sT0}, {TFO}
        v_writelane_b32 v{T0}, s{sT0}, 1
        """)
        if flagoff_s is not None:
            a(f"s_add_u32 s{sT0}, s{flagoff_s}, {FLB}\nv_writelane_b32 v{T0}, s{sT0}, 2")
        a(f"buffer_load_dword v255, v{T0}, {sr(SFL,4)}, 0 offen sc1")
        if TLB:
            a(f"v_lshlrev_b32 v{T0}, {TLB}, v{LANE}")
            a(f"buffer_load_dword v255, v{T0}, {sr(SHO,4)}, 0 offen sc1")
            a(f"buffer_load_dword v255, v{T0}, {sr(SFL,4)}, 0 offen sc1")
            srd(a, SPF, P_OUT, XB)
            a(f"buffer_load_dword v255, v{T0}, {sr(SPF,4)}, 0 offen sc1")
            srd(a, SPF, P_B2, 1280)
            a(f"buffer_load_dword v255, v{T0}, {sr(SPF,4)}, 0 offen")
        a.label(lp)
    def pre_loop(c, setup):
        if 'd0e' in EXP: set_stage(c, 0); emit(dmaA(c, a) + dmaB(c, a))
        late_srds()
        if 'nopt' not in EXP: pretouch(sHF)
        setup()
        if 'tup' not in EXP: side_loads(a, stat=False, issue=False)
        p2_setup(a, c.VTF)
        S(1)
        a(f"s_cmp_lt_u32 s{sW}, {c.nxm}\ns_cselect_b64 vcc, -1, 0")
        if 'd0e' not in EXP:
            a("s_barrier")
            set_stage(c, 0); emit(dmaA(c, a) + dmaB(c, a))
        if 'tup' in EXP:
            a(f's_waitcnt vmcnt({c.nW+2})'); t_work(a)
        a(f"v_mov_b32 v{T0}, 0")
        a(f"buffer_load_dwordx2 {vr(c.VN,2)}, v{T0}, {sr(SDBG,4)}, 0 offen sc1")
        a("s_barrier")
        set_stage(c, 1); emit(dmaA(c, a))
        a(f"s_waitcnt vmcnt({c.nW})")
        S(2)
        a("s_barrier")
        S(3)
        emit(reads(c, 0, 0))
        if 'tup' not in EXP: t_issue(a)
        a(f"s_mov_b32 s{sSLOT}, {c.stg}")
    def alloc_common(c):
        al = Alloc(11)
        c.VX = [al(), al(), 124]; c.VW = [120, 121, 122, 123]
        c.xb = [al(), al()]; c.hb = [al(), al()]; c.wb = [al() for _ in range(c.nF)]
        c.VTF = al(); c.VRA = al(); c.VPS = al(2, 4); c.VN = al(2, 2); c.REC = al(20, 4)
        assert c.VPS == 24
        return al
    def dma_setup(c, P, magic, colfn):
        a(f"""
        s_lshl_b32 s{sT0}, s{sW}, 4
        s_add_u32 s{sT0}, s{sT0}, s{sT3}
        s_max_i32 s{sT0}, s{sT0}, 0
        s_mul_i32 s{sXA}, s{sT0}, 1280
        s_sub_u32 s{sXA}, s{sXA}, 128
        s_lshl_b32 s{sT0}, s{sW}, 3
        s_add_u32 s{sT0}, s{sT0}, s{sT3}
        s_mul_i32 s{sXB}, s{sT0}, 1280
        s_add_u32 s{sXB}, s{sXB}, {128*1280-128}
        s_lshl_b32 s{sEM}, s{sW}, 10
        s_add_u32 s{sEM}, s{sEM}, 16384
        v_lshrrev_b32 v{T0}, 3, v{LANE}
        v_mul_u32_u24 v{T0}, 1280, v{T0}
        v_xor_b32 v{T1}, v{G}, v{LANE}
        v_and_b32 v{T1}, 7, v{T1}
        v_lshl_add_u32 v{c.VX[0]}, v{T1}, 4, v{T0}
        v_xor_b32 v{T2}, 64, v{c.VX[0]}
        v_add_u32 v{c.VX[1]}, {8*1280-1024}, v{T2}
        s_and_b32 s{sT0}, s{sW}, 1
        s_lshl_b32 s{sT1}, s{sT0}, 6
        v_xor_b32 v{c.VX[2]}, s{sT1}, v{c.VX[0]}
        s_lshl_b32 s{sT0}, s{sT0}, 2
        s_lshr_b32 s{sT1}, s{sW}, 1
        s_lshl_b32 s{sT1}, s{sT1}, 4
        s_add_u32 s{sT0}, s{sT0}, s{sT1}
        s_mul_i32 s{sKW}, s{sT0}, {c.wrowb}
        s_add_u32 s{sKW}, s{sKW}, s{sWO}
        s_sub_u32 s{sKW}, s{sKW}, {64*c.wrowb}
        s_mov_b32 s{sWM}, -1
        s_mov_b32 s{sWM+1}, 0xffff
        s_mul_i32 s{sWB}, s{sW}, {8*c.wrow}
        s_add_u32 s{sWB}, s{sWB}, {c.xsz}
        """)
        for u in range(c.nW):
            a(f"""
            v_add_u32 v{T0}, {64*u}, v{LANE}
            v_mul_u32_u24 v{T1}, {magic}, v{T0}
            v_lshrrev_b32 v{T1}, 16, v{T1}
            v_mul_u32_u24 v{T2}, {P}, v{T1}
            v_sub_u32 v{T0}, v{T0}, v{T2}
            """)
            colfn()
            a(f"""
            v_and_b32 v{T2}, 4, v{T1}
            v_add_u32 v{T1}, v{T1}, v{T2}
            v_mul_u32_u24 v{T1}, {c.wrowb}, v{T1}
            v_add_u32 v{T0}, v{T0}, v{T1}
            v_subrev_u32 v{c.VW[u]}, {1024*u}, v{T0}
            """)
    def half(groups, young):
        if not groups: return
        lh = a.uid("Lh")
        a(f"s_cmp_ge_u32 s{sW}, 4\ns_cbranch_scc{0 if young else 1} {lh}")
        emit(groups)
        a.label(lh)
    FLD = f"buffer_load_dwordx2 {vr(VFD,2)}, v{VF}, {sr(SFL,4)}, 0 offen sc1"
    def publish(younger, old_extra=0):
        lp, lw1 = a.uid("Lp"), a.uid("Lp")
        if old_extra:
            a(f"s_waitcnt vmcnt({younger+old_extra})\ns_cmp_lt_u32 s{sW}, 4\ns_cbranch_scc1 {lw1}")
        a(f"s_waitcnt vmcnt({younger})")
        a.label(lw1)
        a(f"""
        s_barrier
        s_cmp_lg_u32 s{sW}, 0
        s_cbranch_scc1 {lp}
        v_mov_b32 v{T0}, s{sNON}
        v_mov_b32 v{T1}, s{sNON+1}
        v_mov_b32 v{T2}, {FLB}
        s_mov_b64 exec, 1
        buffer_store_dwordx2 {vr(T0,2)}, v{T2}, {sr(SFL,4)}, s{sHF} offen sc1
        s_mov_b64 exec, -1
        """)
        a.label(lp)
        S(7)
    c = Cfg()
    c.nM, c.nF, c.nh, c.wrow, c.wrowb, c.stg, c.xsz, c.nxm, c.duty = 4, 4, 2, 480, 3840, 49152, 18432, 2, False
    al = alloc_common(c)
    c.acc = [[al(4,4) for i in range(4)] for f in range(4)]
    c.acch = [al(4,4) for f in range(2)]
    lowtop = al.n
    al = Alloc(WREG)
    c.X = [[al(4,4) for i in range(4)] for s in range(2)]
    c.XH = [al(4,4) for s in range(2)]
    c.W = [[al(4,4) for f in range(4)] for s in range(2)]
    assert al.n == 208
    c.early = (list(range(15, 25)) + LA_ + [13, 14])[:nearly]
    a(f"""
    s_lshl_b32 s{sRB}, s{sT0}, 3
    s_and_b32 s{sT3}, s{sT2}, 7
    s_add_u32 s{sRB}, s{sRB}, s{sT3}
    s_lshl_b32 s{sCB}, s{sT1}, 1
    s_lshr_b32 s{sT3}, s{sT2}, 3
    s_add_u32 s{sCB}, s{sCB}, s{sT3}
    s_lshl_b32 s{sT3}, s{sRB}, 7
    s_sub_u32 s{sT3}, s{sT3}, 16
    s_mul_i32 s{sWO}, s{sCB}, 160
    """)
    c.nW = 4
    dma_setup(c, 30, 2185, lambda: a(f"v_mul_u32_u24 v{T2}, 26, v{T0}\nv_lshrrev_b32 v{T2}, 8, v{T2}\nv_mul_u32_u24 v{T2}, 1120, v{T2}\nv_lshl_add_u32 v{T0}, v{T0}, 4, v{T2}"))
    srd(a, SW, P_WQ, 640*3840)
    a(f"s_add_u32 s{sT0}, s{sRB}, 16\ns_lshl_b32 s{sT0}, s{sT0}, 7\ns_lshl_b32 s{sT1}, s{sCB}, 3\ns_add_u32 s{sHF}, s{sT0}, s{sT1}")
    def q_setup():
        a(f"s_lshr_b32 s{sMH}, s{sW}, 2\ns_and_b32 s{sT0}, s{sW}, 3\ns_lshl_b32 s{sT0}, s{sT0}, 2\ns_lshl_b32 s{sT1}, s{sMH}, 1")
        for f in range(4):
            a(f"s_xor_b32 s{sT2}, s{sT1}, {f}\ns_add_u32 s{sT2}, s{sT2}, s{sT0}\ns_min_u32 s{sNT+f}, s{sT2}, 14")
        a(f"""
        s_mov_b32 s{sMSK}, 0xfffefffe
        s_mov_b32 s{sMSK+1}, 0xfffefffe
        v_lshrrev_b32 v{T0}, 1, v{R}
        v_xor_b32 v{T0}, v{T0}, v{G}
        v_lshlrev_b32 v{T0}, 4, v{T0}
        v_lshl_add_u32 v{T0}, v{R}, 7, v{T0}
        v_add_u32 v{c.hb[0]}, {c.stg}, v{T0}
        v_xor_b32 v{c.hb[1]}, 64, v{c.hb[0]}
        s_lshl_b32 s{sT0}, s{sMH}, 13
        s_add_u32 s{sT0}, s{sT0}, 2048
        v_add_u32 v{c.xb[0]}, s{sT0}, v{c.hb[0]}
        v_add_u32 v{c.xb[1]}, s{sT0}, v{c.hb[1]}
        """)
        rho_local(a, T0, T1)
        a(f"v_mul_u32_u24 v{T0}, 480, v{T0}\nv_and_b32 v{T1}, 3, v{LANE}\nv_lshl_add_u32 v{T0}, v{T1}, 3, v{T0}")
        for f in range(4):
            a(f"s_lshl_b32 s{sT0}, s{sNT+f}, 5\ns_add_u32 s{sT0}, s{sT0}, {c.xsz+c.stg}\nv_add_u32 v{c.wb[f]}, s{sT0}, v{T0}")
        a(f"v_lshlrev_b32 v{c.VRA}, 4, v{R}")
        a(f"""
        s_lshl_b32 s{sT0}, s{sRB}, 7
        s_lshl_b32 s{sT1}, s{sMH}, 6
        s_add_u32 s{sT1}, s{sT1}, s{sT0}
        s_lshl_b32 s{sT1}, s{sT1}, 4
        s_add_u32 s{sRM}, s{sT1}, {STO}
        s_sub_u32 s{sT0}, s{sT0}, 16
        s_max_i32 s{sT0}, s{sT0}, 0
        s_lshl_b32 s{sT0}, s{sT0}, 4
        s_add_u32 s{sRH}, s{sT0}, {STO}
        """)
        for s in range(2):
            for r in range(4): a(f"v_mov_b32 v{c.XH[s]+r}, 0x3f803f80")
    pre_loop(c, q_setup)
    rec = [[f"buffer_load_dwordx4 {vr(c.REC+4*i,4)}, v{c.VRA}, {sr(SFL,4)}, s{sRM} offen offset:{256*i} sc1"] for i in range(4)]
    rec.append([f"buffer_load_dwordx4 {vr(c.REC+16,4)}, v{c.VRA}, {sr(SFL,4)}, s{sRH} offen sc1"])
    CSR = lowtop; CA = 11; WA = 15
    assert CSR + 16 <= WREG and WA + 6 <= c.VTF
    c.tailx = [lines(f"""
        s_lshl_b32 s{sT3}, s{sMH}, 6
        s_add_u32 s{sT3}, s{sT3}, 16
        s_mul_i32 s{sT3}, s{sT3}, {RS}
        v_mul_u32_u24 v{T2}, {RS}, v{R}
        v_lshlrev_b32 v{T3}, 4, v{G}""")]
    for f in range(4):
        c.tailx.append(lines(f"""
        s_lshl_b32 s{sT0}, s{sNT+f}, 6
        s_add_u32 s{sT0}, s{sT0}, {L_CS}
        v_add_u32 v{CA+f}, s{sT0}, v{T3}
        s_mul_i32 s{sT0}, s{sNT+f}, 52
        s_lshr_b32 s{sT0}, s{sT0}, 8
        s_mul_i32 s{sT2}, s{sT0}, 5
        s_sub_u32 s{sT2}, s{sNT+f}, s{sT2}
        s_lshl_b32 s{sT2}, s{sT2}, 2
        s_mul_i32 s{sT0}, s{sT0}, 192
        v_add_u32 v{T0}, s{sT2}, v{G}"""))
        c.tailx.append(lines(f"""
        v_mul_u32_u24 v{T1}, 52, v{T0}
        v_lshrrev_b32 v{T1}, 8, v{T1}
        v_add_u32 v{T0}, v{T0}, v{T1}"""))
        c.tailx.append(lines(f"v_lshl_add_u32 v{T0}, v{T0}, 3, v{T2}") + ([f"v_add_u32 v{WA+4+f}, s{sT0}, v{T0}"] if f < 2 else []) +
                       lines(f"s_add_u32 s{sT0}, s{sT0}, s{sT3}\nv_add_u32 v{WA+f}, s{sT0}, v{T0}"))
    main_loop(a, c, S, "q", rec)
    a(f"s_not_b64 exec, {sr(sMSK,2)}")
    for f in range(2): a(f"ds_write_b128 v{CA+f}, {vr(c.acch[f],4)}")
    a("s_mov_b64 exec, -1")
    a(f"s_waitcnt vmcnt({c.yrec})")
    poll(a, sum(rec, []), [c.REC+4*i+2 for i in range(5)], True)
    S(55)
    a("s_waitcnt lgkmcnt(0)\ns_barrier")
    S(56)
    for f in range(4): a(f"ds_read_b128 {vr(CSR+4*f,4)}, v{CA+f}")
    rest = [p for p in LA_ + list(range(25)) if p not in c.early]
    rg = [wfrag(p) for p in rest]
    I = Inter(a, [], 1000)
    TP = c.VPS
    for f in range(4):
        I(f"s_waitcnt lgkmcnt({3-f if f == 0 else 15})" if f == 0 else "s_nop 0")
        if f == 1: I("s_waitcnt lgkmcnt(5)")
        tl = [(c.acc[f][i], WA+f, i*16*RS, c.REC+4*i) for i in range(4)]
        if f < 2: tl.append((c.acch[f], WA+4+f, 0, c.REC+16))
        for (ac, ad, off, st) in tl:
            I(f"""
            v_pk_mul_f32 {vr(TP,2)}, {vr(CSR+4*f,2)}, {vr(st,2)} op_sel:[0,1] op_sel_hi:[1,1]
            v_pk_mul_f32 {vr(TP+2,2)}, {vr(CSR+4*f+2,2)}, {vr(st,2)} op_sel:[0,1] op_sel_hi:[1,1]
            v_pk_fma_f32 {vr(ac,2)}, {vr(ac,2)}, {vr(st,2)}, {vr(TP,2)} op_sel:[0,0,0] op_sel_hi:[1,0,1]
            v_pk_fma_f32 {vr(ac+2,2)}, {vr(ac+2,2)}, {vr(st,2)}, {vr(TP+2,2)} op_sel:[0,0,0] op_sel_hi:[1,0,1]
            v_cvt_pk_bf16_f32 v{ac}, v{ac}, v{ac+1}
            v_cvt_pk_bf16_f32 v{ac+1}, v{ac+2}, v{ac+3}
            ds_write_b64 v{ad}, {vr(ac,2)} offset:{off}
            """)
    S(57)
    al = Alloc(11)
    AB = al(); OV = al(); OV1 = al(); L31 = al()
    MX = al(); SM_ = al()
    Q = al(12, 2); KB = [al(10, 2) for _ in range(5)]
    L = al(8, 2); PL = al(8); PH = al(8); O = al(20, 2); TPa = al(4)
    assert al.n <= WREG, al.n
    I(f"""
    s_and_b32 s{sT0}, s{sW}, 1
    s_lshr_b32 s{sT3}, s{sW}, 1
    s_lshl_b32 s{sT2}, s{sT3}, 5
    s_add_u32 s{sT2}, s{sT2}, 2
    v_and_b32 v{L31}, 31, v{LANE}
    v_add_u32 v{T0}, s{sT2}, v{L31}
    v_mul_u32_u24 v{T0}, {RS}, v{T0}
    v_lshrrev_b32 v{T1}, 5, v{LANE}
    v_mul_u32_u24 v{T2}, 48, v{T1}
    s_mul_i32 s{sT2}, s{sT0}, 96
    v_add3_u32 v{AB}, v{T0}, v{T2}, s{sT2}
    s_lshl_b32 s{sT2}, s{sCB}, 1
    s_add_u32 s{sT2}, s{sT2}, s{sT0}
    s_mul_i32 s{sT2}, s{sT2}, 5
    v_lshl_add_u32 v{T1}, v{T1}, 1, s{sT2}
    v_bfe_u32 v{T0}, v{LANE}, 4, 1
    v_lshlrev_b32 v{T0}, 10, v{T0}
    v_lshl_add_u32 v{T0}, v{R}, 4, v{T0}
    v_lshrrev_b32 v{T2}, 2, v{T1}
    v_lshl_add_u32 v{T2}, v{T2}, 12, v{T0}
    v_and_b32 v{T3}, 3, v{T1}
    v_lshl_add_u32 v{OV}, v{T3}, 8, v{T2}
    v_add_u32 v{T1}, 1, v{T1}
    v_lshrrev_b32 v{T2}, 2, v{T1}
    v_lshl_add_u32 v{T2}, v{T2}, 12, v{T0}
    v_and_b32 v{T3}, 3, v{T1}
    v_lshl_add_u32 v{OV1}, v{T3}, 8, v{T2}
    s_lshl_b32 s{sKX}, s{sRB}, 1
    s_add_u32 s{sKX}, s{sKX}, s{sMH}
    s_mul_i32 s{sKX}, s{sKX}, {74*4096}
    s_and_b32 s{sT1}, s{sT3}, 1
    s_lshl_b32 s{sT1}, s{sT1}, 11
    s_add_u32 s{sKX}, s{sKX}, s{sT1}
    s_add_u32 s{sT2}, s{sT2}, 4
    s_lshr_b32 s{sKW}, s{sT2}, 2
    s_lshl_b32 s{sKW}, s{sKW}, 12
    s_and_b32 s{sT2}, s{sT2}, 3
    s_lshl_b32 s{sT2}, s{sT2}, 8
    s_add_u32 s{sKW}, s{sKW}, s{sT2}
    s_add_u32 s{sKW}, s{sKW}, s{sKX}
    """)
    a("s_waitcnt lgkmcnt(0)\ns_barrier")
    OV2 = T0
    S(5)
    def rd(dst, off):
        return f"ds_read_b128 {vr(dst,4)}, v{AB} offset:{off}\nds_read_b128 {vr(dst+4,4)}, v{AB} offset:{off+16}\nds_read_b64 {vr(dst+8,2)}, v{AB} offset:{off+32}"
    offs = [(14-2*w)*RS+192 for w in range(8)] + [(14-2*w)*RS+384 for w in range(8)]
    issued = 0
    def issue(n):
        nonlocal issued
        for _ in range(n):
            if issued < 16:
                I(rd(KB[issued % 5], offs[issued])); issued += 1
    def need(idx): I(f"s_waitcnt lgkmcnt({3*(issued-1-idx)})")
    I(rd(Q, 14*RS)); issue(4)
    I.g = list(rg); I.e = qevery
    for w in range(8): I(f"v_mov_b32 v{L+w}, 0")
    for d in range(20): I(f"v_mov_b32 v{O+d}, 0")
    for wp in range(4):
        w0, w1 = 2*wp, 2*wp+1
        need(w1)
        for d in range(10):
            for w in (w0, w1): I(f"v_dot2c_f32_bf16 v{L+w}, v{Q+d}, v{KB[w%5]+d}")
        issue(3 if wp == 0 else 2)
    lm = a.uid("Lm")
    a(f"s_or_b32 s{sT2}, s{sRB}, s{sT3}\ns_cmp_lg_u32 s{sT2}, 0\ns_cbranch_scc1 {lm}")
    a(f"v_mov_b32 v{TPa}, {f32(-1e9)}")
    for w in range(1, 8):
        a(f"v_cmp_le_u32 vcc, {2*w}, v{L31}\ns_nop 1\nv_cndmask_b32 v{L+w}, v{TPa}, v{L+w}, vcc")
    a.label(lm)
    cexp = (20 ** -0.5) * math.log2(math.e)
    I(f"""
    v_max3_f32 v{MX}, v{L}, v{L+1}, v{L+2}
    v_max3_f32 v{SM_}, v{L+3}, v{L+4}, v{L+5}
    v_max3_f32 v{MX}, v{MX}, v{L+6}, v{L+7}
    v_max_f32 v{MX}, v{MX}, v{SM_}
    """)
    for w in range(8): I(f"v_sub_f32 v{L+w}, v{L+w}, v{MX}")
    for w in range(8): I(f"v_mul_f32 v{L+w}, {f32(cexp)}, v{L+w}")
    for w in range(8): I(f"v_exp_f32 v{L+w}, v{L+w}")
    I(f"""
    v_add_f32 v{TPa}, v{L}, v{L+1}
    v_add_f32 v{TPa+1}, v{L+2}, v{L+3}
    v_add_f32 v{TPa+2}, v{L+4}, v{L+5}
    v_add_f32 v{TPa+3}, v{L+6}, v{L+7}
    v_add_f32 v{TPa}, v{TPa}, v{TPa+1}
    v_add_f32 v{TPa+2}, v{TPa+2}, v{TPa+3}
    v_add_f32 v{SM_}, v{TPa}, v{TPa+2}
    v_rcp_f32 v{SM_}, v{SM_}
    s_nop 0
    """)
    for w in range(8): I(f"v_mul_f32 v{L+w}, v{L+w}, v{SM_}")
    for w in range(8): I(f"v_cvt_pk_bf16_f32 v{PL+w}, v{L+w}, 0\nv_cvt_pk_bf16_f32 v{PH+w}, 0, v{L+w}")
    for w in range(8):
        need(8+w)
        for d in range(10):
            I(f"v_dot2c_f32_bf16 v{O+2*d}, v{KB[(8+w)%5]+d}, v{PL+w}\nv_dot2c_f32_bf16 v{O+2*d+1}, v{KB[(8+w)%5]+d}, v{PH+w}")
        issue(1)
    S(58)
    for u in (0,1,2,3,8,9,4,5,6,7): a(f"v_cvt_pk_bf16_f32 v{Q+u}, v{O+2*u}, v{O+2*u+1}")
    a(f"""
    buffer_store_dwordx4 {vr(Q,4)}, v{OV}, {sr(SHO,4)}, s{sKX} offen sc1
    v_permlane32_swap_b32 v{Q+8}, v{Q+10}
    v_permlane32_swap_b32 v{Q+9}, v{Q+11}
    buffer_store_dwordx4 {vr(Q+4,4)}, v{OV1}, {sr(SHO,4)}, s{sKX} offen sc1
    s_mov_b32 exec_hi, 0
    buffer_store_dwordx4 {vr(Q+8,4)}, v{OV2}, {sr(SHO,4)}, s{sKW} offen sc1
    s_mov_b64 exec, -1
    """)
    S(6)
    if NB: a("s_barrier")
    qleft = I.g + [wfrag(p) for p in LB]
    sp = 'spoll' in EXP or 'nofld' in EXP
    if not sp: a(FLD)
    emit(qleft[:NB])
    publish(NB+(not sp))
    def tail_loads(gr):
        if LP is None: emit(gr); return
        k = max(len(gr)-LP, 0)
        emit(gr[:k]); a(FLD); emit(gr[k:]); a(f"s_waitcnt vmcnt({len(gr)-k})")
    tail_loads(qleft[NB:])
    if not sp: a(f"s_waitcnt vmcnt({len(qleft)})")
    a("s_branch Lphase2")
    a.label("Lffn")
    c = Cfg()
    c.nM, c.nF, c.nh, c.wrow, c.wrowb, c.stg, c.xsz, c.nxm, c.duty = 5, 3, 0, 384, 3456, 49152, 20480, 4, True
    al = alloc_common(c)
    B1 = al(8, 2)
    c.acc = [[al(4,4) for i in range(5)] for f in range(3)]
    lowtop = al.n
    eal = al
    al = Alloc(WREG)
    c.X = [[al(4,4) for i in range(5)] for s in range(2)]
    c.W = [[al(4,4) for f in range(3)] for s in range(2)]
    assert al.n <= 208
    c.early = (list(range(15, 25)) + LA_ + [13, 14])[:nearly]
    a(f"""
    s_sub_u32 s{sT2}, s{sT2}, 16
    s_lshl_b32 s{sT1}, s{sT1}, 4
    s_add_u32 s{sT1}, s{sT1}, s{sT2}
    s_cmp_ge_u32 s{sT1}, 63
    s_cbranch_scc1 Lidle
    s_mul_i32 s{sCB}, s{sT1}, 37
    s_lshr_b32 s{sCB}, s{sCB}, 8
    s_sub_u32 s{sT3}, s{sCB}, s{sT0}
    s_mul_i32 s{sT3}, s{sT3}, 7
    s_sub_u32 s{sRB}, s{sT1}, s{sT3}
    s_mul_i32 s{sT3}, s{sRB}, {FROWS}
    s_mul_i32 s{sWO}, s{sCB}, 384
    """)
    c.nW = 3
    dma_setup(c, 24, 2731, lambda: a(f"v_and_b32 v{T2}, 6, v{T1}\nv_xor_b32 v{T0}, v{T0}, v{T2}\nv_lshlrev_b32 v{T0}, 4, v{T0}"))
    srd(a, SW, P_W1, 640*3456)
    srd(a, SWT, P_B1, 3456)
    a(f"s_lshl_b32 s{sT0}, s{sRB}, 7\ns_lshl_b32 s{sT1}, s{sCB}, 3\ns_add_u32 s{sHF}, s{sT0}, s{sT1}")
    RHO = c.hb[0]
    def f_setup():
        a(f"""
        s_lshr_b32 s{sMH}, s{sW}, 2
        s_bfe_u32 s{sT0}, s{sW}, 0x10001
        s_and_b32 s{sT1}, s{sW}, 1
        s_mul_i32 s{sT0}, s{sT0}, 6
        s_lshl_b32 s{sT2}, s{sT1}, 2
        s_add_u32 s{sNT}, s{sT0}, s{sT2}
        s_add_u32 s{sNT+1}, s{sNT}, 1
        s_add_u32 s{sNT+2}, s{sT0}, s{sT1}
        s_add_u32 s{sNT+2}, s{sNT+2}, 2
        s_cmp_eq_u32 s{sMH}, 0
        s_cselect_b32 s{sMSK}, -1, 0x7fff7fff
        s_cselect_b32 s{sMSK+1}, -1, 0x7fff7fff
        v_lshrrev_b32 v{T0}, 1, v{R}
        v_xor_b32 v{T0}, v{T0}, v{G}
        v_lshlrev_b32 v{T0}, 4, v{T0}
        v_lshl_add_u32 v{T0}, v{R}, 7, v{T0}
        s_mul_i32 s{sT0}, s{sMH}, {5*2048}
        s_add_u32 s{sT0}, s{sT0}, {c.stg}
        v_add_u32 v{c.xb[0]}, s{sT0}, v{T0}
        v_xor_b32 v{c.xb[1]}, 64, v{c.xb[0]}
        """)
        rho_local(a, T0, T1)
        a(f"""
        v_bfe_u32 v{T2}, v{T0}, 1, 2
        v_mul_u32_u24 v{T0}, 384, v{T0}
        v_and_b32 v{T1}, 3, v{LANE}
        v_lshl_add_u32 v{T0}, v{T1}, 3, v{T0}
        v_add_u32 v{T0}, {c.xsz+c.stg}, v{T0}
        """)
        for f in range(3):
            a(f"v_xor_b32 v{T1}, s{sNT+f}, v{T2}\nv_lshl_add_u32 v{c.wb[f]}, v{T1}, 5, v{T0}")
        a(f"""
        s_mul_i32 s{sT0}, s{sRB}, {FROWS}
        s_mul_i32 s{sT1}, s{sMH}, 80
        s_add_u32 s{sT0}, s{sT0}, s{sT1}
        v_add_u32 v{RHO}, s{sT0}, v{R}
        v_lshlrev_b32 v{T0}, 4, v{RHO}
        v_add_u32 v{c.VRA}, {STO}, v{T0}
        """)
        for s in range(2):
            for r in range(4): a(f"v_mov_b32 v{c.X[s][4]+r}, 0x3f803f80")
        a(f"v_lshlrev_b32 v{T0}, 3, v{G}\ns_mul_i32 s{sT2}, s{sCB}, 384")
        for f in range(3):
            a(f"s_lshl_b32 s{sT1}, s{sNT+f}, 5\ns_add_u32 s{sT1}, s{sT1}, s{sT2}")
            a(f"buffer_load_dwordx2 {vr(B1+2*f,2)}, v{T0}, {sr(SWT,4)}, s{sT1} offen")
    pre_loop(c, f_setup)
    rec = [[f"v_add_u32 v{T3}, {256*i}, v{c.VRA}", f"v_min_u32 v{T3}, {STO+2047*16}, v{T3}",
            f"buffer_load_dwordx4 {vr(c.REC+4*i,4)}, v{T3}, {sr(SFL,4)}, 0 offen sc1"] for i in range(5)]
    CA = 17
    c.tailx = [[f"v_lshlrev_b32 v{T3}, 4, v{G}"]] + [lines(f"s_lshl_b32 s{sT0}, s{sNT+f}, 6\ns_add_u32 s{sT0}, s{sT0}, {L_CS}\nv_add_u32 v{CA+f}, s{sT0}, v{T3}") for f in range(3)]
    main_loop(a, c, S, "f", rec)
    a(f"s_waitcnt vmcnt({c.yrec})")
    poll(a, sum(rec, []), [c.REC+4*i+2 for i in range(5)], True)
    lc = a.uid("Lc")
    a(f"s_cmp_eq_u32 s{sMH}, 0\ns_cbranch_scc1 {lc}\ns_not_b64 exec, {sr(sMSK,2)}")
    for f in range(3): a(f"ds_write_b128 v{CA+f}, {vr(c.acc[f][4],4)}")
    a("s_mov_b64 exec, -1\ns_waitcnt lgkmcnt(0)")
    a.label(lc)
    a("s_barrier")
    CC = c.VPS; VA = 11
    CSR = eal(12, 2); TT = [eal(2,2) for _ in range(4)] + [12, B1+6]
    assert eal.n <= WREG, eal.n
    for f in range(3): a(f"ds_read_b128 {vr(CSR+4*f,4)}, v{CA+f}")
    BFp = [c.REC+4*i+2 for i in range(5)] + [B1+4]
    OUTP = [B1, 16]; SG = 20
    assert RHO == 15
    rest = [p for p in list(range(25)) + LA_ + LB if p not in c.early]
    rg = [wfrag(p) for p in rest]
    F1, F2 = rg[:fn1], rg[fn1:]
    I = Inter(a, [], 1000)
    if fevery:
        I = Inter(a, F1, fevery); F1 = []
    half(F1, True)
    c0 = -2*math.sqrt(2/math.pi)*math.log2(math.e); c1 = c0*0.044715
    for j in range(5): I(f"v_lshlrev_b32 v{BFp[j]}, 16, v{B1+j}\nv_and_b32 v{BFp[j]+1}, 0xffff0000, v{B1+j}")
    I(f"v_lshlrev_b32 v{B1+4}, 16, v{B1+5}\nv_and_b32 v{B1+5}, 0xffff0000, v{B1+5}")
    I(f"v_mov_b32 v{CC}, {f32(c0)}\nv_mov_b32 v{CC+1}, {f32(c1)}\nv_mov_b32 v{CC+2}, 1.0")
    I(f"""
    v_and_b32 v{T2}, 15, v{RHO}
    v_lshlrev_b32 v{T2}, 4, v{T2}
    v_lshl_add_u32 v{T1}, v{G}, 8, v{T2}
    v_and_b32 v{T3}, 1, v{G}
    v_lshl_add_u32 v14, v{T3}, 8, v{T2}
    v_lshrrev_b32 v{T0}, 4, v{RHO}
    v_lshrrev_b32 v{T3}, 5, v{LANE}
    v_add_u32 v{RHO}, v{T0}, v{T3}
    s_mul_i32 s{sT2}, s{sCB}, 6
    s_add_u32 s{sT2}, s{sT2}, 20
    s_lshr_b32 s{sT0}, s{sNT}, 1
    s_add_u32 s{sT0}, s{sT0}, s{sT2}
    s_lshl_b32 s{sKX}, s{sT0}, 12
    s_lshr_b32 s{sT0}, s{sNT+2}, 1
    s_add_u32 s{sT0}, s{sT0}, s{sT2}
    s_lshl_b32 s{sKW}, s{sT0}, 12
    s_and_b32 s{sT0}, s{sNT+2}, 1
    s_lshl_b32 s{sT0}, s{sT0}, 9
    s_add_u32 s{sKW}, s{sKW}, s{sT0}
    s_mov_b32 s{sT3}, {74*4096}
    s_waitcnt lgkmcnt(0)
    """)
    a(f"s_cmp_eq_u32 s{sMH}, 0\ns_cselect_b32 s{sMSK}, -1, 0x00ff00ff\ns_mov_b32 s{sMSK+1}, s{sMSK}")
    def gelu_pair(h, cs, b, st, t, dst):
        return [f"v_pk_fma_f32 {vr(t,2)}, {vr(cs,2)}, {vr(st,2)}, {vr(b,2)} op_sel:[0,1,0] op_sel_hi:[1,1,1]",
                f"v_pk_fma_f32 {vr(h,2)}, {vr(h,2)}, {vr(st,2)}, {vr(t,2)} op_sel:[0,0,0] op_sel_hi:[1,0,1]",
                f"v_pk_mul_f32 {vr(t,2)}, {vr(h,2)}, {vr(h,2)}",
                f"v_pk_fma_f32 {vr(t,2)}, {vr(t,2)}, {vr(CC,2)}, {vr(CC,2)} op_sel:[0,1,0] op_sel_hi:[1,1,0]",
                f"v_pk_mul_f32 {vr(t,2)}, {vr(t,2)}, {vr(h,2)}",
                f"v_exp_f32 v{t}, v{t}",
                f"v_exp_f32 v{t+1}, v{t+1}",
                f"v_pk_add_f32 {vr(t,2)}, {vr(t,2)}, {vr(CC+2,2)} op_sel_hi:[1,0]",
                f"v_rcp_f32 v{t}, v{t}",
                f"v_rcp_f32 v{t+1}, v{t+1}",
                f"v_pk_mul_f32 {vr(t,2)}, {vr(t,2)}, {vr(h,2)}",
                f"v_cvt_pk_bf16_f32 v{dst}, v{t}, v{t+1}"]
    def blkaddr(dst, tile, low):
        I(f"""
        v_lshrrev_b32 v{T2}, 2, v{tile}
        v_mul_lo_u32 v{T2}, v{T2}, s{sT3}
        v_and_b32 v{T3}, 3, v{tile}
        v_lshl_add_u32 v{T2}, v{T3}, 10, v{T2}
        v_add_u32 v{dst}, v{T2}, v{low}
        """)
    for i in range(5):
        o = OUTP[i & 1]
        streams = [gelu_pair(c.acc[f][i]+2*hp, CSR+4*f+2*hp, BFp[2*f+hp], c.REC+4*i, TT[2*f+hp],
                             (o+2*f+hp) if f < 2 else (SG+2*(i&1)+hp)) for f in range(3) for hp in range(2)]
        for k in range(len(streams[0])):
            for s in streams: I(s[k])
        blkaddr(VA, T0, T1)
        I(f"v_add_u32 v{T0}, 1, v{T0}")
        if i == 4: a(f"s_mov_b64 exec, {sr(sMSK,2)}")
        a(f"buffer_store_dwordx4 {vr(o,4)}, v{VA}, {sr(SHO,4)}, s{sKX} offen sc1")
        if i == 4: a("s_mov_b64 exec, -1")
        if i & 1 or i == 4:
            a(f"v_permlane32_swap_b32 v{SG}, v{SG+2}\nv_permlane32_swap_b32 v{SG+1}, v{SG+3}")
            blkaddr(VA, RHO, 14)
            I(f"v_add_u32 v{RHO}, 2, v{RHO}")
            if i == 4: a(f"s_mov_b32 exec_lo, s{sMSK}\ns_mov_b32 exec_hi, 0")
            a(f"buffer_store_dwordx4 {vr(SG,4)}, v{VA}, {sr(SHO,4)}, s{sKW} offen sc1")
            if i == 4: a("s_mov_b64 exec, -1")
    S(6)
    F2 = I.g + F2
    half(F1, False)
    if not sp: a(FLD)
    nb = min(len(F2)-1, NB)
    assert nb >= 0
    emit(F2[:nb])
    publish(nb+(not sp), len(F1))
    tail_loads(F2[nb:])
    if not sp: a(f"s_waitcnt vmcnt({len(F2)})")
    a("s_branch Lphase2")
    a.label("Lidle")
    late_srds()
    emit([duty(a, 6, False)])
    pretouch(None)
    if 'tup' not in EXP: side_loads(a, stat=False)
    stat_loads(a)
    p2_setup(a, 11)
    a("s_waitcnt vmcnt(0)")
    t_work(a)
    a(f"v_mov_b32 v14, 0\nv_mov_b32 v15, 0\ns_waitcnt vmcnt(0)\ns_barrier")
    nonce_get(a, 14, 12)
    a("s_nop 1")
    s_work(a, 12)
    poll(a, [f"buffer_load_dwordx2 v[14:15], v11, {sr(SFL,4)}, 0 offen sc1"], [14], False)
    for l in p2_ldsbases(): a(l)
    emit([wfrag(p) for p in c.early + rest])
    a(f"v_mov_b32 v{VFD}, 0\nv_mov_b32 v{VFD+1}, 0")
    a.label("Lphase2")
    al = Alloc(12)
    al(2, 2); VLA = al(); VLB = al()
    acc = [[al(4,4) for m in range(4)] for n in range(5)]
    BUF = [al(16, 4), al(16, 4), WREG]
    XR = al(6, 2)
    B2 = [al(2, 2), WREG+16, WREG+18]
    assert al.n <= WREG, al.n
    S(8)
    if 'spoll' in EXP:
        l0, l1 = a.uid("Lsp"), a.uid("Lsp")
        a(f"v_readlane_b32 s{sPFO}, v{VF}, 0\nv_readlane_b32 s{sPFS}, v{VF}, 2\ns_mov_b32 s{sSP}, 0\ns_nop 3")
        a.label(l0)
        a(f"""
        s_buffer_load_dwordx4 s[12:15], {sr(SFL,4)}, s{sPFO} glc
        s_buffer_load_dwordx4 {sr(STMP,4)}, {sr(SFL,4)}, s{sPFS} glc
        s_add_u32 s{sSP}, s{sSP}, 1
        s_cmp_gt_u32 s{sSP}, 400000
        s_cbranch_scc1 {l1}
        s_waitcnt lgkmcnt(0)
        s_cmp_lg_u64 s[12:13], {sr(sNON,2)}
        s_cbranch_scc1 {l0}
        s_cmp_lg_u64 s[14:15], {sr(sNON,2)}
        s_cbranch_scc1 {l0}
        s_cmp_lg_u64 {sr(STMP,2)}, {sr(sNON,2)}
        s_cbranch_scc1 {l0}
        s_cmp_lg_u64 {sr(STMP+2,2)}, {sr(sNON,2)}
        s_cbranch_scc1 {l0}
        """)
        a.label(l1)
        a("s_waitcnt lgkmcnt(0)")
    elif 'nopoll' not in EXP: poll(a, [FLD], [VFD], 'nofld' not in EXP or LP is not None, SLEEP)
    S(9)
    RS_ = [WR0+20*t for t in range(5)]
    abuf = {u: BUF[u % 3] for u in range(9)}; abuf[9] = RS_[0]
    wloc = {u: RS_[u] for u in range(5)}
    wloc.update({5: RS_[0], 6: RS_[1], 7: RS_[2], 8: RS_[3], 9: RS_[4]})
    def aload(t):
        g = [[f"buffer_load_dwordx4 {vr(abuf[t]+4*m,4)}, v{VL}, {sr(SPF,4)}, s{sT3} offen offset:{1024*m} sc1"] for m in range(4)]
        g[0] = [f"s_lshl_b32 s{sT3}, s{sK+t}, 12"] + g[0]
        return g
    ops = []
    for t in (0, 1, 2): emit(aload(t)); ops += [t]*4
    SOX, SOB = [sKX, sKW, sDELTA], [sSLOT, sW1K, sMH]
    setup = [lines(f"v_add_u32 v{VLA}, s{sFILL}, v{VL}\nv_add_u32 v{VLB}, s{sFW}, v{VL}\ns_mul_i32 s{sT0}, s{sC2}, 160")]
    for j in range(3):
        setup += chunks(lines(f"""
        s_add_u32 s{sT1}, s{sW}, {8*j}
        s_mul_i32 s{sT2}, s{sT1}, 52
        s_lshr_b32 s{sT2}, s{sT2}, 8
        s_mul_i32 s{sT3}, s{sT2}, 5
        s_sub_u32 s{sT1}, s{sT1}, s{sT3}
        s_lshl_b32 s{sT1}, s{sT1}, 5
        s_mul_i32 s{sT2}, s{sT2}, 20480
        s_add_u32 s{SOX[j]}, s{sT2}, s{sT1}
        s_add_u32 s{SOB[j]}, s{sT0}, s{sT1}
        """), 3)
    for d, p, sz in ((STMP, P_B2, 1280), (SW, P_OUT, XB)):
        setup += [[f"s_mov_b32 s{d}, s{p}", f"s_mov_b32 s{d+1}, s{p+1}"], [f"s_mov_b32 s{d+2}, {sz}", f"s_mov_b32 s{d+3}, 0x00020000"]]
    setup.append([f"v_lshlrev_b32 v{T1}, 3, v{G}"])
    def pw(n, m):
        q = m*5+n
        ad, off = (VLA, q*1024) if q < 8 else (VLB, (q-8)*1024)
        return f"ds_write_b128 v{ad}, {vr(acc[n][m],4)} offset:{off}"
    def sonly(groups):
        lab = a.uid("Lso")
        return [f"s_cmp_ge_u32 s{sW}, 2", f"s_cbranch_scc1 {lab}"] + sum(groups, []) + [lab + ":"]
    tl = [(n, m) for n in range(5) for m in range(4)]
    for t in (0, 1, 2, 3, 4, 5, 6, 7, 9, 8):
        if t == 9:
            a(f"s_cmp_ge_u32 s{sW}, 2\ns_cbranch_scc1 Lp2skip")
            a(f"s_waitcnt vmcnt(6)")
        else:
            if t == 8: a.label("Lp2skip")
            younger = len(ops) - 1 - max(i for i, o in enumerate(ops) if o == t)
            a(f"s_waitcnt vmcnt({younger})" + (" lgkmcnt(0)" if t == 5 else ""))
        M = [mfma(acc[n][m], wloc[t]+4*n, abuf[t]+4*m, t == 0) for (n, m) in tl]
        items = []
        if t == 0: items += even(setup, 20, 0)
        if 1 <= t <= 6:
            items += [(0+5*k, g) for k, g in enumerate(aload(t+2))]; ops += [t+2]*4
        if 1 <= t <= 4:
            for n in range(5):
                phi = (t+4)*5+n
                ad, off = (VLA, (phi-25)*1024) if phi < 33 else (VLB, (phi-33)*1024)
                items.append((2+4*n, [f"ds_read_b128 {vr(wloc[t+4]+4*n,4)}, v{ad} offset:{off}"]))
        if t == 5: items.append((18, sonly([wfrag(45+n, wloc[9]+4*n) for n in range(5)])))
        if t == 6: items.append((18, sonly(aload(9))))
        if t == 7:
            for j in range(3): items.append((1+6*j, [f"buffer_load_dwordx2 {vr(XR+2*j,2)}, v{VXO}, {sr(SX,4)}, s{SOX[j]} offen"])); ops.append('x')
            for j in range(3): items.append((4+6*j, [f"buffer_load_dwordx2 {vr(B2[j],2)}, v{T1}, {sr(STMP,4)}, s{SOB[j]} offen"])); ops.append('b')
        if t == 8: items += [(k, [pw(*tl[k-8])]) for k in range(8, 20)]
        for l in spread(M, items): a(l)
        if t == 8:
            a("s_nop 0")
            for k in range(12, 20): a(pw(*tl[k]))
        if t != 8 and 'p2st' in EXP: S(40+t)
    a(f"""
    s_lshl_b32 s{sT0}, s{sW}, 10
    v_add_u32 v{T0}, s{sT0}, v{VL}
    v_add_u32 v{T2}, {L_A}, v{T0}
    v_add_u32 v{T3}, {4*12288}, v{T0}
    """)
    S(52)
    a("s_waitcnt lgkmcnt(0)\ns_barrier")
    S(53)
    P = [[acc[0][0] + (j*8+s)*4 for s in range(8)] for j in range(3)]
    assert P[2][7]+4 <= XR
    def rdtile(j):
        for s in range(8):
            if j == 0: ad, off = T2, s*8192
            else: ad, off = (T0 if s < 4 else T3), (s%4)*12288 + (j-1)*8192
            a(f"ds_read_b128 {vr(P[j][s],4)}, v{ad} offset:{off}")
    L2E = f32(-math.log2(math.e))
    def fin(j):
        o = []
        p = P[j]
        Sx, Y, Z = p[0], p[2], p[3]
        for h in (0, 2):
            for k in (0, 2, 4, 6): o.append(f"v_pk_add_f32 {vr(p[k]+h,2)}, {vr(p[k]+h,2)}, {vr(p[k+1]+h,2)}")
        def unp(x, q):
            return lines(f"v_lshlrev_b32 v{x}, 16, v{q}\nv_and_b32 v{x+1}, 0xffff0000, v{q}\nv_lshlrev_b32 v{x+2}, 16, v{q+1}\nv_and_b32 v{x+3}, 0xffff0000, v{q+1}")
        o += unp(Z, B2[j])
        for h in (0, 2):
            o.append(f"v_pk_add_f32 {vr(p[2]+h,2)}, {vr(p[2]+h,2)}, {vr(p[4]+h,2)}")
            o.append(f"v_pk_add_f32 {vr(p[6]+h,2)}, {vr(p[6]+h,2)}, {vr(Z+h,2)}")
        for h in (0, 2): o.append(f"v_pk_add_f32 {vr(Y+h,2)}, {vr(Y+h,2)}, {vr(p[6]+h,2)}")
        for r in range(4): o.append(f"v_mul_f32 v{Z+r}, {L2E}, v{Y+r}")
        for r in range(4): o.append(f"v_exp_f32 v{Z+r}, v{Z+r}")
        for r in range(4): o.append(f"v_add_f32 v{Z+r}, 1.0, v{Z+r}")
        for r in range(4): o.append(f"v_rcp_f32 v{Z+r}, v{Z+r}")
        for h in (0, 2): o.append(f"v_pk_mul_f32 {vr(Y+h,2)}, {vr(Y+h,2)}, {vr(Sx+h,2)}")
        o += unp(p[4], XR+2*j)
        for r in range(4): o.append(f"v_fma_f32 v{Y+r}, v{Y+r}, v{Z+r}, v{p[4]+r}")
        o += [f"v_cvt_pk_bf16_f32 v{Sx}, v{Y}, v{Y+1}", f"v_cvt_pk_bf16_f32 v{Sx+1}, v{Y+2}, v{Y+3}",
              f"buffer_store_dwordx2 {vr(Sx,2)}, v{VXO}, {sr(SW,4)}, s{SOX[j]} offen {OSF}"]
        return o
    rdtile(0); rdtile(1)
    l3 = a.uid("L3")
    a(f"s_cmp_ge_u32 s{sW}, 4\ns_cbranch_scc1 {l3}")
    rdtile(2)
    a("s_waitcnt vmcnt(0) lgkmcnt(8)")
    for x, y in zip(fin(0), fin(1)): a(x); a(y)
    a("s_waitcnt lgkmcnt(0)")
    for x in fin(2): a(x)
    a("s_branch Lfin")
    a.label(l3)
    a("s_waitcnt vmcnt(0) lgkmcnt(0)")
    for x, y in zip(fin(0), fin(1)): a(x); a(y)
    a.label("Lfin")
    S.finish(54)
    a.label("Lend")
    a("s_endpgm")
    ref = open(f"cdna_kernels/{NAME}.s.ref").read().split("\n")
    hdr = [l for l in ref if l.startswith(";") and "@launch" not in l]
    out = "\n".join(hdr) + f"\n; @launch grid=(256,1,1) block=(512,1,1) lds={LDS_TOTAL}\n"
    out += '.amdgcn_target "amdgcn-amd-amdhsa--gfx950"\n' + khead(name) + a.text() + kd(name, 256, 102)
    return out

if __name__ == "__main__":
    path = sys.argv[1]
    kw = eval("dict(" + (sys.argv[2] if len(sys.argv) > 2 else "") + ")")
    open(path, "w").write(gen(**kw))
```

```python
from asmlib import *
import math, sys
NAME = "recurrent_scan__sliding_local_dilated__dense_activation_gelu__prompt"
XB = 2048*640*2
HO_SZ = 32*74*4096
WT_OFF, WT_SZ = 0xB00000, 8*74*5*1024
FLB = 0x400000
TFO, STO = FLB+0x1000, FLB+0x4000
FL_SZ = FLB + 0x10000
BIG = 0x7ff00000
RS = 592
L_TST, L_CS, L_A = 147456, 88064, 98304
LA_ = list(range(25, 33)); LB = [33, 34] + list(range(36, 45)) + [35]
WR0 = 156
VFD = 12
LDS_TOTAL = 163840
FROWS = 152

SX, SW, SHO, SPF, SWT, SFL, SDBG, STMP = 4, 8, 16, 20, 24, 28, 32, 36
sXA, sXB, sEM, sWO = 12, 13, 14, 15
P_X, P_WQ, P_WO, P_W1, P_B1, P_W2, P_B2, P_OUT, P_DBG, P_WS = 40, 42, 44, 48, 50, 52, 54, 56, 58, 60
(sW, sRB, sCB, sI, sKX, sKW, sTM, sFILL, sDELTA, sSLOT, sW1K, sT0, sT1, sT2, sT3, sMH) = range(62, 78)
sNT = 78; sNON = 82; sMSK = 84; sR2, sC2 = 50, 51; sK = 88; sSP = 98; sN2 = 99
sWM = 100
sFW, sWB = 3, 47
sHF = 43
sPFO, sPFS, sPG = 46, 86, 87
sRM, sRH = 48, 49
sTS = [44, 45, 52, 53]
VF, LANE, G, R, T0, T1, T2, T3, VST, VL, VXO = 0, 1, 2, 3, 4, 5, 6, 7, 8, 9, 10
WREG = 136
SIDE = 232
RT = 5; MAP2 = 81; ROTA = 2; EXP = set(); PFF = ""; DN = 2; DMASK = 0b101; DPRE = 2; SP = dict(tw=1, nonce=3, sl=3, sw=5, tf=5); TFL = "nt"; RECIT = 9

def mfma(d, a_, b_, c0=False): return f"v_mfma_f32_16x16x32_bf16 {vr(d,4)}, {vr(a_,4)}, {vr(b_,4)}, " + ("0" if c0 else vr(d,4))
def chunks(l, n): return [l[i:i+n] for i in range(0, len(l), n)]
def merge(groups, n): return [sum(g, []) for g in chunks(groups, n)]
def lines(t): return [l.strip() for l in t.strip("\n").split("\n") if l.strip()]
def srd(a, d, p, size, off=None):
    if off is None: a(f"s_mov_b32 s{d}, s{p}\ns_mov_b32 s{d+1}, s{p+1}")
    else: a(f"s_add_u32 s{d}, s{p}, {off}\ns_addc_u32 s{d+1}, s{p+1}, 0")
    a(f"s_mov_b32 s{d+2}, {size}\ns_mov_b32 s{d+3}, 0x00020000")

class St:
    def __init__(s, a, on): s.a, s.on = a, on
    def start(s):
        if s.on: s.a(f"s_memtime s[0:1]\nv_mov_b32 v{VST}, 0\ns_waitcnt lgkmcnt(0)\nv_writelane_b32 v{VST}, s0, 59\nv_writelane_b32 v{VST}, s94, 0\nv_writelane_b32 v{VST}, s96, 62")
    def __call__(s, i):
        if s.on: s.a(f"s_memtime s[0:1]\ns_waitcnt lgkmcnt(0)\nv_writelane_b32 v{VST}, s0, {i}")
    def dyn(s, base):
        if s.on and ((base == 30 and 'nobar' not in EXP) or 'lst' in EXP):
            s.a(f"s_memtime s[0:1]\ns_add_u32 m0, s{sI}, {base}\ns_waitcnt lgkmcnt(0)\nv_writelane_b32 v{VST}, s0, m0")
    def finish(s, i):
        if not s.on: return
        s.a(f"""
        s_waitcnt vmcnt(0)
        s_memtime s[0:1]
        s_waitcnt lgkmcnt(0)
        v_writelane_b32 v{VST}, s0, {i}
        s_memrealtime s[0:1]
        s_waitcnt lgkmcnt(0)
        v_writelane_b32 v{VST}, s0, 63
        s_lshl_b32 s3, s2, 3
        s_add_u32 s3, s3, s{sW}
        s_lshl_b32 s3, s3, 8
        s_add_u32 s3, s3, {STAMP_OFF}
        s_add_u32 s{STMP}, s{P_WS}, s3
        s_addc_u32 s{STMP+1}, s{P_WS+1}, 0
        s_mov_b32 s{STMP+2}, 256
        s_mov_b32 s{STMP+3}, 0x00020000
        v_lshlrev_b32 v{T0}, 2, v{LANE}
        buffer_store_dword v{VST}, v{T0}, {sr(STMP,4)}, 0 offen
        """)
class Cfg: inloop = False

def wld(c, u):
    ld = f"buffer_load_dwordx4 v{c.VW[u]}, {sr(SW,4)}, s{sKW} offen offset:{1024*u} lds"
    return [f"s_mov_b64 exec, {sr(sWM,2)}", ld, "s_mov_b64 exec, -1"] if u == 3 else [ld]
def dmaA(c, a):
    lab = a.uid("Lsk")
    return [[f"s_add_u32 m0, s{sFILL}, s{sW1K}", f"s_add_u32 s{sXA}, s{sXA}, 128"],
            [f"buffer_load_dwordx4 v{c.VX[0]}, {sr(SX,4)}, s{sXA} offen lds"],
            [f"buffer_load_dwordx4 v{c.VX[1]}, {sr(SX,4)}, s{sXA} offen offset:1024 lds"],
            [f"s_cbranch_vccz {lab}", f"s_add_u32 m0, s{sFILL}, s{sEM}", f"s_add_u32 s{sXB}, s{sXB}, 128",
             f"buffer_load_dwordx4 v{c.VX[2]}, {sr(SX,4)}, s{sXB} offen lds", lab + ":"],
            [f"s_add_u32 m0, s{sFILL}, s{sWB}", f"s_add_u32 s{sKW}, s{sKW}, {64*c.wrowb}"]] + ([wld(c, 0)] if c.nW == 4 else [])
def dmaB(c, a): return [wld(c, u) for u in range(c.nW-3, c.nW)]
def guard(a, groups, old):
    out = []
    for g in groups:
        lab = a.uid("Lg")
        out.append([f"s_cbranch_vcc{'z' if old else 'nz'} {lab}"] + g + [lab + ":"])
    return out
SETVCC = None
def reads(c, st, s):
    r = []
    if 'xrd' in EXP and c.inloop: return [['s_nop 0']]
    for i in range(c.nM):
        ins = f"ds_read_b128 {vr(c.X[st][i],4)}, v{c.xb[s]} offset:{i*2048}"
        if (not c.nh) and i == c.nM-1: r.append([f"s_mov_b64 exec, {sr(sMSK,2)}", ins, "s_mov_b64 exec, -1"])
        else: r.append([ins])
    if c.nh: r.append([f"s_mov_b64 exec, {sr(sMSK,2)}", f"ds_read_b128 {vr(c.XH[st],4)}, v{c.hb[s]}", "s_mov_b64 exec, -1"])
    for f in range(c.nF):
        r.append([f"ds_read_b64_tr_b16 {vr(c.W[st][f],2)}, v{c.wb[f]} offset:{s*32*c.wrow}"])
        r.append([f"ds_read_b64_tr_b16 {vr(c.W[st][f]+2,2)}, v{c.wb[f]} offset:{s*32*c.wrow+8*c.wrow}"])
    return r
def mfmas(c, st, c0=False):
    m = []
    for f in range(c.nF):
        for i in range(c.nM): m.append(mfma(c.acc[f][i], c.W[st][f], c.X[st][i], c0))
        if f < c.nh: m.append(mfma(c.acch[f], c.W[st][f], c.XH[st], c0))
    return m
def spread(main, items):
    out = []
    for i, m in enumerate(main):
        out.append(m)
        for p, g in items:
            if p == i or (i == len(main)-1 and p > i): out.extend(g)
    return out
def even(groups, n, lo=1):
    k = len(groups)
    return [(lo + (j*(n-lo))//k, g) for j, g in enumerate(groups)] if k else []

def stat_row(a):
    a(f"""
    s_and_b32 s{sT0}, s2, 1
    s_lshl_b32 s{sT0}, s{sT0}, 10
    s_bfe_u32 s{sT2}, s2, 0x20001
    s_lshl_b32 s{sT2}, s{sT2}, 8
    s_add_u32 s{sT0}, s{sT0}, s{sT2}
    s_and_b32 s{sT2}, s2, 0xf8
    s_add_u32 s{sT0}, s{sT0}, s{sT2}
    s_sub_u32 s{sT2}, s{sW}, 6
    s_lshl_b32 s{sT2}, s{sT2}, 2
    s_add_u32 s{sT0}, s{sT0}, s{sT2}
    """)
def nonce_get(a, vN, vPS):
    l0, l1, l2, l3 = a.uid("Lno"), a.uid("Lno"), a.uid("Lno"), a.uid("Lno")
    assert vN == vPS + 2 and vPS % 2 == 0
    a(f"s_mov_b32 s{sSP}, 0")
    a.label(l0)
    a(f"""
    v_readfirstlane_b32 s{sNON}, v{vN}
    v_readfirstlane_b32 s{sNON+1}, v{vN+1}
    s_add_u32 s{sSP}, s{sSP}, 1
    s_cmp_gt_u32 s{sSP}, 100000
    s_cbranch_scc1 {l1}
    s_cmp_lg_u32 s{sNON}, 0
    s_cbranch_scc1 {l1}
    v_mov_b32 v{T0}, 0
    buffer_load_dwordx2 {vr(vN,2)}, v{T0}, {sr(SDBG,4)}, 0 offen sc1
    s_waitcnt vmcnt(0)
    s_branch {l0}
    """)
    a.label(l1)
    a(f"""
    s_cmp_lg_u32 s{sW}, 0
    s_cbranch_scc1 {l2}
    s_lshl_b32 s{sT1}, s2, 3
    v_mov_b32 v{T0}, {TFO}
    s_mov_b64 exec, 1
    buffer_store_dwordx2 {vr(vN,2)}, v{T0}, {sr(SFL,4)}, s{sT1} offen sc1
    s_mov_b64 exec, -1
    """)
    a.label(l2)
def poll(a, loads, cmps, preloaded, sleep=0):
    l0, l1, l2 = a.uid("Lpo"), a.uid("Lpo"), a.uid("Lpo")
    a(f"s_mov_b32 s{sSP}, 0")
    if preloaded: a(f"s_branch {l2}")
    a.label(l0)
    for l in loads: a(l)
    a("s_waitcnt vmcnt(0)")
    a.label(l2)
    for k, v in enumerate(cmps):
        if k == 0: a(f"v_cmp_eq_u64 vcc, {sr(sNON,2)}, {vr(v,2)}")
        else: a(f"v_cmp_eq_u64 {sr(sT1,2)}, {sr(sNON,2)}, {vr(v,2)}\ns_nop 0\ns_and_b64 vcc, vcc, {sr(sT1,2)}")
    a(f"""
    s_add_u32 s{sSP}, s{sSP}, 1
    s_cmp_gt_u32 s{sSP}, 100000
    s_cbranch_scc1 {l1}
    s_cmp_eq_u64 vcc, -1
    """)
    if sleep: a(f"s_cbranch_scc1 {l1}\ns_sleep {sleep}\ns_branch {l0}")
    else: a(f"s_cbranch_scc0 {l0}")
    a.label(l1)

def wfrag(phi, dst=None):
    t, n = divmod(phi, 5)
    pre = [f"s_mul_i32 s{sTM}, s{sK+t}, 5120"]
    if phi < 25 or dst is not None:
        d = WR0+4*phi if dst is None else dst
        if n < 4: return pre + [f"buffer_load_dwordx4 {vr(d,4)}, v{VL}, {sr(SWT,4)}, s{sTM} offen offset:{1024*n} sc1"]
        return pre + [f"s_add_u32 s{sTM}, s{sTM}, 4096", f"buffer_load_dwordx4 {vr(d,4)}, v{VL}, {sr(SWT,4)}, s{sTM} offen sc1"]
    base, o = (sFILL, (phi-25)*1024) if phi < 33 else (sFW, (phi-33)*1024)
    return [f"s_add_u32 m0, s{base}, {o}"] + pre + [f"s_add_u32 s{sTM}, s{sTM}, {1024*n}", f"buffer_load_dwordx4 v{VL}, {sr(SWT,4)}, s{sTM} offen sc1 lds"]
def p2_ldsbases():
    return [f"s_lshl_b32 s{sFILL}, s{sW}, 13", f"s_add_u32 s{sFILL}, s{sFILL}, {L_A}", f"s_mul_i32 s{sFW}, s{sW}, 12288"]

def stage_set(c, st):
    return [f"s_mov_b32 s{sFILL}, {((st+1) % 3) * c.stg}"]
def duty(a, n=2, guard=True):
    lab = a.uid("Ldu")
    g = [f"s_bitcmp1_b32 {DMASK}, s{sI}", f"s_cbranch_scc0 {lab}"] if guard else []
    for _ in range(n):
        g += lines(f"""
        s_cmp_ge_u32 s{sPFO}, s{sPG}
        s_cbranch_scc1 {lab}
        buffer_load_dword v255, v254, {sr(STMP,4)}, s{sPFO} offen {PFF}
        s_add_u32 s{sPFO}, s{sPFO}, s{sPFS}""")
    return g + [lab + ":"]

def atoms(group):
    if any(l.endswith(":") for l in group): return [group]
    out = []; k = 0
    while k < len(group):
        if group[k].startswith("s_mov_b64 exec"): out.append(group[k:k+3]); k += 3
        else: out.append([group[k]]); k += 1
    return out
def balance(M, streams, last):
    items = []
    for units, lo, hi in streams:
        tot = sum(len(u) for u in units); acc = 0
        for u in units:
            items.append((lo + (acc*(hi-lo+1))//max(tot, 1), u)); acc += len(u)
    return spread(M, items)

def iteration(a, c, S, kind, extra1=(), extra2=(), pre2=None):
    prio = 'noprio' not in EXP
    a("s_waitcnt lgkmcnt(0)")
    M = mfmas(c, 0, kind == 0); n = len(M)
    upd = lambda b: [f"v_add_u32 v{b}, s{sDELTA}, v{b}"]
    rd = reads(c, 1, 1); nx = c.nM + (1 if c.nh else 0)
    R = rd[:nx]
    if kind != 9: R = R + [upd(c.xb[1])] + ([upd(c.hb[1])] if c.nh else [])
    for f in range(c.nF):
        R += rd[nx+2*f:nx+2*f+2]
        if kind != 9 and f: R.append(upd(c.wb[f-1]))
    late = []
    if kind != 9: late = [upd(c.wb[c.nF-1]), upd(c.xb[0])] + ([upd(c.hb[0])] if c.nh else [])
    Sx = []; S0 = []
    if kind != 9:
        S0 = [[f"s_add_u32 s{sT1}, s{sSLOT}, {c.stg}", f"s_cmp_eq_u32 s{sT1}, {3*c.stg}", f"s_cselect_b32 s{sT1}, 0, s{sT1}"], [f"s_sub_u32 s{sDELTA}, s{sT1}, s{sSLOT}"]]
    if kind in ('loop', 7): Sx += dmaB(c, a)
    if kind == 0: Sx += dmaB(c, a) + [stage_set(c, 2)] + dmaA(c, a) + dmaB(c, a)
    Sx += sum([atoms(g) for g in extra1], [])
    if kind in ('loop', 0):
        Sx += [[f"s_mov_b32 s{sFILL}, s{sSLOT}"]]
    if kind != 9: Sx.append([f"s_mov_b32 s{sSLOT}, s{sT1}"])
    st = [(S0, 0, 1), (Sx, 0 if kind == 0 else 2, n-2), (R, 0, n-RT), (late, n-RT+1, n-2)]
    if prio: st = [([["s_setprio 1"]], 0, 0), ([["s_setprio 0"]], n//2, n//2)] + st
    for l in balance(M, st, n): a(l)
    S.dyn(10)
    if kind in ('loop', 0, 7): a(f"s_waitcnt vmcnt({c.nW+2}) lgkmcnt(0)")
    elif kind == 8: a(f"s_waitcnt vmcnt({c.y8}) lgkmcnt(0)")
    else: a("s_waitcnt lgkmcnt(0)")
    S.dyn(20)
    a("s_barrier")
    S.dyn(30)
    if prio: a("s_setprio 3")
    if pre2: pre2()
    M = mfmas(c, 1)
    R = reads(c, 0, 0) if kind != 9 else []
    Sx = []
    if kind in ('loop', 0):
        if c.duty: Sx.append(duty(a))
        Sx += dmaA(c, a)
    Sx += sum([atoms(g) for g in extra2], [])
    st = [(Sx, 0, n-3), (R, 0, n-RT)]
    if kind == 'loop':
        st.append(([[f"s_bitcmp1_b32 {0x2c if 'tw2' in EXP else 0x28}, s{sI}", f"s_cbranch_scc1 Lspec_{c.tag}", f"Lret_{c.tag}:"]], n-3, n-3))
        st.append(([[f"s_add_u32 s{sI}, s{sI}, 1", f"s_cmp_lt_u32 s{sI}, 7"]], n-2, n-2))
    if prio: st.append(([["s_setprio 2"]], n//2, n//2))
    for l in balance(M, st, n): a(l)

def main_loop(a, c, S, tag, rec_loads):
    iteration(a, c, S, 0)
    if 'tw2' in EXP: t_work(a)
    else: nonce_get(a, c.VN, c.VPS)
    a(f"s_mov_b32 s{sI}, 1")
    S(40)
    a.label(f"Lloop_{tag}")
    c.inloop = True; c.tag = tag
    iteration(a, c, S, 'loop')
    c.inloop = False
    a(f"s_cbranch_scc1 Lloop_{tag}")
    a(f"s_branch Lpost_{tag}")
    l5 = a.uid("Ls")
    tf = f"buffer_load_dwordx2 {vr(c.VN,2)}, v{c.VTF}, {sr(SFL,4)}, 0 offen sc1"
    a.label(f"Lspec_{tag}")
    if 'tw2' in EXP:
        l3 = a.uid("Ls")
        a(f"s_cmp_lg_u32 s{sI}, 2\ns_cbranch_scc1 {l3}")
        nonce_get(a, c.VN, c.VPS)
        a(f"s_branch Lret_{tag}")
        a.label(l3)
    a(f"s_cmp_lg_u32 s{sI}, 3\ns_cbranch_scc1 {l5}")
    stat_loads(a)
    a(f"s_branch Lret_{tag}")
    a.label(l5)
    a(tf)
    s_work(a, c.VPS)
    a(f"s_branch Lret_{tag}")
    a.label(f"Lpost_{tag}")
    S(41)
    early = [wfrag(p) for p in c.early]
    e = chunks(early, (len(early)+4)//5)
    def pre7():
        poll(a, [tf], [c.VN], True)
        for l in p2_ldsbases(): a(l)
    iteration(a, c, S, 7, extra2=e[0], pre2=pre7)
    a(f"s_add_u32 s{sI}, s{sI}, 1")
    c.y8 = len(e[0]) + len(e[1])
    iteration(a, c, S, 8, extra1=e[1], extra2=rec_loads + e[2])
    a(f"s_add_u32 s{sI}, s{sI}, 1")
    iteration(a, c, S, 9, extra1=e[3], extra2=e[4] + c.tailx)
    a("s_setprio 0")
    c.yrec = len(e[2]) + len(e[3]) + len(e[4])
    S(4)

def rho_local(a, d, t):
    a(f"v_bfe_u32 v{d}, v{LANE}, 2, 3\nv_lshrrev_b32 v{t}, 5, v{LANE}\nv_lshl_add_u32 v{d}, v{t}, 4, v{d}")

def t_issue(a, guard=True):
    ld = a.uid("Lti")
    if guard: a(f"s_sub_u32 s{sT1}, s{sW}, 3\ns_cmp_gt_u32 s{sT1}, 2\ns_cbranch_scc1 {ld}")
    a(f"s_lshl_b32 s{sT1}, s{sW}, 12")
    for q in range(4):
        a(f"s_add_u32 m0, s{sT1}, {L_TST-3*4096+1024*q}\ns_nop 0")
        a(f"buffer_load_dwordx4 v{SIDE+4+q}, {sr(STMP,4)}, 0 offen {TFL} lds")
    a.label(ld)
def side_loads(a, stat=True, issue=True):
    ld, lst, lh, lj = a.uid("Lt"), a.uid("Lt"), a.uid("Lt"), a.uid("Lt")
    sU, sKp, sCh = sKX, sKW, sDELTA
    A0, A1, ST0, ST1 = SIDE, SIDE+1, SIDE+2, SIDE+3
    for q in range(4): a(f"v_mov_b32 v{SIDE+4+q}, 0")
    a(f"s_cmp_lt_u32 s{sW}, 3\ns_cbranch_scc1 {ld}\ns_cmp_ge_u32 s{sW}, 6\ns_cbranch_scc1 {lst}")
    a(f"""
    s_mul_i32 s{sU}, s2, 3
    s_add_u32 s{sU}, s{sU}, s{sW}
    s_sub_u32 s{sU}, s{sU}, 3
    s_min_u32 s{sU}, s{sU}, 739
    s_mul_i32 s{sKp}, s{sU}, 6554
    s_lshr_b32 s{sKp}, s{sKp}, 16
    s_mul_i32 s{sT0}, s{sKp}, 10
    s_sub_u32 s{sCh}, s{sU}, s{sT0}
    v_lshrrev_b32 v{T0}, 5, v{LANE}
    s_cmp_ge_u32 s{sKp}, 20
    s_cbranch_scc1 {lh}
    """)
    for e, (A, ST) in enumerate(((A0, ST0), (A1, ST1))):
        a(f"""
        s_lshl_b32 s{sT0}, s{sKp}, 2
        s_add_u32 s{sT0}, s{sT0}, {2*e}
        v_add_u32 v{T1}, s{sT0}, v{T0}
        v_mul_u32_u24 v{T2}, 205, v{T1}
        v_lshrrev_b32 v{T2}, 10, v{T2}
        v_mul_u32_u24 v{T3}, 5, v{T2}
        v_sub_u32 v{T1}, v{T1}, v{T3}
        v_mul_u32_u24 v{A}, 40, v{T2}
        v_lshrrev_b32 v{T2}, 1, v{T1}
        v_mul_u32_u24 v{T2}, 20, v{T2}
        v_and_b32 v{T3}, 1, v{T1}
        v_lshl_add_u32 v{T2}, v{T3}, 3, v{T2}
        v_cmp_eq_u32 vcc, 4, v{T1}
        v_mov_b32 v{ST}, 20
        s_nop 0
        v_cndmask_b32 v{T2}, v{T2}, 16, vcc
        v_cndmask_b32 v{ST}, 4, v{ST}, vcc
        v_add_u32 v{A}, v{A}, v{T2}
        """)
    a("s_waitcnt lgkmcnt(0)")
    srd(a, STMP, P_WO, 640*1280)
    a(f"s_branch {lj}")
    a.label(lh)
    a(f"""
    s_sub_u32 s{sT0}, s{sKp}, 20
    s_mul_i32 s{sT1}, s{sT0}, 86
    s_lshr_b32 s{sT1}, s{sT1}, 8
    s_mul_i32 s{sT1}, s{sT1}, 3
    s_sub_u32 s{sT1}, s{sT0}, s{sT1}
    s_lshl_b32 s{sT0}, s{sT0}, 5
    v_lshl_add_u32 v{A0}, v{T0}, 2, s{sT0}
    s_cmp_eq_u32 s{sT1}, 1
    s_cselect_b32 s{sT1}, 16, 8
    s_cselect_b32 s{sT2}, 8, 16
    v_add_u32 v{A1}, s{sT1}, v{A0}
    v_mov_b32 v{ST0}, s{sT2}
    v_mov_b32 v{ST1}, s{sT2}
    """)
    a("s_waitcnt lgkmcnt(0)")
    srd(a, STMP, P_W2, 1728*1280)
    a.label(lj)
    a(f"""
    v_bfe_u32 v{T1}, v{LANE}, 3, 2
    v_and_b32 v{T2}, 7, v{LANE}
    v_lshlrev_b32 v{T2}, 4, v{T2}
    s_lshl_b32 s{sT0}, s{sCh}, 7
    s_lshl_b32 s{sT1}, s{sW}, 12
    """)
    for q in range(4):
        A, ST = ((A0, ST0), (A1, ST1))[q & 1]
        a(f"v_add_u32 v{T3}, v{A}, v{T1}")
        if q >> 1: a(f"v_add_u32 v{T3}, v{T3}, v{ST}")
        a(f"v_mul_u32_u24 v{T3}, 1280, v{T3}\nv_add3_u32 v{SIDE+4+q}, v{T3}, v{T2}, s{sT0}")
    if issue: t_issue(a, False)
    a(f"s_mul_i32 s{sT2}, s{sKp}, 5\ns_lshl_b32 s{sT3}, s{sCh}, 2")
    for t in range(4):
        a(f"""
        s_add_u32 s{sT0}, s{sT3}, {t}
        s_mul_i32 s{sT1}, s{sT0}, 52
        s_lshr_b32 s{sT1}, s{sT1}, 8
        s_mul_i32 s{sT1}, s{sT1}, 365
        s_add_u32 s{sT0}, s{sT0}, s{sT1}
        s_add_u32 s{sT0}, s{sT0}, s{sT2}
        s_lshl_b32 s{sTS[t]}, s{sT0}, 10
        """)
    a(f"s_branch {ld}")
    a.label(lst)
    if stat: stat_loads(a, False)
    a.label(ld)
def stat_loads(a, guard=True):
    ld = a.uid("Lsl")
    if guard: a(f"s_cmp_lt_u32 s{sW}, 6\ns_cbranch_scc1 {ld}")
    stat_row(a)
    a(f"s_mul_i32 s{sT0}, s{sT0}, 1280\nv_mul_u32_u24 v{T0}, 1280, v{G}\nv_lshl_add_u32 v{T0}, v{R}, 4, v{T0}")
    for i in range(5): a(f"buffer_load_dwordx4 {vr(SIDE+4*i,4)}, v{T0}, {sr(SX,4)}, s{sT0} offen offset:{256*i}")
    a.label(ld)
for u in range(1001): assert (u*6554)>>16 == u//10
for u in range(80): assert (u*205)>>10 == u//5
for u in range(54): assert (u*86)>>8 == u//3
for N in range(40): assert (N*52)>>8 == N//5

def t_work(a):
    lab = a.uid("Ltw")
    a(f"s_sub_u32 s{sT1}, s{sW}, 3\ns_cmp_gt_u32 s{sT1}, 2\ns_cbranch_scc1 {lab}")
    t_part(a)
    a.label(lab)
def s_work(a, vPS):
    lab = a.uid("Ltw")
    a(f"s_cmp_lt_u32 s{sW}, 6\ns_cbranch_scc1 {lab}")
    s_part(a, SIDE+20)
    a(f"v_mov_b32 v{SIDE}, v{SIDE+20}\nv_mov_b32 v{SIDE+1}, v{SIDE+21}\nv_mov_b32 v{SIDE+2}, s{sNON}\nv_mov_b32 v{SIDE+3}, s{sNON+1}")
    stat_row(a)
    a(f"""
    s_lshl_b32 s{sT0}, s{sT0}, 4
    s_add_u32 s{sT0}, s{sT0}, {STO}
    v_lshlrev_b32 v{T0}, 4, v{G}
    s_mov_b32 exec_lo, 0x00010001
    s_mov_b32 exec_hi, 0x00010001
    buffer_store_dwordx4 {vr(SIDE,4)}, v{T0}, {sr(SFL,4)}, s{sT0} offen sc1
    s_mov_b64 exec, -1
    """)
    a.label(lab)
def t_part(a):
    tmp = SIDE
    a(f"""
    v_lshrrev_b32 v{T0}, 2, v{LANE}
    v_lshlrev_b32 v{T0}, 7, v{T0}
    v_and_b32 v{T1}, 3, v{LANE}
    v_lshl_add_u32 v{T0}, v{T1}, 3, v{T0}
    s_lshl_b32 s{sT0}, s{sW}, 12
    s_add_u32 s{sT0}, s{sT0}, {L_TST-3*4096}
    v_add_u32 v{T0}, s{sT0}, v{T0}
    """)
    for t in range(4):
        a(f"ds_read_b64_tr_b16 {vr(tmp+4*t,2)}, v{T0} offset:{32*t}")
        a(f"ds_read_b64_tr_b16 {vr(tmp+4*t+2,2)}, v{T0} offset:{32*t+2048}")
    for t in range(4):
        a(f"s_waitcnt lgkmcnt({6-2*t})\nbuffer_store_dwordx4 {vr(tmp+4*t,4)}, v{VL}, {sr(SFL,4)}, s{sTS[t]} offen sc1")
def s_part(a, vPS):
    tmp = SIDE
    s, q = vPS, vPS+1
    a(f"v_mov_b32 v{s}, 0\nv_mov_b32 v{q}, 0\nv_mov_b32 v{T0}, 0x3f803f80")
    for j in range(20):
        a(f"v_dot2c_f32_bf16 v{s}, v{tmp+j}, v{T0}\nv_dot2c_f32_bf16 v{q}, v{tmp+j}, v{tmp+j}")
    a("s_nop 2")
    for sh in (8, 4, 2, 1):
        a(f"v_add_f32_dpp v{s}, v{s}, v{s} row_ror:{sh} row_mask:0xf bank_mask:0xf")
        a(f"v_add_f32_dpp v{q}, v{q}, v{q} row_ror:{sh} row_mask:0xf bank_mask:0xf")
        a("s_nop 0")
    a(f"""
    v_mul_f32 v{s}, {f32(1/640)}, v{s}
    v_mul_f32 v{q}, {f32(1/640)}, v{q}
    v_fma_f32 v{q}, -v{s}, v{s}, v{q}
    v_max_f32 v{q}, 0, v{q}
    v_cvt_pk_bf16_f32 v{T0}, v{s}, v{q}
    v_lshlrev_b32 v{T1}, 16, v{T0}
    v_and_b32 v{q}, 0xffff0000, v{T0}
    v_add_f32 v{q}, {f32(1e-5)}, v{q}
    v_cvt_pk_bf16_f32 v{q}, v{q}, v{q}
    v_and_b32 v{q}, 0xffff0000, v{q}
    v_sqrt_f32 v{q}, v{q}
    s_nop 0
    v_cvt_pk_bf16_f32 v{q}, v{q}, v{q}
    v_and_b32 v{q}, 0xffff0000, v{q}
    v_rcp_f32 v{s}, v{q}
    s_nop 0
    v_mul_f32 v{q}, v{T1}, v{s}
    v_sub_f32 v{q}, 0, v{q}
    """)

def p2_setup(a, VTF):
    if MAP2 == 81:
        a(f"""
    s_and_b32 s{sT0}, s2, 7
    s_lshl_b32 s{sR2}, s{sT0}, 2
    s_bfe_u32 s{sT1}, s2, 0x20003
    s_add_u32 s{sR2}, s{sR2}, s{sT1}
    s_lshr_b32 s{sC2}, s2, 5
    s_lshl_b32 s{sT1}, s{sT1}, 1
    s_mul_i32 s{sT0}, s{sC2}, {ROTA}
    s_lshr_b32 s{sT0}, s{sT0}, 1
    s_add_u32 s{sT1}, s{sT1}, s{sT0}
    """)
    else:
        a(f"""
    s_and_b32 s{sT0}, s2, 3
    s_lshl_b32 s{sR2}, s{sT0}, 3
    s_bfe_u32 s{sT1}, s2, 0x30003
    s_add_u32 s{sR2}, s{sR2}, s{sT1}
    s_and_b32 s{sC2}, s2, 4
    s_lshr_b32 s{sT0}, s2, 6
    s_add_u32 s{sC2}, s{sC2}, s{sT0}
    s_mul_i32 s{sT0}, s{sT0}, {ROTA}
    s_add_u32 s{sT1}, s{sT1}, s{sT0}
    """)
    a(f"""
    s_cmp_lt_u32 s{sW}, 2
    s_cselect_b32 s{sN2}, 10, 9
    s_cmp_ge_u32 s{sT1}, s{sN2}
    s_cselect_b32 s{sT2}, s{sN2}, 0
    s_sub_u32 s{sK}, s{sT1}, s{sT2}
    """)
    for t in range(1, 10):
        a(f"s_add_u32 s{sK+t}, s{sK+t-1}, 1\ns_cmp_eq_u32 s{sK+t}, s{sN2}\ns_cselect_b32 s{sK+t}, 0, s{sK+t}")
    a(f"""
    s_mul_i32 s{sT3}, s{sW}, 9
    s_min_u32 s{sT2}, s{sW}, 2
    s_add_u32 s{sT3}, s{sT3}, s{sT2}
    v_lshrrev_b32 v{T0}, 1, v{LANE}
    s_sub_u32 s{sT2}, s{sN2}, 1
    v_min_u32 v{T0}, s{sT2}, v{T0}
    v_add_u32 v{T0}, s{sT3}, v{T0}
    v_mul_u32_u24 v{T0}, 10, v{T0}
    s_mul_i32 s{sT2}, s{sC2}, 5
    s_lshr_b32 s{sT2}, s{sT2}, 2
    v_and_b32 v{T1}, 1, v{LANE}
    v_add3_u32 v{T0}, v{T0}, v{T1}, s{sT2}
    v_mul_u32_u24 v{T0}, 21846, v{T0}
    v_lshrrev_b32 v{T0}, 16, v{T0}
    v_lshlrev_b32 v{T0}, 3, v{T0}
    v_add_u32 v{VTF}, {TFO}, v{T0}
    s_mul_i32 s{sT2}, s{sC2}, 74
    s_add_u32 s{sT2}, s{sT2}, s{sT3}
    s_mul_i32 s{sT2}, s{sT2}, 5120
    s_add_u32 s{sT2}, s{sT2}, {WT_OFF}
    s_add_u32 s{SWT}, s{P_WS}, s{sT2}
    s_addc_u32 s{SWT+1}, s{P_WS+1}, 0
    s_mul_i32 s{SWT+2}, s{sN2}, {0 if 'now' in EXP else 5120}
    s_mov_b32 s{SWT+3}, 0x00020000
    s_mul_i32 s{sT2}, s{sR2}, 74
    s_add_u32 s{sT2}, s{sT2}, s{sT3}
    s_lshl_b32 s{sT2}, s{sT2}, 12
    s_add_u32 s{SPF}, s{P_WS}, s{sT2}
    s_addc_u32 s{SPF+1}, s{P_WS+1}, 0
    s_lshl_b32 s{SPF+2}, s{sN2}, 12
    {f"s_mov_b32 s{SPF+2}, 0" if 'noa' in EXP else ""}
    s_mov_b32 s{SPF+3}, 0x00020000
    """)
    ly, lyd = a.uid("Ly"), a.uid("Ly")
    a(f"""
    s_cmp_ge_u32 s{sW}, 2
    s_cbranch_scc1 {ly}
    s_lshr_b32 s{sT0}, s{sR2}, 1
    s_lshl_b32 s{sT0}, s{sT0}, 7
    s_lshl_b32 s{sT1}, s{sW}, 5
    s_add_u32 s{sT0}, s{sT0}, s{sT1}
    s_add_u32 s{sT0}, s{sT0}, {FLB+16*128}
    v_and_b32 v{T0}, 3, v{LANE}
    v_lshl_add_u32 v{VF}, v{T0}, 3, s{sT0}
    s_branch {lyd}
    """)
    a.label(ly)
    a(f"""
    s_lshl_b32 s{sT0}, s{sR2}, 6
    s_add_u32 s{sT1}, s{sT0}, 63
    s_mul_i32 s{sT0}, s{sT0}, 27595
    s_lshr_b32 s{sT0}, s{sT0}, 22
    s_mul_i32 s{sT1}, s{sT1}, 27595
    s_lshr_b32 s{sT1}, s{sT1}, 22
    s_sub_u32 s{sT1}, s{sT1}, s{sT0}
    s_lshl_b32 s{sT1}, s{sT1}, 7
    s_lshl_b32 s{sT0}, s{sT0}, 7
    s_sub_u32 s{sT2}, s{sW}, 2
    s_mul_i32 s{sT2}, s{sT2}, 3
    s_lshr_b32 s{sT2}, s{sT2}, 1
    s_lshl_b32 s{sT2}, s{sT2}, 3
    s_add_u32 s{sT0}, s{sT0}, s{sT2}
    s_add_u32 s{sT0}, s{sT0}, {FLB}
    v_and_b32 v{T0}, 1, v{LANE}
    v_lshlrev_b32 v{T0}, 3, v{T0}
    v_bfe_u32 v{T1}, v{LANE}, 1, 1
    v_mul_u32_u24 v{T1}, s{sT1}, v{T1}
    v_add3_u32 v{VF}, v{T0}, v{T1}, s{sT0}
    """)
    a.label(lyd)
    a(f"""
    s_lshl_b32 s{sT0}, s{sR2}, 6
    v_add_u32 v{T0}, s{sT0}, v{R}
    v_mul_u32_u24 v{T0}, 1280, v{T0}
    v_lshl_add_u32 v{T0}, v{G}, 3, v{T0}
    s_mul_i32 s{sT0}, s{sC2}, 160
    v_add_u32 v{VXO}, s{sT0}, v{T0}
    """)
for u in range(740): assert (u*21846)>>16 == u//3
for x in range(2048): assert (x*27595)>>22 == x//152

class Inter:
    def __init__(s, a, groups, every): s.a, s.g, s.e, s.n = a, list(groups), every, 0
    def __call__(s, txt):
        for l in lines(txt):
            s.a(l); s.n += 1
            if s.n % s.e == 0 and s.g:
                for x in s.g.pop(0): s.a(x)
    def flush(s, keep=0):
        while len(s.g) > keep:
            for x in s.g.pop(0): s.a(x)

def gen(stamps=False, PF=4, pff="", SLEEP=0, LP=None, rt=4, qevery=16, fn1=30, map2=81, rota=2, fevery=25, OSF='', exp="tup nofld", NB=0, dmask=0b10101, tfl="nt", nearly=10, TLB=0):
    global EXP, PFF, DN, DMASK, DPRE, TFL, MAP2, ROTA
    MAP2 = map2; ROTA = rota
    global RT
    RT = rt
    EXP = set(exp.split()); PFF = pff; TFL = tfl; DMASK = dmask
    a = Asm(); S = St(a, stamps)
    name = NAME + "_kernel"
    def emit(groups):
        for g in groups:
            for l in g: a(l)
    if stamps: a("s_memrealtime s[96:97]\ns_memtime s[94:95]")
    a(f"s_cmp_ge_u32 s2, 256\ns_cbranch_scc1 Lend")
    if 'badmap' in EXP: a("s_and_b32 s3, s2, 31\ns_lshl_b32 s3, s3, 3\ns_lshr_b32 s2, s2, 5\ns_or_b32 s2, s2, s3")
    a(f"s_load_dwordx16 s[40:55], s[0:1], 0\ns_load_dwordx4 s[56:59], s[0:1], 64\ns_load_dwordx2 s[60:61], s[0:1], 80")
    a(f"""
    v_lshrrev_b32 v{T0}, 6, v0
    v_and_b32 v{LANE}, 63, v0
    v_readfirstlane_b32 s{sW}, v{T0}
    v_lshrrev_b32 v{G}, 4, v{LANE}
    v_and_b32 v{R}, 15, v{LANE}
    v_lshlrev_b32 v{VL}, 4, v{LANE}
    s_lshl_b32 s{sW1K}, s{sW}, 11
    s_mov_b32 s{sI}, 0
    """)
    def pf_addr(nrow_cu, kper, nst, cidx_s, VD):
        pass
    lx, lq, ld, lw = a.uid("Lpf"), a.uid("Lpf"), a.uid("Lpf"), a.uid("Lpf")
    a(f"""
    s_bfe_u32 s{sT2}, s2, 0x40003
    s_lshr_b32 s{sT3}, s2, 7
    s_and_b32 s{sT0}, s2, 1
    s_bfe_u32 s{sT1}, s2, 0x20001
    s_mov_b32 s{sPG}, 0
    v_mov_b32 v254, 0
    s_cmp_ge_u32 s{sW}, 3
    s_cbranch_scc1 {lw}
    s_cmp_ge_u32 s{sW}, 1
    s_cbranch_scc1 {lq}
    s_lshl_b32 s{sT0}, s{sT0}, 10
    s_lshl_b32 s{sT1}, s{sT1}, 8
    s_lshl_b32 s{sT2}, s{sT2}, 4
    s_add_u32 s{sT0}, s{sT0}, s{sT1}
    s_add_u32 s{sT0}, s{sT0}, s{sT2}
    v_add_u32 v{T0}, s{sT0}, v{R}
    v_mul_u32_u24 v{T0}, 1280, v{T0}
    v_and_b32 v{T1}, 1, v{G}
    v_lshl_add_u32 v254, v{T1}, 7, v{T0}
    s_lshl_b32 s{sT0}, s{sT3}, 8
    s_mov_b32 s{sPFS}, 256
    s_mov_b32 s{sPG}, 1280
    s_waitcnt lgkmcnt(0)
    s_mov_b32 s{sPFO}, 512
    """)
    srd(a, STMP, P_X, XB)
    a(f"buffer_load_dword v255, v254, {sr(STMP,4)}, s{sT0} offen {pff}")
    a(f"s_branch {ld}")
    a.label(lq)
    a(f"""
    s_cmp_eq_u32 s{sW}, 2
    s_cbranch_scc1 {lx}
    v_min_u32 v{T0}, 35, v{LANE}
    v_mul_u32_u24 v{T1}, 57, v{T0}
    v_lshrrev_b32 v{T1}, 9, v{T1}
    v_mul_u32_u24 v{T3}, 9, v{T1}
    v_sub_u32 v{T0}, v{T0}, v{T3}
    s_lshl_b32 s{sT2}, s{sT2}, 2
    v_add_u32 v{T1}, s{sT2}, v{T1}
    v_mul_u32_u24 v{T1}, 3840, v{T1}
    v_mul_u32_u24 v{T3}, 43, v{T0}
    v_lshrrev_b32 v{T3}, 7, v{T3}
    v_mul_u32_u24 v{T3}, 896, v{T3}
    v_lshl_add_u32 v{T0}, v{T0}, 7, v{T3}
    s_mul_i32 s{sT1}, s{sT1}, 320
    s_and_b32 s{sT1}, s{sT1}, 0xffffff80
    v_add3_u32 v254, v{T0}, v{T1}, s{sT1}
    s_mul_i32 s{sT0}, s{sT3}, {128*3840}
    s_add_u32 s{sT1}, s{sT0}, {64*3840}
    s_mov_b32 s{sPFS}, {64*3840}
    s_mov_b32 s{sPG}, {640*3840}
    s_waitcnt lgkmcnt(0)
    s_mov_b32 s{sPFO}, {256*3840}
    """)
    srd(a, STMP, P_WQ, 640*3840)
    a(f"buffer_load_dword v255, v254, {sr(STMP,4)}, s{sT0} offen {pff}")
    a(f"buffer_load_dword v255, v254, {sr(STMP,4)}, s{sT1} offen {pff}")
    a(f"s_branch {ld}")
    a.label(lx)
    a(f"""
    s_and_b32 s{sT0}, s2, 127
    s_mul_i32 s{sT0}, s{sT0}, 3456
    v_min_u32 v{T0}, 26, v{LANE}
    v_lshl_add_u32 v254, v{T0}, 7, s{sT0}
    s_mul_i32 s{sT0}, s{sT3}, {128*3456}
    s_mov_b32 s{sPFS}, {128*3456}
    s_mov_b32 s{sPG}, {640*3456}
    s_waitcnt lgkmcnt(0)
    s_mov_b32 s{sPFO}, {256*3456}
    """)
    srd(a, STMP, P_W1, 640*3456)
    a(f"buffer_load_dword v255, v254, {sr(STMP,4)}, s{sT0} offen {pff}")
    a(f"s_branch {ld}")
    a.label(lw)
    if 'cpf' in EXP:
        lc_ = a.uid("Lcp")
        a(f"""
        s_cmp_lg_u32 s{sW}, 7
        s_cbranch_scc1 {lc_}
        s_getpc_b64 {sr(sNON,2)}
        s_and_b32 s{sNON}, s{sNON}, 0xffffff00
        s_lshr_b32 s{sT0}, s2, 3
        s_mul_i32 s{sT0}, s{sT0}, 10
        v_min_u32 v{T0}, 9, v{LANE}
        v_add_u32 v{T0}, s{sT0}, v{T0}
        v_lshlrev_b32 v{T0}, 7, v{T0}
        v_min_u32 v{T0}, Lend-{lc_}, v{T0}
        global_load_dword v255, v{T0}, {sr(sNON,2)}
        """)
        a.label(lc_)
    ln = a.uid("Ln")
    a(f"s_cmp_lg_u32 s2, 0\ns_cbranch_scc1 {ln}\ns_cmp_lg_u32 s{sW}, 7\ns_cbranch_scc1 {ln}\ns_waitcnt lgkmcnt(0)")
    srd(a, SDBG, P_DBG, 256)
    a(f"""
    s_memrealtime {sr(sNON,2)}
    s_waitcnt lgkmcnt(0)
    s_or_b32 s{sNON}, s{sNON}, 1
    v_mov_b32 v{T0}, s{sNON}
    v_mov_b32 v{T1}, s{sNON+1}
    v_mov_b32 v{T2}, 0
    s_mov_b64 exec, 1
    buffer_store_dwordx2 {vr(T0,2)}, v{T2}, {sr(SDBG,4)}, 0 offen sc1
    s_mov_b64 exec, -1
    """)
    a.label(ln)
    a("s_waitcnt lgkmcnt(0)")
    srd(a, STMP, P_X, XB)
    a(f"s_mov_b32 s{sPFS}, 0\ns_mov_b32 s{sPFO}, 0")
    if 'tup' in EXP: side_loads(a, stat=False)
    a.label(ld)
    S.start()
    srd(a, SX, P_X, XB)
    a(f"""
    s_and_b32 s{sT0}, s2, 1
    s_bfe_u32 s{sT1}, s2, 0x20001
    s_lshr_b32 s{sT2}, s2, 3
    s_cmp_ge_u32 s{sT2}, 16
    s_cbranch_scc1 Lffn
    """)
    def late_srds():
        srd(a, SHO, P_WS, 0 if 'nost' in EXP else HO_SZ); srd(a, SFL, P_WS, FL_SZ, WT_OFF); srd(a, SDBG, P_DBG, 256)
    def set_stage(c, st): emit([stage_set(c, st)])
    def pretouch(flagoff_s):
        lp = a.uid("Lpt")
        a(f"s_cmp_lg_u32 s{sW}, 7\ns_cbranch_scc1 {lp}")
        stat_row(a)
        a(f"""
        s_lshl_b32 s{sT0}, s{sT0}, 4
        s_add_u32 s{sT0}, s{sT0}, {STO}
        v_mov_b32 v{T0}, s{sT0}
        s_lshl_b32 s{sT0}, s2, 3
        s_add_u32 s{sT0}, s{sT0}, {TFO}
        v_writelane_b32 v{T0}, s{sT0}, 1
        """)
        if flagoff_s is not None:
            a(f"s_add_u32 s{sT0}, s{flagoff_s}, {FLB}\nv_writelane_b32 v{T0}, s{sT0}, 2")
        a(f"buffer_load_dword v255, v{T0}, {sr(SFL,4)}, 0 offen sc1")
        if TLB:
            a(f"v_lshlrev_b32 v{T0}, {TLB}, v{LANE}")
            a(f"buffer_load_dword v255, v{T0}, {sr(SHO,4)}, 0 offen sc1")
            a(f"buffer_load_dword v255, v{T0}, {sr(SFL,4)}, 0 offen sc1")
            srd(a, SPF, P_OUT, XB)
            a(f"buffer_load_dword v255, v{T0}, {sr(SPF,4)}, 0 offen sc1")
            srd(a, SPF, P_B2, 1280)
            a(f"buffer_load_dword v255, v{T0}, {sr(SPF,4)}, 0 offen")
        a.label(lp)
    def pre_loop(c, setup):
        if 'd0e' in EXP:
            a(f"s_cmp_lt_u32 s{sW}, {c.nxm}\ns_cselect_b64 vcc, -1, 0")
            set_stage(c, 0); emit(dmaA(c, a) + dmaB(c, a))
        late_srds()
        if 'nopt' not in EXP: pretouch(sHF)
        setup()
        if 'tup' not in EXP: side_loads(a, stat=False, issue=False)
        p2_setup(a, c.VTF)
        S(1)
        a(f"s_cmp_lt_u32 s{sW}, {c.nxm}\ns_cselect_b64 vcc, -1, 0")
        if 'd0e' not in EXP:
            a("s_barrier")
            set_stage(c, 0); emit(dmaA(c, a) + dmaB(c, a))
        if 'tw2' not in EXP:
            a(f's_waitcnt vmcnt({c.nW+2})'); t_work(a)
        a(f"v_mov_b32 v{T0}, 0")
        a(f"buffer_load_dwordx2 {vr(c.VN,2)}, v{T0}, {sr(SDBG,4)}, 0 offen sc1")
        if 'nb2' not in EXP: a("s_barrier")
        set_stage(c, 1); emit(dmaA(c, a))
        a(f"s_waitcnt vmcnt({c.nW})")
        S(2)
        a("s_barrier")
        S(3)
        emit(reads(c, 0, 0))
        if 'tup' not in EXP: t_issue(a)
        a(f"s_mov_b32 s{sSLOT}, {c.stg}")
    def alloc_common(c):
        al = Alloc(11)
        c.VX = [al(), al(), 124]; c.VW = [120, 121, 122, 123]
        c.xb = [al(), al()]; c.hb = [al(), al()]; c.wb = [al() for _ in range(c.nF)]
        c.VTF = al(); c.VRA = al(); c.VPS = al(2, 4); c.VN = al(2, 2); c.REC = al(20, 4)
        assert c.VPS == 24
        return al
    def dma_setup(c, P, magic, colfn):
        a(f"""
        s_lshl_b32 s{sT0}, s{sW}, 4
        s_add_u32 s{sT0}, s{sT0}, s{sT3}
        s_max_i32 s{sT0}, s{sT0}, 0
        s_mul_i32 s{sXA}, s{sT0}, 1280
        s_sub_u32 s{sXA}, s{sXA}, 128
        s_lshl_b32 s{sT0}, s{sW}, 3
        s_add_u32 s{sT0}, s{sT0}, s{sT3}
        s_mul_i32 s{sXB}, s{sT0}, 1280
        s_add_u32 s{sXB}, s{sXB}, {128*1280-128}
        s_lshl_b32 s{sEM}, s{sW}, 10
        s_add_u32 s{sEM}, s{sEM}, 16384
        v_lshrrev_b32 v{T0}, 3, v{LANE}
        v_mul_u32_u24 v{T0}, 1280, v{T0}
        v_xor_b32 v{T1}, v{G}, v{LANE}
        v_and_b32 v{T1}, 7, v{T1}
        v_lshl_add_u32 v{c.VX[0]}, v{T1}, 4, v{T0}
        v_xor_b32 v{T2}, 64, v{c.VX[0]}
        v_add_u32 v{c.VX[1]}, {8*1280-1024}, v{T2}
        s_and_b32 s{sT0}, s{sW}, 1
        s_lshl_b32 s{sT1}, s{sT0}, 6
        v_xor_b32 v{c.VX[2]}, s{sT1}, v{c.VX[0]}
        s_lshl_b32 s{sT0}, s{sT0}, 2
        s_lshr_b32 s{sT1}, s{sW}, 1
        s_lshl_b32 s{sT1}, s{sT1}, 4
        s_add_u32 s{sT0}, s{sT0}, s{sT1}
        s_mul_i32 s{sKW}, s{sT0}, {c.wrowb}
        s_add_u32 s{sKW}, s{sKW}, s{sWO}
        s_sub_u32 s{sKW}, s{sKW}, {64*c.wrowb}
        s_mov_b32 s{sWM}, -1
        s_mov_b32 s{sWM+1}, 0xffff
        s_mul_i32 s{sWB}, s{sW}, {8*c.wrow}
        s_add_u32 s{sWB}, s{sWB}, {c.xsz}
        """)
        for u in range(c.nW):
            a(f"""
            v_add_u32 v{T0}, {64*u}, v{LANE}
            v_mul_u32_u24 v{T1}, {magic}, v{T0}
            v_lshrrev_b32 v{T1}, 16, v{T1}
            v_mul_u32_u24 v{T2}, {P}, v{T1}
            v_sub_u32 v{T0}, v{T0}, v{T2}
            """)
            colfn()
            a(f"""
            v_and_b32 v{T2}, 4, v{T1}
            v_add_u32 v{T1}, v{T1}, v{T2}
            v_mul_u32_u24 v{T1}, {c.wrowb}, v{T1}
            v_add_u32 v{T0}, v{T0}, v{T1}
            v_subrev_u32 v{c.VW[u]}, {1024*u}, v{T0}
            """)
    def half(groups, young):
        if not groups: return
        lh = a.uid("Lh")
        a(f"s_cmp_ge_u32 s{sW}, 4\ns_cbranch_scc{0 if young else 1} {lh}")
        emit(groups)
        a.label(lh)
    FLD = f"buffer_load_dwordx2 {vr(VFD,2)}, v{VF}, {sr(SFL,4)}, 0 offen sc1"
    def publish(younger, old_extra=0):
        lp, lw1 = a.uid("Lp"), a.uid("Lp")
        if old_extra:
            a(f"s_waitcnt vmcnt({younger+old_extra})\ns_cmp_lt_u32 s{sW}, 4\ns_cbranch_scc1 {lw1}")
        a(f"s_waitcnt vmcnt({younger})")
        a.label(lw1)
        a(f"""
        s_barrier
        s_cmp_lg_u32 s{sW}, 0
        s_cbranch_scc1 {lp}
        v_mov_b32 v{T0}, s{sNON}
        v_mov_b32 v{T1}, s{sNON+1}
        v_mov_b32 v{T2}, {FLB}
        s_mov_b64 exec, 1
        buffer_store_dwordx2 {vr(T0,2)}, v{T2}, {sr(SFL,4)}, s{sHF} offen sc1
        s_mov_b64 exec, -1
        """)
        a.label(lp)
        S(7)
    c = Cfg()
    c.nM, c.nF, c.nh, c.wrow, c.wrowb, c.stg, c.xsz, c.nxm, c.duty = 4, 4, 2, 480, 3840, 49152, 18432, 2, False
    al = alloc_common(c)
    c.acc = [[al(4,4) for i in range(4)] for f in range(4)]
    c.acch = [al(4,4) for f in range(2)]
    lowtop = al.n
    al = Alloc(WREG)
    c.X = [[al(4,4) for i in range(4)] for s in range(2)]
    c.XH = [al(4,4) for s in range(2)]
    c.W = [[al(4,4) for f in range(4)] for s in range(2)]
    assert al.n == 208
    c.early = (list(range(15, 25)) + LA_ + [13, 14])[:nearly]
    a(f"""
    s_lshl_b32 s{sRB}, s{sT0}, 3
    s_and_b32 s{sT3}, s{sT2}, 7
    s_add_u32 s{sRB}, s{sRB}, s{sT3}
    s_lshl_b32 s{sCB}, s{sT1}, 1
    s_lshr_b32 s{sT3}, s{sT2}, 3
    s_add_u32 s{sCB}, s{sCB}, s{sT3}
    s_lshl_b32 s{sT3}, s{sRB}, 7
    s_sub_u32 s{sT3}, s{sT3}, 16
    s_mul_i32 s{sWO}, s{sCB}, 160
    """)
    c.nW = 4
    dma_setup(c, 30, 2185, lambda: a(f"v_mul_u32_u24 v{T2}, 26, v{T0}\nv_lshrrev_b32 v{T2}, 8, v{T2}\nv_mul_u32_u24 v{T2}, 1120, v{T2}\nv_lshl_add_u32 v{T0}, v{T0}, 4, v{T2}"))
    srd(a, SW, P_WQ, 640*3840)
    a(f"s_add_u32 s{sT0}, s{sRB}, 16\ns_lshl_b32 s{sT0}, s{sT0}, 7\ns_lshl_b32 s{sT1}, s{sCB}, 3\ns_add_u32 s{sHF}, s{sT0}, s{sT1}")
    def q_setup():
        a(f"s_lshr_b32 s{sMH}, s{sW}, 2\ns_and_b32 s{sT0}, s{sW}, 3\ns_lshl_b32 s{sT0}, s{sT0}, 2\ns_lshl_b32 s{sT1}, s{sMH}, 1")
        for f in range(4):
            a(f"s_xor_b32 s{sT2}, s{sT1}, {f}\ns_add_u32 s{sT2}, s{sT2}, s{sT0}\ns_min_u32 s{sNT+f}, s{sT2}, 14")
        a(f"""
        s_mov_b32 s{sMSK}, 0xfffefffe
        s_mov_b32 s{sMSK+1}, 0xfffefffe
        v_lshrrev_b32 v{T0}, 1, v{R}
        v_xor_b32 v{T0}, v{T0}, v{G}
        v_lshlrev_b32 v{T0}, 4, v{T0}
        v_lshl_add_u32 v{T0}, v{R}, 7, v{T0}
        v_add_u32 v{c.hb[0]}, {c.stg}, v{T0}
        v_xor_b32 v{c.hb[1]}, 64, v{c.hb[0]}
        s_lshl_b32 s{sT0}, s{sMH}, 13
        s_add_u32 s{sT0}, s{sT0}, 2048
        v_add_u32 v{c.xb[0]}, s{sT0}, v{c.hb[0]}
        v_add_u32 v{c.xb[1]}, s{sT0}, v{c.hb[1]}
        """)
        rho_local(a, T0, T1)
        a(f"v_mul_u32_u24 v{T0}, 480, v{T0}\nv_and_b32 v{T1}, 3, v{LANE}\nv_lshl_add_u32 v{T0}, v{T1}, 3, v{T0}")
        for f in range(4):
            a(f"s_lshl_b32 s{sT0}, s{sNT+f}, 5\ns_add_u32 s{sT0}, s{sT0}, {c.xsz+c.stg}\nv_add_u32 v{c.wb[f]}, s{sT0}, v{T0}")
        a(f"v_lshlrev_b32 v{c.VRA}, 4, v{R}")
        a(f"""
        s_lshl_b32 s{sT0}, s{sRB}, 7
        s_lshl_b32 s{sT1}, s{sMH}, 6
        s_add_u32 s{sT1}, s{sT1}, s{sT0}
        s_lshl_b32 s{sT1}, s{sT1}, 4
        s_add_u32 s{sRM}, s{sT1}, {STO}
        s_sub_u32 s{sT0}, s{sT0}, 16
        s_max_i32 s{sT0}, s{sT0}, 0
        s_lshl_b32 s{sT0}, s{sT0}, 4
        s_add_u32 s{sRH}, s{sT0}, {STO}
        """)
        for s in range(2):
            for r in range(4): a(f"v_mov_b32 v{c.XH[s]+r}, 0x3f803f80")
    pre_loop(c, q_setup)
    rec = [[f"buffer_load_dwordx4 {vr(c.REC+4*i,4)}, v{c.VRA}, {sr(SFL,4)}, s{sRM} offen offset:{256*i} sc1"] for i in range(4)]
    rec.append([f"buffer_load_dwordx4 {vr(c.REC+16,4)}, v{c.VRA}, {sr(SFL,4)}, s{sRH} offen sc1"])
    CSR = lowtop; CA = 11; WA = 15
    assert CSR + 16 <= WREG and WA + 6 <= c.VTF
    c.tailx = [lines(f"""
        s_lshl_b32 s{sT3}, s{sMH}, 6
        s_add_u32 s{sT3}, s{sT3}, 16
        s_mul_i32 s{sT3}, s{sT3}, {RS}
        v_mul_u32_u24 v{T2}, {RS}, v{R}
        v_lshlrev_b32 v{T3}, 4, v{G}""")]
    for f in range(4):
        c.tailx.append(lines(f"""
        s_lshl_b32 s{sT0}, s{sNT+f}, 6
        s_add_u32 s{sT0}, s{sT0}, {L_CS}
        v_add_u32 v{CA+f}, s{sT0}, v{T3}
        s_mul_i32 s{sT0}, s{sNT+f}, 52
        s_lshr_b32 s{sT0}, s{sT0}, 8
        s_mul_i32 s{sT2}, s{sT0}, 5
        s_sub_u32 s{sT2}, s{sNT+f}, s{sT2}
        s_lshl_b32 s{sT2}, s{sT2}, 2
        s_mul_i32 s{sT0}, s{sT0}, 192
        v_add_u32 v{T0}, s{sT2}, v{G}"""))
        c.tailx.append(lines(f"""
        v_mul_u32_u24 v{T1}, 52, v{T0}
        v_lshrrev_b32 v{T1}, 8, v{T1}
        v_add_u32 v{T0}, v{T0}, v{T1}"""))
        c.tailx.append(lines(f"v_lshl_add_u32 v{T0}, v{T0}, 3, v{T2}") + ([f"v_add_u32 v{WA+4+f}, s{sT0}, v{T0}"] if f < 2 else []) +
                       lines(f"s_add_u32 s{sT0}, s{sT0}, s{sT3}\nv_add_u32 v{WA+f}, s{sT0}, v{T0}"))
    main_loop(a, c, S, "q", rec)
    a(f"s_not_b64 exec, {sr(sMSK,2)}")
    for f in range(2): a(f"ds_write_b128 v{CA+f}, {vr(c.acch[f],4)}")
    a("s_mov_b64 exec, -1")
    a(f"s_waitcnt vmcnt({c.yrec})")
    poll(a, sum(rec, []), [c.REC+4*i+2 for i in range(5)], True)
    S(55)
    a("s_waitcnt lgkmcnt(0)\ns_barrier")
    S(56)
    for f in range(4): a(f"ds_read_b128 {vr(CSR+4*f,4)}, v{CA+f}")
    rest = [p for p in LA_ + list(range(25)) if p not in c.early]
    rg = [wfrag(p) for p in rest]
    I = Inter(a, [], 1000)
    TP = c.VPS
    for f in range(4):
        I(f"s_waitcnt lgkmcnt({3-f if f == 0 else 15})" if f == 0 else "s_nop 0")
        if f == 1: I("s_waitcnt lgkmcnt(5)")
        tl = [(c.acc[f][i], WA+f, i*16*RS, c.REC+4*i) for i in range(4)]
        if f < 2: tl.append((c.acch[f], WA+4+f, 0, c.REC+16))
        for (ac, ad, off, st) in tl:
            I(f"""
            v_pk_mul_f32 {vr(TP,2)}, {vr(CSR+4*f,2)}, {vr(st,2)} op_sel:[0,1] op_sel_hi:[1,1]
            v_pk_mul_f32 {vr(TP+2,2)}, {vr(CSR+4*f+2,2)}, {vr(st,2)} op_sel:[0,1] op_sel_hi:[1,1]
            v_pk_fma_f32 {vr(ac,2)}, {vr(ac,2)}, {vr(st,2)}, {vr(TP,2)} op_sel:[0,0,0] op_sel_hi:[1,0,1]
            v_pk_fma_f32 {vr(ac+2,2)}, {vr(ac+2,2)}, {vr(st,2)}, {vr(TP+2,2)} op_sel:[0,0,0] op_sel_hi:[1,0,1]
            v_cvt_pk_bf16_f32 v{ac}, v{ac}, v{ac+1}
            v_cvt_pk_bf16_f32 v{ac+1}, v{ac+2}, v{ac+3}
            ds_write_b64 v{ad}, {vr(ac,2)} offset:{off}
            """)
    S(57)
    al = Alloc(11)
    AB = al(); OV = al(); OV1 = al(); L31 = al()
    MX = al(); SM_ = al()
    Q = al(12, 2); KB = [al(10, 2) for _ in range(5)]
    L = al(8, 2); PL = al(8); PH = al(8); O = al(20, 2); TPa = al(4)
    assert al.n <= WREG, al.n
    I(f"""
    s_and_b32 s{sT0}, s{sW}, 1
    s_lshr_b32 s{sT3}, s{sW}, 1
    s_lshl_b32 s{sT2}, s{sT3}, 5
    s_add_u32 s{sT2}, s{sT2}, 2
    v_and_b32 v{L31}, 31, v{LANE}
    v_add_u32 v{T0}, s{sT2}, v{L31}
    v_mul_u32_u24 v{T0}, {RS}, v{T0}
    v_lshrrev_b32 v{T1}, 5, v{LANE}
    v_mul_u32_u24 v{T2}, 48, v{T1}
    s_mul_i32 s{sT2}, s{sT0}, 96
    v_add3_u32 v{AB}, v{T0}, v{T2}, s{sT2}
    s_lshl_b32 s{sT2}, s{sCB}, 1
    s_add_u32 s{sT2}, s{sT2}, s{sT0}
    s_mul_i32 s{sT2}, s{sT2}, 5
    v_lshl_add_u32 v{T1}, v{T1}, 1, s{sT2}
    v_bfe_u32 v{T0}, v{LANE}, 4, 1
    v_lshlrev_b32 v{T0}, 10, v{T0}
    v_lshl_add_u32 v{T0}, v{R}, 4, v{T0}
    v_lshrrev_b32 v{T2}, 2, v{T1}
    v_lshl_add_u32 v{T2}, v{T2}, 12, v{T0}
    v_and_b32 v{T3}, 3, v{T1}
    v_lshl_add_u32 v{OV}, v{T3}, 8, v{T2}
    v_add_u32 v{T1}, 1, v{T1}
    v_lshrrev_b32 v{T2}, 2, v{T1}
    v_lshl_add_u32 v{T2}, v{T2}, 12, v{T0}
    v_and_b32 v{T3}, 3, v{T1}
    v_lshl_add_u32 v{OV1}, v{T3}, 8, v{T2}
    s_lshl_b32 s{sKX}, s{sRB}, 1
    s_add_u32 s{sKX}, s{sKX}, s{sMH}
    s_mul_i32 s{sKX}, s{sKX}, {74*4096}
    s_and_b32 s{sT1}, s{sT3}, 1
    s_lshl_b32 s{sT1}, s{sT1}, 11
    s_add_u32 s{sKX}, s{sKX}, s{sT1}
    s_add_u32 s{sT2}, s{sT2}, 4
    s_lshr_b32 s{sKW}, s{sT2}, 2
    s_lshl_b32 s{sKW}, s{sKW}, 12
    s_and_b32 s{sT2}, s{sT2}, 3
    s_lshl_b32 s{sT2}, s{sT2}, 8
    s_add_u32 s{sKW}, s{sKW}, s{sT2}
    s_add_u32 s{sKW}, s{sKW}, s{sKX}
    """)
    a("s_waitcnt lgkmcnt(0)\ns_barrier")
    OV2 = T0
    S(5)
    def rd(dst, off):
        return f"ds_read_b128 {vr(dst,4)}, v{AB} offset:{off}\nds_read_b128 {vr(dst+4,4)}, v{AB} offset:{off+16}\nds_read_b64 {vr(dst+8,2)}, v{AB} offset:{off+32}"
    offs = [(14-2*w)*RS+192 for w in range(8)] + [(14-2*w)*RS+384 for w in range(8)]
    issued = 0
    def issue(n):
        nonlocal issued
        for _ in range(n):
            if issued < 16:
                I(rd(KB[issued % 5], offs[issued])); issued += 1
    def need(idx): I(f"s_waitcnt lgkmcnt({3*(issued-1-idx)})")
    I(rd(Q, 14*RS)); issue(4)
    I.g = list(rg); I.e = qevery
    for w in range(8): I(f"v_mov_b32 v{L+w}, 0")
    for d in range(20): I(f"v_mov_b32 v{O+d}, 0")
    for wp in range(4):
        w0, w1 = 2*wp, 2*wp+1
        need(w1)
        for d in range(10):
            for w in (w0, w1): I(f"v_dot2c_f32_bf16 v{L+w}, v{Q+d}, v{KB[w%5]+d}")
        issue(3 if wp == 0 else 2)
    lm = a.uid("Lm")
    a(f"s_or_b32 s{sT2}, s{sRB}, s{sT3}\ns_cmp_lg_u32 s{sT2}, 0\ns_cbranch_scc1 {lm}")
    a(f"v_mov_b32 v{TPa}, {f32(-1e9)}")
    for w in range(1, 8):
        a(f"v_cmp_le_u32 vcc, {2*w}, v{L31}\ns_nop 1\nv_cndmask_b32 v{L+w}, v{TPa}, v{L+w}, vcc")
    a.label(lm)
    cexp = (20 ** -0.5) * math.log2(math.e)
    I(f"""
    v_max3_f32 v{MX}, v{L}, v{L+1}, v{L+2}
    v_max3_f32 v{SM_}, v{L+3}, v{L+4}, v{L+5}
    v_max3_f32 v{MX}, v{MX}, v{L+6}, v{L+7}
    v_max_f32 v{MX}, v{MX}, v{SM_}
    """)
    for w in range(8): I(f"v_sub_f32 v{L+w}, v{L+w}, v{MX}")
    for w in range(8): I(f"v_mul_f32 v{L+w}, {f32(cexp)}, v{L+w}")
    for w in range(8): I(f"v_exp_f32 v{L+w}, v{L+w}")
    I(f"""
    v_add_f32 v{TPa}, v{L}, v{L+1}
    v_add_f32 v{TPa+1}, v{L+2}, v{L+3}
    v_add_f32 v{TPa+2}, v{L+4}, v{L+5}
    v_add_f32 v{TPa+3}, v{L+6}, v{L+7}
    v_add_f32 v{TPa}, v{TPa}, v{TPa+1}
    v_add_f32 v{TPa+2}, v{TPa+2}, v{TPa+3}
    v_add_f32 v{SM_}, v{TPa}, v{TPa+2}
    v_rcp_f32 v{SM_}, v{SM_}
    s_nop 0
    """)
    for w in range(8): I(f"v_mul_f32 v{L+w}, v{L+w}, v{SM_}")
    for w in range(8): I(f"v_cvt_pk_bf16_f32 v{PL+w}, v{L+w}, 0\nv_cvt_pk_bf16_f32 v{PH+w}, 0, v{L+w}")
    for w in range(8):
        need(8+w)
        for d in range(10):
            I(f"v_dot2c_f32_bf16 v{O+2*d}, v{KB[(8+w)%5]+d}, v{PL+w}\nv_dot2c_f32_bf16 v{O+2*d+1}, v{KB[(8+w)%5]+d}, v{PH+w}")
        issue(1)
    S(58)
    for u in (0,1,2,3,8,9,4,5,6,7): a(f"v_cvt_pk_bf16_f32 v{Q+u}, v{O+2*u}, v{O+2*u+1}")
    a(f"""
    buffer_store_dwordx4 {vr(Q,4)}, v{OV}, {sr(SHO,4)}, s{sKX} offen sc1
    v_permlane32_swap_b32 v{Q+8}, v{Q+10}
    v_permlane32_swap_b32 v{Q+9}, v{Q+11}
    buffer_store_dwordx4 {vr(Q+4,4)}, v{OV1}, {sr(SHO,4)}, s{sKX} offen sc1
    s_mov_b32 exec_hi, 0
    buffer_store_dwordx4 {vr(Q+8,4)}, v{OV2}, {sr(SHO,4)}, s{sKW} offen sc1
    s_mov_b64 exec, -1
    """)
    S(6)
    if NB: a("s_barrier")
    qleft = I.g + [wfrag(p) for p in LB]
    sp = 'spoll' in EXP or 'nofld' in EXP
    if not sp: a(FLD)
    emit(qleft[:NB])
    publish(NB+(not sp))
    def tail_loads(gr):
        if LP is None: emit(gr); return
        k = max(len(gr)-LP, 0)
        emit(gr[:k]); a(FLD); emit(gr[k:]); a(f"s_waitcnt vmcnt({len(gr)-k})")
    tail_loads(qleft[NB:])
    if not sp: a(f"s_waitcnt vmcnt({len(qleft)})")
    a("s_branch Lphase2")
    a.label("Lffn")
    c = Cfg()
    c.nM, c.nF, c.nh, c.wrow, c.wrowb, c.stg, c.xsz, c.nxm, c.duty = 5, 3, 0, 384, 3456, 49152, 20480, 4, True
    al = alloc_common(c)
    B1 = al(8, 2)
    c.acc = [[al(4,4) for i in range(5)] for f in range(3)]
    lowtop = al.n
    eal = al
    al = Alloc(WREG)
    c.X = [[al(4,4) for i in range(5)] for s in range(2)]
    c.W = [[al(4,4) for f in range(3)] for s in range(2)]
    assert al.n <= 208
    c.early = (list(range(15, 25)) + LA_ + [13, 14])[:nearly]
    a(f"""
    s_sub_u32 s{sT2}, s{sT2}, 16
    s_lshl_b32 s{sT1}, s{sT1}, 4
    s_add_u32 s{sT1}, s{sT1}, s{sT2}
    s_cmp_ge_u32 s{sT1}, 63
    s_cbranch_scc1 Lidle
    s_mul_i32 s{sCB}, s{sT1}, 37
    s_lshr_b32 s{sCB}, s{sCB}, 8
    s_sub_u32 s{sT3}, s{sCB}, s{sT0}
    s_mul_i32 s{sT3}, s{sT3}, 7
    s_sub_u32 s{sRB}, s{sT1}, s{sT3}
    s_mul_i32 s{sT3}, s{sRB}, {FROWS}
    s_mul_i32 s{sWO}, s{sCB}, 384
    """)
    c.nW = 3
    dma_setup(c, 24, 2731, lambda: a(f"v_and_b32 v{T2}, 6, v{T1}\nv_xor_b32 v{T0}, v{T0}, v{T2}\nv_lshlrev_b32 v{T0}, 4, v{T0}"))
    srd(a, SW, P_W1, 640*3456)
    srd(a, SWT, P_B1, 3456)
    a(f"s_lshl_b32 s{sT0}, s{sRB}, 7\ns_lshl_b32 s{sT1}, s{sCB}, 3\ns_add_u32 s{sHF}, s{sT0}, s{sT1}")
    RHO = c.hb[0]
    def f_setup():
        a(f"""
        s_lshr_b32 s{sMH}, s{sW}, 2
        s_bfe_u32 s{sT0}, s{sW}, 0x10001
        s_and_b32 s{sT1}, s{sW}, 1
        s_mul_i32 s{sT0}, s{sT0}, 6
        s_lshl_b32 s{sT2}, s{sT1}, 2
        s_add_u32 s{sNT}, s{sT0}, s{sT2}
        s_add_u32 s{sNT+1}, s{sNT}, 1
        s_add_u32 s{sNT+2}, s{sT0}, s{sT1}
        s_add_u32 s{sNT+2}, s{sNT+2}, 2
        s_cmp_eq_u32 s{sMH}, 0
        s_cselect_b32 s{sMSK}, -1, 0x7fff7fff
        s_cselect_b32 s{sMSK+1}, -1, 0x7fff7fff
        v_lshrrev_b32 v{T0}, 1, v{R}
        v_xor_b32 v{T0}, v{T0}, v{G}
        v_lshlrev_b32 v{T0}, 4, v{T0}
        v_lshl_add_u32 v{T0}, v{R}, 7, v{T0}
        s_mul_i32 s{sT0}, s{sMH}, {5*2048}
        s_add_u32 s{sT0}, s{sT0}, {c.stg}
        v_add_u32 v{c.xb[0]}, s{sT0}, v{T0}
        v_xor_b32 v{c.xb[1]}, 64, v{c.xb[0]}
        """)
        rho_local(a, T0, T1)
        a(f"""
        v_bfe_u32 v{T2}, v{T0}, 1, 2
        v_mul_u32_u24 v{T0}, 384, v{T0}
        v_and_b32 v{T1}, 3, v{LANE}
        v_lshl_add_u32 v{T0}, v{T1}, 3, v{T0}
        v_add_u32 v{T0}, {c.xsz+c.stg}, v{T0}
        """)
        for f in range(3):
            a(f"v_xor_b32 v{T1}, s{sNT+f}, v{T2}\nv_lshl_add_u32 v{c.wb[f]}, v{T1}, 5, v{T0}")
        a(f"""
        s_mul_i32 s{sT0}, s{sRB}, {FROWS}
        s_mul_i32 s{sT1}, s{sMH}, 80
        s_add_u32 s{sT0}, s{sT0}, s{sT1}
        v_add_u32 v{RHO}, s{sT0}, v{R}
        v_lshlrev_b32 v{T0}, 4, v{RHO}
        v_add_u32 v{c.VRA}, {STO}, v{T0}
        """)
        for s in range(2):
            for r in range(4): a(f"v_mov_b32 v{c.X[s][4]+r}, 0x3f803f80")
        a(f"v_lshlrev_b32 v{T0}, 3, v{G}\ns_mul_i32 s{sT2}, s{sCB}, 384")
        for f in range(3):
            a(f"s_lshl_b32 s{sT1}, s{sNT+f}, 5\ns_add_u32 s{sT1}, s{sT1}, s{sT2}")
            a(f"buffer_load_dwordx2 {vr(B1+2*f,2)}, v{T0}, {sr(SWT,4)}, s{sT1} offen")
    pre_loop(c, f_setup)
    rec = [[f"v_add_u32 v{T3}, {256*i}, v{c.VRA}", f"v_min_u32 v{T3}, {STO+2047*16}, v{T3}",
            f"buffer_load_dwordx4 {vr(c.REC+4*i,4)}, v{T3}, {sr(SFL,4)}, 0 offen sc1"] for i in range(5)]
    CA = 17
    c.tailx = [[f"v_lshlrev_b32 v{T3}, 4, v{G}"]] + [lines(f"s_lshl_b32 s{sT0}, s{sNT+f}, 6\ns_add_u32 s{sT0}, s{sT0}, {L_CS}\nv_add_u32 v{CA+f}, s{sT0}, v{T3}") for f in range(3)]
    main_loop(a, c, S, "f", rec)
    a(f"s_waitcnt vmcnt({c.yrec})")
    poll(a, sum(rec, []), [c.REC+4*i+2 for i in range(5)], True)
    lc = a.uid("Lc")
    a(f"s_cmp_eq_u32 s{sMH}, 0\ns_cbranch_scc1 {lc}\ns_not_b64 exec, {sr(sMSK,2)}")
    for f in range(3): a(f"ds_write_b128 v{CA+f}, {vr(c.acc[f][4],4)}")
    a("s_mov_b64 exec, -1\ns_waitcnt lgkmcnt(0)")
    a.label(lc)
    a("s_barrier")
    CC = c.VPS; VA = 11
    CSR = eal(12, 2); TT = [eal(2,2) for _ in range(4)] + [12, B1+6]
    assert eal.n <= WREG, eal.n
    for f in range(3): a(f"ds_read_b128 {vr(CSR+4*f,4)}, v{CA+f}")
    BFp = [c.REC+4*i+2 for i in range(5)] + [B1+4]
    OUTP = [B1, 16]; SG = 20
    assert RHO == 15
    rest = [p for p in list(range(25)) + LA_ + LB if p not in c.early]
    rg = [wfrag(p) for p in rest]
    F1, F2 = rg[:fn1], rg[fn1:]
    I = Inter(a, [], 1000)
    if fevery:
        I = Inter(a, F1, fevery); F1 = []
    half(F1, True)
    c0 = -2*math.sqrt(2/math.pi)*math.log2(math.e); c1 = c0*0.044715
    for j in range(5): I(f"v_lshlrev_b32 v{BFp[j]}, 16, v{B1+j}\nv_and_b32 v{BFp[j]+1}, 0xffff0000, v{B1+j}")
    I(f"v_lshlrev_b32 v{B1+4}, 16, v{B1+5}\nv_and_b32 v{B1+5}, 0xffff0000, v{B1+5}")
    I(f"v_mov_b32 v{CC}, {f32(c0)}\nv_mov_b32 v{CC+1}, {f32(c1)}\nv_mov_b32 v{CC+2}, 1.0")
    I(f"""
    v_and_b32 v{T2}, 15, v{RHO}
    v_lshlrev_b32 v{T2}, 4, v{T2}
    v_lshl_add_u32 v{T1}, v{G}, 8, v{T2}
    v_and_b32 v{T3}, 1, v{G}
    v_lshl_add_u32 v14, v{T3}, 8, v{T2}
    v_lshrrev_b32 v{T0}, 4, v{RHO}
    v_lshrrev_b32 v{T3}, 5, v{LANE}
    v_add_u32 v{RHO}, v{T0}, v{T3}
    s_mul_i32 s{sT2}, s{sCB}, 6
    s_add_u32 s{sT2}, s{sT2}, 20
    s_lshr_b32 s{sT0}, s{sNT}, 1
    s_add_u32 s{sT0}, s{sT0}, s{sT2}
    s_lshl_b32 s{sKX}, s{sT0}, 12
    s_lshr_b32 s{sT0}, s{sNT+2}, 1
    s_add_u32 s{sT0}, s{sT0}, s{sT2}
    s_lshl_b32 s{sKW}, s{sT0}, 12
    s_and_b32 s{sT0}, s{sNT+2}, 1
    s_lshl_b32 s{sT0}, s{sT0}, 9
    s_add_u32 s{sKW}, s{sKW}, s{sT0}
    s_mov_b32 s{sT3}, {74*4096}
    s_waitcnt lgkmcnt(0)
    """)
    a(f"s_cmp_eq_u32 s{sMH}, 0\ns_cselect_b32 s{sMSK}, -1, 0x00ff00ff\ns_mov_b32 s{sMSK+1}, s{sMSK}")
    def gelu_pair(h, cs, b, st, t, dst):
        return [f"v_pk_fma_f32 {vr(t,2)}, {vr(cs,2)}, {vr(st,2)}, {vr(b,2)} op_sel:[0,1,0] op_sel_hi:[1,1,1]",
                f"v_pk_fma_f32 {vr(h,2)}, {vr(h,2)}, {vr(st,2)}, {vr(t,2)} op_sel:[0,0,0] op_sel_hi:[1,0,1]",
                f"v_pk_mul_f32 {vr(t,2)}, {vr(h,2)}, {vr(h,2)}",
                f"v_pk_fma_f32 {vr(t,2)}, {vr(t,2)}, {vr(CC,2)}, {vr(CC,2)} op_sel:[0,1,0] op_sel_hi:[1,1,0]",
                f"v_pk_mul_f32 {vr(t,2)}, {vr(t,2)}, {vr(h,2)}",
                f"v_exp_f32 v{t}, v{t}",
                f"v_exp_f32 v{t+1}, v{t+1}",
                f"v_pk_add_f32 {vr(t,2)}, {vr(t,2)}, {vr(CC+2,2)} op_sel_hi:[1,0]",
                f"v_rcp_f32 v{t}, v{t}",
                f"v_rcp_f32 v{t+1}, v{t+1}",
                f"v_pk_mul_f32 {vr(t,2)}, {vr(t,2)}, {vr(h,2)}",
                f"v_cvt_pk_bf16_f32 v{dst}, v{t}, v{t+1}"]
    def blkaddr(dst, tile, low):
        I(f"""
        v_lshrrev_b32 v{T2}, 2, v{tile}
        v_mul_lo_u32 v{T2}, v{T2}, s{sT3}
        v_and_b32 v{T3}, 3, v{tile}
        v_lshl_add_u32 v{T2}, v{T3}, 10, v{T2}
        v_add_u32 v{dst}, v{T2}, v{low}
        """)
    for i in range(5):
        o = OUTP[i & 1]
        streams = [gelu_pair(c.acc[f][i]+2*hp, CSR+4*f+2*hp, BFp[2*f+hp], c.REC+4*i, TT[2*f+hp],
                             (o+2*f+hp) if f < 2 else (SG+2*(i&1)+hp)) for f in range(3) for hp in range(2)]
        for k in range(len(streams[0])):
            for s in streams: I(s[k])
        blkaddr(VA, T0, T1)
        I(f"v_add_u32 v{T0}, 1, v{T0}")
        if i == 4: a(f"s_mov_b64 exec, {sr(sMSK,2)}")
        a(f"buffer_store_dwordx4 {vr(o,4)}, v{VA}, {sr(SHO,4)}, s{sKX} offen sc1")
        if i == 4: a("s_mov_b64 exec, -1")
        if i & 1 or i == 4:
            a(f"v_permlane32_swap_b32 v{SG}, v{SG+2}\nv_permlane32_swap_b32 v{SG+1}, v{SG+3}")
            blkaddr(VA, RHO, 14)
            I(f"v_add_u32 v{RHO}, 2, v{RHO}")
            if i == 4: a(f"s_mov_b32 exec_lo, s{sMSK}\ns_mov_b32 exec_hi, 0")
            a(f"buffer_store_dwordx4 {vr(SG,4)}, v{VA}, {sr(SHO,4)}, s{sKW} offen sc1")
            if i == 4: a("s_mov_b64 exec, -1")
    S(6)
    F2 = I.g + F2
    half(F1, False)
    if not sp: a(FLD)
    nb = min(len(F2)-1, NB)
    assert nb >= 0
    emit(F2[:nb])
    publish(nb+(not sp), len(F1))
    tail_loads(F2[nb:])
    if not sp: a(f"s_waitcnt vmcnt({len(F2)})")
    a("s_branch Lphase2")
    a.label("Lidle")
    late_srds()
    emit([duty(a, 6, False)])
    pretouch(None)
    if 'tup' not in EXP: side_loads(a, stat=False)
    stat_loads(a)
    p2_setup(a, 11)
    a("s_waitcnt vmcnt(0)")
    t_work(a)
    a(f"v_mov_b32 v14, 0\nv_mov_b32 v15, 0\ns_waitcnt vmcnt(0)\ns_barrier")
    nonce_get(a, 14, 12)
    a("s_nop 1")
    s_work(a, 12)
    poll(a, [f"buffer_load_dwordx2 v[14:15], v11, {sr(SFL,4)}, 0 offen sc1"], [14], False)
    for l in p2_ldsbases(): a(l)
    emit([wfrag(p) for p in c.early + rest])
    a(f"v_mov_b32 v{VFD}, 0\nv_mov_b32 v{VFD+1}, 0")
    a.label("Lphase2")
    al = Alloc(12)
    al(2, 2); VLA = al(); VLB = al()
    acc = [[al(4,4) for m in range(4)] for n in range(5)]
    BUF = [al(16, 4), al(16, 4), WREG]
    XR = al(6, 2)
    B2 = [al(2, 2), WREG+16, WREG+18]
    assert al.n <= WREG, al.n
    S(8)
    if 'spoll' in EXP:
        l0, l1 = a.uid("Lsp"), a.uid("Lsp")
        a(f"v_readlane_b32 s{sPFO}, v{VF}, 0\nv_readlane_b32 s{sPFS}, v{VF}, 2\ns_mov_b32 s{sSP}, 0\ns_nop 3")
        a.label(l0)
        a(f"""
        s_buffer_load_dwordx4 s[12:15], {sr(SFL,4)}, s{sPFO} glc
        s_buffer_load_dwordx4 {sr(STMP,4)}, {sr(SFL,4)}, s{sPFS} glc
        s_add_u32 s{sSP}, s{sSP}, 1
        s_cmp_gt_u32 s{sSP}, 400000
        s_cbranch_scc1 {l1}
        s_waitcnt lgkmcnt(0)
        s_cmp_lg_u64 s[12:13], {sr(sNON,2)}
        s_cbranch_scc1 {l0}
        s_cmp_lg_u64 s[14:15], {sr(sNON,2)}
        s_cbranch_scc1 {l0}
        s_cmp_lg_u64 {sr(STMP,2)}, {sr(sNON,2)}
        s_cbranch_scc1 {l0}
        s_cmp_lg_u64 {sr(STMP+2,2)}, {sr(sNON,2)}
        s_cbranch_scc1 {l0}
        """)
        a.label(l1)
        a("s_waitcnt lgkmcnt(0)")
    elif 'nopoll' not in EXP: poll(a, [FLD], [VFD], 'nofld' not in EXP or LP is not None, SLEEP)
    S(9)
    RS_ = [WR0+20*t for t in range(5)]
    abuf = {u: BUF[u % 3] for u in range(9)}; abuf[9] = RS_[0]
    wloc = {u: RS_[u] for u in range(5)}
    wloc.update({5: RS_[0], 6: RS_[1], 7: RS_[2], 8: RS_[3], 9: RS_[4]})
    def aload(t):
        g = [[f"buffer_load_dwordx4 {vr(abuf[t]+4*m,4)}, v{VL}, {sr(SPF,4)}, s{sT3} offen offset:{1024*m} sc1"] for m in range(4)]
        g[0] = [f"s_lshl_b32 s{sT3}, s{sK+t}, 12"] + g[0]
        return g
    ops = []
    for t in (0, 1, 2): emit(aload(t)); ops += [t]*4
    SOX, SOB = [sKX, sKW, sDELTA], [sSLOT, sW1K, sMH]
    setup = [lines(f"v_add_u32 v{VLA}, s{sFILL}, v{VL}\nv_add_u32 v{VLB}, s{sFW}, v{VL}\ns_mul_i32 s{sT0}, s{sC2}, 160")]
    for j in range(3):
        setup += chunks(lines(f"""
        s_add_u32 s{sT1}, s{sW}, {8*j}
        s_mul_i32 s{sT2}, s{sT1}, 52
        s_lshr_b32 s{sT2}, s{sT2}, 8
        s_mul_i32 s{sT3}, s{sT2}, 5
        s_sub_u32 s{sT1}, s{sT1}, s{sT3}
        s_lshl_b32 s{sT1}, s{sT1}, 5
        s_mul_i32 s{sT2}, s{sT2}, 20480
        s_add_u32 s{SOX[j]}, s{sT2}, s{sT1}
        s_add_u32 s{SOB[j]}, s{sT0}, s{sT1}
        """), 3)
    for d, p, sz in ((STMP, P_B2, 1280), (SW, P_OUT, XB)):
        setup += [[f"s_mov_b32 s{d}, s{p}", f"s_mov_b32 s{d+1}, s{p+1}"], [f"s_mov_b32 s{d+2}, {sz}", f"s_mov_b32 s{d+3}, 0x00020000"]]
    setup.append([f"v_lshlrev_b32 v{T1}, 3, v{G}"])
    def pw(n, m):
        q = m*5+n
        ad, off = (VLA, q*1024) if q < 8 else (VLB, (q-8)*1024)
        return f"ds_write_b128 v{ad}, {vr(acc[n][m],4)} offset:{off}"
    def sonly(groups):
        lab = a.uid("Lso")
        return [f"s_cmp_ge_u32 s{sW}, 2", f"s_cbranch_scc1 {lab}"] + sum(groups, []) + [lab + ":"]
    tl = [(n, m) for n in range(5) for m in range(4)]
    for t in (0, 1, 2, 3, 4, 5, 6, 7, 9, 8):
        if t == 9:
            a(f"s_cmp_ge_u32 s{sW}, 2\ns_cbranch_scc1 Lp2skip")
            a(f"s_waitcnt vmcnt(6)")
        else:
            if t == 8: a.label("Lp2skip")
            younger = len(ops) - 1 - max(i for i, o in enumerate(ops) if o == t)
            a(f"s_waitcnt vmcnt({younger})" + (" lgkmcnt(0)" if t == 5 else ""))
        M = [mfma(acc[n][m], wloc[t]+4*n, abuf[t]+4*m, t == 0) for (n, m) in tl]
        items = []
        if t == 0: items += even(setup, 20, 0)
        if 1 <= t <= 6:
            items += [(0+5*k, g) for k, g in enumerate(aload(t+2))]; ops += [t+2]*4
        if 1 <= t <= 4:
            for n in range(5):
                phi = (t+4)*5+n
                ad, off = (VLA, (phi-25)*1024) if phi < 33 else (VLB, (phi-33)*1024)
                items.append((2+4*n, [f"ds_read_b128 {vr(wloc[t+4]+4*n,4)}, v{ad} offset:{off}"]))
        if t == 5: items.append((18, sonly([wfrag(45+n, wloc[9]+4*n) for n in range(5)])))
        if t == 6: items.append((18, sonly(aload(9))))
        if t == 7:
            for j in range(3): items.append((1+6*j, [f"buffer_load_dwordx2 {vr(XR+2*j,2)}, v{VXO}, {sr(SX,4)}, s{SOX[j]} offen"])); ops.append('x')
            for j in range(3): items.append((4+6*j, [f"buffer_load_dwordx2 {vr(B2[j],2)}, v{T1}, {sr(STMP,4)}, s{SOB[j]} offen"])); ops.append('b')
        if t == 8: items += [(k, [pw(*tl[k-8])]) for k in range(8, 20)]
        for l in spread(M, items): a(l)
        if t == 8:
            a("s_nop 0")
            for k in range(12, 20): a(pw(*tl[k]))
        if t != 8 and 'p2st' in EXP: S(40+t)
    a(f"""
    s_lshl_b32 s{sT0}, s{sW}, 10
    v_add_u32 v{T0}, s{sT0}, v{VL}
    v_add_u32 v{T2}, {L_A}, v{T0}
    v_add_u32 v{T3}, {4*12288}, v{T0}
    """)
    S(52)
    a("s_waitcnt lgkmcnt(0)\ns_barrier")
    S(53)
    P = [[acc[0][0] + (j*8+s)*4 for s in range(8)] for j in range(3)]
    assert P[2][7]+4 <= XR
    def rdtile(j):
        for s in range(8):
            if j == 0: ad, off = T2, s*8192
            else: ad, off = (T0 if s < 4 else T3), (s%4)*12288 + (j-1)*8192
            a(f"ds_read_b128 {vr(P[j][s],4)}, v{ad} offset:{off}")
    L2E = f32(-math.log2(math.e))
    def fin(j):
        o = []
        p = P[j]
        Sx, Y, Z = p[0], p[2], p[3]
        for h in (0, 2):
            for k in (0, 2, 4, 6): o.append(f"v_pk_add_f32 {vr(p[k]+h,2)}, {vr(p[k]+h,2)}, {vr(p[k+1]+h,2)}")
        def unp(x, q):
            return lines(f"v_lshlrev_b32 v{x}, 16, v{q}\nv_and_b32 v{x+1}, 0xffff0000, v{q}\nv_lshlrev_b32 v{x+2}, 16, v{q+1}\nv_and_b32 v{x+3}, 0xffff0000, v{q+1}")
        o += unp(Z, B2[j])
        for h in (0, 2):
            o.append(f"v_pk_add_f32 {vr(p[2]+h,2)}, {vr(p[2]+h,2)}, {vr(p[4]+h,2)}")
            o.append(f"v_pk_add_f32 {vr(p[6]+h,2)}, {vr(p[6]+h,2)}, {vr(Z+h,2)}")
        for h in (0, 2): o.append(f"v_pk_add_f32 {vr(Y+h,2)}, {vr(Y+h,2)}, {vr(p[6]+h,2)}")
        for r in range(4): o.append(f"v_mul_f32 v{Z+r}, {L2E}, v{Y+r}")
        for r in range(4): o.append(f"v_exp_f32 v{Z+r}, v{Z+r}")
        for r in range(4): o.append(f"v_add_f32 v{Z+r}, 1.0, v{Z+r}")
        for r in range(4): o.append(f"v_rcp_f32 v{Z+r}, v{Z+r}")
        for h in (0, 2): o.append(f"v_pk_mul_f32 {vr(Y+h,2)}, {vr(Y+h,2)}, {vr(Sx+h,2)}")
        o += unp(p[4], XR+2*j)
        for r in range(4): o.append(f"v_fma_f32 v{Y+r}, v{Y+r}, v{Z+r}, v{p[4]+r}")
        o += [f"v_cvt_pk_bf16_f32 v{Sx}, v{Y}, v{Y+1}", f"v_cvt_pk_bf16_f32 v{Sx+1}, v{Y+2}, v{Y+3}",
              f"buffer_store_dwordx2 {vr(Sx,2)}, v{VXO}, {sr(SW,4)}, s{SOX[j]} offen {OSF}"]
        return o
    rdtile(0); rdtile(1)
    l3 = a.uid("L3")
    a(f"s_cmp_ge_u32 s{sW}, 4\ns_cbranch_scc1 {l3}")
    rdtile(2)
    a("s_waitcnt vmcnt(0) lgkmcnt(8)")
    for x, y in zip(fin(0), fin(1)): a(x); a(y)
    a("s_waitcnt lgkmcnt(0)")
    for x in fin(2): a(x)
    a("s_branch Lfin")
    a.label(l3)
    a("s_waitcnt vmcnt(0) lgkmcnt(0)")
    for x, y in zip(fin(0), fin(1)): a(x); a(y)
    a.label("Lfin")
    S.finish(54)
    a.label("Lend")
    a("s_endpgm")
    ref = open(f"cdna_kernels/{NAME}.s.ref").read().split("\n")
    hdr = [l for l in ref if l.startswith(";") and "@launch" not in l]
    out = "\n".join(hdr) + f"\n; @launch grid=(256,1,1) block=(512,1,1) lds={LDS_TOTAL}\n"
    out += '.amdgcn_target "amdgcn-amd-amdhsa--gfx950"\n' + khead(name) + a.text() + kd(name, 256, 102)
    return out

if __name__ == "__main__":
    path = sys.argv[1]
    kw = eval("dict(" + (sys.argv[2] if len(sys.argv) > 2 else "") + ")")
    open(path, "w").write(gen(**kw))
```

```python
from asmlib import *
import math, sys
NAME = "recurrent_scan__sliding_local_dilated__dense_activation_gelu__prompt"
XB = 2048*640*2
HO_SZ = 32*74*4096
WT_OFF, WT_SZ = 0xB00000, 8*74*5*1024
FLB = 0x400000
TFO, STO = FLB+0x1000, FLB+0x4000
FL_SZ = FLB + 0x10000
BIG = 0x7ff00000
RS = 592
L_TST, L_CS, L_A = 147456, 88064, 98304
LA_ = list(range(25, 33)); LB = [33, 34] + list(range(36, 45)) + [35]
WR0 = 156
VFD = 12
LDS_TOTAL = 163840
FROWS = 152

SX, SW, SHO, SPF, SWT, SFL, SDBG, STMP = 4, 8, 16, 20, 24, 28, 32, 36
sXA, sXB, sEM, sWO = 12, 13, 14, 15
P_X, P_WQ, P_WO, P_W1, P_B1, P_W2, P_B2, P_OUT, P_DBG, P_WS = 40, 42, 44, 48, 50, 52, 54, 56, 58, 60
(sW, sRB, sCB, sI, sKX, sKW, sTM, sFILL, sDELTA, sSLOT, sW1K, sT0, sT1, sT2, sT3, sMH) = range(62, 78)
sNT = 78; sNON = 82; sMSK = 84; sR2, sC2 = 50, 51; sK = 88; sSP = 98; sN2 = 99
sWM = 100
sFW, sWB = 3, 47
sTB = 42
sHF = 43
sPFO, sPFS, sPG = 46, 86, 87
sRM, sRH = 48, 49
sTS = [44, 45, 52, 53]
VF, LANE, G, R, T0, T1, T2, T3, VST, VL, VXO = 0, 1, 2, 3, 4, 5, 6, 7, 8, 9, 10
WREG = 136
SIDE = 232
RT = 5; MAP2 = 81; ROTA = 2; EXP = set(); PFF = ""; DN = 2; DMASK = 0b101; DPRE = 2; SP = dict(tw=1, nonce=3, sl=3, sw=5, tf=5); TFL = "nt"; RECIT = 9

def mfma(d, a_, b_, c0=False): return f"v_mfma_f32_16x16x32_bf16 {vr(d,4)}, {vr(a_,4)}, {vr(b_,4)}, " + ("0" if c0 else vr(d,4))
def chunks(l, n): return [l[i:i+n] for i in range(0, len(l), n)]
def merge(groups, n): return [sum(g, []) for g in chunks(groups, n)]
def lines(t): return [l.strip() for l in t.strip("\n").split("\n") if l.strip()]
def srd(a, d, p, size, off=None):
    if off is None: a(f"s_mov_b32 s{d}, s{p}\ns_mov_b32 s{d+1}, s{p+1}")
    else: a(f"s_add_u32 s{d}, s{p}, {off}\ns_addc_u32 s{d+1}, s{p+1}, 0")
    a(f"s_mov_b32 s{d+2}, {size}\ns_mov_b32 s{d+3}, 0x00020000")

class St:
    def __init__(s, a, on): s.a, s.on = a, on
    def start(s):
        if s.on: s.a(f"s_memtime s[0:1]\nv_mov_b32 v{VST}, 0\ns_waitcnt lgkmcnt(0)\nv_writelane_b32 v{VST}, s0, 59\nv_writelane_b32 v{VST}, s94, 0\nv_writelane_b32 v{VST}, s96, 62")
    def __call__(s, i):
        if s.on: s.a(f"s_memtime s[0:1]\ns_waitcnt lgkmcnt(0)\nv_writelane_b32 v{VST}, s0, {i}")
    def dyn(s, base):
        if s.on and ((base == 30 and 'nobar' not in EXP) or 'lst' in EXP):
            s.a(f"s_memtime s[0:1]\ns_add_u32 m0, s{sI}, {base}\ns_waitcnt lgkmcnt(0)\nv_writelane_b32 v{VST}, s0, m0")
    def finish(s, i):
        if not s.on: return
        s.a(f"""
        s_waitcnt vmcnt(0)
        s_memtime s[0:1]
        s_waitcnt lgkmcnt(0)
        v_writelane_b32 v{VST}, s0, {i}
        s_memrealtime s[0:1]
        s_waitcnt lgkmcnt(0)
        v_writelane_b32 v{VST}, s0, 63
        s_lshl_b32 s3, s2, 3
        s_add_u32 s3, s3, s{sW}
        s_lshl_b32 s3, s3, 8
        s_add_u32 s3, s3, {STAMP_OFF}
        s_add_u32 s{STMP}, s{P_WS}, s3
        s_addc_u32 s{STMP+1}, s{P_WS+1}, 0
        s_mov_b32 s{STMP+2}, 256
        s_mov_b32 s{STMP+3}, 0x00020000
        v_lshlrev_b32 v{T0}, 2, v{LANE}
        buffer_store_dword v{VST}, v{T0}, {sr(STMP,4)}, 0 offen
        """)
class Cfg: inloop = False

def wld(c, u):
    ld = f"buffer_load_dwordx4 v{c.VW[u]}, {sr(SW,4)}, s{sKW} offen offset:{1024*u} lds"
    return [f"s_mov_b64 exec, {sr(sWM,2)}", ld, "s_mov_b64 exec, -1"] if u == 3 else [ld]
def dmaA(c, a):
    lab = a.uid("Lsk")
    return [[f"s_add_u32 m0, s{sFILL}, s{sW1K}", f"s_add_u32 s{sXA}, s{sXA}, 128"],
            [f"buffer_load_dwordx4 v{c.VX[0]}, {sr(SX,4)}, s{sXA} offen lds"],
            [f"buffer_load_dwordx4 v{c.VX[1]}, {sr(SX,4)}, s{sXA} offen offset:1024 lds"],
            [f"s_cbranch_vccz {lab}", f"s_add_u32 m0, s{sFILL}, s{sEM}", f"s_add_u32 s{sXB}, s{sXB}, 128",
             f"buffer_load_dwordx4 v{c.VX[2]}, {sr(SX,4)}, s{sXB} offen lds", lab + ":"],
            [f"s_add_u32 m0, s{sFILL}, s{sWB}", f"s_add_u32 s{sKW}, s{sKW}, {64*c.wrowb}"]] + ([wld(c, 0)] if c.nW == 4 else [])
def dmaB(c, a): return [wld(c, u) for u in range(c.nW-3, c.nW)]
def guard(a, groups, old):
    out = []
    for g in groups:
        lab = a.uid("Lg")
        out.append([f"s_cbranch_vcc{'z' if old else 'nz'} {lab}"] + g + [lab + ":"])
    return out
SETVCC = None
def reads(c, st, s):
    r = []
    if 'xrd' in EXP and c.inloop: return [['s_nop 0']]
    for i in range(c.nM):
        ins = f"ds_read_b128 {vr(c.X[st][i],4)}, v{c.xb[s]} offset:{i*2048}"
        if (not c.nh) and i == c.nM-1: r.append([f"s_mov_b64 exec, {sr(sMSK,2)}", ins, "s_mov_b64 exec, -1"])
        else: r.append([ins])
    if c.nh: r.append([f"s_mov_b64 exec, {sr(sMSK,2)}", f"ds_read_b128 {vr(c.XH[st],4)}, v{c.hb[s]}", "s_mov_b64 exec, -1"])
    for f in range(c.nF):
        r.append([f"ds_read_b64_tr_b16 {vr(c.W[st][f],2)}, v{c.wb[f]} offset:{s*32*c.wrow}"])
        r.append([f"ds_read_b64_tr_b16 {vr(c.W[st][f]+2,2)}, v{c.wb[f]} offset:{s*32*c.wrow+8*c.wrow}"])
    return r
def mfmas(c, st, c0=False):
    m = []
    for f in range(c.nF):
        for i in range(c.nM): m.append(mfma(c.acc[f][i], c.W[st][f], c.X[st][i], c0))
        if f < c.nh: m.append(mfma(c.acch[f], c.W[st][f], c.XH[st], c0))
    return m
def spread(main, items):
    out = []
    for i, m in enumerate(main):
        out.append(m)
        for p, g in items:
            if p == i or (i == len(main)-1 and p > i): out.extend(g)
    return out
def even(groups, n, lo=1):
    k = len(groups)
    return [(lo + (j*(n-lo))//k, g) for j, g in enumerate(groups)] if k else []

def stat_row(a):
    a(f"""
    s_and_b32 s{sT0}, s2, 1
    s_lshl_b32 s{sT0}, s{sT0}, 10
    s_bfe_u32 s{sT2}, s2, 0x20001
    s_lshl_b32 s{sT2}, s{sT2}, 8
    s_add_u32 s{sT0}, s{sT0}, s{sT2}
    s_and_b32 s{sT2}, s2, 0x78
    s_lshl_b32 s{sT2}, s{sT2}, 1
    s_add_u32 s{sT0}, s{sT0}, s{sT2}
    s_sub_u32 s{sT2}, s{sW}, 4
    s_lshl_b32 s{sT2}, s{sT2}, 2
    s_add_u32 s{sT0}, s{sT0}, s{sT2}
    """)
def nonce_get(a, vN, vPS, flag=True):
    l0, l1, l2, l3 = a.uid("Lno"), a.uid("Lno"), a.uid("Lno"), a.uid("Lno")
    assert vN == vPS + 2 and vPS % 2 == 0
    a(f"s_mov_b32 s{sSP}, 0")
    a.label(l0)
    a(f"""
    v_readfirstlane_b32 s{sNON}, v{vN}
    v_readfirstlane_b32 s{sNON+1}, v{vN+1}
    s_add_u32 s{sSP}, s{sSP}, 1
    s_cmp_gt_u32 s{sSP}, 100000
    s_cbranch_scc1 {l1}
    s_cmp_lg_u32 s{sNON}, 0
    s_cbranch_scc1 {l1}
    v_mov_b32 v{T0}, 0
    buffer_load_dwordx2 {vr(vN,2)}, v{T0}, {sr(SDBG,4)}, 0 offen sc1
    s_waitcnt vmcnt(0)
    s_branch {l0}
    """)
    a.label(l1)
    if not flag: return
    a(f"""
    s_cmp_lg_u32 s{sW}, 0
    s_cbranch_scc1 {l2}
    s_lshl_b32 s{sT1}, s2, 3
    v_mov_b32 v{T0}, {TFO-1024}
    s_mov_b64 exec, 1
    buffer_store_dwordx2 {vr(vN,2)}, v{T0}, {sr(SFL,4)}, s{sT1} offen sc1
    s_mov_b64 exec, -1
    """)
    a.label(l2)
def poll(a, loads, cmps, preloaded, sleep=0):
    l0, l1, l2 = a.uid("Lpo"), a.uid("Lpo"), a.uid("Lpo")
    a(f"s_mov_b32 s{sSP}, 0")
    if preloaded: a(f"s_branch {l2}")
    a.label(l0)
    for l in loads: a(l)
    a("s_waitcnt vmcnt(0)")
    a.label(l2)
    for k, v in enumerate(cmps):
        if k == 0: a(f"v_cmp_eq_u64 vcc, {sr(sNON,2)}, {vr(v,2)}")
        else: a(f"v_cmp_eq_u64 {sr(sT1,2)}, {sr(sNON,2)}, {vr(v,2)}\ns_nop 0\ns_and_b64 vcc, vcc, {sr(sT1,2)}")
    a(f"""
    s_add_u32 s{sSP}, s{sSP}, 1
    s_cmp_gt_u32 s{sSP}, 100000
    s_cbranch_scc1 {l1}
    s_cmp_eq_u64 vcc, -1
    """)
    if sleep: a(f"s_cbranch_scc1 {l1}\ns_sleep {sleep}\ns_branch {l0}")
    else: a(f"s_cbranch_scc0 {l0}")
    a.label(l1)

def wfrag(phi, dst=None):
    t, n = divmod(phi, 5)
    pre = [f"s_mul_i32 s{sTM}, s{sK+t}, 5120"]
    if phi < 25 or dst is not None:
        d = WR0+4*phi if dst is None else dst
        if n < 4: return pre + [f"buffer_load_dwordx4 {vr(d,4)}, v{VL}, {sr(SWT,4)}, s{sTM} offen offset:{1024*n} sc1"]
        return pre + [f"s_add_u32 s{sTM}, s{sTM}, 4096", f"buffer_load_dwordx4 {vr(d,4)}, v{VL}, {sr(SWT,4)}, s{sTM} offen sc1"]
    base, o = (sFILL, (phi-25)*1024) if phi < 33 else (sFW, (phi-33)*1024)
    return [f"s_add_u32 m0, s{base}, {o}"] + pre + [f"s_add_u32 s{sTM}, s{sTM}, {1024*n}", f"buffer_load_dwordx4 v{VL}, {sr(SWT,4)}, s{sTM} offen sc1 lds"]
def p2_ldsbases():
    return [f"s_lshl_b32 s{sFILL}, s{sW}, 13", f"s_add_u32 s{sFILL}, s{sFILL}, {L_A}", f"s_mul_i32 s{sFW}, s{sW}, 12288"]

def stage_set(c, st):
    return [f"s_mov_b32 s{sFILL}, {((st+1) % 3) * c.stg}"]
def duty(a, n=2, guard=True, mask=0):
    lab = a.uid("Ldu")
    g = [f"s_bitcmp1_b32 {mask}, s{sI}", f"s_cbranch_scc0 {lab}"] if guard else []
    for _ in range(n):
        g += lines(f"""
        s_cmp_ge_u32 s{sPFO}, s{sPG}
        s_cbranch_scc1 {lab}
        buffer_load_dword v255, v254, {sr(STMP,4)}, s{sPFO} offen {PFF}
        s_add_u32 s{sPFO}, s{sPFO}, s{sPFS}""")
    return g + [lab + ":"]

def atoms(group):
    if any(l.endswith(":") for l in group): return [group]
    out = []; k = 0
    while k < len(group):
        if group[k].startswith("s_mov_b64 exec"): out.append(group[k:k+3]); k += 3
        else: out.append([group[k]]); k += 1
    return out
def balance(M, streams, last):
    items = []
    for units, lo, hi in streams:
        tot = sum(len(u) for u in units); acc = 0
        for u in units:
            items.append((lo + (acc*(hi-lo+1))//max(tot, 1), u)); acc += len(u)
    return spread(M, items)

def iteration(a, c, S, kind, extra1=(), extra2=(), pre2=None):
    prio = 'noprio' not in EXP
    a("s_waitcnt lgkmcnt(0)")
    M = mfmas(c, 0, kind == 0); n = len(M)
    upd = lambda b: [f"v_add_u32 v{b}, s{sDELTA}, v{b}"]
    rd = reads(c, 1, 1); nx = c.nM + (1 if c.nh else 0)
    R = rd[:nx]
    if kind != 9: R = R + [upd(c.xb[1])] + ([upd(c.hb[1])] if c.nh else [])
    for f in range(c.nF):
        R += rd[nx+2*f:nx+2*f+2]
        if kind != 9 and f: R.append(upd(c.wb[f-1]))
    late = []
    if kind != 9: late = [upd(c.wb[c.nF-1]), upd(c.xb[0])] + ([upd(c.hb[0])] if c.nh else [])
    Sx = []; S0 = []
    if kind != 9:
        S0 = [[f"s_add_u32 s{sT1}, s{sSLOT}, {c.stg}", f"s_cmp_eq_u32 s{sT1}, {3*c.stg}", f"s_cselect_b32 s{sT1}, 0, s{sT1}"], [f"s_sub_u32 s{sDELTA}, s{sT1}, s{sSLOT}"]]
    if kind in ('loop', 7): Sx += dmaB(c, a)
    if kind == 0: Sx += dmaB(c, a) + [stage_set(c, 2)] + dmaA(c, a) + dmaB(c, a)
    Sx += sum([atoms(g) for g in extra1], [])
    if kind in ('loop', 0):
        Sx += [[f"s_mov_b32 s{sFILL}, s{sSLOT}"]]
    if kind != 9: Sx.append([f"s_mov_b32 s{sSLOT}, s{sT1}"])
    st = [(S0, 0, 1), (Sx, 0 if kind == 0 else 2, n-2), (R, 0, n-RT), (late, n-RT+1, n-2)]
    if prio: st = [([["s_setprio 1"]], 0, 0), ([["s_setprio 0"]], n//2, n//2)] + st
    for l in balance(M, st, n): a(l)
    S.dyn(10)
    if kind in ('loop', 0, 7): a(f"s_waitcnt vmcnt({c.nW+2}) lgkmcnt(0)")
    elif kind == 8: a(f"s_waitcnt vmcnt({c.y8}) lgkmcnt(0)")
    else: a("s_waitcnt lgkmcnt(0)")
    S.dyn(20)
    a("s_barrier")
    S.dyn(30)
    if prio: a("s_setprio 3")
    if pre2: pre2()
    M = mfmas(c, 1)
    R = reads(c, 0, 0) if kind != 9 else []
    Sx = []
    if kind in ('loop', 0):
        if c.duty: Sx.append(duty(a, mask=c.dmask))
        Sx += dmaA(c, a)
    Sx += sum([atoms(g) for g in extra2], [])
    st = [(Sx, 0, n-3), (R, 0, n-RT)]
    if kind == 'loop':
        st.append(([[f"s_bitcmp1_b32 {0x20 if c.ffn else 0x28}, s{sI}", f"s_cbranch_scc1 Lspec_{c.tag}", f"Lret_{c.tag}:"]], n-3, n-3))
        st.append(([[f"s_add_u32 s{sI}, s{sI}, 1", f"s_cmp_lt_u32 s{sI}, 7"]], n-2, n-2))
    if prio: st.append(([["s_setprio 2"]], n//2, n//2))
    for l in balance(M, st, n): a(l)

def main_loop(a, c, S, tag, rec_loads):
    iteration(a, c, S, 0)
    nonce_get(a, c.VN, c.VPS, c.ffn)
    a(f"s_mov_b32 s{sI}, 1")
    S(40)
    a.label(f"Lloop_{tag}")
    c.inloop = True; c.tag = tag
    iteration(a, c, S, 'loop')
    c.inloop = False
    a(f"s_cbranch_scc1 Lloop_{tag}")
    a(f"s_branch Lpost_{tag}")
    l5 = a.uid("Ls")
    tf = f"buffer_load_dwordx2 {vr(c.VN,2)}, v{c.VTF}, {sr(SFL,4)}, 0 offen sc1"
    a.label(f"Lspec_{tag}")
    if not c.ffn:
        a(f"s_cmp_lg_u32 s{sI}, 3\ns_cbranch_scc1 {l5}")
        stat_loads(a)
        a(f"s_branch Lret_{tag}")
        a.label(l5)
    a(tf)
    if not c.ffn: s_work(a, c.VPS)
    a(f"s_branch Lret_{tag}")
    a.label(f"Lpost_{tag}")
    S(41)
    early = [wfrag(p) for p in c.early]
    e = chunks(early, (len(early)+4)//5)
    def pre7():
        poll(a, [tf], [c.VN], True)
        for l in p2_ldsbases(): a(l)
    iteration(a, c, S, 7, extra2=e[0], pre2=pre7)
    a(f"s_add_u32 s{sI}, s{sI}, 1")
    c.y8 = len(e[0]) + len(e[1])
    iteration(a, c, S, 8, extra1=e[1], extra2=rec_loads + e[2])
    a(f"s_add_u32 s{sI}, s{sI}, 1")
    iteration(a, c, S, 9, extra1=e[3], extra2=e[4] + c.tailx)
    a("s_setprio 0")
    c.yrec = len(e[2]) + len(e[3]) + len(e[4])
    S(4)

def rho_local(a, d, t):
    a(f"v_bfe_u32 v{d}, v{LANE}, 2, 3\nv_lshrrev_b32 v{t}, 5, v{LANE}\nv_lshl_add_u32 v{d}, v{t}, 4, v{d}")

def t_issue(a, guard=True):
    for q in range(4):
        a(f"s_add_u32 m0, s{sTB}, {1024*q}\ns_nop 0")
        a(f"buffer_load_dwordx4 v{SIDE+4+q}, {sr(SPF,4)}, 0 offen {TFL} lds")
def side_loads(a, stat=True, issue=True):
    ld, lst, lh, lj = a.uid("Lt"), a.uid("Lt"), a.uid("Lt"), a.uid("Lt")
    sU, sKp, sCh = sKX, sKW, sDELTA
    A0, A1, ST0, ST1 = SIDE, SIDE+1, SIDE+2, SIDE+3
    a(f"s_cmp_lt_u32 s{sW}, 2\ns_cbranch_scc1 {ld}")
    a(f"""
    s_lshl_b32 s{sTB}, s{sW}, 12
    s_add_u32 s{sTB}, s{sTB}, {L_TST-2*4096}
    s_mul_i32 s{sT0}, s{sW}, 49152
    s_sub_u32 s{sT0}, s{sT0}, {6*49152-45056}
    s_cmp_ge_u32 s{sW}, 6
    s_cselect_b32 s{sTB}, s{sT0}, s{sTB}
    s_mul_i32 s{sU}, s2, 6
    s_add_u32 s{sU}, s{sU}, s{sW}
    s_sub_u32 s{sU}, s{sU}, {128*6+2}
    s_min_u32 s{sU}, s{sU}, 739
    s_mul_i32 s{sKp}, s{sU}, 6554
    s_lshr_b32 s{sKp}, s{sKp}, 16
    s_mul_i32 s{sT0}, s{sKp}, 10
    s_sub_u32 s{sCh}, s{sU}, s{sT0}
    v_lshrrev_b32 v{T0}, 5, v{LANE}
    s_cmp_ge_u32 s{sKp}, 20
    s_cbranch_scc1 {lh}
    """)
    for e, (A, ST) in enumerate(((A0, ST0), (A1, ST1))):
        a(f"""
        s_lshl_b32 s{sT0}, s{sKp}, 2
        s_add_u32 s{sT0}, s{sT0}, {2*e}
        v_add_u32 v{T1}, s{sT0}, v{T0}
        v_mul_u32_u24 v{T2}, 205, v{T1}
        v_lshrrev_b32 v{T2}, 10, v{T2}
        v_mul_u32_u24 v{T3}, 5, v{T2}
        v_sub_u32 v{T1}, v{T1}, v{T3}
        v_mul_u32_u24 v{A}, 40, v{T2}
        v_lshrrev_b32 v{T2}, 1, v{T1}
        v_mul_u32_u24 v{T2}, 20, v{T2}
        v_and_b32 v{T3}, 1, v{T1}
        v_lshl_add_u32 v{T2}, v{T3}, 3, v{T2}
        v_cmp_eq_u32 vcc, 4, v{T1}
        v_mov_b32 v{ST}, 20
        s_nop 0
        v_cndmask_b32 v{T2}, v{T2}, 16, vcc
        v_cndmask_b32 v{ST}, 4, v{ST}, vcc
        v_add_u32 v{A}, v{A}, v{T2}
        """)
    a("s_waitcnt lgkmcnt(0)")
    srd(a, SPF, P_WO, 640*1280)
    a(f"s_branch {lj}")
    a.label(lh)
    a(f"""
    s_sub_u32 s{sT0}, s{sKp}, 20
    s_mul_i32 s{sT1}, s{sT0}, 86
    s_lshr_b32 s{sT1}, s{sT1}, 8
    s_mul_i32 s{sT1}, s{sT1}, 3
    s_sub_u32 s{sT1}, s{sT0}, s{sT1}
    s_lshl_b32 s{sT0}, s{sT0}, 5
    v_lshl_add_u32 v{A0}, v{T0}, 2, s{sT0}
    s_cmp_eq_u32 s{sT1}, 1
    s_cselect_b32 s{sT1}, 16, 8
    s_cselect_b32 s{sT2}, 8, 16
    v_add_u32 v{A1}, s{sT1}, v{A0}
    v_mov_b32 v{ST0}, s{sT2}
    v_mov_b32 v{ST1}, s{sT2}
    """)
    a("s_waitcnt lgkmcnt(0)")
    srd(a, SPF, P_W2, 1728*1280)
    a.label(lj)
    a(f"""
    v_bfe_u32 v{T1}, v{LANE}, 3, 2
    v_and_b32 v{T2}, 7, v{LANE}
    v_lshlrev_b32 v{T2}, 4, v{T2}
    s_lshl_b32 s{sT0}, s{sCh}, 7
    s_lshl_b32 s{sT1}, s{sW}, 12
    """)
    for q in range(4):
        A, ST = ((A0, ST0), (A1, ST1))[q & 1]
        a(f"v_add_u32 v{T3}, v{A}, v{T1}")
        if q >> 1: a(f"v_add_u32 v{T3}, v{T3}, v{ST}")
        a(f"v_mul_u32_u24 v{T3}, 1280, v{T3}\nv_add3_u32 v{SIDE+4+q}, v{T3}, v{T2}, s{sT0}")
    if issue: t_issue(a, False)
    a(f"s_mul_i32 s{sT2}, s{sKp}, 5\ns_lshl_b32 s{sT3}, s{sCh}, 2")
    for t in range(4):
        a(f"""
        s_add_u32 s{sT0}, s{sT3}, {t}
        s_mul_i32 s{sT1}, s{sT0}, 52
        s_lshr_b32 s{sT1}, s{sT1}, 8
        s_mul_i32 s{sT1}, s{sT1}, 365
        s_add_u32 s{sT0}, s{sT0}, s{sT1}
        s_add_u32 s{sT0}, s{sT0}, s{sT2}
        s_lshl_b32 s{sTS[t]}, s{sT0}, 10
        """)
    a(f"s_branch {ld}")
    a.label(lst)
    if stat: stat_loads(a, False)
    a.label(ld)
def stat_loads(a, guard=True):
    ld = a.uid("Lsl")
    if guard: a(f"s_cmp_lt_u32 s{sW}, 4\ns_cbranch_scc1 {ld}")
    stat_row(a)
    a(f"s_mul_i32 s{sT0}, s{sT0}, 1280\nv_mul_u32_u24 v{T0}, 1280, v{G}\nv_lshl_add_u32 v{T0}, v{R}, 4, v{T0}")
    for i in range(5): a(f"buffer_load_dwordx4 {vr(SIDE+4*i,4)}, v{T0}, {sr(SX,4)}, s{sT0} offen offset:{256*i}")
    a.label(ld)
for u in range(1001): assert (u*6554)>>16 == u//10
for u in range(80): assert (u*205)>>10 == u//5
for u in range(54): assert (u*86)>>8 == u//3
for N in range(40): assert (N*52)>>8 == N//5

def t_work(a):
    lab = a.uid("Ltw")
    a(f"s_cmp_lt_u32 s{sW}, 2\ns_cbranch_scc1 {lab}")
    t_part(a)
    a.label(lab)
def s_work(a, vPS):
    lab = a.uid("Ltw")
    a(f"s_cmp_lt_u32 s{sW}, 4\ns_cbranch_scc1 {lab}")
    s_part(a, SIDE+20)
    a(f"v_mov_b32 v{SIDE}, v{SIDE+20}\nv_mov_b32 v{SIDE+1}, v{SIDE+21}\nv_mov_b32 v{SIDE+2}, s{sNON}\nv_mov_b32 v{SIDE+3}, s{sNON+1}")
    stat_row(a)
    a(f"""
    s_lshl_b32 s{sT0}, s{sT0}, 4
    s_add_u32 s{sT0}, s{sT0}, {STO}
    v_lshlrev_b32 v{T0}, 4, v{G}
    s_mov_b32 exec_lo, 0x00010001
    s_mov_b32 exec_hi, 0x00010001
    buffer_store_dwordx4 {vr(SIDE,4)}, v{T0}, {sr(SFL,4)}, s{sT0} offen sc1
    s_mov_b64 exec, -1
    """)
    a.label(lab)
def t_part(a):
    tmp = SIDE
    a(f"""
    v_lshrrev_b32 v{T0}, 2, v{LANE}
    v_lshlrev_b32 v{T0}, 7, v{T0}
    v_and_b32 v{T1}, 3, v{LANE}
    v_lshl_add_u32 v{T0}, v{T1}, 3, v{T0}
    v_add_u32 v{T0}, s{sTB}, v{T0}
    """)
    for t in range(4):
        a(f"ds_read_b64_tr_b16 {vr(tmp+4*t,2)}, v{T0} offset:{32*t}")
        a(f"ds_read_b64_tr_b16 {vr(tmp+4*t+2,2)}, v{T0} offset:{32*t+2048}")
    for t in range(4):
        a(f"s_waitcnt lgkmcnt({6-2*t})\nbuffer_store_dwordx4 {vr(tmp+4*t,4)}, v{VL}, {sr(SFL,4)}, s{sTS[t]} offen sc1")
def s_part(a, vPS):
    tmp = SIDE
    s, q = vPS, vPS+1
    a(f"v_mov_b32 v{s}, 0\nv_mov_b32 v{q}, 0\nv_mov_b32 v{T0}, 0x3f803f80")
    for j in range(20):
        a(f"v_dot2c_f32_bf16 v{s}, v{tmp+j}, v{T0}\nv_dot2c_f32_bf16 v{q}, v{tmp+j}, v{tmp+j}")
    a("s_nop 2")
    for sh in (8, 4, 2, 1):
        a(f"v_add_f32_dpp v{s}, v{s}, v{s} row_ror:{sh} row_mask:0xf bank_mask:0xf")
        a(f"v_add_f32_dpp v{q}, v{q}, v{q} row_ror:{sh} row_mask:0xf bank_mask:0xf")
        a("s_nop 0")
    a(f"""
    v_mul_f32 v{s}, {f32(1/640)}, v{s}
    v_mul_f32 v{q}, {f32(1/640)}, v{q}
    v_fma_f32 v{q}, -v{s}, v{s}, v{q}
    v_max_f32 v{q}, 0, v{q}
    v_cvt_pk_bf16_f32 v{T0}, v{s}, v{q}
    v_lshlrev_b32 v{T1}, 16, v{T0}
    v_and_b32 v{q}, 0xffff0000, v{T0}
    v_add_f32 v{q}, {f32(1e-5)}, v{q}
    v_cvt_pk_bf16_f32 v{q}, v{q}, v{q}
    v_and_b32 v{q}, 0xffff0000, v{q}
    v_sqrt_f32 v{q}, v{q}
    s_nop 0
    v_cvt_pk_bf16_f32 v{q}, v{q}, v{q}
    v_and_b32 v{q}, 0xffff0000, v{q}
    v_rcp_f32 v{s}, v{q}
    s_nop 0
    v_mul_f32 v{q}, v{T1}, v{s}
    v_sub_f32 v{q}, 0, v{q}
    """)

def p2_setup(a, VTF):
    if MAP2 == 81:
        a(f"""
    s_and_b32 s{sT0}, s2, 7
    s_lshl_b32 s{sR2}, s{sT0}, 2
    s_bfe_u32 s{sT1}, s2, 0x20003
    s_add_u32 s{sR2}, s{sR2}, s{sT1}
    s_lshr_b32 s{sC2}, s2, 5
    s_lshl_b32 s{sT1}, s{sT1}, 1
    s_mul_i32 s{sT0}, s{sC2}, {ROTA}
    s_lshr_b32 s{sT0}, s{sT0}, 1
    s_add_u32 s{sT1}, s{sT1}, s{sT0}
    """)
    else:
        a(f"""
    s_and_b32 s{sT0}, s2, 3
    s_lshl_b32 s{sR2}, s{sT0}, 3
    s_bfe_u32 s{sT1}, s2, 0x30003
    s_add_u32 s{sR2}, s{sR2}, s{sT1}
    s_and_b32 s{sC2}, s2, 4
    s_lshr_b32 s{sT0}, s2, 6
    s_add_u32 s{sC2}, s{sC2}, s{sT0}
    s_mul_i32 s{sT0}, s{sT0}, {ROTA}
    s_add_u32 s{sT1}, s{sT1}, s{sT0}
    """)
    a(f"""
    s_cmp_lt_u32 s{sW}, 2
    s_cselect_b32 s{sN2}, 10, 9
    s_cmp_ge_u32 s{sT1}, s{sN2}
    s_cselect_b32 s{sT2}, s{sN2}, 0
    s_sub_u32 s{sK}, s{sT1}, s{sT2}
    """)
    for t in range(1, 10):
        a(f"s_add_u32 s{sK+t}, s{sK+t-1}, 1\ns_cmp_eq_u32 s{sK+t}, s{sN2}\ns_cselect_b32 s{sK+t}, 0, s{sK+t}")
    a(f"""
    s_mul_i32 s{sT3}, s{sW}, 9
    s_min_u32 s{sT2}, s{sW}, 2
    s_add_u32 s{sT3}, s{sT3}, s{sT2}
    v_lshrrev_b32 v{T0}, 1, v{LANE}
    s_sub_u32 s{sT2}, s{sN2}, 1
    v_min_u32 v{T0}, s{sT2}, v{T0}
    v_add_u32 v{T0}, s{sT3}, v{T0}
    v_mul_u32_u24 v{T0}, 10, v{T0}
    s_mul_i32 s{sT2}, s{sC2}, 5
    s_lshr_b32 s{sT2}, s{sT2}, 2
    v_and_b32 v{T1}, 1, v{LANE}
    v_add3_u32 v{T0}, v{T0}, v{T1}, s{sT2}
    v_mul_u32_u24 v{T0}, 10923, v{T0}
    v_lshrrev_b32 v{T0}, 16, v{T0}
    v_lshlrev_b32 v{T0}, 3, v{T0}
    v_add_u32 v{VTF}, {TFO}, v{T0}
    s_mul_i32 s{sT2}, s{sC2}, 74
    s_add_u32 s{sT2}, s{sT2}, s{sT3}
    s_mul_i32 s{sT2}, s{sT2}, 5120
    s_add_u32 s{sT2}, s{sT2}, {WT_OFF}
    s_add_u32 s{SWT}, s{P_WS}, s{sT2}
    s_addc_u32 s{SWT+1}, s{P_WS+1}, 0
    s_mul_i32 s{SWT+2}, s{sN2}, {0 if 'now' in EXP else 5120}
    s_mov_b32 s{SWT+3}, 0x00020000
    s_mul_i32 s{sT2}, s{sR2}, 74
    s_add_u32 s{sT2}, s{sT2}, s{sT3}
    s_lshl_b32 s{sT2}, s{sT2}, 12
    s_add_u32 s{SPF}, s{P_WS}, s{sT2}
    s_addc_u32 s{SPF+1}, s{P_WS+1}, 0
    s_lshl_b32 s{SPF+2}, s{sN2}, 12
    {f"s_mov_b32 s{SPF+2}, 0" if 'noa' in EXP else ""}
    s_mov_b32 s{SPF+3}, 0x00020000
    """)
    ly, lyd = a.uid("Ly"), a.uid("Ly")
    a(f"""
    s_cmp_ge_u32 s{sW}, 2
    s_cbranch_scc1 {ly}
    s_lshr_b32 s{sT0}, s{sR2}, 1
    s_lshl_b32 s{sT0}, s{sT0}, 7
    s_lshl_b32 s{sT1}, s{sW}, 5
    s_add_u32 s{sT0}, s{sT0}, s{sT1}
    s_add_u32 s{sT0}, s{sT0}, {FLB+16*128}
    v_and_b32 v{T0}, 3, v{LANE}
    v_lshl_add_u32 v{VF}, v{T0}, 3, s{sT0}
    s_branch {lyd}
    """)
    a.label(ly)
    a(f"""
    s_lshl_b32 s{sT0}, s{sR2}, 6
    s_add_u32 s{sT1}, s{sT0}, 63
    s_mul_i32 s{sT0}, s{sT0}, 27595
    s_lshr_b32 s{sT0}, s{sT0}, 22
    s_mul_i32 s{sT1}, s{sT1}, 27595
    s_lshr_b32 s{sT1}, s{sT1}, 22
    s_sub_u32 s{sT1}, s{sT1}, s{sT0}
    s_lshl_b32 s{sT1}, s{sT1}, 7
    s_lshl_b32 s{sT0}, s{sT0}, 7
    s_sub_u32 s{sT2}, s{sW}, 2
    s_mul_i32 s{sT2}, s{sT2}, 3
    s_lshr_b32 s{sT2}, s{sT2}, 1
    s_lshl_b32 s{sT2}, s{sT2}, 3
    s_add_u32 s{sT0}, s{sT0}, s{sT2}
    s_add_u32 s{sT0}, s{sT0}, {FLB}
    v_and_b32 v{T0}, 1, v{LANE}
    v_lshlrev_b32 v{T0}, 3, v{T0}
    v_bfe_u32 v{T1}, v{LANE}, 1, 1
    v_mul_u32_u24 v{T1}, s{sT1}, v{T1}
    v_add3_u32 v{VF}, v{T0}, v{T1}, s{sT0}
    """)
    a.label(lyd)
    a(f"""
    s_lshl_b32 s{sT0}, s{sR2}, 6
    v_add_u32 v{T0}, s{sT0}, v{R}
    v_mul_u32_u24 v{T0}, 1280, v{T0}
    v_lshl_add_u32 v{T0}, v{G}, 3, v{T0}
    s_mul_i32 s{sT0}, s{sC2}, 160
    v_add_u32 v{VXO}, s{sT0}, v{T0}
    """)
for u in range(740): assert (u*10923)>>16 == u//6
for x in range(2048): assert (x*27595)>>22 == x//152

class Inter:
    def __init__(s, a, groups, every): s.a, s.g, s.e, s.n = a, list(groups), every, 0
    def __call__(s, txt):
        for l in lines(txt):
            s.a(l); s.n += 1
            if s.n % s.e == 0 and s.g:
                for x in s.g.pop(0): s.a(x)
    def flush(s, keep=0):
        while len(s.g) > keep:
            for x in s.g.pop(0): s.a(x)

def gen(stamps=False, PF=4, pff="", SLEEP=0, LP=None, QD=10, DMQ=0b10000, rt=4, qevery=16, fn1=30, map2=81, rota=2, fevery=25, OSF='', exp="tup nofld", NB=0, dmask=0b10101, tfl="nt", nearly=10, TLB=0):
    global EXP, PFF, DN, DMASK, DPRE, TFL, MAP2, ROTA
    MAP2 = map2; ROTA = rota
    global RT
    RT = rt
    EXP = set(exp.split()); PFF = pff; TFL = tfl; DMASK = dmask
    a = Asm(); S = St(a, stamps)
    name = NAME + "_kernel"
    def emit(groups):
        for g in groups:
            for l in g: a(l)
    if stamps: a("s_memrealtime s[96:97]\ns_memtime s[94:95]")
    a(f"s_cmp_ge_u32 s2, 256\ns_cbranch_scc1 Lend")
    if 'badmap' in EXP: a("s_and_b32 s3, s2, 31\ns_lshl_b32 s3, s3, 3\ns_lshr_b32 s2, s2, 5\ns_or_b32 s2, s2, s3")
    a(f"s_load_dwordx16 s[40:55], s[0:1], 0\ns_load_dwordx4 s[56:59], s[0:1], 64\ns_load_dwordx2 s[60:61], s[0:1], 80")
    a(f"""
    v_lshrrev_b32 v{T0}, 6, v0
    v_and_b32 v{LANE}, 63, v0
    v_readfirstlane_b32 s{sW}, v{T0}
    v_lshrrev_b32 v{G}, 4, v{LANE}
    v_and_b32 v{R}, 15, v{LANE}
    v_lshlrev_b32 v{VL}, 4, v{LANE}
    s_lshl_b32 s{sW1K}, s{sW}, 11
    s_mov_b32 s{sI}, 0
    """)
    def pf_addr(nrow_cu, kper, nst, cidx_s, VD):
        pass
    lx, lq, ld, lw = a.uid("Lpf"), a.uid("Lpf"), a.uid("Lpf"), a.uid("Lpf")
    a(f"""
    s_bfe_u32 s{sT2}, s2, 0x40003
    s_lshr_b32 s{sT3}, s2, 7
    s_and_b32 s{sT0}, s2, 1
    s_bfe_u32 s{sT1}, s2, 0x20001
    s_mov_b32 s{sPG}, 0
    v_mov_b32 v254, 0
    s_cmp_ge_u32 s{sW}, 3
    s_cbranch_scc1 {lw}
    s_cmp_ge_u32 s{sW}, 1
    s_cbranch_scc1 {lq}
    s_lshl_b32 s{sT0}, s{sT0}, 10
    s_lshl_b32 s{sT1}, s{sT1}, 8
    s_lshl_b32 s{sT2}, s{sT2}, 4
    s_add_u32 s{sT0}, s{sT0}, s{sT1}
    s_add_u32 s{sT0}, s{sT0}, s{sT2}
    v_add_u32 v{T0}, s{sT0}, v{R}
    v_mul_u32_u24 v{T0}, 1280, v{T0}
    v_and_b32 v{T1}, 1, v{G}
    v_lshl_add_u32 v254, v{T1}, 7, v{T0}
    s_lshl_b32 s{sT0}, s{sT3}, 8
    s_mov_b32 s{sPFS}, 256
    s_mov_b32 s{sPG}, 1280
    s_waitcnt lgkmcnt(0)
    s_mov_b32 s{sPFO}, 512
    """)
    srd(a, STMP, P_X, XB)
    a(f"buffer_load_dword v255, v254, {sr(STMP,4)}, s{sT0} offen {pff}")
    a(f"s_branch {ld}")
    a.label(lq)
    a(f"""
    s_cmp_eq_u32 s{sW}, 2
    s_cbranch_scc1 {lx}
    v_min_u32 v{T0}, 35, v{LANE}
    v_mul_u32_u24 v{T1}, 57, v{T0}
    v_lshrrev_b32 v{T1}, 9, v{T1}
    v_mul_u32_u24 v{T3}, 9, v{T1}
    v_sub_u32 v{T0}, v{T0}, v{T3}
    s_lshl_b32 s{sT2}, s{sT2}, 2
    v_add_u32 v{T1}, s{sT2}, v{T1}
    v_mul_u32_u24 v{T1}, 3840, v{T1}
    v_mul_u32_u24 v{T3}, 43, v{T0}
    v_lshrrev_b32 v{T3}, 7, v{T3}
    v_mul_u32_u24 v{T3}, 896, v{T3}
    v_lshl_add_u32 v{T0}, v{T0}, 7, v{T3}
    s_mul_i32 s{sT1}, s{sT1}, 320
    s_and_b32 s{sT1}, s{sT1}, 0xffffff80
    v_add3_u32 v254, v{T0}, v{T1}, s{sT1}
    s_mul_i32 s{sT0}, s{sT3}, {128*3840}
    s_add_u32 s{sT1}, s{sT0}, {64*3840}
    s_mov_b32 s{sPFS}, {64*3840}
    s_mov_b32 s{sPG}, {640*3840}
    s_waitcnt lgkmcnt(0)
    s_mov_b32 s{sPFO}, {256*3840}
    """)
    srd(a, STMP, P_WQ, 640*3840)
    a(f"buffer_load_dword v255, v254, {sr(STMP,4)}, s{sT0} offen {pff}")
    a(f"buffer_load_dword v255, v254, {sr(STMP,4)}, s{sT1} offen {pff}")
    a(f"s_branch {ld}")
    a.label(lx)
    a(f"""
    s_and_b32 s{sT0}, s2, 127
    s_mul_i32 s{sT0}, s{sT0}, 3456
    v_min_u32 v{T0}, 26, v{LANE}
    v_lshl_add_u32 v254, v{T0}, 7, s{sT0}
    s_mul_i32 s{sT0}, s{sT3}, {128*3456}
    s_mov_b32 s{sPFS}, {128*3456}
    s_mov_b32 s{sPG}, {640*3456}
    s_waitcnt lgkmcnt(0)
    s_mov_b32 s{sPFO}, {256*3456}
    """)
    srd(a, STMP, P_W1, 640*3456)
    a(f"buffer_load_dword v255, v254, {sr(STMP,4)}, s{sT0} offen {pff}")
    a(f"s_branch {ld}")
    a.label(lw)
    if 'cpf' in EXP:
        lc_ = a.uid("Lcp")
        a(f"""
        s_cmp_lg_u32 s{sW}, 7
        s_cbranch_scc1 {lc_}
        s_getpc_b64 {sr(sNON,2)}
        s_and_b32 s{sNON}, s{sNON}, 0xffffff00
        s_lshr_b32 s{sT0}, s2, 3
        s_mul_i32 s{sT0}, s{sT0}, 10
        v_min_u32 v{T0}, 9, v{LANE}
        v_add_u32 v{T0}, s{sT0}, v{T0}
        v_lshlrev_b32 v{T0}, 7, v{T0}
        v_min_u32 v{T0}, Lend-{lc_}, v{T0}
        global_load_dword v255, v{T0}, {sr(sNON,2)}
        """)
        a.label(lc_)
    ln = a.uid("Ln")
    a(f"s_cmp_lg_u32 s2, 0\ns_cbranch_scc1 {ln}\ns_cmp_lg_u32 s{sW}, 7\ns_cbranch_scc1 {ln}\ns_waitcnt lgkmcnt(0)")
    srd(a, SDBG, P_DBG, 256)
    a(f"""
    s_memrealtime {sr(sNON,2)}
    s_waitcnt lgkmcnt(0)
    s_or_b32 s{sNON}, s{sNON}, 1
    v_mov_b32 v{T0}, s{sNON}
    v_mov_b32 v{T1}, s{sNON+1}
    v_mov_b32 v{T2}, 0
    s_mov_b64 exec, 1
    buffer_store_dwordx2 {vr(T0,2)}, v{T2}, {sr(SDBG,4)}, 0 offen sc1
    s_mov_b64 exec, -1
    """)
    a.label(ln)
    a("s_waitcnt lgkmcnt(0)")
    srd(a, STMP, P_X, XB)
    a(f"s_mov_b32 s{sPFS}, 0\ns_mov_b32 s{sPFO}, 0")
    a.label(ld)
    S.start()
    srd(a, SX, P_X, XB)
    a(f"""
    s_and_b32 s{sT0}, s2, 1
    s_bfe_u32 s{sT1}, s2, 0x20001
    s_lshr_b32 s{sT2}, s2, 3
    s_cmp_ge_u32 s{sT2}, 16
    s_cbranch_scc1 Lffn
    """)
    def late_srds():
        srd(a, SHO, P_WS, 0 if 'nost' in EXP else HO_SZ); srd(a, SFL, P_WS, FL_SZ, WT_OFF); srd(a, SDBG, P_DBG, 256)
    def set_stage(c, st): emit([stage_set(c, st)])
    def pretouch(flagoff_s):
        lp = a.uid("Lpt")
        a(f"s_cmp_lg_u32 s{sW}, 7\ns_cbranch_scc1 {lp}")
        stat_row(a)
        a(f"""
        s_lshl_b32 s{sT0}, s{sT0}, 4
        s_add_u32 s{sT0}, s{sT0}, {STO}
        v_mov_b32 v{T0}, s{sT0}
        s_lshl_b32 s{sT0}, s2, 3
        s_add_u32 s{sT0}, s{sT0}, {TFO}
        v_writelane_b32 v{T0}, s{sT0}, 1
        """)
        if flagoff_s is not None:
            a(f"s_add_u32 s{sT0}, s{flagoff_s}, {FLB}\nv_writelane_b32 v{T0}, s{sT0}, 2")
        a(f"buffer_load_dword v255, v{T0}, {sr(SFL,4)}, 0 offen sc1")
        if TLB:
            a(f"v_lshlrev_b32 v{T0}, {TLB}, v{LANE}")
            a(f"buffer_load_dword v255, v{T0}, {sr(SHO,4)}, 0 offen sc1")
            a(f"buffer_load_dword v255, v{T0}, {sr(SFL,4)}, 0 offen sc1")
            srd(a, SPF, P_OUT, XB)
            a(f"buffer_load_dword v255, v{T0}, {sr(SPF,4)}, 0 offen sc1")
            srd(a, SPF, P_B2, 1280)
            a(f"buffer_load_dword v255, v{T0}, {sr(SPF,4)}, 0 offen")
        a.label(lp)
    def pre_loop(c, setup):
        if 'd0e' in EXP:
            a(f"s_cmp_lt_u32 s{sW}, {c.nxm}\ns_cselect_b64 vcc, -1, 0")
            set_stage(c, 0); emit(dmaA(c, a) + dmaB(c, a))
        late_srds()
        setup()
        p2_setup(a, c.VTF)
        S(1)
        a(f"s_cmp_lt_u32 s{sW}, {c.nxm}\ns_cselect_b64 vcc, -1, 0")
        if 'd0e' not in EXP:
            a("s_barrier")
            set_stage(c, 0); emit(dmaA(c, a) + dmaB(c, a))
        if c.ffn:
            a(f's_waitcnt vmcnt({c.nW+2})'); t_work(a)
        a(f"v_mov_b32 v{T0}, 0")
        a(f"buffer_load_dwordx2 {vr(c.VN,2)}, v{T0}, {sr(SDBG,4)}, 0 offen sc1")
        if 'nb2' not in EXP: a("s_barrier")
        set_stage(c, 1); emit(dmaA(c, a))
        a(f"s_waitcnt vmcnt({c.nW})")
        S(2)
        a("s_barrier")
        S(3)
        emit(reads(c, 0, 0))
        a(f"s_mov_b32 s{sSLOT}, {c.stg}")
    def alloc_common(c):
        al = Alloc(11)
        c.VX = [al(), al(), 124]; c.VW = [120, 121, 122, 123]
        c.xb = [al(), al()]; c.hb = [al(), al()]; c.wb = [al() for _ in range(c.nF)]
        c.VTF = al(); c.VRA = al(); c.VPS = al(2, 4); c.VN = al(2, 2); c.REC = al(20, 4)
        assert c.VPS == 24
        return al
    def dma_setup(c, P, magic, colfn):
        a(f"""
        s_lshl_b32 s{sT0}, s{sW}, 4
        s_add_u32 s{sT0}, s{sT0}, s{sT3}
        s_max_i32 s{sT0}, s{sT0}, 0
        s_mul_i32 s{sXA}, s{sT0}, 1280
        s_sub_u32 s{sXA}, s{sXA}, 128
        s_lshl_b32 s{sT0}, s{sW}, 3
        s_add_u32 s{sT0}, s{sT0}, s{sT3}
        s_mul_i32 s{sXB}, s{sT0}, 1280
        s_add_u32 s{sXB}, s{sXB}, {128*1280-128}
        s_lshl_b32 s{sEM}, s{sW}, 10
        s_add_u32 s{sEM}, s{sEM}, 16384
        v_lshrrev_b32 v{T0}, 3, v{LANE}
        v_mul_u32_u24 v{T0}, 1280, v{T0}
        v_xor_b32 v{T1}, v{G}, v{LANE}
        v_and_b32 v{T1}, 7, v{T1}
        v_lshl_add_u32 v{c.VX[0]}, v{T1}, 4, v{T0}
        v_xor_b32 v{T2}, 64, v{c.VX[0]}
        v_add_u32 v{c.VX[1]}, {8*1280-1024}, v{T2}
        s_and_b32 s{sT0}, s{sW}, 1
        s_lshl_b32 s{sT1}, s{sT0}, 6
        v_xor_b32 v{c.VX[2]}, s{sT1}, v{c.VX[0]}
        s_lshl_b32 s{sT0}, s{sT0}, 2
        s_lshr_b32 s{sT1}, s{sW}, 1
        s_lshl_b32 s{sT1}, s{sT1}, 4
        s_add_u32 s{sT0}, s{sT0}, s{sT1}
        s_mul_i32 s{sKW}, s{sT0}, {c.wrowb}
        s_add_u32 s{sKW}, s{sKW}, s{sWO}
        s_sub_u32 s{sKW}, s{sKW}, {64*c.wrowb}
        s_mov_b32 s{sWM}, -1
        s_mov_b32 s{sWM+1}, 0xffff
        s_mul_i32 s{sWB}, s{sW}, {8*c.wrow}
        s_add_u32 s{sWB}, s{sWB}, {c.xsz}
        """)
        for u in range(c.nW):
            a(f"""
            v_add_u32 v{T0}, {64*u}, v{LANE}
            v_mul_u32_u24 v{T1}, {magic}, v{T0}
            v_lshrrev_b32 v{T1}, 16, v{T1}
            v_mul_u32_u24 v{T2}, {P}, v{T1}
            v_sub_u32 v{T0}, v{T0}, v{T2}
            """)
            colfn()
            a(f"""
            v_and_b32 v{T2}, 4, v{T1}
            v_add_u32 v{T1}, v{T1}, v{T2}
            v_mul_u32_u24 v{T1}, {c.wrowb}, v{T1}
            v_add_u32 v{T0}, v{T0}, v{T1}
            v_subrev_u32 v{c.VW[u]}, {1024*u}, v{T0}
            """)
    def half(groups, young):
        if not groups: return
        lh = a.uid("Lh")
        a(f"s_cmp_ge_u32 s{sW}, 4\ns_cbranch_scc{0 if young else 1} {lh}")
        emit(groups)
        a.label(lh)
    FLD = f"buffer_load_dwordx2 {vr(VFD,2)}, v{VF}, {sr(SFL,4)}, 0 offen sc1"
    def publish(younger, old_extra=0):
        lp, lw1 = a.uid("Lp"), a.uid("Lp")
        if old_extra:
            a(f"s_waitcnt vmcnt({younger+old_extra})\ns_cmp_lt_u32 s{sW}, 4\ns_cbranch_scc1 {lw1}")
        a(f"s_waitcnt vmcnt({younger})")
        a.label(lw1)
        a(f"""
        s_barrier
        s_cmp_lg_u32 s{sW}, 0
        s_cbranch_scc1 {lp}
        v_mov_b32 v{T0}, s{sNON}
        v_mov_b32 v{T1}, s{sNON+1}
        v_mov_b32 v{T2}, {FLB}
        s_mov_b64 exec, 1
        buffer_store_dwordx2 {vr(T0,2)}, v{T2}, {sr(SFL,4)}, s{sHF} offen sc1
        s_mov_b64 exec, -1
        """)
        a.label(lp)
        S(7)
    c = Cfg()
    c.nM, c.nF, c.nh, c.wrow, c.wrowb, c.stg, c.xsz, c.nxm, c.duty = 4, 4, 2, 480, 3840, 49152, 18432, 2, False
    al = alloc_common(c)
    c.acc = [[al(4,4) for i in range(4)] for f in range(4)]
    c.acch = [al(4,4) for f in range(2)]
    lowtop = al.n
    al = Alloc(WREG)
    c.X = [[al(4,4) for i in range(4)] for s in range(2)]
    c.XH = [al(4,4) for s in range(2)]
    c.W = [[al(4,4) for f in range(4)] for s in range(2)]
    assert al.n == 208
    c.early = (list(range(15, 25)) + LA_ + [13, 14])[:nearly]
    a(f"""
    s_lshl_b32 s{sRB}, s{sT0}, 3
    s_and_b32 s{sT3}, s{sT2}, 7
    s_add_u32 s{sRB}, s{sRB}, s{sT3}
    s_lshl_b32 s{sCB}, s{sT1}, 1
    s_lshr_b32 s{sT3}, s{sT2}, 3
    s_add_u32 s{sCB}, s{sCB}, s{sT3}
    s_lshl_b32 s{sT3}, s{sRB}, 7
    s_sub_u32 s{sT3}, s{sT3}, 16
    s_mul_i32 s{sWO}, s{sCB}, 160
    """)
    c.nW = 4; c.ffn = False; c.duty = QD < 10; c.dmask = DMQ
    if QD < 10: a(f"s_cmp_eq_u32 s{sW}, 1\ns_cselect_b32 s{sPG}, s{sPG}, 0\ns_mov_b32 s{sPFO}, {QD*64*3840}")
    dma_setup(c, 30, 2185, lambda: a(f"v_mul_u32_u24 v{T2}, 26, v{T0}\nv_lshrrev_b32 v{T2}, 8, v{T2}\nv_mul_u32_u24 v{T2}, 1120, v{T2}\nv_lshl_add_u32 v{T0}, v{T0}, 4, v{T2}"))
    srd(a, SW, P_WQ, 640*3840)
    a(f"s_add_u32 s{sT0}, s{sRB}, 16\ns_lshl_b32 s{sT0}, s{sT0}, 7\ns_lshl_b32 s{sT1}, s{sCB}, 3\ns_add_u32 s{sHF}, s{sT0}, s{sT1}")
    def q_setup():
        a(f"s_lshr_b32 s{sMH}, s{sW}, 2\ns_and_b32 s{sT0}, s{sW}, 3\ns_lshl_b32 s{sT0}, s{sT0}, 2\ns_lshl_b32 s{sT1}, s{sMH}, 1")
        for f in range(4):
            a(f"s_xor_b32 s{sT2}, s{sT1}, {f}\ns_add_u32 s{sT2}, s{sT2}, s{sT0}\ns_min_u32 s{sNT+f}, s{sT2}, 14")
        a(f"""
        s_mov_b32 s{sMSK}, 0xfffefffe
        s_mov_b32 s{sMSK+1}, 0xfffefffe
        v_lshrrev_b32 v{T0}, 1, v{R}
        v_xor_b32 v{T0}, v{T0}, v{G}
        v_lshlrev_b32 v{T0}, 4, v{T0}
        v_lshl_add_u32 v{T0}, v{R}, 7, v{T0}
        v_add_u32 v{c.hb[0]}, {c.stg}, v{T0}
        v_xor_b32 v{c.hb[1]}, 64, v{c.hb[0]}
        s_lshl_b32 s{sT0}, s{sMH}, 13
        s_add_u32 s{sT0}, s{sT0}, 2048
        v_add_u32 v{c.xb[0]}, s{sT0}, v{c.hb[0]}
        v_add_u32 v{c.xb[1]}, s{sT0}, v{c.hb[1]}
        """)
        rho_local(a, T0, T1)
        a(f"v_mul_u32_u24 v{T0}, 480, v{T0}\nv_and_b32 v{T1}, 3, v{LANE}\nv_lshl_add_u32 v{T0}, v{T1}, 3, v{T0}")
        for f in range(4):
            a(f"s_lshl_b32 s{sT0}, s{sNT+f}, 5\ns_add_u32 s{sT0}, s{sT0}, {c.xsz+c.stg}\nv_add_u32 v{c.wb[f]}, s{sT0}, v{T0}")
        a(f"v_lshlrev_b32 v{c.VRA}, 4, v{R}")
        a(f"""
        s_lshl_b32 s{sT0}, s{sRB}, 7
        s_lshl_b32 s{sT1}, s{sMH}, 6
        s_add_u32 s{sT1}, s{sT1}, s{sT0}
        s_lshl_b32 s{sT1}, s{sT1}, 4
        s_add_u32 s{sRM}, s{sT1}, {STO}
        s_sub_u32 s{sT0}, s{sT0}, 16
        s_max_i32 s{sT0}, s{sT0}, 0
        s_lshl_b32 s{sT0}, s{sT0}, 4
        s_add_u32 s{sRH}, s{sT0}, {STO}
        """)
        for s in range(2):
            for r in range(4): a(f"v_mov_b32 v{c.XH[s]+r}, 0x3f803f80")
    pre_loop(c, q_setup)
    rec = [[f"buffer_load_dwordx4 {vr(c.REC+4*i,4)}, v{c.VRA}, {sr(SFL,4)}, s{sRM} offen offset:{256*i} sc1"] for i in range(4)]
    rec.append([f"buffer_load_dwordx4 {vr(c.REC+16,4)}, v{c.VRA}, {sr(SFL,4)}, s{sRH} offen sc1"])
    CSR = lowtop; CA = 11; WA = 15
    assert CSR + 16 <= WREG and WA + 6 <= c.VTF
    c.tailx = [lines(f"""
        s_lshl_b32 s{sT3}, s{sMH}, 6
        s_add_u32 s{sT3}, s{sT3}, 16
        s_mul_i32 s{sT3}, s{sT3}, {RS}
        v_mul_u32_u24 v{T2}, {RS}, v{R}
        v_lshlrev_b32 v{T3}, 4, v{G}""")]
    for f in range(4):
        c.tailx.append(lines(f"""
        s_lshl_b32 s{sT0}, s{sNT+f}, 6
        s_add_u32 s{sT0}, s{sT0}, {L_CS}
        v_add_u32 v{CA+f}, s{sT0}, v{T3}
        s_mul_i32 s{sT0}, s{sNT+f}, 52
        s_lshr_b32 s{sT0}, s{sT0}, 8
        s_mul_i32 s{sT2}, s{sT0}, 5
        s_sub_u32 s{sT2}, s{sNT+f}, s{sT2}
        s_lshl_b32 s{sT2}, s{sT2}, 2
        s_mul_i32 s{sT0}, s{sT0}, 192
        v_add_u32 v{T0}, s{sT2}, v{G}"""))
        c.tailx.append(lines(f"""
        v_mul_u32_u24 v{T1}, 52, v{T0}
        v_lshrrev_b32 v{T1}, 8, v{T1}
        v_add_u32 v{T0}, v{T0}, v{T1}"""))
        c.tailx.append(lines(f"v_lshl_add_u32 v{T0}, v{T0}, 3, v{T2}") + ([f"v_add_u32 v{WA+4+f}, s{sT0}, v{T0}"] if f < 2 else []) +
                       lines(f"s_add_u32 s{sT0}, s{sT0}, s{sT3}\nv_add_u32 v{WA+f}, s{sT0}, v{T0}"))
    main_loop(a, c, S, "q", rec)
    a(f"s_not_b64 exec, {sr(sMSK,2)}")
    for f in range(2): a(f"ds_write_b128 v{CA+f}, {vr(c.acch[f],4)}")
    a("s_mov_b64 exec, -1")
    a(f"s_waitcnt vmcnt({c.yrec})")
    poll(a, sum(rec, []), [c.REC+4*i+2 for i in range(5)], True)
    S(55)
    a("s_waitcnt lgkmcnt(0)\ns_barrier")
    S(56)
    for f in range(4): a(f"ds_read_b128 {vr(CSR+4*f,4)}, v{CA+f}")
    rest = [p for p in LA_ + list(range(25)) if p not in c.early]
    rg = [wfrag(p) for p in rest]
    I = Inter(a, [], 1000)
    TP = c.VPS
    for f in range(4):
        I(f"s_waitcnt lgkmcnt({3-f if f == 0 else 15})" if f == 0 else "s_nop 0")
        if f == 1: I("s_waitcnt lgkmcnt(5)")
        tl = [(c.acc[f][i], WA+f, i*16*RS, c.REC+4*i) for i in range(4)]
        if f < 2: tl.append((c.acch[f], WA+4+f, 0, c.REC+16))
        for (ac, ad, off, st) in tl:
            I(f"""
            v_pk_mul_f32 {vr(TP,2)}, {vr(CSR+4*f,2)}, {vr(st,2)} op_sel:[0,1] op_sel_hi:[1,1]
            v_pk_mul_f32 {vr(TP+2,2)}, {vr(CSR+4*f+2,2)}, {vr(st,2)} op_sel:[0,1] op_sel_hi:[1,1]
            v_pk_fma_f32 {vr(ac,2)}, {vr(ac,2)}, {vr(st,2)}, {vr(TP,2)} op_sel:[0,0,0] op_sel_hi:[1,0,1]
            v_pk_fma_f32 {vr(ac+2,2)}, {vr(ac+2,2)}, {vr(st,2)}, {vr(TP+2,2)} op_sel:[0,0,0] op_sel_hi:[1,0,1]
            v_cvt_pk_bf16_f32 v{ac}, v{ac}, v{ac+1}
            v_cvt_pk_bf16_f32 v{ac+1}, v{ac+2}, v{ac+3}
            ds_write_b64 v{ad}, {vr(ac,2)} offset:{off}
            """)
    S(57)
    al = Alloc(11)
    AB = al(); OV = al(); OV1 = al(); L31 = al()
    MX = al(); SM_ = al()
    Q = al(12, 2); KB = [al(10, 2) for _ in range(5)]
    L = al(8, 2); PL = al(8); PH = al(8); O = al(20, 2); TPa = al(4)
    assert al.n <= WREG, al.n
    I(f"""
    s_and_b32 s{sT0}, s{sW}, 1
    s_lshr_b32 s{sT3}, s{sW}, 1
    s_lshl_b32 s{sT2}, s{sT3}, 5
    s_add_u32 s{sT2}, s{sT2}, 2
    v_and_b32 v{L31}, 31, v{LANE}
    v_add_u32 v{T0}, s{sT2}, v{L31}
    v_mul_u32_u24 v{T0}, {RS}, v{T0}
    v_lshrrev_b32 v{T1}, 5, v{LANE}
    v_mul_u32_u24 v{T2}, 48, v{T1}
    s_mul_i32 s{sT2}, s{sT0}, 96
    v_add3_u32 v{AB}, v{T0}, v{T2}, s{sT2}
    s_lshl_b32 s{sT2}, s{sCB}, 1
    s_add_u32 s{sT2}, s{sT2}, s{sT0}
    s_mul_i32 s{sT2}, s{sT2}, 5
    v_lshl_add_u32 v{T1}, v{T1}, 1, s{sT2}
    v_bfe_u32 v{T0}, v{LANE}, 4, 1
    v_lshlrev_b32 v{T0}, 10, v{T0}
    v_lshl_add_u32 v{T0}, v{R}, 4, v{T0}
    v_lshrrev_b32 v{T2}, 2, v{T1}
    v_lshl_add_u32 v{T2}, v{T2}, 12, v{T0}
    v_and_b32 v{T3}, 3, v{T1}
    v_lshl_add_u32 v{OV}, v{T3}, 8, v{T2}
    v_add_u32 v{T1}, 1, v{T1}
    v_lshrrev_b32 v{T2}, 2, v{T1}
    v_lshl_add_u32 v{T2}, v{T2}, 12, v{T0}
    v_and_b32 v{T3}, 3, v{T1}
    v_lshl_add_u32 v{OV1}, v{T3}, 8, v{T2}
    s_lshl_b32 s{sKX}, s{sRB}, 1
    s_add_u32 s{sKX}, s{sKX}, s{sMH}
    s_mul_i32 s{sKX}, s{sKX}, {74*4096}
    s_and_b32 s{sT1}, s{sT3}, 1
    s_lshl_b32 s{sT1}, s{sT1}, 11
    s_add_u32 s{sKX}, s{sKX}, s{sT1}
    s_add_u32 s{sT2}, s{sT2}, 4
    s_lshr_b32 s{sKW}, s{sT2}, 2
    s_lshl_b32 s{sKW}, s{sKW}, 12
    s_and_b32 s{sT2}, s{sT2}, 3
    s_lshl_b32 s{sT2}, s{sT2}, 8
    s_add_u32 s{sKW}, s{sKW}, s{sT2}
    s_add_u32 s{sKW}, s{sKW}, s{sKX}
    """)
    a("s_waitcnt lgkmcnt(0)\ns_barrier")
    OV2 = T0
    S(5)
    def rd(dst, off):
        return f"ds_read_b128 {vr(dst,4)}, v{AB} offset:{off}\nds_read_b128 {vr(dst+4,4)}, v{AB} offset:{off+16}\nds_read_b64 {vr(dst+8,2)}, v{AB} offset:{off+32}"
    offs = [(14-2*w)*RS+192 for w in range(8)] + [(14-2*w)*RS+384 for w in range(8)]
    issued = 0
    def issue(n):
        nonlocal issued
        for _ in range(n):
            if issued < 16:
                I(rd(KB[issued % 5], offs[issued])); issued += 1
    def need(idx): I(f"s_waitcnt lgkmcnt({3*(issued-1-idx)})")
    I(rd(Q, 14*RS)); issue(4)
    I.g = list(rg); I.e = qevery
    for w in range(8): I(f"v_mov_b32 v{L+w}, 0")
    for d in range(20): I(f"v_mov_b32 v{O+d}, 0")
    for wp in range(4):
        w0, w1 = 2*wp, 2*wp+1
        need(w1)
        for d in range(10):
            for w in (w0, w1): I(f"v_dot2c_f32_bf16 v{L+w}, v{Q+d}, v{KB[w%5]+d}")
        issue(3 if wp == 0 else 2)
    lm = a.uid("Lm")
    a(f"s_or_b32 s{sT2}, s{sRB}, s{sT3}\ns_cmp_lg_u32 s{sT2}, 0\ns_cbranch_scc1 {lm}")
    a(f"v_mov_b32 v{TPa}, {f32(-1e9)}")
    for w in range(1, 8):
        a(f"v_cmp_le_u32 vcc, {2*w}, v{L31}\ns_nop 1\nv_cndmask_b32 v{L+w}, v{TPa}, v{L+w}, vcc")
    a.label(lm)
    cexp = (20 ** -0.5) * math.log2(math.e)
    I(f"""
    v_max3_f32 v{MX}, v{L}, v{L+1}, v{L+2}
    v_max3_f32 v{SM_}, v{L+3}, v{L+4}, v{L+5}
    v_max3_f32 v{MX}, v{MX}, v{L+6}, v{L+7}
    v_max_f32 v{MX}, v{MX}, v{SM_}
    """)
    for w in range(8): I(f"v_sub_f32 v{L+w}, v{L+w}, v{MX}")
    for w in range(8): I(f"v_mul_f32 v{L+w}, {f32(cexp)}, v{L+w}")
    for w in range(8): I(f"v_exp_f32 v{L+w}, v{L+w}")
    I(f"""
    v_add_f32 v{TPa}, v{L}, v{L+1}
    v_add_f32 v{TPa+1}, v{L+2}, v{L+3}
    v_add_f32 v{TPa+2}, v{L+4}, v{L+5}
    v_add_f32 v{TPa+3}, v{L+6}, v{L+7}
    v_add_f32 v{TPa}, v{TPa}, v{TPa+1}
    v_add_f32 v{TPa+2}, v{TPa+2}, v{TPa+3}
    v_add_f32 v{SM_}, v{TPa}, v{TPa+2}
    v_rcp_f32 v{SM_}, v{SM_}
    s_nop 0
    """)
    for w in range(8): I(f"v_mul_f32 v{L+w}, v{L+w}, v{SM_}")
    for w in range(8): I(f"v_cvt_pk_bf16_f32 v{PL+w}, v{L+w}, 0\nv_cvt_pk_bf16_f32 v{PH+w}, 0, v{L+w}")
    for w in range(8):
        need(8+w)
        for d in range(10):
            I(f"v_dot2c_f32_bf16 v{O+2*d}, v{KB[(8+w)%5]+d}, v{PL+w}\nv_dot2c_f32_bf16 v{O+2*d+1}, v{KB[(8+w)%5]+d}, v{PH+w}")
        issue(1)
    S(58)
    for u in (0,1,2,3,8,9,4,5,6,7): a(f"v_cvt_pk_bf16_f32 v{Q+u}, v{O+2*u}, v{O+2*u+1}")
    a(f"""
    buffer_store_dwordx4 {vr(Q,4)}, v{OV}, {sr(SHO,4)}, s{sKX} offen sc1
    v_permlane32_swap_b32 v{Q+8}, v{Q+10}
    v_permlane32_swap_b32 v{Q+9}, v{Q+11}
    buffer_store_dwordx4 {vr(Q+4,4)}, v{OV1}, {sr(SHO,4)}, s{sKX} offen sc1
    s_mov_b32 exec_hi, 0
    buffer_store_dwordx4 {vr(Q+8,4)}, v{OV2}, {sr(SHO,4)}, s{sKW} offen sc1
    s_mov_b64 exec, -1
    """)
    S(6)
    if NB: a("s_barrier")
    qleft = I.g + [wfrag(p) for p in LB]
    sp = 'spoll' in EXP or 'nofld' in EXP
    if not sp: a(FLD)
    emit(qleft[:NB])
    publish(NB+(not sp))
    def tail_loads(gr):
        if LP is None: emit(gr); return
        k = max(len(gr)-LP, 0)
        emit(gr[:k]); a(FLD); emit(gr[k:]); a(f"s_waitcnt vmcnt({len(gr)-k})")
    tail_loads(qleft[NB:])
    if not sp: a(f"s_waitcnt vmcnt({len(qleft)})")
    a("s_branch Lphase2")
    a.label("Lffn")
    side_loads(a, stat=False)
    a(f"s_and_b32 s{sT0}, s2, 1\ns_bfe_u32 s{sT1}, s2, 0x20001\ns_lshr_b32 s{sT2}, s2, 3")
    if QD < 10: a(f"s_cmp_eq_u32 s{sW}, 1\ns_cselect_b32 s{sPG}, {QD*64*3840}, s{sPG}")
    c = Cfg()
    c.nM, c.nF, c.nh, c.wrow, c.wrowb, c.stg, c.xsz, c.nxm, c.duty = 5, 3, 0, 384, 3456, 49152, 20480, 4, True
    al = alloc_common(c)
    B1 = al(8, 2)
    c.acc = [[al(4,4) for i in range(5)] for f in range(3)]
    lowtop = al.n
    eal = al
    al = Alloc(WREG)
    c.X = [[al(4,4) for i in range(5)] for s in range(2)]
    c.W = [[al(4,4) for f in range(3)] for s in range(2)]
    assert al.n <= 208
    c.early = (list(range(15, 25)) + LA_ + [13, 14])[:nearly]
    a(f"""
    s_sub_u32 s{sT2}, s{sT2}, 16
    s_lshl_b32 s{sT1}, s{sT1}, 4
    s_add_u32 s{sT1}, s{sT1}, s{sT2}
    s_cmp_ge_u32 s{sT1}, 63
    s_cbranch_scc1 Lidle
    s_mul_i32 s{sCB}, s{sT1}, 37
    s_lshr_b32 s{sCB}, s{sCB}, 8
    s_sub_u32 s{sT3}, s{sCB}, s{sT0}
    s_mul_i32 s{sT3}, s{sT3}, 7
    s_sub_u32 s{sRB}, s{sT1}, s{sT3}
    s_mul_i32 s{sT3}, s{sRB}, {FROWS}
    s_mul_i32 s{sWO}, s{sCB}, 384
    """)
    c.nW = 3; c.ffn = True; c.dmask = DMASK
    dma_setup(c, 24, 2731, lambda: a(f"v_and_b32 v{T2}, 6, v{T1}\nv_xor_b32 v{T0}, v{T0}, v{T2}\nv_lshlrev_b32 v{T0}, 4, v{T0}"))
    srd(a, SW, P_W1, 640*3456)
    srd(a, SWT, P_B1, 3456)
    a(f"s_lshl_b32 s{sT0}, s{sRB}, 7\ns_lshl_b32 s{sT1}, s{sCB}, 3\ns_add_u32 s{sHF}, s{sT0}, s{sT1}")
    RHO = c.hb[0]
    def f_setup():
        a(f"""
        s_lshr_b32 s{sMH}, s{sW}, 2
        s_bfe_u32 s{sT0}, s{sW}, 0x10001
        s_and_b32 s{sT1}, s{sW}, 1
        s_mul_i32 s{sT0}, s{sT0}, 6
        s_lshl_b32 s{sT2}, s{sT1}, 2
        s_add_u32 s{sNT}, s{sT0}, s{sT2}
        s_add_u32 s{sNT+1}, s{sNT}, 1
        s_add_u32 s{sNT+2}, s{sT0}, s{sT1}
        s_add_u32 s{sNT+2}, s{sNT+2}, 2
        s_cmp_eq_u32 s{sMH}, 0
        s_cselect_b32 s{sMSK}, -1, 0x7fff7fff
        s_cselect_b32 s{sMSK+1}, -1, 0x7fff7fff
        v_lshrrev_b32 v{T0}, 1, v{R}
        v_xor_b32 v{T0}, v{T0}, v{G}
        v_lshlrev_b32 v{T0}, 4, v{T0}
        v_lshl_add_u32 v{T0}, v{R}, 7, v{T0}
        s_mul_i32 s{sT0}, s{sMH}, {5*2048}
        s_add_u32 s{sT0}, s{sT0}, {c.stg}
        v_add_u32 v{c.xb[0]}, s{sT0}, v{T0}
        v_xor_b32 v{c.xb[1]}, 64, v{c.xb[0]}
        """)
        rho_local(a, T0, T1)
        a(f"""
        v_bfe_u32 v{T2}, v{T0}, 1, 2
        v_mul_u32_u24 v{T0}, 384, v{T0}
        v_and_b32 v{T1}, 3, v{LANE}
        v_lshl_add_u32 v{T0}, v{T1}, 3, v{T0}
        v_add_u32 v{T0}, {c.xsz+c.stg}, v{T0}
        """)
        for f in range(3):
            a(f"v_xor_b32 v{T1}, s{sNT+f}, v{T2}\nv_lshl_add_u32 v{c.wb[f]}, v{T1}, 5, v{T0}")
        a(f"""
        s_mul_i32 s{sT0}, s{sRB}, {FROWS}
        s_mul_i32 s{sT1}, s{sMH}, 80
        s_add_u32 s{sT0}, s{sT0}, s{sT1}
        v_add_u32 v{RHO}, s{sT0}, v{R}
        v_lshlrev_b32 v{T0}, 4, v{RHO}
        v_add_u32 v{c.VRA}, {STO}, v{T0}
        """)
        for s in range(2):
            for r in range(4): a(f"v_mov_b32 v{c.X[s][4]+r}, 0x3f803f80")
        a(f"v_lshlrev_b32 v{T0}, 3, v{G}\ns_mul_i32 s{sT2}, s{sCB}, 384")
        for f in range(3):
            a(f"s_lshl_b32 s{sT1}, s{sNT+f}, 5\ns_add_u32 s{sT1}, s{sT1}, s{sT2}")
            a(f"buffer_load_dwordx2 {vr(B1+2*f,2)}, v{T0}, {sr(SWT,4)}, s{sT1} offen")
    pre_loop(c, f_setup)
    rec = [[f"v_add_u32 v{T3}, {256*i}, v{c.VRA}", f"v_min_u32 v{T3}, {STO+2047*16}, v{T3}",
            f"buffer_load_dwordx4 {vr(c.REC+4*i,4)}, v{T3}, {sr(SFL,4)}, 0 offen sc1"] for i in range(5)]
    CA = 17
    c.tailx = [[f"v_lshlrev_b32 v{T3}, 4, v{G}"]] + [lines(f"s_lshl_b32 s{sT0}, s{sNT+f}, 6\ns_add_u32 s{sT0}, s{sT0}, {L_CS}\nv_add_u32 v{CA+f}, s{sT0}, v{T3}") for f in range(3)]
    main_loop(a, c, S, "f", rec)
    a(f"s_waitcnt vmcnt({c.yrec})")
    poll(a, sum(rec, []), [c.REC+4*i+2 for i in range(5)], True)
    lc = a.uid("Lc")
    a(f"s_cmp_eq_u32 s{sMH}, 0\ns_cbranch_scc1 {lc}\ns_not_b64 exec, {sr(sMSK,2)}")
    for f in range(3): a(f"ds_write_b128 v{CA+f}, {vr(c.acc[f][4],4)}")
    a("s_mov_b64 exec, -1\ns_waitcnt lgkmcnt(0)")
    a.label(lc)
    a("s_barrier")
    CC = c.VPS; VA = 11
    CSR = eal(12, 2); TT = [eal(2,2) for _ in range(4)] + [12, B1+6]
    assert eal.n <= WREG, eal.n
    for f in range(3): a(f"ds_read_b128 {vr(CSR+4*f,4)}, v{CA+f}")
    BFp = [c.REC+4*i+2 for i in range(5)] + [B1+4]
    OUTP = [B1, 16]; SG = 20
    assert RHO == 15
    rest = [p for p in list(range(25)) + LA_ + LB if p not in c.early]
    rg = [wfrag(p) for p in rest]
    F1, F2 = rg[:fn1], rg[fn1:]
    I = Inter(a, [], 1000)
    if fevery:
        I = Inter(a, F1, fevery); F1 = []
    half(F1, True)
    c0 = -2*math.sqrt(2/math.pi)*math.log2(math.e); c1 = c0*0.044715
    for j in range(5): I(f"v_lshlrev_b32 v{BFp[j]}, 16, v{B1+j}\nv_and_b32 v{BFp[j]+1}, 0xffff0000, v{B1+j}")
    I(f"v_lshlrev_b32 v{B1+4}, 16, v{B1+5}\nv_and_b32 v{B1+5}, 0xffff0000, v{B1+5}")
    I(f"v_mov_b32 v{CC}, {f32(c0)}\nv_mov_b32 v{CC+1}, {f32(c1)}\nv_mov_b32 v{CC+2}, 1.0")
    I(f"""
    v_and_b32 v{T2}, 15, v{RHO}
    v_lshlrev_b32 v{T2}, 4, v{T2}
    v_lshl_add_u32 v{T1}, v{G}, 8, v{T2}
    v_and_b32 v{T3}, 1, v{G}
    v_lshl_add_u32 v14, v{T3}, 8, v{T2}
    v_lshrrev_b32 v{T0}, 4, v{RHO}
    v_lshrrev_b32 v{T3}, 5, v{LANE}
    v_add_u32 v{RHO}, v{T0}, v{T3}
    s_mul_i32 s{sT2}, s{sCB}, 6
    s_add_u32 s{sT2}, s{sT2}, 20
    s_lshr_b32 s{sT0}, s{sNT}, 1
    s_add_u32 s{sT0}, s{sT0}, s{sT2}
    s_lshl_b32 s{sKX}, s{sT0}, 12
    s_lshr_b32 s{sT0}, s{sNT+2}, 1
    s_add_u32 s{sT0}, s{sT0}, s{sT2}
    s_lshl_b32 s{sKW}, s{sT0}, 12
    s_and_b32 s{sT0}, s{sNT+2}, 1
    s_lshl_b32 s{sT0}, s{sT0}, 9
    s_add_u32 s{sKW}, s{sKW}, s{sT0}
    s_mov_b32 s{sT3}, {74*4096}
    s_waitcnt lgkmcnt(0)
    """)
    a(f"s_cmp_eq_u32 s{sMH}, 0\ns_cselect_b32 s{sMSK}, -1, 0x00ff00ff\ns_mov_b32 s{sMSK+1}, s{sMSK}")
    def gelu_pair(h, cs, b, st, t, dst):
        return [f"v_pk_fma_f32 {vr(t,2)}, {vr(cs,2)}, {vr(st,2)}, {vr(b,2)} op_sel:[0,1,0] op_sel_hi:[1,1,1]",
                f"v_pk_fma_f32 {vr(h,2)}, {vr(h,2)}, {vr(st,2)}, {vr(t,2)} op_sel:[0,0,0] op_sel_hi:[1,0,1]",
                f"v_pk_mul_f32 {vr(t,2)}, {vr(h,2)}, {vr(h,2)}",
                f"v_pk_fma_f32 {vr(t,2)}, {vr(t,2)}, {vr(CC,2)}, {vr(CC,2)} op_sel:[0,1,0] op_sel_hi:[1,1,0]",
                f"v_pk_mul_f32 {vr(t,2)}, {vr(t,2)}, {vr(h,2)}",
                f"v_exp_f32 v{t}, v{t}",
                f"v_exp_f32 v{t+1}, v{t+1}",
                f"v_pk_add_f32 {vr(t,2)}, {vr(t,2)}, {vr(CC+2,2)} op_sel_hi:[1,0]",
                f"v_rcp_f32 v{t}, v{t}",
                f"v_rcp_f32 v{t+1}, v{t+1}",
                f"v_pk_mul_f32 {vr(t,2)}, {vr(t,2)}, {vr(h,2)}",
                f"v_cvt_pk_bf16_f32 v{dst}, v{t}, v{t+1}"]
    def blkaddr(dst, tile, low):
        I(f"""
        v_lshrrev_b32 v{T2}, 2, v{tile}
        v_mul_lo_u32 v{T2}, v{T2}, s{sT3}
        v_and_b32 v{T3}, 3, v{tile}
        v_lshl_add_u32 v{T2}, v{T3}, 10, v{T2}
        v_add_u32 v{dst}, v{T2}, v{low}
        """)
    for i in range(5):
        o = OUTP[i & 1]
        streams = [gelu_pair(c.acc[f][i]+2*hp, CSR+4*f+2*hp, BFp[2*f+hp], c.REC+4*i, TT[2*f+hp],
                             (o+2*f+hp) if f < 2 else (SG+2*(i&1)+hp)) for f in range(3) for hp in range(2)]
        for k in range(len(streams[0])):
            for s in streams: I(s[k])
        blkaddr(VA, T0, T1)
        I(f"v_add_u32 v{T0}, 1, v{T0}")
        if i == 4: a(f"s_mov_b64 exec, {sr(sMSK,2)}")
        a(f"buffer_store_dwordx4 {vr(o,4)}, v{VA}, {sr(SHO,4)}, s{sKX} offen sc1")
        if i == 4: a("s_mov_b64 exec, -1")
        if i & 1 or i == 4:
            a(f"v_permlane32_swap_b32 v{SG}, v{SG+2}\nv_permlane32_swap_b32 v{SG+1}, v{SG+3}")
            blkaddr(VA, RHO, 14)
            I(f"v_add_u32 v{RHO}, 2, v{RHO}")
            if i == 4: a(f"s_mov_b32 exec_lo, s{sMSK}\ns_mov_b32 exec_hi, 0")
            a(f"buffer_store_dwordx4 {vr(SG,4)}, v{VA}, {sr(SHO,4)}, s{sKW} offen sc1")
            if i == 4: a("s_mov_b64 exec, -1")
    S(6)
    F2 = I.g + F2
    half(F1, False)
    if not sp: a(FLD)
    nb = min(len(F2)-1, NB)
    assert nb >= 0
    emit(F2[:nb])
    publish(nb+(not sp), len(F1))
    tail_loads(F2[nb:])
    if not sp: a(f"s_waitcnt vmcnt({len(F2)})")
    a("s_branch Lphase2")
    a.label("Lidle")
    late_srds()
    emit([duty(a, 6, False)])
    p2_setup(a, 11)
    a("s_waitcnt vmcnt(0)")
    t_work(a)
    a(f"v_mov_b32 v14, 0\nv_mov_b32 v15, 0\ns_waitcnt vmcnt(0)\ns_barrier")
    nonce_get(a, 14, 12)
    poll(a, [f"buffer_load_dwordx2 v[14:15], v11, {sr(SFL,4)}, 0 offen sc1"], [14], False)
    for l in p2_ldsbases(): a(l)
    emit([wfrag(p) for p in c.early + rest])
    a(f"v_mov_b32 v{VFD}, 0\nv_mov_b32 v{VFD+1}, 0")
    a.label("Lphase2")
    al = Alloc(12)
    al(2, 2); VLA = al(); VLB = al()
    acc = [[al(4,4) for m in range(4)] for n in range(5)]
    BUF = [al(16, 4), al(16, 4), WREG]
    XR = al(6, 2)
    B2 = [al(2, 2), WREG+16, WREG+18]
    assert al.n <= WREG, al.n
    S(8)
    if 'spoll' in EXP:
        l0, l1 = a.uid("Lsp"), a.uid("Lsp")
        a(f"v_readlane_b32 s{sPFO}, v{VF}, 0\nv_readlane_b32 s{sPFS}, v{VF}, 2\ns_mov_b32 s{sSP}, 0\ns_nop 3")
        a.label(l0)
        a(f"""
        s_buffer_load_dwordx4 s[12:15], {sr(SFL,4)}, s{sPFO} glc
        s_buffer_load_dwordx4 {sr(STMP,4)}, {sr(SFL,4)}, s{sPFS} glc
        s_add_u32 s{sSP}, s{sSP}, 1
        s_cmp_gt_u32 s{sSP}, 400000
        s_cbranch_scc1 {l1}
        s_waitcnt lgkmcnt(0)
        s_cmp_lg_u64 s[12:13], {sr(sNON,2)}
        s_cbranch_scc1 {l0}
        s_cmp_lg_u64 s[14:15], {sr(sNON,2)}
        s_cbranch_scc1 {l0}
        s_cmp_lg_u64 {sr(STMP,2)}, {sr(sNON,2)}
        s_cbranch_scc1 {l0}
        s_cmp_lg_u64 {sr(STMP+2,2)}, {sr(sNON,2)}
        s_cbranch_scc1 {l0}
        """)
        a.label(l1)
        a("s_waitcnt lgkmcnt(0)")
    elif 'nopoll' not in EXP: poll(a, [FLD], [VFD], 'nofld' not in EXP or LP is not None, SLEEP)
    S(9)
    RS_ = [WR0+20*t for t in range(5)]
    abuf = {u: BUF[u % 3] for u in range(9)}; abuf[9] = RS_[0]
    wloc = {u: RS_[u] for u in range(5)}
    wloc.update({5: RS_[0], 6: RS_[1], 7: RS_[2], 8: RS_[3], 9: RS_[4]})
    def aload(t):
        g = [[f"buffer_load_dwordx4 {vr(abuf[t]+4*m,4)}, v{VL}, {sr(SPF,4)}, s{sT3} offen offset:{1024*m} sc1"] for m in range(4)]
        g[0] = [f"s_lshl_b32 s{sT3}, s{sK+t}, 12"] + g[0]
        return g
    ops = []
    for t in (0, 1, 2): emit(aload(t)); ops += [t]*4
    SOX, SOB = [sKX, sKW, sDELTA], [sSLOT, sW1K, sMH]
    setup = [lines(f"v_add_u32 v{VLA}, s{sFILL}, v{VL}\nv_add_u32 v{VLB}, s{sFW}, v{VL}\ns_mul_i32 s{sT0}, s{sC2}, 160")]
    for j in range(3):
        setup += chunks(lines(f"""
        s_add_u32 s{sT1}, s{sW}, {8*j}
        s_mul_i32 s{sT2}, s{sT1}, 52
        s_lshr_b32 s{sT2}, s{sT2}, 8
        s_mul_i32 s{sT3}, s{sT2}, 5
        s_sub_u32 s{sT1}, s{sT1}, s{sT3}
        s_lshl_b32 s{sT1}, s{sT1}, 5
        s_mul_i32 s{sT2}, s{sT2}, 20480
        s_add_u32 s{SOX[j]}, s{sT2}, s{sT1}
        s_add_u32 s{SOB[j]}, s{sT0}, s{sT1}
        """), 3)
    for d, p, sz in ((STMP, P_B2, 1280), (SW, P_OUT, XB)):
        setup += [[f"s_mov_b32 s{d}, s{p}", f"s_mov_b32 s{d+1}, s{p+1}"], [f"s_mov_b32 s{d+2}, {sz}", f"s_mov_b32 s{d+3}, 0x00020000"]]
    setup.append([f"v_lshlrev_b32 v{T1}, 3, v{G}"])
    def pw(n, m):
        q = m*5+n
        ad, off = (VLA, q*1024) if q < 8 else (VLB, (q-8)*1024)
        return f"ds_write_b128 v{ad}, {vr(acc[n][m],4)} offset:{off}"
    def sonly(groups):
        lab = a.uid("Lso")
        return [f"s_cmp_ge_u32 s{sW}, 2", f"s_cbranch_scc1 {lab}"] + sum(groups, []) + [lab + ":"]
    tl = [(n, m) for n in range(5) for m in range(4)]
    for t in (0, 1, 2, 3, 4, 5, 6, 7, 9, 8):
        if t == 9:
            a(f"s_cmp_ge_u32 s{sW}, 2\ns_cbranch_scc1 Lp2skip")
            a(f"s_waitcnt vmcnt(6)")
        else:
            if t == 8: a.label("Lp2skip")
            younger = len(ops) - 1 - max(i for i, o in enumerate(ops) if o == t)
            a(f"s_waitcnt vmcnt({younger})" + (" lgkmcnt(0)" if t == 5 else ""))
        M = [mfma(acc[n][m], wloc[t]+4*n, abuf[t]+4*m, t == 0) for (n, m) in tl]
        items = []
        if t == 0: items += even(setup, 20, 0)
        if 1 <= t <= 6:
            items += [(0+5*k, g) for k, g in enumerate(aload(t+2))]; ops += [t+2]*4
        if 1 <= t <= 4:
            for n in range(5):
                phi = (t+4)*5+n
                ad, off = (VLA, (phi-25)*1024) if phi < 33 else (VLB, (phi-33)*1024)
                items.append((2+4*n, [f"ds_read_b128 {vr(wloc[t+4]+4*n,4)}, v{ad} offset:{off}"]))
        if t == 5: items.append((18, sonly([wfrag(45+n, wloc[9]+4*n) for n in range(5)])))
        if t == 6: items.append((18, sonly(aload(9))))
        if t == 7:
            for j in range(3): items.append((1+6*j, [f"buffer_load_dwordx2 {vr(XR+2*j,2)}, v{VXO}, {sr(SX,4)}, s{SOX[j]} offen"])); ops.append('x')
            for j in range(3): items.append((4+6*j, [f"buffer_load_dwordx2 {vr(B2[j],2)}, v{T1}, {sr(STMP,4)}, s{SOB[j]} offen"])); ops.append('b')
        if t == 8: items += [(k, [pw(*tl[k-8])]) for k in range(8, 20)]
        for l in spread(M, items): a(l)
        if t == 8:
            a("s_nop 0")
            for k in range(12, 20): a(pw(*tl[k]))
        if t != 8 and 'p2st' in EXP: S(40+t)
    a(f"""
    s_lshl_b32 s{sT0}, s{sW}, 10
    v_add_u32 v{T0}, s{sT0}, v{VL}
    v_add_u32 v{T2}, {L_A}, v{T0}
    v_add_u32 v{T3}, {4*12288}, v{T0}
    """)
    S(52)
    a("s_waitcnt lgkmcnt(0)\ns_barrier")
    S(53)
    P = [[acc[0][0] + (j*8+s)*4 for s in range(8)] for j in range(3)]
    assert P[2][7]+4 <= XR
    def rdtile(j):
        for s in range(8):
            if j == 0: ad, off = T2, s*8192
            else: ad, off = (T0 if s < 4 else T3), (s%4)*12288 + (j-1)*8192
            a(f"ds_read_b128 {vr(P[j][s],4)}, v{ad} offset:{off}")
    L2E = f32(-math.log2(math.e))
    def fin(j):
        o = []
        p = P[j]
        Sx, Y, Z = p[0], p[2], p[3]
        for h in (0, 2):
            for k in (0, 2, 4, 6): o.append(f"v_pk_add_f32 {vr(p[k]+h,2)}, {vr(p[k]+h,2)}, {vr(p[k+1]+h,2)}")
        def unp(x, q):
            return lines(f"v_lshlrev_b32 v{x}, 16, v{q}\nv_and_b32 v{x+1}, 0xffff0000, v{q}\nv_lshlrev_b32 v{x+2}, 16, v{q+1}\nv_and_b32 v{x+3}, 0xffff0000, v{q+1}")
        o += unp(Z, B2[j])
        for h in (0, 2):
            o.append(f"v_pk_add_f32 {vr(p[2]+h,2)}, {vr(p[2]+h,2)}, {vr(p[4]+h,2)}")
            o.append(f"v_pk_add_f32 {vr(p[6]+h,2)}, {vr(p[6]+h,2)}, {vr(Z+h,2)}")
        for h in (0, 2): o.append(f"v_pk_add_f32 {vr(Y+h,2)}, {vr(Y+h,2)}, {vr(p[6]+h,2)}")
        for r in range(4): o.append(f"v_mul_f32 v{Z+r}, {L2E}, v{Y+r}")
        for r in range(4): o.append(f"v_exp_f32 v{Z+r}, v{Z+r}")
        for r in range(4): o.append(f"v_add_f32 v{Z+r}, 1.0, v{Z+r}")
        for r in range(4): o.append(f"v_rcp_f32 v{Z+r}, v{Z+r}")
        for h in (0, 2): o.append(f"v_pk_mul_f32 {vr(Y+h,2)}, {vr(Y+h,2)}, {vr(Sx+h,2)}")
        o += unp(p[4], XR+2*j)
        for r in range(4): o.append(f"v_fma_f32 v{Y+r}, v{Y+r}, v{Z+r}, v{p[4]+r}")
        o += [f"v_cvt_pk_bf16_f32 v{Sx}, v{Y}, v{Y+1}", f"v_cvt_pk_bf16_f32 v{Sx+1}, v{Y+2}, v{Y+3}",
              f"buffer_store_dwordx2 {vr(Sx,2)}, v{VXO}, {sr(SW,4)}, s{SOX[j]} offen {OSF}"]
        return o
    rdtile(0); rdtile(1)
    l3 = a.uid("L3")
    a(f"s_cmp_ge_u32 s{sW}, 4\ns_cbranch_scc1 {l3}")
    rdtile(2)
    a("s_waitcnt vmcnt(0) lgkmcnt(8)")
    for x, y in zip(fin(0), fin(1)): a(x); a(y)
    a("s_waitcnt lgkmcnt(0)")
    for x in fin(2): a(x)
    a("s_branch Lfin")
    a.label(l3)
    a("s_waitcnt vmcnt(0) lgkmcnt(0)")
    for x, y in zip(fin(0), fin(1)): a(x); a(y)
    a.label("Lfin")
    S.finish(54)
    a.label("Lend")
    a("s_endpgm")
    ref = open(f"cdna_kernels/{NAME}.s.ref").read().split("\n")
    hdr = [l for l in ref if l.startswith(";") and "@launch" not in l]
    out = "\n".join(hdr) + f"\n; @launch grid=(256,1,1) block=(512,1,1) lds={LDS_TOTAL}\n"
    out += '.amdgcn_target "amdgcn-amd-amdhsa--gfx950"\n' + khead(name) + a.text() + kd(name, 256, 102)
    return out

if __name__ == "__main__":
    path = sys.argv[1]
    kw = eval("dict(" + (sys.argv[2] if len(sys.argv) > 2 else "") + ")")
    open(path, "w").write(gen(**kw))
```

```python
from asmlib import *
import math, sys
NAME = "recurrent_scan__sliding_local_dilated__dense_activation_gelu__prompt"
XB = 2048*640*2
HO_SZ = 32*74*4096
WT_OFF, WT_SZ = 0xB00000, 8*74*5*1024
FLB = 0x400000
TFO, STO = FLB+0x1000, FLB+0x4000
FL_SZ = FLB + 0x10000
BIG = 0x7ff00000
RS = 592
L_TST, L_CS, L_A = 147456, 88064, 98304
LA_ = list(range(25, 33)); LB = [33, 34] + list(range(36, 45)) + [35]
WR0 = 156
VFD = 12
LDS_TOTAL = 163840
FROWS = 152

SX, SW, SHO, SPF, SWT, SFL, SDBG, STMP = 4, 8, 16, 20, 24, 28, 32, 36
sXA, sXB, sEM, sWO = 12, 13, 14, 15
P_X, P_WQ, P_WO, P_W1, P_B1, P_W2, P_B2, P_OUT, P_DBG, P_WS = 40, 42, 44, 48, 50, 52, 54, 56, 58, 60
(sW, sRB, sCB, sI, sKX, sKW, sTM, sFILL, sDELTA, sSLOT, sW1K, sT0, sT1, sT2, sT3, sMH) = range(62, 78)
sNT = 78; sNON = 82; sMSK = 84; sR2, sC2 = 50, 51; sK = 88; sSP = 98; sN2 = 99
sWM = 100
sFW, sWB = 3, 47
sTB = 42
sHF = 43
sPFO, sPFS, sPG = 46, 86, 87
sRM, sRH = 48, 49
sTS = [44, 45, 52, 53]
VF, LANE, G, R, T0, T1, T2, T3, VST, VL, VXO = 0, 1, 2, 3, 4, 5, 6, 7, 8, 9, 10
WREG = 136
SIDE = 232
RT = 5; SLI = 3; MAP2 = 81; ROTA = 2; EXP = set(); PFF = ""; DN = 2; DMASK = 0b101; DPRE = 2; SP = dict(tw=1, nonce=3, sl=3, sw=5, tf=5); TFL = "nt"; RECIT = 9

def mfma(d, a_, b_, c0=False): return f"v_mfma_f32_16x16x32_bf16 {vr(d,4)}, {vr(a_,4)}, {vr(b_,4)}, " + ("0" if c0 else vr(d,4))
def chunks(l, n): return [l[i:i+n] for i in range(0, len(l), n)]
def merge(groups, n): return [sum(g, []) for g in chunks(groups, n)]
def lines(t): return [l.strip() for l in t.strip("\n").split("\n") if l.strip()]
def srd(a, d, p, size, off=None):
    if off is None: a(f"s_mov_b32 s{d}, s{p}\ns_mov_b32 s{d+1}, s{p+1}")
    else: a(f"s_add_u32 s{d}, s{p}, {off}\ns_addc_u32 s{d+1}, s{p+1}, 0")
    a(f"s_mov_b32 s{d+2}, {size}\ns_mov_b32 s{d+3}, 0x00020000")

class St:
    def __init__(s, a, on): s.a, s.on = a, on
    def start(s):
        if s.on: s.a(f"s_memtime s[0:1]\nv_mov_b32 v{VST}, 0\ns_waitcnt lgkmcnt(0)\nv_writelane_b32 v{VST}, s0, 59\nv_writelane_b32 v{VST}, s94, 0\nv_writelane_b32 v{VST}, s96, 62")
    def __call__(s, i):
        if s.on: s.a(f"s_memtime s[0:1]\ns_waitcnt lgkmcnt(0)\nv_writelane_b32 v{VST}, s0, {i}")
    def dyn(s, base):
        if s.on and ((base == 30 and 'nobar' not in EXP) or 'lst' in EXP):
            s.a(f"s_memtime s[0:1]\ns_add_u32 m0, s{sI}, {base}\ns_waitcnt lgkmcnt(0)\nv_writelane_b32 v{VST}, s0, m0")
    def finish(s, i):
        if not s.on: return
        s.a(f"""
        s_waitcnt vmcnt(0)
        s_memtime s[0:1]
        s_waitcnt lgkmcnt(0)
        v_writelane_b32 v{VST}, s0, {i}
        s_memrealtime s[0:1]
        s_waitcnt lgkmcnt(0)
        v_writelane_b32 v{VST}, s0, 63
        s_lshl_b32 s3, s2, 3
        s_add_u32 s3, s3, s{sW}
        s_lshl_b32 s3, s3, 8
        s_add_u32 s3, s3, {STAMP_OFF}
        s_add_u32 s{STMP}, s{P_WS}, s3
        s_addc_u32 s{STMP+1}, s{P_WS+1}, 0
        s_mov_b32 s{STMP+2}, 256
        s_mov_b32 s{STMP+3}, 0x00020000
        v_lshlrev_b32 v{T0}, 2, v{LANE}
        buffer_store_dword v{VST}, v{T0}, {sr(STMP,4)}, 0 offen
        """)
class Cfg: inloop = False

def wld(c, u):
    ld = f"buffer_load_dwordx4 v{c.VW[u]}, {sr(SW,4)}, s{sKW} offen offset:{1024*u} lds"
    return [f"s_mov_b64 exec, {sr(sWM,2)}", ld, "s_mov_b64 exec, -1"] if u == 3 else [ld]
def dmaA(c, a):
    lab = a.uid("Lsk")
    return [[f"s_add_u32 m0, s{sFILL}, s{sW1K}", f"s_add_u32 s{sXA}, s{sXA}, 128"],
            [f"buffer_load_dwordx4 v{c.VX[0]}, {sr(SX,4)}, s{sXA} offen lds"],
            [f"buffer_load_dwordx4 v{c.VX[1]}, {sr(SX,4)}, s{sXA} offen offset:1024 lds"],
            [f"s_cbranch_vccz {lab}", f"s_add_u32 m0, s{sFILL}, s{sEM}", f"s_add_u32 s{sXB}, s{sXB}, 128",
             f"buffer_load_dwordx4 v{c.VX[2]}, {sr(SX,4)}, s{sXB} offen lds", lab + ":"],
            [f"s_add_u32 m0, s{sFILL}, s{sWB}", f"s_add_u32 s{sKW}, s{sKW}, {64*c.wrowb}"]] + ([wld(c, 0)] if c.nW == 4 else [])
def dmaB(c, a): return [wld(c, u) for u in range(c.nW-3, c.nW)]
def guard(a, groups, old):
    out = []
    for g in groups:
        lab = a.uid("Lg")
        out.append([f"s_cbranch_vcc{'z' if old else 'nz'} {lab}"] + g + [lab + ":"])
    return out
SETVCC = None
def reads(c, st, s):
    r = []
    if 'xrd' in EXP and c.inloop: return [['s_nop 0']]
    for i in range(c.nM):
        ins = f"ds_read_b128 {vr(c.X[st][i],4)}, v{c.xb[s]} offset:{i*2048}"
        if (not c.nh) and i == c.nM-1: r.append([f"s_mov_b64 exec, {sr(sMSK,2)}", ins, "s_mov_b64 exec, -1"])
        else: r.append([ins])
    if c.nh: r.append([f"s_mov_b64 exec, {sr(sMSK,2)}", f"ds_read_b128 {vr(c.XH[st],4)}, v{c.hb[s]}", "s_mov_b64 exec, -1"])
    for f in range(c.nF):
        r.append([f"ds_read_b64_tr_b16 {vr(c.W[st][f],2)}, v{c.wb[f]} offset:{s*32*c.wrow}"])
        r.append([f"ds_read_b64_tr_b16 {vr(c.W[st][f]+2,2)}, v{c.wb[f]} offset:{s*32*c.wrow+8*c.wrow}"])
    return r
def mfmas(c, st, c0=False):
    m = []
    for f in range(c.nF):
        for i in range(c.nM): m.append(mfma(c.acc[f][i], c.W[st][f], c.X[st][i], c0))
        if f < c.nh: m.append(mfma(c.acch[f], c.W[st][f], c.XH[st], c0))
    return m
def spread(main, items):
    out = []
    for i, m in enumerate(main):
        out.append(m)
        for p, g in items:
            if p == i or (i == len(main)-1 and p > i): out.extend(g)
    return out
def even(groups, n, lo=1):
    k = len(groups)
    return [(lo + (j*(n-lo))//k, g) for j, g in enumerate(groups)] if k else []

def stat_row(a):
    a(f"""
    s_and_b32 s{sT0}, s2, 1
    s_lshl_b32 s{sT0}, s{sT0}, 10
    s_bfe_u32 s{sT2}, s2, 0x20001
    s_lshl_b32 s{sT2}, s{sT2}, 8
    s_add_u32 s{sT0}, s{sT0}, s{sT2}
    s_and_b32 s{sT2}, s2, 0x78
    s_lshl_b32 s{sT2}, s{sT2}, 1
    s_add_u32 s{sT0}, s{sT0}, s{sT2}
    s_sub_u32 s{sT2}, s{sW}, 4
    s_lshl_b32 s{sT2}, s{sT2}, 2
    s_add_u32 s{sT0}, s{sT0}, s{sT2}
    """)
def nonce_get(a, vN, vPS, flag=True):
    l0, l1, l2, l3 = a.uid("Lno"), a.uid("Lno"), a.uid("Lno"), a.uid("Lno")
    assert vN == vPS + 2 and vPS % 2 == 0
    a(f"s_mov_b32 s{sSP}, 0")
    a.label(l0)
    a(f"""
    v_readfirstlane_b32 s{sNON}, v{vN}
    v_readfirstlane_b32 s{sNON+1}, v{vN+1}
    s_add_u32 s{sSP}, s{sSP}, 1
    s_cmp_gt_u32 s{sSP}, 100000
    s_cbranch_scc1 {l1}
    s_cmp_lg_u32 s{sNON}, 0
    s_cbranch_scc1 {l1}
    v_mov_b32 v{T0}, 0
    buffer_load_dwordx2 {vr(vN,2)}, v{T0}, {sr(SDBG,4)}, 0 offen sc1
    s_waitcnt vmcnt(0)
    s_branch {l0}
    """)
    a.label(l1)
    if not flag: return
    a(f"""
    s_cmp_lg_u32 s{sW}, 0
    s_cbranch_scc1 {l2}
    s_lshl_b32 s{sT1}, s2, 3
    v_mov_b32 v{T0}, {TFO-1024}
    s_mov_b64 exec, 1
    buffer_store_dwordx2 {vr(vN,2)}, v{T0}, {sr(SFL,4)}, s{sT1} offen sc1
    s_mov_b64 exec, -1
    """)
    a.label(l2)
def poll(a, loads, cmps, preloaded, sleep=0):
    l0, l1, l2 = a.uid("Lpo"), a.uid("Lpo"), a.uid("Lpo")
    a(f"s_mov_b32 s{sSP}, 0")
    if preloaded: a(f"s_branch {l2}")
    a.label(l0)
    for l in loads: a(l)
    a("s_waitcnt vmcnt(0)")
    a.label(l2)
    for k, v in enumerate(cmps):
        if k == 0: a(f"v_cmp_eq_u64 vcc, {sr(sNON,2)}, {vr(v,2)}")
        else: a(f"v_cmp_eq_u64 {sr(sT1,2)}, {sr(sNON,2)}, {vr(v,2)}\ns_nop 0\ns_and_b64 vcc, vcc, {sr(sT1,2)}")
    a(f"""
    s_add_u32 s{sSP}, s{sSP}, 1
    s_cmp_gt_u32 s{sSP}, 100000
    s_cbranch_scc1 {l1}
    s_cmp_eq_u64 vcc, -1
    """)
    if sleep: a(f"s_cbranch_scc1 {l1}\ns_sleep {sleep}\ns_branch {l0}")
    else: a(f"s_cbranch_scc0 {l0}")
    a.label(l1)

def wfrag(phi, dst=None):
    t, n = divmod(phi, 5)
    pre = [f"s_mul_i32 s{sTM}, s{sK+t}, 5120"]
    if phi < 25 or dst is not None:
        d = WR0+4*phi if dst is None else dst
        if n < 4: return pre + [f"buffer_load_dwordx4 {vr(d,4)}, v{VL}, {sr(SWT,4)}, s{sTM} offen offset:{1024*n} sc1"]
        return pre + [f"s_add_u32 s{sTM}, s{sTM}, 4096", f"buffer_load_dwordx4 {vr(d,4)}, v{VL}, {sr(SWT,4)}, s{sTM} offen sc1"]
    base, o = (sFILL, (phi-25)*1024) if phi < 33 else (sFW, (phi-33)*1024)
    return [f"s_add_u32 m0, s{base}, {o}"] + pre + [f"s_add_u32 s{sTM}, s{sTM}, {1024*n}", f"buffer_load_dwordx4 v{VL}, {sr(SWT,4)}, s{sTM} offen sc1 lds"]
def p2_ldsbases():
    return [f"s_lshl_b32 s{sFILL}, s{sW}, 13", f"s_add_u32 s{sFILL}, s{sFILL}, {L_A}", f"s_mul_i32 s{sFW}, s{sW}, 12288"]

def stage_set(c, st):
    return [f"s_mov_b32 s{sFILL}, {((st+1) % 3) * c.stg}"]
def duty(a, n=2, guard=True, mask=0):
    lab = a.uid("Ldu")
    g = [f"s_bitcmp1_b32 {mask}, s{sI}", f"s_cbranch_scc0 {lab}"] if guard else []
    for _ in range(n):
        g += lines(f"""
        s_cmp_ge_u32 s{sPFO}, s{sPG}
        s_cbranch_scc1 {lab}
        buffer_load_dword v255, v254, {sr(STMP,4)}, s{sPFO} offen {PFF}
        s_add_u32 s{sPFO}, s{sPFO}, s{sPFS}""")
    return g + [lab + ":"]

def atoms(group):
    if any(l.endswith(":") for l in group): return [group]
    out = []; k = 0
    while k < len(group):
        if group[k].startswith("s_mov_b64 exec"): out.append(group[k:k+3]); k += 3
        else: out.append([group[k]]); k += 1
    return out
def balance(M, streams, last):
    items = []
    for units, lo, hi in streams:
        tot = sum(len(u) for u in units); acc = 0
        for u in units:
            items.append((lo + (acc*(hi-lo+1))//max(tot, 1), u)); acc += len(u)
    return spread(M, items)

def iteration(a, c, S, kind, extra1=(), extra2=(), pre2=None):
    prio = 'noprio' not in EXP
    a("s_waitcnt lgkmcnt(0)")
    M = mfmas(c, 0, kind == 0); n = len(M)
    upd = lambda b: [f"v_add_u32 v{b}, s{sDELTA}, v{b}"]
    rd = reads(c, 1, 1); nx = c.nM + (1 if c.nh else 0)
    R = rd[:nx]
    if kind != 9: R = R + [upd(c.xb[1])] + ([upd(c.hb[1])] if c.nh else [])
    for f in range(c.nF):
        R += rd[nx+2*f:nx+2*f+2]
        if kind != 9 and f: R.append(upd(c.wb[f-1]))
    late = []
    if kind != 9: late = [upd(c.wb[c.nF-1]), upd(c.xb[0])] + ([upd(c.hb[0])] if c.nh else [])
    Sx = []; S0 = []
    if kind != 9:
        S0 = [[f"s_add_u32 s{sT1}, s{sSLOT}, {c.stg}", f"s_cmp_eq_u32 s{sT1}, {3*c.stg}", f"s_cselect_b32 s{sT1}, 0, s{sT1}"], [f"s_sub_u32 s{sDELTA}, s{sT1}, s{sSLOT}"]]
    if kind in ('loop', 7): Sx += dmaB(c, a)
    if kind == 0: Sx += dmaB(c, a) + [stage_set(c, 2)] + dmaA(c, a) + dmaB(c, a)
    Sx += sum([atoms(g) for g in extra1], [])
    if kind in ('loop', 0):
        Sx += [[f"s_mov_b32 s{sFILL}, s{sSLOT}"]]
    if kind != 9: Sx.append([f"s_mov_b32 s{sSLOT}, s{sT1}"])
    st = [(S0, 0, 1), (Sx, 0 if kind == 0 else 2, n-2), (R, 0, n-RT), (late, n-RT+1, n-2)]
    if prio: st = [([["s_setprio 1"]], 0, 0), ([["s_setprio 0"]], n//2, n//2)] + st
    for l in balance(M, st, n): a(l)
    S.dyn(10)
    if kind in ('loop', 0, 7): a(f"s_waitcnt vmcnt({c.nW+2}) lgkmcnt(0)")
    elif kind == 8: a(f"s_waitcnt vmcnt({c.y8}) lgkmcnt(0)")
    else: a("s_waitcnt lgkmcnt(0)")
    S.dyn(20)
    a("s_barrier")
    S.dyn(30)
    if prio: a("s_setprio 3")
    if pre2: pre2()
    M = mfmas(c, 1)
    R = reads(c, 0, 0) if kind != 9 else []
    Sx = []
    if kind in ('loop', 0):
        if c.duty: Sx.append(duty(a, mask=c.dmask))
        Sx += dmaA(c, a)
    Sx += sum([atoms(g) for g in extra2], [])
    st = [(Sx, 0, n-3), (R, 0, n-RT)]
    if kind == 'loop':
        st.append(([[f"s_bitcmp1_b32 {0x20 if c.ffn else (0x20 | (5 << SLI))}, s{sI}", f"s_cbranch_scc1 Lspec_{c.tag}", f"Lret_{c.tag}:"]], n-3, n-3))
        st.append(([[f"s_add_u32 s{sI}, s{sI}, 1", f"s_cmp_lt_u32 s{sI}, 7"]], n-2, n-2))
    if prio: st.append(([["s_setprio 2"]], n//2, n//2))
    for l in balance(M, st, n): a(l)

def main_loop(a, c, S, tag, rec_loads):
    iteration(a, c, S, 0)
    nonce_get(a, c.VN, c.VPS, c.ffn)
    a(f"s_mov_b32 s{sI}, 1")
    S(40)
    a.label(f"Lloop_{tag}")
    c.inloop = True; c.tag = tag
    iteration(a, c, S, 'loop')
    c.inloop = False
    a(f"s_cbranch_scc1 Lloop_{tag}")
    a(f"s_branch Lpost_{tag}")
    l5 = a.uid("Ls")
    tf = f"buffer_load_dwordx2 {vr(c.VN,2)}, v{c.VTF}, {sr(SFL,4)}, 0 offen sc1"
    a.label(f"Lspec_{tag}")
    if not c.ffn:
        l6 = a.uid("Ls")
        a(f"s_cmp_lg_u32 s{sI}, {SLI}\ns_cbranch_scc1 {l5}")
        stat_loads(a)
        a.label(l5)
        a(f"s_cmp_lg_u32 s{sI}, {SLI+2}\ns_cbranch_scc1 {l6}")
        s_work(a, c.VPS)
        a.label(l6)
        a(f"s_cmp_lg_u32 s{sI}, 5\ns_cbranch_scc1 Lret_{tag}")
    a(tf)
    a(f"s_branch Lret_{tag}")
    a.label(f"Lpost_{tag}")
    S(41)
    early = [wfrag(p) for p in c.early]
    e = chunks(early, (len(early)+4)//5)
    def pre7():
        poll(a, [tf], [c.VN], True)
        for l in p2_ldsbases(): a(l)
    iteration(a, c, S, 7, extra2=e[0], pre2=pre7)
    a(f"s_add_u32 s{sI}, s{sI}, 1")
    c.y8 = len(e[0]) + len(e[1])
    iteration(a, c, S, 8, extra1=e[1], extra2=rec_loads + e[2])
    a(f"s_add_u32 s{sI}, s{sI}, 1")
    iteration(a, c, S, 9, extra1=e[3], extra2=e[4] + c.tailx)
    a("s_setprio 0")
    c.yrec = len(e[2]) + len(e[3]) + len(e[4])
    S(4)

def rho_local(a, d, t):
    a(f"v_bfe_u32 v{d}, v{LANE}, 2, 3\nv_lshrrev_b32 v{t}, 5, v{LANE}\nv_lshl_add_u32 v{d}, v{t}, 4, v{d}")

def t_issue(a, guard=True):
    for q in range(4):
        a(f"s_add_u32 m0, s{sTB}, {1024*q}\ns_nop 0")
        a(f"buffer_load_dwordx4 v{SIDE+4+q}, {sr(SPF,4)}, 0 offen {TFL} lds")
def side_loads(a, stat=True, issue=True):
    ld, lst, lh, lj = a.uid("Lt"), a.uid("Lt"), a.uid("Lt"), a.uid("Lt")
    sU, sKp, sCh = sKX, sKW, sDELTA
    A0, A1, ST0, ST1 = SIDE, SIDE+1, SIDE+2, SIDE+3
    a(f"s_cmp_lt_u32 s{sW}, 2\ns_cbranch_scc1 {ld}")
    a(f"""
    s_lshl_b32 s{sTB}, s{sW}, 12
    s_add_u32 s{sTB}, s{sTB}, {L_TST-2*4096}
    s_mul_i32 s{sT0}, s{sW}, 49152
    s_sub_u32 s{sT0}, s{sT0}, {6*49152-45056}
    s_cmp_ge_u32 s{sW}, 6
    s_cselect_b32 s{sTB}, s{sT0}, s{sTB}
    s_mul_i32 s{sU}, s2, 6
    s_add_u32 s{sU}, s{sU}, s{sW}
    s_sub_u32 s{sU}, s{sU}, {128*6+2}
    s_min_u32 s{sU}, s{sU}, 739
    s_mul_i32 s{sKp}, s{sU}, 6554
    s_lshr_b32 s{sKp}, s{sKp}, 16
    s_mul_i32 s{sT0}, s{sKp}, 10
    s_sub_u32 s{sCh}, s{sU}, s{sT0}
    v_lshrrev_b32 v{T0}, 5, v{LANE}
    s_cmp_ge_u32 s{sKp}, 20
    s_cbranch_scc1 {lh}
    """)
    for e, (A, ST) in enumerate(((A0, ST0), (A1, ST1))):
        a(f"""
        s_lshl_b32 s{sT0}, s{sKp}, 2
        s_add_u32 s{sT0}, s{sT0}, {2*e}
        v_add_u32 v{T1}, s{sT0}, v{T0}
        v_mul_u32_u24 v{T2}, 205, v{T1}
        v_lshrrev_b32 v{T2}, 10, v{T2}
        v_mul_u32_u24 v{T3}, 5, v{T2}
        v_sub_u32 v{T1}, v{T1}, v{T3}
        v_mul_u32_u24 v{A}, 40, v{T2}
        v_lshrrev_b32 v{T2}, 1, v{T1}
        v_mul_u32_u24 v{T2}, 20, v{T2}
        v_and_b32 v{T3}, 1, v{T1}
        v_lshl_add_u32 v{T2}, v{T3}, 3, v{T2}
        v_cmp_eq_u32 vcc, 4, v{T1}
        v_mov_b32 v{ST}, 20
        s_nop 0
        v_cndmask_b32 v{T2}, v{T2}, 16, vcc
        v_cndmask_b32 v{ST}, 4, v{ST}, vcc
        v_add_u32 v{A}, v{A}, v{T2}
        """)
    a("s_waitcnt lgkmcnt(0)")
    srd(a, SPF, P_WO, 640*1280)
    a(f"s_branch {lj}")
    a.label(lh)
    a(f"""
    s_sub_u32 s{sT0}, s{sKp}, 20
    s_mul_i32 s{sT1}, s{sT0}, 86
    s_lshr_b32 s{sT1}, s{sT1}, 8
    s_mul_i32 s{sT1}, s{sT1}, 3
    s_sub_u32 s{sT1}, s{sT0}, s{sT1}
    s_lshl_b32 s{sT0}, s{sT0}, 5
    v_lshl_add_u32 v{A0}, v{T0}, 2, s{sT0}
    s_cmp_eq_u32 s{sT1}, 1
    s_cselect_b32 s{sT1}, 16, 8
    s_cselect_b32 s{sT2}, 8, 16
    v_add_u32 v{A1}, s{sT1}, v{A0}
    v_mov_b32 v{ST0}, s{sT2}
    v_mov_b32 v{ST1}, s{sT2}
    """)
    a("s_waitcnt lgkmcnt(0)")
    srd(a, SPF, P_W2, 1728*1280)
    a.label(lj)
    a(f"""
    v_bfe_u32 v{T1}, v{LANE}, 3, 2
    v_and_b32 v{T2}, 7, v{LANE}
    v_lshlrev_b32 v{T2}, 4, v{T2}
    s_lshl_b32 s{sT0}, s{sCh}, 7
    s_lshl_b32 s{sT1}, s{sW}, 12
    """)
    for q in range(4):
        A, ST = ((A0, ST0), (A1, ST1))[q & 1]
        a(f"v_add_u32 v{T3}, v{A}, v{T1}")
        if q >> 1: a(f"v_add_u32 v{T3}, v{T3}, v{ST}")
        a(f"v_mul_u32_u24 v{T3}, 1280, v{T3}\nv_add3_u32 v{SIDE+4+q}, v{T3}, v{T2}, s{sT0}")
    if issue: t_issue(a, False)
    a(f"s_mul_i32 s{sT2}, s{sKp}, 5\ns_lshl_b32 s{sT3}, s{sCh}, 2")
    for t in range(4):
        a(f"""
        s_add_u32 s{sT0}, s{sT3}, {t}
        s_mul_i32 s{sT1}, s{sT0}, 52
        s_lshr_b32 s{sT1}, s{sT1}, 8
        s_mul_i32 s{sT1}, s{sT1}, 365
        s_add_u32 s{sT0}, s{sT0}, s{sT1}
        s_add_u32 s{sT0}, s{sT0}, s{sT2}
        s_lshl_b32 s{sTS[t]}, s{sT0}, 10
        """)
    a(f"s_branch {ld}")
    a.label(lst)
    if stat: stat_loads(a, False)
    a.label(ld)
def stat_loads(a, guard=True):
    ld = a.uid("Lsl")
    if guard: a(f"s_cmp_lt_u32 s{sW}, 4\ns_cbranch_scc1 {ld}")
    stat_row(a)
    a(f"s_mul_i32 s{sT0}, s{sT0}, 1280\nv_mul_u32_u24 v{T0}, 1280, v{G}\nv_lshl_add_u32 v{T0}, v{R}, 4, v{T0}")
    for i in range(5): a(f"buffer_load_dwordx4 {vr(SIDE+4*i,4)}, v{T0}, {sr(SX,4)}, s{sT0} offen offset:{256*i}")
    a.label(ld)
for u in range(1001): assert (u*6554)>>16 == u//10
for u in range(80): assert (u*205)>>10 == u//5
for u in range(54): assert (u*86)>>8 == u//3
for N in range(40): assert (N*52)>>8 == N//5

def t_work(a):
    lab = a.uid("Ltw")
    a(f"s_cmp_lt_u32 s{sW}, 2\ns_cbranch_scc1 {lab}")
    t_part(a)
    a.label(lab)
def s_work(a, vPS):
    lab = a.uid("Ltw")
    a(f"s_cmp_lt_u32 s{sW}, 4\ns_cbranch_scc1 {lab}")
    s_part(a, SIDE+20)
    a(f"v_mov_b32 v{SIDE}, v{SIDE+20}\nv_mov_b32 v{SIDE+1}, v{SIDE+21}\nv_mov_b32 v{SIDE+2}, s{sNON}\nv_mov_b32 v{SIDE+3}, s{sNON+1}")
    stat_row(a)
    a(f"""
    s_lshl_b32 s{sT0}, s{sT0}, 4
    s_add_u32 s{sT0}, s{sT0}, {STO}
    v_lshlrev_b32 v{T0}, 4, v{G}
    s_mov_b32 exec_lo, 0x00010001
    s_mov_b32 exec_hi, 0x00010001
    buffer_store_dwordx4 {vr(SIDE,4)}, v{T0}, {sr(SFL,4)}, s{sT0} offen sc1
    s_mov_b64 exec, -1
    """)
    a.label(lab)
def t_part(a):
    tmp = SIDE
    a(f"""
    v_lshrrev_b32 v{T0}, 2, v{LANE}
    v_lshlrev_b32 v{T0}, 7, v{T0}
    v_and_b32 v{T1}, 3, v{LANE}
    v_lshl_add_u32 v{T0}, v{T1}, 3, v{T0}
    v_add_u32 v{T0}, s{sTB}, v{T0}
    """)
    for t in range(4):
        a(f"ds_read_b64_tr_b16 {vr(tmp+4*t,2)}, v{T0} offset:{32*t}")
        a(f"ds_read_b64_tr_b16 {vr(tmp+4*t+2,2)}, v{T0} offset:{32*t+2048}")
    for t in range(4):
        a(f"s_waitcnt lgkmcnt({6-2*t})\nbuffer_store_dwordx4 {vr(tmp+4*t,4)}, v{VL}, {sr(SFL,4)}, s{sTS[t]} offen sc1")
def s_part(a, vPS):
    tmp = SIDE
    s, q = vPS, vPS+1
    a(f"v_mov_b32 v{s}, 0\nv_mov_b32 v{q}, 0\nv_mov_b32 v{T0}, 0x3f803f80")
    for j in range(20):
        a(f"v_dot2c_f32_bf16 v{s}, v{tmp+j}, v{T0}\nv_dot2c_f32_bf16 v{q}, v{tmp+j}, v{tmp+j}")
    a("s_nop 2")
    for sh in (8, 4, 2, 1):
        a(f"v_add_f32_dpp v{s}, v{s}, v{s} row_ror:{sh} row_mask:0xf bank_mask:0xf")
        a(f"v_add_f32_dpp v{q}, v{q}, v{q} row_ror:{sh} row_mask:0xf bank_mask:0xf")
        a("s_nop 0")
    a(f"""
    v_mul_f32 v{s}, {f32(1/640)}, v{s}
    v_mul_f32 v{q}, {f32(1/640)}, v{q}
    v_fma_f32 v{q}, -v{s}, v{s}, v{q}
    v_max_f32 v{q}, 0, v{q}
    v_cvt_pk_bf16_f32 v{T0}, v{s}, v{q}
    v_lshlrev_b32 v{T1}, 16, v{T0}
    v_and_b32 v{q}, 0xffff0000, v{T0}
    v_add_f32 v{q}, {f32(1e-5)}, v{q}
    v_cvt_pk_bf16_f32 v{q}, v{q}, v{q}
    v_and_b32 v{q}, 0xffff0000, v{q}
    v_sqrt_f32 v{q}, v{q}
    s_nop 0
    v_cvt_pk_bf16_f32 v{q}, v{q}, v{q}
    v_and_b32 v{q}, 0xffff0000, v{q}
    v_rcp_f32 v{s}, v{q}
    s_nop 0
    v_mul_f32 v{q}, v{T1}, v{s}
    v_sub_f32 v{q}, 0, v{q}
    """)

def p2_setup(a, VTF):
    if MAP2 == 81:
        a(f"""
    s_and_b32 s{sT0}, s2, 7
    s_lshl_b32 s{sR2}, s{sT0}, 2
    s_bfe_u32 s{sT1}, s2, 0x20003
    s_add_u32 s{sR2}, s{sR2}, s{sT1}
    s_lshr_b32 s{sC2}, s2, 5
    s_lshl_b32 s{sT1}, s{sT1}, 1
    s_mul_i32 s{sT0}, s{sC2}, {ROTA}
    s_lshr_b32 s{sT0}, s{sT0}, 1
    s_add_u32 s{sT1}, s{sT1}, s{sT0}
    """)
    else:
        a(f"""
    s_and_b32 s{sT0}, s2, 3
    s_lshl_b32 s{sR2}, s{sT0}, 3
    s_bfe_u32 s{sT1}, s2, 0x30003
    s_add_u32 s{sR2}, s{sR2}, s{sT1}
    s_and_b32 s{sC2}, s2, 4
    s_lshr_b32 s{sT0}, s2, 6
    s_add_u32 s{sC2}, s{sC2}, s{sT0}
    s_mul_i32 s{sT0}, s{sT0}, {ROTA}
    s_add_u32 s{sT1}, s{sT1}, s{sT0}
    """)
    a(f"""
    s_cmp_lt_u32 s{sW}, 2
    s_cselect_b32 s{sN2}, 10, 9
    s_cmp_ge_u32 s{sT1}, s{sN2}
    s_cselect_b32 s{sT2}, s{sN2}, 0
    s_sub_u32 s{sK}, s{sT1}, s{sT2}
    """)
    for t in range(1, 10):
        a(f"s_add_u32 s{sK+t}, s{sK+t-1}, 1\ns_cmp_eq_u32 s{sK+t}, s{sN2}\ns_cselect_b32 s{sK+t}, 0, s{sK+t}")
    a(f"""
    s_mul_i32 s{sT3}, s{sW}, 9
    s_min_u32 s{sT2}, s{sW}, 2
    s_add_u32 s{sT3}, s{sT3}, s{sT2}
    v_lshrrev_b32 v{T0}, 1, v{LANE}
    s_sub_u32 s{sT2}, s{sN2}, 1
    v_min_u32 v{T0}, s{sT2}, v{T0}
    v_add_u32 v{T0}, s{sT3}, v{T0}
    v_mul_u32_u24 v{T0}, 10, v{T0}
    s_mul_i32 s{sT2}, s{sC2}, 5
    s_lshr_b32 s{sT2}, s{sT2}, 2
    v_and_b32 v{T1}, 1, v{LANE}
    v_add3_u32 v{T0}, v{T0}, v{T1}, s{sT2}
    v_mul_u32_u24 v{T0}, 10923, v{T0}
    v_lshrrev_b32 v{T0}, 16, v{T0}
    v_lshlrev_b32 v{T0}, 3, v{T0}
    v_add_u32 v{VTF}, {TFO}, v{T0}
    s_mul_i32 s{sT2}, s{sC2}, 74
    s_add_u32 s{sT2}, s{sT2}, s{sT3}
    s_mul_i32 s{sT2}, s{sT2}, 5120
    s_add_u32 s{sT2}, s{sT2}, {WT_OFF}
    s_add_u32 s{SWT}, s{P_WS}, s{sT2}
    s_addc_u32 s{SWT+1}, s{P_WS+1}, 0
    s_mul_i32 s{SWT+2}, s{sN2}, {0 if 'now' in EXP else 5120}
    s_mov_b32 s{SWT+3}, 0x00020000
    s_mul_i32 s{sT2}, s{sR2}, 74
    s_add_u32 s{sT2}, s{sT2}, s{sT3}
    s_lshl_b32 s{sT2}, s{sT2}, 12
    s_add_u32 s{SPF}, s{P_WS}, s{sT2}
    s_addc_u32 s{SPF+1}, s{P_WS+1}, 0
    s_lshl_b32 s{SPF+2}, s{sN2}, 12
    {f"s_mov_b32 s{SPF+2}, 0" if 'noa' in EXP else ""}
    s_mov_b32 s{SPF+3}, 0x00020000
    """)
    ly, lyd = a.uid("Ly"), a.uid("Ly")
    a(f"""
    s_cmp_ge_u32 s{sW}, 2
    s_cbranch_scc1 {ly}
    s_lshr_b32 s{sT0}, s{sR2}, 1
    s_lshl_b32 s{sT0}, s{sT0}, 7
    s_lshl_b32 s{sT1}, s{sW}, 5
    s_add_u32 s{sT0}, s{sT0}, s{sT1}
    s_add_u32 s{sT0}, s{sT0}, {FLB+16*128}
    v_and_b32 v{T0}, 3, v{LANE}
    v_lshl_add_u32 v{VF}, v{T0}, 3, s{sT0}
    s_branch {lyd}
    """)
    a.label(ly)
    a(f"""
    s_lshl_b32 s{sT0}, s{sR2}, 6
    s_add_u32 s{sT1}, s{sT0}, 63
    s_mul_i32 s{sT0}, s{sT0}, 27595
    s_lshr_b32 s{sT0}, s{sT0}, 22
    s_mul_i32 s{sT1}, s{sT1}, 27595
    s_lshr_b32 s{sT1}, s{sT1}, 22
    s_sub_u32 s{sT1}, s{sT1}, s{sT0}
    s_lshl_b32 s{sT1}, s{sT1}, 7
    s_lshl_b32 s{sT0}, s{sT0}, 7
    s_sub_u32 s{sT2}, s{sW}, 2
    s_mul_i32 s{sT2}, s{sT2}, 3
    s_lshr_b32 s{sT2}, s{sT2}, 1
    s_lshl_b32 s{sT2}, s{sT2}, 3
    s_add_u32 s{sT0}, s{sT0}, s{sT2}
    s_add_u32 s{sT0}, s{sT0}, {FLB}
    v_and_b32 v{T0}, 1, v{LANE}
    v_lshlrev_b32 v{T0}, 3, v{T0}
    v_bfe_u32 v{T1}, v{LANE}, 1, 1
    v_mul_u32_u24 v{T1}, s{sT1}, v{T1}
    v_add3_u32 v{VF}, v{T0}, v{T1}, s{sT0}
    """)
    a.label(lyd)
    a(f"""
    s_lshl_b32 s{sT0}, s{sR2}, 6
    v_add_u32 v{T0}, s{sT0}, v{R}
    v_mul_u32_u24 v{T0}, 1280, v{T0}
    v_lshl_add_u32 v{T0}, v{G}, 3, v{T0}
    s_mul_i32 s{sT0}, s{sC2}, 160
    v_add_u32 v{VXO}, s{sT0}, v{T0}
    """)
for u in range(740): assert (u*10923)>>16 == u//6
for x in range(2048): assert (x*27595)>>22 == x//152

class Inter:
    def __init__(s, a, groups, every): s.a, s.g, s.e, s.n = a, list(groups), every, 0
    def __call__(s, txt):
        for l in lines(txt):
            s.a(l); s.n += 1
            if s.n % s.e == 0 and s.g:
                for x in s.g.pop(0): s.a(x)
    def flush(s, keep=0):
        while len(s.g) > keep:
            for x in s.g.pop(0): s.a(x)

def gen(stamps=False, PF=4, pff="", SLEEP=0, LP=None, QD=10, DMQ=0b10000, sli=4, rt=4, qevery=16, fn1=30, map2=81, rota=2, fevery=25, OSF='', exp="tup nofld cpf", NB=0, dmask=0b111, tfl="nt", nearly=10, TLB=0):
    global EXP, PFF, DN, DMASK, DPRE, TFL, MAP2, ROTA
    MAP2 = map2; ROTA = rota
    global RT, SLI
    RT = rt; SLI = sli
    EXP = set(exp.split()); PFF = pff; TFL = tfl; DMASK = dmask
    a = Asm(); S = St(a, stamps)
    name = NAME + "_kernel"
    def emit(groups):
        for g in groups:
            for l in g: a(l)
    if stamps: a("s_memrealtime s[96:97]\ns_memtime s[94:95]")
    a(f"s_cmp_ge_u32 s2, 256\ns_cbranch_scc1 Lend")
    if 'badmap' in EXP: a("s_and_b32 s3, s2, 31\ns_lshl_b32 s3, s3, 3\ns_lshr_b32 s2, s2, 5\ns_or_b32 s2, s2, s3")
    a(f"s_load_dwordx16 s[40:55], s[0:1], 0\ns_load_dwordx4 s[56:59], s[0:1], 64\ns_load_dwordx2 s[60:61], s[0:1], 80")
    a(f"""
    v_lshrrev_b32 v{T0}, 6, v0
    v_and_b32 v{LANE}, 63, v0
    v_readfirstlane_b32 s{sW}, v{T0}
    v_lshrrev_b32 v{G}, 4, v{LANE}
    v_and_b32 v{R}, 15, v{LANE}
    v_lshlrev_b32 v{VL}, 4, v{LANE}
    s_lshl_b32 s{sW1K}, s{sW}, 11
    s_mov_b32 s{sI}, 0
    """)
    def pf_addr(nrow_cu, kper, nst, cidx_s, VD):
        pass
    lx, lq, ld, lw = a.uid("Lpf"), a.uid("Lpf"), a.uid("Lpf"), a.uid("Lpf")
    a(f"""
    s_bfe_u32 s{sT2}, s2, 0x40003
    s_lshr_b32 s{sT3}, s2, 7
    s_and_b32 s{sT0}, s2, 1
    s_bfe_u32 s{sT1}, s2, 0x20001
    s_mov_b32 s{sPG}, 0
    v_mov_b32 v254, 0
    s_cmp_ge_u32 s{sW}, 3
    s_cbranch_scc1 {lw}
    s_cmp_ge_u32 s{sW}, 1
    s_cbranch_scc1 {lq}
    s_lshl_b32 s{sT0}, s{sT0}, 10
    s_lshl_b32 s{sT1}, s{sT1}, 8
    s_lshl_b32 s{sT2}, s{sT2}, 4
    s_add_u32 s{sT0}, s{sT0}, s{sT1}
    s_add_u32 s{sT0}, s{sT0}, s{sT2}
    v_add_u32 v{T0}, s{sT0}, v{R}
    v_mul_u32_u24 v{T0}, 1280, v{T0}
    v_and_b32 v{T1}, 1, v{G}
    v_lshl_add_u32 v254, v{T1}, 7, v{T0}
    s_lshl_b32 s{sT0}, s{sT3}, 8
    s_mov_b32 s{sPFS}, 256
    s_mov_b32 s{sPG}, 1280
    s_waitcnt lgkmcnt(0)
    s_mov_b32 s{sPFO}, 512
    """)
    srd(a, STMP, P_X, XB)
    a(f"buffer_load_dword v255, v254, {sr(STMP,4)}, s{sT0} offen {pff}")
    a(f"s_branch {ld}")
    a.label(lq)
    a(f"""
    s_cmp_eq_u32 s{sW}, 2
    s_cbranch_scc1 {lx}
    v_min_u32 v{T0}, 35, v{LANE}
    v_mul_u32_u24 v{T1}, 57, v{T0}
    v_lshrrev_b32 v{T1}, 9, v{T1}
    v_mul_u32_u24 v{T3}, 9, v{T1}
    v_sub_u32 v{T0}, v{T0}, v{T3}
    s_lshl_b32 s{sT2}, s{sT2}, 2
    v_add_u32 v{T1}, s{sT2}, v{T1}
    v_mul_u32_u24 v{T1}, 3840, v{T1}
    v_mul_u32_u24 v{T3}, 43, v{T0}
    v_lshrrev_b32 v{T3}, 7, v{T3}
    v_mul_u32_u24 v{T3}, 896, v{T3}
    v_lshl_add_u32 v{T0}, v{T0}, 7, v{T3}
    s_mul_i32 s{sT1}, s{sT1}, 320
    s_and_b32 s{sT1}, s{sT1}, 0xffffff80
    v_add3_u32 v254, v{T0}, v{T1}, s{sT1}
    s_mul_i32 s{sT0}, s{sT3}, {128*3840}
    s_add_u32 s{sT1}, s{sT0}, {64*3840}
    s_mov_b32 s{sPFS}, {64*3840}
    s_mov_b32 s{sPG}, {640*3840}
    s_waitcnt lgkmcnt(0)
    s_mov_b32 s{sPFO}, {256*3840}
    """)
    srd(a, STMP, P_WQ, 640*3840)
    a(f"buffer_load_dword v255, v254, {sr(STMP,4)}, s{sT0} offen {pff}")
    a(f"buffer_load_dword v255, v254, {sr(STMP,4)}, s{sT1} offen {pff}")
    a(f"s_branch {ld}")
    a.label(lx)
    a(f"""
    s_and_b32 s{sT0}, s2, 127
    s_mul_i32 s{sT0}, s{sT0}, 3456
    v_min_u32 v{T0}, 26, v{LANE}
    v_lshl_add_u32 v254, v{T0}, 7, s{sT0}
    s_mul_i32 s{sT0}, s{sT3}, {128*3456}
    s_mov_b32 s{sPFS}, {128*3456}
    s_mov_b32 s{sPG}, {640*3456}
    s_waitcnt lgkmcnt(0)
    s_mov_b32 s{sPFO}, {256*3456}
    """)
    srd(a, STMP, P_W1, 640*3456)
    a(f"buffer_load_dword v255, v254, {sr(STMP,4)}, s{sT0} offen {pff}")
    a(f"s_branch {ld}")
    a.label(lw)
    if 'cpf' in EXP:
        lc_ = a.uid("Lcp")
        a(f"""
        s_cmp_lg_u32 s{sW}, 7
        s_cbranch_scc1 {lc_}
        s_getpc_b64 {sr(sNON,2)}
        s_and_b32 s{sNON}, s{sNON}, 0xffffff00
        s_lshr_b32 s{sT0}, s2, 3
        s_mul_i32 s{sT0}, s{sT0}, 10
        v_min_u32 v{T0}, 9, v{LANE}
        v_add_u32 v{T0}, s{sT0}, v{T0}
        v_lshlrev_b32 v{T0}, 7, v{T0}
        v_min_u32 v{T0}, Lend-{lc_}, v{T0}
        global_load_dword v255, v{T0}, {sr(sNON,2)}
        """)
        a.label(lc_)
    ln = a.uid("Ln")
    a(f"s_cmp_lg_u32 s2, 0\ns_cbranch_scc1 {ln}\ns_cmp_lg_u32 s{sW}, 7\ns_cbranch_scc1 {ln}\ns_waitcnt lgkmcnt(0)")
    srd(a, SDBG, P_DBG, 256)
    a(f"""
    s_memrealtime {sr(sNON,2)}
    s_waitcnt lgkmcnt(0)
    s_or_b32 s{sNON}, s{sNON}, 1
    v_mov_b32 v{T0}, s{sNON}
    v_mov_b32 v{T1}, s{sNON+1}
    v_mov_b32 v{T2}, 0
    s_mov_b64 exec, 1
    buffer_store_dwordx2 {vr(T0,2)}, v{T2}, {sr(SDBG,4)}, 0 offen sc1
    s_mov_b64 exec, -1
    """)
    a.label(ln)
    a("s_waitcnt lgkmcnt(0)")
    srd(a, STMP, P_X, XB)
    a(f"s_mov_b32 s{sPFS}, 0\ns_mov_b32 s{sPFO}, 0")
    a.label(ld)
    S.start()
    srd(a, SX, P_X, XB)
    a(f"""
    s_and_b32 s{sT0}, s2, 1
    s_bfe_u32 s{sT1}, s2, 0x20001
    s_lshr_b32 s{sT2}, s2, 3
    s_cmp_ge_u32 s{sT2}, 16
    s_cbranch_scc1 Lffn
    """)
    def late_srds():
        srd(a, SHO, P_WS, 0 if 'nost' in EXP else HO_SZ); srd(a, SFL, P_WS, FL_SZ, WT_OFF); srd(a, SDBG, P_DBG, 256)
    def set_stage(c, st): emit([stage_set(c, st)])
    def pretouch(flagoff_s):
        lp = a.uid("Lpt")
        a(f"s_cmp_lg_u32 s{sW}, 7\ns_cbranch_scc1 {lp}")
        stat_row(a)
        a(f"""
        s_lshl_b32 s{sT0}, s{sT0}, 4
        s_add_u32 s{sT0}, s{sT0}, {STO}
        v_mov_b32 v{T0}, s{sT0}
        s_lshl_b32 s{sT0}, s2, 3
        s_add_u32 s{sT0}, s{sT0}, {TFO}
        v_writelane_b32 v{T0}, s{sT0}, 1
        """)
        if flagoff_s is not None:
            a(f"s_add_u32 s{sT0}, s{flagoff_s}, {FLB}\nv_writelane_b32 v{T0}, s{sT0}, 2")
        a(f"buffer_load_dword v255, v{T0}, {sr(SFL,4)}, 0 offen sc1")
        if TLB:
            a(f"v_lshlrev_b32 v{T0}, {TLB}, v{LANE}")
            a(f"buffer_load_dword v255, v{T0}, {sr(SHO,4)}, 0 offen sc1")
            a(f"buffer_load_dword v255, v{T0}, {sr(SFL,4)}, 0 offen sc1")
            srd(a, SPF, P_OUT, XB)
            a(f"buffer_load_dword v255, v{T0}, {sr(SPF,4)}, 0 offen sc1")
            srd(a, SPF, P_B2, 1280)
            a(f"buffer_load_dword v255, v{T0}, {sr(SPF,4)}, 0 offen")
        a.label(lp)
    def pre_loop(c, setup):
        if 'd0e' in EXP:
            a(f"s_cmp_lt_u32 s{sW}, {c.nxm}\ns_cselect_b64 vcc, -1, 0")
            set_stage(c, 0); emit(dmaA(c, a) + dmaB(c, a))
        late_srds()
        setup()
        p2_setup(a, c.VTF)
        S(1)
        a(f"s_cmp_lt_u32 s{sW}, {c.nxm}\ns_cselect_b64 vcc, -1, 0")
        if 'd0e' not in EXP:
            a("s_barrier")
            set_stage(c, 0); emit(dmaA(c, a) + dmaB(c, a))
        if c.ffn:
            a(f's_waitcnt vmcnt({c.nW+2})'); t_work(a)
        a(f"v_mov_b32 v{T0}, 0")
        a(f"buffer_load_dwordx2 {vr(c.VN,2)}, v{T0}, {sr(SDBG,4)}, 0 offen sc1")
        if 'nb2' not in EXP: a("s_barrier")
        set_stage(c, 1); emit(dmaA(c, a))
        a(f"s_waitcnt vmcnt({c.nW})")
        S(2)
        a("s_barrier")
        S(3)
        emit(reads(c, 0, 0))
        a(f"s_mov_b32 s{sSLOT}, {c.stg}")
    def alloc_common(c):
        al = Alloc(11)
        c.VX = [al(), al(), 124]; c.VW = [120, 121, 122, 123]
        c.xb = [al(), al()]; c.hb = [al(), al()]; c.wb = [al() for _ in range(c.nF)]
        c.VTF = al(); c.VRA = al(); c.VPS = al(2, 4); c.VN = al(2, 2); c.REC = al(20, 4)
        assert c.VPS == 24
        return al
    def dma_setup(c, P, magic, colfn):
        a(f"""
        s_lshl_b32 s{sT0}, s{sW}, 4
        s_add_u32 s{sT0}, s{sT0}, s{sT3}
        s_max_i32 s{sT0}, s{sT0}, 0
        s_mul_i32 s{sXA}, s{sT0}, 1280
        s_sub_u32 s{sXA}, s{sXA}, 128
        s_lshl_b32 s{sT0}, s{sW}, 3
        s_add_u32 s{sT0}, s{sT0}, s{sT3}
        s_mul_i32 s{sXB}, s{sT0}, 1280
        s_add_u32 s{sXB}, s{sXB}, {128*1280-128}
        s_lshl_b32 s{sEM}, s{sW}, 10
        s_add_u32 s{sEM}, s{sEM}, 16384
        v_lshrrev_b32 v{T0}, 3, v{LANE}
        v_mul_u32_u24 v{T0}, 1280, v{T0}
        v_xor_b32 v{T1}, v{G}, v{LANE}
        v_and_b32 v{T1}, 7, v{T1}
        v_lshl_add_u32 v{c.VX[0]}, v{T1}, 4, v{T0}
        v_xor_b32 v{T2}, 64, v{c.VX[0]}
        v_add_u32 v{c.VX[1]}, {8*1280-1024}, v{T2}
        s_and_b32 s{sT0}, s{sW}, 1
        s_lshl_b32 s{sT1}, s{sT0}, 6
        v_xor_b32 v{c.VX[2]}, s{sT1}, v{c.VX[0]}
        s_lshl_b32 s{sT0}, s{sT0}, 2
        s_lshr_b32 s{sT1}, s{sW}, 1
        s_lshl_b32 s{sT1}, s{sT1}, 4
        s_add_u32 s{sT0}, s{sT0}, s{sT1}
        s_mul_i32 s{sKW}, s{sT0}, {c.wrowb}
        s_add_u32 s{sKW}, s{sKW}, s{sWO}
        s_sub_u32 s{sKW}, s{sKW}, {64*c.wrowb}
        s_mov_b32 s{sWM}, -1
        s_mov_b32 s{sWM+1}, 0xffff
        s_mul_i32 s{sWB}, s{sW}, {8*c.wrow}
        s_add_u32 s{sWB}, s{sWB}, {c.xsz}
        """)
        for u in range(c.nW):
            a(f"""
            v_add_u32 v{T0}, {64*u}, v{LANE}
            v_mul_u32_u24 v{T1}, {magic}, v{T0}
            v_lshrrev_b32 v{T1}, 16, v{T1}
            v_mul_u32_u24 v{T2}, {P}, v{T1}
            v_sub_u32 v{T0}, v{T0}, v{T2}
            """)
            colfn()
            a(f"""
            v_and_b32 v{T2}, 4, v{T1}
            v_add_u32 v{T1}, v{T1}, v{T2}
            v_mul_u32_u24 v{T1}, {c.wrowb}, v{T1}
            v_add_u32 v{T0}, v{T0}, v{T1}
            v_subrev_u32 v{c.VW[u]}, {1024*u}, v{T0}
            """)
    def half(groups, young):
        if not groups: return
        lh = a.uid("Lh")
        a(f"s_cmp_ge_u32 s{sW}, 4\ns_cbranch_scc{0 if young else 1} {lh}")
        emit(groups)
        a.label(lh)
    FLD = f"buffer_load_dwordx2 {vr(VFD,2)}, v{VF}, {sr(SFL,4)}, 0 offen sc1"
    def publish(younger, old_extra=0):
        lp, lw1 = a.uid("Lp"), a.uid("Lp")
        if old_extra:
            a(f"s_waitcnt vmcnt({younger+old_extra})\ns_cmp_lt_u32 s{sW}, 4\ns_cbranch_scc1 {lw1}")
        a(f"s_waitcnt vmcnt({younger})")
        a.label(lw1)
        a(f"""
        s_barrier
        s_cmp_lg_u32 s{sW}, 0
        s_cbranch_scc1 {lp}
        v_mov_b32 v{T0}, s{sNON}
        v_mov_b32 v{T1}, s{sNON+1}
        v_mov_b32 v{T2}, {FLB}
        s_mov_b64 exec, 1
        buffer_store_dwordx2 {vr(T0,2)}, v{T2}, {sr(SFL,4)}, s{sHF} offen sc1
        s_mov_b64 exec, -1
        """)
        a.label(lp)
        S(7)
    c = Cfg()
    c.nM, c.nF, c.nh, c.wrow, c.wrowb, c.stg, c.xsz, c.nxm, c.duty = 4, 4, 2, 480, 3840, 49152, 18432, 2, False
    al = alloc_common(c)
    c.acc = [[al(4,4) for i in range(4)] for f in range(4)]
    c.acch = [al(4,4) for f in range(2)]
    lowtop = al.n
    al = Alloc(WREG)
    c.X = [[al(4,4) for i in range(4)] for s in range(2)]
    c.XH = [al(4,4) for s in range(2)]
    c.W = [[al(4,4) for f in range(4)] for s in range(2)]
    assert al.n == 208
    c.early = (list(range(15, 25)) + LA_ + [13, 14])[:nearly]
    a(f"""
    s_lshl_b32 s{sRB}, s{sT0}, 3
    s_and_b32 s{sT3}, s{sT2}, 7
    s_add_u32 s{sRB}, s{sRB}, s{sT3}
    s_lshl_b32 s{sCB}, s{sT1}, 1
    s_lshr_b32 s{sT3}, s{sT2}, 3
    s_add_u32 s{sCB}, s{sCB}, s{sT3}
    s_lshl_b32 s{sT3}, s{sRB}, 7
    s_sub_u32 s{sT3}, s{sT3}, 16
    s_mul_i32 s{sWO}, s{sCB}, 160
    """)
    c.nW = 4; c.ffn = False; c.duty = QD < 10; c.dmask = DMQ
    if QD < 10: a(f"s_cmp_eq_u32 s{sW}, 1\ns_cselect_b32 s{sPG}, s{sPG}, 0\ns_mov_b32 s{sPFO}, {QD*64*3840}")
    dma_setup(c, 30, 2185, lambda: a(f"v_mul_u32_u24 v{T2}, 26, v{T0}\nv_lshrrev_b32 v{T2}, 8, v{T2}\nv_mul_u32_u24 v{T2}, 1120, v{T2}\nv_lshl_add_u32 v{T0}, v{T0}, 4, v{T2}"))
    srd(a, SW, P_WQ, 640*3840)
    a(f"s_add_u32 s{sT0}, s{sRB}, 16\ns_lshl_b32 s{sT0}, s{sT0}, 7\ns_lshl_b32 s{sT1}, s{sCB}, 3\ns_add_u32 s{sHF}, s{sT0}, s{sT1}")
    def q_setup():
        a(f"s_lshr_b32 s{sMH}, s{sW}, 2\ns_and_b32 s{sT0}, s{sW}, 3\ns_lshl_b32 s{sT0}, s{sT0}, 2\ns_lshl_b32 s{sT1}, s{sMH}, 1")
        for f in range(4):
            a(f"s_xor_b32 s{sT2}, s{sT1}, {f}\ns_add_u32 s{sT2}, s{sT2}, s{sT0}\ns_min_u32 s{sNT+f}, s{sT2}, 14")
        a(f"""
        s_mov_b32 s{sMSK}, 0xfffefffe
        s_mov_b32 s{sMSK+1}, 0xfffefffe
        v_lshrrev_b32 v{T0}, 1, v{R}
        v_xor_b32 v{T0}, v{T0}, v{G}
        v_lshlrev_b32 v{T0}, 4, v{T0}
        v_lshl_add_u32 v{T0}, v{R}, 7, v{T0}
        v_add_u32 v{c.hb[0]}, {c.stg}, v{T0}
        v_xor_b32 v{c.hb[1]}, 64, v{c.hb[0]}
        s_lshl_b32 s{sT0}, s{sMH}, 13
        s_add_u32 s{sT0}, s{sT0}, 2048
        v_add_u32 v{c.xb[0]}, s{sT0}, v{c.hb[0]}
        v_add_u32 v{c.xb[1]}, s{sT0}, v{c.hb[1]}
        """)
        rho_local(a, T0, T1)
        a(f"v_mul_u32_u24 v{T0}, 480, v{T0}\nv_and_b32 v{T1}, 3, v{LANE}\nv_lshl_add_u32 v{T0}, v{T1}, 3, v{T0}")
        for f in range(4):
            a(f"s_lshl_b32 s{sT0}, s{sNT+f}, 5\ns_add_u32 s{sT0}, s{sT0}, {c.xsz+c.stg}\nv_add_u32 v{c.wb[f]}, s{sT0}, v{T0}")
        a(f"v_lshlrev_b32 v{c.VRA}, 4, v{R}")
        a(f"""
        s_lshl_b32 s{sT0}, s{sRB}, 7
        s_lshl_b32 s{sT1}, s{sMH}, 6
        s_add_u32 s{sT1}, s{sT1}, s{sT0}
        s_lshl_b32 s{sT1}, s{sT1}, 4
        s_add_u32 s{sRM}, s{sT1}, {STO}
        s_sub_u32 s{sT0}, s{sT0}, 16
        s_max_i32 s{sT0}, s{sT0}, 0
        s_lshl_b32 s{sT0}, s{sT0}, 4
        s_add_u32 s{sRH}, s{sT0}, {STO}
        """)
        for s in range(2):
            for r in range(4): a(f"v_mov_b32 v{c.XH[s]+r}, 0x3f803f80")
    pre_loop(c, q_setup)
    rec = [[f"buffer_load_dwordx4 {vr(c.REC+4*i,4)}, v{c.VRA}, {sr(SFL,4)}, s{sRM} offen offset:{256*i} sc1"] for i in range(4)]
    rec.append([f"buffer_load_dwordx4 {vr(c.REC+16,4)}, v{c.VRA}, {sr(SFL,4)}, s{sRH} offen sc1"])
    CSR = lowtop; CA = 11; WA = 15
    assert CSR + 16 <= WREG and WA + 6 <= c.VTF
    c.tailx = [lines(f"""
        s_lshl_b32 s{sT3}, s{sMH}, 6
        s_add_u32 s{sT3}, s{sT3}, 16
        s_mul_i32 s{sT3}, s{sT3}, {RS}
        v_mul_u32_u24 v{T2}, {RS}, v{R}
        v_lshlrev_b32 v{T3}, 4, v{G}""")]
    for f in range(4):
        c.tailx.append(lines(f"""
        s_lshl_b32 s{sT0}, s{sNT+f}, 6
        s_add_u32 s{sT0}, s{sT0}, {L_CS}
        v_add_u32 v{CA+f}, s{sT0}, v{T3}
        s_mul_i32 s{sT0}, s{sNT+f}, 52
        s_lshr_b32 s{sT0}, s{sT0}, 8
        s_mul_i32 s{sT2}, s{sT0}, 5
        s_sub_u32 s{sT2}, s{sNT+f}, s{sT2}
        s_lshl_b32 s{sT2}, s{sT2}, 2
        s_mul_i32 s{sT0}, s{sT0}, 192
        v_add_u32 v{T0}, s{sT2}, v{G}"""))
        c.tailx.append(lines(f"""
        v_mul_u32_u24 v{T1}, 52, v{T0}
        v_lshrrev_b32 v{T1}, 8, v{T1}
        v_add_u32 v{T0}, v{T0}, v{T1}"""))
        c.tailx.append(lines(f"v_lshl_add_u32 v{T0}, v{T0}, 3, v{T2}") + ([f"v_add_u32 v{WA+4+f}, s{sT0}, v{T0}"] if f < 2 else []) +
                       lines(f"s_add_u32 s{sT0}, s{sT0}, s{sT3}\nv_add_u32 v{WA+f}, s{sT0}, v{T0}"))
    main_loop(a, c, S, "q", rec)
    a(f"s_not_b64 exec, {sr(sMSK,2)}")
    for f in range(2): a(f"ds_write_b128 v{CA+f}, {vr(c.acch[f],4)}")
    a("s_mov_b64 exec, -1")
    a(f"s_waitcnt vmcnt({c.yrec})")
    poll(a, sum(rec, []), [c.REC+4*i+2 for i in range(5)], True)
    S(55)
    a("s_waitcnt lgkmcnt(0)\ns_barrier")
    S(56)
    for f in range(4): a(f"ds_read_b128 {vr(CSR+4*f,4)}, v{CA+f}")
    rest = [p for p in LA_ + list(range(25)) if p not in c.early]
    rg = [wfrag(p) for p in rest]
    I = Inter(a, [], 1000)
    TP = c.VPS
    for f in range(4):
        I(f"s_waitcnt lgkmcnt({3-f if f == 0 else 15})" if f == 0 else "s_nop 0")
        if f == 1: I("s_waitcnt lgkmcnt(5)")
        tl = [(c.acc[f][i], WA+f, i*16*RS, c.REC+4*i) for i in range(4)]
        if f < 2: tl.append((c.acch[f], WA+4+f, 0, c.REC+16))
        for (ac, ad, off, st) in tl:
            I(f"""
            v_pk_mul_f32 {vr(TP,2)}, {vr(CSR+4*f,2)}, {vr(st,2)} op_sel:[0,1] op_sel_hi:[1,1]
            v_pk_mul_f32 {vr(TP+2,2)}, {vr(CSR+4*f+2,2)}, {vr(st,2)} op_sel:[0,1] op_sel_hi:[1,1]
            v_pk_fma_f32 {vr(ac,2)}, {vr(ac,2)}, {vr(st,2)}, {vr(TP,2)} op_sel:[0,0,0] op_sel_hi:[1,0,1]
            v_pk_fma_f32 {vr(ac+2,2)}, {vr(ac+2,2)}, {vr(st,2)}, {vr(TP+2,2)} op_sel:[0,0,0] op_sel_hi:[1,0,1]
            v_cvt_pk_bf16_f32 v{ac}, v{ac}, v{ac+1}
            v_cvt_pk_bf16_f32 v{ac+1}, v{ac+2}, v{ac+3}
            ds_write_b64 v{ad}, {vr(ac,2)} offset:{off}
            """)
    S(57)
    al = Alloc(11)
    AB = al(); OV = al(); OV1 = al(); L31 = al()
    MX = al(); SM_ = al()
    Q = al(12, 2); KB = [al(10, 2) for _ in range(5)]
    L = al(8, 2); PL = al(8); PH = al(8); O = al(20, 2); TPa = al(4)
    assert al.n <= WREG, al.n
    I(f"""
    s_and_b32 s{sT0}, s{sW}, 1
    s_lshr_b32 s{sT3}, s{sW}, 1
    s_lshl_b32 s{sT2}, s{sT3}, 5
    s_add_u32 s{sT2}, s{sT2}, 2
    v_and_b32 v{L31}, 31, v{LANE}
    v_add_u32 v{T0}, s{sT2}, v{L31}
    v_mul_u32_u24 v{T0}, {RS}, v{T0}
    v_lshrrev_b32 v{T1}, 5, v{LANE}
    v_mul_u32_u24 v{T2}, 48, v{T1}
    s_mul_i32 s{sT2}, s{sT0}, 96
    v_add3_u32 v{AB}, v{T0}, v{T2}, s{sT2}
    s_lshl_b32 s{sT2}, s{sCB}, 1
    s_add_u32 s{sT2}, s{sT2}, s{sT0}
    s_mul_i32 s{sT2}, s{sT2}, 5
    v_lshl_add_u32 v{T1}, v{T1}, 1, s{sT2}
    v_bfe_u32 v{T0}, v{LANE}, 4, 1
    v_lshlrev_b32 v{T0}, 10, v{T0}
    v_lshl_add_u32 v{T0}, v{R}, 4, v{T0}
    v_lshrrev_b32 v{T2}, 2, v{T1}
    v_lshl_add_u32 v{T2}, v{T2}, 12, v{T0}
    v_and_b32 v{T3}, 3, v{T1}
    v_lshl_add_u32 v{OV}, v{T3}, 8, v{T2}
    v_add_u32 v{T1}, 1, v{T1}
    v_lshrrev_b32 v{T2}, 2, v{T1}
    v_lshl_add_u32 v{T2}, v{T2}, 12, v{T0}
    v_and_b32 v{T3}, 3, v{T1}
    v_lshl_add_u32 v{OV1}, v{T3}, 8, v{T2}
    s_lshl_b32 s{sKX}, s{sRB}, 1
    s_add_u32 s{sKX}, s{sKX}, s{sMH}
    s_mul_i32 s{sKX}, s{sKX}, {74*4096}
    s_and_b32 s{sT1}, s{sT3}, 1
    s_lshl_b32 s{sT1}, s{sT1}, 11
    s_add_u32 s{sKX}, s{sKX}, s{sT1}
    s_add_u32 s{sT2}, s{sT2}, 4
    s_lshr_b32 s{sKW}, s{sT2}, 2
    s_lshl_b32 s{sKW}, s{sKW}, 12
    s_and_b32 s{sT2}, s{sT2}, 3
    s_lshl_b32 s{sT2}, s{sT2}, 8
    s_add_u32 s{sKW}, s{sKW}, s{sT2}
    s_add_u32 s{sKW}, s{sKW}, s{sKX}
    """)
    a("s_waitcnt lgkmcnt(0)\ns_barrier")
    OV2 = T0
    S(5)
    def rd(dst, off):
        return f"ds_read_b128 {vr(dst,4)}, v{AB} offset:{off}\nds_read_b128 {vr(dst+4,4)}, v{AB} offset:{off+16}\nds_read_b64 {vr(dst+8,2)}, v{AB} offset:{off+32}"
    offs = [(14-2*w)*RS+192 for w in range(8)] + [(14-2*w)*RS+384 for w in range(8)]
    issued = 0
    def issue(n):
        nonlocal issued
        for _ in range(n):
            if issued < 16:
                I(rd(KB[issued % 5], offs[issued])); issued += 1
    def need(idx): I(f"s_waitcnt lgkmcnt({3*(issued-1-idx)})")
    I(rd(Q, 14*RS)); issue(4)
    I.g = list(rg); I.e = qevery
    for w in range(8): I(f"v_mov_b32 v{L+w}, 0")
    for d in range(20): I(f"v_mov_b32 v{O+d}, 0")
    for wp in range(4):
        w0, w1 = 2*wp, 2*wp+1
        need(w1)
        for d in range(10):
            for w in (w0, w1): I(f"v_dot2c_f32_bf16 v{L+w}, v{Q+d}, v{KB[w%5]+d}")
        issue(3 if wp == 0 else 2)
    lm = a.uid("Lm")
    a(f"s_or_b32 s{sT2}, s{sRB}, s{sT3}\ns_cmp_lg_u32 s{sT2}, 0\ns_cbranch_scc1 {lm}")
    a(f"v_mov_b32 v{TPa}, {f32(-1e9)}")
    for w in range(1, 8):
        a(f"v_cmp_le_u32 vcc, {2*w}, v{L31}\ns_nop 1\nv_cndmask_b32 v{L+w}, v{TPa}, v{L+w}, vcc")
    a.label(lm)
    cexp = (20 ** -0.5) * math.log2(math.e)
    I(f"""
    v_max3_f32 v{MX}, v{L}, v{L+1}, v{L+2}
    v_max3_f32 v{SM_}, v{L+3}, v{L+4}, v{L+5}
    v_max3_f32 v{MX}, v{MX}, v{L+6}, v{L+7}
    v_max_f32 v{MX}, v{MX}, v{SM_}
    """)
    for w in range(8): I(f"v_sub_f32 v{L+w}, v{L+w}, v{MX}")
    for w in range(8): I(f"v_mul_f32 v{L+w}, {f32(cexp)}, v{L+w}")
    for w in range(8): I(f"v_exp_f32 v{L+w}, v{L+w}")
    I(f"""
    v_add_f32 v{TPa}, v{L}, v{L+1}
    v_add_f32 v{TPa+1}, v{L+2}, v{L+3}
    v_add_f32 v{TPa+2}, v{L+4}, v{L+5}
    v_add_f32 v{TPa+3}, v{L+6}, v{L+7}
    v_add_f32 v{TPa}, v{TPa}, v{TPa+1}
    v_add_f32 v{TPa+2}, v{TPa+2}, v{TPa+3}
    v_add_f32 v{SM_}, v{TPa}, v{TPa+2}
    v_rcp_f32 v{SM_}, v{SM_}
    s_nop 0
    """)
    for w in range(8): I(f"v_mul_f32 v{L+w}, v{L+w}, v{SM_}")
    for w in range(8): I(f"v_cvt_pk_bf16_f32 v{PL+w}, v{L+w}, 0\nv_cvt_pk_bf16_f32 v{PH+w}, 0, v{L+w}")
    for w in range(8):
        need(8+w)
        for d in range(10):
            I(f"v_dot2c_f32_bf16 v{O+2*d}, v{KB[(8+w)%5]+d}, v{PL+w}\nv_dot2c_f32_bf16 v{O+2*d+1}, v{KB[(8+w)%5]+d}, v{PH+w}")
        issue(1)
    S(58)
    for u in (0,1,2,3,8,9,4,5,6,7): a(f"v_cvt_pk_bf16_f32 v{Q+u}, v{O+2*u}, v{O+2*u+1}")
    a(f"""
    buffer_store_dwordx4 {vr(Q,4)}, v{OV}, {sr(SHO,4)}, s{sKX} offen sc1
    v_permlane32_swap_b32 v{Q+8}, v{Q+10}
    v_permlane32_swap_b32 v{Q+9}, v{Q+11}
    buffer_store_dwordx4 {vr(Q+4,4)}, v{OV1}, {sr(SHO,4)}, s{sKX} offen sc1
    s_mov_b32 exec_hi, 0
    buffer_store_dwordx4 {vr(Q+8,4)}, v{OV2}, {sr(SHO,4)}, s{sKW} offen sc1
    s_mov_b64 exec, -1
    """)
    S(6)
    if NB: a("s_barrier")
    qleft = I.g + [wfrag(p) for p in LB]
    sp = 'spoll' in EXP or 'nofld' in EXP
    if not sp: a(FLD)
    emit(qleft[:NB])
    publish(NB+(not sp))
    def tail_loads(gr):
        if LP is None: emit(gr); return
        k = max(len(gr)-LP, 0)
        emit(gr[:k]); a(FLD); emit(gr[k:]); a(f"s_waitcnt vmcnt({len(gr)-k})")
    tail_loads(qleft[NB:])
    if not sp: a(f"s_waitcnt vmcnt({len(qleft)})")
    a("s_branch Lphase2")
    a.label("Lffn")
    side_loads(a, stat=False)
    a(f"s_and_b32 s{sT0}, s2, 1\ns_bfe_u32 s{sT1}, s2, 0x20001\ns_lshr_b32 s{sT2}, s2, 3")
    if QD < 10: a(f"s_cmp_eq_u32 s{sW}, 1\ns_cselect_b32 s{sPG}, {QD*64*3840}, s{sPG}")
    c = Cfg()
    c.nM, c.nF, c.nh, c.wrow, c.wrowb, c.stg, c.xsz, c.nxm, c.duty = 5, 3, 0, 384, 3456, 49152, 20480, 4, True
    al = alloc_common(c)
    B1 = al(8, 2)
    c.acc = [[al(4,4) for i in range(5)] for f in range(3)]
    lowtop = al.n
    eal = al
    al = Alloc(WREG)
    c.X = [[al(4,4) for i in range(5)] for s in range(2)]
    c.W = [[al(4,4) for f in range(3)] for s in range(2)]
    assert al.n <= 208
    c.early = (list(range(15, 25)) + LA_ + [13, 14])[:nearly]
    a(f"""
    s_sub_u32 s{sT2}, s{sT2}, 16
    s_lshl_b32 s{sT1}, s{sT1}, 4
    s_add_u32 s{sT1}, s{sT1}, s{sT2}
    s_cmp_ge_u32 s{sT1}, 63
    s_cbranch_scc1 Lidle
    s_mul_i32 s{sCB}, s{sT1}, 37
    s_lshr_b32 s{sCB}, s{sCB}, 8
    s_sub_u32 s{sT3}, s{sCB}, s{sT0}
    s_mul_i32 s{sT3}, s{sT3}, 7
    s_sub_u32 s{sRB}, s{sT1}, s{sT3}
    s_mul_i32 s{sT3}, s{sRB}, {FROWS}
    s_mul_i32 s{sWO}, s{sCB}, 384
    """)
    c.nW = 3; c.ffn = True; c.dmask = DMASK
    dma_setup(c, 24, 2731, lambda: a(f"v_and_b32 v{T2}, 6, v{T1}\nv_xor_b32 v{T0}, v{T0}, v{T2}\nv_lshlrev_b32 v{T0}, 4, v{T0}"))
    srd(a, SW, P_W1, 640*3456)
    srd(a, SWT, P_B1, 3456)
    a(f"s_lshl_b32 s{sT0}, s{sRB}, 7\ns_lshl_b32 s{sT1}, s{sCB}, 3\ns_add_u32 s{sHF}, s{sT0}, s{sT1}")
    RHO = c.hb[0]
    def f_setup():
        a(f"""
        s_lshr_b32 s{sMH}, s{sW}, 2
        s_bfe_u32 s{sT0}, s{sW}, 0x10001
        s_and_b32 s{sT1}, s{sW}, 1
        s_mul_i32 s{sT0}, s{sT0}, 6
        s_lshl_b32 s{sT2}, s{sT1}, 2
        s_add_u32 s{sNT}, s{sT0}, s{sT2}
        s_add_u32 s{sNT+1}, s{sNT}, 1
        s_add_u32 s{sNT+2}, s{sT0}, s{sT1}
        s_add_u32 s{sNT+2}, s{sNT+2}, 2
        s_cmp_eq_u32 s{sMH}, 0
        s_cselect_b32 s{sMSK}, -1, 0x7fff7fff
        s_cselect_b32 s{sMSK+1}, -1, 0x7fff7fff
        v_lshrrev_b32 v{T0}, 1, v{R}
        v_xor_b32 v{T0}, v{T0}, v{G}
        v_lshlrev_b32 v{T0}, 4, v{T0}
        v_lshl_add_u32 v{T0}, v{R}, 7, v{T0}
        s_mul_i32 s{sT0}, s{sMH}, {5*2048}
        s_add_u32 s{sT0}, s{sT0}, {c.stg}
        v_add_u32 v{c.xb[0]}, s{sT0}, v{T0}
        v_xor_b32 v{c.xb[1]}, 64, v{c.xb[0]}
        """)
        rho_local(a, T0, T1)
        a(f"""
        v_bfe_u32 v{T2}, v{T0}, 1, 2
        v_mul_u32_u24 v{T0}, 384, v{T0}
        v_and_b32 v{T1}, 3, v{LANE}
        v_lshl_add_u32 v{T0}, v{T1}, 3, v{T0}
        v_add_u32 v{T0}, {c.xsz+c.stg}, v{T0}
        """)
        for f in range(3):
            a(f"v_xor_b32 v{T1}, s{sNT+f}, v{T2}\nv_lshl_add_u32 v{c.wb[f]}, v{T1}, 5, v{T0}")
        a(f"""
        s_mul_i32 s{sT0}, s{sRB}, {FROWS}
        s_mul_i32 s{sT1}, s{sMH}, 80
        s_add_u32 s{sT0}, s{sT0}, s{sT1}
        v_add_u32 v{RHO}, s{sT0}, v{R}
        v_lshlrev_b32 v{T0}, 4, v{RHO}
        v_add_u32 v{c.VRA}, {STO}, v{T0}
        """)
        for s in range(2):
            for r in range(4): a(f"v_mov_b32 v{c.X[s][4]+r}, 0x3f803f80")
        a(f"v_lshlrev_b32 v{T0}, 3, v{G}\ns_mul_i32 s{sT2}, s{sCB}, 384")
        for f in range(3):
            a(f"s_lshl_b32 s{sT1}, s{sNT+f}, 5\ns_add_u32 s{sT1}, s{sT1}, s{sT2}")
            a(f"buffer_load_dwordx2 {vr(B1+2*f,2)}, v{T0}, {sr(SWT,4)}, s{sT1} offen")
    pre_loop(c, f_setup)
    rec = [[f"v_add_u32 v{T3}, {256*i}, v{c.VRA}", f"v_min_u32 v{T3}, {STO+2047*16}, v{T3}",
            f"buffer_load_dwordx4 {vr(c.REC+4*i,4)}, v{T3}, {sr(SFL,4)}, 0 offen sc1"] for i in range(5)]
    CA = 17
    c.tailx = [[f"v_lshlrev_b32 v{T3}, 4, v{G}"]] + [lines(f"s_lshl_b32 s{sT0}, s{sNT+f}, 6\ns_add_u32 s{sT0}, s{sT0}, {L_CS}\nv_add_u32 v{CA+f}, s{sT0}, v{T3}") for f in range(3)]
    main_loop(a, c, S, "f", rec)
    a(f"s_waitcnt vmcnt({c.yrec})")
    poll(a, sum(rec, []), [c.REC+4*i+2 for i in range(5)], True)
    lc = a.uid("Lc")
    a(f"s_cmp_eq_u32 s{sMH}, 0\ns_cbranch_scc1 {lc}\ns_not_b64 exec, {sr(sMSK,2)}")
    for f in range(3): a(f"ds_write_b128 v{CA+f}, {vr(c.acc[f][4],4)}")
    a("s_mov_b64 exec, -1\ns_waitcnt lgkmcnt(0)")
    a.label(lc)
    a("s_barrier")
    CC = c.VPS; VA = 11
    CSR = eal(12, 2); TT = [eal(2,2) for _ in range(4)] + [12, B1+6]
    assert eal.n <= WREG, eal.n
    for f in range(3): a(f"ds_read_b128 {vr(CSR+4*f,4)}, v{CA+f}")
    BFp = [c.REC+4*i+2 for i in range(5)] + [B1+4]
    OUTP = [B1, 16]; SG = 20
    assert RHO == 15
    rest = [p for p in list(range(25)) + LA_ + LB if p not in c.early]
    rg = [wfrag(p) for p in rest]
    F1, F2 = rg[:fn1], rg[fn1:]
    I = Inter(a, [], 1000)
    if fevery:
        I = Inter(a, F1, fevery); F1 = []
    half(F1, True)
    c0 = -2*math.sqrt(2/math.pi)*math.log2(math.e); c1 = c0*0.044715
    for j in range(5): I(f"v_lshlrev_b32 v{BFp[j]}, 16, v{B1+j}\nv_and_b32 v{BFp[j]+1}, 0xffff0000, v{B1+j}")
    I(f"v_lshlrev_b32 v{B1+4}, 16, v{B1+5}\nv_and_b32 v{B1+5}, 0xffff0000, v{B1+5}")
    I(f"v_mov_b32 v{CC}, {f32(c0)}\nv_mov_b32 v{CC+1}, {f32(c1)}\nv_mov_b32 v{CC+2}, 1.0")
    I(f"""
    v_and_b32 v{T2}, 15, v{RHO}
    v_lshlrev_b32 v{T2}, 4, v{T2}
    v_lshl_add_u32 v{T1}, v{G}, 8, v{T2}
    v_and_b32 v{T3}, 1, v{G}
    v_lshl_add_u32 v14, v{T3}, 8, v{T2}
    v_lshrrev_b32 v{T0}, 4, v{RHO}
    v_lshrrev_b32 v{T3}, 5, v{LANE}
    v_add_u32 v{RHO}, v{T0}, v{T3}
    s_mul_i32 s{sT2}, s{sCB}, 6
    s_add_u32 s{sT2}, s{sT2}, 20
    s_lshr_b32 s{sT0}, s{sNT}, 1
    s_add_u32 s{sT0}, s{sT0}, s{sT2}
    s_lshl_b32 s{sKX}, s{sT0}, 12
    s_lshr_b32 s{sT0}, s{sNT+2}, 1
    s_add_u32 s{sT0}, s{sT0}, s{sT2}
    s_lshl_b32 s{sKW}, s{sT0}, 12
    s_and_b32 s{sT0}, s{sNT+2}, 1
    s_lshl_b32 s{sT0}, s{sT0}, 9
    s_add_u32 s{sKW}, s{sKW}, s{sT0}
    s_mov_b32 s{sT3}, {74*4096}
    s_waitcnt lgkmcnt(0)
    """)
    a(f"s_cmp_eq_u32 s{sMH}, 0\ns_cselect_b32 s{sMSK}, -1, 0x00ff00ff\ns_mov_b32 s{sMSK+1}, s{sMSK}")
    def gelu_pair(h, cs, b, st, t, dst):
        return [f"v_pk_fma_f32 {vr(t,2)}, {vr(cs,2)}, {vr(st,2)}, {vr(b,2)} op_sel:[0,1,0] op_sel_hi:[1,1,1]",
                f"v_pk_fma_f32 {vr(h,2)}, {vr(h,2)}, {vr(st,2)}, {vr(t,2)} op_sel:[0,0,0] op_sel_hi:[1,0,1]",
                f"v_pk_mul_f32 {vr(t,2)}, {vr(h,2)}, {vr(h,2)}",
                f"v_pk_fma_f32 {vr(t,2)}, {vr(t,2)}, {vr(CC,2)}, {vr(CC,2)} op_sel:[0,1,0] op_sel_hi:[1,1,0]",
                f"v_pk_mul_f32 {vr(t,2)}, {vr(t,2)}, {vr(h,2)}",
                f"v_exp_f32 v{t}, v{t}",
                f"v_exp_f32 v{t+1}, v{t+1}",
                f"v_pk_add_f32 {vr(t,2)}, {vr(t,2)}, {vr(CC+2,2)} op_sel_hi:[1,0]",
                f"v_rcp_f32 v{t}, v{t}",
                f"v_rcp_f32 v{t+1}, v{t+1}",
                f"v_pk_mul_f32 {vr(t,2)}, {vr(t,2)}, {vr(h,2)}",
                f"v_cvt_pk_bf16_f32 v{dst}, v{t}, v{t+1}"]
    def blkaddr(dst, tile, low):
        I(f"""
        v_lshrrev_b32 v{T2}, 2, v{tile}
        v_mul_lo_u32 v{T2}, v{T2}, s{sT3}
        v_and_b32 v{T3}, 3, v{tile}
        v_lshl_add_u32 v{T2}, v{T3}, 10, v{T2}
        v_add_u32 v{dst}, v{T2}, v{low}
        """)
    for i in range(5):
        o = OUTP[i & 1]
        streams = [gelu_pair(c.acc[f][i]+2*hp, CSR+4*f+2*hp, BFp[2*f+hp], c.REC+4*i, TT[2*f+hp],
                             (o+2*f+hp) if f < 2 else (SG+2*(i&1)+hp)) for f in range(3) for hp in range(2)]
        for k in range(len(streams[0])):
            for s in streams: I(s[k])
        blkaddr(VA, T0, T1)
        I(f"v_add_u32 v{T0}, 1, v{T0}")
        if i == 4: a(f"s_mov_b64 exec, {sr(sMSK,2)}")
        a(f"buffer_store_dwordx4 {vr(o,4)}, v{VA}, {sr(SHO,4)}, s{sKX} offen sc1")
        if i == 4: a("s_mov_b64 exec, -1")
        if i & 1 or i == 4:
            a(f"v_permlane32_swap_b32 v{SG}, v{SG+2}\nv_permlane32_swap_b32 v{SG+1}, v{SG+3}")
            blkaddr(VA, RHO, 14)
            I(f"v_add_u32 v{RHO}, 2, v{RHO}")
            if i == 4: a(f"s_mov_b32 exec_lo, s{sMSK}\ns_mov_b32 exec_hi, 0")
            a(f"buffer_store_dwordx4 {vr(SG,4)}, v{VA}, {sr(SHO,4)}, s{sKW} offen sc1")
            if i == 4: a("s_mov_b64 exec, -1")
    S(6)
    F2 = I.g + F2
    half(F1, False)
    if not sp: a(FLD)
    nb = min(len(F2)-1, NB)
    assert nb >= 0
    emit(F2[:nb])
    publish(nb+(not sp), len(F1))
    tail_loads(F2[nb:])
    if not sp: a(f"s_waitcnt vmcnt({len(F2)})")
    a("s_branch Lphase2")
    a.label("Lidle")
    late_srds()
    emit([duty(a, 6, False)])
    p2_setup(a, 11)
    a("s_waitcnt vmcnt(0)")
    t_work(a)
    a(f"v_mov_b32 v14, 0\nv_mov_b32 v15, 0\ns_waitcnt vmcnt(0)\ns_barrier")
    nonce_get(a, 14, 12)
    poll(a, [f"buffer_load_dwordx2 v[14:15], v11, {sr(SFL,4)}, 0 offen sc1"], [14], False)
    for l in p2_ldsbases(): a(l)
    emit([wfrag(p) for p in c.early + rest])
    a(f"v_mov_b32 v{VFD}, 0\nv_mov_b32 v{VFD+1}, 0")
    a.label("Lphase2")
    al = Alloc(12)
    al(2, 2); VLA = al(); VLB = al()
    acc = [[al(4,4) for m in range(4)] for n in range(5)]
    BUF = [al(16, 4), al(16, 4), WREG]
    XR = al(6, 2)
    B2 = [al(2, 2), WREG+16, WREG+18]
    assert al.n <= WREG, al.n
    S(8)
    if 'spoll' in EXP:
        l0, l1 = a.uid("Lsp"), a.uid("Lsp")
        a(f"v_readlane_b32 s{sPFO}, v{VF}, 0\nv_readlane_b32 s{sPFS}, v{VF}, 2\ns_mov_b32 s{sSP}, 0\ns_nop 3")
        a.label(l0)
        a(f"""
        s_buffer_load_dwordx4 s[12:15], {sr(SFL,4)}, s{sPFO} glc
        s_buffer_load_dwordx4 {sr(STMP,4)}, {sr(SFL,4)}, s{sPFS} glc
        s_add_u32 s{sSP}, s{sSP}, 1
        s_cmp_gt_u32 s{sSP}, 400000
        s_cbranch_scc1 {l1}
        s_waitcnt lgkmcnt(0)
        s_cmp_lg_u64 s[12:13], {sr(sNON,2)}
        s_cbranch_scc1 {l0}
        s_cmp_lg_u64 s[14:15], {sr(sNON,2)}
        s_cbranch_scc1 {l0}
        s_cmp_lg_u64 {sr(STMP,2)}, {sr(sNON,2)}
        s_cbranch_scc1 {l0}
        s_cmp_lg_u64 {sr(STMP+2,2)}, {sr(sNON,2)}
        s_cbranch_scc1 {l0}
        """)
        a.label(l1)
        a("s_waitcnt lgkmcnt(0)")
    elif 'nopoll' not in EXP: poll(a, [FLD], [VFD], 'nofld' not in EXP or LP is not None, SLEEP)
    S(9)
    RS_ = [WR0+20*t for t in range(5)]
    abuf = {u: BUF[u % 3] for u in range(9)}; abuf[9] = RS_[0]
    wloc = {u: RS_[u] for u in range(5)}
    wloc.update({5: RS_[0], 6: RS_[1], 7: RS_[2], 8: RS_[3], 9: RS_[4]})
    def aload(t):
        g = [[f"buffer_load_dwordx4 {vr(abuf[t]+4*m,4)}, v{VL}, {sr(SPF,4)}, s{sT3} offen offset:{1024*m} sc1"] for m in range(4)]
        g[0] = [f"s_lshl_b32 s{sT3}, s{sK+t}, 12"] + g[0]
        return g
    ops = []
    for t in (0, 1, 2): emit(aload(t)); ops += [t]*4
    SOX, SOB = [sKX, sKW, sDELTA], [sSLOT, sW1K, sMH]
    setup = [lines(f"v_add_u32 v{VLA}, s{sFILL}, v{VL}\nv_add_u32 v{VLB}, s{sFW}, v{VL}\ns_mul_i32 s{sT0}, s{sC2}, 160")]
    for j in range(3):
        setup += chunks(lines(f"""
        s_add_u32 s{sT1}, s{sW}, {8*j}
        s_mul_i32 s{sT2}, s{sT1}, 52
        s_lshr_b32 s{sT2}, s{sT2}, 8
        s_mul_i32 s{sT3}, s{sT2}, 5
        s_sub_u32 s{sT1}, s{sT1}, s{sT3}
        s_lshl_b32 s{sT1}, s{sT1}, 5
        s_mul_i32 s{sT2}, s{sT2}, 20480
        s_add_u32 s{SOX[j]}, s{sT2}, s{sT1}
        s_add_u32 s{SOB[j]}, s{sT0}, s{sT1}
        """), 3)
    for d, p, sz in ((STMP, P_B2, 1280), (SW, P_OUT, XB)):
        setup += [[f"s_mov_b32 s{d}, s{p}", f"s_mov_b32 s{d+1}, s{p+1}"], [f"s_mov_b32 s{d+2}, {sz}", f"s_mov_b32 s{d+3}, 0x00020000"]]
    setup.append([f"v_lshlrev_b32 v{T1}, 3, v{G}"])
    def pw(n, m):
        q = m*5+n
        ad, off = (VLA, q*1024) if q < 8 else (VLB, (q-8)*1024)
        return f"ds_write_b128 v{ad}, {vr(acc[n][m],4)} offset:{off}"
    def sonly(groups):
        lab = a.uid("Lso")
        return [f"s_cmp_ge_u32 s{sW}, 2", f"s_cbranch_scc1 {lab}"] + sum(groups, []) + [lab + ":"]
    tl = [(n, m) for n in range(5) for m in range(4)]
    for t in (0, 1, 2, 3, 4, 5, 6, 7, 9, 8):
        if t == 9:
            a(f"s_cmp_ge_u32 s{sW}, 2\ns_cbranch_scc1 Lp2skip")
            a(f"s_waitcnt vmcnt(6)")
        else:
            if t == 8: a.label("Lp2skip")
            younger = len(ops) - 1 - max(i for i, o in enumerate(ops) if o == t)
            a(f"s_waitcnt vmcnt({younger})" + (" lgkmcnt(0)" if t == 5 else ""))
        M = [mfma(acc[n][m], wloc[t]+4*n, abuf[t]+4*m, t == 0) for (n, m) in tl]
        items = []
        if t == 0: items += even(setup, 20, 0)
        if 1 <= t <= 6:
            items += [(0+5*k, g) for k, g in enumerate(aload(t+2))]; ops += [t+2]*4
        if 1 <= t <= 4:
            for n in range(5):
                phi = (t+4)*5+n
                ad, off = (VLA, (phi-25)*1024) if phi < 33 else (VLB, (phi-33)*1024)
                items.append((2+4*n, [f"ds_read_b128 {vr(wloc[t+4]+4*n,4)}, v{ad} offset:{off}"]))
        if t == 5: items.append((18, sonly([wfrag(45+n, wloc[9]+4*n) for n in range(5)])))
        if t == 6: items.append((18, sonly(aload(9))))
        if t == 7:
            for j in range(3): items.append((1+6*j, [f"buffer_load_dwordx2 {vr(XR+2*j,2)}, v{VXO}, {sr(SX,4)}, s{SOX[j]} offen"])); ops.append('x')
            for j in range(3): items.append((4+6*j, [f"buffer_load_dwordx2 {vr(B2[j],2)}, v{T1}, {sr(STMP,4)}, s{SOB[j]} offen"])); ops.append('b')
        if t == 8: items += [(k, [pw(*tl[k-8])]) for k in range(8, 20)]
        for l in spread(M, items): a(l)
        if t == 8:
            a("s_nop 0")
            for k in range(12, 20): a(pw(*tl[k]))
        if t != 8 and 'p2st' in EXP: S(40+t)
    a(f"""
    s_lshl_b32 s{sT0}, s{sW}, 10
    v_add_u32 v{T0}, s{sT0}, v{VL}
    v_add_u32 v{T2}, {L_A}, v{T0}
    v_add_u32 v{T3}, {4*12288}, v{T0}
    """)
    S(52)
    a("s_waitcnt lgkmcnt(0)\ns_barrier")
    S(53)
    P = [[acc[0][0] + (j*8+s)*4 for s in range(8)] for j in range(3)]
    assert P[2][7]+4 <= XR
    def rdtile(j):
        for s in range(8):
            if j == 0: ad, off = T2, s*8192
            else: ad, off = (T0 if s < 4 else T3), (s%4)*12288 + (j-1)*8192
            a(f"ds_read_b128 {vr(P[j][s],4)}, v{ad} offset:{off}")
    L2E = f32(-math.log2(math.e))
    def fin(j):
        o = []
        p = P[j]
        Sx, Y, Z = p[0], p[2], p[3]
        for h in (0, 2):
            for k in (0, 2, 4, 6): o.append(f"v_pk_add_f32 {vr(p[k]+h,2)}, {vr(p[k]+h,2)}, {vr(p[k+1]+h,2)}")
        def unp(x, q):
            return lines(f"v_lshlrev_b32 v{x}, 16, v{q}\nv_and_b32 v{x+1}, 0xffff0000, v{q}\nv_lshlrev_b32 v{x+2}, 16, v{q+1}\nv_and_b32 v{x+3}, 0xffff0000, v{q+1}")
        o += unp(Z, B2[j])
        for h in (0, 2):
            o.append(f"v_pk_add_f32 {vr(p[2]+h,2)}, {vr(p[2]+h,2)}, {vr(p[4]+h,2)}")
            o.append(f"v_pk_add_f32 {vr(p[6]+h,2)}, {vr(p[6]+h,2)}, {vr(Z+h,2)}")
        for h in (0, 2): o.append(f"v_pk_add_f32 {vr(Y+h,2)}, {vr(Y+h,2)}, {vr(p[6]+h,2)}")
        for r in range(4): o.append(f"v_mul_f32 v{Z+r}, {L2E}, v{Y+r}")
        for r in range(4): o.append(f"v_exp_f32 v{Z+r}, v{Z+r}")
        for r in range(4): o.append(f"v_add_f32 v{Z+r}, 1.0, v{Z+r}")
        for r in range(4): o.append(f"v_rcp_f32 v{Z+r}, v{Z+r}")
        for h in (0, 2): o.append(f"v_pk_mul_f32 {vr(Y+h,2)}, {vr(Y+h,2)}, {vr(Sx+h,2)}")
        o += unp(p[4], XR+2*j)
        for r in range(4): o.append(f"v_fma_f32 v{Y+r}, v{Y+r}, v{Z+r}, v{p[4]+r}")
        o += [f"v_cvt_pk_bf16_f32 v{Sx}, v{Y}, v{Y+1}", f"v_cvt_pk_bf16_f32 v{Sx+1}, v{Y+2}, v{Y+3}",
              f"buffer_store_dwordx2 {vr(Sx,2)}, v{VXO}, {sr(SW,4)}, s{SOX[j]} offen {OSF}"]
        return o
    rdtile(0); rdtile(1)
    l3 = a.uid("L3")
    a(f"s_cmp_ge_u32 s{sW}, 4\ns_cbranch_scc1 {l3}")
    rdtile(2)
    a("s_waitcnt vmcnt(0) lgkmcnt(8)")
    for x, y in zip(fin(0), fin(1)): a(x); a(y)
    a("s_waitcnt lgkmcnt(0)")
    for x in fin(2): a(x)
    a("s_branch Lfin")
    a.label(l3)
    a("s_waitcnt vmcnt(0) lgkmcnt(0)")
    for x, y in zip(fin(0), fin(1)): a(x); a(y)
    a.label("Lfin")
    S.finish(54)
    a.label("Lend")
    a("s_endpgm")
    ref = open(f"cdna_kernels/{NAME}.s.ref").read().split("\n")
    hdr = [l for l in ref if l.startswith(";") and "@launch" not in l]
    out = "\n".join(hdr) + f"\n; @launch grid=(256,1,1) block=(512,1,1) lds={LDS_TOTAL}\n"
    out += '.amdgcn_target "amdgcn-amd-amdhsa--gfx950"\n' + khead(name) + a.text() + kd(name, 256, 102)
    return out

if __name__ == "__main__":
    path = sys.argv[1]
    kw = eval("dict(" + (sys.argv[2] if len(sys.argv) > 2 else "") + ")")
    open(path, "w").write(gen(**kw))
```

```python
from asmlib import *
import math, sys
NAME = "recurrent_scan__sliding_local_dilated__dense_activation_gelu__prompt"
XB = 2048*640*2
HO_SZ = 32*74*4096
WT_OFF, WT_SZ = 0xB00000, 8*74*5*1024
FLB = 0x400000
TFO, STO, HFB = FLB+0x1000, FLB+0x40000, FLB+0x20000
FL_SZ = FLB + 0x60000
RSH = 4; FSH = 0; TSH = 3
BIG = 0x7ff00000
RS = 592
L_TST, L_CS, L_A = 147456, 88064, 98304
LA_ = list(range(25, 33)); LB = [33, 34] + list(range(36, 45)) + [35]
WR0 = 156
VFD = 12
LDS_TOTAL = 163840
FROWS = 152

SX, SW, SHO, SPF, SWT, SFL, SDBG, STMP = 4, 8, 16, 20, 24, 28, 32, 36
sXA, sXB, sEM, sWO = 12, 13, 14, 15
P_X, P_WQ, P_WO, P_W1, P_B1, P_W2, P_B2, P_OUT, P_DBG, P_WS = 40, 42, 44, 48, 50, 52, 54, 56, 58, 60
(sW, sRB, sCB, sI, sKX, sKW, sTM, sFILL, sDELTA, sSLOT, sW1K, sT0, sT1, sT2, sT3, sMH) = range(62, 78)
sNT = 78; sNON = 82; sMSK = 84; sR2, sC2 = 50, 51; sK = 88; sSP = 98; sN2 = 99
sWM = 100
sFW, sWB = 3, 47
sTB = 42
sHF = 43
sPFO, sPFS, sPG = 46, 86, 87
sRM, sRH = 48, 49
sTS = [44, 45, 52, 53]
VF, LANE, G, R, T0, T1, T2, T3, VST, VL, VXO = 0, 1, 2, 3, 4, 5, 6, 7, 8, 9, 10
WREG = 136
SIDE = 232
RT = 5; SLI = 3; MAP2 = 81; ROTA = 2; EXP = set(); PFF = ""; DN = 2; DMASK = 0b101; DPRE = 2; SP = dict(tw=1, nonce=3, sl=3, sw=5, tf=5); TFL = "nt"; RECIT = 9

def mfma(d, a_, b_, c0=False): return f"v_mfma_f32_16x16x32_bf16 {vr(d,4)}, {vr(a_,4)}, {vr(b_,4)}, " + ("0" if c0 else vr(d,4))
def chunks(l, n): return [l[i:i+n] for i in range(0, len(l), n)]
def merge(groups, n): return [sum(g, []) for g in chunks(groups, n)]
def lines(t): return [l.strip() for l in t.strip("\n").split("\n") if l.strip()]
def srd(a, d, p, size, off=None):
    if off is None: a(f"s_mov_b32 s{d}, s{p}\ns_mov_b32 s{d+1}, s{p+1}")
    else: a(f"s_add_u32 s{d}, s{p}, {off}\ns_addc_u32 s{d+1}, s{p+1}, 0")
    a(f"s_mov_b32 s{d+2}, {size}\ns_mov_b32 s{d+3}, 0x00020000")

class St:
    def __init__(s, a, on): s.a, s.on = a, on
    def start(s):
        if s.on: s.a(f"s_memtime s[0:1]\nv_mov_b32 v{VST}, 0\ns_waitcnt lgkmcnt(0)\nv_writelane_b32 v{VST}, s0, 59\nv_writelane_b32 v{VST}, s94, 0\nv_writelane_b32 v{VST}, s96, 62")
    def __call__(s, i):
        if s.on: s.a(f"s_memtime s[0:1]\ns_waitcnt lgkmcnt(0)\nv_writelane_b32 v{VST}, s0, {i}")
    def dyn(s, base):
        if s.on and ((base == 30 and 'nobar' not in EXP) or 'lst' in EXP):
            s.a(f"s_memtime s[0:1]\ns_add_u32 m0, s{sI}, {base}\ns_waitcnt lgkmcnt(0)\nv_writelane_b32 v{VST}, s0, m0")
    def finish(s, i):
        if not s.on: return
        s.a(f"""
        s_waitcnt vmcnt(0)
        s_memtime s[0:1]
        s_waitcnt lgkmcnt(0)
        v_writelane_b32 v{VST}, s0, {i}
        s_memrealtime s[0:1]
        s_waitcnt lgkmcnt(0)
        v_writelane_b32 v{VST}, s0, 63
        s_lshl_b32 s3, s2, 3
        s_add_u32 s3, s3, s{sW}
        s_lshl_b32 s3, s3, 8
        s_add_u32 s3, s3, {STAMP_OFF}
        s_add_u32 s{STMP}, s{P_WS}, s3
        s_addc_u32 s{STMP+1}, s{P_WS+1}, 0
        s_mov_b32 s{STMP+2}, 256
        s_mov_b32 s{STMP+3}, 0x00020000
        v_lshlrev_b32 v{T0}, 2, v{LANE}
        buffer_store_dword v{VST}, v{T0}, {sr(STMP,4)}, 0 offen
        """)
class Cfg: inloop = False

def wld(c, u):
    ld = f"buffer_load_dwordx4 v{c.VW[u]}, {sr(SW,4)}, s{sKW} offen offset:{1024*u} lds"
    return [f"s_mov_b64 exec, {sr(sWM,2)}", ld, "s_mov_b64 exec, -1"] if u == 3 else [ld]
def dmaA(c, a):
    lab = a.uid("Lsk")
    return [[f"s_add_u32 m0, s{sFILL}, s{sW1K}", f"s_add_u32 s{sXA}, s{sXA}, 128"],
            [f"buffer_load_dwordx4 v{c.VX[0]}, {sr(SX,4)}, s{sXA} offen lds"],
            [f"buffer_load_dwordx4 v{c.VX[1]}, {sr(SX,4)}, s{sXA} offen offset:1024 lds"],
            [f"s_cbranch_vccz {lab}", f"s_add_u32 m0, s{sFILL}, s{sEM}", f"s_add_u32 s{sXB}, s{sXB}, 128",
             f"buffer_load_dwordx4 v{c.VX[2]}, {sr(SX,4)}, s{sXB} offen lds", lab + ":"],
            [f"s_add_u32 m0, s{sFILL}, s{sWB}", f"s_add_u32 s{sKW}, s{sKW}, {64*c.wrowb}"]] + ([wld(c, 0)] if c.nW == 4 else [])
def dmaB(c, a): return [wld(c, u) for u in range(c.nW-3, c.nW)]
def guard(a, groups, old):
    out = []
    for g in groups:
        lab = a.uid("Lg")
        out.append([f"s_cbranch_vcc{'z' if old else 'nz'} {lab}"] + g + [lab + ":"])
    return out
SETVCC = None
def reads(c, st, s):
    r = []
    if 'xrd' in EXP and c.inloop: return [['s_nop 0']]
    for i in range(c.nM):
        ins = f"ds_read_b128 {vr(c.X[st][i],4)}, v{c.xb[s]} offset:{i*2048}"
        if (not c.nh) and i == c.nM-1: r.append([f"s_mov_b64 exec, {sr(sMSK,2)}", ins, "s_mov_b64 exec, -1"])
        else: r.append([ins])
    if c.nh: r.append([f"s_mov_b64 exec, {sr(sMSK,2)}", f"ds_read_b128 {vr(c.XH[st],4)}, v{c.hb[s]}", "s_mov_b64 exec, -1"])
    for f in range(c.nF):
        r.append([f"ds_read_b64_tr_b16 {vr(c.W[st][f],2)}, v{c.wb[f]} offset:{s*32*c.wrow}"])
        r.append([f"ds_read_b64_tr_b16 {vr(c.W[st][f]+2,2)}, v{c.wb[f]} offset:{s*32*c.wrow+8*c.wrow}"])
    return r
def mfmas(c, st, c0=False):
    m = []
    for f in range(c.nF):
        for i in range(c.nM): m.append(mfma(c.acc[f][i], c.W[st][f], c.X[st][i], c0))
        if f < c.nh: m.append(mfma(c.acch[f], c.W[st][f], c.XH[st], c0))
    return m
def spread(main, items):
    out = []
    for i, m in enumerate(main):
        out.append(m)
        for p, g in items:
            if p == i or (i == len(main)-1 and p > i): out.extend(g)
    return out
def even(groups, n, lo=1):
    k = len(groups)
    return [(lo + (j*(n-lo))//k, g) for j, g in enumerate(groups)] if k else []

def stat_row(a):
    a(f"""
    s_and_b32 s{sT0}, s2, 1
    s_lshl_b32 s{sT0}, s{sT0}, 10
    s_bfe_u32 s{sT2}, s2, 0x20001
    s_lshl_b32 s{sT2}, s{sT2}, 8
    s_add_u32 s{sT0}, s{sT0}, s{sT2}
    s_and_b32 s{sT2}, s2, 0x78
    s_lshl_b32 s{sT2}, s{sT2}, 1
    s_add_u32 s{sT0}, s{sT0}, s{sT2}
    s_sub_u32 s{sT2}, s{sW}, 4
    s_lshl_b32 s{sT2}, s{sT2}, 2
    s_add_u32 s{sT0}, s{sT0}, s{sT2}
    """)
def nonce_get(a, vN, vPS, flag=True):
    l0, l1, l2, l3 = a.uid("Lno"), a.uid("Lno"), a.uid("Lno"), a.uid("Lno")
    assert vN == vPS + 2 and vPS % 2 == 0
    a(f"s_mov_b32 s{sSP}, 0")
    a.label(l0)
    a(f"""
    v_readfirstlane_b32 s{sNON}, v{vN}
    v_readfirstlane_b32 s{sNON+1}, v{vN+1}
    s_add_u32 s{sSP}, s{sSP}, 1
    s_cmp_gt_u32 s{sSP}, 100000
    s_cbranch_scc1 {l1}
    s_cmp_lg_u32 s{sNON}, 0
    s_cbranch_scc1 {l1}
    v_mov_b32 v{T0}, 0
    buffer_load_dwordx2 {vr(vN,2)}, v{T0}, {sr(SDBG,4)}, 0 offen sc1
    s_waitcnt vmcnt(0)
    s_branch {l0}
    """)
    a.label(l1)
    if not flag: return
    a(f"""
    s_cmp_lg_u32 s{sW}, 0
    s_cbranch_scc1 {l2}
    s_lshl_b32 s{sT1}, s2, {TSH}
    s_add_u32 s{sT1}, s{sT1}, {TFO-(128<<TSH)}
    v_lshlrev_b32 v{T0}, 3, v{LANE}
    s_mov_b64 exec, {0xffff if TSH == 7 else 1}
    buffer_store_dwordx2 {vr(vN,2)}, v{T0}, {sr(SFL,4)}, s{sT1} offen sc1
    s_mov_b64 exec, -1
    """)
    a.label(l2)
def poll(a, loads, cmps, preloaded, sleep=0):
    l0, l1, l2 = a.uid("Lpo"), a.uid("Lpo"), a.uid("Lpo")
    a(f"s_mov_b32 s{sSP}, 0")
    if preloaded: a(f"s_branch {l2}")
    a.label(l0)
    for l in loads: a(l)
    a("s_waitcnt vmcnt(0)")
    a.label(l2)
    for k, v in enumerate(cmps):
        if k == 0: a(f"v_cmp_eq_u64 vcc, {sr(sNON,2)}, {vr(v,2)}")
        else: a(f"v_cmp_eq_u64 {sr(sT1,2)}, {sr(sNON,2)}, {vr(v,2)}\ns_nop 0\ns_and_b64 vcc, vcc, {sr(sT1,2)}")
    a(f"""
    s_add_u32 s{sSP}, s{sSP}, 1
    s_cmp_gt_u32 s{sSP}, 100000
    s_cbranch_scc1 {l1}
    s_cmp_eq_u64 vcc, -1
    """)
    if sleep: a(f"s_cbranch_scc1 {l1}\ns_sleep {sleep}\ns_branch {l0}")
    else: a(f"s_cbranch_scc0 {l0}")
    a.label(l1)

def wfrag(phi, dst=None):
    t, n = divmod(phi, 5)
    pre = [f"s_mul_i32 s{sTM}, s{sK+t}, 5120"]
    if phi < 25 or dst is not None:
        d = WR0+4*phi if dst is None else dst
        if n < 4: return pre + [f"buffer_load_dwordx4 {vr(d,4)}, v{VL}, {sr(SWT,4)}, s{sTM} offen offset:{1024*n} sc1"]
        return pre + [f"s_add_u32 s{sTM}, s{sTM}, 4096", f"buffer_load_dwordx4 {vr(d,4)}, v{VL}, {sr(SWT,4)}, s{sTM} offen sc1"]
    base, o = (sFILL, (phi-25)*1024) if phi < 33 else (sFW, (phi-33)*1024)
    return [f"s_add_u32 m0, s{base}, {o}"] + pre + [f"s_add_u32 s{sTM}, s{sTM}, {1024*n}", f"buffer_load_dwordx4 v{VL}, {sr(SWT,4)}, s{sTM} offen sc1 lds"]
def p2_ldsbases():
    return [f"s_lshl_b32 s{sFILL}, s{sW}, 13", f"s_add_u32 s{sFILL}, s{sFILL}, {L_A}", f"s_mul_i32 s{sFW}, s{sW}, 12288"]

def stage_set(c, st):
    return [f"s_mov_b32 s{sFILL}, {((st+1) % 3) * c.stg}"]
def duty(a, n=2, guard=True, mask=0):
    lab = a.uid("Ldu")
    g = [f"s_bitcmp1_b32 {mask}, s{sI}", f"s_cbranch_scc0 {lab}"] if guard else []
    for _ in range(n):
        g += lines(f"""
        s_cmp_ge_u32 s{sPFO}, s{sPG}
        s_cbranch_scc1 {lab}
        buffer_load_dword v255, v254, {sr(STMP,4)}, s{sPFO} offen {PFF}
        s_add_u32 s{sPFO}, s{sPFO}, s{sPFS}""")
    return g + [lab + ":"]

def atoms(group):
    if any(l.endswith(":") for l in group): return [group]
    out = []; k = 0
    while k < len(group):
        if group[k].startswith("s_mov_b64 exec"): out.append(group[k:k+3]); k += 3
        else: out.append([group[k]]); k += 1
    return out
def balance(M, streams, last):
    items = []
    for units, lo, hi in streams:
        tot = sum(len(u) for u in units); acc = 0
        for u in units:
            items.append((lo + (acc*(hi-lo+1))//max(tot, 1), u)); acc += len(u)
    return spread(M, items)

def iteration(a, c, S, kind, extra1=(), extra2=(), pre2=None):
    prio = 'noprio' not in EXP
    a("s_waitcnt lgkmcnt(0)")
    M = mfmas(c, 0, kind == 0); n = len(M)
    upd = lambda b: [f"v_add_u32 v{b}, s{sDELTA}, v{b}"]
    rd = reads(c, 1, 1); nx = c.nM + (1 if c.nh else 0)
    R = rd[:nx]
    if kind != 9: R = R + [upd(c.xb[1])] + ([upd(c.hb[1])] if c.nh else [])
    for f in range(c.nF):
        R += rd[nx+2*f:nx+2*f+2]
        if kind != 9 and f: R.append(upd(c.wb[f-1]))
    late = []
    if kind != 9: late = [upd(c.wb[c.nF-1]), upd(c.xb[0])] + ([upd(c.hb[0])] if c.nh else [])
    Sx = []; S0 = []
    if kind != 9:
        S0 = [[f"s_add_u32 s{sT1}, s{sSLOT}, {c.stg}", f"s_cmp_eq_u32 s{sT1}, {3*c.stg}", f"s_cselect_b32 s{sT1}, 0, s{sT1}"], [f"s_sub_u32 s{sDELTA}, s{sT1}, s{sSLOT}"]]
    if kind in ('loop', 7): Sx += dmaB(c, a)
    if kind == 0: Sx += dmaB(c, a) + [stage_set(c, 2)] + dmaA(c, a) + dmaB(c, a)
    Sx += sum([atoms(g) for g in extra1], [])
    if kind in ('loop', 0):
        Sx += [[f"s_mov_b32 s{sFILL}, s{sSLOT}"]]
    if kind != 9: Sx.append([f"s_mov_b32 s{sSLOT}, s{sT1}"])
    st = [(S0, 0, 1), (Sx, 0 if kind == 0 else 2, n-2), (R, 0, n-RT), (late, n-RT+1, n-2)]
    if prio: st = [([["s_setprio 1"]], 0, 0), ([["s_setprio 0"]], n//2, n//2)] + st
    for l in balance(M, st, n): a(l)
    S.dyn(10)
    if kind in ('loop', 0, 7): a(f"s_waitcnt vmcnt({c.nW+2}) lgkmcnt(0)")
    elif kind == 8: a(f"s_waitcnt vmcnt({c.y8}) lgkmcnt(0)")
    else: a("s_waitcnt lgkmcnt(0)")
    S.dyn(20)
    a("s_barrier")
    S.dyn(30)
    if prio: a("s_setprio 3")
    if pre2: pre2()
    M = mfmas(c, 1)
    R = reads(c, 0, 0) if kind != 9 else []
    Sx = []
    if kind in ('loop', 0):
        if c.duty: Sx.append(duty(a, mask=c.dmask))
        Sx += dmaA(c, a)
    Sx += sum([atoms(g) for g in extra2], [])
    st = [(Sx, 0, n-3), (R, 0, n-RT)]
    if kind == 'loop':
        st.append(([[f"s_bitcmp1_b32 {0x20 if c.ffn else (0x20 | (5 << SLI))}, s{sI}", f"s_cbranch_scc1 Lspec_{c.tag}", f"Lret_{c.tag}:"]], n-3, n-3))
        st.append(([[f"s_add_u32 s{sI}, s{sI}, 1", f"s_cmp_lt_u32 s{sI}, 7"]], n-2, n-2))
    if prio: st.append(([["s_setprio 2"]], n//2, n//2))
    for l in balance(M, st, n): a(l)

def main_loop(a, c, S, tag, rec_loads):
    iteration(a, c, S, 0)
    nonce_get(a, c.VN, c.VPS, c.ffn)
    a(f"s_mov_b32 s{sI}, 1")
    S(40)
    a.label(f"Lloop_{tag}")
    c.inloop = True; c.tag = tag
    iteration(a, c, S, 'loop')
    c.inloop = False
    a(f"s_cbranch_scc1 Lloop_{tag}")
    a(f"s_branch Lpost_{tag}")
    l5 = a.uid("Ls")
    tf = f"buffer_load_dwordx2 {vr(c.VN,2)}, v{c.VTF}, {sr(SFL,4)}, 0 offen sc1"
    a.label(f"Lspec_{tag}")
    if not c.ffn:
        l6 = a.uid("Ls")
        a(f"s_cmp_lg_u32 s{sI}, {SLI}\ns_cbranch_scc1 {l5}")
        stat_loads(a)
        a.label(l5)
        a(f"s_cmp_lg_u32 s{sI}, {SLI+2}\ns_cbranch_scc1 {l6}")
        s_work(a, c.VPS)
        a.label(l6)
        a(f"s_cmp_lg_u32 s{sI}, 5\ns_cbranch_scc1 Lret_{tag}")
    a(tf)
    a(f"s_branch Lret_{tag}")
    a.label(f"Lpost_{tag}")
    S(41)
    early = [wfrag(p) for p in c.early]
    e = []; k = 0
    for cnt in c.esplit: e.append(early[k:k+cnt]); k += cnt
    assert k == len(early)
    def pre7():
        poll(a, [tf], [c.VN], True)
        for l in p2_ldsbases(): a(l)
    iteration(a, c, S, 7, extra2=e[0], pre2=pre7)
    a(f"s_add_u32 s{sI}, s{sI}, 1")
    c.y8 = len(e[0]) + len(e[1])
    iteration(a, c, S, 8, extra1=e[1], extra2=rec_loads + e[2])
    a(f"s_add_u32 s{sI}, s{sI}, 1")
    iteration(a, c, S, 9, extra1=e[3], extra2=e[4] + c.tailx)
    a("s_setprio 0")
    c.yrec = len(e[2]) + len(e[3]) + len(e[4])
    S(4)

def rho_local(a, d, t):
    a(f"v_bfe_u32 v{d}, v{LANE}, 2, 3\nv_lshrrev_b32 v{t}, 5, v{LANE}\nv_lshl_add_u32 v{d}, v{t}, 4, v{d}")

def t_issue(a, guard=True):
    for q in range(4):
        a(f"s_add_u32 m0, s{sTB}, {1024*q}\ns_nop 0")
        a(f"buffer_load_dwordx4 v{SIDE+4+q}, {sr(SPF,4)}, 0 offen {TFL} lds")
def side_loads(a, stat=True, issue=True):
    ld, lst, lh, lj = a.uid("Lt"), a.uid("Lt"), a.uid("Lt"), a.uid("Lt")
    sU, sKp, sCh = sKX, sKW, sDELTA
    A0, A1, ST0, ST1 = SIDE, SIDE+1, SIDE+2, SIDE+3
    a(f"s_cmp_lt_u32 s{sW}, 2\ns_cbranch_scc1 {ld}")
    a(f"""
    s_lshl_b32 s{sTB}, s{sW}, 12
    s_add_u32 s{sTB}, s{sTB}, {L_TST-2*4096}
    s_mul_i32 s{sT0}, s{sW}, 49152
    s_sub_u32 s{sT0}, s{sT0}, {6*49152-45056}
    s_cmp_ge_u32 s{sW}, 6
    s_cselect_b32 s{sTB}, s{sT0}, s{sTB}
    s_mul_i32 s{sU}, s2, 6
    s_add_u32 s{sU}, s{sU}, s{sW}
    s_sub_u32 s{sU}, s{sU}, {128*6+2}
    s_min_u32 s{sU}, s{sU}, 739
    s_mul_i32 s{sCh}, s{sU}, 886
    s_lshr_b32 s{sCh}, s{sCh}, 16
    s_mul_i32 s{sT0}, s{sCh}, 74
    s_sub_u32 s{sKp}, s{sU}, s{sT0}
    v_lshrrev_b32 v{T0}, 5, v{LANE}
    s_cmp_ge_u32 s{sKp}, 20
    s_cbranch_scc1 {lh}
    """)
    for e, (A, ST) in enumerate(((A0, ST0), (A1, ST1))):
        a(f"""
        s_lshl_b32 s{sT0}, s{sKp}, 2
        s_add_u32 s{sT0}, s{sT0}, {2*e}
        v_add_u32 v{T1}, s{sT0}, v{T0}
        v_mul_u32_u24 v{T2}, 205, v{T1}
        v_lshrrev_b32 v{T2}, 10, v{T2}
        v_mul_u32_u24 v{T3}, 5, v{T2}
        v_sub_u32 v{T1}, v{T1}, v{T3}
        v_mul_u32_u24 v{A}, 40, v{T2}
        v_lshrrev_b32 v{T2}, 1, v{T1}
        v_mul_u32_u24 v{T2}, 20, v{T2}
        v_and_b32 v{T3}, 1, v{T1}
        v_lshl_add_u32 v{T2}, v{T3}, 3, v{T2}
        v_cmp_eq_u32 vcc, 4, v{T1}
        v_mov_b32 v{ST}, 20
        s_nop 0
        v_cndmask_b32 v{T2}, v{T2}, 16, vcc
        v_cndmask_b32 v{ST}, 4, v{ST}, vcc
        v_add_u32 v{A}, v{A}, v{T2}
        """)
    a("s_waitcnt lgkmcnt(0)")
    srd(a, SPF, P_WO, 640*1280)
    a(f"s_branch {lj}")
    a.label(lh)
    a(f"""
    s_sub_u32 s{sT0}, s{sKp}, 20
    s_mul_i32 s{sT1}, s{sT0}, 86
    s_lshr_b32 s{sT1}, s{sT1}, 8
    s_mul_i32 s{sT1}, s{sT1}, 3
    s_sub_u32 s{sT1}, s{sT0}, s{sT1}
    s_lshl_b32 s{sT0}, s{sT0}, 5
    v_lshl_add_u32 v{A0}, v{T0}, 2, s{sT0}
    s_cmp_eq_u32 s{sT1}, 1
    s_cselect_b32 s{sT1}, 16, 8
    s_cselect_b32 s{sT2}, 8, 16
    v_add_u32 v{A1}, s{sT1}, v{A0}
    v_mov_b32 v{ST0}, s{sT2}
    v_mov_b32 v{ST1}, s{sT2}
    """)
    a("s_waitcnt lgkmcnt(0)")
    srd(a, SPF, P_W2, 1728*1280)
    a.label(lj)
    a(f"""
    v_bfe_u32 v{T1}, v{LANE}, 3, 2
    v_and_b32 v{T2}, 7, v{LANE}
    v_lshlrev_b32 v{T2}, 4, v{T2}
    s_lshl_b32 s{sT0}, s{sCh}, 7
    s_lshl_b32 s{sT1}, s{sW}, 12
    """)
    for q in range(4):
        A, ST = ((A0, ST0), (A1, ST1))[q & 1]
        a(f"v_add_u32 v{T3}, v{A}, v{T1}")
        if q >> 1: a(f"v_add_u32 v{T3}, v{T3}, v{ST}")
        a(f"v_mul_u32_u24 v{T3}, 1280, v{T3}\nv_add3_u32 v{SIDE+4+q}, v{T3}, v{T2}, s{sT0}")
    if issue: t_issue(a, False)
    a(f"s_mul_i32 s{sT2}, s{sKp}, 5\ns_lshl_b32 s{sT3}, s{sCh}, 2")
    for t in range(4):
        a(f"""
        s_add_u32 s{sT0}, s{sT3}, {t}
        s_mul_i32 s{sT1}, s{sT0}, 52
        s_lshr_b32 s{sT1}, s{sT1}, 8
        s_mul_i32 s{sT1}, s{sT1}, 365
        s_add_u32 s{sT0}, s{sT0}, s{sT1}
        s_add_u32 s{sT0}, s{sT0}, s{sT2}
        s_lshl_b32 s{sTS[t]}, s{sT0}, 10
        """)
    a(f"s_branch {ld}")
    a.label(lst)
    if stat: stat_loads(a, False)
    a.label(ld)
def stat_loads(a, guard=True):
    ld = a.uid("Lsl")
    if guard: a(f"s_cmp_lt_u32 s{sW}, 4\ns_cbranch_scc1 {ld}")
    stat_row(a)
    a(f"s_mul_i32 s{sT0}, s{sT0}, 1280\nv_mul_u32_u24 v{T0}, 1280, v{G}\nv_lshl_add_u32 v{T0}, v{R}, 4, v{T0}")
    for i in range(5): a(f"buffer_load_dwordx4 {vr(SIDE+4*i,4)}, v{T0}, {sr(SX,4)}, s{sT0} offen offset:{256*i}")
    a.label(ld)
for u in range(1001): assert (u*6554)>>16 == u//10
for u in range(80): assert (u*205)>>10 == u//5
for u in range(54): assert (u*86)>>8 == u//3
for N in range(40): assert (N*52)>>8 == N//5

def t_work(a):
    lab = a.uid("Ltw")
    a(f"s_cmp_lt_u32 s{sW}, 2\ns_cbranch_scc1 {lab}")
    t_part(a)
    a.label(lab)
def s_work(a, vPS):
    lab = a.uid("Ltw")
    a(f"s_cmp_lt_u32 s{sW}, 4\ns_cbranch_scc1 {lab}")
    s_part(a, SIDE+20)
    a(f"v_mov_b32 v{SIDE}, v{SIDE+20}\nv_mov_b32 v{SIDE+1}, v{SIDE+21}\nv_mov_b32 v{SIDE+2}, s{sNON}\nv_mov_b32 v{SIDE+3}, s{sNON+1}")
    stat_row(a)
    a(f"""
    s_lshl_b32 s{sT0}, s{sT0}, {RSH}
    s_add_u32 s{sT0}, s{sT0}, {STO}
    v_lshlrev_b32 v{T0}, {RSH}, v{G}
    v_lshl_add_u32 v{T0}, v{R}, 4, v{T0}
    s_mov_b32 exec_lo, {0x00010001 if RSH == 4 else 0x00030003}
    s_mov_b32 exec_hi, {0x00010001 if RSH == 4 else 0x00030003}
    buffer_store_dwordx4 {vr(SIDE,4)}, v{T0}, {sr(SFL,4)}, s{sT0} offen sc1
    s_mov_b64 exec, -1
    """)
    a.label(lab)
def t_part(a):
    tmp = SIDE
    a(f"""
    v_lshrrev_b32 v{T0}, 2, v{LANE}
    v_lshlrev_b32 v{T0}, 7, v{T0}
    v_and_b32 v{T1}, 3, v{LANE}
    v_lshl_add_u32 v{T0}, v{T1}, 3, v{T0}
    v_add_u32 v{T0}, s{sTB}, v{T0}
    """)
    for t in range(4):
        a(f"ds_read_b64_tr_b16 {vr(tmp+4*t,2)}, v{T0} offset:{32*t}")
        a(f"ds_read_b64_tr_b16 {vr(tmp+4*t+2,2)}, v{T0} offset:{32*t+2048}")
    for t in range(4):
        a(f"s_waitcnt lgkmcnt({6-2*t})\nbuffer_store_dwordx4 {vr(tmp+4*t,4)}, v{VL}, {sr(SFL,4)}, s{sTS[t]} offen sc1")
def s_part(a, vPS):
    tmp = SIDE
    s, q = vPS, vPS+1
    a(f"v_mov_b32 v{s}, 0\nv_mov_b32 v{q}, 0\nv_mov_b32 v{T0}, 0x3f803f80")
    for j in range(20):
        a(f"v_dot2c_f32_bf16 v{s}, v{tmp+j}, v{T0}\nv_dot2c_f32_bf16 v{q}, v{tmp+j}, v{tmp+j}")
    a("s_nop 2")
    for sh in (8, 4, 2, 1):
        a(f"v_add_f32_dpp v{s}, v{s}, v{s} row_ror:{sh} row_mask:0xf bank_mask:0xf")
        a(f"v_add_f32_dpp v{q}, v{q}, v{q} row_ror:{sh} row_mask:0xf bank_mask:0xf")
        a("s_nop 0")
    a(f"""
    v_mul_f32 v{s}, {f32(1/640)}, v{s}
    v_mul_f32 v{q}, {f32(1/640)}, v{q}
    v_fma_f32 v{q}, -v{s}, v{s}, v{q}
    v_max_f32 v{q}, 0, v{q}
    v_cvt_pk_bf16_f32 v{T0}, v{s}, v{q}
    v_lshlrev_b32 v{T1}, 16, v{T0}
    v_and_b32 v{q}, 0xffff0000, v{T0}
    v_add_f32 v{q}, {f32(1e-5)}, v{q}
    v_cvt_pk_bf16_f32 v{q}, v{q}, v{q}
    v_and_b32 v{q}, 0xffff0000, v{q}
    v_sqrt_f32 v{q}, v{q}
    s_nop 0
    v_cvt_pk_bf16_f32 v{q}, v{q}, v{q}
    v_and_b32 v{q}, 0xffff0000, v{q}
    v_rcp_f32 v{s}, v{q}
    s_nop 0
    v_mul_f32 v{q}, v{T1}, v{s}
    v_sub_f32 v{q}, 0, v{q}
    """)

def p2_setup(a, VTF):
    if MAP2 == 81:
        a(f"""
    s_and_b32 s{sT0}, s2, 7
    s_lshl_b32 s{sR2}, s{sT0}, 2
    s_bfe_u32 s{sT1}, s2, 0x20003
    s_add_u32 s{sR2}, s{sR2}, s{sT1}
    s_lshr_b32 s{sC2}, s2, 5
    s_lshl_b32 s{sT1}, s{sT1}, 1
    s_mul_i32 s{sT0}, s{sC2}, {ROTA}
    s_lshr_b32 s{sT0}, s{sT0}, 1
    s_add_u32 s{sT1}, s{sT1}, s{sT0}
    """)
    else:
        a(f"""
    s_and_b32 s{sT0}, s2, 3
    s_lshl_b32 s{sR2}, s{sT0}, 3
    s_bfe_u32 s{sT1}, s2, 0x30003
    s_add_u32 s{sR2}, s{sR2}, s{sT1}
    s_and_b32 s{sC2}, s2, 4
    s_lshr_b32 s{sT0}, s2, 6
    s_add_u32 s{sC2}, s{sC2}, s{sT0}
    s_mul_i32 s{sT0}, s{sT0}, {ROTA}
    s_add_u32 s{sT1}, s{sT1}, s{sT0}
    """)
    a(f"""
    s_cmp_lt_u32 s{sW}, 2
    s_cselect_b32 s{sN2}, 10, 9
    s_cmp_ge_u32 s{sT1}, s{sN2}
    s_cselect_b32 s{sT2}, s{sN2}, 0
    s_sub_u32 s{sK}, s{sT1}, s{sT2}
    """)
    for t in range(1, 10):
        a(f"s_add_u32 s{sK+t}, s{sK+t-1}, 1\ns_cmp_eq_u32 s{sK+t}, s{sN2}\ns_cselect_b32 s{sK+t}, 0, s{sK+t}")
    a(f"""
    s_mul_i32 s{sT3}, s{sW}, 9
    s_min_u32 s{sT2}, s{sW}, 2
    s_add_u32 s{sT3}, s{sT3}, s{sT2}
    v_lshrrev_b32 v{T0}, 1, v{LANE}
    s_sub_u32 s{sT2}, s{sN2}, 1
    v_min_u32 v{T0}, s{sT2}, v{T0}
    v_add_u32 v{T0}, s{sT3}, v{T0}
    s_mul_i32 s{sT2}, s{sC2}, 5
    s_lshr_b32 s{sT2}, s{sT2}, 2
    s_mul_i32 s{sT2}, s{sT2}, 74
    v_and_b32 v{T1}, 1, v{LANE}
    v_mul_u32_u24 v{T1}, 74, v{T1}
    v_add3_u32 v{T0}, v{T0}, v{T1}, s{sT2}
    v_mul_u32_u24 v{T0}, 10923, v{T0}
    v_lshrrev_b32 v{T0}, 16, v{T0}
    v_lshlrev_b32 v{T0}, {TSH}, v{T0}
    v_add_u32 v{VTF}, {TFO}, v{T0}
    s_mul_i32 s{sT2}, s{sC2}, 74
    s_add_u32 s{sT2}, s{sT2}, s{sT3}
    s_mul_i32 s{sT2}, s{sT2}, 5120
    s_add_u32 s{sT2}, s{sT2}, {WT_OFF}
    s_add_u32 s{SWT}, s{P_WS}, s{sT2}
    s_addc_u32 s{SWT+1}, s{P_WS+1}, 0
    s_mul_i32 s{SWT+2}, s{sN2}, {0 if 'now' in EXP else 5120}
    s_mov_b32 s{SWT+3}, 0x00020000
    s_mul_i32 s{sT2}, s{sR2}, 74
    s_add_u32 s{sT2}, s{sT2}, s{sT3}
    s_lshl_b32 s{sT2}, s{sT2}, 12
    s_add_u32 s{SPF}, s{P_WS}, s{sT2}
    s_addc_u32 s{SPF+1}, s{P_WS+1}, 0
    s_lshl_b32 s{SPF+2}, s{sN2}, 12
    {f"s_mov_b32 s{SPF+2}, 0" if 'noa' in EXP else ""}
    s_mov_b32 s{SPF+3}, 0x00020000
    """)
    ly, lyd = a.uid("Ly"), a.uid("Ly")
    a(f"""
    s_cmp_ge_u32 s{sW}, 2
    s_cbranch_scc1 {ly}
    s_lshr_b32 s{sT0}, s{sR2}, 1
    s_lshl_b32 s{sT0}, s{sT0}, 7
    s_lshl_b32 s{sT1}, s{sW}, 5
    s_add_u32 s{sT0}, s{sT0}, s{sT1}
    s_add_u32 s{sT0}, s{sT0}, {16*128}
    v_and_b32 v{T0}, 3, v{LANE}
    v_lshl_add_u32 v{VF}, v{T0}, 3, s{sT0}
    s_branch {lyd}
    """)
    a.label(ly)
    a(f"""
    s_lshl_b32 s{sT0}, s{sR2}, 6
    s_add_u32 s{sT1}, s{sT0}, 63
    s_mul_i32 s{sT0}, s{sT0}, 27595
    s_lshr_b32 s{sT0}, s{sT0}, 22
    s_mul_i32 s{sT1}, s{sT1}, 27595
    s_lshr_b32 s{sT1}, s{sT1}, 22
    s_sub_u32 s{sT1}, s{sT1}, s{sT0}
    s_lshl_b32 s{sT1}, s{sT1}, 7
    s_lshl_b32 s{sT0}, s{sT0}, 7
    s_sub_u32 s{sT2}, s{sW}, 2
    s_mul_i32 s{sT2}, s{sT2}, 3
    s_lshr_b32 s{sT2}, s{sT2}, 1
    s_lshl_b32 s{sT2}, s{sT2}, 3
    s_add_u32 s{sT0}, s{sT0}, s{sT2}
    v_and_b32 v{T0}, 1, v{LANE}
    v_lshlrev_b32 v{T0}, 3, v{T0}
    v_bfe_u32 v{T1}, v{LANE}, 1, 1
    v_mul_u32_u24 v{T1}, s{sT1}, v{T1}
    v_add3_u32 v{VF}, v{T0}, v{T1}, s{sT0}
    """)
    a.label(lyd)
    a(f"v_lshlrev_b32 v{VF}, {FSH}, v{VF}\nv_add_u32 v{VF}, {HFB}, v{VF}")
    a(f"""
    s_lshl_b32 s{sT0}, s{sR2}, 6
    v_add_u32 v{T0}, s{sT0}, v{R}
    v_mul_u32_u24 v{T0}, 1280, v{T0}
    v_lshl_add_u32 v{T0}, v{G}, 3, v{T0}
    s_mul_i32 s{sT0}, s{sC2}, 160
    v_add_u32 v{VXO}, s{sT0}, v{T0}
    """)
for u in range(740): assert (u*10923)>>16 == u//6
for x in range(2048): assert (x*27595)>>22 == x//152

class Inter:
    def __init__(s, a, groups, every): s.a, s.g, s.e, s.n = a, list(groups), every, 0
    def __call__(s, txt):
        for l in lines(txt):
            s.a(l); s.n += 1
            if s.n % s.e == 0 and s.g:
                for x in s.g.pop(0): s.a(x)
    def flush(s, keep=0):
        while len(s.g) > keep:
            for x in s.g.pop(0): s.a(x)

def gen(stamps=False, PF=4, pff="", SLEEP=0, LP=None, QD=10, DMQ=0b10000, sli=3, rt=4, qevery=16, fn1=30, map2=81, rota=2, fevery=25, OSF='', exp="tup nofld cpf d0q wf wr wt", NB=0, dmask=0b111, tfl="nt", eq=(2,2,2,2,2), ef=(2,2,2,2,2), TLB=0):
    global EXP, PFF, DN, DMASK, DPRE, TFL, MAP2, ROTA
    MAP2 = map2; ROTA = rota
    global RT, SLI, RSH, FSH, TSH
    TSH = 7 if 'wt' in exp.split() else 3
    RSH = 5 if 'wr' in exp.split() else 4; FSH = 4 if 'wf' in exp.split() else 0
    RT = rt; SLI = sli
    EXP = set(exp.split()); PFF = pff; TFL = tfl; DMASK = dmask
    a = Asm(); S = St(a, stamps)
    name = NAME + "_kernel"
    def emit(groups):
        for g in groups:
            for l in g: a(l)
    if stamps: a("s_memrealtime s[96:97]\ns_memtime s[94:95]")
    a(f"s_cmp_ge_u32 s2, 256\ns_cbranch_scc1 Lend")
    if 'badmap' in EXP: a("s_and_b32 s3, s2, 31\ns_lshl_b32 s3, s3, 3\ns_lshr_b32 s2, s2, 5\ns_or_b32 s2, s2, s3")
    a(f"s_load_dwordx16 s[40:55], s[0:1], 0\ns_load_dwordx4 s[56:59], s[0:1], 64\ns_load_dwordx2 s[60:61], s[0:1], 80")
    a(f"""
    v_lshrrev_b32 v{T0}, 6, v0
    v_and_b32 v{LANE}, 63, v0
    v_readfirstlane_b32 s{sW}, v{T0}
    v_lshrrev_b32 v{G}, 4, v{LANE}
    v_and_b32 v{R}, 15, v{LANE}
    v_lshlrev_b32 v{VL}, 4, v{LANE}
    s_lshl_b32 s{sW1K}, s{sW}, 11
    s_mov_b32 s{sI}, 0
    """)
    def pf_addr(nrow_cu, kper, nst, cidx_s, VD):
        pass
    lx, lq, ld, lw = a.uid("Lpf"), a.uid("Lpf"), a.uid("Lpf"), a.uid("Lpf")
    a(f"""
    s_bfe_u32 s{sT2}, s2, 0x40003
    s_lshr_b32 s{sT3}, s2, 7
    s_and_b32 s{sT0}, s2, 1
    s_bfe_u32 s{sT1}, s2, 0x20001
    s_mov_b32 s{sPG}, 0
    v_mov_b32 v254, 0
    s_cmp_ge_u32 s{sW}, 3
    s_cbranch_scc1 {lw}
    s_cmp_ge_u32 s{sW}, 1
    s_cbranch_scc1 {lq}
    s_lshl_b32 s{sT0}, s{sT0}, 10
    s_lshl_b32 s{sT1}, s{sT1}, 8
    s_lshl_b32 s{sT2}, s{sT2}, 4
    s_add_u32 s{sT0}, s{sT0}, s{sT1}
    s_add_u32 s{sT0}, s{sT0}, s{sT2}
    v_add_u32 v{T0}, s{sT0}, v{R}
    v_mul_u32_u24 v{T0}, 1280, v{T0}
    v_and_b32 v{T1}, 1, v{G}
    v_lshl_add_u32 v254, v{T1}, 7, v{T0}
    s_lshl_b32 s{sT0}, s{sT3}, 8
    s_mov_b32 s{sPFS}, 256
    s_mov_b32 s{sPG}, 1280
    s_waitcnt lgkmcnt(0)
    s_mov_b32 s{sPFO}, 512
    """)
    srd(a, STMP, P_X, XB)
    a(f"buffer_load_dword v255, v254, {sr(STMP,4)}, s{sT0} offen {pff}")
    a(f"s_branch {ld}")
    a.label(lq)
    a(f"""
    s_cmp_eq_u32 s{sW}, 2
    s_cbranch_scc1 {lx}
    v_min_u32 v{T0}, 35, v{LANE}
    v_mul_u32_u24 v{T1}, 57, v{T0}
    v_lshrrev_b32 v{T1}, 9, v{T1}
    v_mul_u32_u24 v{T3}, 9, v{T1}
    v_sub_u32 v{T0}, v{T0}, v{T3}
    s_lshl_b32 s{sT2}, s{sT2}, 2
    v_add_u32 v{T1}, s{sT2}, v{T1}
    v_mul_u32_u24 v{T1}, 3840, v{T1}
    v_mul_u32_u24 v{T3}, 43, v{T0}
    v_lshrrev_b32 v{T3}, 7, v{T3}
    v_mul_u32_u24 v{T3}, 896, v{T3}
    v_lshl_add_u32 v{T0}, v{T0}, 7, v{T3}
    s_mul_i32 s{sT1}, s{sT1}, 320
    s_and_b32 s{sT1}, s{sT1}, 0xffffff80
    v_add3_u32 v254, v{T0}, v{T1}, s{sT1}
    s_mul_i32 s{sT0}, s{sT3}, {128*3840}
    s_add_u32 s{sT1}, s{sT0}, {64*3840}
    s_mov_b32 s{sPFS}, {64*3840}
    s_mov_b32 s{sPG}, {640*3840}
    s_waitcnt lgkmcnt(0)
    s_mov_b32 s{sPFO}, {256*3840}
    """)
    srd(a, STMP, P_WQ, 640*3840)
    a(f"buffer_load_dword v255, v254, {sr(STMP,4)}, s{sT0} offen {pff}")
    a(f"buffer_load_dword v255, v254, {sr(STMP,4)}, s{sT1} offen {pff}")
    a(f"s_branch {ld}")
    a.label(lx)
    a(f"""
    s_and_b32 s{sT0}, s2, 127
    s_mul_i32 s{sT0}, s{sT0}, 3456
    v_min_u32 v{T0}, 26, v{LANE}
    v_lshl_add_u32 v254, v{T0}, 7, s{sT0}
    s_mul_i32 s{sT0}, s{sT3}, {128*3456}
    s_mov_b32 s{sPFS}, {128*3456}
    s_mov_b32 s{sPG}, {640*3456}
    s_waitcnt lgkmcnt(0)
    s_mov_b32 s{sPFO}, {256*3456}
    """)
    srd(a, STMP, P_W1, 640*3456)
    a(f"buffer_load_dword v255, v254, {sr(STMP,4)}, s{sT0} offen {pff}")
    a(f"s_branch {ld}")
    a.label(lw)
    if 'cpf' in EXP:
        lc_ = a.uid("Lcp")
        a(f"""
        s_cmp_lg_u32 s{sW}, 7
        s_cbranch_scc1 {lc_}
        s_getpc_b64 {sr(sNON,2)}
        s_and_b32 s{sNON}, s{sNON}, 0xffffff00
        s_lshr_b32 s{sT0}, s2, 3
        s_mul_i32 s{sT0}, s{sT0}, 10
        v_min_u32 v{T0}, 9, v{LANE}
        v_add_u32 v{T0}, s{sT0}, v{T0}
        v_lshlrev_b32 v{T0}, 7, v{T0}
        v_min_u32 v{T0}, Lend-{lc_}, v{T0}
        global_load_dword v255, v{T0}, {sr(sNON,2)}
        """)
        a.label(lc_)
    ln = a.uid("Ln")
    a(f"s_cmp_lg_u32 s2, 0\ns_cbranch_scc1 {ln}\ns_cmp_lg_u32 s{sW}, 7\ns_cbranch_scc1 {ln}\ns_waitcnt lgkmcnt(0)")
    srd(a, SDBG, P_DBG, 256)
    a(f"""
    s_memrealtime {sr(sNON,2)}
    s_waitcnt lgkmcnt(0)
    s_or_b32 s{sNON}, s{sNON}, 1
    v_mov_b32 v{T0}, s{sNON}
    v_mov_b32 v{T1}, s{sNON+1}
    v_mov_b32 v{T2}, 0
    s_mov_b64 exec, 1
    buffer_store_dwordx2 {vr(T0,2)}, v{T2}, {sr(SDBG,4)}, 0 offen sc1
    s_mov_b64 exec, -1
    """)
    a.label(ln)
    a("s_waitcnt lgkmcnt(0)")
    srd(a, STMP, P_X, XB)
    a(f"s_mov_b32 s{sPFS}, 0\ns_mov_b32 s{sPFO}, 0")
    a.label(ld)
    S.start()
    srd(a, SX, P_X, XB)
    a(f"""
    s_and_b32 s{sT0}, s2, 1
    s_bfe_u32 s{sT1}, s2, 0x20001
    s_lshr_b32 s{sT2}, s2, 3
    s_cmp_ge_u32 s{sT2}, 16
    s_cbranch_scc1 Lffn
    """)
    def late_srds():
        srd(a, SHO, P_WS, 0 if 'nost' in EXP else HO_SZ); srd(a, SFL, P_WS, FL_SZ, WT_OFF); srd(a, SDBG, P_DBG, 256)
    def set_stage(c, st): emit([stage_set(c, st)])
    def pretouch(flagoff_s):
        lp = a.uid("Lpt")
        a(f"s_cmp_lg_u32 s{sW}, 7\ns_cbranch_scc1 {lp}")
        stat_row(a)
        a(f"""
        s_lshl_b32 s{sT0}, s{sT0}, 4
        s_add_u32 s{sT0}, s{sT0}, {STO}
        v_mov_b32 v{T0}, s{sT0}
        s_lshl_b32 s{sT0}, s2, 3
        s_add_u32 s{sT0}, s{sT0}, {TFO}
        v_writelane_b32 v{T0}, s{sT0}, 1
        """)
        if flagoff_s is not None:
            a(f"s_add_u32 s{sT0}, s{flagoff_s}, {FLB}\nv_writelane_b32 v{T0}, s{sT0}, 2")
        a(f"buffer_load_dword v255, v{T0}, {sr(SFL,4)}, 0 offen sc1")
        if TLB:
            a(f"v_lshlrev_b32 v{T0}, {TLB}, v{LANE}")
            a(f"buffer_load_dword v255, v{T0}, {sr(SHO,4)}, 0 offen sc1")
            a(f"buffer_load_dword v255, v{T0}, {sr(SFL,4)}, 0 offen sc1")
            srd(a, SPF, P_OUT, XB)
            a(f"buffer_load_dword v255, v{T0}, {sr(SPF,4)}, 0 offen sc1")
            srd(a, SPF, P_B2, 1280)
            a(f"buffer_load_dword v255, v{T0}, {sr(SPF,4)}, 0 offen")
        a.label(lp)
    d0e = lambda c: 'd0e' in EXP or ('d0q' in EXP and not c.ffn)
    def pre_loop(c, setup):
        if d0e(c):
            a(f"s_cmp_lt_u32 s{sW}, {c.nxm}\ns_cselect_b64 vcc, -1, 0")
            set_stage(c, 0); emit(dmaA(c, a) + dmaB(c, a))
        late_srds()
        setup()
        p2_setup(a, c.VTF)
        S(1)
        a(f"s_cmp_lt_u32 s{sW}, {c.nxm}\ns_cselect_b64 vcc, -1, 0")
        if not d0e(c):
            a("s_barrier")
            set_stage(c, 0); emit(dmaA(c, a) + dmaB(c, a))
        if c.ffn:
            a(f's_waitcnt vmcnt({c.nW+2})'); t_work(a)
        a(f"v_mov_b32 v{T0}, 0")
        a(f"buffer_load_dwordx2 {vr(c.VN,2)}, v{T0}, {sr(SDBG,4)}, 0 offen sc1")
        if 'nb2' not in EXP: a("s_barrier")
        set_stage(c, 1); emit(dmaA(c, a))
        a(f"s_waitcnt vmcnt({c.nW})")
        S(2)
        a("s_barrier")
        S(3)
        emit(reads(c, 0, 0))
        a(f"s_mov_b32 s{sSLOT}, {c.stg}")
    def alloc_common(c):
        al = Alloc(11)
        c.VX = [al(), al(), 124]; c.VW = [120, 121, 122, 123]
        c.xb = [al(), al()]; c.hb = [al(), al()]; c.wb = [al() for _ in range(c.nF)]
        c.VTF = al(); c.VRA = al(); c.VPS = al(2, 4); c.VN = al(2, 2); c.REC = al(20, 4)
        assert c.VPS == 24
        return al
    def dma_setup(c, P, magic, colfn):
        a(f"""
        s_lshl_b32 s{sT0}, s{sW}, 4
        s_add_u32 s{sT0}, s{sT0}, s{sT3}
        s_max_i32 s{sT0}, s{sT0}, 0
        s_mul_i32 s{sXA}, s{sT0}, 1280
        s_sub_u32 s{sXA}, s{sXA}, 128
        s_lshl_b32 s{sT0}, s{sW}, 3
        s_add_u32 s{sT0}, s{sT0}, s{sT3}
        s_mul_i32 s{sXB}, s{sT0}, 1280
        s_add_u32 s{sXB}, s{sXB}, {128*1280-128}
        s_lshl_b32 s{sEM}, s{sW}, 10
        s_add_u32 s{sEM}, s{sEM}, 16384
        v_lshrrev_b32 v{T0}, 3, v{LANE}
        v_mul_u32_u24 v{T0}, 1280, v{T0}
        v_xor_b32 v{T1}, v{G}, v{LANE}
        v_and_b32 v{T1}, 7, v{T1}
        v_lshl_add_u32 v{c.VX[0]}, v{T1}, 4, v{T0}
        v_xor_b32 v{T2}, 64, v{c.VX[0]}
        v_add_u32 v{c.VX[1]}, {8*1280-1024}, v{T2}
        s_and_b32 s{sT0}, s{sW}, 1
        s_lshl_b32 s{sT1}, s{sT0}, 6
        v_xor_b32 v{c.VX[2]}, s{sT1}, v{c.VX[0]}
        s_lshl_b32 s{sT0}, s{sT0}, 2
        s_lshr_b32 s{sT1}, s{sW}, 1
        s_lshl_b32 s{sT1}, s{sT1}, 4
        s_add_u32 s{sT0}, s{sT0}, s{sT1}
        s_mul_i32 s{sKW}, s{sT0}, {c.wrowb}
        s_add_u32 s{sKW}, s{sKW}, s{sWO}
        s_sub_u32 s{sKW}, s{sKW}, {64*c.wrowb}
        s_mov_b32 s{sWM}, -1
        s_mov_b32 s{sWM+1}, 0xffff
        s_mul_i32 s{sWB}, s{sW}, {8*c.wrow}
        s_add_u32 s{sWB}, s{sWB}, {c.xsz}
        """)
        for u in range(c.nW):
            a(f"""
            v_add_u32 v{T0}, {64*u}, v{LANE}
            v_mul_u32_u24 v{T1}, {magic}, v{T0}
            v_lshrrev_b32 v{T1}, 16, v{T1}
            v_mul_u32_u24 v{T2}, {P}, v{T1}
            v_sub_u32 v{T0}, v{T0}, v{T2}
            """)
            colfn()
            a(f"""
            v_and_b32 v{T2}, 4, v{T1}
            v_add_u32 v{T1}, v{T1}, v{T2}
            v_mul_u32_u24 v{T1}, {c.wrowb}, v{T1}
            v_add_u32 v{T0}, v{T0}, v{T1}
            v_subrev_u32 v{c.VW[u]}, {1024*u}, v{T0}
            """)
    def half(groups, young):
        if not groups: return
        lh = a.uid("Lh")
        a(f"s_cmp_ge_u32 s{sW}, 4\ns_cbranch_scc{0 if young else 1} {lh}")
        emit(groups)
        a.label(lh)
    FLD = f"buffer_load_dwordx2 {vr(VFD,2)}, v{VF}, {sr(SFL,4)}, 0 offen sc1"
    def publish(younger, old_extra=0):
        lp, lw1 = a.uid("Lp"), a.uid("Lp")
        if old_extra:
            a(f"s_waitcnt vmcnt({younger+old_extra})\ns_cmp_lt_u32 s{sW}, 4\ns_cbranch_scc1 {lw1}")
        a(f"s_waitcnt vmcnt({younger})")
        a.label(lw1)
        a(f"""
        s_barrier
        s_cmp_lg_u32 s{sW}, 0
        s_cbranch_scc1 {lp}
        v_mov_b32 v{T0}, s{sNON}
        v_mov_b32 v{T1}, s{sNON+1}
        v_lshlrev_b32 v{T2}, 3, v{LANE}
        s_lshl_b32 s{sHF}, s{sHF}, {FSH}
        s_add_u32 s{sHF}, s{sHF}, {HFB}
        s_mov_b64 exec, {0xffff if FSH else 1}
        buffer_store_dwordx2 {vr(T0,2)}, v{T2}, {sr(SFL,4)}, s{sHF} offen sc1
        s_mov_b64 exec, -1
        """)
        a.label(lp)
        S(7)
    c = Cfg()
    c.nM, c.nF, c.nh, c.wrow, c.wrowb, c.stg, c.xsz, c.nxm, c.duty = 4, 4, 2, 480, 3840, 49152, 18432, 2, False
    al = alloc_common(c)
    c.acc = [[al(4,4) for i in range(4)] for f in range(4)]
    c.acch = [al(4,4) for f in range(2)]
    lowtop = al.n
    al = Alloc(WREG)
    c.X = [[al(4,4) for i in range(4)] for s in range(2)]
    c.XH = [al(4,4) for s in range(2)]
    c.W = [[al(4,4) for f in range(4)] for s in range(2)]
    assert al.n == 208
    c.esplit = eq; c.early = (list(range(15, 25)) + LA_ + [13, 14])[:sum(eq)]
    a(f"""
    s_lshl_b32 s{sRB}, s{sT0}, 3
    s_and_b32 s{sT3}, s{sT2}, 7
    s_add_u32 s{sRB}, s{sRB}, s{sT3}
    s_lshl_b32 s{sCB}, s{sT1}, 1
    s_lshr_b32 s{sT3}, s{sT2}, 3
    s_add_u32 s{sCB}, s{sCB}, s{sT3}
    s_lshl_b32 s{sT3}, s{sRB}, 7
    s_sub_u32 s{sT3}, s{sT3}, 16
    s_mul_i32 s{sWO}, s{sCB}, 160
    """)
    c.nW = 4; c.ffn = False; c.duty = QD < 10; c.dmask = DMQ
    if QD < 10: a(f"s_cmp_eq_u32 s{sW}, 1\ns_cselect_b32 s{sPG}, s{sPG}, 0\ns_mov_b32 s{sPFO}, {QD*64*3840}")
    dma_setup(c, 30, 2185, lambda: a(f"v_mul_u32_u24 v{T2}, 26, v{T0}\nv_lshrrev_b32 v{T2}, 8, v{T2}\nv_mul_u32_u24 v{T2}, 1120, v{T2}\nv_lshl_add_u32 v{T0}, v{T0}, 4, v{T2}"))
    srd(a, SW, P_WQ, 640*3840)
    a(f"s_add_u32 s{sT0}, s{sRB}, 16\ns_lshl_b32 s{sT0}, s{sT0}, 7\ns_lshl_b32 s{sT1}, s{sCB}, 3\ns_add_u32 s{sHF}, s{sT0}, s{sT1}")
    def q_setup():
        a(f"s_lshr_b32 s{sMH}, s{sW}, 2\ns_and_b32 s{sT0}, s{sW}, 3\ns_lshl_b32 s{sT0}, s{sT0}, 2\ns_lshl_b32 s{sT1}, s{sMH}, 1")
        for f in range(4):
            a(f"s_xor_b32 s{sT2}, s{sT1}, {f}\ns_add_u32 s{sT2}, s{sT2}, s{sT0}\ns_min_u32 s{sNT+f}, s{sT2}, 14")
        a(f"""
        s_mov_b32 s{sMSK}, 0xfffefffe
        s_mov_b32 s{sMSK+1}, 0xfffefffe
        v_lshrrev_b32 v{T0}, 1, v{R}
        v_xor_b32 v{T0}, v{T0}, v{G}
        v_lshlrev_b32 v{T0}, 4, v{T0}
        v_lshl_add_u32 v{T0}, v{R}, 7, v{T0}
        v_add_u32 v{c.hb[0]}, {c.stg}, v{T0}
        v_xor_b32 v{c.hb[1]}, 64, v{c.hb[0]}
        s_lshl_b32 s{sT0}, s{sMH}, 13
        s_add_u32 s{sT0}, s{sT0}, 2048
        v_add_u32 v{c.xb[0]}, s{sT0}, v{c.hb[0]}
        v_add_u32 v{c.xb[1]}, s{sT0}, v{c.hb[1]}
        """)
        rho_local(a, T0, T1)
        a(f"v_mul_u32_u24 v{T0}, 480, v{T0}\nv_and_b32 v{T1}, 3, v{LANE}\nv_lshl_add_u32 v{T0}, v{T1}, 3, v{T0}")
        for f in range(4):
            a(f"s_lshl_b32 s{sT0}, s{sNT+f}, 5\ns_add_u32 s{sT0}, s{sT0}, {c.xsz+c.stg}\nv_add_u32 v{c.wb[f]}, s{sT0}, v{T0}")
        a(f"v_lshlrev_b32 v{c.VRA}, {RSH}, v{R}")
        a(f"""
        s_lshl_b32 s{sT0}, s{sRB}, 7
        s_lshl_b32 s{sT1}, s{sMH}, 6
        s_add_u32 s{sT1}, s{sT1}, s{sT0}
        s_lshl_b32 s{sT1}, s{sT1}, {RSH}
        s_add_u32 s{sRM}, s{sT1}, {STO}
        s_sub_u32 s{sT0}, s{sT0}, 16
        s_max_i32 s{sT0}, s{sT0}, 0
        s_lshl_b32 s{sT0}, s{sT0}, {RSH}
        s_add_u32 s{sRH}, s{sT0}, {STO}
        """)
        for s in range(2):
            for r in range(4): a(f"v_mov_b32 v{c.XH[s]+r}, 0x3f803f80")
    pre_loop(c, q_setup)
    rec = [[f"buffer_load_dwordx4 {vr(c.REC+4*i,4)}, v{c.VRA}, {sr(SFL,4)}, s{sRM} offen offset:{(16*i)<<RSH} sc1"] for i in range(4)]
    rec.append([f"buffer_load_dwordx4 {vr(c.REC+16,4)}, v{c.VRA}, {sr(SFL,4)}, s{sRH} offen sc1"])
    CSR = lowtop; CA = 11; WA = 15
    assert CSR + 16 <= WREG and WA + 6 <= c.VTF
    c.tailx = [lines(f"""
        s_lshl_b32 s{sT3}, s{sMH}, 6
        s_add_u32 s{sT3}, s{sT3}, 16
        s_mul_i32 s{sT3}, s{sT3}, {RS}
        v_mul_u32_u24 v{T2}, {RS}, v{R}
        v_lshlrev_b32 v{T3}, 4, v{G}""")]
    for f in range(4):
        c.tailx.append(lines(f"""
        s_lshl_b32 s{sT0}, s{sNT+f}, 6
        s_add_u32 s{sT0}, s{sT0}, {L_CS}
        v_add_u32 v{CA+f}, s{sT0}, v{T3}
        s_mul_i32 s{sT0}, s{sNT+f}, 52
        s_lshr_b32 s{sT0}, s{sT0}, 8
        s_mul_i32 s{sT2}, s{sT0}, 5
        s_sub_u32 s{sT2}, s{sNT+f}, s{sT2}
        s_lshl_b32 s{sT2}, s{sT2}, 2
        s_mul_i32 s{sT0}, s{sT0}, 192
        v_add_u32 v{T0}, s{sT2}, v{G}"""))
        c.tailx.append(lines(f"""
        v_mul_u32_u24 v{T1}, 52, v{T0}
        v_lshrrev_b32 v{T1}, 8, v{T1}
        v_add_u32 v{T0}, v{T0}, v{T1}"""))
        c.tailx.append(lines(f"v_lshl_add_u32 v{T0}, v{T0}, 3, v{T2}") + ([f"v_add_u32 v{WA+4+f}, s{sT0}, v{T0}"] if f < 2 else []) +
                       lines(f"s_add_u32 s{sT0}, s{sT0}, s{sT3}\nv_add_u32 v{WA+f}, s{sT0}, v{T0}"))
    main_loop(a, c, S, "q", rec)
    a(f"s_not_b64 exec, {sr(sMSK,2)}")
    for f in range(2): a(f"ds_write_b128 v{CA+f}, {vr(c.acch[f],4)}")
    a("s_mov_b64 exec, -1")
    a(f"s_waitcnt vmcnt({c.yrec})")
    poll(a, sum(rec, []), [c.REC+4*i+2 for i in range(5)], True)
    S(55)
    a("s_waitcnt lgkmcnt(0)\ns_barrier")
    S(56)
    for f in range(4): a(f"ds_read_b128 {vr(CSR+4*f,4)}, v{CA+f}")
    rest = [p for p in LA_ + list(range(25)) if p not in c.early]
    rg = [wfrag(p) for p in rest]
    I = Inter(a, [], 1000)
    TP = c.VPS
    for f in range(4):
        I(f"s_waitcnt lgkmcnt({3-f if f == 0 else 15})" if f == 0 else "s_nop 0")
        if f == 1: I("s_waitcnt lgkmcnt(5)")
        tl = [(c.acc[f][i], WA+f, i*16*RS, c.REC+4*i) for i in range(4)]
        if f < 2: tl.append((c.acch[f], WA+4+f, 0, c.REC+16))
        for (ac, ad, off, st) in tl:
            I(f"""
            v_pk_mul_f32 {vr(TP,2)}, {vr(CSR+4*f,2)}, {vr(st,2)} op_sel:[0,1] op_sel_hi:[1,1]
            v_pk_mul_f32 {vr(TP+2,2)}, {vr(CSR+4*f+2,2)}, {vr(st,2)} op_sel:[0,1] op_sel_hi:[1,1]
            v_pk_fma_f32 {vr(ac,2)}, {vr(ac,2)}, {vr(st,2)}, {vr(TP,2)} op_sel:[0,0,0] op_sel_hi:[1,0,1]
            v_pk_fma_f32 {vr(ac+2,2)}, {vr(ac+2,2)}, {vr(st,2)}, {vr(TP+2,2)} op_sel:[0,0,0] op_sel_hi:[1,0,1]
            v_cvt_pk_bf16_f32 v{ac}, v{ac}, v{ac+1}
            v_cvt_pk_bf16_f32 v{ac+1}, v{ac+2}, v{ac+3}
            ds_write_b64 v{ad}, {vr(ac,2)} offset:{off}
            """)
    S(57)
    al = Alloc(11)
    AB = al(); OV = al(); OV1 = al(); L31 = al()
    MX = al(); SM_ = al()
    Q = al(12, 2); KB = [al(10, 2) for _ in range(5)]
    L = al(8, 2); PL = al(8); PH = al(8); O = al(20, 2); TPa = al(4)
    assert al.n <= WREG, al.n
    I(f"""
    s_and_b32 s{sT0}, s{sW}, 1
    s_lshr_b32 s{sT3}, s{sW}, 1
    s_lshl_b32 s{sT2}, s{sT3}, 5
    s_add_u32 s{sT2}, s{sT2}, 2
    v_and_b32 v{L31}, 31, v{LANE}
    v_add_u32 v{T0}, s{sT2}, v{L31}
    v_mul_u32_u24 v{T0}, {RS}, v{T0}
    v_lshrrev_b32 v{T1}, 5, v{LANE}
    v_mul_u32_u24 v{T2}, 48, v{T1}
    s_mul_i32 s{sT2}, s{sT0}, 96
    v_add3_u32 v{AB}, v{T0}, v{T2}, s{sT2}
    s_lshl_b32 s{sT2}, s{sCB}, 1
    s_add_u32 s{sT2}, s{sT2}, s{sT0}
    s_mul_i32 s{sT2}, s{sT2}, 5
    v_lshl_add_u32 v{T1}, v{T1}, 1, s{sT2}
    v_bfe_u32 v{T0}, v{LANE}, 4, 1
    v_lshlrev_b32 v{T0}, 10, v{T0}
    v_lshl_add_u32 v{T0}, v{R}, 4, v{T0}
    v_lshrrev_b32 v{T2}, 2, v{T1}
    v_lshl_add_u32 v{T2}, v{T2}, 12, v{T0}
    v_and_b32 v{T3}, 3, v{T1}
    v_lshl_add_u32 v{OV}, v{T3}, 8, v{T2}
    v_add_u32 v{T1}, 1, v{T1}
    v_lshrrev_b32 v{T2}, 2, v{T1}
    v_lshl_add_u32 v{T2}, v{T2}, 12, v{T0}
    v_and_b32 v{T3}, 3, v{T1}
    v_lshl_add_u32 v{OV1}, v{T3}, 8, v{T2}
    s_lshl_b32 s{sKX}, s{sRB}, 1
    s_add_u32 s{sKX}, s{sKX}, s{sMH}
    s_mul_i32 s{sKX}, s{sKX}, {74*4096}
    s_and_b32 s{sT1}, s{sT3}, 1
    s_lshl_b32 s{sT1}, s{sT1}, 11
    s_add_u32 s{sKX}, s{sKX}, s{sT1}
    s_add_u32 s{sT2}, s{sT2}, 4
    s_lshr_b32 s{sKW}, s{sT2}, 2
    s_lshl_b32 s{sKW}, s{sKW}, 12
    s_and_b32 s{sT2}, s{sT2}, 3
    s_lshl_b32 s{sT2}, s{sT2}, 8
    s_add_u32 s{sKW}, s{sKW}, s{sT2}
    s_add_u32 s{sKW}, s{sKW}, s{sKX}
    """)
    a("s_waitcnt lgkmcnt(0)\ns_barrier")
    OV2 = T0
    S(5)
    def rd(dst, off):
        return f"ds_read_b128 {vr(dst,4)}, v{AB} offset:{off}\nds_read_b128 {vr(dst+4,4)}, v{AB} offset:{off+16}\nds_read_b64 {vr(dst+8,2)}, v{AB} offset:{off+32}"
    offs = [(14-2*w)*RS+192 for w in range(8)] + [(14-2*w)*RS+384 for w in range(8)]
    issued = 0
    def issue(n):
        nonlocal issued
        for _ in range(n):
            if issued < 16:
                I(rd(KB[issued % 5], offs[issued])); issued += 1
    def need(idx): I(f"s_waitcnt lgkmcnt({3*(issued-1-idx)})")
    I(rd(Q, 14*RS)); issue(4)
    I.g = list(rg); I.e = qevery
    for w in range(8): I(f"v_mov_b32 v{L+w}, 0")
    for d in range(20): I(f"v_mov_b32 v{O+d}, 0")
    for wp in range(4):
        w0, w1 = 2*wp, 2*wp+1
        need(w1)
        for d in range(10):
            for w in (w0, w1): I(f"v_dot2c_f32_bf16 v{L+w}, v{Q+d}, v{KB[w%5]+d}")
        issue(3 if wp == 0 else 2)
    lm = a.uid("Lm")
    a(f"s_or_b32 s{sT2}, s{sRB}, s{sT3}\ns_cmp_lg_u32 s{sT2}, 0\ns_cbranch_scc1 {lm}")
    a(f"v_mov_b32 v{TPa}, {f32(-1e9)}")
    for w in range(1, 8):
        a(f"v_cmp_le_u32 vcc, {2*w}, v{L31}\ns_nop 1\nv_cndmask_b32 v{L+w}, v{TPa}, v{L+w}, vcc")
    a.label(lm)
    cexp = (20 ** -0.5) * math.log2(math.e)
    I(f"""
    v_max3_f32 v{MX}, v{L}, v{L+1}, v{L+2}
    v_max3_f32 v{SM_}, v{L+3}, v{L+4}, v{L+5}
    v_max3_f32 v{MX}, v{MX}, v{L+6}, v{L+7}
    v_max_f32 v{MX}, v{MX}, v{SM_}
    """)
    for w in range(8): I(f"v_sub_f32 v{L+w}, v{L+w}, v{MX}")
    for w in range(8): I(f"v_mul_f32 v{L+w}, {f32(cexp)}, v{L+w}")
    for w in range(8): I(f"v_exp_f32 v{L+w}, v{L+w}")
    I(f"""
    v_add_f32 v{TPa}, v{L}, v{L+1}
    v_add_f32 v{TPa+1}, v{L+2}, v{L+3}
    v_add_f32 v{TPa+2}, v{L+4}, v{L+5}
    v_add_f32 v{TPa+3}, v{L+6}, v{L+7}
    v_add_f32 v{TPa}, v{TPa}, v{TPa+1}
    v_add_f32 v{TPa+2}, v{TPa+2}, v{TPa+3}
    v_add_f32 v{SM_}, v{TPa}, v{TPa+2}
    v_rcp_f32 v{SM_}, v{SM_}
    s_nop 0
    """)
    for w in range(8): I(f"v_mul_f32 v{L+w}, v{L+w}, v{SM_}")
    for w in range(8): I(f"v_cvt_pk_bf16_f32 v{PL+w}, v{L+w}, 0\nv_cvt_pk_bf16_f32 v{PH+w}, 0, v{L+w}")
    for w in range(8):
        need(8+w)
        for d in range(10):
            I(f"v_dot2c_f32_bf16 v{O+2*d}, v{KB[(8+w)%5]+d}, v{PL+w}\nv_dot2c_f32_bf16 v{O+2*d+1}, v{KB[(8+w)%5]+d}, v{PH+w}")
        issue(1)
    S(58)
    for u in (0,1,2,3,8,9,4,5,6,7): a(f"v_cvt_pk_bf16_f32 v{Q+u}, v{O+2*u}, v{O+2*u+1}")
    a(f"""
    buffer_store_dwordx4 {vr(Q,4)}, v{OV}, {sr(SHO,4)}, s{sKX} offen sc1
    v_permlane32_swap_b32 v{Q+8}, v{Q+10}
    v_permlane32_swap_b32 v{Q+9}, v{Q+11}
    buffer_store_dwordx4 {vr(Q+4,4)}, v{OV1}, {sr(SHO,4)}, s{sKX} offen sc1
    s_mov_b32 exec_hi, 0
    buffer_store_dwordx4 {vr(Q+8,4)}, v{OV2}, {sr(SHO,4)}, s{sKW} offen sc1
    s_mov_b64 exec, -1
    """)
    S(6)
    if NB: a("s_barrier")
    qleft = I.g + [wfrag(p) for p in LB]
    sp = 'spoll' in EXP or 'nofld' in EXP
    if not sp: a(FLD)
    emit(qleft[:NB])
    publish(NB+(not sp))
    def tail_loads(gr):
        if LP is None: emit(gr); return
        k = max(len(gr)-LP, 0)
        emit(gr[:k]); a(FLD); emit(gr[k:]); a(f"s_waitcnt vmcnt({len(gr)-k})")
    tail_loads(qleft[NB:])
    if not sp: a(f"s_waitcnt vmcnt({len(qleft)})")
    a("s_branch Lphase2")
    a.label("Lffn")
    side_loads(a, stat=False)
    a(f"s_and_b32 s{sT0}, s2, 1\ns_bfe_u32 s{sT1}, s2, 0x20001\ns_lshr_b32 s{sT2}, s2, 3")
    if QD < 10: a(f"s_cmp_eq_u32 s{sW}, 1\ns_cselect_b32 s{sPG}, {QD*64*3840}, s{sPG}")
    c = Cfg()
    c.nM, c.nF, c.nh, c.wrow, c.wrowb, c.stg, c.xsz, c.nxm, c.duty = 5, 3, 0, 384, 3456, 49152, 20480, 4, True
    al = alloc_common(c)
    B1 = al(8, 2)
    c.acc = [[al(4,4) for i in range(5)] for f in range(3)]
    lowtop = al.n
    eal = al
    al = Alloc(WREG)
    c.X = [[al(4,4) for i in range(5)] for s in range(2)]
    c.W = [[al(4,4) for f in range(3)] for s in range(2)]
    assert al.n <= 208
    c.esplit = ef; c.early = (list(range(15, 25)) + LA_ + [13, 14])[:sum(ef)]
    a(f"""
    s_sub_u32 s{sT2}, s{sT2}, 16
    s_lshl_b32 s{sT1}, s{sT1}, 4
    s_add_u32 s{sT1}, s{sT1}, s{sT2}
    s_cmp_ge_u32 s{sT1}, 63
    s_cbranch_scc1 Lidle
    s_mul_i32 s{sCB}, s{sT1}, 37
    s_lshr_b32 s{sCB}, s{sCB}, 8
    s_sub_u32 s{sT3}, s{sCB}, s{sT0}
    s_mul_i32 s{sT3}, s{sT3}, 7
    s_sub_u32 s{sRB}, s{sT1}, s{sT3}
    s_mul_i32 s{sT3}, s{sRB}, {FROWS}
    s_mul_i32 s{sWO}, s{sCB}, 384
    """)
    c.nW = 3; c.ffn = True; c.dmask = DMASK
    dma_setup(c, 24, 2731, lambda: a(f"v_and_b32 v{T2}, 6, v{T1}\nv_xor_b32 v{T0}, v{T0}, v{T2}\nv_lshlrev_b32 v{T0}, 4, v{T0}"))
    srd(a, SW, P_W1, 640*3456)
    srd(a, SWT, P_B1, 3456)
    a(f"s_lshl_b32 s{sT0}, s{sRB}, 7\ns_lshl_b32 s{sT1}, s{sCB}, 3\ns_add_u32 s{sHF}, s{sT0}, s{sT1}")
    RHO = c.hb[0]
    def f_setup():
        a(f"""
        s_lshr_b32 s{sMH}, s{sW}, 2
        s_bfe_u32 s{sT0}, s{sW}, 0x10001
        s_and_b32 s{sT1}, s{sW}, 1
        s_mul_i32 s{sT0}, s{sT0}, 6
        s_lshl_b32 s{sT2}, s{sT1}, 2
        s_add_u32 s{sNT}, s{sT0}, s{sT2}
        s_add_u32 s{sNT+1}, s{sNT}, 1
        s_add_u32 s{sNT+2}, s{sT0}, s{sT1}
        s_add_u32 s{sNT+2}, s{sNT+2}, 2
        s_cmp_eq_u32 s{sMH}, 0
        s_cselect_b32 s{sMSK}, -1, 0x7fff7fff
        s_cselect_b32 s{sMSK+1}, -1, 0x7fff7fff
        v_lshrrev_b32 v{T0}, 1, v{R}
        v_xor_b32 v{T0}, v{T0}, v{G}
        v_lshlrev_b32 v{T0}, 4, v{T0}
        v_lshl_add_u32 v{T0}, v{R}, 7, v{T0}
        s_mul_i32 s{sT0}, s{sMH}, {5*2048}
        s_add_u32 s{sT0}, s{sT0}, {c.stg}
        v_add_u32 v{c.xb[0]}, s{sT0}, v{T0}
        v_xor_b32 v{c.xb[1]}, 64, v{c.xb[0]}
        """)
        rho_local(a, T0, T1)
        a(f"""
        v_bfe_u32 v{T2}, v{T0}, 1, 2
        v_mul_u32_u24 v{T0}, 384, v{T0}
        v_and_b32 v{T1}, 3, v{LANE}
        v_lshl_add_u32 v{T0}, v{T1}, 3, v{T0}
        v_add_u32 v{T0}, {c.xsz+c.stg}, v{T0}
        """)
        for f in range(3):
            a(f"v_xor_b32 v{T1}, s{sNT+f}, v{T2}\nv_lshl_add_u32 v{c.wb[f]}, v{T1}, 5, v{T0}")
        a(f"""
        s_mul_i32 s{sT0}, s{sRB}, {FROWS}
        s_mul_i32 s{sT1}, s{sMH}, 80
        s_add_u32 s{sT0}, s{sT0}, s{sT1}
        v_add_u32 v{RHO}, s{sT0}, v{R}
        v_lshlrev_b32 v{T0}, {RSH}, v{RHO}
        v_add_u32 v{c.VRA}, {STO}, v{T0}
        """)
        for s in range(2):
            for r in range(4): a(f"v_mov_b32 v{c.X[s][4]+r}, 0x3f803f80")
        a(f"v_lshlrev_b32 v{T0}, 3, v{G}\ns_mul_i32 s{sT2}, s{sCB}, 384")
        for f in range(3):
            a(f"s_lshl_b32 s{sT1}, s{sNT+f}, 5\ns_add_u32 s{sT1}, s{sT1}, s{sT2}")
            a(f"buffer_load_dwordx2 {vr(B1+2*f,2)}, v{T0}, {sr(SWT,4)}, s{sT1} offen")
    pre_loop(c, f_setup)
    rec = [[f"v_add_u32 v{T3}, {(16*i)<<RSH}, v{c.VRA}", f"v_min_u32 v{T3}, {STO+(2047<<RSH)}, v{T3}",
            f"buffer_load_dwordx4 {vr(c.REC+4*i,4)}, v{T3}, {sr(SFL,4)}, 0 offen sc1"] for i in range(5)]
    CA = 17
    c.tailx = [[f"v_lshlrev_b32 v{T3}, 4, v{G}"]] + [lines(f"s_lshl_b32 s{sT0}, s{sNT+f}, 6\ns_add_u32 s{sT0}, s{sT0}, {L_CS}\nv_add_u32 v{CA+f}, s{sT0}, v{T3}") for f in range(3)]
    main_loop(a, c, S, "f", rec)
    a(f"s_waitcnt vmcnt({c.yrec})")
    poll(a, sum(rec, []), [c.REC+4*i+2 for i in range(5)], True)
    lc = a.uid("Lc")
    a(f"s_cmp_eq_u32 s{sMH}, 0\ns_cbranch_scc1 {lc}\ns_not_b64 exec, {sr(sMSK,2)}")
    for f in range(3): a(f"ds_write_b128 v{CA+f}, {vr(c.acc[f][4],4)}")
    a("s_mov_b64 exec, -1\ns_waitcnt lgkmcnt(0)")
    a.label(lc)
    a("s_barrier")
    CC = c.VPS; VA = 11
    CSR = eal(12, 2); TT = [eal(2,2) for _ in range(4)] + [12, B1+6]
    assert eal.n <= WREG, eal.n
    for f in range(3): a(f"ds_read_b128 {vr(CSR+4*f,4)}, v{CA+f}")
    BFp = [c.REC+4*i+2 for i in range(5)] + [B1+4]
    OUTP = [B1, 16]; SG = 20
    assert RHO == 15
    rest = [p for p in list(range(25)) + LA_ + LB if p not in c.early]
    rg = [wfrag(p) for p in rest]
    fn1 = min(fn1, len(rg)-1)
    F1, F2 = rg[:fn1], rg[fn1:]
    I = Inter(a, [], 1000)
    if fevery:
        I = Inter(a, F1, fevery); F1 = []
    half(F1, True)
    c0 = -2*math.sqrt(2/math.pi)*math.log2(math.e); c1 = c0*0.044715
    for j in range(5): I(f"v_lshlrev_b32 v{BFp[j]}, 16, v{B1+j}\nv_and_b32 v{BFp[j]+1}, 0xffff0000, v{B1+j}")
    I(f"v_lshlrev_b32 v{B1+4}, 16, v{B1+5}\nv_and_b32 v{B1+5}, 0xffff0000, v{B1+5}")
    I(f"v_mov_b32 v{CC}, {f32(c0)}\nv_mov_b32 v{CC+1}, {f32(c1)}\nv_mov_b32 v{CC+2}, 1.0")
    I(f"""
    v_and_b32 v{T2}, 15, v{RHO}
    v_lshlrev_b32 v{T2}, 4, v{T2}
    v_lshl_add_u32 v{T1}, v{G}, 8, v{T2}
    v_and_b32 v{T3}, 1, v{G}
    v_lshl_add_u32 v14, v{T3}, 8, v{T2}
    v_lshrrev_b32 v{T0}, 4, v{RHO}
    v_lshrrev_b32 v{T3}, 5, v{LANE}
    v_add_u32 v{RHO}, v{T0}, v{T3}
    s_mul_i32 s{sT2}, s{sCB}, 6
    s_add_u32 s{sT2}, s{sT2}, 20
    s_lshr_b32 s{sT0}, s{sNT}, 1
    s_add_u32 s{sT0}, s{sT0}, s{sT2}
    s_lshl_b32 s{sKX}, s{sT0}, 12
    s_lshr_b32 s{sT0}, s{sNT+2}, 1
    s_add_u32 s{sT0}, s{sT0}, s{sT2}
    s_lshl_b32 s{sKW}, s{sT0}, 12
    s_and_b32 s{sT0}, s{sNT+2}, 1
    s_lshl_b32 s{sT0}, s{sT0}, 9
    s_add_u32 s{sKW}, s{sKW}, s{sT0}
    s_mov_b32 s{sT3}, {74*4096}
    s_waitcnt lgkmcnt(0)
    """)
    a(f"s_cmp_eq_u32 s{sMH}, 0\ns_cselect_b32 s{sMSK}, -1, 0x00ff00ff\ns_mov_b32 s{sMSK+1}, s{sMSK}")
    def gelu_pair(h, cs, b, st, t, dst):
        return [f"v_pk_fma_f32 {vr(t,2)}, {vr(cs,2)}, {vr(st,2)}, {vr(b,2)} op_sel:[0,1,0] op_sel_hi:[1,1,1]",
                f"v_pk_fma_f32 {vr(h,2)}, {vr(h,2)}, {vr(st,2)}, {vr(t,2)} op_sel:[0,0,0] op_sel_hi:[1,0,1]",
                f"v_pk_mul_f32 {vr(t,2)}, {vr(h,2)}, {vr(h,2)}",
                f"v_pk_fma_f32 {vr(t,2)}, {vr(t,2)}, {vr(CC,2)}, {vr(CC,2)} op_sel:[0,1,0] op_sel_hi:[1,1,0]",
                f"v_pk_mul_f32 {vr(t,2)}, {vr(t,2)}, {vr(h,2)}",
                f"v_exp_f32 v{t}, v{t}",
                f"v_exp_f32 v{t+1}, v{t+1}",
                f"v_pk_add_f32 {vr(t,2)}, {vr(t,2)}, {vr(CC+2,2)} op_sel_hi:[1,0]",
                f"v_rcp_f32 v{t}, v{t}",
                f"v_rcp_f32 v{t+1}, v{t+1}",
                f"v_pk_mul_f32 {vr(t,2)}, {vr(t,2)}, {vr(h,2)}",
                f"v_cvt_pk_bf16_f32 v{dst}, v{t}, v{t+1}"]
    def blkaddr(dst, tile, low):
        I(f"""
        v_lshrrev_b32 v{T2}, 2, v{tile}
        v_mul_u32_u24 v{T2}, s{sT3}, v{T2}
        v_and_b32 v{T3}, 3, v{tile}
        v_lshl_add_u32 v{T2}, v{T3}, 10, v{T2}
        v_add_u32 v{dst}, v{T2}, v{low}
        """)
    for i in range(5):
        o = OUTP[i & 1]
        streams = [gelu_pair(c.acc[f][i]+2*hp, CSR+4*f+2*hp, BFp[2*f+hp], c.REC+4*i, TT[2*f+hp],
                             (o+2*f+hp) if f < 2 else (SG+2*(i&1)+hp)) for f in range(3) for hp in range(2)]
        for k in range(len(streams[0])):
            for s in streams: I(s[k])
        blkaddr(VA, T0, T1)
        I(f"v_add_u32 v{T0}, 1, v{T0}")
        if i == 4: a(f"s_mov_b64 exec, {sr(sMSK,2)}")
        a(f"buffer_store_dwordx4 {vr(o,4)}, v{VA}, {sr(SHO,4)}, s{sKX} offen sc1")
        if i == 4: a("s_mov_b64 exec, -1")
        if i & 1 or i == 4:
            a(f"v_permlane32_swap_b32 v{SG}, v{SG+2}\nv_permlane32_swap_b32 v{SG+1}, v{SG+3}")
            blkaddr(VA, RHO, 14)
            I(f"v_add_u32 v{RHO}, 2, v{RHO}")
            if i == 4: a(f"s_mov_b32 exec_lo, s{sMSK}\ns_mov_b32 exec_hi, 0")
            a(f"buffer_store_dwordx4 {vr(SG,4)}, v{VA}, {sr(SHO,4)}, s{sKW} offen sc1")
            if i == 4: a("s_mov_b64 exec, -1")
    S(6)
    F2 = I.g + F2
    half(F1, False)
    if not sp: a(FLD)
    nb = min(len(F2)-1, NB)
    assert nb >= 0
    emit(F2[:nb])
    publish(nb+(not sp), len(F1))
    tail_loads(F2[nb:])
    if not sp: a(f"s_waitcnt vmcnt({len(F2)})")
    a("s_branch Lphase2")
    a.label("Lidle")
    late_srds()
    emit([duty(a, 6, False)])
    p2_setup(a, 11)
    a("s_waitcnt vmcnt(0)")
    t_work(a)
    a(f"v_mov_b32 v14, 0\nv_mov_b32 v15, 0\ns_waitcnt vmcnt(0)\ns_barrier")
    nonce_get(a, 14, 12)
    poll(a, [f"buffer_load_dwordx2 v[14:15], v11, {sr(SFL,4)}, 0 offen sc1"], [14], False)
    for l in p2_ldsbases(): a(l)
    emit([wfrag(p) for p in c.early + rest])
    a(f"v_mov_b32 v{VFD}, 0\nv_mov_b32 v{VFD+1}, 0")
    a.label("Lphase2")
    al = Alloc(12)
    al(2, 2); VLA = al(); VLB = al()
    acc = [[al(4,4) for m in range(4)] for n in range(5)]
    BUF = [al(16, 4), al(16, 4), WREG]
    XR = al(6, 2)
    B2 = [al(2, 2), WREG+16, WREG+18]
    assert al.n <= WREG, al.n
    S(8)
    if 'spoll' in EXP:
        l0, l1 = a.uid("Lsp"), a.uid("Lsp")
        a(f"v_readlane_b32 s{sPFO}, v{VF}, 0\nv_readlane_b32 s{sPFS}, v{VF}, 2\ns_mov_b32 s{sSP}, 0\ns_nop 3")
        a.label(l0)
        a(f"""
        s_buffer_load_dwordx4 s[12:15], {sr(SFL,4)}, s{sPFO} glc
        s_buffer_load_dwordx4 {sr(STMP,4)}, {sr(SFL,4)}, s{sPFS} glc
        s_add_u32 s{sSP}, s{sSP}, 1
        s_cmp_gt_u32 s{sSP}, 400000
        s_cbranch_scc1 {l1}
        s_waitcnt lgkmcnt(0)
        s_cmp_lg_u64 s[12:13], {sr(sNON,2)}
        s_cbranch_scc1 {l0}
        s_cmp_lg_u64 s[14:15], {sr(sNON,2)}
        s_cbranch_scc1 {l0}
        s_cmp_lg_u64 {sr(STMP,2)}, {sr(sNON,2)}
        s_cbranch_scc1 {l0}
        s_cmp_lg_u64 {sr(STMP+2,2)}, {sr(sNON,2)}
        s_cbranch_scc1 {l0}
        """)
        a.label(l1)
        a("s_waitcnt lgkmcnt(0)")
    elif 'nopoll' not in EXP: poll(a, [FLD], [VFD], 'nofld' not in EXP or LP is not None, SLEEP)
    S(9)
    RS_ = [WR0+20*t for t in range(5)]
    abuf = {u: BUF[u % 3] for u in range(9)}; abuf[9] = RS_[0]
    wloc = {u: RS_[u] for u in range(5)}
    wloc.update({5: RS_[0], 6: RS_[1], 7: RS_[2], 8: RS_[3], 9: RS_[4]})
    def aload(t):
        g = [[f"buffer_load_dwordx4 {vr(abuf[t]+4*m,4)}, v{VL}, {sr(SPF,4)}, s{sT3} offen offset:{1024*m} sc1"] for m in range(4)]
        g[0] = [f"s_lshl_b32 s{sT3}, s{sK+t}, 12"] + g[0]
        return g
    ops = []
    for t in (0, 1, 2): emit(aload(t)); ops += [t]*4
    SOX, SOB = [sKX, sKW, sDELTA], [sSLOT, sW1K, sMH]
    setup = [lines(f"v_add_u32 v{VLA}, s{sFILL}, v{VL}\nv_add_u32 v{VLB}, s{sFW}, v{VL}\ns_mul_i32 s{sT0}, s{sC2}, 160")]
    for j in range(3):
        setup += chunks(lines(f"""
        s_add_u32 s{sT1}, s{sW}, {8*j}
        s_mul_i32 s{sT2}, s{sT1}, 52
        s_lshr_b32 s{sT2}, s{sT2}, 8
        s_mul_i32 s{sT3}, s{sT2}, 5
        s_sub_u32 s{sT1}, s{sT1}, s{sT3}
        s_lshl_b32 s{sT1}, s{sT1}, 5
        s_mul_i32 s{sT2}, s{sT2}, 20480
        s_add_u32 s{SOX[j]}, s{sT2}, s{sT1}
        s_add_u32 s{SOB[j]}, s{sT0}, s{sT1}
        """), 3)
    for d, p, sz in ((STMP, P_B2, 1280), (SW, P_OUT, XB)):
        setup += [[f"s_mov_b32 s{d}, s{p}", f"s_mov_b32 s{d+1}, s{p+1}"], [f"s_mov_b32 s{d+2}, {sz}", f"s_mov_b32 s{d+3}, 0x00020000"]]
    setup.append([f"v_lshlrev_b32 v{T1}, 3, v{G}"])
    def pw(n, m):
        q = m*5+n
        ad, off = (VLA, q*1024) if q < 8 else (VLB, (q-8)*1024)
        return f"ds_write_b128 v{ad}, {vr(acc[n][m],4)} offset:{off}"
    def sonly(groups):
        lab = a.uid("Lso")
        return [f"s_cmp_ge_u32 s{sW}, 2", f"s_cbranch_scc1 {lab}"] + sum(groups, []) + [lab + ":"]
    tl = [(n, m) for n in range(5) for m in range(4)]
    for t in (0, 1, 2, 3, 4, 5, 6, 7, 9, 8):
        if t == 9:
            a(f"s_cmp_ge_u32 s{sW}, 2\ns_cbranch_scc1 Lp2skip")
            a(f"s_waitcnt vmcnt(6)")
        else:
            if t == 8: a.label("Lp2skip")
            younger = len(ops) - 1 - max(i for i, o in enumerate(ops) if o == t)
            a(f"s_waitcnt vmcnt({younger})" + (" lgkmcnt(0)" if t == 5 else ""))
        M = [mfma(acc[n][m], wloc[t]+4*n, abuf[t]+4*m, t == 0) for (n, m) in tl]
        items = []
        if t == 0: items += even(setup, 20, 0)
        if 1 <= t <= 6:
            items += [(0+5*k, g) for k, g in enumerate(aload(t+2))]; ops += [t+2]*4
        if 1 <= t <= 4:
            for n in range(5):
                phi = (t+4)*5+n
                ad, off = (VLA, (phi-25)*1024) if phi < 33 else (VLB, (phi-33)*1024)
                items.append((2+4*n, [f"ds_read_b128 {vr(wloc[t+4]+4*n,4)}, v{ad} offset:{off}"]))
        if t == 5: items.append((18, sonly([wfrag(45+n, wloc[9]+4*n) for n in range(5)])))
        if t == 6: items.append((18, sonly(aload(9))))
        if t == 7:
            for j in range(3): items.append((1+6*j, [f"buffer_load_dwordx2 {vr(XR+2*j,2)}, v{VXO}, {sr(SX,4)}, s{SOX[j]} offen"])); ops.append('x')
            for j in range(3): items.append((4+6*j, [f"buffer_load_dwordx2 {vr(B2[j],2)}, v{T1}, {sr(STMP,4)}, s{SOB[j]} offen"])); ops.append('b')
        if t == 8: items += [(k, [pw(*tl[k-8])]) for k in range(8, 20)]
        for l in spread(M, items): a(l)
        if t == 8:
            a("s_nop 0")
            for k in range(12, 20): a(pw(*tl[k]))
        if t != 8 and 'p2st' in EXP: S(40+t)
    a(f"""
    s_lshl_b32 s{sT0}, s{sW}, 10
    v_add_u32 v{T0}, s{sT0}, v{VL}
    v_add_u32 v{T2}, {L_A}, v{T0}
    v_add_u32 v{T3}, {4*12288}, v{T0}
    """)
    S(52)
    a("s_waitcnt lgkmcnt(0)\ns_barrier")
    S(53)
    P = [[acc[0][0] + (j*8+s)*4 for s in range(8)] for j in range(3)]
    assert P[2][7]+4 <= XR
    def rdtile(j):
        for s in range(8):
            if j == 0: ad, off = T2, s*8192
            else: ad, off = (T0 if s < 4 else T3), (s%4)*12288 + (j-1)*8192
            a(f"ds_read_b128 {vr(P[j][s],4)}, v{ad} offset:{off}")
    L2E = f32(-math.log2(math.e))
    def fin(j):
        o = []
        p = P[j]
        Sx, Y, Z = p[0], p[2], p[3]
        for h in (0, 2):
            for k in (0, 2, 4, 6): o.append(f"v_pk_add_f32 {vr(p[k]+h,2)}, {vr(p[k]+h,2)}, {vr(p[k+1]+h,2)}")
        def unp(x, q):
            return lines(f"v_lshlrev_b32 v{x}, 16, v{q}\nv_and_b32 v{x+1}, 0xffff0000, v{q}\nv_lshlrev_b32 v{x+2}, 16, v{q+1}\nv_and_b32 v{x+3}, 0xffff0000, v{q+1}")
        o += unp(Z, B2[j])
        for h in (0, 2):
            o.append(f"v_pk_add_f32 {vr(p[2]+h,2)}, {vr(p[2]+h,2)}, {vr(p[4]+h,2)}")
            o.append(f"v_pk_add_f32 {vr(p[6]+h,2)}, {vr(p[6]+h,2)}, {vr(Z+h,2)}")
        for h in (0, 2): o.append(f"v_pk_add_f32 {vr(Y+h,2)}, {vr(Y+h,2)}, {vr(p[6]+h,2)}")
        for r in range(4): o.append(f"v_mul_f32 v{Z+r}, {L2E}, v{Y+r}")
        for r in range(4): o.append(f"v_exp_f32 v{Z+r}, v{Z+r}")
        for r in range(4): o.append(f"v_add_f32 v{Z+r}, 1.0, v{Z+r}")
        for r in range(4): o.append(f"v_rcp_f32 v{Z+r}, v{Z+r}")
        for h in (0, 2): o.append(f"v_pk_mul_f32 {vr(Y+h,2)}, {vr(Y+h,2)}, {vr(Sx+h,2)}")
        o += unp(p[4], XR+2*j)
        for r in range(4): o.append(f"v_fma_f32 v{Y+r}, v{Y+r}, v{Z+r}, v{p[4]+r}")
        o += [f"v_cvt_pk_bf16_f32 v{Sx}, v{Y}, v{Y+1}", f"v_cvt_pk_bf16_f32 v{Sx+1}, v{Y+2}, v{Y+3}",
              f"buffer_store_dwordx2 {vr(Sx,2)}, v{VXO}, {sr(SW,4)}, s{SOX[j]} offen {OSF}"]
        return o
    rdtile(0); rdtile(1)
    l3 = a.uid("L3")
    a(f"s_cmp_ge_u32 s{sW}, 4\ns_cbranch_scc1 {l3}")
    rdtile(2)
    a("s_waitcnt vmcnt(0) lgkmcnt(8)")
    for x, y in zip(fin(0), fin(1)): a(x); a(y)
    a("s_waitcnt lgkmcnt(0)")
    for x in fin(2): a(x)
    a("s_branch Lfin")
    a.label(l3)
    a("s_waitcnt vmcnt(0) lgkmcnt(0)")
    for x, y in zip(fin(0), fin(1)): a(x); a(y)
    a.label("Lfin")
    S.finish(54)
    a.label("Lend")
    a("s_endpgm")
    ref = open(f"cdna_kernels/{NAME}.s.ref").read().split("\n")
    hdr = [l for l in ref if l.startswith(";") and "@launch" not in l]
    out = "\n".join(hdr) + f"\n; @launch grid=(256,1,1) block=(512,1,1) lds={LDS_TOTAL}\n"
    out += '.amdgcn_target "amdgcn-amd-amdhsa--gfx950"\n' + khead(name) + a.text() + kd(name, 256, 102)
    return out

if __name__ == "__main__":
    path = sys.argv[1]
    kw = eval("dict(" + (sys.argv[2] if len(sys.argv) > 2 else "") + ")")
    open(path, "w").write(gen(**kw))
```

```python
from asmlib import *
import math, sys
NAME = "recurrent_scan__sliding_local_dilated__dense_activation_gelu__prompt"
XB = 2048*640*2
HO_SZ = 32*74*4096
WT_OFF, WT_SZ = 0xB00000, 8*74*5*1024
FLB = 0x400000
TFO, STO, HFB = FLB+0x1000, FLB+0x40000, FLB+0x20000
FL_SZ = FLB + 0x60000
RSH = 4; FSH = 0; TSH = 3
BIG = 0x7ff00000
RS = 592
L_TST, L_CS, L_A = 147456, 88064, 98304
LA_ = list(range(25, 33)); LB = [33, 34] + list(range(36, 45)) + [35]
WR0 = 156
VFD = 12
LDS_TOTAL = 163840
FROWS = 152

SX, SW, SHO, SPF, SWT, SFL, SDBG, STMP = 4, 8, 16, 20, 24, 28, 32, 36
sXA, sXB, sEM, sWO = 12, 13, 14, 15
P_X, P_WQ, P_WO, P_W1, P_B1, P_W2, P_B2, P_OUT, P_DBG, P_WS = 40, 42, 44, 48, 50, 52, 54, 56, 58, 60
(sW, sRB, sCB, sI, sKX, sKW, sTM, sFILL, sDELTA, sSLOT, sW1K, sT0, sT1, sT2, sT3, sMH) = range(62, 78)
sNT = 78; sNON = 82; sMSK = 84; sR2, sC2 = 50, 51; sK = 88; sSP = 98; sN2 = 99
sWM = 100
sFW, sWB = 3, 47
sTB = 42
sHF = 43
sPFO, sPFS, sPG = 46, 86, 87
sRM, sRH = 48, 49
sTS = [44, 45, 52, 53]
VF, LANE, G, R, T0, T1, T2, T3, VST, VL, VXO = 0, 1, 2, 3, 4, 5, 6, 7, 8, 9, 10
WREG = 136
SIDE = 232
RT = 5; SLI = 3; MAP2 = 81; ROTA = 2; EXP = set(); PFF = ""; DN = 2; DMASK = 0b101; DPRE = 2; SP = dict(tw=1, nonce=3, sl=3, sw=5, tf=5); TFL = "nt"; RECIT = 9

def mfma(d, a_, b_, c0=False): return f"v_mfma_f32_16x16x32_bf16 {vr(d,4)}, {vr(a_,4)}, {vr(b_,4)}, " + ("0" if c0 else vr(d,4))
def chunks(l, n): return [l[i:i+n] for i in range(0, len(l), n)]
def merge(groups, n): return [sum(g, []) for g in chunks(groups, n)]
def lines(t): return [l.strip() for l in t.strip("\n").split("\n") if l.strip()]
def srd(a, d, p, size, off=None):
    if off is None: a(f"s_mov_b32 s{d}, s{p}\ns_mov_b32 s{d+1}, s{p+1}")
    else: a(f"s_add_u32 s{d}, s{p}, {off}\ns_addc_u32 s{d+1}, s{p+1}, 0")
    a(f"s_mov_b32 s{d+2}, {size}\ns_mov_b32 s{d+3}, 0x00020000")

class St:
    def __init__(s, a, on): s.a, s.on = a, on
    def start(s):
        if s.on: s.a(f"s_memtime s[0:1]\nv_mov_b32 v{VST}, 0\ns_waitcnt lgkmcnt(0)\nv_writelane_b32 v{VST}, s0, 59\nv_writelane_b32 v{VST}, s94, 0\nv_writelane_b32 v{VST}, s96, 62")
    def __call__(s, i):
        if s.on: s.a(f"s_memtime s[0:1]\ns_waitcnt lgkmcnt(0)\nv_writelane_b32 v{VST}, s0, {i}")
    def dyn(s, base):
        if s.on and ((base == 30 and 'nobar' not in EXP) or 'lst' in EXP):
            s.a(f"s_memtime s[0:1]\ns_add_u32 m0, s{sI}, {base}\ns_waitcnt lgkmcnt(0)\nv_writelane_b32 v{VST}, s0, m0")
    def finish(s, i):
        if not s.on: return
        s.a(f"""
        s_waitcnt vmcnt(0)
        s_memtime s[0:1]
        s_waitcnt lgkmcnt(0)
        v_writelane_b32 v{VST}, s0, {i}
        s_memrealtime s[0:1]
        s_waitcnt lgkmcnt(0)
        v_writelane_b32 v{VST}, s0, 63
        s_lshl_b32 s3, s2, 3
        s_add_u32 s3, s3, s{sW}
        s_lshl_b32 s3, s3, 8
        s_add_u32 s3, s3, {STAMP_OFF}
        s_add_u32 s{STMP}, s{P_WS}, s3
        s_addc_u32 s{STMP+1}, s{P_WS+1}, 0
        s_mov_b32 s{STMP+2}, 256
        s_mov_b32 s{STMP+3}, 0x00020000
        v_lshlrev_b32 v{T0}, 2, v{LANE}
        buffer_store_dword v{VST}, v{T0}, {sr(STMP,4)}, 0 offen
        """)
class Cfg: inloop = False

def wld(c, u):
    ld = f"buffer_load_dwordx4 v{c.VW[u]}, {sr(SW,4)}, s{sKW} offen offset:{1024*u} lds"
    return [f"s_mov_b64 exec, {sr(sWM,2)}", ld, "s_mov_b64 exec, -1"] if u == 3 else [ld]
def dmaA(c, a):
    lab = a.uid("Lsk")
    return [[f"s_add_u32 m0, s{sFILL}, s{sW1K}", f"s_add_u32 s{sXA}, s{sXA}, 128"],
            [f"buffer_load_dwordx4 v{c.VX[0]}, {sr(SX,4)}, s{sXA} offen lds"],
            [f"buffer_load_dwordx4 v{c.VX[1]}, {sr(SX,4)}, s{sXA} offen offset:1024 lds"],
            [f"s_cbranch_vccz {lab}", f"s_add_u32 m0, s{sFILL}, s{sEM}", f"s_add_u32 s{sXB}, s{sXB}, 128",
             f"buffer_load_dwordx4 v{c.VX[2]}, {sr(SX,4)}, s{sXB} offen lds", lab + ":"],
            [f"s_add_u32 m0, s{sFILL}, s{sWB}", f"s_add_u32 s{sKW}, s{sKW}, {64*c.wrowb}"]] + ([wld(c, 0)] if c.nW == 4 else [])
def dmaB(c, a): return [wld(c, u) for u in range(c.nW-3, c.nW)]
def guard(a, groups, old):
    out = []
    for g in groups:
        lab = a.uid("Lg")
        out.append([f"s_cbranch_vcc{'z' if old else 'nz'} {lab}"] + g + [lab + ":"])
    return out
SETVCC = None
def reads(c, st, s):
    r = []
    if 'xrd' in EXP and c.inloop: return [['s_nop 0']]
    for i in range(c.nM):
        ins = f"ds_read_b128 {vr(c.X[st][i],4)}, v{c.xb[s]} offset:{i*2048}"
        if (not c.nh) and i == c.nM-1: r.append([f"s_mov_b64 exec, {sr(sMSK,2)}", ins, "s_mov_b64 exec, -1"])
        else: r.append([ins])
    if c.nh: r.append([f"s_mov_b64 exec, {sr(sMSK,2)}", f"ds_read_b128 {vr(c.XH[st],4)}, v{c.hb[s]}", "s_mov_b64 exec, -1"])
    for f in range(c.nF):
        r.append([f"ds_read_b64_tr_b16 {vr(c.W[st][f],2)}, v{c.wb[f]} offset:{s*32*c.wrow}"])
        r.append([f"ds_read_b64_tr_b16 {vr(c.W[st][f]+2,2)}, v{c.wb[f]} offset:{s*32*c.wrow+8*c.wrow}"])
    return r
def mfmas(c, st, c0=False):
    m = []
    for f in range(c.nF):
        for i in range(c.nM): m.append(mfma(c.acc[f][i], c.W[st][f], c.X[st][i], c0))
        if f < c.nh: m.append(mfma(c.acch[f], c.W[st][f], c.XH[st], c0))
    return m
def spread(main, items):
    out = []
    for i, m in enumerate(main):
        out.append(m)
        for p, g in items:
            if p == i or (i == len(main)-1 and p > i): out.extend(g)
    return out
def even(groups, n, lo=1):
    k = len(groups)
    return [(lo + (j*(n-lo))//k, g) for j, g in enumerate(groups)] if k else []

def stat_row(a):
    a(f"""
    s_and_b32 s{sT0}, s2, 1
    s_lshl_b32 s{sT0}, s{sT0}, 10
    s_bfe_u32 s{sT2}, s2, 0x20001
    s_lshl_b32 s{sT2}, s{sT2}, 8
    s_add_u32 s{sT0}, s{sT0}, s{sT2}
    s_and_b32 s{sT2}, s2, 0x78
    s_lshl_b32 s{sT2}, s{sT2}, 1
    s_add_u32 s{sT0}, s{sT0}, s{sT2}
    s_sub_u32 s{sT2}, s{sW}, 4
    s_lshl_b32 s{sT2}, s{sT2}, 2
    s_add_u32 s{sT0}, s{sT0}, s{sT2}
    """)
def nonce_get(a, vN, vPS, flag=True):
    l0, l1, l2, l3 = a.uid("Lno"), a.uid("Lno"), a.uid("Lno"), a.uid("Lno")
    assert vN == vPS + 2 and vPS % 2 == 0
    a(f"s_mov_b32 s{sSP}, 0")
    a.label(l0)
    a(f"""
    v_readfirstlane_b32 s{sNON}, v{vN}
    v_readfirstlane_b32 s{sNON+1}, v{vN+1}
    s_add_u32 s{sSP}, s{sSP}, 1
    s_cmp_gt_u32 s{sSP}, 100000
    s_cbranch_scc1 {l1}
    s_cmp_lg_u32 s{sNON}, 0
    s_cbranch_scc1 {l1}
    v_mov_b32 v{T0}, 0
    buffer_load_dwordx2 {vr(vN,2)}, v{T0}, {sr(SDBG,4)}, 0 offen sc1
    s_waitcnt vmcnt(0)
    s_branch {l0}
    """)
    a.label(l1)
    if not flag: return
    a(f"""
    s_cmp_lg_u32 s{sW}, 0
    s_cbranch_scc1 {l2}
    s_lshl_b32 s{sT1}, s2, {TSH}
    s_add_u32 s{sT1}, s{sT1}, {TFO-(128<<TSH)}
    v_lshlrev_b32 v{T0}, 3, v{LANE}
    s_mov_b64 exec, {0xffff if TSH == 7 else 1}
    buffer_store_dwordx2 {vr(vN,2)}, v{T0}, {sr(SFL,4)}, s{sT1} offen sc1
    s_mov_b64 exec, -1
    """)
    a.label(l2)
def poll(a, loads, cmps, preloaded, sleep=0):
    l0, l1, l2 = a.uid("Lpo"), a.uid("Lpo"), a.uid("Lpo")
    a(f"s_mov_b32 s{sSP}, 0")
    if preloaded: a(f"s_branch {l2}")
    a.label(l0)
    for l in loads: a(l)
    a("s_waitcnt vmcnt(0)")
    a.label(l2)
    for k, v in enumerate(cmps):
        if k == 0: a(f"v_cmp_eq_u64 vcc, {sr(sNON,2)}, {vr(v,2)}")
        else: a(f"v_cmp_eq_u64 {sr(sT1,2)}, {sr(sNON,2)}, {vr(v,2)}\ns_nop 0\ns_and_b64 vcc, vcc, {sr(sT1,2)}")
    a(f"""
    s_add_u32 s{sSP}, s{sSP}, 1
    s_cmp_gt_u32 s{sSP}, 100000
    s_cbranch_scc1 {l1}
    s_cmp_eq_u64 vcc, -1
    """)
    if sleep: a(f"s_cbranch_scc1 {l1}\ns_sleep {sleep}\ns_branch {l0}")
    else: a(f"s_cbranch_scc0 {l0}")
    a.label(l1)

def wfrag(phi, dst=None):
    t, n = divmod(phi, 5)
    pre = [f"s_mul_i32 s{sTM}, s{sK+t}, 5120"]
    if phi < 25 or dst is not None:
        d = WR0+4*phi if dst is None else dst
        if n < 4: return pre + [f"buffer_load_dwordx4 {vr(d,4)}, v{VL}, {sr(SWT,4)}, s{sTM} offen offset:{1024*n} sc1"]
        return pre + [f"s_add_u32 s{sTM}, s{sTM}, 4096", f"buffer_load_dwordx4 {vr(d,4)}, v{VL}, {sr(SWT,4)}, s{sTM} offen sc1"]
    base, o = (sFILL, (phi-25)*1024) if phi < 33 else (sFW, (phi-33)*1024)
    return [f"s_add_u32 m0, s{base}, {o}"] + pre + [f"s_add_u32 s{sTM}, s{sTM}, {1024*n}", f"buffer_load_dwordx4 v{VL}, {sr(SWT,4)}, s{sTM} offen sc1 lds"]
def p2_ldsbases():
    return [f"s_lshl_b32 s{sFILL}, s{sW}, 13", f"s_add_u32 s{sFILL}, s{sFILL}, {L_A}", f"s_mul_i32 s{sFW}, s{sW}, 12288"]

def stage_set(c, st):
    return [f"s_mov_b32 s{sFILL}, {((st+1) % 3) * c.stg}"]
def duty(a, n=2, guard=True, mask=0):
    lab = a.uid("Ldu")
    g = [f"s_bitcmp1_b32 {mask}, s{sI}", f"s_cbranch_scc0 {lab}"] if guard else []
    for _ in range(n):
        g += lines(f"""
        s_cmp_ge_u32 s{sPFO}, s{sPG}
        s_cbranch_scc1 {lab}
        buffer_load_dword v255, v254, {sr(STMP,4)}, s{sPFO} offen {PFF}
        s_add_u32 s{sPFO}, s{sPFO}, s{sPFS}""")
    return g + [lab + ":"]

def atoms(group):
    if any(l.endswith(":") for l in group): return [group]
    out = []; k = 0
    while k < len(group):
        if group[k].startswith("s_mov_b64 exec"): out.append(group[k:k+3]); k += 3
        else: out.append([group[k]]); k += 1
    return out
def balance(M, streams, last):
    items = []
    for units, lo, hi in streams:
        tot = sum(len(u) for u in units); acc = 0
        for u in units:
            items.append((lo + (acc*(hi-lo+1))//max(tot, 1), u)); acc += len(u)
    return spread(M, items)

def iteration(a, c, S, kind, extra1=(), extra2=(), pre2=None):
    prio = 'noprio' not in EXP
    a("s_waitcnt lgkmcnt(0)")
    M = mfmas(c, 0, kind == 0); n = len(M)
    upd = lambda b: [f"v_add_u32 v{b}, s{sDELTA}, v{b}"]
    rd = reads(c, 1, 1); nx = c.nM + (1 if c.nh else 0)
    R = rd[:nx]
    if kind != 9: R = R + [upd(c.xb[1])] + ([upd(c.hb[1])] if c.nh else [])
    for f in range(c.nF):
        R += rd[nx+2*f:nx+2*f+2]
        if kind != 9 and f: R.append(upd(c.wb[f-1]))
    late = []
    if kind != 9: late = [upd(c.wb[c.nF-1]), upd(c.xb[0])] + ([upd(c.hb[0])] if c.nh else [])
    Sx = []; S0 = []
    if kind != 9:
        S0 = [[f"s_add_u32 s{sT1}, s{sSLOT}, {c.stg}", f"s_cmp_eq_u32 s{sT1}, {3*c.stg}", f"s_cselect_b32 s{sT1}, 0, s{sT1}"], [f"s_sub_u32 s{sDELTA}, s{sT1}, s{sSLOT}"]]
    if kind in ('loop', 7): Sx += dmaB(c, a)
    if kind == 0: Sx += dmaB(c, a) + [stage_set(c, 2)] + dmaA(c, a) + dmaB(c, a)
    Sx += sum([atoms(g) for g in extra1], [])
    if kind in ('loop', 0):
        Sx += [[f"s_mov_b32 s{sFILL}, s{sSLOT}"]]
    if kind != 9: Sx.append([f"s_mov_b32 s{sSLOT}, s{sT1}"])
    st = [(S0, 0, 1), (Sx, 0 if kind == 0 else 2, n-2), (R, 0, n-RT), (late, n-RT+1, n-2)]
    if prio: st = [([["s_setprio 1"]], 0, 0), ([["s_setprio 0"]], n//2, n//2)] + st
    for l in balance(M, st, n): a(l)
    S.dyn(10)
    if kind in ('loop', 0, 7): a(f"s_waitcnt vmcnt({c.nW+2}) lgkmcnt(0)")
    elif kind == 8: a(f"s_waitcnt vmcnt({c.y8}) lgkmcnt(0)")
    else: a("s_waitcnt lgkmcnt(0)")
    S.dyn(20)
    a("s_barrier")
    S.dyn(30)
    if prio: a("s_setprio 3")
    if pre2: pre2()
    M = mfmas(c, 1)
    R = reads(c, 0, 0) if kind != 9 else []
    Sx = []
    if kind in ('loop', 0):
        if c.duty: Sx.append(duty(a, DN, mask=c.dmask))
        Sx += dmaA(c, a)
    Sx += sum([atoms(g) for g in extra2], [])
    st = [(Sx, 0, n-3), (R, 0, n-RT)]
    if kind == 'loop':
        st.append(([[f"s_bitcmp1_b32 {(0x24 if 'tl' in EXP else 0x20) if c.ffn else (0x20 | (5 << SLI))}, s{sI}", f"s_cbranch_scc1 Lspec_{c.tag}", f"Lret_{c.tag}:"]], n-3, n-3))
        st.append(([[f"s_add_u32 s{sI}, s{sI}, 1", f"s_cmp_lt_u32 s{sI}, 7"]], n-2, n-2))
    if prio: st.append(([["s_setprio 2"]], n//2, n//2))
    for l in balance(M, st, n): a(l)

def main_loop(a, c, S, tag, rec_loads):
    iteration(a, c, S, 0)
    tl = c.ffn and 'tl' in EXP
    if tl: t_work(a)
    else: nonce_get(a, c.VN, c.VPS, c.ffn)
    a(f"s_mov_b32 s{sI}, 1")
    S(40)
    a.label(f"Lloop_{tag}")
    c.inloop = True; c.tag = tag
    iteration(a, c, S, 'loop')
    c.inloop = False
    a(f"s_cbranch_scc1 Lloop_{tag}")
    a(f"s_branch Lpost_{tag}")
    l5 = a.uid("Ls")
    tf = f"buffer_load_dwordx2 {vr(c.VN,2)}, v{c.VTF}, {sr(SFL,4)}, 0 offen sc1"
    a.label(f"Lspec_{tag}")
    if not c.ffn:
        l6 = a.uid("Ls")
        a(f"s_cmp_lg_u32 s{sI}, {SLI}\ns_cbranch_scc1 {l5}")
        stat_loads(a)
        a.label(l5)
        a(f"s_cmp_lg_u32 s{sI}, {SLI+2}\ns_cbranch_scc1 {l6}")
        s_work(a, c.VPS)
        a.label(l6)
        a(f"s_cmp_lg_u32 s{sI}, 5\ns_cbranch_scc1 Lret_{tag}")
    if tl:
        l7 = a.uid("Ls")
        a(f"s_cmp_lg_u32 s{sI}, 2\ns_cbranch_scc1 {l7}")
        nonce_get(a, c.VN, c.VPS, True)
        a(f"s_branch Lret_{tag}")
        a.label(l7)
    a(tf)
    a(f"s_branch Lret_{tag}")
    a.label(f"Lpost_{tag}")
    S(41)
    early = [wfrag(p) for p in c.early]
    e = []; k = 0
    for cnt in c.esplit: e.append(early[k:k+cnt]); k += cnt
    assert k == len(early)
    def pre7():
        poll(a, [tf], [c.VN], True)
        for l in p2_ldsbases(): a(l)
    iteration(a, c, S, 7, extra2=e[0], pre2=pre7)
    a(f"s_add_u32 s{sI}, s{sI}, 1")
    c.y8 = len(e[0]) + len(e[1])
    iteration(a, c, S, 8, extra1=e[1], extra2=rec_loads + e[2])
    a(f"s_add_u32 s{sI}, s{sI}, 1")
    iteration(a, c, S, 9, extra1=e[3], extra2=e[4] + c.tailx)
    a("s_setprio 0")
    c.yrec = len(e[2]) + len(e[3]) + len(e[4])
    S(4)

def rho_local(a, d, t):
    a(f"v_bfe_u32 v{d}, v{LANE}, 2, 3\nv_lshrrev_b32 v{t}, 5, v{LANE}\nv_lshl_add_u32 v{d}, v{t}, 4, v{d}")

def t_issue(a, guard=True):
    for q in range(4):
        a(f"s_add_u32 m0, s{sTB}, {1024*q}\ns_nop 0")
        a(f"buffer_load_dwordx4 v{SIDE+4+q}, {sr(SPF,4)}, 0 offen {TFL} lds")
def side_loads(a, stat=True, issue=True):
    ld, lst, lh, lj = a.uid("Lt"), a.uid("Lt"), a.uid("Lt"), a.uid("Lt")
    sU, sKp, sCh = sKX, sKW, sDELTA
    A0, A1, ST0, ST1 = SIDE, SIDE+1, SIDE+2, SIDE+3
    a(f"s_cmp_lt_u32 s{sW}, 2\ns_cbranch_scc1 {ld}")
    a(f"""
    s_lshl_b32 s{sTB}, s{sW}, 12
    s_add_u32 s{sTB}, s{sTB}, {L_TST-2*4096}
    s_mul_i32 s{sT0}, s{sW}, 49152
    s_sub_u32 s{sT0}, s{sT0}, {6*49152-45056}
    s_cmp_ge_u32 s{sW}, 6
    s_cselect_b32 s{sTB}, s{sT0}, s{sTB}
    s_mul_i32 s{sU}, s2, 6
    s_add_u32 s{sU}, s{sU}, s{sW}
    s_sub_u32 s{sU}, s{sU}, {128*6+2}
    s_min_u32 s{sU}, s{sU}, 739
    s_mul_i32 s{sCh}, s{sU}, 886
    s_lshr_b32 s{sCh}, s{sCh}, 16
    s_mul_i32 s{sT0}, s{sCh}, 74
    s_sub_u32 s{sKp}, s{sU}, s{sT0}
    v_lshrrev_b32 v{T0}, 5, v{LANE}
    s_cmp_ge_u32 s{sKp}, 20
    s_cbranch_scc1 {lh}
    """)
    for e, (A, ST) in enumerate(((A0, ST0), (A1, ST1))):
        a(f"""
        s_lshl_b32 s{sT0}, s{sKp}, 2
        s_add_u32 s{sT0}, s{sT0}, {2*e}
        v_add_u32 v{T1}, s{sT0}, v{T0}
        v_mul_u32_u24 v{T2}, 205, v{T1}
        v_lshrrev_b32 v{T2}, 10, v{T2}
        v_mul_u32_u24 v{T3}, 5, v{T2}
        v_sub_u32 v{T1}, v{T1}, v{T3}
        v_mul_u32_u24 v{A}, 40, v{T2}
        v_lshrrev_b32 v{T2}, 1, v{T1}
        v_mul_u32_u24 v{T2}, 20, v{T2}
        v_and_b32 v{T3}, 1, v{T1}
        v_lshl_add_u32 v{T2}, v{T3}, 3, v{T2}
        v_cmp_eq_u32 vcc, 4, v{T1}
        v_mov_b32 v{ST}, 20
        s_nop 0
        v_cndmask_b32 v{T2}, v{T2}, 16, vcc
        v_cndmask_b32 v{ST}, 4, v{ST}, vcc
        v_add_u32 v{A}, v{A}, v{T2}
        """)
    a("s_waitcnt lgkmcnt(0)")
    srd(a, SPF, P_WO, 640*1280)
    a(f"s_branch {lj}")
    a.label(lh)
    a(f"""
    s_sub_u32 s{sT0}, s{sKp}, 20
    s_mul_i32 s{sT1}, s{sT0}, 86
    s_lshr_b32 s{sT1}, s{sT1}, 8
    s_mul_i32 s{sT1}, s{sT1}, 3
    s_sub_u32 s{sT1}, s{sT0}, s{sT1}
    s_lshl_b32 s{sT0}, s{sT0}, 5
    v_lshl_add_u32 v{A0}, v{T0}, 2, s{sT0}
    s_cmp_eq_u32 s{sT1}, 1
    s_cselect_b32 s{sT1}, 16, 8
    s_cselect_b32 s{sT2}, 8, 16
    v_add_u32 v{A1}, s{sT1}, v{A0}
    v_mov_b32 v{ST0}, s{sT2}
    v_mov_b32 v{ST1}, s{sT2}
    """)
    a("s_waitcnt lgkmcnt(0)")
    srd(a, SPF, P_W2, 1728*1280)
    a.label(lj)
    a(f"""
    v_bfe_u32 v{T1}, v{LANE}, 3, 2
    v_and_b32 v{T2}, 7, v{LANE}
    v_lshlrev_b32 v{T2}, 4, v{T2}
    s_lshl_b32 s{sT0}, s{sCh}, 7
    s_lshl_b32 s{sT1}, s{sW}, 12
    """)
    for q in range(4):
        A, ST = ((A0, ST0), (A1, ST1))[q & 1]
        a(f"v_add_u32 v{T3}, v{A}, v{T1}")
        if q >> 1: a(f"v_add_u32 v{T3}, v{T3}, v{ST}")
        a(f"v_mul_u32_u24 v{T3}, 1280, v{T3}\nv_add3_u32 v{SIDE+4+q}, v{T3}, v{T2}, s{sT0}")
    if issue: t_issue(a, False)
    a(f"s_mul_i32 s{sT2}, s{sKp}, 5\ns_lshl_b32 s{sT3}, s{sCh}, 2")
    for t in range(4):
        a(f"""
        s_add_u32 s{sT0}, s{sT3}, {t}
        s_mul_i32 s{sT1}, s{sT0}, 52
        s_lshr_b32 s{sT1}, s{sT1}, 8
        s_mul_i32 s{sT1}, s{sT1}, 365
        s_add_u32 s{sT0}, s{sT0}, s{sT1}
        s_add_u32 s{sT0}, s{sT0}, s{sT2}
        s_lshl_b32 s{sTS[t]}, s{sT0}, 10
        """)
    a(f"s_branch {ld}")
    a.label(lst)
    if stat: stat_loads(a, False)
    a.label(ld)
def stat_loads(a, guard=True):
    ld = a.uid("Lsl")
    if guard: a(f"s_cmp_lt_u32 s{sW}, 4\ns_cbranch_scc1 {ld}")
    stat_row(a)
    a(f"s_mul_i32 s{sT0}, s{sT0}, 1280\nv_mul_u32_u24 v{T0}, 1280, v{G}\nv_lshl_add_u32 v{T0}, v{R}, 4, v{T0}")
    for i in range(5): a(f"buffer_load_dwordx4 {vr(SIDE+4*i,4)}, v{T0}, {sr(SX,4)}, s{sT0} offen offset:{256*i}")
    a.label(ld)
for u in range(1001): assert (u*6554)>>16 == u//10
for u in range(80): assert (u*205)>>10 == u//5
for u in range(54): assert (u*86)>>8 == u//3
for N in range(40): assert (N*52)>>8 == N//5

def t_work(a):
    lab = a.uid("Ltw")
    a(f"s_cmp_lt_u32 s{sW}, 2\ns_cbranch_scc1 {lab}")
    t_part(a)
    a.label(lab)
def s_work(a, vPS):
    lab = a.uid("Ltw")
    a(f"s_cmp_lt_u32 s{sW}, 4\ns_cbranch_scc1 {lab}")
    s_part(a, SIDE+20)
    a(f"v_mov_b32 v{SIDE}, v{SIDE+20}\nv_mov_b32 v{SIDE+1}, v{SIDE+21}\nv_mov_b32 v{SIDE+2}, s{sNON}\nv_mov_b32 v{SIDE+3}, s{sNON+1}")
    stat_row(a)
    a(f"""
    s_lshl_b32 s{sT0}, s{sT0}, {RSH}
    s_add_u32 s{sT0}, s{sT0}, {STO}
    v_lshlrev_b32 v{T0}, {RSH}, v{G}
    v_lshl_add_u32 v{T0}, v{R}, 4, v{T0}
    s_mov_b32 exec_lo, {0x00010001 if RSH == 4 else 0x00030003}
    s_mov_b32 exec_hi, {0x00010001 if RSH == 4 else 0x00030003}
    buffer_store_dwordx4 {vr(SIDE,4)}, v{T0}, {sr(SFL,4)}, s{sT0} offen sc1
    s_mov_b64 exec, -1
    """)
    a.label(lab)
def t_part(a):
    tmp = SIDE
    a(f"""
    v_lshrrev_b32 v{T0}, 2, v{LANE}
    v_lshlrev_b32 v{T0}, 7, v{T0}
    v_and_b32 v{T1}, 3, v{LANE}
    v_lshl_add_u32 v{T0}, v{T1}, 3, v{T0}
    v_add_u32 v{T0}, s{sTB}, v{T0}
    """)
    for t in range(4):
        a(f"ds_read_b64_tr_b16 {vr(tmp+4*t,2)}, v{T0} offset:{32*t}")
        a(f"ds_read_b64_tr_b16 {vr(tmp+4*t+2,2)}, v{T0} offset:{32*t+2048}")
    for t in range(4):
        a(f"s_waitcnt lgkmcnt({6-2*t})\nbuffer_store_dwordx4 {vr(tmp+4*t,4)}, v{VL}, {sr(SFL,4)}, s{sTS[t]} offen sc1")
def s_part(a, vPS):
    tmp = SIDE
    s, q = vPS, vPS+1
    a(f"v_mov_b32 v{s}, 0\nv_mov_b32 v{q}, 0\nv_mov_b32 v{T0}, 0x3f803f80")
    for j in range(20):
        a(f"v_dot2c_f32_bf16 v{s}, v{tmp+j}, v{T0}\nv_dot2c_f32_bf16 v{q}, v{tmp+j}, v{tmp+j}")
    a("s_nop 2")
    for sh in (8, 4, 2, 1):
        a(f"v_add_f32_dpp v{s}, v{s}, v{s} row_ror:{sh} row_mask:0xf bank_mask:0xf")
        a(f"v_add_f32_dpp v{q}, v{q}, v{q} row_ror:{sh} row_mask:0xf bank_mask:0xf")
        a("s_nop 0")
    a(f"""
    v_mul_f32 v{s}, {f32(1/640)}, v{s}
    v_mul_f32 v{q}, {f32(1/640)}, v{q}
    v_fma_f32 v{q}, -v{s}, v{s}, v{q}
    v_max_f32 v{q}, 0, v{q}
    v_cvt_pk_bf16_f32 v{T0}, v{s}, v{q}
    v_lshlrev_b32 v{T1}, 16, v{T0}
    v_and_b32 v{q}, 0xffff0000, v{T0}
    v_add_f32 v{q}, {f32(1e-5)}, v{q}
    v_cvt_pk_bf16_f32 v{q}, v{q}, v{q}
    v_and_b32 v{q}, 0xffff0000, v{q}
    v_sqrt_f32 v{q}, v{q}
    s_nop 0
    v_cvt_pk_bf16_f32 v{q}, v{q}, v{q}
    v_and_b32 v{q}, 0xffff0000, v{q}
    v_rcp_f32 v{s}, v{q}
    s_nop 0
    v_mul_f32 v{q}, v{T1}, v{s}
    v_sub_f32 v{q}, 0, v{q}
    """)

def p2_setup(a, VTF):
    if MAP2 == 81:
        a(f"""
    s_and_b32 s{sT0}, s2, 7
    s_lshl_b32 s{sR2}, s{sT0}, 2
    s_bfe_u32 s{sT1}, s2, 0x20003
    s_add_u32 s{sR2}, s{sR2}, s{sT1}
    s_lshr_b32 s{sC2}, s2, 5
    s_lshl_b32 s{sT1}, s{sT1}, 1
    s_mul_i32 s{sT0}, s{sC2}, {ROTA}
    s_lshr_b32 s{sT0}, s{sT0}, 1
    s_add_u32 s{sT1}, s{sT1}, s{sT0}
    """)
    else:
        a(f"""
    s_and_b32 s{sT0}, s2, 3
    s_lshl_b32 s{sR2}, s{sT0}, 3
    s_bfe_u32 s{sT1}, s2, 0x30003
    s_add_u32 s{sR2}, s{sR2}, s{sT1}
    s_and_b32 s{sC2}, s2, 4
    s_lshr_b32 s{sT0}, s2, 6
    s_add_u32 s{sC2}, s{sC2}, s{sT0}
    s_mul_i32 s{sT0}, s{sT0}, {ROTA}
    s_add_u32 s{sT1}, s{sT1}, s{sT0}
    """)
    a(f"""
    s_cmp_lt_u32 s{sW}, 2
    s_cselect_b32 s{sN2}, 10, 9
    s_cmp_ge_u32 s{sT1}, s{sN2}
    s_cselect_b32 s{sT2}, s{sN2}, 0
    s_sub_u32 s{sK}, s{sT1}, s{sT2}
    """)
    for t in range(1, 10):
        a(f"s_add_u32 s{sK+t}, s{sK+t-1}, 1\ns_cmp_eq_u32 s{sK+t}, s{sN2}\ns_cselect_b32 s{sK+t}, 0, s{sK+t}")
    a(f"""
    s_mul_i32 s{sT3}, s{sW}, 9
    s_min_u32 s{sT2}, s{sW}, 2
    s_add_u32 s{sT3}, s{sT3}, s{sT2}
    v_lshrrev_b32 v{T0}, 1, v{LANE}
    s_sub_u32 s{sT2}, s{sN2}, 1
    v_min_u32 v{T0}, s{sT2}, v{T0}
    v_add_u32 v{T0}, s{sT3}, v{T0}
    s_mul_i32 s{sT2}, s{sC2}, 5
    s_lshr_b32 s{sT2}, s{sT2}, 2
    s_mul_i32 s{sT2}, s{sT2}, 74
    v_and_b32 v{T1}, 1, v{LANE}
    v_mul_u32_u24 v{T1}, 74, v{T1}
    v_add3_u32 v{T0}, v{T0}, v{T1}, s{sT2}
    v_mul_u32_u24 v{T0}, 10923, v{T0}
    v_lshrrev_b32 v{T0}, 16, v{T0}
    v_lshlrev_b32 v{T0}, {TSH}, v{T0}
    v_add_u32 v{VTF}, {TFO}, v{T0}
    s_mul_i32 s{sT2}, s{sC2}, 74
    s_add_u32 s{sT2}, s{sT2}, s{sT3}
    s_mul_i32 s{sT2}, s{sT2}, 5120
    s_add_u32 s{sT2}, s{sT2}, {WT_OFF}
    s_add_u32 s{SWT}, s{P_WS}, s{sT2}
    s_addc_u32 s{SWT+1}, s{P_WS+1}, 0
    s_mul_i32 s{SWT+2}, s{sN2}, {0 if 'now' in EXP else 5120}
    s_mov_b32 s{SWT+3}, 0x00020000
    s_mul_i32 s{sT2}, s{sR2}, 74
    s_add_u32 s{sT2}, s{sT2}, s{sT3}
    s_lshl_b32 s{sT2}, s{sT2}, 12
    s_add_u32 s{SPF}, s{P_WS}, s{sT2}
    s_addc_u32 s{SPF+1}, s{P_WS+1}, 0
    s_lshl_b32 s{SPF+2}, s{sN2}, 12
    {f"s_mov_b32 s{SPF+2}, 0" if 'noa' in EXP else ""}
    s_mov_b32 s{SPF+3}, 0x00020000
    """)
    ly, lyd = a.uid("Ly"), a.uid("Ly")
    a(f"""
    s_cmp_ge_u32 s{sW}, 2
    s_cbranch_scc1 {ly}
    s_lshr_b32 s{sT0}, s{sR2}, 1
    s_lshl_b32 s{sT0}, s{sT0}, 7
    s_lshl_b32 s{sT1}, s{sW}, 5
    s_add_u32 s{sT0}, s{sT0}, s{sT1}
    s_add_u32 s{sT0}, s{sT0}, {16*128}
    v_and_b32 v{T0}, 3, v{LANE}
    v_lshl_add_u32 v{VF}, v{T0}, 3, s{sT0}
    s_branch {lyd}
    """)
    a.label(ly)
    a(f"""
    s_lshl_b32 s{sT0}, s{sR2}, 6
    s_add_u32 s{sT1}, s{sT0}, 63
    s_mul_i32 s{sT0}, s{sT0}, 27595
    s_lshr_b32 s{sT0}, s{sT0}, 22
    s_mul_i32 s{sT1}, s{sT1}, 27595
    s_lshr_b32 s{sT1}, s{sT1}, 22
    s_sub_u32 s{sT1}, s{sT1}, s{sT0}
    s_lshl_b32 s{sT1}, s{sT1}, 7
    s_lshl_b32 s{sT0}, s{sT0}, 7
    s_sub_u32 s{sT2}, s{sW}, 2
    s_mul_i32 s{sT2}, s{sT2}, 3
    s_lshr_b32 s{sT2}, s{sT2}, 1
    s_lshl_b32 s{sT2}, s{sT2}, 3
    s_add_u32 s{sT0}, s{sT0}, s{sT2}
    v_and_b32 v{T0}, 1, v{LANE}
    v_lshlrev_b32 v{T0}, 3, v{T0}
    v_bfe_u32 v{T1}, v{LANE}, 1, 1
    v_mul_u32_u24 v{T1}, s{sT1}, v{T1}
    v_add3_u32 v{VF}, v{T0}, v{T1}, s{sT0}
    """)
    a.label(lyd)
    a(f"v_lshlrev_b32 v{VF}, {FSH}, v{VF}\nv_add_u32 v{VF}, {HFB}, v{VF}")
    a(f"""
    s_lshl_b32 s{sT0}, s{sR2}, 6
    v_add_u32 v{T0}, s{sT0}, v{R}
    v_mul_u32_u24 v{T0}, 1280, v{T0}
    v_lshl_add_u32 v{T0}, v{G}, 3, v{T0}
    s_mul_i32 s{sT0}, s{sC2}, 160
    v_add_u32 v{VXO}, s{sT0}, v{T0}
    """)
for u in range(740): assert (u*10923)>>16 == u//6
for x in range(2048): assert (x*27595)>>22 == x//152

class Inter:
    def __init__(s, a, groups, every): s.a, s.g, s.e, s.n = a, list(groups), every, 0
    def __call__(s, txt):
        for l in lines(txt):
            s.a(l); s.n += 1
            if s.n % s.e == 0 and s.g:
                for x in s.g.pop(0): s.a(x)
    def flush(s, keep=0):
        while len(s.g) > keep:
            for x in s.g.pop(0): s.a(x)

def gen(stamps=False, PF=4, pff="", SLEEP=0, LP=None, QD=10, DMQ=0b10000, nlate=0, qimg=0, dn=2, dpre=0, sli=3, rt=4, qevery=16, fn1=30, map2=81, rota=2, fevery=25, OSF='', exp="tup nofld cpf d0q wf wr wt", NB=0, dmask=0b111, tfl="nt", eq=(2,2,2,2,2), ef=(2,2,2,2,2), TLB=0):
    global EXP, PFF, DN, DMASK, DPRE, TFL, MAP2, ROTA
    MAP2 = map2; ROTA = rota
    global RT, SLI, RSH, FSH, TSH
    TSH = 7 if 'wt' in exp.split() else 3
    RSH = 5 if 'wr' in exp.split() else 4; FSH = 4 if 'wf' in exp.split() else 0
    RT = rt; SLI = sli
    EXP = set(exp.split()); PFF = pff; TFL = tfl; DMASK = dmask; DN = dn
    a = Asm(); S = St(a, stamps)
    LB = [p for p in globals()['LB'] if p < 45-5*nlate]
    LA_ = [p for p in globals()['LA_'] if p < 45-5*nlate]
    name = NAME + "_kernel"
    def emit(groups):
        for g in groups:
            for l in g: a(l)
    if stamps: a("s_memrealtime s[96:97]\ns_memtime s[94:95]")
    a(f"s_cmp_ge_u32 s2, 256\ns_cbranch_scc1 Lend")
    if 'badmap' in EXP: a("s_and_b32 s3, s2, 31\ns_lshl_b32 s3, s3, 3\ns_lshr_b32 s2, s2, 5\ns_or_b32 s2, s2, s3")
    a(f"s_load_dwordx16 s[40:55], s[0:1], 0\ns_load_dwordx4 s[56:59], s[0:1], 64\ns_load_dwordx2 s[60:61], s[0:1], 80")
    a(f"""
    v_lshrrev_b32 v{T0}, 6, v0
    v_and_b32 v{LANE}, 63, v0
    v_readfirstlane_b32 s{sW}, v{T0}
    v_lshrrev_b32 v{G}, 4, v{LANE}
    v_and_b32 v{R}, 15, v{LANE}
    v_lshlrev_b32 v{VL}, 4, v{LANE}
    s_lshl_b32 s{sW1K}, s{sW}, 11
    s_mov_b32 s{sI}, 0
    """)
    def pf_addr(nrow_cu, kper, nst, cidx_s, VD):
        pass
    lx, lq, ld, lw = a.uid("Lpf"), a.uid("Lpf"), a.uid("Lpf"), a.uid("Lpf")
    a(f"""
    s_bfe_u32 s{sT2}, s2, 0x40003
    s_lshr_b32 s{sT3}, s2, 7
    s_and_b32 s{sT0}, s2, 1
    s_bfe_u32 s{sT1}, s2, 0x20001
    s_mov_b32 s{sPG}, 0
    v_mov_b32 v254, 0
    s_cmp_ge_u32 s{sW}, 3
    s_cbranch_scc1 {lw}
    s_cmp_ge_u32 s{sW}, 1
    s_cbranch_scc1 {lq}
    s_lshl_b32 s{sT0}, s{sT0}, 10
    s_lshl_b32 s{sT1}, s{sT1}, 8
    s_lshl_b32 s{sT2}, s{sT2}, 4
    s_add_u32 s{sT0}, s{sT0}, s{sT1}
    s_add_u32 s{sT0}, s{sT0}, s{sT2}
    v_add_u32 v{T0}, s{sT0}, v{R}
    v_mul_u32_u24 v{T0}, 1280, v{T0}
    v_and_b32 v{T1}, 1, v{G}
    v_lshl_add_u32 v254, v{T1}, 7, v{T0}
    s_lshl_b32 s{sT0}, s{sT3}, 8
    s_mov_b32 s{sPFS}, 256
    s_mov_b32 s{sPG}, 1280
    s_waitcnt lgkmcnt(0)
    s_mov_b32 s{sPFO}, 512
    """)
    srd(a, STMP, P_X, XB)
    a(f"buffer_load_dword v255, v254, {sr(STMP,4)}, s{sT0} offen {pff}")
    a(f"s_branch {ld}")
    a.label(lq)
    a(f"""
    s_cmp_eq_u32 s{sW}, 2
    s_cbranch_scc1 {lx}
    v_min_u32 v{T0}, 35, v{LANE}
    v_mul_u32_u24 v{T1}, 57, v{T0}
    v_lshrrev_b32 v{T1}, 9, v{T1}
    v_mul_u32_u24 v{T3}, 9, v{T1}
    v_sub_u32 v{T0}, v{T0}, v{T3}
    s_lshl_b32 s{sT2}, s{sT2}, 2
    v_add_u32 v{T1}, s{sT2}, v{T1}
    v_mul_u32_u24 v{T1}, 3840, v{T1}
    v_mul_u32_u24 v{T3}, 43, v{T0}
    v_lshrrev_b32 v{T3}, 7, v{T3}
    v_mul_u32_u24 v{T3}, 896, v{T3}
    v_lshl_add_u32 v{T0}, v{T0}, 7, v{T3}
    s_mul_i32 s{sT1}, s{sT1}, 320
    s_and_b32 s{sT1}, s{sT1}, 0xffffff80
    v_add3_u32 v254, v{T0}, v{T1}, s{sT1}
    s_mul_i32 s{sT0}, s{sT3}, {128*3840}
    s_add_u32 s{sT1}, s{sT0}, {64*3840}
    s_mov_b32 s{sPFS}, {64*3840}
    s_mov_b32 s{sPG}, {640*3840}
    s_waitcnt lgkmcnt(0)
    s_mov_b32 s{sPFO}, {256*3840}
    """)
    srd(a, STMP, P_WQ, 640*3840)
    a(f"buffer_load_dword v255, v254, {sr(STMP,4)}, s{sT0} offen {pff}")
    a(f"buffer_load_dword v255, v254, {sr(STMP,4)}, s{sT1} offen {pff}")
    a(f"s_branch {ld}")
    a.label(lx)
    a(f"""
    s_and_b32 s{sT0}, s2, 127
    s_mul_i32 s{sT0}, s{sT0}, 3456
    v_min_u32 v{T0}, 26, v{LANE}
    v_lshl_add_u32 v254, v{T0}, 7, s{sT0}
    s_mul_i32 s{sT0}, s{sT3}, {128*3456}
    s_mov_b32 s{sPFS}, {128*3456}
    s_mov_b32 s{sPG}, {640*3456}
    s_waitcnt lgkmcnt(0)
    s_mov_b32 s{sPFO}, {256*3456}
    """)
    srd(a, STMP, P_W1, 640*3456)
    a(f"buffer_load_dword v255, v254, {sr(STMP,4)}, s{sT0} offen {pff}")
    a(f"s_branch {ld}")
    a.label(lw)
    if 'cpf' in EXP:
        lc_ = a.uid("Lcp")
        a(f"""
        s_cmp_lg_u32 s{sW}, 7
        s_cbranch_scc1 {lc_}
        s_getpc_b64 {sr(sNON,2)}
        s_and_b32 s{sNON}, s{sNON}, 0xffffff00
        s_lshr_b32 s{sT0}, s2, 3
        s_mul_i32 s{sT0}, s{sT0}, 10
        v_min_u32 v{T0}, 9, v{LANE}
        v_add_u32 v{T0}, s{sT0}, v{T0}
        v_lshlrev_b32 v{T0}, 7, v{T0}
        v_min_u32 v{T0}, Lend-{lc_}, v{T0}
        global_load_dword v255, v{T0}, {sr(sNON,2)}
        """)
        a.label(lc_)
    ln = a.uid("Ln")
    a(f"s_cmp_lg_u32 s2, 0\ns_cbranch_scc1 {ln}\ns_cmp_lg_u32 s{sW}, 7\ns_cbranch_scc1 {ln}\ns_waitcnt lgkmcnt(0)")
    srd(a, SDBG, P_DBG, 256)
    a(f"""
    s_memrealtime {sr(sNON,2)}
    s_waitcnt lgkmcnt(0)
    s_or_b32 s{sNON}, s{sNON}, 1
    v_mov_b32 v{T0}, s{sNON}
    v_mov_b32 v{T1}, s{sNON+1}
    v_mov_b32 v{T2}, 0
    s_mov_b64 exec, 1
    buffer_store_dwordx2 {vr(T0,2)}, v{T2}, {sr(SDBG,4)}, 0 offen sc1
    s_mov_b64 exec, -1
    """)
    a.label(ln)
    a("s_waitcnt lgkmcnt(0)")
    srd(a, STMP, P_X, XB)
    a(f"s_mov_b32 s{sPFS}, 0\ns_mov_b32 s{sPFO}, 0")
    a.label(ld)
    S.start()
    srd(a, SX, P_X, XB)
    a(f"""
    s_and_b32 s{sT0}, s2, 1
    s_bfe_u32 s{sT1}, s2, 0x20001
    s_lshr_b32 s{sT2}, s2, 3
    s_cmp_ge_u32 s{sT2}, 16
    s_cbranch_scc1 Lffn
    """)
    def late_srds():
        srd(a, SHO, P_WS, 0 if 'nost' in EXP else HO_SZ); srd(a, SFL, P_WS, FL_SZ, WT_OFF); srd(a, SDBG, P_DBG, 256)
    def set_stage(c, st): emit([stage_set(c, st)])
    def pretouch(flagoff_s):
        lp = a.uid("Lpt")
        a(f"s_cmp_lg_u32 s{sW}, 7\ns_cbranch_scc1 {lp}")
        stat_row(a)
        a(f"""
        s_lshl_b32 s{sT0}, s{sT0}, 4
        s_add_u32 s{sT0}, s{sT0}, {STO}
        v_mov_b32 v{T0}, s{sT0}
        s_lshl_b32 s{sT0}, s2, 3
        s_add_u32 s{sT0}, s{sT0}, {TFO}
        v_writelane_b32 v{T0}, s{sT0}, 1
        """)
        if flagoff_s is not None:
            a(f"s_add_u32 s{sT0}, s{flagoff_s}, {FLB}\nv_writelane_b32 v{T0}, s{sT0}, 2")
        a(f"buffer_load_dword v255, v{T0}, {sr(SFL,4)}, 0 offen sc1")
        if TLB:
            a(f"v_lshlrev_b32 v{T0}, {TLB}, v{LANE}")
            a(f"buffer_load_dword v255, v{T0}, {sr(SHO,4)}, 0 offen sc1")
            a(f"buffer_load_dword v255, v{T0}, {sr(SFL,4)}, 0 offen sc1")
            srd(a, SPF, P_OUT, XB)
            a(f"buffer_load_dword v255, v{T0}, {sr(SPF,4)}, 0 offen sc1")
            srd(a, SPF, P_B2, 1280)
            a(f"buffer_load_dword v255, v{T0}, {sr(SPF,4)}, 0 offen")
        a.label(lp)
    d0e = lambda c: 'd0e' in EXP or ('d0q' in EXP and not c.ffn)
    def pre_loop(c, setup):
        if d0e(c):
            a(f"s_cmp_lt_u32 s{sW}, {c.nxm}\ns_cselect_b64 vcc, -1, 0")
            set_stage(c, 0); emit(dmaA(c, a) + dmaB(c, a))
        late_srds()
        setup()
        tl = c.ffn and 'tl' in EXP
        if not tl: p2_setup(a, c.VTF)
        S(1)
        a(f"s_cmp_lt_u32 s{sW}, {c.nxm}\ns_cselect_b64 vcc, -1, 0")
        if not d0e(c):
            a("s_barrier")
            set_stage(c, 0); emit(dmaA(c, a) + dmaB(c, a))
        if tl:
            lt_ = a.uid("Ltl")
            a(f"s_cmp_lt_u32 s{sW}, 2\ns_cbranch_scc1 {lt_}")
            t_issue(a)
            a.label(lt_)
            p2_setup(a, c.VTF)
        elif c.ffn:
            a(f's_waitcnt vmcnt({c.nW+2})'); t_work(a)
        a(f"v_mov_b32 v{T0}, 0")
        a(f"buffer_load_dwordx2 {vr(c.VN,2)}, v{T0}, {sr(SDBG,4)}, 0 offen sc1")
        if 'nb2' not in EXP: a("s_barrier")
        set_stage(c, 1); emit(dmaA(c, a))
        if tl:
            lw_ = a.uid("Ltl")
            a(f"s_waitcnt vmcnt({c.nW+4})\ns_cmp_ge_u32 s{sW}, 2\ns_cbranch_scc1 {lw_}\ns_waitcnt vmcnt({c.nW})")
            a.label(lw_)
        else: a(f"s_waitcnt vmcnt({c.nW})")
        S(2)
        a("s_barrier")
        S(3)
        emit(reads(c, 0, 0))
        a(f"s_mov_b32 s{sSLOT}, {c.stg}")
    def alloc_common(c):
        al = Alloc(11)
        c.VX = [al(), al(), 124]; c.VW = [120, 121, 122, 123]
        c.xb = [al(), al()]; c.hb = [al(), al()]; c.wb = [al() for _ in range(c.nF)]
        c.VTF = al(); c.VRA = al(); c.VPS = al(2, 4); c.VN = al(2, 2); c.REC = al(20, 4)
        assert c.VPS == 24
        return al
    def dma_setup(c, P, magic, colfn):
        a(f"""
        s_lshl_b32 s{sT0}, s{sW}, 4
        s_add_u32 s{sT0}, s{sT0}, s{sT3}
        s_max_i32 s{sT0}, s{sT0}, 0
        s_mul_i32 s{sXA}, s{sT0}, 1280
        s_sub_u32 s{sXA}, s{sXA}, 128
        s_lshl_b32 s{sT0}, s{sW}, 3
        s_add_u32 s{sT0}, s{sT0}, s{sT3}
        s_mul_i32 s{sXB}, s{sT0}, 1280
        s_add_u32 s{sXB}, s{sXB}, {128*1280-128}
        s_lshl_b32 s{sEM}, s{sW}, 10
        s_add_u32 s{sEM}, s{sEM}, 16384
        v_lshrrev_b32 v{T0}, 3, v{LANE}
        v_mul_u32_u24 v{T0}, 1280, v{T0}
        v_xor_b32 v{T1}, v{G}, v{LANE}
        v_and_b32 v{T1}, 7, v{T1}
        v_lshl_add_u32 v{c.VX[0]}, v{T1}, 4, v{T0}
        v_xor_b32 v{T2}, 64, v{c.VX[0]}
        v_add_u32 v{c.VX[1]}, {8*1280-1024}, v{T2}
        s_and_b32 s{sT0}, s{sW}, 1
        s_lshl_b32 s{sT1}, s{sT0}, 6
        v_xor_b32 v{c.VX[2]}, s{sT1}, v{c.VX[0]}
        s_lshl_b32 s{sT0}, s{sT0}, 2
        s_lshr_b32 s{sT1}, s{sW}, 1
        s_lshl_b32 s{sT1}, s{sT1}, 4
        s_add_u32 s{sT0}, s{sT0}, s{sT1}
        s_mul_i32 s{sKW}, s{sT0}, {c.wrowb}
        s_add_u32 s{sKW}, s{sKW}, s{sWO}
        s_sub_u32 s{sKW}, s{sKW}, {64*c.wrowb}
        s_mov_b32 s{sWM}, -1
        s_mov_b32 s{sWM+1}, 0xffff
        s_mul_i32 s{sWB}, s{sW}, {8*c.wrow}
        s_add_u32 s{sWB}, s{sWB}, {c.xsz}
        """)
        for u in range(c.nW):
            a(f"""
            v_add_u32 v{T0}, {64*u}, v{LANE}
            v_mul_u32_u24 v{T1}, {magic}, v{T0}
            v_lshrrev_b32 v{T1}, 16, v{T1}
            v_mul_u32_u24 v{T2}, {P}, v{T1}
            v_sub_u32 v{T0}, v{T0}, v{T2}
            """)
            colfn()
            a(f"""
            v_and_b32 v{T2}, 4, v{T1}
            v_add_u32 v{T1}, v{T1}, v{T2}
            v_mul_u32_u24 v{T1}, {c.wrowb}, v{T1}
            v_add_u32 v{T0}, v{T0}, v{T1}
            v_subrev_u32 v{c.VW[u]}, {1024*u}, v{T0}
            """)
    def half(groups, young):
        if not groups: return
        lh = a.uid("Lh")
        a(f"s_cmp_ge_u32 s{sW}, 4\ns_cbranch_scc{0 if young else 1} {lh}")
        emit(groups)
        a.label(lh)
    FLD = f"buffer_load_dwordx2 {vr(VFD,2)}, v{VF}, {sr(SFL,4)}, 0 offen sc1"
    def publish(younger, old_extra=0):
        lp, lw1 = a.uid("Lp"), a.uid("Lp")
        if old_extra:
            a(f"s_waitcnt vmcnt({younger+old_extra})\ns_cmp_lt_u32 s{sW}, 4\ns_cbranch_scc1 {lw1}")
        a(f"s_waitcnt vmcnt({younger})")
        a.label(lw1)
        a(f"""
        s_barrier
        s_cmp_lg_u32 s{sW}, 0
        s_cbranch_scc1 {lp}
        v_mov_b32 v{T0}, s{sNON}
        v_mov_b32 v{T1}, s{sNON+1}
        v_lshlrev_b32 v{T2}, 3, v{LANE}
        s_lshl_b32 s{sHF}, s{sHF}, {FSH}
        s_add_u32 s{sHF}, s{sHF}, {HFB}
        s_mov_b64 exec, {0xffff if FSH else 1}
        buffer_store_dwordx2 {vr(T0,2)}, v{T2}, {sr(SFL,4)}, s{sHF} offen sc1
        s_mov_b64 exec, -1
        """)
        a.label(lp)
        S(7)
    c = Cfg()
    c.nM, c.nF, c.nh, c.wrow, c.wrowb, c.stg, c.xsz, c.nxm, c.duty = 4, 4, 2, 480, 3840, 49152, 18432, 2, False
    al = alloc_common(c)
    c.acc = [[al(4,4) for i in range(4)] for f in range(4)]
    c.acch = [al(4,4) for f in range(2)]
    lowtop = al.n
    al = Alloc(WREG)
    c.X = [[al(4,4) for i in range(4)] for s in range(2)]
    c.XH = [al(4,4) for s in range(2)]
    c.W = [[al(4,4) for f in range(4)] for s in range(2)]
    assert al.n == 208
    c.esplit = eq; c.early = (list(range(15, 25)) + LA_ + [13, 14])[:sum(eq)]
    a(f"""
    s_lshl_b32 s{sRB}, s{sT0}, 3
    s_and_b32 s{sT3}, s{sT2}, 7
    s_add_u32 s{sRB}, s{sRB}, s{sT3}
    s_lshl_b32 s{sCB}, s{sT1}, 1
    s_lshr_b32 s{sT3}, s{sT2}, 3
    s_add_u32 s{sCB}, s{sCB}, s{sT3}
    s_lshl_b32 s{sT3}, s{sRB}, 7
    s_sub_u32 s{sT3}, s{sT3}, 16
    s_mul_i32 s{sWO}, s{sCB}, 160
    """)
    c.nW = 4; c.ffn = False; c.duty = QD < 10; c.dmask = DMQ
    if QD < 10: a(f"s_cmp_eq_u32 s{sW}, 1\ns_cselect_b32 s{sPG}, s{sPG}, 0\ns_mov_b32 s{sPFO}, {QD*64*3840}")
    dma_setup(c, 30, 2185, lambda: a(f"v_mul_u32_u24 v{T2}, 26, v{T0}\nv_lshrrev_b32 v{T2}, 8, v{T2}\nv_mul_u32_u24 v{T2}, 1120, v{T2}\nv_lshl_add_u32 v{T0}, v{T0}, 4, v{T2}"))
    srd(a, SW, P_WQ, 640*3840)
    a(f"s_add_u32 s{sT0}, s{sRB}, 16\ns_lshl_b32 s{sT0}, s{sT0}, 7\ns_lshl_b32 s{sT1}, s{sCB}, 3\ns_add_u32 s{sHF}, s{sT0}, s{sT1}")
    def q_setup():
        a(f"s_lshr_b32 s{sMH}, s{sW}, 2\ns_and_b32 s{sT0}, s{sW}, 3\ns_lshl_b32 s{sT0}, s{sT0}, 2\ns_lshl_b32 s{sT1}, s{sMH}, 1")
        for f in range(4):
            a(f"s_xor_b32 s{sT2}, s{sT1}, {f}\ns_add_u32 s{sT2}, s{sT2}, s{sT0}\ns_min_u32 s{sNT+f}, s{sT2}, 14")
        a(f"""
        s_mov_b32 s{sMSK}, 0xfffefffe
        s_mov_b32 s{sMSK+1}, 0xfffefffe
        v_lshrrev_b32 v{T0}, 1, v{R}
        v_xor_b32 v{T0}, v{T0}, v{G}
        v_lshlrev_b32 v{T0}, 4, v{T0}
        v_lshl_add_u32 v{T0}, v{R}, 7, v{T0}
        v_add_u32 v{c.hb[0]}, {c.stg}, v{T0}
        v_xor_b32 v{c.hb[1]}, 64, v{c.hb[0]}
        s_lshl_b32 s{sT0}, s{sMH}, 13
        s_add_u32 s{sT0}, s{sT0}, 2048
        v_add_u32 v{c.xb[0]}, s{sT0}, v{c.hb[0]}
        v_add_u32 v{c.xb[1]}, s{sT0}, v{c.hb[1]}
        """)
        rho_local(a, T0, T1)
        a(f"v_mul_u32_u24 v{T0}, 480, v{T0}\nv_and_b32 v{T1}, 3, v{LANE}\nv_lshl_add_u32 v{T0}, v{T1}, 3, v{T0}")
        for f in range(4):
            a(f"s_lshl_b32 s{sT0}, s{sNT+f}, 5\ns_add_u32 s{sT0}, s{sT0}, {c.xsz+c.stg}\nv_add_u32 v{c.wb[f]}, s{sT0}, v{T0}")
        a(f"v_lshlrev_b32 v{c.VRA}, {RSH}, v{R}")
        a(f"""
        s_lshl_b32 s{sT0}, s{sRB}, 7
        s_lshl_b32 s{sT1}, s{sMH}, 6
        s_add_u32 s{sT1}, s{sT1}, s{sT0}
        s_lshl_b32 s{sT1}, s{sT1}, {RSH}
        s_add_u32 s{sRM}, s{sT1}, {STO}
        s_sub_u32 s{sT0}, s{sT0}, 16
        s_max_i32 s{sT0}, s{sT0}, 0
        s_lshl_b32 s{sT0}, s{sT0}, {RSH}
        s_add_u32 s{sRH}, s{sT0}, {STO}
        """)
        for s in range(2):
            for r in range(4): a(f"v_mov_b32 v{c.XH[s]+r}, 0x3f803f80")
    pre_loop(c, q_setup)
    rec = [[f"buffer_load_dwordx4 {vr(c.REC+4*i,4)}, v{c.VRA}, {sr(SFL,4)}, s{sRM} offen offset:{(16*i)<<RSH} sc1"] for i in range(4)]
    rec.append([f"buffer_load_dwordx4 {vr(c.REC+16,4)}, v{c.VRA}, {sr(SFL,4)}, s{sRH} offen sc1"])
    CSR = lowtop; CA = 11; WA = 15
    assert CSR + 16 <= WREG and WA + 6 <= c.VTF
    c.tailx = [lines(f"""
        s_lshl_b32 s{sT3}, s{sMH}, 6
        s_add_u32 s{sT3}, s{sT3}, 16
        s_mul_i32 s{sT3}, s{sT3}, {RS}
        v_mul_u32_u24 v{T2}, {RS}, v{R}
        v_lshlrev_b32 v{T3}, 4, v{G}""")]
    for f in range(4):
        c.tailx.append(lines(f"""
        s_lshl_b32 s{sT0}, s{sNT+f}, 6
        s_add_u32 s{sT0}, s{sT0}, {L_CS}
        v_add_u32 v{CA+f}, s{sT0}, v{T3}
        s_mul_i32 s{sT0}, s{sNT+f}, 52
        s_lshr_b32 s{sT0}, s{sT0}, 8
        s_mul_i32 s{sT2}, s{sT0}, 5
        s_sub_u32 s{sT2}, s{sNT+f}, s{sT2}
        s_lshl_b32 s{sT2}, s{sT2}, 2
        s_mul_i32 s{sT0}, s{sT0}, 192
        v_add_u32 v{T0}, s{sT2}, v{G}"""))
        c.tailx.append(lines(f"""
        v_mul_u32_u24 v{T1}, 52, v{T0}
        v_lshrrev_b32 v{T1}, 8, v{T1}
        v_add_u32 v{T0}, v{T0}, v{T1}"""))
        c.tailx.append(lines(f"v_lshl_add_u32 v{T0}, v{T0}, 3, v{T2}") + ([f"v_add_u32 v{WA+4+f}, s{sT0}, v{T0}"] if f < 2 else []) +
                       lines(f"s_add_u32 s{sT0}, s{sT0}, s{sT3}\nv_add_u32 v{WA+f}, s{sT0}, v{T0}"))
    main_loop(a, c, S, "q", rec)
    a(f"s_not_b64 exec, {sr(sMSK,2)}")
    for f in range(2): a(f"ds_write_b128 v{CA+f}, {vr(c.acch[f],4)}")
    a("s_mov_b64 exec, -1")
    a(f"s_waitcnt vmcnt({c.yrec})")
    poll(a, sum(rec, []), [c.REC+4*i+2 for i in range(5)], True)
    S(55)
    a("s_waitcnt lgkmcnt(0)\ns_barrier")
    S(56)
    for f in range(4): a(f"ds_read_b128 {vr(CSR+4*f,4)}, v{CA+f}")
    rest = [p for p in (list(range(25)) + LA_ if qimg else LA_ + list(range(25))) if p not in c.early]
    rg = [wfrag(p) for p in rest]
    I = Inter(a, [], 1000)
    if qimg: I = Inter(a, rg, qimg); rg = None
    TP = c.VPS
    for f in range(4):
        I(f"s_waitcnt lgkmcnt({3-f if f == 0 else 15})" if f == 0 else "s_nop 0")
        if f == 1: I("s_waitcnt lgkmcnt(5)")
        tl = [(c.acc[f][i], WA+f, i*16*RS, c.REC+4*i) for i in range(4)]
        if f < 2: tl.append((c.acch[f], WA+4+f, 0, c.REC+16))
        for (ac, ad, off, st) in tl:
            I(f"""
            v_pk_mul_f32 {vr(TP,2)}, {vr(CSR+4*f,2)}, {vr(st,2)} op_sel:[0,1] op_sel_hi:[1,1]
            v_pk_mul_f32 {vr(TP+2,2)}, {vr(CSR+4*f+2,2)}, {vr(st,2)} op_sel:[0,1] op_sel_hi:[1,1]
            v_pk_fma_f32 {vr(ac,2)}, {vr(ac,2)}, {vr(st,2)}, {vr(TP,2)} op_sel:[0,0,0] op_sel_hi:[1,0,1]
            v_pk_fma_f32 {vr(ac+2,2)}, {vr(ac+2,2)}, {vr(st,2)}, {vr(TP+2,2)} op_sel:[0,0,0] op_sel_hi:[1,0,1]
            v_cvt_pk_bf16_f32 v{ac}, v{ac}, v{ac+1}
            v_cvt_pk_bf16_f32 v{ac+1}, v{ac+2}, v{ac+3}
            ds_write_b64 v{ad}, {vr(ac,2)} offset:{off}
            """)
    S(57)
    al = Alloc(11)
    AB = al(); OV = al(); OV1 = al(); L31 = al()
    MX = al(); SM_ = al()
    Q = al(12, 2); KB = [al(10, 2) for _ in range(5)]
    L = al(8, 2); PL = al(8); PH = al(8); O = al(20, 2); TPa = al(4)
    assert al.n <= WREG, al.n
    I(f"""
    s_and_b32 s{sT0}, s{sW}, 1
    s_lshr_b32 s{sT3}, s{sW}, 1
    s_lshl_b32 s{sT2}, s{sT3}, 5
    s_add_u32 s{sT2}, s{sT2}, 2
    v_and_b32 v{L31}, 31, v{LANE}
    v_add_u32 v{T0}, s{sT2}, v{L31}
    v_mul_u32_u24 v{T0}, {RS}, v{T0}
    v_lshrrev_b32 v{T1}, 5, v{LANE}
    v_mul_u32_u24 v{T2}, 48, v{T1}
    s_mul_i32 s{sT2}, s{sT0}, 96
    v_add3_u32 v{AB}, v{T0}, v{T2}, s{sT2}
    s_lshl_b32 s{sT2}, s{sCB}, 1
    s_add_u32 s{sT2}, s{sT2}, s{sT0}
    s_mul_i32 s{sT2}, s{sT2}, 5
    v_lshl_add_u32 v{T1}, v{T1}, 1, s{sT2}
    v_bfe_u32 v{T0}, v{LANE}, 4, 1
    v_lshlrev_b32 v{T0}, 10, v{T0}
    v_lshl_add_u32 v{T0}, v{R}, 4, v{T0}
    v_lshrrev_b32 v{T2}, 2, v{T1}
    v_lshl_add_u32 v{T2}, v{T2}, 12, v{T0}
    v_and_b32 v{T3}, 3, v{T1}
    v_lshl_add_u32 v{OV}, v{T3}, 8, v{T2}
    v_add_u32 v{T1}, 1, v{T1}
    v_lshrrev_b32 v{T2}, 2, v{T1}
    v_lshl_add_u32 v{T2}, v{T2}, 12, v{T0}
    v_and_b32 v{T3}, 3, v{T1}
    v_lshl_add_u32 v{OV1}, v{T3}, 8, v{T2}
    s_lshl_b32 s{sKX}, s{sRB}, 1
    s_add_u32 s{sKX}, s{sKX}, s{sMH}
    s_mul_i32 s{sKX}, s{sKX}, {74*4096}
    s_and_b32 s{sT1}, s{sT3}, 1
    s_lshl_b32 s{sT1}, s{sT1}, 11
    s_add_u32 s{sKX}, s{sKX}, s{sT1}
    s_add_u32 s{sT2}, s{sT2}, 4
    s_lshr_b32 s{sKW}, s{sT2}, 2
    s_lshl_b32 s{sKW}, s{sKW}, 12
    s_and_b32 s{sT2}, s{sT2}, 3
    s_lshl_b32 s{sT2}, s{sT2}, 8
    s_add_u32 s{sKW}, s{sKW}, s{sT2}
    s_add_u32 s{sKW}, s{sKW}, s{sKX}
    """)
    a("s_waitcnt lgkmcnt(0)\ns_barrier")
    OV2 = T0
    S(5)
    def rd(dst, off):
        return f"ds_read_b128 {vr(dst,4)}, v{AB} offset:{off}\nds_read_b128 {vr(dst+4,4)}, v{AB} offset:{off+16}\nds_read_b64 {vr(dst+8,2)}, v{AB} offset:{off+32}"
    offs = [(14-2*w)*RS+192 for w in range(8)] + [(14-2*w)*RS+384 for w in range(8)]
    issued = 0
    def issue(n):
        nonlocal issued
        for _ in range(n):
            if issued < 16:
                I(rd(KB[issued % 5], offs[issued])); issued += 1
    def need(idx): I(f"s_waitcnt lgkmcnt({3*(issued-1-idx)})")
    I(rd(Q, 14*RS)); issue(4)
    if rg is not None: I.g = list(rg)
    I.e = qevery
    for w in range(8): I(f"v_mov_b32 v{L+w}, 0")
    for d in range(20): I(f"v_mov_b32 v{O+d}, 0")
    for wp in range(4):
        w0, w1 = 2*wp, 2*wp+1
        need(w1)
        for d in range(10):
            for w in (w0, w1): I(f"v_dot2c_f32_bf16 v{L+w}, v{Q+d}, v{KB[w%5]+d}")
        issue(3 if wp == 0 else 2)
    lm = a.uid("Lm")
    a(f"s_or_b32 s{sT2}, s{sRB}, s{sT3}\ns_cmp_lg_u32 s{sT2}, 0\ns_cbranch_scc1 {lm}")
    a(f"v_mov_b32 v{TPa}, {f32(-1e9)}")
    for w in range(1, 8):
        a(f"v_cmp_le_u32 vcc, {2*w}, v{L31}\ns_nop 1\nv_cndmask_b32 v{L+w}, v{TPa}, v{L+w}, vcc")
    a.label(lm)
    cexp = (20 ** -0.5) * math.log2(math.e)
    I(f"""
    v_max3_f32 v{MX}, v{L}, v{L+1}, v{L+2}
    v_max3_f32 v{SM_}, v{L+3}, v{L+4}, v{L+5}
    v_max3_f32 v{MX}, v{MX}, v{L+6}, v{L+7}
    v_max_f32 v{MX}, v{MX}, v{SM_}
    """)
    for w in range(8): I(f"v_sub_f32 v{L+w}, v{L+w}, v{MX}")
    for w in range(8): I(f"v_mul_f32 v{L+w}, {f32(cexp)}, v{L+w}")
    for w in range(8): I(f"v_exp_f32 v{L+w}, v{L+w}")
    I(f"""
    v_add_f32 v{TPa}, v{L}, v{L+1}
    v_add_f32 v{TPa+1}, v{L+2}, v{L+3}
    v_add_f32 v{TPa+2}, v{L+4}, v{L+5}
    v_add_f32 v{TPa+3}, v{L+6}, v{L+7}
    v_add_f32 v{TPa}, v{TPa}, v{TPa+1}
    v_add_f32 v{TPa+2}, v{TPa+2}, v{TPa+3}
    v_add_f32 v{SM_}, v{TPa}, v{TPa+2}
    v_rcp_f32 v{SM_}, v{SM_}
    s_nop 0
    """)
    for w in range(8): I(f"v_mul_f32 v{L+w}, v{L+w}, v{SM_}")
    for w in range(8): I(f"v_cvt_pk_bf16_f32 v{PL+w}, v{L+w}, 0\nv_cvt_pk_bf16_f32 v{PH+w}, 0, v{L+w}")
    for w in range(8):
        need(8+w)
        for d in range(10):
            I(f"v_dot2c_f32_bf16 v{O+2*d}, v{KB[(8+w)%5]+d}, v{PL+w}\nv_dot2c_f32_bf16 v{O+2*d+1}, v{KB[(8+w)%5]+d}, v{PH+w}")
        issue(1)
    S(58)
    for u in (0,1,2,3,8,9,4,5,6,7): a(f"v_cvt_pk_bf16_f32 v{Q+u}, v{O+2*u}, v{O+2*u+1}")
    a(f"""
    buffer_store_dwordx4 {vr(Q,4)}, v{OV}, {sr(SHO,4)}, s{sKX} offen sc1
    v_permlane32_swap_b32 v{Q+8}, v{Q+10}
    v_permlane32_swap_b32 v{Q+9}, v{Q+11}
    buffer_store_dwordx4 {vr(Q+4,4)}, v{OV1}, {sr(SHO,4)}, s{sKX} offen sc1
    s_mov_b32 exec_hi, 0
    buffer_store_dwordx4 {vr(Q+8,4)}, v{OV2}, {sr(SHO,4)}, s{sKW} offen sc1
    s_mov_b64 exec, -1
    """)
    S(6)
    if NB: a("s_barrier")
    qleft = I.g + [wfrag(p) for p in LB]
    sp = 'spoll' in EXP or 'nofld' in EXP
    if not sp: a(FLD)
    emit(qleft[:NB])
    publish(NB+(not sp))
    def tail_loads(gr):
        if LP is None: emit(gr); return
        k = max(len(gr)-LP, 0)
        emit(gr[:k]); a(FLD); emit(gr[k:]); a(f"s_waitcnt vmcnt({len(gr)-k})")
    tail_loads(qleft[NB:])
    if not sp: a(f"s_waitcnt vmcnt({len(qleft)})")
    a("s_branch Lphase2")
    a.label("Lffn")
    if 'tl' in EXP:
        for q in range(4): a(f"v_mov_b32 v{SIDE+4+q}, 0")
        srd(a, SPF, P_WO, 640*1280); a(f"s_mov_b32 s{sTB}, {L_TST}")
    side_loads(a, stat=False, issue='tl' not in EXP)
    if dpre: emit([duty(a, dpre, False)])
    a(f"s_and_b32 s{sT0}, s2, 1\ns_bfe_u32 s{sT1}, s2, 0x20001\ns_lshr_b32 s{sT2}, s2, 3")
    if QD < 10: a(f"s_cmp_eq_u32 s{sW}, 1\ns_cselect_b32 s{sPG}, {QD*64*3840}, s{sPG}")
    c = Cfg()
    c.nM, c.nF, c.nh, c.wrow, c.wrowb, c.stg, c.xsz, c.nxm, c.duty = 5, 3, 0, 384, 3456, 49152, 20480, 4, True
    al = alloc_common(c)
    B1 = al(8, 2)
    c.acc = [[al(4,4) for i in range(5)] for f in range(3)]
    lowtop = al.n
    eal = al
    al = Alloc(WREG)
    c.X = [[al(4,4) for i in range(5)] for s in range(2)]
    c.W = [[al(4,4) for f in range(3)] for s in range(2)]
    assert al.n <= 208
    c.esplit = ef; c.early = (list(range(15, 25)) + LA_ + [13, 14])[:sum(ef)]
    a(f"""
    s_sub_u32 s{sT2}, s{sT2}, 16
    s_lshl_b32 s{sT1}, s{sT1}, 4
    s_add_u32 s{sT1}, s{sT1}, s{sT2}
    s_cmp_ge_u32 s{sT1}, 63
    s_cbranch_scc1 Lidle
    s_mul_i32 s{sCB}, s{sT1}, 37
    s_lshr_b32 s{sCB}, s{sCB}, 8
    s_sub_u32 s{sT3}, s{sCB}, s{sT0}
    s_mul_i32 s{sT3}, s{sT3}, 7
    s_sub_u32 s{sRB}, s{sT1}, s{sT3}
    s_mul_i32 s{sT3}, s{sRB}, {FROWS}
    s_mul_i32 s{sWO}, s{sCB}, 384
    """)
    c.nW = 3; c.ffn = True; c.dmask = DMASK
    dma_setup(c, 24, 2731, lambda: a(f"v_and_b32 v{T2}, 6, v{T1}\nv_xor_b32 v{T0}, v{T0}, v{T2}\nv_lshlrev_b32 v{T0}, 4, v{T0}"))
    srd(a, SW, P_W1, 640*3456)
    srd(a, SWT, P_B1, 3456)
    a(f"s_lshl_b32 s{sT0}, s{sRB}, 7\ns_lshl_b32 s{sT1}, s{sCB}, 3\ns_add_u32 s{sHF}, s{sT0}, s{sT1}")
    RHO = c.hb[0]
    def f_setup():
        a(f"""
        s_lshr_b32 s{sMH}, s{sW}, 2
        s_bfe_u32 s{sT0}, s{sW}, 0x10001
        s_and_b32 s{sT1}, s{sW}, 1
        s_mul_i32 s{sT0}, s{sT0}, 6
        s_lshl_b32 s{sT2}, s{sT1}, 2
        s_add_u32 s{sNT}, s{sT0}, s{sT2}
        s_add_u32 s{sNT+1}, s{sNT}, 1
        s_add_u32 s{sNT+2}, s{sT0}, s{sT1}
        s_add_u32 s{sNT+2}, s{sNT+2}, 2
        s_cmp_eq_u32 s{sMH}, 0
        s_cselect_b32 s{sMSK}, -1, 0x7fff7fff
        s_cselect_b32 s{sMSK+1}, -1, 0x7fff7fff
        v_lshrrev_b32 v{T0}, 1, v{R}
        v_xor_b32 v{T0}, v{T0}, v{G}
        v_lshlrev_b32 v{T0}, 4, v{T0}
        v_lshl_add_u32 v{T0}, v{R}, 7, v{T0}
        s_mul_i32 s{sT0}, s{sMH}, {5*2048}
        s_add_u32 s{sT0}, s{sT0}, {c.stg}
        v_add_u32 v{c.xb[0]}, s{sT0}, v{T0}
        v_xor_b32 v{c.xb[1]}, 64, v{c.xb[0]}
        """)
        rho_local(a, T0, T1)
        a(f"""
        v_bfe_u32 v{T2}, v{T0}, 1, 2
        v_mul_u32_u24 v{T0}, 384, v{T0}
        v_and_b32 v{T1}, 3, v{LANE}
        v_lshl_add_u32 v{T0}, v{T1}, 3, v{T0}
        v_add_u32 v{T0}, {c.xsz+c.stg}, v{T0}
        """)
        for f in range(3):
            a(f"v_xor_b32 v{T1}, s{sNT+f}, v{T2}\nv_lshl_add_u32 v{c.wb[f]}, v{T1}, 5, v{T0}")
        a(f"""
        s_mul_i32 s{sT0}, s{sRB}, {FROWS}
        s_mul_i32 s{sT1}, s{sMH}, 80
        s_add_u32 s{sT0}, s{sT0}, s{sT1}
        v_add_u32 v{RHO}, s{sT0}, v{R}
        v_lshlrev_b32 v{T0}, {RSH}, v{RHO}
        v_add_u32 v{c.VRA}, {STO}, v{T0}
        """)
        for s in range(2):
            for r in range(4): a(f"v_mov_b32 v{c.X[s][4]+r}, 0x3f803f80")
        a(f"v_lshlrev_b32 v{T0}, 3, v{G}\ns_mul_i32 s{sT2}, s{sCB}, 384")
        for f in range(3):
            a(f"s_lshl_b32 s{sT1}, s{sNT+f}, 5\ns_add_u32 s{sT1}, s{sT1}, s{sT2}")
            a(f"buffer_load_dwordx2 {vr(B1+2*f,2)}, v{T0}, {sr(SWT,4)}, s{sT1} offen")
    pre_loop(c, f_setup)
    rec = [[f"v_add_u32 v{T3}, {(16*i)<<RSH}, v{c.VRA}", f"v_min_u32 v{T3}, {STO+(2047<<RSH)}, v{T3}",
            f"buffer_load_dwordx4 {vr(c.REC+4*i,4)}, v{T3}, {sr(SFL,4)}, 0 offen sc1"] for i in range(5)]
    CA = 17
    c.tailx = [[f"v_lshlrev_b32 v{T3}, 4, v{G}"]] + [lines(f"s_lshl_b32 s{sT0}, s{sNT+f}, 6\ns_add_u32 s{sT0}, s{sT0}, {L_CS}\nv_add_u32 v{CA+f}, s{sT0}, v{T3}") for f in range(3)]
    main_loop(a, c, S, "f", rec)
    a(f"s_waitcnt vmcnt({c.yrec})")
    poll(a, sum(rec, []), [c.REC+4*i+2 for i in range(5)], True)
    lc = a.uid("Lc")
    a(f"s_cmp_eq_u32 s{sMH}, 0\ns_cbranch_scc1 {lc}\ns_not_b64 exec, {sr(sMSK,2)}")
    for f in range(3): a(f"ds_write_b128 v{CA+f}, {vr(c.acc[f][4],4)}")
    a("s_mov_b64 exec, -1\ns_waitcnt lgkmcnt(0)")
    a.label(lc)
    a("s_barrier")
    CC = c.VPS; VA = 11
    CSR = eal(12, 2); TT = [eal(2,2) for _ in range(4)] + [12, B1+6]
    assert eal.n <= WREG, eal.n
    for f in range(3): a(f"ds_read_b128 {vr(CSR+4*f,4)}, v{CA+f}")
    BFp = [c.REC+4*i+2 for i in range(5)] + [B1+4]
    OUTP = [B1, 16]; SG = 20
    assert RHO == 15
    rest = [p for p in list(range(25)) + LA_ + LB if p not in c.early]
    rg = [wfrag(p) for p in rest]
    fn1 = min(fn1, len(rg)-(1 if 35 in LB else 0))
    F1, F2 = rg[:fn1], rg[fn1:]
    I = Inter(a, [], 1000)
    if fevery:
        I = Inter(a, F1, fevery); F1 = []
    half(F1, True)
    c0 = -2*math.sqrt(2/math.pi)*math.log2(math.e); c1 = c0*0.044715
    for j in range(5): I(f"v_lshlrev_b32 v{BFp[j]}, 16, v{B1+j}\nv_and_b32 v{BFp[j]+1}, 0xffff0000, v{B1+j}")
    I(f"v_lshlrev_b32 v{B1+4}, 16, v{B1+5}\nv_and_b32 v{B1+5}, 0xffff0000, v{B1+5}")
    I(f"v_mov_b32 v{CC}, {f32(c0)}\nv_mov_b32 v{CC+1}, {f32(c1)}\nv_mov_b32 v{CC+2}, 1.0")
    I(f"""
    v_and_b32 v{T2}, 15, v{RHO}
    v_lshlrev_b32 v{T2}, 4, v{T2}
    v_lshl_add_u32 v{T1}, v{G}, 8, v{T2}
    v_and_b32 v{T3}, 1, v{G}
    v_lshl_add_u32 v14, v{T3}, 8, v{T2}
    v_lshrrev_b32 v{T0}, 4, v{RHO}
    v_lshrrev_b32 v{T3}, 5, v{LANE}
    v_add_u32 v{RHO}, v{T0}, v{T3}
    s_mul_i32 s{sT2}, s{sCB}, 6
    s_add_u32 s{sT2}, s{sT2}, 20
    s_lshr_b32 s{sT0}, s{sNT}, 1
    s_add_u32 s{sT0}, s{sT0}, s{sT2}
    s_lshl_b32 s{sKX}, s{sT0}, 12
    s_lshr_b32 s{sT0}, s{sNT+2}, 1
    s_add_u32 s{sT0}, s{sT0}, s{sT2}
    s_lshl_b32 s{sKW}, s{sT0}, 12
    s_and_b32 s{sT0}, s{sNT+2}, 1
    s_lshl_b32 s{sT0}, s{sT0}, 9
    s_add_u32 s{sKW}, s{sKW}, s{sT0}
    s_mov_b32 s{sT3}, {74*4096}
    s_waitcnt lgkmcnt(0)
    """)
    a(f"s_cmp_eq_u32 s{sMH}, 0\ns_cselect_b32 s{sMSK}, -1, 0x00ff00ff\ns_mov_b32 s{sMSK+1}, s{sMSK}")
    def gelu_pair(h, cs, b, st, t, dst):
        return [f"v_pk_fma_f32 {vr(t,2)}, {vr(cs,2)}, {vr(st,2)}, {vr(b,2)} op_sel:[0,1,0] op_sel_hi:[1,1,1]",
                f"v_pk_fma_f32 {vr(h,2)}, {vr(h,2)}, {vr(st,2)}, {vr(t,2)} op_sel:[0,0,0] op_sel_hi:[1,0,1]",
                f"v_pk_mul_f32 {vr(t,2)}, {vr(h,2)}, {vr(h,2)}",
                f"v_pk_fma_f32 {vr(t,2)}, {vr(t,2)}, {vr(CC,2)}, {vr(CC,2)} op_sel:[0,1,0] op_sel_hi:[1,1,0]",
                f"v_pk_mul_f32 {vr(t,2)}, {vr(t,2)}, {vr(h,2)}",
                f"v_exp_f32 v{t}, v{t}",
                f"v_exp_f32 v{t+1}, v{t+1}",
                f"v_pk_add_f32 {vr(t,2)}, {vr(t,2)}, {vr(CC+2,2)} op_sel_hi:[1,0]",
                f"v_rcp_f32 v{t}, v{t}",
                f"v_rcp_f32 v{t+1}, v{t+1}",
                f"v_pk_mul_f32 {vr(t,2)}, {vr(t,2)}, {vr(h,2)}",
                f"v_cvt_pk_bf16_f32 v{dst}, v{t}, v{t+1}"]
    def blkaddr(dst, tile, low):
        I(f"""
        v_lshrrev_b32 v{T2}, 2, v{tile}
        v_mul_u32_u24 v{T2}, s{sT3}, v{T2}
        v_and_b32 v{T3}, 3, v{tile}
        v_lshl_add_u32 v{T2}, v{T3}, 10, v{T2}
        v_add_u32 v{dst}, v{T2}, v{low}
        """)
    for i in range(5):
        o = OUTP[i & 1]
        streams = [gelu_pair(c.acc[f][i]+2*hp, CSR+4*f+2*hp, BFp[2*f+hp], c.REC+4*i, TT[2*f+hp],
                             (o+2*f+hp) if f < 2 else (SG+2*(i&1)+hp)) for f in range(3) for hp in range(2)]
        for k in range(len(streams[0])):
            for s in streams: I(s[k])
        blkaddr(VA, T0, T1)
        I(f"v_add_u32 v{T0}, 1, v{T0}")
        if i == 4: a(f"s_mov_b64 exec, {sr(sMSK,2)}")
        a(f"buffer_store_dwordx4 {vr(o,4)}, v{VA}, {sr(SHO,4)}, s{sKX} offen sc1")
        if i == 4: a("s_mov_b64 exec, -1")
        if i & 1 or i == 4:
            a(f"v_permlane32_swap_b32 v{SG}, v{SG+2}\nv_permlane32_swap_b32 v{SG+1}, v{SG+3}")
            blkaddr(VA, RHO, 14)
            I(f"v_add_u32 v{RHO}, 2, v{RHO}")
            if i == 4: a(f"s_mov_b32 exec_lo, s{sMSK}\ns_mov_b32 exec_hi, 0")
            a(f"buffer_store_dwordx4 {vr(SG,4)}, v{VA}, {sr(SHO,4)}, s{sKW} offen sc1")
            if i == 4: a("s_mov_b64 exec, -1")
    S(6)
    F2 = I.g + F2
    half(F1, False)
    if not sp: a(FLD)
    nb = 0
    emit(F2[:nb])
    publish(nb+(not sp), len(F1))
    tail_loads(F2[nb:])
    if not sp: a(f"s_waitcnt vmcnt({len(F2)})")
    a("s_branch Lphase2")
    a.label("Lidle")
    late_srds()
    emit([duty(a, 6, False)])
    if 'tl' in EXP:
        lt_ = a.uid("Ltl")
        a(f"s_cmp_lt_u32 s{sW}, 2\ns_cbranch_scc1 {lt_}")
        t_issue(a)
        a.label(lt_)
    p2_setup(a, 11)
    a("s_waitcnt vmcnt(0)")
    t_work(a)
    a(f"v_mov_b32 v14, 0\nv_mov_b32 v15, 0\ns_waitcnt vmcnt(0)\ns_barrier")
    nonce_get(a, 14, 12)
    poll(a, [f"buffer_load_dwordx2 v[14:15], v11, {sr(SFL,4)}, 0 offen sc1"], [14], False)
    for l in p2_ldsbases(): a(l)
    emit([wfrag(p) for p in c.early + rest])
    a(f"v_mov_b32 v{VFD}, 0\nv_mov_b32 v{VFD+1}, 0")
    a.label("Lphase2")
    al = Alloc(12)
    al(2, 2); VLA = al(); VLB = al()
    acc = [[al(4,4) for m in range(4)] for n in range(5)]
    BUF = [al(16, 4), al(16, 4), WREG]
    XR = al(6, 2)
    B2 = [al(2, 2), WREG+16, WREG+18]
    assert al.n <= WREG, al.n
    S(8)
    if 'spoll' in EXP:
        l0, l1 = a.uid("Lsp"), a.uid("Lsp")
        a(f"v_readlane_b32 s{sPFO}, v{VF}, 0\nv_readlane_b32 s{sPFS}, v{VF}, 2\ns_mov_b32 s{sSP}, 0\ns_nop 3")
        a.label(l0)
        a(f"""
        s_buffer_load_dwordx4 s[12:15], {sr(SFL,4)}, s{sPFO} glc
        s_buffer_load_dwordx4 {sr(STMP,4)}, {sr(SFL,4)}, s{sPFS} glc
        s_add_u32 s{sSP}, s{sSP}, 1
        s_cmp_gt_u32 s{sSP}, 400000
        s_cbranch_scc1 {l1}
        s_waitcnt lgkmcnt(0)
        s_cmp_lg_u64 s[12:13], {sr(sNON,2)}
        s_cbranch_scc1 {l0}
        s_cmp_lg_u64 s[14:15], {sr(sNON,2)}
        s_cbranch_scc1 {l0}
        s_cmp_lg_u64 {sr(STMP,2)}, {sr(sNON,2)}
        s_cbranch_scc1 {l0}
        s_cmp_lg_u64 {sr(STMP+2,2)}, {sr(sNON,2)}
        s_cbranch_scc1 {l0}
        """)
        a.label(l1)
        a("s_waitcnt lgkmcnt(0)")
    elif 'nopoll' not in EXP: poll(a, [FLD], [VFD], 'nofld' not in EXP or LP is not None, SLEEP)
    S(9)
    RS_ = [WR0+20*t for t in range(5)]
    abuf = {u: BUF[u % 3] for u in range(9)}; abuf[9] = RS_[0]
    wloc = {u: RS_[u] for u in range(5)}
    wloc.update({5: RS_[0], 6: RS_[1], 7: RS_[2], 8: RS_[3], 9: RS_[4]})
    def aload(t):
        g = [[f"buffer_load_dwordx4 {vr(abuf[t]+4*m,4)}, v{VL}, {sr(SPF,4)}, s{sT3} offen offset:{1024*m} sc1"] for m in range(4)]
        g[0] = [f"s_lshl_b32 s{sT3}, s{sK+t}, 12"] + g[0]
        return g
    ops = []
    for t in (0, 1, 2): emit(aload(t)); ops += [t]*4
    SOX, SOB = [sKX, sKW, sDELTA], [sSLOT, sW1K, sMH]
    setup = [lines(f"v_add_u32 v{VLA}, s{sFILL}, v{VL}\nv_add_u32 v{VLB}, s{sFW}, v{VL}\ns_mul_i32 s{sT0}, s{sC2}, 160")]
    for j in range(3):
        setup += chunks(lines(f"""
        s_add_u32 s{sT1}, s{sW}, {8*j}
        s_mul_i32 s{sT2}, s{sT1}, 52
        s_lshr_b32 s{sT2}, s{sT2}, 8
        s_mul_i32 s{sT3}, s{sT2}, 5
        s_sub_u32 s{sT1}, s{sT1}, s{sT3}
        s_lshl_b32 s{sT1}, s{sT1}, 5
        s_mul_i32 s{sT2}, s{sT2}, 20480
        s_add_u32 s{SOX[j]}, s{sT2}, s{sT1}
        s_add_u32 s{SOB[j]}, s{sT0}, s{sT1}
        """), 3)
    for d, p, sz in ((STMP, P_B2, 1280), (SW, P_OUT, XB)):
        setup += [[f"s_mov_b32 s{d}, s{p}", f"s_mov_b32 s{d+1}, s{p+1}"], [f"s_mov_b32 s{d+2}, {sz}", f"s_mov_b32 s{d+3}, 0x00020000"]]
    setup.append([f"v_lshlrev_b32 v{T1}, 3, v{G}"])
    def pw(n, m):
        q = m*5+n
        ad, off = (VLA, q*1024) if q < 8 else (VLB, (q-8)*1024)
        return f"ds_write_b128 v{ad}, {vr(acc[n][m],4)} offset:{off}"
    def sonly(groups):
        lab = a.uid("Lso")
        return [f"s_cmp_ge_u32 s{sW}, 2", f"s_cbranch_scc1 {lab}"] + sum(groups, []) + [lab + ":"]
    tl = [(n, m) for n in range(5) for m in range(4)]
    for t in (0, 1, 2, 3, 4, 5, 6, 7, 9, 8):
        if t == 9:
            a(f"s_cmp_ge_u32 s{sW}, 2\ns_cbranch_scc1 Lp2skip")
            a(f"s_waitcnt vmcnt(6)")
        else:
            if t == 8: a.label("Lp2skip")
            younger = len(ops) - 1 - max(i for i, o in enumerate(ops) if o == t)
            a(f"s_waitcnt vmcnt({younger})" + (" lgkmcnt(0)" if t == 5 else ""))
        M = [mfma(acc[n][m], wloc[t]+4*n, abuf[t]+4*m, t == 0) for (n, m) in tl]
        items = []
        if t == 0: items += even(setup, 20, 0)
        vm = []
        if 1 <= t <= 6: vm += [(t+2, g) for g in aload(t+2)]
        if 1 <= t <= 4 and t+4 >= 9-nlate: vm += [(t+4, wfrag((t+4)*5+n, wloc[t+4]+4*n)) for n in range(5)]
        for k, (tag_, g) in enumerate(vm):
            items.append(((k*18)//len(vm), g)); ops.append(tag_)
        if 1 <= t <= 4 and t+4 < 9-nlate:
            for n in range(5):
                phi = (t+4)*5+n
                ad, off = (VLA, (phi-25)*1024) if phi < 33 else (VLB, (phi-33)*1024)
                items.append((2+4*n, [f"ds_read_b128 {vr(wloc[t+4]+4*n,4)}, v{ad} offset:{off}"]))
        if t == 5: items.append((18, sonly([wfrag(45+n, wloc[9]+4*n) for n in range(5)])))
        if t == 6: items.append((18, sonly(aload(9))))
        if t == 7:
            for j in range(3): items.append((1+6*j, [f"buffer_load_dwordx2 {vr(XR+2*j,2)}, v{VXO}, {sr(SX,4)}, s{SOX[j]} offen"])); ops.append('x')
            for j in range(3): items.append((4+6*j, [f"buffer_load_dwordx2 {vr(B2[j],2)}, v{T1}, {sr(STMP,4)}, s{SOB[j]} offen"])); ops.append('b')
        if t == 8: items += [(k, [pw(*tl[k-8])]) for k in range(8, 20)]
        for l in spread(M, items): a(l)
        if t == 8:
            a("s_nop 0")
            for k in range(12, 20): a(pw(*tl[k]))
        if t != 8 and 'p2st' in EXP: S(40+t)
    a(f"""
    s_lshl_b32 s{sT0}, s{sW}, 10
    v_add_u32 v{T0}, s{sT0}, v{VL}
    v_add_u32 v{T2}, {L_A}, v{T0}
    v_add_u32 v{T3}, {4*12288}, v{T0}
    """)
    S(52)
    a("s_waitcnt lgkmcnt(0)\ns_barrier")
    S(53)
    P = [[acc[0][0] + (j*8+s)*4 for s in range(8)] for j in range(3)]
    assert P[2][7]+4 <= XR
    def rdtile(j):
        for s in range(8):
            if j == 0: ad, off = T2, s*8192
            else: ad, off = (T0 if s < 4 else T3), (s%4)*12288 + (j-1)*8192
            a(f"ds_read_b128 {vr(P[j][s],4)}, v{ad} offset:{off}")
    L2E = f32(-math.log2(math.e))
    def fin(j):
        o = []
        p = P[j]
        Sx, Y, Z = p[0], p[2], p[3]
        for h in (0, 2):
            for k in (0, 2, 4, 6): o.append(f"v_pk_add_f32 {vr(p[k]+h,2)}, {vr(p[k]+h,2)}, {vr(p[k+1]+h,2)}")
        def unp(x, q):
            return lines(f"v_lshlrev_b32 v{x}, 16, v{q}\nv_and_b32 v{x+1}, 0xffff0000, v{q}\nv_lshlrev_b32 v{x+2}, 16, v{q+1}\nv_and_b32 v{x+3}, 0xffff0000, v{q+1}")
        o += unp(Z, B2[j])
        for h in (0, 2):
            o.append(f"v_pk_add_f32 {vr(p[2]+h,2)}, {vr(p[2]+h,2)}, {vr(p[4]+h,2)}")
            o.append(f"v_pk_add_f32 {vr(p[6]+h,2)}, {vr(p[6]+h,2)}, {vr(Z+h,2)}")
        for h in (0, 2): o.append(f"v_pk_add_f32 {vr(Y+h,2)}, {vr(Y+h,2)}, {vr(p[6]+h,2)}")
        for r in range(4): o.append(f"v_mul_f32 v{Z+r}, {L2E}, v{Y+r}")
        for r in range(4): o.append(f"v_exp_f32 v{Z+r}, v{Z+r}")
        for r in range(4): o.append(f"v_add_f32 v{Z+r}, 1.0, v{Z+r}")
        for r in range(4): o.append(f"v_rcp_f32 v{Z+r}, v{Z+r}")
        for h in (0, 2): o.append(f"v_pk_mul_f32 {vr(Y+h,2)}, {vr(Y+h,2)}, {vr(Sx+h,2)}")
        o += unp(p[4], XR+2*j)
        for r in range(4): o.append(f"v_fma_f32 v{Y+r}, v{Y+r}, v{Z+r}, v{p[4]+r}")
        o += [f"v_cvt_pk_bf16_f32 v{Sx}, v{Y}, v{Y+1}", f"v_cvt_pk_bf16_f32 v{Sx+1}, v{Y+2}, v{Y+3}",
              f"buffer_store_dwordx2 {vr(Sx,2)}, v{VXO}, {sr(SW,4)}, s{SOX[j]} offen {OSF}"]
        return o
    rdtile(0); rdtile(1)
    l3 = a.uid("L3")
    a(f"s_cmp_ge_u32 s{sW}, 4\ns_cbranch_scc1 {l3}")
    rdtile(2)
    a("s_waitcnt vmcnt(0) lgkmcnt(8)")
    for x, y in zip(fin(0), fin(1)): a(x); a(y)
    a("s_waitcnt lgkmcnt(0)")
    for x in fin(2): a(x)
    a("s_branch Lfin")
    a.label(l3)
    a("s_waitcnt vmcnt(0) lgkmcnt(0)")
    for x, y in zip(fin(0), fin(1)): a(x); a(y)
    a.label("Lfin")
    S.finish(54)
    a.label("Lend")
    a("s_endpgm")
    ref = open(f"cdna_kernels/{NAME}.s.ref").read().split("\n")
    hdr = [l for l in ref if l.startswith(";") and "@launch" not in l]
    out = "\n".join(hdr) + f"\n; @launch grid=(256,1,1) block=(512,1,1) lds={LDS_TOTAL}\n"
    out += '.amdgcn_target "amdgcn-amd-amdhsa--gfx950"\n' + khead(name) + a.text() + kd(name, 256, 102)
    return out

if __name__ == "__main__":
    path = sys.argv[1]
    kw = eval("dict(" + (sys.argv[2] if len(sys.argv) > 2 else "") + ")")
    open(path, "w").write(gen(**kw))
```

```python
from asmlib import *
import math, sys
NAME = "recurrent_scan__sliding_local_dilated__dense_activation_gelu__prompt"
XB = 2048*640*2
HO_SZ = 32*74*4096
WT_OFF, WT_SZ = 0xB00000, 8*74*5*1024
FLB = 0x400000
TFO, STO, HFB = FLB+0x1000, FLB+0x40000, FLB+0x20000
FL_SZ = FLB + 0x60000
RSH = 4; FSH = 0; TSH = 3
BIG = 0x7ff00000
RS = 592
L_TST, L_CS, L_A = 147456, 88064, 98304
LA_ = list(range(25, 33)); LB = [33, 34] + list(range(36, 45)) + [35]
WR0 = 156
VFD = 12
LDS_TOTAL = 163840
FROWS = 152

SX, SW, SHO, SPF, SWT, SFL, SDBG, STMP = 4, 8, 16, 20, 24, 28, 32, 36
sXA, sXB, sEM, sWO = 12, 13, 14, 15
P_X, P_WQ, P_WO, P_W1, P_B1, P_W2, P_B2, P_OUT, P_DBG, P_WS = 40, 42, 44, 48, 50, 52, 54, 56, 58, 60
(sW, sRB, sCB, sI, sKX, sKW, sTM, sFILL, sDELTA, sSLOT, sW1K, sT0, sT1, sT2, sT3, sMH) = range(62, 78)
sNT = 78; sNON = 82; sMSK = 84; sR2, sC2 = 50, 51; sK = 88; sSP = 98; sN2 = 99
sWM = 100
sFW, sWB = 3, 47
sTB = 42
sHF = 43
sPFO, sPFS, sPG = 46, 86, 87
sRM, sRH = 48, 49
sTS = [44, 45, 52, 53]
VF, LANE, G, R, T0, T1, T2, T3, VST, VL, VXO = 0, 1, 2, 3, 4, 5, 6, 7, 8, 9, 10
WREG = 136
SIDE = 232
RT = 5; SLI = 3; MAP2 = 81; ROTA = 2; EXP = set(); PFF = ""; DN = 2; DMASK = 0b101; DPRE = 2; SP = dict(tw=1, nonce=3, sl=3, sw=5, tf=5); TFL = "nt"; RECIT = 9

def mfma(d, a_, b_, c0=False): return f"v_mfma_f32_16x16x32_bf16 {vr(d,4)}, {vr(a_,4)}, {vr(b_,4)}, " + ("0" if c0 else vr(d,4))
def chunks(l, n): return [l[i:i+n] for i in range(0, len(l), n)]
def merge(groups, n): return [sum(g, []) for g in chunks(groups, n)]
def lines(t): return [l.strip() for l in t.strip("\n").split("\n") if l.strip()]
def srd(a, d, p, size, off=None):
    if off is None: a(f"s_mov_b32 s{d}, s{p}\ns_mov_b32 s{d+1}, s{p+1}")
    else: a(f"s_add_u32 s{d}, s{p}, {off}\ns_addc_u32 s{d+1}, s{p+1}, 0")
    a(f"s_mov_b32 s{d+2}, {size}\ns_mov_b32 s{d+3}, 0x00020000")

class St:
    def __init__(s, a, on): s.a, s.on = a, on
    def start(s):
        if s.on: s.a(f"s_memtime s[0:1]\nv_mov_b32 v{VST}, 0\ns_waitcnt lgkmcnt(0)\nv_writelane_b32 v{VST}, s0, 59\nv_writelane_b32 v{VST}, s94, 0\nv_writelane_b32 v{VST}, s96, 62")
    def __call__(s, i):
        if s.on: s.a(f"s_memtime s[0:1]\ns_waitcnt lgkmcnt(0)\nv_writelane_b32 v{VST}, s0, {i}")
    def dyn(s, base):
        if s.on and ((base == 30 and 'nobar' not in EXP) or 'lst' in EXP):
            s.a(f"s_memtime s[0:1]\ns_add_u32 m0, s{sI}, {base}\ns_waitcnt lgkmcnt(0)\nv_writelane_b32 v{VST}, s0, m0")
    def finish(s, i):
        if not s.on: return
        s.a(f"""
        s_waitcnt vmcnt(0)
        s_memtime s[0:1]
        s_waitcnt lgkmcnt(0)
        v_writelane_b32 v{VST}, s0, {i}
        s_memrealtime s[0:1]
        s_waitcnt lgkmcnt(0)
        v_writelane_b32 v{VST}, s0, 63
        s_lshl_b32 s3, s2, 3
        s_add_u32 s3, s3, s{sW}
        s_lshl_b32 s3, s3, 8
        s_add_u32 s3, s3, {STAMP_OFF}
        s_add_u32 s{STMP}, s{P_WS}, s3
        s_addc_u32 s{STMP+1}, s{P_WS+1}, 0
        s_mov_b32 s{STMP+2}, 256
        s_mov_b32 s{STMP+3}, 0x00020000
        v_lshlrev_b32 v{T0}, 2, v{LANE}
        buffer_store_dword v{VST}, v{T0}, {sr(STMP,4)}, 0 offen
        """)
class Cfg: inloop = False

def wld(c, u):
    ld = f"buffer_load_dwordx4 v{c.VW[u]}, {sr(SW,4)}, s{sKW} offen offset:{1024*u} lds"
    return [f"s_mov_b64 exec, {sr(sWM,2)}", ld, "s_mov_b64 exec, -1"] if u == 3 else [ld]
def dmaA(c, a):
    lab = a.uid("Lsk")
    return [[f"s_add_u32 m0, s{sFILL}, s{sW1K}", f"s_add_u32 s{sXA}, s{sXA}, 128"],
            [f"buffer_load_dwordx4 v{c.VX[0]}, {sr(SX,4)}, s{sXA} offen lds"],
            [f"buffer_load_dwordx4 v{c.VX[1]}, {sr(SX,4)}, s{sXA} offen offset:1024 lds"],
            [f"s_cbranch_vccz {lab}", f"s_add_u32 m0, s{sFILL}, s{sEM}", f"s_add_u32 s{sXB}, s{sXB}, 128",
             f"buffer_load_dwordx4 v{c.VX[2]}, {sr(SX,4)}, s{sXB} offen lds", lab + ":"],
            [f"s_add_u32 m0, s{sFILL}, s{sWB}", f"s_add_u32 s{sKW}, s{sKW}, {64*c.wrowb}"]] + ([wld(c, 0)] if c.nW == 4 else [])
def dmaB(c, a): return [wld(c, u) for u in range(c.nW-3, c.nW)]
def guard(a, groups, old):
    out = []
    for g in groups:
        lab = a.uid("Lg")
        out.append([f"s_cbranch_vcc{'z' if old else 'nz'} {lab}"] + g + [lab + ":"])
    return out
SETVCC = None
def reads(c, st, s):
    r = []
    if 'xrd' in EXP and c.inloop: return [['s_nop 0']]
    for i in range(c.nM):
        ins = f"ds_read_b128 {vr(c.X[st][i],4)}, v{c.xb[s]} offset:{i*2048}"
        if (not c.nh) and i == c.nM-1: r.append([f"s_mov_b64 exec, {sr(sMSK,2)}", ins, "s_mov_b64 exec, -1"])
        else: r.append([ins])
    if c.nh: r.append([f"s_mov_b64 exec, {sr(sMSK,2)}", f"ds_read_b128 {vr(c.XH[st],4)}, v{c.hb[s]}", "s_mov_b64 exec, -1"])
    for f in range(c.nF):
        r.append([f"ds_read_b64_tr_b16 {vr(c.W[st][f],2)}, v{c.wb[f]} offset:{s*32*c.wrow}"])
        r.append([f"ds_read_b64_tr_b16 {vr(c.W[st][f]+2,2)}, v{c.wb[f]} offset:{s*32*c.wrow+8*c.wrow}"])
    return r
def mfmas(c, st, c0=False):
    m = []
    for f in range(c.nF):
        for i in range(c.nM): m.append(mfma(c.acc[f][i], c.W[st][f], c.X[st][i], c0))
        if f < c.nh: m.append(mfma(c.acch[f], c.W[st][f], c.XH[st], c0))
    return m
def spread(main, items):
    out = []
    for i, m in enumerate(main):
        out.append(m)
        for p, g in items:
            if p == i or (i == len(main)-1 and p > i): out.extend(g)
    return out
def even(groups, n, lo=1):
    k = len(groups)
    return [(lo + (j*(n-lo))//k, g) for j, g in enumerate(groups)] if k else []

def stat_row(a):
    a(f"""
    s_and_b32 s{sT0}, s2, 1
    s_lshl_b32 s{sT0}, s{sT0}, 10
    s_bfe_u32 s{sT2}, s2, 0x20001
    s_lshl_b32 s{sT2}, s{sT2}, 8
    s_add_u32 s{sT0}, s{sT0}, s{sT2}
    s_and_b32 s{sT2}, s2, 0x78
    s_lshl_b32 s{sT2}, s{sT2}, 1
    s_add_u32 s{sT0}, s{sT0}, s{sT2}
    s_sub_u32 s{sT2}, s{sW}, 4
    s_lshl_b32 s{sT2}, s{sT2}, 2
    s_add_u32 s{sT0}, s{sT0}, s{sT2}
    """)
def nonce_get(a, vN, vPS, flag=True):
    l0, l1, l2, l3 = a.uid("Lno"), a.uid("Lno"), a.uid("Lno"), a.uid("Lno")
    assert vN == vPS + 2 and vPS % 2 == 0
    a(f"s_mov_b32 s{sSP}, 0")
    a.label(l0)
    a(f"""
    v_readfirstlane_b32 s{sNON}, v{vN}
    v_readfirstlane_b32 s{sNON+1}, v{vN+1}
    s_add_u32 s{sSP}, s{sSP}, 1
    s_cmp_gt_u32 s{sSP}, 100000
    s_cbranch_scc1 {l1}
    s_cmp_lg_u32 s{sNON}, 0
    s_cbranch_scc1 {l1}
    v_mov_b32 v{T0}, 0
    buffer_load_dwordx2 {vr(vN,2)}, v{T0}, {sr(SDBG,4)}, 0 offen sc1
    s_waitcnt vmcnt(0)
    s_branch {l0}
    """)
    a.label(l1)
    if not flag: return
    a(f"""
    s_cmp_lg_u32 s{sW}, 0
    s_cbranch_scc1 {l2}
    s_lshl_b32 s{sT1}, s2, {TSH}
    s_add_u32 s{sT1}, s{sT1}, {TFO-(128<<TSH)}
    v_lshlrev_b32 v{T0}, 3, v{LANE}
    s_mov_b64 exec, {0xffff if TSH == 7 else 1}
    buffer_store_dwordx2 {vr(vN,2)}, v{T0}, {sr(SFL,4)}, s{sT1} offen sc1
    s_mov_b64 exec, -1
    """)
    a.label(l2)
def poll(a, loads, cmps, preloaded, sleep=0):
    l0, l1, l2 = a.uid("Lpo"), a.uid("Lpo"), a.uid("Lpo")
    a(f"s_mov_b32 s{sSP}, 0")
    if preloaded: a(f"s_branch {l2}")
    a.label(l0)
    for l in loads: a(l)
    a("s_waitcnt vmcnt(0)")
    a.label(l2)
    for k, v in enumerate(cmps):
        if k == 0: a(f"v_cmp_eq_u64 vcc, {sr(sNON,2)}, {vr(v,2)}")
        else: a(f"v_cmp_eq_u64 {sr(sT1,2)}, {sr(sNON,2)}, {vr(v,2)}\ns_nop 0\ns_and_b64 vcc, vcc, {sr(sT1,2)}")
    a(f"""
    s_add_u32 s{sSP}, s{sSP}, 1
    s_cmp_gt_u32 s{sSP}, 100000
    s_cbranch_scc1 {l1}
    s_cmp_eq_u64 vcc, -1
    """)
    if sleep: a(f"s_cbranch_scc1 {l1}\ns_sleep {sleep}\ns_branch {l0}")
    else: a(f"s_cbranch_scc0 {l0}")
    a.label(l1)

def wfrag(phi, dst=None):
    t, n = divmod(phi, 5)
    pre = [f"s_mul_i32 s{sTM}, s{sK+t}, 5120"]
    if phi < 25 or dst is not None:
        d = WR0+4*phi if dst is None else dst
        if n < 4: return pre + [f"buffer_load_dwordx4 {vr(d,4)}, v{VL}, {sr(SWT,4)}, s{sTM} offen offset:{1024*n} sc1"]
        return pre + [f"s_add_u32 s{sTM}, s{sTM}, 4096", f"buffer_load_dwordx4 {vr(d,4)}, v{VL}, {sr(SWT,4)}, s{sTM} offen sc1"]
    base, o = (sFILL, (phi-25)*1024) if phi < 33 else (sFW, (phi-33)*1024)
    return [f"s_add_u32 m0, s{base}, {o}"] + pre + [f"s_add_u32 s{sTM}, s{sTM}, {1024*n}", f"buffer_load_dwordx4 v{VL}, {sr(SWT,4)}, s{sTM} offen sc1 lds"]
def p2_ldsbases():
    return [f"s_lshl_b32 s{sFILL}, s{sW}, 13", f"s_add_u32 s{sFILL}, s{sFILL}, {L_A}", f"s_mul_i32 s{sFW}, s{sW}, 12288"]

def stage_set(c, st):
    return [f"s_mov_b32 s{sFILL}, {((st+1) % 3) * c.stg}"]
def duty(a, n=2, guard=True, mask=0):
    lab = a.uid("Ldu")
    g = [f"s_bitcmp1_b32 {mask}, s{sI}", f"s_cbranch_scc0 {lab}"] if guard else []
    for _ in range(n):
        g += lines(f"""
        s_cmp_ge_u32 s{sPFO}, s{sPG}
        s_cbranch_scc1 {lab}
        buffer_load_dword v255, v254, {sr(STMP,4)}, s{sPFO} offen {PFF}
        s_add_u32 s{sPFO}, s{sPFO}, s{sPFS}""")
    return g + [lab + ":"]

def atoms(group):
    if any(l.endswith(":") for l in group): return [group]
    out = []; k = 0
    while k < len(group):
        if group[k].startswith("s_mov_b64 exec"): out.append(group[k:k+3]); k += 3
        else: out.append([group[k]]); k += 1
    return out
def balance(M, streams, last):
    items = []
    for units, lo, hi in streams:
        tot = sum(len(u) for u in units); acc = 0
        for u in units:
            items.append((lo + (acc*(hi-lo+1))//max(tot, 1), u)); acc += len(u)
    return spread(M, items)

def iteration(a, c, S, kind, extra1=(), extra2=(), pre2=None):
    prio = 'noprio' not in EXP
    a("s_waitcnt lgkmcnt(0)")
    M = mfmas(c, 0, kind == 0); n = len(M)
    upd = lambda b: [f"v_add_u32 v{b}, s{sDELTA}, v{b}"]
    rd = reads(c, 1, 1); nx = c.nM + (1 if c.nh else 0)
    R = rd[:nx]
    if kind != 9: R = R + [upd(c.xb[1])] + ([upd(c.hb[1])] if c.nh else [])
    for f in range(c.nF):
        R += rd[nx+2*f:nx+2*f+2]
        if kind != 9 and f: R.append(upd(c.wb[f-1]))
    late = []
    if kind != 9: late = [upd(c.wb[c.nF-1]), upd(c.xb[0])] + ([upd(c.hb[0])] if c.nh else [])
    Sx = []; S0 = []
    if kind != 9:
        S0 = [[f"s_add_u32 s{sT1}, s{sSLOT}, {c.stg}", f"s_cmp_eq_u32 s{sT1}, {3*c.stg}", f"s_cselect_b32 s{sT1}, 0, s{sT1}"], [f"s_sub_u32 s{sDELTA}, s{sT1}, s{sSLOT}"]]
    if kind in ('loop', 7): Sx += dmaB(c, a)
    if kind == 0: Sx += dmaB(c, a) + [stage_set(c, 2)] + dmaA(c, a) + dmaB(c, a)
    Sx += sum([atoms(g) for g in extra1], [])
    if kind in ('loop', 0):
        Sx += [[f"s_mov_b32 s{sFILL}, s{sSLOT}"]]
    if kind != 9: Sx.append([f"s_mov_b32 s{sSLOT}, s{sT1}"])
    st = [(S0, 0, 1), (Sx, 0 if kind == 0 else 2, n-2), (R, 0, n-RT), (late, n-RT+1, n-2)]
    if prio: st = [([["s_setprio 1"]], 0, 0), ([["s_setprio 0"]], n//2, n//2)] + st
    for l in balance(M, st, n): a(l)
    S.dyn(10)
    if kind in ('loop', 0, 7): a(f"s_waitcnt vmcnt({c.nW+2}) lgkmcnt(0)")
    elif kind == 8: a(f"s_waitcnt vmcnt({c.y8}) lgkmcnt(0)")
    else: a("s_waitcnt lgkmcnt(0)")
    S.dyn(20)
    a("s_barrier")
    S.dyn(30)
    if prio: a("s_setprio 3")
    if pre2: pre2()
    M = mfmas(c, 1)
    R = reads(c, 0, 0) if kind != 9 else []
    Sx = []
    if kind in ('loop', 0):
        if c.duty: Sx.append(duty(a, DN, mask=c.dmask))
        Sx += dmaA(c, a)
    Sx += sum([atoms(g) for g in extra2], [])
    st = [(Sx, 0, n-3), (R, 0, n-RT)]
    if kind == 'loop':
        st.append(([[f"s_bitcmp1_b32 {(0x24 if 'tl' in EXP else 0x20) if c.ffn else (0x20 | (5 << SLI))}, s{sI}", f"s_cbranch_scc1 Lspec_{c.tag}", f"Lret_{c.tag}:"]], n-3, n-3))
        st.append(([[f"s_add_u32 s{sI}, s{sI}, 1", f"s_cmp_lt_u32 s{sI}, 7"]], n-2, n-2))
    if prio: st.append(([["s_setprio 2"]], n//2, n//2))
    for l in balance(M, st, n): a(l)

def main_loop(a, c, S, tag, rec_loads):
    iteration(a, c, S, 0)
    tl = c.ffn and 'tl' in EXP
    if tl: t_work(a)
    else: nonce_get(a, c.VN, c.VPS, c.ffn)
    a(f"s_mov_b32 s{sI}, 1")
    S(40)
    a.label(f"Lloop_{tag}")
    c.inloop = True; c.tag = tag
    iteration(a, c, S, 'loop')
    c.inloop = False
    a(f"s_cbranch_scc1 Lloop_{tag}")
    a(f"s_branch Lpost_{tag}")
    l5 = a.uid("Ls")
    tf = f"buffer_load_dwordx2 {vr(c.VN,2)}, v{c.VTF}, {sr(SFL,4)}, 0 offen sc1"
    a.label(f"Lspec_{tag}")
    if not c.ffn:
        l6 = a.uid("Ls")
        a(f"s_cmp_lg_u32 s{sI}, {SLI}\ns_cbranch_scc1 {l5}")
        stat_loads(a)
        a.label(l5)
        a(f"s_cmp_lg_u32 s{sI}, {SLI+2}\ns_cbranch_scc1 {l6}")
        s_work(a, c.VPS)
        a.label(l6)
        a(f"s_cmp_lg_u32 s{sI}, 5\ns_cbranch_scc1 Lret_{tag}")
    if tl:
        l7 = a.uid("Ls")
        a(f"s_cmp_lg_u32 s{sI}, 2\ns_cbranch_scc1 {l7}")
        nonce_get(a, c.VN, c.VPS, True)
        a(f"s_branch Lret_{tag}")
        a.label(l7)
    a(tf)
    a(f"s_branch Lret_{tag}")
    a.label(f"Lpost_{tag}")
    S(41)
    early = [wfrag(p) for p in c.early]
    e = []; k = 0
    for cnt in c.esplit: e.append(early[k:k+cnt]); k += cnt
    assert k == len(early)
    def pre7():
        poll(a, [tf], [c.VN], True)
        for l in p2_ldsbases(): a(l)
    iteration(a, c, S, 7, extra2=e[0], pre2=pre7)
    a(f"s_add_u32 s{sI}, s{sI}, 1")
    c.y8 = len(e[0]) + len(e[1])
    iteration(a, c, S, 8, extra1=e[1], extra2=rec_loads + e[2])
    a(f"s_add_u32 s{sI}, s{sI}, 1")
    iteration(a, c, S, 9, extra1=e[3], extra2=e[4] + c.tailx)
    a("s_setprio 0")
    c.yrec = len(e[2]) + len(e[3]) + len(e[4])
    S(4)

def rho_local(a, d, t):
    a(f"v_bfe_u32 v{d}, v{LANE}, 2, 3\nv_lshrrev_b32 v{t}, 5, v{LANE}\nv_lshl_add_u32 v{d}, v{t}, 4, v{d}")

def t_issue(a, guard=True):
    for q in range(4):
        a(f"s_add_u32 m0, s{sTB}, {1024*q}\ns_nop 0")
        a(f"buffer_load_dwordx4 v{SIDE+4+q}, {sr(SPF,4)}, 0 offen {TFL} lds")
def side_loads(a, stat=True, issue=True):
    ld, lst, lh, lj = a.uid("Lt"), a.uid("Lt"), a.uid("Lt"), a.uid("Lt")
    sU, sKp, sCh = sKX, sKW, sDELTA
    A0, A1, ST0, ST1 = SIDE, SIDE+1, SIDE+2, SIDE+3
    a(f"s_cmp_lt_u32 s{sW}, 2\ns_cbranch_scc1 {ld}")
    a(f"""
    s_lshl_b32 s{sTB}, s{sW}, 12
    s_add_u32 s{sTB}, s{sTB}, {L_TST-2*4096}
    s_mul_i32 s{sT0}, s{sW}, 49152
    s_sub_u32 s{sT0}, s{sT0}, {6*49152-45056}
    s_cmp_ge_u32 s{sW}, 6
    s_cselect_b32 s{sTB}, s{sT0}, s{sTB}
    s_mul_i32 s{sU}, s2, 6
    s_add_u32 s{sU}, s{sU}, s{sW}
    s_sub_u32 s{sU}, s{sU}, {128*6+2}
    s_min_u32 s{sU}, s{sU}, 739
    s_mul_i32 s{sCh}, s{sU}, 886
    s_lshr_b32 s{sCh}, s{sCh}, 16
    s_mul_i32 s{sT0}, s{sCh}, 74
    s_sub_u32 s{sKp}, s{sU}, s{sT0}
    v_lshrrev_b32 v{T0}, 5, v{LANE}
    s_cmp_ge_u32 s{sKp}, 20
    s_cbranch_scc1 {lh}
    """)
    for e, (A, ST) in enumerate(((A0, ST0), (A1, ST1))):
        a(f"""
        s_lshl_b32 s{sT0}, s{sKp}, 2
        s_add_u32 s{sT0}, s{sT0}, {2*e}
        v_add_u32 v{T1}, s{sT0}, v{T0}
        v_mul_u32_u24 v{T2}, 205, v{T1}
        v_lshrrev_b32 v{T2}, 10, v{T2}
        v_mul_u32_u24 v{T3}, 5, v{T2}
        v_sub_u32 v{T1}, v{T1}, v{T3}
        v_mul_u32_u24 v{A}, 40, v{T2}
        v_lshrrev_b32 v{T2}, 1, v{T1}
        v_mul_u32_u24 v{T2}, 20, v{T2}
        v_and_b32 v{T3}, 1, v{T1}
        v_lshl_add_u32 v{T2}, v{T3}, 3, v{T2}
        v_cmp_eq_u32 vcc, 4, v{T1}
        v_mov_b32 v{ST}, 20
        s_nop 0
        v_cndmask_b32 v{T2}, v{T2}, 16, vcc
        v_cndmask_b32 v{ST}, 4, v{ST}, vcc
        v_add_u32 v{A}, v{A}, v{T2}
        """)
    a("s_waitcnt lgkmcnt(0)")
    srd(a, SPF, P_WO, 640*1280)
    a(f"s_branch {lj}")
    a.label(lh)
    a(f"""
    s_sub_u32 s{sT0}, s{sKp}, 20
    s_mul_i32 s{sT1}, s{sT0}, 86
    s_lshr_b32 s{sT1}, s{sT1}, 8
    s_mul_i32 s{sT1}, s{sT1}, 3
    s_sub_u32 s{sT1}, s{sT0}, s{sT1}
    s_lshl_b32 s{sT0}, s{sT0}, 5
    v_lshl_add_u32 v{A0}, v{T0}, 2, s{sT0}
    s_cmp_eq_u32 s{sT1}, 1
    s_cselect_b32 s{sT1}, 16, 8
    s_cselect_b32 s{sT2}, 8, 16
    v_add_u32 v{A1}, s{sT1}, v{A0}
    v_mov_b32 v{ST0}, s{sT2}
    v_mov_b32 v{ST1}, s{sT2}
    """)
    a("s_waitcnt lgkmcnt(0)")
    srd(a, SPF, P_W2, 1728*1280)
    a.label(lj)
    a(f"""
    v_bfe_u32 v{T1}, v{LANE}, 3, 2
    v_and_b32 v{T2}, 7, v{LANE}
    v_lshlrev_b32 v{T2}, 4, v{T2}
    s_lshl_b32 s{sT0}, s{sCh}, 7
    s_lshl_b32 s{sT1}, s{sW}, 12
    """)
    for q in range(4):
        A, ST = ((A0, ST0), (A1, ST1))[q & 1]
        a(f"v_add_u32 v{T3}, v{A}, v{T1}")
        if q >> 1: a(f"v_add_u32 v{T3}, v{T3}, v{ST}")
        a(f"v_mul_u32_u24 v{T3}, 1280, v{T3}\nv_add3_u32 v{SIDE+4+q}, v{T3}, v{T2}, s{sT0}")
    if issue: t_issue(a, False)
    a(f"s_mul_i32 s{sT2}, s{sKp}, 5\ns_lshl_b32 s{sT3}, s{sCh}, 2")
    for t in range(4):
        a(f"""
        s_add_u32 s{sT0}, s{sT3}, {t}
        s_mul_i32 s{sT1}, s{sT0}, 52
        s_lshr_b32 s{sT1}, s{sT1}, 8
        s_mul_i32 s{sT1}, s{sT1}, 365
        s_add_u32 s{sT0}, s{sT0}, s{sT1}
        s_add_u32 s{sT0}, s{sT0}, s{sT2}
        s_lshl_b32 s{sTS[t]}, s{sT0}, 10
        """)
    a(f"s_branch {ld}")
    a.label(lst)
    if stat: stat_loads(a, False)
    a.label(ld)
def stat_loads(a, guard=True):
    ld = a.uid("Lsl")
    if guard: a(f"s_cmp_lt_u32 s{sW}, 4\ns_cbranch_scc1 {ld}")
    stat_row(a)
    a(f"s_mul_i32 s{sT0}, s{sT0}, 1280\nv_mul_u32_u24 v{T0}, 1280, v{G}\nv_lshl_add_u32 v{T0}, v{R}, 4, v{T0}")
    for i in range(5): a(f"buffer_load_dwordx4 {vr(SIDE+4*i,4)}, v{T0}, {sr(SX,4)}, s{sT0} offen offset:{256*i}")
    a.label(ld)
for u in range(1001): assert (u*6554)>>16 == u//10
for u in range(80): assert (u*205)>>10 == u//5
for u in range(54): assert (u*86)>>8 == u//3
for N in range(40): assert (N*52)>>8 == N//5

def t_work(a):
    lab = a.uid("Ltw")
    a(f"s_cmp_lt_u32 s{sW}, 2\ns_cbranch_scc1 {lab}")
    t_part(a)
    a.label(lab)
def s_work(a, vPS):
    lab = a.uid("Ltw")
    a(f"s_cmp_lt_u32 s{sW}, 4\ns_cbranch_scc1 {lab}")
    s_part(a, SIDE+20)
    a(f"v_mov_b32 v{SIDE}, v{SIDE+20}\nv_mov_b32 v{SIDE+1}, v{SIDE+21}\nv_mov_b32 v{SIDE+2}, s{sNON}\nv_mov_b32 v{SIDE+3}, s{sNON+1}")
    stat_row(a)
    a(f"""
    s_lshl_b32 s{sT0}, s{sT0}, {RSH}
    s_add_u32 s{sT0}, s{sT0}, {STO}
    v_lshlrev_b32 v{T0}, {RSH}, v{G}
    v_lshl_add_u32 v{T0}, v{R}, 4, v{T0}
    s_mov_b32 exec_lo, {0x00010001 if RSH == 4 else 0x00030003}
    s_mov_b32 exec_hi, {0x00010001 if RSH == 4 else 0x00030003}
    buffer_store_dwordx4 {vr(SIDE,4)}, v{T0}, {sr(SFL,4)}, s{sT0} offen sc1
    s_mov_b64 exec, -1
    """)
    a.label(lab)
def t_part(a):
    tmp = SIDE
    a(f"""
    v_lshrrev_b32 v{T0}, 2, v{LANE}
    v_lshlrev_b32 v{T0}, 7, v{T0}
    v_and_b32 v{T1}, 3, v{LANE}
    v_lshl_add_u32 v{T0}, v{T1}, 3, v{T0}
    v_add_u32 v{T0}, s{sTB}, v{T0}
    """)
    for t in range(4):
        a(f"ds_read_b64_tr_b16 {vr(tmp+4*t,2)}, v{T0} offset:{32*t}")
        a(f"ds_read_b64_tr_b16 {vr(tmp+4*t+2,2)}, v{T0} offset:{32*t+2048}")
    for t in range(4):
        a(f"s_waitcnt lgkmcnt({6-2*t})\nbuffer_store_dwordx4 {vr(tmp+4*t,4)}, v{VL}, {sr(SFL,4)}, s{sTS[t]} offen sc1")
def s_part(a, vPS):
    tmp = SIDE
    s, q = vPS, vPS+1
    a(f"v_mov_b32 v{s}, 0\nv_mov_b32 v{q}, 0\nv_mov_b32 v{T0}, 0x3f803f80")
    for j in range(20):
        a(f"v_dot2c_f32_bf16 v{s}, v{tmp+j}, v{T0}\nv_dot2c_f32_bf16 v{q}, v{tmp+j}, v{tmp+j}")
    a("s_nop 2")
    for sh in (8, 4, 2, 1):
        a(f"v_add_f32_dpp v{s}, v{s}, v{s} row_ror:{sh} row_mask:0xf bank_mask:0xf")
        a(f"v_add_f32_dpp v{q}, v{q}, v{q} row_ror:{sh} row_mask:0xf bank_mask:0xf")
        a("s_nop 0")
    a(f"""
    v_mul_f32 v{s}, {f32(1/640)}, v{s}
    v_mul_f32 v{q}, {f32(1/640)}, v{q}
    v_fma_f32 v{q}, -v{s}, v{s}, v{q}
    v_max_f32 v{q}, 0, v{q}
    v_cvt_pk_bf16_f32 v{T0}, v{s}, v{q}
    v_lshlrev_b32 v{T1}, 16, v{T0}
    v_and_b32 v{q}, 0xffff0000, v{T0}
    v_add_f32 v{q}, {f32(1e-5)}, v{q}
    v_cvt_pk_bf16_f32 v{q}, v{q}, v{q}
    v_and_b32 v{q}, 0xffff0000, v{q}
    v_sqrt_f32 v{q}, v{q}
    s_nop 0
    v_cvt_pk_bf16_f32 v{q}, v{q}, v{q}
    v_and_b32 v{q}, 0xffff0000, v{q}
    v_rcp_f32 v{s}, v{q}
    s_nop 0
    v_mul_f32 v{q}, v{T1}, v{s}
    v_sub_f32 v{q}, 0, v{q}
    """)

def p2_setup(a, VTF):
    if MAP2 == 81:
        a(f"""
    s_and_b32 s{sT0}, s2, 7
    s_lshl_b32 s{sR2}, s{sT0}, 2
    s_bfe_u32 s{sT1}, s2, 0x20003
    s_add_u32 s{sR2}, s{sR2}, s{sT1}
    s_lshr_b32 s{sC2}, s2, 5
    s_lshl_b32 s{sT1}, s{sT1}, 1
    s_mul_i32 s{sT0}, s{sC2}, {ROTA}
    s_lshr_b32 s{sT0}, s{sT0}, 1
    s_add_u32 s{sT1}, s{sT1}, s{sT0}
    """)
    else:
        a(f"""
    s_and_b32 s{sT0}, s2, 3
    s_lshl_b32 s{sR2}, s{sT0}, 3
    s_bfe_u32 s{sT1}, s2, 0x30003
    s_add_u32 s{sR2}, s{sR2}, s{sT1}
    s_and_b32 s{sC2}, s2, 4
    s_lshr_b32 s{sT0}, s2, 6
    s_add_u32 s{sC2}, s{sC2}, s{sT0}
    s_mul_i32 s{sT0}, s{sT0}, {ROTA}
    s_add_u32 s{sT1}, s{sT1}, s{sT0}
    """)
    a(f"""
    s_cmp_lt_u32 s{sW}, 2
    s_cselect_b32 s{sN2}, 10, 9
    s_cmp_ge_u32 s{sT1}, s{sN2}
    s_cselect_b32 s{sT2}, s{sN2}, 0
    s_sub_u32 s{sK}, s{sT1}, s{sT2}
    """)
    for t in range(1, 10):
        a(f"s_add_u32 s{sK+t}, s{sK+t-1}, 1\ns_cmp_eq_u32 s{sK+t}, s{sN2}\ns_cselect_b32 s{sK+t}, 0, s{sK+t}")
    a(f"""
    s_mul_i32 s{sT3}, s{sW}, 9
    s_min_u32 s{sT2}, s{sW}, 2
    s_add_u32 s{sT3}, s{sT3}, s{sT2}
    v_lshrrev_b32 v{T0}, 1, v{LANE}
    s_sub_u32 s{sT2}, s{sN2}, 1
    v_min_u32 v{T0}, s{sT2}, v{T0}
    v_add_u32 v{T0}, s{sT3}, v{T0}
    s_mul_i32 s{sT2}, s{sC2}, 5
    s_lshr_b32 s{sT2}, s{sT2}, 2
    s_mul_i32 s{sT2}, s{sT2}, 74
    v_and_b32 v{T1}, 1, v{LANE}
    v_mul_u32_u24 v{T1}, 74, v{T1}
    v_add3_u32 v{T0}, v{T0}, v{T1}, s{sT2}
    v_mul_u32_u24 v{T0}, 10923, v{T0}
    v_lshrrev_b32 v{T0}, 16, v{T0}
    v_lshlrev_b32 v{T0}, {TSH}, v{T0}
    v_add_u32 v{VTF}, {TFO}, v{T0}
    s_mul_i32 s{sT2}, s{sC2}, 74
    s_add_u32 s{sT2}, s{sT2}, s{sT3}
    s_mul_i32 s{sT2}, s{sT2}, 5120
    s_add_u32 s{sT2}, s{sT2}, {WT_OFF}
    s_add_u32 s{SWT}, s{P_WS}, s{sT2}
    s_addc_u32 s{SWT+1}, s{P_WS+1}, 0
    s_mul_i32 s{SWT+2}, s{sN2}, {0 if 'now' in EXP else 5120}
    s_mov_b32 s{SWT+3}, 0x00020000
    s_mul_i32 s{sT2}, s{sR2}, 74
    s_add_u32 s{sT2}, s{sT2}, s{sT3}
    s_lshl_b32 s{sT2}, s{sT2}, 12
    s_add_u32 s{SPF}, s{P_WS}, s{sT2}
    s_addc_u32 s{SPF+1}, s{P_WS+1}, 0
    s_lshl_b32 s{SPF+2}, s{sN2}, 12
    {f"s_mov_b32 s{SPF+2}, 0" if 'noa' in EXP else ""}
    s_mov_b32 s{SPF+3}, 0x00020000
    """)
    ly, lyd = a.uid("Ly"), a.uid("Ly")
    a(f"""
    s_cmp_ge_u32 s{sW}, 2
    s_cbranch_scc1 {ly}
    s_lshr_b32 s{sT0}, s{sR2}, 1
    s_lshl_b32 s{sT0}, s{sT0}, 7
    s_lshl_b32 s{sT1}, s{sW}, 5
    s_add_u32 s{sT0}, s{sT0}, s{sT1}
    s_add_u32 s{sT0}, s{sT0}, {16*128}
    v_and_b32 v{T0}, 3, v{LANE}
    v_lshl_add_u32 v{VF}, v{T0}, 3, s{sT0}
    s_branch {lyd}
    """)
    a.label(ly)
    a(f"""
    s_lshl_b32 s{sT0}, s{sR2}, 6
    s_add_u32 s{sT1}, s{sT0}, 63
    s_mul_i32 s{sT0}, s{sT0}, 27595
    s_lshr_b32 s{sT0}, s{sT0}, 22
    s_mul_i32 s{sT1}, s{sT1}, 27595
    s_lshr_b32 s{sT1}, s{sT1}, 22
    s_sub_u32 s{sT1}, s{sT1}, s{sT0}
    s_lshl_b32 s{sT1}, s{sT1}, 7
    s_lshl_b32 s{sT0}, s{sT0}, 7
    s_sub_u32 s{sT2}, s{sW}, 2
    s_mul_i32 s{sT2}, s{sT2}, 3
    s_lshr_b32 s{sT2}, s{sT2}, 1
    s_lshl_b32 s{sT2}, s{sT2}, 3
    s_add_u32 s{sT0}, s{sT0}, s{sT2}
    v_and_b32 v{T0}, 1, v{LANE}
    v_lshlrev_b32 v{T0}, 3, v{T0}
    v_bfe_u32 v{T1}, v{LANE}, 1, 1
    v_mul_u32_u24 v{T1}, s{sT1}, v{T1}
    v_add3_u32 v{VF}, v{T0}, v{T1}, s{sT0}
    """)
    a.label(lyd)
    a(f"v_lshlrev_b32 v{VF}, {FSH}, v{VF}\nv_add_u32 v{VF}, {HFB}, v{VF}")
    a(f"""
    s_lshl_b32 s{sT0}, s{sR2}, 6
    v_add_u32 v{T0}, s{sT0}, v{R}
    v_mul_u32_u24 v{T0}, 1280, v{T0}
    v_lshl_add_u32 v{T0}, v{G}, 3, v{T0}
    s_mul_i32 s{sT0}, s{sC2}, 160
    v_add_u32 v{VXO}, s{sT0}, v{T0}
    """)
for u in range(740): assert (u*10923)>>16 == u//6
for x in range(2048): assert (x*27595)>>22 == x//152

class Inter:
    def __init__(s, a, groups, every): s.a, s.g, s.e, s.n = a, list(groups), every, 0
    def __call__(s, txt):
        for l in lines(txt):
            s.a(l); s.n += 1
            if s.n % s.e == 0 and s.g:
                for x in s.g.pop(0): s.a(x)
    def flush(s, keep=0):
        while len(s.g) > keep:
            for x in s.g.pop(0): s.a(x)

DOC = """; Design (generated by a python script): one persistent launch, 256 workgroups x 8 waves, one per CU.
;           others              : ffn1 tile (152 rows x 192 cols) + gelu; they also write an MFMA-fragment copy of wo/w2
;  hand-off: write-through stores + per-tile flags tagged with a per-launch nonce published in d_debug
"""
def gen(stamps=False, PF=4, pff="", SLEEP=0, LP=None, QD=10, DMQ=0b10000, nlate=0, qimg=16, dn=2, dpre=0, sli=3, rt=4, qevery=28, fn1=30, map2=81, rota=2, fevery=30, OSF='', exp="tup nofld cpf d0q wf wr wt", NB=0, dmask=0b111, tfl="nt", eq=(2,2,2,2,2), ef=(2,2,2,2,2), TLB=0):
    global EXP, PFF, DN, DMASK, DPRE, TFL, MAP2, ROTA
    MAP2 = map2; ROTA = rota
    global RT, SLI, RSH, FSH, TSH
    TSH = 7 if 'wt' in exp.split() else 3
    RSH = 5 if 'wr' in exp.split() else 4; FSH = 4 if 'wf' in exp.split() else 0
    RT = rt; SLI = sli
    EXP = set(exp.split()); PFF = pff; TFL = tfl; DMASK = dmask; DN = dn
    a = Asm(); S = St(a, stamps)
    LB = [p for p in globals()['LB'] if p < 45-5*nlate]
    LA_ = [p for p in globals()['LA_'] if p < 45-5*nlate]
    name = NAME + "_kernel"
    def emit(groups):
        for g in groups:
            for l in g: a(l)
    if stamps: a("s_memrealtime s[96:97]\ns_memtime s[94:95]")
    a(f"s_cmp_ge_u32 s2, 256\ns_cbranch_scc1 Lend")
    if 'badmap' in EXP: a("s_and_b32 s3, s2, 31\ns_lshl_b32 s3, s3, 3\ns_lshr_b32 s2, s2, 5\ns_or_b32 s2, s2, s3")
    a(f"s_load_dwordx16 s[40:55], s[0:1], 0\ns_load_dwordx4 s[56:59], s[0:1], 64\ns_load_dwordx2 s[60:61], s[0:1], 80")
    a(f"""
    v_lshrrev_b32 v{T0}, 6, v0
    v_and_b32 v{LANE}, 63, v0
    v_readfirstlane_b32 s{sW}, v{T0}
    v_lshrrev_b32 v{G}, 4, v{LANE}
    v_and_b32 v{R}, 15, v{LANE}
    v_lshlrev_b32 v{VL}, 4, v{LANE}
    s_lshl_b32 s{sW1K}, s{sW}, 11
    s_mov_b32 s{sI}, 0
    """)
    def pf_addr(nrow_cu, kper, nst, cidx_s, VD):
        pass
    lx, lq, ld, lw = a.uid("Lpf"), a.uid("Lpf"), a.uid("Lpf"), a.uid("Lpf")
    a(f"""
    s_bfe_u32 s{sT2}, s2, 0x40003
    s_lshr_b32 s{sT3}, s2, 7
    s_and_b32 s{sT0}, s2, 1
    s_bfe_u32 s{sT1}, s2, 0x20001
    s_mov_b32 s{sPG}, 0
    v_mov_b32 v254, 0
    s_cmp_ge_u32 s{sW}, 3
    s_cbranch_scc1 {lw}
    s_cmp_ge_u32 s{sW}, 1
    s_cbranch_scc1 {lq}
    s_lshl_b32 s{sT0}, s{sT0}, 10
    s_lshl_b32 s{sT1}, s{sT1}, 8
    s_lshl_b32 s{sT2}, s{sT2}, 4
    s_add_u32 s{sT0}, s{sT0}, s{sT1}
    s_add_u32 s{sT0}, s{sT0}, s{sT2}
    v_add_u32 v{T0}, s{sT0}, v{R}
    v_mul_u32_u24 v{T0}, 1280, v{T0}
    v_and_b32 v{T1}, 1, v{G}
    v_lshl_add_u32 v254, v{T1}, 7, v{T0}
    s_lshl_b32 s{sT0}, s{sT3}, 8
    s_mov_b32 s{sPFS}, 256
    s_mov_b32 s{sPG}, 1280
    s_waitcnt lgkmcnt(0)
    s_mov_b32 s{sPFO}, 512
    """)
    srd(a, STMP, P_X, XB)
    a(f"buffer_load_dword v255, v254, {sr(STMP,4)}, s{sT0} offen {pff}")
    a(f"s_branch {ld}")
    a.label(lq)
    a(f"""
    s_cmp_eq_u32 s{sW}, 2
    s_cbranch_scc1 {lx}
    v_min_u32 v{T0}, 35, v{LANE}
    v_mul_u32_u24 v{T1}, 57, v{T0}
    v_lshrrev_b32 v{T1}, 9, v{T1}
    v_mul_u32_u24 v{T3}, 9, v{T1}
    v_sub_u32 v{T0}, v{T0}, v{T3}
    s_lshl_b32 s{sT2}, s{sT2}, 2
    v_add_u32 v{T1}, s{sT2}, v{T1}
    v_mul_u32_u24 v{T1}, 3840, v{T1}
    v_mul_u32_u24 v{T3}, 43, v{T0}
    v_lshrrev_b32 v{T3}, 7, v{T3}
    v_mul_u32_u24 v{T3}, 896, v{T3}
    v_lshl_add_u32 v{T0}, v{T0}, 7, v{T3}
    s_mul_i32 s{sT1}, s{sT1}, 320
    s_and_b32 s{sT1}, s{sT1}, 0xffffff80
    v_add3_u32 v254, v{T0}, v{T1}, s{sT1}
    s_mul_i32 s{sT0}, s{sT3}, {128*3840}
    s_add_u32 s{sT1}, s{sT0}, {64*3840}
    s_mov_b32 s{sPFS}, {64*3840}
    s_mov_b32 s{sPG}, {640*3840}
    s_waitcnt lgkmcnt(0)
    s_mov_b32 s{sPFO}, {256*3840}
    """)
    srd(a, STMP, P_WQ, 640*3840)
    a(f"buffer_load_dword v255, v254, {sr(STMP,4)}, s{sT0} offen {pff}")
    a(f"buffer_load_dword v255, v254, {sr(STMP,4)}, s{sT1} offen {pff}")
    a(f"s_branch {ld}")
    a.label(lx)
    a(f"""
    s_and_b32 s{sT0}, s2, 127
    s_mul_i32 s{sT0}, s{sT0}, 3456
    v_min_u32 v{T0}, 26, v{LANE}
    v_lshl_add_u32 v254, v{T0}, 7, s{sT0}
    s_mul_i32 s{sT0}, s{sT3}, {128*3456}
    s_mov_b32 s{sPFS}, {128*3456}
    s_mov_b32 s{sPG}, {640*3456}
    s_waitcnt lgkmcnt(0)
    s_mov_b32 s{sPFO}, {256*3456}
    """)
    srd(a, STMP, P_W1, 640*3456)
    a(f"buffer_load_dword v255, v254, {sr(STMP,4)}, s{sT0} offen {pff}")
    a(f"s_branch {ld}")
    a.label(lw)
    if 'cpf' in EXP:
        lc_ = a.uid("Lcp")
        a(f"""
        s_cmp_lg_u32 s{sW}, 7
        s_cbranch_scc1 {lc_}
        s_getpc_b64 {sr(sNON,2)}
        s_and_b32 s{sNON}, s{sNON}, 0xffffff00
        s_lshr_b32 s{sT0}, s2, 3
        s_mul_i32 s{sT0}, s{sT0}, 10
        v_min_u32 v{T0}, 9, v{LANE}
        v_add_u32 v{T0}, s{sT0}, v{T0}
        v_lshlrev_b32 v{T0}, 7, v{T0}
        v_min_u32 v{T0}, Lend-{lc_}, v{T0}
        global_load_dword v255, v{T0}, {sr(sNON,2)}
        """)
        a.label(lc_)
    ln = a.uid("Ln")
    a(f"s_cmp_lg_u32 s2, 0\ns_cbranch_scc1 {ln}\ns_cmp_lg_u32 s{sW}, 7\ns_cbranch_scc1 {ln}\ns_waitcnt lgkmcnt(0)")
    srd(a, SDBG, P_DBG, 256)
    a(f"""
    s_memrealtime {sr(sNON,2)}
    s_waitcnt lgkmcnt(0)
    s_or_b32 s{sNON}, s{sNON}, 1
    v_mov_b32 v{T0}, s{sNON}
    v_mov_b32 v{T1}, s{sNON+1}
    v_mov_b32 v{T2}, 0
    s_mov_b64 exec, 1
    buffer_store_dwordx2 {vr(T0,2)}, v{T2}, {sr(SDBG,4)}, 0 offen sc1
    s_mov_b64 exec, -1
    """)
    a.label(ln)
    a("s_waitcnt lgkmcnt(0)")
    srd(a, STMP, P_X, XB)
    a(f"s_mov_b32 s{sPFS}, 0\ns_mov_b32 s{sPFO}, 0")
    a.label(ld)
    S.start()
    srd(a, SX, P_X, XB)
    a(f"""
    s_and_b32 s{sT0}, s2, 1
    s_bfe_u32 s{sT1}, s2, 0x20001
    s_lshr_b32 s{sT2}, s2, 3
    s_cmp_ge_u32 s{sT2}, 16
    s_cbranch_scc1 Lffn
    """)
    def late_srds():
        srd(a, SHO, P_WS, 0 if 'nost' in EXP else HO_SZ); srd(a, SFL, P_WS, FL_SZ, WT_OFF); srd(a, SDBG, P_DBG, 256)
    def set_stage(c, st): emit([stage_set(c, st)])
    def pretouch(flagoff_s):
        lp = a.uid("Lpt")
        a(f"s_cmp_lg_u32 s{sW}, 7\ns_cbranch_scc1 {lp}")
        stat_row(a)
        a(f"""
        s_lshl_b32 s{sT0}, s{sT0}, 4
        s_add_u32 s{sT0}, s{sT0}, {STO}
        v_mov_b32 v{T0}, s{sT0}
        s_lshl_b32 s{sT0}, s2, 3
        s_add_u32 s{sT0}, s{sT0}, {TFO}
        v_writelane_b32 v{T0}, s{sT0}, 1
        """)
        if flagoff_s is not None:
            a(f"s_add_u32 s{sT0}, s{flagoff_s}, {FLB}\nv_writelane_b32 v{T0}, s{sT0}, 2")
        a(f"buffer_load_dword v255, v{T0}, {sr(SFL,4)}, 0 offen sc1")
        if TLB:
            a(f"v_lshlrev_b32 v{T0}, {TLB}, v{LANE}")
            a(f"buffer_load_dword v255, v{T0}, {sr(SHO,4)}, 0 offen sc1")
            a(f"buffer_load_dword v255, v{T0}, {sr(SFL,4)}, 0 offen sc1")
            srd(a, SPF, P_OUT, XB)
            a(f"buffer_load_dword v255, v{T0}, {sr(SPF,4)}, 0 offen sc1")
            srd(a, SPF, P_B2, 1280)
            a(f"buffer_load_dword v255, v{T0}, {sr(SPF,4)}, 0 offen")
        a.label(lp)
    d0e = lambda c: 'd0e' in EXP or ('d0q' in EXP and not c.ffn)
    def pre_loop(c, setup):
        if d0e(c):
            a(f"s_cmp_lt_u32 s{sW}, {c.nxm}\ns_cselect_b64 vcc, -1, 0")
            set_stage(c, 0); emit(dmaA(c, a) + dmaB(c, a))
        late_srds()
        setup()
        tl = c.ffn and 'tl' in EXP
        if not tl: p2_setup(a, c.VTF)
        S(1)
        a(f"s_cmp_lt_u32 s{sW}, {c.nxm}\ns_cselect_b64 vcc, -1, 0")
        if not d0e(c):
            a("s_barrier")
            set_stage(c, 0); emit(dmaA(c, a) + dmaB(c, a))
        if tl:
            lt_ = a.uid("Ltl")
            a(f"s_cmp_lt_u32 s{sW}, 2\ns_cbranch_scc1 {lt_}")
            t_issue(a)
            a.label(lt_)
            p2_setup(a, c.VTF)
        elif c.ffn:
            a(f's_waitcnt vmcnt({c.nW+2})'); t_work(a)
        a(f"v_mov_b32 v{T0}, 0")
        a(f"buffer_load_dwordx2 {vr(c.VN,2)}, v{T0}, {sr(SDBG,4)}, 0 offen sc1")
        if 'nb2' not in EXP: a("s_barrier")
        set_stage(c, 1); emit(dmaA(c, a))
        if tl:
            lw_ = a.uid("Ltl")
            a(f"s_waitcnt vmcnt({c.nW+4})\ns_cmp_ge_u32 s{sW}, 2\ns_cbranch_scc1 {lw_}\ns_waitcnt vmcnt({c.nW})")
            a.label(lw_)
        else: a(f"s_waitcnt vmcnt({c.nW})")
        S(2)
        a("s_barrier")
        S(3)
        emit(reads(c, 0, 0))
        a(f"s_mov_b32 s{sSLOT}, {c.stg}")
    def alloc_common(c):
        al = Alloc(11)
        c.VX = [al(), al(), 124]; c.VW = [120, 121, 122, 123]
        c.xb = [al(), al()]; c.hb = [al(), al()]; c.wb = [al() for _ in range(c.nF)]
        c.VTF = al(); c.VRA = al(); c.VPS = al(2, 4); c.VN = al(2, 2); c.REC = al(20, 4)
        assert c.VPS == 24
        return al
    def dma_setup(c, P, magic, colfn):
        a(f"""
        s_lshl_b32 s{sT0}, s{sW}, 4
        s_add_u32 s{sT0}, s{sT0}, s{sT3}
        s_max_i32 s{sT0}, s{sT0}, 0
        s_mul_i32 s{sXA}, s{sT0}, 1280
        s_sub_u32 s{sXA}, s{sXA}, 128
        s_lshl_b32 s{sT0}, s{sW}, 3
        s_add_u32 s{sT0}, s{sT0}, s{sT3}
        s_mul_i32 s{sXB}, s{sT0}, 1280
        s_add_u32 s{sXB}, s{sXB}, {128*1280-128}
        s_lshl_b32 s{sEM}, s{sW}, 10
        s_add_u32 s{sEM}, s{sEM}, 16384
        v_lshrrev_b32 v{T0}, 3, v{LANE}
        v_mul_u32_u24 v{T0}, 1280, v{T0}
        v_xor_b32 v{T1}, v{G}, v{LANE}
        v_and_b32 v{T1}, 7, v{T1}
        v_lshl_add_u32 v{c.VX[0]}, v{T1}, 4, v{T0}
        v_xor_b32 v{T2}, 64, v{c.VX[0]}
        v_add_u32 v{c.VX[1]}, {8*1280-1024}, v{T2}
        s_and_b32 s{sT0}, s{sW}, 1
        s_lshl_b32 s{sT1}, s{sT0}, 6
        v_xor_b32 v{c.VX[2]}, s{sT1}, v{c.VX[0]}
        s_lshl_b32 s{sT0}, s{sT0}, 2
        s_lshr_b32 s{sT1}, s{sW}, 1
        s_lshl_b32 s{sT1}, s{sT1}, 4
        s_add_u32 s{sT0}, s{sT0}, s{sT1}
        s_mul_i32 s{sKW}, s{sT0}, {c.wrowb}
        s_add_u32 s{sKW}, s{sKW}, s{sWO}
        s_sub_u32 s{sKW}, s{sKW}, {64*c.wrowb}
        s_mov_b32 s{sWM}, -1
        s_mov_b32 s{sWM+1}, 0xffff
        s_mul_i32 s{sWB}, s{sW}, {8*c.wrow}
        s_add_u32 s{sWB}, s{sWB}, {c.xsz}
        """)
        for u in range(c.nW):
            a(f"""
            v_add_u32 v{T0}, {64*u}, v{LANE}
            v_mul_u32_u24 v{T1}, {magic}, v{T0}
            v_lshrrev_b32 v{T1}, 16, v{T1}
            v_mul_u32_u24 v{T2}, {P}, v{T1}
            v_sub_u32 v{T0}, v{T0}, v{T2}
            """)
            colfn()
            a(f"""
            v_and_b32 v{T2}, 4, v{T1}
            v_add_u32 v{T1}, v{T1}, v{T2}
            v_mul_u32_u24 v{T1}, {c.wrowb}, v{T1}
            v_add_u32 v{T0}, v{T0}, v{T1}
            v_subrev_u32 v{c.VW[u]}, {1024*u}, v{T0}
            """)
    def half(groups, young):
        if not groups: return
        lh = a.uid("Lh")
        a(f"s_cmp_ge_u32 s{sW}, 4\ns_cbranch_scc{0 if young else 1} {lh}")
        emit(groups)
        a.label(lh)
    FLD = f"buffer_load_dwordx2 {vr(VFD,2)}, v{VF}, {sr(SFL,4)}, 0 offen sc1"
    def publish(younger, old_extra=0):
        lp, lw1 = a.uid("Lp"), a.uid("Lp")
        if old_extra:
            a(f"s_waitcnt vmcnt({younger+old_extra})\ns_cmp_lt_u32 s{sW}, 4\ns_cbranch_scc1 {lw1}")
        a(f"s_waitcnt vmcnt({younger})")
        a.label(lw1)
        a(f"""
        s_barrier
        s_cmp_lg_u32 s{sW}, 0
        s_cbranch_scc1 {lp}
        v_mov_b32 v{T0}, s{sNON}
        v_mov_b32 v{T1}, s{sNON+1}
        v_lshlrev_b32 v{T2}, 3, v{LANE}
        s_lshl_b32 s{sHF}, s{sHF}, {FSH}
        s_add_u32 s{sHF}, s{sHF}, {HFB}
        s_mov_b64 exec, {0xffff if FSH else 1}
        buffer_store_dwordx2 {vr(T0,2)}, v{T2}, {sr(SFL,4)}, s{sHF} offen sc1
        s_mov_b64 exec, -1
        """)
        a.label(lp)
        S(7)
    c = Cfg()
    c.nM, c.nF, c.nh, c.wrow, c.wrowb, c.stg, c.xsz, c.nxm, c.duty = 4, 4, 2, 480, 3840, 49152, 18432, 2, False
    al = alloc_common(c)
    c.acc = [[al(4,4) for i in range(4)] for f in range(4)]
    c.acch = [al(4,4) for f in range(2)]
    lowtop = al.n
    al = Alloc(WREG)
    c.X = [[al(4,4) for i in range(4)] for s in range(2)]
    c.XH = [al(4,4) for s in range(2)]
    c.W = [[al(4,4) for f in range(4)] for s in range(2)]
    assert al.n == 208
    c.esplit = eq; c.early = (list(range(15, 25)) + LA_ + [13, 14])[:sum(eq)]
    a(f"""
    s_lshl_b32 s{sRB}, s{sT0}, 3
    s_and_b32 s{sT3}, s{sT2}, 7
    s_add_u32 s{sRB}, s{sRB}, s{sT3}
    s_lshl_b32 s{sCB}, s{sT1}, 1
    s_lshr_b32 s{sT3}, s{sT2}, 3
    s_add_u32 s{sCB}, s{sCB}, s{sT3}
    s_lshl_b32 s{sT3}, s{sRB}, 7
    s_sub_u32 s{sT3}, s{sT3}, 16
    s_mul_i32 s{sWO}, s{sCB}, 160
    """)
    c.nW = 4; c.ffn = False; c.duty = QD < 10; c.dmask = DMQ
    if QD < 10: a(f"s_cmp_eq_u32 s{sW}, 1\ns_cselect_b32 s{sPG}, s{sPG}, 0\ns_mov_b32 s{sPFO}, {QD*64*3840}")
    dma_setup(c, 30, 2185, lambda: a(f"v_mul_u32_u24 v{T2}, 26, v{T0}\nv_lshrrev_b32 v{T2}, 8, v{T2}\nv_mul_u32_u24 v{T2}, 1120, v{T2}\nv_lshl_add_u32 v{T0}, v{T0}, 4, v{T2}"))
    srd(a, SW, P_WQ, 640*3840)
    a(f"s_add_u32 s{sT0}, s{sRB}, 16\ns_lshl_b32 s{sT0}, s{sT0}, 7\ns_lshl_b32 s{sT1}, s{sCB}, 3\ns_add_u32 s{sHF}, s{sT0}, s{sT1}")
    def q_setup():
        a(f"s_lshr_b32 s{sMH}, s{sW}, 2\ns_and_b32 s{sT0}, s{sW}, 3\ns_lshl_b32 s{sT0}, s{sT0}, 2\ns_lshl_b32 s{sT1}, s{sMH}, 1")
        for f in range(4):
            a(f"s_xor_b32 s{sT2}, s{sT1}, {f}\ns_add_u32 s{sT2}, s{sT2}, s{sT0}\ns_min_u32 s{sNT+f}, s{sT2}, 14")
        a(f"""
        s_mov_b32 s{sMSK}, 0xfffefffe
        s_mov_b32 s{sMSK+1}, 0xfffefffe
        v_lshrrev_b32 v{T0}, 1, v{R}
        v_xor_b32 v{T0}, v{T0}, v{G}
        v_lshlrev_b32 v{T0}, 4, v{T0}
        v_lshl_add_u32 v{T0}, v{R}, 7, v{T0}
        v_add_u32 v{c.hb[0]}, {c.stg}, v{T0}
        v_xor_b32 v{c.hb[1]}, 64, v{c.hb[0]}
        s_lshl_b32 s{sT0}, s{sMH}, 13
        s_add_u32 s{sT0}, s{sT0}, 2048
        v_add_u32 v{c.xb[0]}, s{sT0}, v{c.hb[0]}
        v_add_u32 v{c.xb[1]}, s{sT0}, v{c.hb[1]}
        """)
        rho_local(a, T0, T1)
        a(f"v_mul_u32_u24 v{T0}, 480, v{T0}\nv_and_b32 v{T1}, 3, v{LANE}\nv_lshl_add_u32 v{T0}, v{T1}, 3, v{T0}")
        for f in range(4):
            a(f"s_lshl_b32 s{sT0}, s{sNT+f}, 5\ns_add_u32 s{sT0}, s{sT0}, {c.xsz+c.stg}\nv_add_u32 v{c.wb[f]}, s{sT0}, v{T0}")
        a(f"v_lshlrev_b32 v{c.VRA}, {RSH}, v{R}")
        a(f"""
        s_lshl_b32 s{sT0}, s{sRB}, 7
        s_lshl_b32 s{sT1}, s{sMH}, 6
        s_add_u32 s{sT1}, s{sT1}, s{sT0}
        s_lshl_b32 s{sT1}, s{sT1}, {RSH}
        s_add_u32 s{sRM}, s{sT1}, {STO}
        s_sub_u32 s{sT0}, s{sT0}, 16
        s_max_i32 s{sT0}, s{sT0}, 0
        s_lshl_b32 s{sT0}, s{sT0}, {RSH}
        s_add_u32 s{sRH}, s{sT0}, {STO}
        """)
        for s in range(2):
            for r in range(4): a(f"v_mov_b32 v{c.XH[s]+r}, 0x3f803f80")
    pre_loop(c, q_setup)
    rec = [[f"buffer_load_dwordx4 {vr(c.REC+4*i,4)}, v{c.VRA}, {sr(SFL,4)}, s{sRM} offen offset:{(16*i)<<RSH} sc1"] for i in range(4)]
    rec.append([f"buffer_load_dwordx4 {vr(c.REC+16,4)}, v{c.VRA}, {sr(SFL,4)}, s{sRH} offen sc1"])
    CSR = lowtop; CA = 11; WA = 15
    assert CSR + 16 <= WREG and WA + 6 <= c.VTF
    c.tailx = [lines(f"""
        s_lshl_b32 s{sT3}, s{sMH}, 6
        s_add_u32 s{sT3}, s{sT3}, 16
        s_mul_i32 s{sT3}, s{sT3}, {RS}
        v_mul_u32_u24 v{T2}, {RS}, v{R}
        v_lshlrev_b32 v{T3}, 4, v{G}""")]
    for f in range(4):
        c.tailx.append(lines(f"""
        s_lshl_b32 s{sT0}, s{sNT+f}, 6
        s_add_u32 s{sT0}, s{sT0}, {L_CS}
        v_add_u32 v{CA+f}, s{sT0}, v{T3}
        s_mul_i32 s{sT0}, s{sNT+f}, 52
        s_lshr_b32 s{sT0}, s{sT0}, 8
        s_mul_i32 s{sT2}, s{sT0}, 5
        s_sub_u32 s{sT2}, s{sNT+f}, s{sT2}
        s_lshl_b32 s{sT2}, s{sT2}, 2
        s_mul_i32 s{sT0}, s{sT0}, 192
        v_add_u32 v{T0}, s{sT2}, v{G}"""))
        c.tailx.append(lines(f"""
        v_mul_u32_u24 v{T1}, 52, v{T0}
        v_lshrrev_b32 v{T1}, 8, v{T1}
        v_add_u32 v{T0}, v{T0}, v{T1}"""))
        c.tailx.append(lines(f"v_lshl_add_u32 v{T0}, v{T0}, 3, v{T2}") + ([f"v_add_u32 v{WA+4+f}, s{sT0}, v{T0}"] if f < 2 else []) +
                       lines(f"s_add_u32 s{sT0}, s{sT0}, s{sT3}\nv_add_u32 v{WA+f}, s{sT0}, v{T0}"))
    main_loop(a, c, S, "q", rec)
    a(f"s_not_b64 exec, {sr(sMSK,2)}")
    for f in range(2): a(f"ds_write_b128 v{CA+f}, {vr(c.acch[f],4)}")
    a("s_mov_b64 exec, -1")
    a(f"s_waitcnt vmcnt({c.yrec})")
    poll(a, sum(rec, []), [c.REC+4*i+2 for i in range(5)], True)
    S(55)
    a("s_waitcnt lgkmcnt(0)\ns_barrier")
    S(56)
    for f in range(4): a(f"ds_read_b128 {vr(CSR+4*f,4)}, v{CA+f}")
    rest = [p for p in (list(range(25)) + LA_ if qimg else LA_ + list(range(25))) if p not in c.early]
    rg = [wfrag(p) for p in rest]
    I = Inter(a, [], 1000)
    if qimg: I = Inter(a, rg, qimg); rg = None
    TP = c.VPS
    for f in range(4):
        I(f"s_waitcnt lgkmcnt({3-f if f == 0 else 15})" if f == 0 else "s_nop 0")
        if f == 1: I("s_waitcnt lgkmcnt(5)")
        tl = [(c.acc[f][i], WA+f, i*16*RS, c.REC+4*i) for i in range(4)]
        if f < 2: tl.append((c.acch[f], WA+4+f, 0, c.REC+16))
        for (ac, ad, off, st) in tl:
            I(f"""
            v_pk_mul_f32 {vr(TP,2)}, {vr(CSR+4*f,2)}, {vr(st,2)} op_sel:[0,1] op_sel_hi:[1,1]
            v_pk_mul_f32 {vr(TP+2,2)}, {vr(CSR+4*f+2,2)}, {vr(st,2)} op_sel:[0,1] op_sel_hi:[1,1]
            v_pk_fma_f32 {vr(ac,2)}, {vr(ac,2)}, {vr(st,2)}, {vr(TP,2)} op_sel:[0,0,0] op_sel_hi:[1,0,1]
            v_pk_fma_f32 {vr(ac+2,2)}, {vr(ac+2,2)}, {vr(st,2)}, {vr(TP+2,2)} op_sel:[0,0,0] op_sel_hi:[1,0,1]
            v_cvt_pk_bf16_f32 v{ac}, v{ac}, v{ac+1}
            v_cvt_pk_bf16_f32 v{ac+1}, v{ac+2}, v{ac+3}
            ds_write_b64 v{ad}, {vr(ac,2)} offset:{off}
            """)
    S(57)
    al = Alloc(11)
    AB = al(); OV = al(); OV1 = al(); L31 = al()
    MX = al(); SM_ = al()
    Q = al(12, 2); KB = [al(10, 2) for _ in range(5)]
    L = al(8, 2); PL = al(8); PH = al(8); O = al(20, 2); TPa = al(4)
    assert al.n <= WREG, al.n
    I(f"""
    s_and_b32 s{sT0}, s{sW}, 1
    s_lshr_b32 s{sT3}, s{sW}, 1
    s_lshl_b32 s{sT2}, s{sT3}, 5
    s_add_u32 s{sT2}, s{sT2}, 2
    v_and_b32 v{L31}, 31, v{LANE}
    v_add_u32 v{T0}, s{sT2}, v{L31}
    v_mul_u32_u24 v{T0}, {RS}, v{T0}
    v_lshrrev_b32 v{T1}, 5, v{LANE}
    v_mul_u32_u24 v{T2}, 48, v{T1}
    s_mul_i32 s{sT2}, s{sT0}, 96
    v_add3_u32 v{AB}, v{T0}, v{T2}, s{sT2}
    s_lshl_b32 s{sT2}, s{sCB}, 1
    s_add_u32 s{sT2}, s{sT2}, s{sT0}
    s_mul_i32 s{sT2}, s{sT2}, 5
    v_lshl_add_u32 v{T1}, v{T1}, 1, s{sT2}
    v_bfe_u32 v{T0}, v{LANE}, 4, 1
    v_lshlrev_b32 v{T0}, 10, v{T0}
    v_lshl_add_u32 v{T0}, v{R}, 4, v{T0}
    v_lshrrev_b32 v{T2}, 2, v{T1}
    v_lshl_add_u32 v{T2}, v{T2}, 12, v{T0}
    v_and_b32 v{T3}, 3, v{T1}
    v_lshl_add_u32 v{OV}, v{T3}, 8, v{T2}
    v_add_u32 v{T1}, 1, v{T1}
    v_lshrrev_b32 v{T2}, 2, v{T1}
    v_lshl_add_u32 v{T2}, v{T2}, 12, v{T0}
    v_and_b32 v{T3}, 3, v{T1}
    v_lshl_add_u32 v{OV1}, v{T3}, 8, v{T2}
    s_lshl_b32 s{sKX}, s{sRB}, 1
    s_add_u32 s{sKX}, s{sKX}, s{sMH}
    s_mul_i32 s{sKX}, s{sKX}, {74*4096}
    s_and_b32 s{sT1}, s{sT3}, 1
    s_lshl_b32 s{sT1}, s{sT1}, 11
    s_add_u32 s{sKX}, s{sKX}, s{sT1}
    s_add_u32 s{sT2}, s{sT2}, 4
    s_lshr_b32 s{sKW}, s{sT2}, 2
    s_lshl_b32 s{sKW}, s{sKW}, 12
    s_and_b32 s{sT2}, s{sT2}, 3
    s_lshl_b32 s{sT2}, s{sT2}, 8
    s_add_u32 s{sKW}, s{sKW}, s{sT2}
    s_add_u32 s{sKW}, s{sKW}, s{sKX}
    """)
    a("s_waitcnt lgkmcnt(0)\ns_barrier")
    OV2 = T0
    S(5)
    def rd(dst, off):
        return f"ds_read_b128 {vr(dst,4)}, v{AB} offset:{off}\nds_read_b128 {vr(dst+4,4)}, v{AB} offset:{off+16}\nds_read_b64 {vr(dst+8,2)}, v{AB} offset:{off+32}"
    offs = [(14-2*w)*RS+192 for w in range(8)] + [(14-2*w)*RS+384 for w in range(8)]
    issued = 0
    def issue(n):
        nonlocal issued
        for _ in range(n):
            if issued < 16:
                I(rd(KB[issued % 5], offs[issued])); issued += 1
    def need(idx): I(f"s_waitcnt lgkmcnt({3*(issued-1-idx)})")
    I(rd(Q, 14*RS)); issue(4)
    if rg is not None: I.g = list(rg)
    I.e = qevery
    for w in range(8): I(f"v_mov_b32 v{L+w}, 0")
    for d in range(20): I(f"v_mov_b32 v{O+d}, 0")
    for wp in range(4):
        w0, w1 = 2*wp, 2*wp+1
        need(w1)
        for d in range(10):
            for w in (w0, w1): I(f"v_dot2c_f32_bf16 v{L+w}, v{Q+d}, v{KB[w%5]+d}")
        issue(3 if wp == 0 else 2)
    lm = a.uid("Lm")
    a(f"s_or_b32 s{sT2}, s{sRB}, s{sT3}\ns_cmp_lg_u32 s{sT2}, 0\ns_cbranch_scc1 {lm}")
    a(f"v_mov_b32 v{TPa}, {f32(-1e9)}")
    for w in range(1, 8):
        a(f"v_cmp_le_u32 vcc, {2*w}, v{L31}\ns_nop 1\nv_cndmask_b32 v{L+w}, v{TPa}, v{L+w}, vcc")
    a.label(lm)
    cexp = (20 ** -0.5) * math.log2(math.e)
    I(f"""
    v_max3_f32 v{MX}, v{L}, v{L+1}, v{L+2}
    v_max3_f32 v{SM_}, v{L+3}, v{L+4}, v{L+5}
    v_max3_f32 v{MX}, v{MX}, v{L+6}, v{L+7}
    v_max_f32 v{MX}, v{MX}, v{SM_}
    """)
    for w in range(8): I(f"v_sub_f32 v{L+w}, v{L+w}, v{MX}")
    for w in range(8): I(f"v_mul_f32 v{L+w}, {f32(cexp)}, v{L+w}")
    for w in range(8): I(f"v_exp_f32 v{L+w}, v{L+w}")
    I(f"""
    v_add_f32 v{TPa}, v{L}, v{L+1}
    v_add_f32 v{TPa+1}, v{L+2}, v{L+3}
    v_add_f32 v{TPa+2}, v{L+4}, v{L+5}
    v_add_f32 v{TPa+3}, v{L+6}, v{L+7}
    v_add_f32 v{TPa}, v{TPa}, v{TPa+1}
    v_add_f32 v{TPa+2}, v{TPa+2}, v{TPa+3}
    v_add_f32 v{SM_}, v{TPa}, v{TPa+2}
    v_rcp_f32 v{SM_}, v{SM_}
    s_nop 0
    """)
    for w in range(8): I(f"v_mul_f32 v{L+w}, v{L+w}, v{SM_}")
    for w in range(8): I(f"v_cvt_pk_bf16_f32 v{PL+w}, v{L+w}, 0\nv_cvt_pk_bf16_f32 v{PH+w}, 0, v{L+w}")
    for w in range(8):
        need(8+w)
        for d in range(10):
            I(f"v_dot2c_f32_bf16 v{O+2*d}, v{KB[(8+w)%5]+d}, v{PL+w}\nv_dot2c_f32_bf16 v{O+2*d+1}, v{KB[(8+w)%5]+d}, v{PH+w}")
        issue(1)
    S(58)
    for u in (0,1,2,3,8,9,4,5,6,7): a(f"v_cvt_pk_bf16_f32 v{Q+u}, v{O+2*u}, v{O+2*u+1}")
    a(f"""
    buffer_store_dwordx4 {vr(Q,4)}, v{OV}, {sr(SHO,4)}, s{sKX} offen sc1
    v_permlane32_swap_b32 v{Q+8}, v{Q+10}
    v_permlane32_swap_b32 v{Q+9}, v{Q+11}
    buffer_store_dwordx4 {vr(Q+4,4)}, v{OV1}, {sr(SHO,4)}, s{sKX} offen sc1
    s_mov_b32 exec_hi, 0
    buffer_store_dwordx4 {vr(Q+8,4)}, v{OV2}, {sr(SHO,4)}, s{sKW} offen sc1
    s_mov_b64 exec, -1
    """)
    S(6)
    if NB: a("s_barrier")
    qleft = I.g + [wfrag(p) for p in LB]
    sp = 'spoll' in EXP or 'nofld' in EXP
    if not sp: a(FLD)
    emit(qleft[:NB])
    publish(NB+(not sp))
    def tail_loads(gr):
        if LP is None: emit(gr); return
        k = max(len(gr)-LP, 0)
        emit(gr[:k]); a(FLD); emit(gr[k:]); a(f"s_waitcnt vmcnt({len(gr)-k})")
    tail_loads(qleft[NB:])
    if not sp: a(f"s_waitcnt vmcnt({len(qleft)})")
    a("s_branch Lphase2")
    a.label("Lffn")
    if 'tl' in EXP:
        for q in range(4): a(f"v_mov_b32 v{SIDE+4+q}, 0")
        srd(a, SPF, P_WO, 640*1280); a(f"s_mov_b32 s{sTB}, {L_TST}")
    side_loads(a, stat=False, issue='tl' not in EXP)
    if dpre: emit([duty(a, dpre, False)])
    a(f"s_and_b32 s{sT0}, s2, 1\ns_bfe_u32 s{sT1}, s2, 0x20001\ns_lshr_b32 s{sT2}, s2, 3")
    if QD < 10: a(f"s_cmp_eq_u32 s{sW}, 1\ns_cselect_b32 s{sPG}, {QD*64*3840}, s{sPG}")
    c = Cfg()
    c.nM, c.nF, c.nh, c.wrow, c.wrowb, c.stg, c.xsz, c.nxm, c.duty = 5, 3, 0, 384, 3456, 49152, 20480, 4, True
    al = alloc_common(c)
    B1 = al(8, 2)
    c.acc = [[al(4,4) for i in range(5)] for f in range(3)]
    lowtop = al.n
    eal = al
    al = Alloc(WREG)
    c.X = [[al(4,4) for i in range(5)] for s in range(2)]
    c.W = [[al(4,4) for f in range(3)] for s in range(2)]
    assert al.n <= 208
    c.esplit = ef; c.early = (list(range(15, 25)) + LA_ + [13, 14])[:sum(ef)]
    a(f"""
    s_sub_u32 s{sT2}, s{sT2}, 16
    s_lshl_b32 s{sT1}, s{sT1}, 4
    s_add_u32 s{sT1}, s{sT1}, s{sT2}
    s_cmp_ge_u32 s{sT1}, 63
    s_cbranch_scc1 Lidle
    s_mul_i32 s{sCB}, s{sT1}, 37
    s_lshr_b32 s{sCB}, s{sCB}, 8
    s_sub_u32 s{sT3}, s{sCB}, s{sT0}
    s_mul_i32 s{sT3}, s{sT3}, 7
    s_sub_u32 s{sRB}, s{sT1}, s{sT3}
    s_mul_i32 s{sT3}, s{sRB}, {FROWS}
    s_mul_i32 s{sWO}, s{sCB}, 384
    """)
    c.nW = 3; c.ffn = True; c.dmask = DMASK
    dma_setup(c, 24, 2731, lambda: a(f"v_and_b32 v{T2}, 6, v{T1}\nv_xor_b32 v{T0}, v{T0}, v{T2}\nv_lshlrev_b32 v{T0}, 4, v{T0}"))
    srd(a, SW, P_W1, 640*3456)
    srd(a, SWT, P_B1, 3456)
    a(f"s_lshl_b32 s{sT0}, s{sRB}, 7\ns_lshl_b32 s{sT1}, s{sCB}, 3\ns_add_u32 s{sHF}, s{sT0}, s{sT1}")
    RHO = c.hb[0]
    def f_setup():
        a(f"""
        s_lshr_b32 s{sMH}, s{sW}, 2
        s_bfe_u32 s{sT0}, s{sW}, 0x10001
        s_and_b32 s{sT1}, s{sW}, 1
        s_mul_i32 s{sT0}, s{sT0}, 6
        s_lshl_b32 s{sT2}, s{sT1}, 2
        s_add_u32 s{sNT}, s{sT0}, s{sT2}
        s_add_u32 s{sNT+1}, s{sNT}, 1
        s_add_u32 s{sNT+2}, s{sT0}, s{sT1}
        s_add_u32 s{sNT+2}, s{sNT+2}, 2
        s_cmp_eq_u32 s{sMH}, 0
        s_cselect_b32 s{sMSK}, -1, 0x7fff7fff
        s_cselect_b32 s{sMSK+1}, -1, 0x7fff7fff
        v_lshrrev_b32 v{T0}, 1, v{R}
        v_xor_b32 v{T0}, v{T0}, v{G}
        v_lshlrev_b32 v{T0}, 4, v{T0}
        v_lshl_add_u32 v{T0}, v{R}, 7, v{T0}
        s_mul_i32 s{sT0}, s{sMH}, {5*2048}
        s_add_u32 s{sT0}, s{sT0}, {c.stg}
        v_add_u32 v{c.xb[0]}, s{sT0}, v{T0}
        v_xor_b32 v{c.xb[1]}, 64, v{c.xb[0]}
        """)
        rho_local(a, T0, T1)
        a(f"""
        v_bfe_u32 v{T2}, v{T0}, 1, 2
        v_mul_u32_u24 v{T0}, 384, v{T0}
        v_and_b32 v{T1}, 3, v{LANE}
        v_lshl_add_u32 v{T0}, v{T1}, 3, v{T0}
        v_add_u32 v{T0}, {c.xsz+c.stg}, v{T0}
        """)
        for f in range(3):
            a(f"v_xor_b32 v{T1}, s{sNT+f}, v{T2}\nv_lshl_add_u32 v{c.wb[f]}, v{T1}, 5, v{T0}")
        a(f"""
        s_mul_i32 s{sT0}, s{sRB}, {FROWS}
        s_mul_i32 s{sT1}, s{sMH}, 80
        s_add_u32 s{sT0}, s{sT0}, s{sT1}
        v_add_u32 v{RHO}, s{sT0}, v{R}
        v_lshlrev_b32 v{T0}, {RSH}, v{RHO}
        v_add_u32 v{c.VRA}, {STO}, v{T0}
        """)
        for s in range(2):
            for r in range(4): a(f"v_mov_b32 v{c.X[s][4]+r}, 0x3f803f80")
        a(f"v_lshlrev_b32 v{T0}, 3, v{G}\ns_mul_i32 s{sT2}, s{sCB}, 384")
        for f in range(3):
            a(f"s_lshl_b32 s{sT1}, s{sNT+f}, 5\ns_add_u32 s{sT1}, s{sT1}, s{sT2}")
            a(f"buffer_load_dwordx2 {vr(B1+2*f,2)}, v{T0}, {sr(SWT,4)}, s{sT1} offen")
    pre_loop(c, f_setup)
    rec = [[f"v_add_u32 v{T3}, {(16*i)<<RSH}, v{c.VRA}", f"v_min_u32 v{T3}, {STO+(2047<<RSH)}, v{T3}",
            f"buffer_load_dwordx4 {vr(c.REC+4*i,4)}, v{T3}, {sr(SFL,4)}, 0 offen sc1"] for i in range(5)]
    CA = 17
    c.tailx = [[f"v_lshlrev_b32 v{T3}, 4, v{G}"]] + [lines(f"s_lshl_b32 s{sT0}, s{sNT+f}, 6\ns_add_u32 s{sT0}, s{sT0}, {L_CS}\nv_add_u32 v{CA+f}, s{sT0}, v{T3}") for f in range(3)]
    main_loop(a, c, S, "f", rec)
    a(f"s_waitcnt vmcnt({c.yrec})")
    poll(a, sum(rec, []), [c.REC+4*i+2 for i in range(5)], True)
    lc = a.uid("Lc")
    a(f"s_cmp_eq_u32 s{sMH}, 0\ns_cbranch_scc1 {lc}\ns_not_b64 exec, {sr(sMSK,2)}")
    for f in range(3): a(f"ds_write_b128 v{CA+f}, {vr(c.acc[f][4],4)}")
    a("s_mov_b64 exec, -1\ns_waitcnt lgkmcnt(0)")
    a.label(lc)
    a("s_barrier")
    CC = c.VPS; VA = 11
    CSR = eal(12, 2); TT = [eal(2,2) for _ in range(4)] + [12, B1+6]
    assert eal.n <= WREG, eal.n
    for f in range(3): a(f"ds_read_b128 {vr(CSR+4*f,4)}, v{CA+f}")
    BFp = [c.REC+4*i+2 for i in range(5)] + [B1+4]
    OUTP = [B1, 16]; SG = 20
    assert RHO == 15
    rest = [p for p in list(range(25)) + LA_ + LB if p not in c.early]
    rg = [wfrag(p) for p in rest]
    fn1 = min(fn1, len(rg)-(1 if 35 in LB else 0))
    F1, F2 = rg[:fn1], rg[fn1:]
    I = Inter(a, [], 1000)
    if fevery:
        I = Inter(a, F1, fevery); F1 = []
    half(F1, True)
    c0 = -2*math.sqrt(2/math.pi)*math.log2(math.e); c1 = c0*0.044715
    for j in range(5): I(f"v_lshlrev_b32 v{BFp[j]}, 16, v{B1+j}\nv_and_b32 v{BFp[j]+1}, 0xffff0000, v{B1+j}")
    I(f"v_lshlrev_b32 v{B1+4}, 16, v{B1+5}\nv_and_b32 v{B1+5}, 0xffff0000, v{B1+5}")
    I(f"v_mov_b32 v{CC}, {f32(c0)}\nv_mov_b32 v{CC+1}, {f32(c1)}\nv_mov_b32 v{CC+2}, 1.0")
    I(f"""
    v_and_b32 v{T2}, 15, v{RHO}
    v_lshlrev_b32 v{T2}, 4, v{T2}
    v_lshl_add_u32 v{T1}, v{G}, 8, v{T2}
    v_and_b32 v{T3}, 1, v{G}
    v_lshl_add_u32 v14, v{T3}, 8, v{T2}
    v_lshrrev_b32 v{T0}, 4, v{RHO}
    v_lshrrev_b32 v{T3}, 5, v{LANE}
    v_add_u32 v{RHO}, v{T0}, v{T3}
    s_mul_i32 s{sT2}, s{sCB}, 6
    s_add_u32 s{sT2}, s{sT2}, 20
    s_lshr_b32 s{sT0}, s{sNT}, 1
    s_add_u32 s{sT0}, s{sT0}, s{sT2}
    s_lshl_b32 s{sKX}, s{sT0}, 12
    s_lshr_b32 s{sT0}, s{sNT+2}, 1
    s_add_u32 s{sT0}, s{sT0}, s{sT2}
    s_lshl_b32 s{sKW}, s{sT0}, 12
    s_and_b32 s{sT0}, s{sNT+2}, 1
    s_lshl_b32 s{sT0}, s{sT0}, 9
    s_add_u32 s{sKW}, s{sKW}, s{sT0}
    s_mov_b32 s{sT3}, {74*4096}
    s_waitcnt lgkmcnt(0)
    """)
    a(f"s_cmp_eq_u32 s{sMH}, 0\ns_cselect_b32 s{sMSK}, -1, 0x00ff00ff\ns_mov_b32 s{sMSK+1}, s{sMSK}")
    def gelu_pair(h, cs, b, st, t, dst):
        return [f"v_pk_fma_f32 {vr(t,2)}, {vr(cs,2)}, {vr(st,2)}, {vr(b,2)} op_sel:[0,1,0] op_sel_hi:[1,1,1]",
                f"v_pk_fma_f32 {vr(h,2)}, {vr(h,2)}, {vr(st,2)}, {vr(t,2)} op_sel:[0,0,0] op_sel_hi:[1,0,1]",
                f"v_pk_mul_f32 {vr(t,2)}, {vr(h,2)}, {vr(h,2)}",
                f"v_pk_fma_f32 {vr(t,2)}, {vr(t,2)}, {vr(CC,2)}, {vr(CC,2)} op_sel:[0,1,0] op_sel_hi:[1,1,0]",
                f"v_pk_mul_f32 {vr(t,2)}, {vr(t,2)}, {vr(h,2)}",
                f"v_exp_f32 v{t}, v{t}",
                f"v_exp_f32 v{t+1}, v{t+1}",
                f"v_pk_add_f32 {vr(t,2)}, {vr(t,2)}, {vr(CC+2,2)} op_sel_hi:[1,0]",
                f"v_rcp_f32 v{t}, v{t}",
                f"v_rcp_f32 v{t+1}, v{t+1}",
                f"v_pk_mul_f32 {vr(t,2)}, {vr(t,2)}, {vr(h,2)}",
                f"v_cvt_pk_bf16_f32 v{dst}, v{t}, v{t+1}"]
    def blkaddr(dst, tile, low):
        I(f"""
        v_lshrrev_b32 v{T2}, 2, v{tile}
        v_mul_u32_u24 v{T2}, s{sT3}, v{T2}
        v_and_b32 v{T3}, 3, v{tile}
        v_lshl_add_u32 v{T2}, v{T3}, 10, v{T2}
        v_add_u32 v{dst}, v{T2}, v{low}
        """)
    for i in range(5):
        o = OUTP[i & 1]
        streams = [gelu_pair(c.acc[f][i]+2*hp, CSR+4*f+2*hp, BFp[2*f+hp], c.REC+4*i, TT[2*f+hp],
                             (o+2*f+hp) if f < 2 else (SG+2*(i&1)+hp)) for f in range(3) for hp in range(2)]
        for k in range(len(streams[0])):
            for s in streams: I(s[k])
        blkaddr(VA, T0, T1)
        I(f"v_add_u32 v{T0}, 1, v{T0}")
        if i == 4: a(f"s_mov_b64 exec, {sr(sMSK,2)}")
        a(f"buffer_store_dwordx4 {vr(o,4)}, v{VA}, {sr(SHO,4)}, s{sKX} offen sc1")
        if i == 4: a("s_mov_b64 exec, -1")
        if i & 1 or i == 4:
            a(f"v_permlane32_swap_b32 v{SG}, v{SG+2}\nv_permlane32_swap_b32 v{SG+1}, v{SG+3}")
            blkaddr(VA, RHO, 14)
            I(f"v_add_u32 v{RHO}, 2, v{RHO}")
            if i == 4: a(f"s_mov_b32 exec_lo, s{sMSK}\ns_mov_b32 exec_hi, 0")
            a(f"buffer_store_dwordx4 {vr(SG,4)}, v{VA}, {sr(SHO,4)}, s{sKW} offen sc1")
            if i == 4: a("s_mov_b64 exec, -1")
    S(6)
    F2 = I.g + F2
    half(F1, False)
    if not sp: a(FLD)
    nb = 0
    emit(F2[:nb])
    publish(nb+(not sp), len(F1))
    tail_loads(F2[nb:])
    if not sp: a(f"s_waitcnt vmcnt({len(F2)})")
    a("s_branch Lphase2")
    a.label("Lidle")
    late_srds()
    emit([duty(a, 6, False)])
    if 'tl' in EXP:
        lt_ = a.uid("Ltl")
        a(f"s_cmp_lt_u32 s{sW}, 2\ns_cbranch_scc1 {lt_}")
        t_issue(a)
        a.label(lt_)
    p2_setup(a, 11)
    a("s_waitcnt vmcnt(0)")
    t_work(a)
    a(f"v_mov_b32 v14, 0\nv_mov_b32 v15, 0\ns_waitcnt vmcnt(0)\ns_barrier")
    nonce_get(a, 14, 12)
    poll(a, [f"buffer_load_dwordx2 v[14:15], v11, {sr(SFL,4)}, 0 offen sc1"], [14], False)
    for l in p2_ldsbases(): a(l)
    emit([wfrag(p) for p in c.early + rest])
    a(f"v_mov_b32 v{VFD}, 0\nv_mov_b32 v{VFD+1}, 0")
    a.label("Lphase2")
    al = Alloc(12)
    al(2, 2); VLA = al(); VLB = al()
    acc = [[al(4,4) for m in range(4)] for n in range(5)]
    BUF = [al(16, 4), al(16, 4), WREG]
    XR = al(6, 2)
    B2 = [al(2, 2), WREG+16, WREG+18]
    assert al.n <= WREG, al.n
    S(8)
    if 'spoll' in EXP:
        l0, l1 = a.uid("Lsp"), a.uid("Lsp")
        a(f"v_readlane_b32 s{sPFO}, v{VF}, 0\nv_readlane_b32 s{sPFS}, v{VF}, 2\ns_mov_b32 s{sSP}, 0\ns_nop 3")
        a.label(l0)
        a(f"""
        s_buffer_load_dwordx4 s[12:15], {sr(SFL,4)}, s{sPFO} glc
        s_buffer_load_dwordx4 {sr(STMP,4)}, {sr(SFL,4)}, s{sPFS} glc
        s_add_u32 s{sSP}, s{sSP}, 1
        s_cmp_gt_u32 s{sSP}, 400000
        s_cbranch_scc1 {l1}
        s_waitcnt lgkmcnt(0)
        s_cmp_lg_u64 s[12:13], {sr(sNON,2)}
        s_cbranch_scc1 {l0}
        s_cmp_lg_u64 s[14:15], {sr(sNON,2)}
        s_cbranch_scc1 {l0}
        s_cmp_lg_u64 {sr(STMP,2)}, {sr(sNON,2)}
        s_cbranch_scc1 {l0}
        s_cmp_lg_u64 {sr(STMP+2,2)}, {sr(sNON,2)}
        s_cbranch_scc1 {l0}
        """)
        a.label(l1)
        a("s_waitcnt lgkmcnt(0)")
    elif 'nopoll' not in EXP: poll(a, [FLD], [VFD], 'nofld' not in EXP or LP is not None, SLEEP)
    S(9)
    RS_ = [WR0+20*t for t in range(5)]
    abuf = {u: BUF[u % 3] for u in range(9)}; abuf[9] = RS_[0]
    wloc = {u: RS_[u] for u in range(5)}
    wloc.update({5: RS_[0], 6: RS_[1], 7: RS_[2], 8: RS_[3], 9: RS_[4]})
    def aload(t):
        g = [[f"buffer_load_dwordx4 {vr(abuf[t]+4*m,4)}, v{VL}, {sr(SPF,4)}, s{sT3} offen offset:{1024*m} sc1"] for m in range(4)]
        g[0] = [f"s_lshl_b32 s{sT3}, s{sK+t}, 12"] + g[0]
        return g
    ops = []
    for t in (0, 1, 2): emit(aload(t)); ops += [t]*4
    SOX, SOB = [sKX, sKW, sDELTA], [sSLOT, sW1K, sMH]
    setup = [lines(f"v_add_u32 v{VLA}, s{sFILL}, v{VL}\nv_add_u32 v{VLB}, s{sFW}, v{VL}\ns_mul_i32 s{sT0}, s{sC2}, 160")]
    for j in range(3):
        setup += chunks(lines(f"""
        s_add_u32 s{sT1}, s{sW}, {8*j}
        s_mul_i32 s{sT2}, s{sT1}, 52
        s_lshr_b32 s{sT2}, s{sT2}, 8
        s_mul_i32 s{sT3}, s{sT2}, 5
        s_sub_u32 s{sT1}, s{sT1}, s{sT3}
        s_lshl_b32 s{sT1}, s{sT1}, 5
        s_mul_i32 s{sT2}, s{sT2}, 20480
        s_add_u32 s{SOX[j]}, s{sT2}, s{sT1}
        s_add_u32 s{SOB[j]}, s{sT0}, s{sT1}
        """), 3)
    for d, p, sz in ((STMP, P_B2, 1280), (SW, P_OUT, XB)):
        setup += [[f"s_mov_b32 s{d}, s{p}", f"s_mov_b32 s{d+1}, s{p+1}"], [f"s_mov_b32 s{d+2}, {sz}", f"s_mov_b32 s{d+3}, 0x00020000"]]
    setup.append([f"v_lshlrev_b32 v{T1}, 3, v{G}"])
    def pw(n, m):
        q = m*5+n
        ad, off = (VLA, q*1024) if q < 8 else (VLB, (q-8)*1024)
        return f"ds_write_b128 v{ad}, {vr(acc[n][m],4)} offset:{off}"
    def sonly(groups):
        lab = a.uid("Lso")
        return [f"s_cmp_ge_u32 s{sW}, 2", f"s_cbranch_scc1 {lab}"] + sum(groups, []) + [lab + ":"]
    tl = [(n, m) for n in range(5) for m in range(4)]
    for t in (0, 1, 2, 3, 4, 5, 6, 7, 9, 8):
        if t == 9:
            a(f"s_cmp_ge_u32 s{sW}, 2\ns_cbranch_scc1 Lp2skip")
            a(f"s_waitcnt vmcnt(6)")
        else:
            if t == 8: a.label("Lp2skip")
            younger = len(ops) - 1 - max(i for i, o in enumerate(ops) if o == t)
            a(f"s_waitcnt vmcnt({younger})" + (" lgkmcnt(0)" if t == 5 else ""))
        M = [mfma(acc[n][m], wloc[t]+4*n, abuf[t]+4*m, t == 0) for (n, m) in tl]
        items = []
        if t == 0: items += even(setup, 20, 0)
        vm = []
        if 1 <= t <= 6: vm += [(t+2, g) for g in aload(t+2)]
        if 1 <= t <= 4 and t+4 >= 9-nlate: vm += [(t+4, wfrag((t+4)*5+n, wloc[t+4]+4*n)) for n in range(5)]
        for k, (tag_, g) in enumerate(vm):
            items.append(((k*18)//len(vm), g)); ops.append(tag_)
        if 1 <= t <= 4 and t+4 < 9-nlate:
            for n in range(5):
                phi = (t+4)*5+n
                ad, off = (VLA, (phi-25)*1024) if phi < 33 else (VLB, (phi-33)*1024)
                items.append((2+4*n, [f"ds_read_b128 {vr(wloc[t+4]+4*n,4)}, v{ad} offset:{off}"]))
        if t == 5: items.append((18, sonly([wfrag(45+n, wloc[9]+4*n) for n in range(5)])))
        if t == 6: items.append((18, sonly(aload(9))))
        if t == 7:
            for j in range(3): items.append((1+6*j, [f"buffer_load_dwordx2 {vr(XR+2*j,2)}, v{VXO}, {sr(SX,4)}, s{SOX[j]} offen"])); ops.append('x')
            for j in range(3): items.append((4+6*j, [f"buffer_load_dwordx2 {vr(B2[j],2)}, v{T1}, {sr(STMP,4)}, s{SOB[j]} offen"])); ops.append('b')
        if t == 8: items += [(k, [pw(*tl[k-8])]) for k in range(8, 20)]
        for l in spread(M, items): a(l)
        if t == 8:
            a("s_nop 0")
            for k in range(12, 20): a(pw(*tl[k]))
        if t != 8 and 'p2st' in EXP: S(40+t)
    a(f"""
    s_lshl_b32 s{sT0}, s{sW}, 10
    v_add_u32 v{T0}, s{sT0}, v{VL}
    v_add_u32 v{T2}, {L_A}, v{T0}
    v_add_u32 v{T3}, {4*12288}, v{T0}
    """)
    S(52)
    a("s_waitcnt lgkmcnt(0)\ns_barrier")
    S(53)
    P = [[acc[0][0] + (j*8+s)*4 for s in range(8)] for j in range(3)]
    assert P[2][7]+4 <= XR
    def rdtile(j):
        for s in range(8):
            if j == 0: ad, off = T2, s*8192
            else: ad, off = (T0 if s < 4 else T3), (s%4)*12288 + (j-1)*8192
            a(f"ds_read_b128 {vr(P[j][s],4)}, v{ad} offset:{off}")
    L2E = f32(-math.log2(math.e))
    def fin(j):
        o = []
        p = P[j]
        Sx, Y, Z = p[0], p[2], p[3]
        for h in (0, 2):
            for k in (0, 2, 4, 6): o.append(f"v_pk_add_f32 {vr(p[k]+h,2)}, {vr(p[k]+h,2)}, {vr(p[k+1]+h,2)}")
        def unp(x, q):
            return lines(f"v_lshlrev_b32 v{x}, 16, v{q}\nv_and_b32 v{x+1}, 0xffff0000, v{q}\nv_lshlrev_b32 v{x+2}, 16, v{q+1}\nv_and_b32 v{x+3}, 0xffff0000, v{q+1}")
        o += unp(Z, B2[j])
        for h in (0, 2):
            o.append(f"v_pk_add_f32 {vr(p[2]+h,2)}, {vr(p[2]+h,2)}, {vr(p[4]+h,2)}")
            o.append(f"v_pk_add_f32 {vr(p[6]+h,2)}, {vr(p[6]+h,2)}, {vr(Z+h,2)}")
        for h in (0, 2): o.append(f"v_pk_add_f32 {vr(Y+h,2)}, {vr(Y+h,2)}, {vr(p[6]+h,2)}")
        for r in range(4): o.append(f"v_mul_f32 v{Z+r}, {L2E}, v{Y+r}")
        for r in range(4): o.append(f"v_exp_f32 v{Z+r}, v{Z+r}")
        for r in range(4): o.append(f"v_add_f32 v{Z+r}, 1.0, v{Z+r}")
        for r in range(4): o.append(f"v_rcp_f32 v{Z+r}, v{Z+r}")
        for h in (0, 2): o.append(f"v_pk_mul_f32 {vr(Y+h,2)}, {vr(Y+h,2)}, {vr(Sx+h,2)}")
        o += unp(p[4], XR+2*j)
        for r in range(4): o.append(f"v_fma_f32 v{Y+r}, v{Y+r}, v{Z+r}, v{p[4]+r}")
        o += [f"v_cvt_pk_bf16_f32 v{Sx}, v{Y}, v{Y+1}", f"v_cvt_pk_bf16_f32 v{Sx+1}, v{Y+2}, v{Y+3}",
              f"buffer_store_dwordx2 {vr(Sx,2)}, v{VXO}, {sr(SW,4)}, s{SOX[j]} offen {OSF}"]
        return o
    rdtile(0); rdtile(1)
    l3 = a.uid("L3")
    a(f"s_cmp_ge_u32 s{sW}, 4\ns_cbranch_scc1 {l3}")
    rdtile(2)
    a("s_waitcnt vmcnt(0) lgkmcnt(8)")
    for x, y in zip(fin(0), fin(1)): a(x); a(y)
    a("s_waitcnt lgkmcnt(0)")
    for x in fin(2): a(x)
    a("s_branch Lfin")
    a.label(l3)
    a("s_waitcnt vmcnt(0) lgkmcnt(0)")
    for x, y in zip(fin(0), fin(1)): a(x); a(y)
    a.label("Lfin")
    S.finish(54)
    a.label("Lend")
    a("s_endpgm")
    ref = open(f"cdna_kernels/{NAME}.s.ref").read().split("\n")
    hdr = [l for l in ref if l.startswith(";") and "@launch" not in l]
    out = "\n".join(hdr) + f"\n; @launch grid=(256,1,1) block=(512,1,1) lds={LDS_TOTAL}\n"
    out += DOC
    out += '.amdgcn_target "amdgcn-amd-amdhsa--gfx950"\n' + khead(name) + a.text() + kd(name, 256, 102)
    return out

if __name__ == "__main__":
    path = sys.argv[1]
    kw = eval("dict(" + (sys.argv[2] if len(sys.argv) > 2 else "") + ")")
    open(path, "w").write(gen(**kw))
```
